```python
import torch

def _softmax(x, axis=-1):
    return torch.softmax(x, dim=axis)
def _gelu(x):
    return torch.nn.functional.gelu(x, approximate="tanh")
def _silu(x):
    return torch.nn.functional.silu(x)
def _sigmoid(x):
    return torch.sigmoid(x)
def _layernorm(x, axis=-1, eps=1e-5):
    m = x.mean(dim=axis, keepdim=True)
    v = x.var(dim=axis, keepdim=True, unbiased=False)
    return (x - m) / torch.sqrt(v + eps)
def _scatter_add(tgt, idx, src, axis=0):
    return tgt.clone().index_add_(axis, idx, src)
def _segment_sum(src, seg, n):
    out = torch.zeros((n,) + src.shape[1:], dtype=src.dtype)
    return out.index_add_(0, seg, src)
def _pad(x, pw):
    flat = tuple(v for pair in reversed(pw) for v in pair)
    return torch.nn.functional.pad(x, flat)

kernel_name = 'concat_heads__softmax_full_mha__mha_block__prompt'

def setup_inputs():

    _w = (lambda a: (lambda t: t.to(torch.bfloat16) if t.is_floating_point() else t)(torch.as_tensor(a)))
    def _A_setup():
        B, S, D = 1, 2048, 640
        return {
            "x": _w((lambda *s: torch.randn(*s, dtype=torch.bfloat16) * 0.2)(B, S, D)),
            "wqkv": _w((lambda *s: torch.randn(*s, dtype=torch.bfloat16) * 0.2)(D, 3 * D)),
            "wo": _w((lambda *s: torch.randn(*s, dtype=torch.bfloat16) * 0.05)(D, D)),
        }
    _A_in = _A_setup()

    def _B_setup():
        B, S, D, H = 1, 2048, 640, 32
        return {
            "x": _w((lambda *s: torch.randn(*s, dtype=torch.bfloat16) * 0.2)(B, S, D)),
            "wqkv": _w((lambda *s: torch.randn(*s, dtype=torch.bfloat16) * 0.2)(D, 3 * D)),
            "wo": _w((lambda *s: torch.randn(*s, dtype=torch.bfloat16) * 0.05)(D, D)),
        }
    _B_in = _B_setup()

    return {
        "A_x": _A_in["x"],
        "A_wqkv": _A_in["wqkv"],
        "A_wo": _A_in["wo"],
        "B_x": _B_in["x"],
        "B_wqkv": _B_in["wqkv"],
        "B_wo": _B_in["wo"],
    }

def reference(A_x, A_wqkv, A_wo, B_x, B_wqkv, B_wo):
    def _A_ref(x, wqkv, wo):
        B, S, D = x.shape
        H = 32; Dh = D // H
        qkv = (lambda x, *d: x.permute(*d))((x @ wqkv).reshape(B, S, 3, H, Dh), 2, 0, 3, 1, 4)
        q, k, v = qkv[0], qkv[1], qkv[2]
        scale = Dh ** -0.5
        scores = torch.einsum("bhqd,bhkd->bhqk", q, k) * scale
        p = _softmax(scores, axis=-1)
        o = torch.einsum("bhqk,bhkd->bhqd", p, v)
        return (lambda x, *d: x.permute(*d))(o, 0, 2, 1, 3).reshape(B, S, D) @ wo

    def _B_ref(x, wqkv, wo):
        B, S, D = x.shape
        H = 32
        Dh = D // H
        qkv = (lambda x, *d: x.permute(*d))((x @ wqkv).reshape(B, S, 3, H, Dh), 2, 0, 3, 1, 4)
        q, k, v = qkv[0], qkv[1], qkv[2]
        scores = torch.einsum("bhqd,bhkd->bhqk", q, k) * (Dh ** -0.5)
        p = _softmax(scores, axis=-1)
        o = torch.einsum("bhqk,bhkd->bhqd", p, v)
        return (lambda x, *d: x.permute(*d))(o, 0, 2, 1, 3).reshape(B, S, D) @ wo

    a = _A_ref(A_x, A_wqkv, A_wo)
    b = _B_ref(B_x, B_wqkv, B_wo)
    return torch.concatenate([a, b], axis=-1)
```

```python
import sys, importlib
from common import *

def build(parts):
    a = Asm()
    head = HEADER
    for mod, label, grid, block, lds in parts:
        head += f"; @launch kernel={label} grid=({grid},1,1) block=({block},1,1) lds={lds}\n"
    a('.amdgcn_target "amdgcn-amd-amdhsa--gfx950"\n.text')
    for mod, label, *_ in parts:
        mod.gen(a, label)
    out = head + a.text() + '.section .rodata,"a"\n'
    for mod, label, *_ in parts:
        out += ".p2align 6\n" + mod.desc(label)
    return out
```

```python
S = 2048
D = 640
NH = 32
DH = 20
NAME = "concat_heads__softmax_full_mha__mha_block__prompt"

QK_HEAD = 81920
QK_CHUNK = 5120
V_TILE = 1344
V_CHUNK = 4 * V_TILE
V_HEAD = 64 * V_TILE
WS_Q = 0
WS_K = WS_Q + 64 * QK_HEAD
WS_V = WS_K + 64 * QK_HEAD
WS_O = WS_V + 64 * V_HEAD
O_TILE = 160 * 256
WS_END = WS_O + 2 * 64 * O_TILE
WS_SIZE = 268435456

QSCALE = 1.4426950408889634 * (20 ** -0.5)


def f32bits(x):
    import struct
    return struct.unpack("<I", struct.pack("<f", x))[0]


class Asm:
    def __init__(self):
        self.l = []

    def __call__(self, s):
        for line in s.split("\n"):
            line = line.strip()
            if not line:
                continue
            if line.endswith(":") or line.startswith("."):
                self.l.append(line)
            else:
                self.l.append("    " + line)

    def c(self, s):
        self.l.append("    ; " + s)

    def text(self):
        return "\n".join(self.l) + "\n"


def vr(a, n):
    return f"v[{a}:{a + n - 1}]" if n > 1 else f"v{a}"


def ar(a, n):
    return f"a[{a}:{a + n - 1}]" if n > 1 else f"a{a}"


def sr(a, n):
    return f"s[{a}:{a + n - 1}]" if n > 1 else f"s{a}"


def kernel_head(a, label):
    a(f".globl {label}\n.p2align 8\n.type {label},@function\n{label}:")


def kernel_desc(label, nvgpr, accum, nsgpr=96):
    return f""".amdhsa_kernel {label}
  .amdhsa_next_free_vgpr {nvgpr}
  .amdhsa_next_free_sgpr {nsgpr}
  .amdhsa_accum_offset {accum}
  .amdhsa_group_segment_fixed_size 0
  .amdhsa_kernarg_size 72
  .amdhsa_user_sgpr_count 2
  .amdhsa_user_sgpr_kernarg_segment_ptr 1
  .amdhsa_system_sgpr_workgroup_id_x 1
.end_amdhsa_kernel
"""


HEADER = """; Kernarg layout for this problem (72 bytes, ptrs only, base s[0:1]):
"""


STAMP = False
WS_STAMP = WS_END + 65536
STAMP_S = 64


def stamp(a, i):
    if STAMP:
        a(f"s_memtime s[{STAMP_S+4*i}:{STAMP_S+4*i+1}]")
        a(f"s_memrealtime s[{STAMP_S+4*i+2}:{STAMP_S+4*i+3}]")


def stamp_flush(a, n, slot, srd, s_wave, nwaves, vtmp):
    if not STAMP:
        return
    a("s_waitcnt lgkmcnt(0)")
    a("s_mov_b64 exec, 1")
    a(f"s_mul_i32 s60, s2, {nwaves}")
    a(f"s_add_u32 s60, s60, s{s_wave}")
    a(f"s_lshl_b32 s60, s60, 6")
    a(f"s_add_u32 s60, s60, {WS_STAMP + slot * 4096 * 64}")
    a(f"v_mov_b32 v{vtmp+2}, 0")
    for i in range(n):
        a(f"v_mov_b32 v{vtmp}, s{STAMP_S+4*i}")
        a(f"v_mov_b32 v{vtmp+1}, s{STAMP_S+4*i+2}")
        a(f"buffer_store_dwordx2 v[{vtmp}:{vtmp+1}], v{vtmp+2}, s[{srd}:{srd+3}], s60 offen offset:{8*i}")
        a("s_nop 1")


def ws_records():
    return WS_STAMP + 4 * 4096 * 64 if STAMP else WS_END
```

```python
from common import *
import common

NWG = 240
STAGE = 49152
XB = 32768
LDS_BYTES = 3 * STAGE
NKB = 10

sX, sWt, sWS = 8, 12, 16
sW, sB, sCG, sTB = 20, 21, 22, 23
sKB, sIt, sSlot = 24, 25, 26
sXo, sWo = 27, 28
sT0, sT1, sT2, sT3 = 29, 30, 31, 32
sInc = 33
sScale = 34
sStage = 35

vXA = [2, 3, 4, 5]
vWA = [6, 7]
vT = [8, 9, 10, 11, 12, 13, 14, 15]
XF = [16, 32]
WF = [48, 56]
ACC = 128
NVGPR = 256


def acc(t, c):
    return ACC + 16 * (2 * t + c)


def frag_reads(buf, s):
    out = []
    for c in range(2):
        for u in range(2):
            out.append(f"ds_read_b64_tr_b16 {vr(WF[buf] + 4*c + 2*u, 2)}, v{vWA[c]} offset:{XB + s*4096 + u*1024}")
    for t in range(4):
        out.append(f"ds_read_b128 {vr(XF[buf] + 4*t, 4)}, v{vXA[s]} offset:{t*4096}")
    return out


def mfmas(buf, vtype, first):
    out = []
    for t in range(4):
        for c in range(2):
            x, w = vr(XF[buf] + 4*t, 4), vr(WF[buf] + 4*c, 4)
            A, B = (x, w) if vtype else (w, x)
            cin = "0" if first else vr(acc(t, c), 16)
            out.append(f"v_mfma_f32_32x32x16_bf16 {vr(acc(t,c),16)}, {A}, {B}, {cin}")
    return out


def compute_loop(a, vtype):
    L = "L1v" if vtype else "L1q"
    a("s_barrier")
    for r in frag_reads(0, 0):
        a(r)
    a(f"s_mov_b32 s{sIt}, {NKB - 1}")
    a(f"s_mov_b32 s{sSlot}, 0")
    a(f"s_mov_b32 s{sStage}, {STAGE}")
    a(f".p2align 6\n{L}_loop:")
    for s in range(4):
        buf = s & 1
        m = mfmas(buf, vtype, False)
        a("s_waitcnt lgkmcnt(0)")
        if s < 3:
            rd = frag_reads(buf ^ 1, s + 1)
            for i in range(8):
                a(m[i])
                a(rd[i])
        else:
            a.c("all reads of this stage are done: release it and move to the next slot")
            a(f"""
            s_barrier
            s_add_u32 s{sSlot}, s{sSlot}, 1
            s_cmp_eq_u32 s{sSlot}, 3
            s_cselect_b32 s{sInc}, {(-2 * STAGE) & 0xffffffff}, s{sStage}
            s_cselect_b32 s{sSlot}, 0, s{sSlot}
            """)
            a(m[0])
            for r in vWA + vXA:
                a(f"v_add_u32 v{r}, s{sInc}, v{r}")
            rd = frag_reads(0, 0)
            a(rd[0])
            for i in range(1, 8):
                a(m[i])
                a(rd[i])
            a(f"s_sub_u32 s{sIt}, s{sIt}, 1")
            a(f"s_cbranch_scc0 {L}_loop")
            a("s_waitcnt lgkmcnt(0)")


def gen(a, label):
    kernel_head(a, label)
    a(f"""
    s_cmp_ge_u32 s2, {NWG}
    s_cbranch_scc1 L1_end
    """)
    stamp(a, 0)
    a(f"""
    s_and_b32 s{sT0}, s2, 7
    s_lshr_b32 s{sB}, s{sT0}, 2
    s_mul_i32 s{sT1}, s{sB}, 24
    s_add_u32 s4, s0, s{sT1}
    s_addc_u32 s5, s1, 0
    s_load_dwordx2 s[{sX}:{sX+1}], s[4:5], 0
    s_load_dwordx2 s[{sWt}:{sWt+1}], s[4:5], 8
    s_load_dwordx2 s[{sWS}:{sWS+1}], s[0:1], 64
    v_lshrrev_b32 v1, 6, v0
    v_and_b32 v0, 63, v0
    v_readfirstlane_b32 s{sW}, v1
    s_and_b32 s{sT1}, s{sT0}, 1
    s_mul_i32 s{sT1}, s{sT1}, 30
    s_lshr_b32 s{sT2}, s2, 3
    s_add_u32 s{sT1}, s{sT1}, s{sT2}
    s_lshr_b32 s{sCG}, s{sT1}, 2
    s_and_b32 s{sTB}, s{sT1}, 3
    s_mul_i32 s{sKB}, s{sTB}, 3
    s_add_u32 s{sKB}, s{sKB}, s{sCG}
    s_and_b32 s{sT2}, s{sT0}, 2
    s_lshl_b32 s{sT2}, s{sT2}, 1
    s_add_u32 s{sTB}, s{sTB}, s{sT2}
    s_mul_i32 s{sT2}, s{sKB}, 205
    s_lshr_b32 s{sT2}, s{sT2}, 11
    s_mul_i32 s{sT2}, s{sT2}, 10
    s_sub_u32 s{sKB}, s{sKB}, s{sT2}
    s_mov_b32 s{sX+2}, {S * D * 2}
    s_mov_b32 s{sX+3}, 0x00020000
    s_mov_b32 s{sWt+2}, {D * 3 * D * 2}
    s_mov_b32 s{sWt+3}, 0x00020000
    s_mov_b32 s{sWS+2}, {ws_records()}
    s_mov_b32 s{sWS+3}, 0x00020000
    s_cmp_lt_u32 s{sW}, 4
    s_cbranch_scc1 L1_compute
    """)
    vE, vO, vWs = 2, 3, 4
    a(f"""
    s_sub_u32 s{sW}, s{sW}, 4
    v_lshrrev_b32 v5, 3, v0
    v_mul_u32_u24 v5, 1280, v5
    v_and_b32 v6, 7, v0
    v_lshrrev_b32 v7, 4, v0
    v_xor_b32 v6, v6, v7
    v_lshlrev_b32 v6, 4, v6
    v_add_u32 v{vE}, v5, v6
    v_xor_b32 v6, 64, v6
    v_add_u32 v{vO}, v5, v6
    v_add_u32 v{vO}, {8 * 1280 - 1024}, v{vO}
    v_lshrrev_b32 v5, 2, v0
    v_and_b32 v5, 3, v5
    v_xor_b32 v5, v5, v7
    v_lshlrev_b32 v5, 6, v5
    v_and_b32 v6, 3, v0
    v_lshlrev_b32 v6, 4, v6
    v_add_u32 v5, v5, v6
    v_mul_u32_u24 v6, 3840, v7
    v_add_u32 v{vWs}, v5, v6
    s_lshl_b32 s{sXo}, s{sTB}, 2
    s_add_u32 s{sXo}, s{sXo}, s{sW}
    s_mul_i32 s{sXo}, s{sXo}, {64 * 1280}
    s_mul_i32 s{sWo}, s{sW}, {16 * 3840}
    s_lshl_b32 s{sT0}, s{sCG}, 8
    s_add_u32 s{sWo}, s{sWo}, s{sT0}
    s_mov_b32 s{sSlot}, 0
    s_mov_b32 s{sIt}, 0
    s_waitcnt lgkmcnt(0)
    s_and_b32 s{sX+1}, s{sX+1}, 0xffff
    s_and_b32 s{sWt+1}, s{sWt+1}, 0xffff
    s_and_b32 s{sWS+1}, s{sWS+1}, 0xffff
    L1_ld:
    s_lshl_b32 s{sT0}, s{sKB}, 7
    s_add_u32 s{sT0}, s{sT0}, s{sXo}
    s_mul_i32 s{sT1}, s{sKB}, {64 * 3840}
    s_add_u32 s{sT1}, s{sT1}, s{sWo}
    s_lshl_b32 s{sT2}, s{sW}, 12
    s_add_u32 s{sT2}, s{sT2}, s{sSlot}
    s_add_u32 m0, s{sT2}, {XB}
    s_lshl_b32 s{sT3}, s{sW}, 13
    s_add_u32 s{sT3}, s{sT3}, s{sSlot}
    """)
    for p in range(4):
        a(f"buffer_load_dwordx4 v{vWs}, s[{sWt}:{sWt+3}], s{sT1} offen lds")
        if p < 3:
            a(f"s_add_u32 m0, m0, 1024")
            a(f"s_add_u32 s{sT1}, s{sT1}, {4 * 3840}")
    a(f"s_mov_b32 m0, s{sT3}")
    a(f"s_add_u32 s{sKB}, s{sKB}, 1")
    for p in range(4):
        a(f"buffer_load_dwordx4 v{vE}, s[{sX}:{sX+3}], s{sT0} offen lds")
        a(f"buffer_load_dwordx4 v{vO}, s[{sX}:{sX+3}], s{sT0} offen offset:1024 lds")
        if p < 3:
            a(f"s_add_u32 m0, m0, 2048")
            a(f"s_add_u32 s{sT0}, s{sT0}, {16 * 1280}")
    a(f"""
    s_cmp_eq_u32 s{sKB}, {NKB}
    s_cselect_b32 s{sKB}, 0, s{sKB}
    s_add_u32 s{sSlot}, s{sSlot}, {STAGE}
    s_cmp_eq_u32 s{sSlot}, {3 * STAGE}
    s_cselect_b32 s{sSlot}, 0, s{sSlot}
    s_add_u32 s{sIt}, s{sIt}, 1
    s_cmp_lt_u32 s{sIt}, 3
    s_cbranch_scc1 L1_ld
    s_cmp_eq_u32 s{sIt}, 3
    s_cbranch_scc0 L1_ld_steady
    s_waitcnt vmcnt(24)
    s_barrier
    L1_ld_steady:
    s_waitcnt vmcnt(12)
    s_barrier
    s_cmp_lt_u32 s{sIt}, {NKB}
    s_cbranch_scc1 L1_ld
    s_waitcnt vmcnt(0)
    s_barrier
    """)
    a.c("ones rows of the V image (they produce the softmax row sums in the attention kernel)")
    a(f"""
    s_lshl_b32 s{sT0}, s2, 2
    s_add_u32 s{sT0}, s{sT0}, s{sW}
    s_cmp_ge_u32 s{sT0}, 256
    s_cbranch_scc1 L1_ld_done
    s_mul_i32 s{sT0}, s{sT0}, {64 * 336}
    s_add_u32 s{sT0}, s{sT0}, {WS_V + 320}
    v_mul_u32_u24 v5, 336, v0
    v_mov_b32 v8, 0x3f803f80
    v_mov_b32 v9, 0x3f803f80
    v_mov_b32 v10, 0x3f803f80
    v_mov_b32 v11, 0x3f803f80
    buffer_store_dwordx4 v[8:11], v5, s[{sWS}:{sWS+3}], s{sT0} offen
    L1_ld_done:
    s_barrier
    s_endpgm
    """)
    t0, t1, t2, t3 = vT[:4]
    a(f"""
    L1_compute:
    v_and_b32 v{t0}, 31, v0
    v_lshrrev_b32 v{t1}, 5, v0
    v_lshrrev_b32 v{t2}, 1, v{t0}
    v_and_b32 v{t2}, 7, v{t2}
    v_xor_b32 v{t2}, v{t2}, v{t1}
    v_lshlrev_b32 v{t2}, 4, v{t2}
    v_lshlrev_b32 v{t0}, 7, v{t0}
    v_add_u32 v{t2}, v{t2}, v{t0}
    s_and_b32 s{sT0}, s{sW}, 1
    s_lshl_b32 s{sT0}, s{sT0}, 14
    v_add_u32 v{vXA[0]}, s{sT0}, v{t2}
    v_xor_b32 v{vXA[1]}, 32, v{vXA[0]}
    v_xor_b32 v{vXA[2]}, 64, v{vXA[0]}
    v_xor_b32 v{vXA[3]}, 96, v{vXA[0]}
    v_lshrrev_b32 v{t0}, 2, v0
    v_and_b32 v{t0}, 3, v{t0}
    v_lshlrev_b32 v{t2}, 3, v{t1}
    v_add_u32 v{t2}, v{t2}, v{t0}
    v_lshlrev_b32 v{t2}, 8, v{t2}
    s_and_b32 s{sT0}, s{sW}, 2
    v_xor_b32 v{t0}, s{sT0}, v{t0}
    v_lshlrev_b32 v{t0}, 6, v{t0}
    v_add_u32 v{t2}, v{t2}, v{t0}
    v_and_b32 v{t0}, 16, v0
    v_lshlrev_b32 v{t0}, 1, v{t0}
    v_add_u32 v{t2}, v{t2}, v{t0}
    v_and_b32 v{t0}, 3, v0
    v_lshlrev_b32 v{t0}, 3, v{t0}
    v_add_u32 v{vWA[0]}, v{t2}, v{t0}
    v_xor_b32 v{vWA[1]}, 64, v{vWA[0]}
    """)
    for r in range(128):
        a(f"v_mov_b32 v{ACC + r}, 0")
    a(f"""
    s_waitcnt lgkmcnt(0)
    s_and_b32 s{sWS+1}, s{sWS+1}, 0xffff
    s_cmp_ge_u32 s{sCG}, 10
    s_cbranch_scc1 L1_vtype
    """)
    compute_loop(a, False)
    stamp(a, 1)
    a(f"""
    s_cmp_ge_u32 s{sCG}, 5
    s_cselect_b32 s{sScale}, 1.0, {hex(f32bits(QSCALE))}
    s_cselect_b32 s{sT0}, {WS_K}, {WS_Q}
    s_cselect_b32 s{sT1}, 5, 0
    s_sub_u32 s{sT1}, s{sCG}, s{sT1}
    s_lshl_b32 s{sT1}, s{sT1}, 5
    s_and_b32 s{sT2}, s{sW}, 2
    s_lshl_b32 s{sT2}, s{sT2}, 3
    s_add_u32 s{sT1}, s{sT1}, s{sT2}
    s_mul_i32 s{sT2}, s{sB}, {32 * QK_HEAD}
    s_add_u32 s{sT0}, s{sT0}, s{sT2}
    s_lshl_b32 s{sT2}, s{sTB}, 1
    s_and_b32 s{sT3}, s{sW}, 1
    s_add_u32 s{sT2}, s{sT2}, s{sT3}
    s_mul_i32 s{sT2}, s{sT2}, {QK_CHUNK}
    s_add_u32 s{sT0}, s{sT0}, s{sT2}
    s_mov_b32 s{sT2}, {QK_HEAD}
    v_lshrrev_b32 v2, 5, v0
    v_add_u32 v2, s{sT1}, v2
    v_and_b32 v3, 31, v0
    v_lshlrev_b32 v3, 3, v3
    v_mov_b32 v4, 1024
    v_mov_b32 v5, 256
    """)
    n = 0
    for c in range(2):
        for rq in range(4):
            ad, pi = 16 + 2 * n, 17 + 2 * n
            n += 1
            a(f"""
            v_add_u32 v6, {8 * c + 2 * rq}, v2
            v_mul_u32_u24 v7, 205, v6
            v_lshrrev_b32 v7, 10, v7
            v_mul_u32_u24 v8, 5, v7
            v_sub_u32 v8, v6, v8
            v_cmp_gt_u32 vcc, 4, v8
            v_lshlrev_b32 v8, 8, v8
            v_add_u32 v8, 1024, v8
            v_cndmask_b32 v8, 0, v8, vcc
            v_cndmask_b32 v{pi}, v5, v4, vcc
            v_mul_lo_u32 v7, v7, s{sT2}
            v_add3_u32 v{ad}, v7, v8, v3
            """)
    for t in range(4):
        n = 0
        for c in range(2):
            A = acc(t, c)
            for r in range(16):
                a(f"v_mul_f32 v{A+r}, s{sScale}, v{A+r}")
            for j in range(8):
                a(f"v_cvt_pk_bf16_f32 v{A+j}, v{A+2*j}, v{A+2*j+1}")
            for rq in range(4):
                ad, pi = 16 + 2 * n, 17 + 2 * n
                n += 1
                a(f"buffer_store_dwordx2 {vr(A + 2*rq, 2)}, v{ad}, s[{sWS}:{sWS+3}], s{sT0} offen")
                if t < 3:
                    a(f"v_add_u32 v{ad}, v{ad}, v{pi}")
    a("s_branch L1_fin")
    a("L1_vtype:")
    compute_loop(a, True)
    stamp(a, 1)
    a(f"""
    s_sub_u32 s{sT1}, s{sCG}, 10
    s_lshl_b32 s{sT1}, s{sT1}, 7
    s_and_b32 s{sT2}, s{sW}, 2
    s_lshl_b32 s{sT2}, s{sT2}, 5
    s_add_u32 s{sT1}, s{sT1}, s{sT2}
    s_mul_i32 s{sT0}, s{sB}, {32 * V_HEAD}
    s_add_u32 s{sT0}, s{sT0}, {WS_V}
    s_lshl_b32 s{sT2}, s{sTB}, 1
    s_and_b32 s{sT3}, s{sW}, 1
    s_add_u32 s{sT2}, s{sT2}, s{sT3}
    s_mul_i32 s{sT2}, s{sT2}, {V_CHUNK}
    s_add_u32 s{sT0}, s{sT0}, s{sT2}
    s_add_u32 s{sT3}, s{sT0}, {2 * V_TILE}
    s_mov_b32 s{sT2}, {V_HEAD}
    v_and_b32 v2, 31, v0
    v_add_u32 v2, s{sT1}, v2
    v_lshrrev_b32 v3, 5, v0
    v_mul_u32_u24 v3, 21, v3
    """)
    for c in range(2):
        a(f"""
        v_add_u32 v6, {32 * c}, v2
        v_mul_u32_u24 v7, 3277, v6
        v_lshrrev_b32 v7, 16, v7
        v_mul_u32_u24 v8, 20, v7
        v_sub_u32 v8, v6, v8
        v_add_lshl_u32 v8, v8, v3, 4
        v_mul_lo_u32 v7, v7, s{sT2}
        v_add_u32 v{16+c}, v7, v8
        """)
    for t in range(4):
        for c in range(2):
            A = acc(t, c)
            for j in range(8):
                a(f"v_cvt_pk_bf16_f32 v{A+j}, v{A+2*j}, v{A+2*j+1}")
            so = sT0 if t < 2 else sT3
            for j in range(2):
                a(f"buffer_store_dwordx4 {vr(A + 4*j, 4)}, v{16+c}, s[{sWS}:{sWS+3}], s{so} offen offset:{(t & 1) * V_TILE + j * (V_TILE // 2)}")
    a("L1_fin:")
    if common.STAMP:
        stamp(a, 2)
        a("s_waitcnt vmcnt(0)")
        stamp(a, 3)
        stamp_flush(a, 4, 0, sWS, sW, 4, 4)
    a("L1_end:\ns_endpgm")


def desc(label):
    return kernel_desc(label, NVGPR, NVGPR)
```

```python
from common import *
import common

LDS_K = 0
LDS_V = QK_HEAD
LDS_BYTES = 163840

vKA, vVA, vT0, vT1 = 1, 2, 3, 14
Qm = [4, 8]
Qe = 12
Km = [16, 20]
Ke = 24
Vb = [[28, 32], [36, 40]]
vG = 44
vVG = 45
NM = 48
SB = [80, 112]
OA = [144, 160]
QX = 176
NVGPR = 184

sWS = 8
sW, sG, sQQ = 12, 13, 14
sKo, sVo, sQo = 15, 16, 17
sRem, sEv, sVinc = 18, 19, 20
sT0, sT1, sT2 = 21, 22, 23
sOo = 24


OPT = set()


def mfma32(d, a_, b, c):
    return f"v_mfma_f32_32x32x16_bf16 {vr(d,16)}, {vr(a_,4)}, {vr(b,4)}, {c}"


def mfma2b(d, ke_tile, c):
    return (f"v_mfma_f32_32x32x4_2b_bf16 {vr(d,32)}, {vr(Ke + 2 * (ke_tile >> 1), 2)}, {vr(Qe,2)}, {c}"
            f" cbsz:1 abid:{ke_tile & 1}")


def valu_stream(X, Y):
    def e(base, i): return f"v_exp_f32 v{base+i}, v{base+i}"
    def c(j):
        dst = X + 8 * (j // 4) + (j % 4)
        return f"v_cvt_pk_bf16_f32 v{dst}, v{X+2*j}, v{X+2*j+1}"
    out = [e(X, 1)]
    for j in range(16):
        out.append(e(X, 2 * j + 2) if j < 15 else e(Y, 0))
        out.append(c(j))
        if j < 15:
            out.append(e(X, 2 * j + 3))
    assert len(out) == 48
    return out


def tile_iter(a, ii):
    par = ii & 1
    X, Y = SB[par], SB[par ^ 1]
    Vc, Vn = Vb[par], Vb[par ^ 1]
    Kc, Kn = Km[par ^ 1], Km[par]
    v = valu_stream(X, Y)
    t1 = ii + 1
    voff = (t1 % 4) * V_TILE
    t2 = ii + 2
    ko = 2 + 2 * t2 if t2 < 4 else 12 + 2 * (t2 - 4)
    ins = {}
    def pv(o, vv, p):
        if 'pvswap' in OPT:
            return mfma32(o, p, vv, vr(o, 16))
        return mfma32(o, vv, p, vr(o, 16))
    c2b = '0' if 'c0' in OPT else vr(NM, 32)
    ins[2] = [pv(OA[1], Vn[1], Y + 24),
              f"ds_read_b128 {vr(Vn[0],4)}, v{vVA} offset:{voff}"]
    ins[7] = [mfma2b(Y, t1 % 4, c2b)]
    if 'x8' in OPT:
        kt = t1 % 4
        ke = vr(Ke + 2 * (kt >> 1), 2)
        ins[7] = [f"v_mfma_f32_32x32x8_bf16 {vr(Y,16)}, {ke}, {vr(QX + 2 * (kt & 1), 2)}, {vr(NM,16)}"]
        ins[12] = [f"v_mfma_f32_32x32x8_bf16 {vr(Y+16,16)}, {ke}, {vr(QX + 4 + 2 * (kt & 1), 2)}, {vr(NM+16,16)}"]
    ins[17] = [pv(OA[0], Vc[0], X),
               f"ds_read_b128 {vr(Vn[1],4)}, v{vVA} offset:{voff + V_TILE // 2}"]
    ins[23] = [mfma32(Y, Kc, Qm[0], vr(Y, 16)),
               f"ds_read2st64_b64 {vr(Kn,4)}, v{vKA} offset0:{ko} offset1:{ko+1}"]
    ins[29] = [pv(OA[0], Vc[1], X + 8)]
    if ii == 2:
        ins[29].append(f"ds_read2st64_b64 {vr(Ke,4)}, v{vKA} offset0:10 offset1:11")
    ins[35] = [mfma32(Y + 16, Kc, Qm[1], vr(Y + 16, 16))]
    if ii == 3:
        ins[35].append(f"s_sub_u32 s{sRem}, s{sRem}, 1")
    ins[41] = [pv(OA[1], Vc[0], X + 16),
               "s_waitcnt lgkmcnt(0)"]
    if 'only16' in OPT:
        ins[7] = ["v_nop"]
        ins[23][0] = mfma32(Y, Kc, Qm[0], vr(NM, 16))
        ins[35][0] = mfma32(Y + 16, Kc, Qm[1], vr(NM + 16, 16))
    if 'chain' in OPT:
        ins[17][0], ins[23][0] = ins[23][0], ins[17][0]
        ins[19] = ins.pop(17)
        ins[25] = ins.pop(23)
        ins[30] = ins.pop(29)
        ins[7], ins[1] = ins[2], ins[7]
    if ii == 2:
        ins[44] = [f"v_add_u32 v{vVA}, s{sVinc}, v{vVA}"]
    if ii == 3:
        ins[44] = [f"v_add_u32 v{vKA}, {QK_CHUNK}, v{vKA}"]
    for p, op in enumerate(v):
        for x in ins.get(p, []):
            if 'nopv' in OPT and p in (2, 17, 29, 41) and 'mfma' in x: x = "v_nop\nv_nop"
            if 'noqk' in OPT and p in (23, 35) and 'mfma' in x: x = "v_nop\nv_nop"
            if 'no2b' in OPT and p == 7: x = "v_nop"
            if 'nods' in OPT and 'ds_read' in x: x = "s_nop 0"
            a(x)
        if 'noexp' in OPT and 'v_exp' in op: op = "v_nop\nv_nop"
        if 'nocvt' in OPT and 'v_cvt' in op: op = "v_nop"
        a(op)


def rowmax(a, X, out0, out1):
    for base, o in ((X, out0), (X + 16, out1)):
        a(f"v_max3_f32 v{o}, v{base}, v{base+1}, v{base+2}")
        for r in range(3, 15, 2):
            a(f"v_max3_f32 v{o}, v{o}, v{base+r}, v{base+r+1}")
        a(f"v_max_f32 v{o}, v{o}, v{base+15}")


def cross_half_max(a, r, tmp):
    a(f"v_mov_b32 v{tmp}, v{r}")
    a("s_nop 1")
    a(f"v_permlane32_swap_b32 v{tmp}, v{r}")
    a("s_nop 1")
    a(f"v_max_f32 v{r}, v{r}, v{tmp}")


def fill_nm(a, m0, m1):
    for r in range(16):
        a(f"v_sub_f32 v{NM+r}, 0, v{m0}")
    for r in range(16):
        a(f"v_sub_f32 v{NM+16+r}, 0, v{m1}")


def gen(a, label):
    kernel_head(a, label)
    a(f"""
    s_cmp_ge_u32 s2, 256
    s_cbranch_scc1 L2_end
    """)
    stamp(a, 0)
    a(f"""
    s_load_dwordx2 s[{sWS}:{sWS+1}], s[0:1], 64
    v_lshrrev_b32 v{vT0}, 6, v0
    v_and_b32 v0, 63, v0
    v_readfirstlane_b32 s{sW}, v{vT0}
    s_and_b32 s{sG}, s2, 7
    s_lshr_b32 s{sT0}, s2, 5
    s_lshl_b32 s{sT0}, s{sT0}, 3
    s_add_u32 s{sG}, s{sG}, s{sT0}
    s_lshr_b32 s{sQQ}, s2, 3
    s_and_b32 s{sQQ}, s{sQQ}, 3
    s_mov_b32 s{sWS+2}, {ws_records()}
    s_mov_b32 s{sWS+3}, 0x00020000
    v_lshlrev_b32 v{vG}, 4, v0
    v_lshlrev_b32 v{vKA}, 3, v0
    s_mul_i32 s{sT0}, s{sG}, {QK_HEAD}
    s_lshl_b32 s{sT1}, s{sW}, 10
    s_add_u32 s{sKo}, s{sT0}, {WS_K}
    s_add_u32 s{sKo}, s{sKo}, s{sT1}
    s_mul_i32 s{sVo}, s{sG}, {V_HEAD}
    s_add_u32 s{sVo}, s{sVo}, {WS_V}
    s_add_u32 s{sVo}, s{sVo}, s{sT1}
    """)
    a.c("Q offset: chunk = qq*4 + (w>>1), tiles 2*(w&1)+u")
    a(f"""
    s_lshl_b32 s{sQo}, s{sQQ}, 2
    s_lshr_b32 s{sT2}, s{sW}, 1
    s_add_u32 s{sQo}, s{sQo}, s{sT2}
    s_mul_i32 s{sQo}, s{sQo}, {QK_CHUNK}
    s_add_u32 s{sQo}, s{sQo}, s{sT0}
    s_and_b32 s{sT2}, s{sW}, 1
    s_lshl_b32 s{sT0}, s{sT2}, 9
    s_add_u32 s{sT0}, s{sT0}, s{sQo}
    s_lshl_b32 s{sT2}, s{sT2}, 11
    s_add_u32 s{sQo}, s{sQo}, s{sT2}
    s_mov_b32 m0, s{sT1}
    s_waitcnt lgkmcnt(0)
    s_and_b32 s{sWS+1}, s{sWS+1}, 0xffff
    buffer_load_dwordx4 v{vG}, s[{sWS}:{sWS+3}], s{sKo} offen lds
    s_add_u32 m0, s{sT1}, {LDS_V}
    buffer_load_dwordx2 {vr(Qe,2)}, v{vKA}, s[{sWS}:{sWS+3}], s{sT0} offen
    buffer_load_dwordx4 v{vG}, s[{sWS}:{sWS+3}], s{sVo} offen lds
    buffer_load_dwordx2 {vr(Qm[0],2)}, v{vKA}, s[{sWS}:{sWS+3}], s{sQo} offen offset:1024
    buffer_load_dwordx2 {vr(Qm[0]+2,2)}, v{vKA}, s[{sWS}:{sWS+3}], s{sQo} offen offset:1536
    buffer_load_dwordx2 {vr(Qm[1],2)}, v{vKA}, s[{sWS}:{sWS+3}], s{sQo} offen offset:2048
    buffer_load_dwordx2 {vr(Qm[1]+2,2)}, v{vKA}, s[{sWS}:{sWS+3}], s{sQo} offen offset:2560
    s_mov_b32 s{sT0}, 8192
    L2_dma:
    s_add_u32 m0, s{sT1}, s{sT0}
    s_add_u32 s{sT2}, s{sKo}, s{sT0}
    buffer_load_dwordx4 v{vG}, s[{sWS}:{sWS+3}], s{sT2} offen lds
    s_add_u32 m0, m0, {LDS_V}
    s_add_u32 s{sT2}, s{sVo}, s{sT0}
    buffer_load_dwordx4 v{vG}, s[{sWS}:{sWS+3}], s{sT2} offen lds
    s_add_u32 s{sT0}, s{sT0}, 8192
    s_cmp_lt_u32 s{sT0}, 81920
    s_cbranch_scc1 L2_dma
    """)
    a.c("per-lane V offset: rows 0..19 data, 20..27 the ones slot, 28..31 slots 12..15")
    a(f"""
    v_and_b32 v{vT0}, 31, v0
    v_min_u32 v{vVA}, 20, v{vT0}
    v_subrev_u32 v{vT1}, 16, v{vT0}
    v_cmp_lt_u32 vcc, 27, v{vT0}
    v_lshrrev_b32 v{vT0}, 5, v0
    v_mul_u32_u24 v{vT0}, 21, v{vT0}
    v_cndmask_b32 v{vVA}, v{vVA}, v{vT1}, vcc
    v_add_u32 v{vVA}, v{vVA}, v{vT0}
    v_lshlrev_b32 v{vVG}, 4, v{vVA}
    v_add_u32 v{vVA}, {LDS_V}, v{vVG}
    """)
    if 'zrows' in OPT:
        a.c("rows 21..23 and 25..31 read past the LDS allocation, which returns zeros")
        a(f"""
        v_and_b32 v{vT0}, 31, v0
        v_cmp_lt_u32 vcc, 20, v{vT0}
        v_cmp_ne_u32 s[26:27], 24, v{vT0}
        s_and_b64 vcc, vcc, s[26:27]
        v_mov_b32 v{vT1}, 0x100000
        s_nop 1
        v_cndmask_b32 v{vVA}, v{vVA}, v{vT1}, vcc
        """)
    for r in range(32):
        a(f"v_mov_b32 v{OA[0]+r}, 0")
    for r in range(4):
        a(f"v_mov_b32 v{SB[1]+24+r}, 0")
        a(f"v_mov_b32 v{Vb[1][1]+r}, 0")
    a(f"""
    s_mov_b32 s{sVinc}, {V_CHUNK}
    s_mov_b32 s{sRem}, 0
    s_mov_b32 s{sEv}, 0
    s_waitcnt vmcnt(18)
    s_barrier
    """)
    stamp(a, 1)
    if common.STAMP: a("s_waitcnt lgkmcnt(0)")
    a(f"""
    ds_read2st64_b64 {vr(Ke,4)}, v{vKA} offset0:0 offset1:1
    ds_read2st64_b64 {vr(Km[0],4)}, v{vKA} offset0:2 offset1:3
    ds_read2st64_b64 {vr(Km[1],4)}, v{vKA} offset0:4 offset1:5
    ds_read_b128 {vr(Vb[0][0],4)}, v{vVA}
    ds_read_b128 {vr(Vb[0][1],4)}, v{vVA} offset:{V_TILE//2}
    s_waitcnt lgkmcnt(3)
    """)
    X = SB[0]
    if 'x8' in OPT:
        for r in range(2):
            a(f"v_mov_b32 v{QX+r}, v{Qe+r}")
            a(f"v_mov_b32 v{QX+2+r}, 0")
            a(f"v_mov_b32 v{QX+4+r}, 0")
            a(f"v_mov_b32 v{QX+6+r}, v{Qe+r}")
            a("s_nop 1")
            a(f"v_permlane32_swap_b32 v{QX+r}, v{QX+4+r}")
            a(f"v_permlane32_swap_b32 v{QX+2+r}, v{QX+6+r}")
    a(mfma32(X, Km[0], Qm[0], 0))
    a(mfma32(X + 16, Km[0], Qm[1], 0))
    a("s_nop 9")
    a(mfma2b(X, 0, vr(X, 32)))
    a("s_nop 15\ns_nop 3")
    a.c("softmax shift: row max over the first key tile; the epilogue checks that it was safe")
    rowmax(a, X, vT0, vT1)
    cross_half_max(a, vT0, vG)
    cross_half_max(a, vT1, vG)
    fill_nm(a, vT0, vT1)
    for r in range(32):
        a(f"v_add_f32 v{X+r}, v{X+r}, v{NM+r}")
    a(f"v_lshlrev_b32 v{vG}, 4, v0")
    a(f"v_exp_f32 v{X}, v{X}")
    stamp(a, 2)
    a("s_waitcnt lgkmcnt(0)")
    a(".p2align 6\nL2_loop:")
    for ii in range(4):
        tile_iter(a, ii)
    a(f"""
    s_cbranch_scc0 L2_loop
    s_add_u32 s{sEv}, s{sEv}, 1
    s_cmp_eq_u32 s{sEv}, 1
    s_cbranch_scc0 L2_ev2
    s_mov_b32 s{sRem}, 2
    s_waitcnt vmcnt(14)
    s_barrier
    """)
    stamp(a, 5)
    a(f"""
    s_branch L2_loop
    L2_ev2:
    s_cmp_eq_u32 s{sEv}, 2
    s_cbranch_scc0 L2_ev3
    s_mov_b32 s{sRem}, 9
    s_waitcnt vmcnt(0)
    s_barrier
    """)
    stamp(a, 6)
    a(f"""
    s_cmp_ge_u32 s{sW}, 6
    s_cbranch_scc1 L2_loop
    s_add_u32 m0, s{sT1}, {LDS_V}
    s_add_u32 s{sT2}, s{sVo}, {15 * V_CHUNK}
    buffer_load_dwordx4 v{vG}, s[{sWS}:{sWS+3}], s{sT2} offen lds
    s_branch L2_loop
    L2_ev3:
    s_cmp_eq_u32 s{sEv}, 3
    s_cbranch_scc0 L2_ev4
    s_mov_b32 s{sRem}, 0
    s_mov_b32 s{sVinc}, {(-14 * V_CHUNK) & 0xffffffff}
    s_waitcnt vmcnt(0)
    s_barrier
    """)
    stamp(a, 7)
    a(f"""
    s_branch L2_loop
    L2_ev4:
    s_cmp_eq_u32 s{sEv}, 4
    s_cbranch_scc0 L2_fin
    s_mov_b32 s{sRem}, 0
    s_mov_b32 s{sVinc}, 0
    s_branch L2_loop
    L2_fin:
    """)
    stamp(a, 3)
    a(mfma32(OA[1], Vb[1][1], SB[1] + 24, vr(OA[1], 16)))
    a.c("O image offset: [branch][token tile][quad][32 tok][8 B]")
    a(f"""
    s_lshr_b32 s{sT0}, s{sG}, 5
    s_lshl_b32 s{sT0}, s{sT0}, 6
    s_lshl_b32 s{sT2}, s{sQQ}, 4
    s_add_u32 s{sT0}, s{sT0}, s{sT2}
    s_lshl_b32 s{sT2}, s{sW}, 1
    s_add_u32 s{sT0}, s{sT0}, s{sT2}
    s_mul_i32 s{sOo}, s{sT0}, {O_TILE}
    s_and_b32 s{sT2}, s{sG}, 31
    s_mul_i32 s{sT2}, s{sT2}, 1280
    s_add_u32 s{sOo}, s{sOo}, s{sT2}
    s_add_u32 s{sOo}, s{sOo}, {WS_O}
    s_mov_b32 s{sEv}, 0
    L2_epi:
    v_cmp_lt_u32 vcc, 31, v0
    s_mov_b32 s{sT0}, {f32bits(2.0**30)}
    s_mov_b32 s{sT2}, {f32bits(2.0**-30)}
    v_cndmask_b32 v{vT0}, v{OA[0]+12}, v{OA[0]+8}, vcc
    v_cndmask_b32 v{vT1}, v{OA[1]+12}, v{OA[1]+8}, vcc
    """)
    a.c("safety check of the shift: row sums inside [2^-30, 2^30] and finite accumulators")
    tm = SB[0]
    a(f"v_add_f32 v{tm}, |v{OA[0]}|, |v{OA[1]}|")
    a(f"v_add_f32 v{tm+5}, |v{OA[0]+1}|, |v{OA[1]+1}|")
    for r in range(2, 12):
        a(f"v_add_f32 v{tm}, v{tm}, |v{OA[0]+r}|")
        a(f"v_add_f32 v{tm+5}, v{tm+5}, |v{OA[1]+r}|")
    a(f"v_add_f32 v{tm}, v{tm}, v{tm+5}")
    a(f"""
    v_max_f32 v{tm+1}, v{vT0}, v{vT1}
    v_min_f32 v{tm+2}, v{vT0}, v{vT1}
    v_add_f32 v{tm+3}, v{vT0}, v{vT1}
    v_cmp_gt_f32 s[26:27], s{sT0}, v{tm+1}
    v_cmp_lt_f32 s[28:29], s{sT2}, v{tm+2}
    v_mov_b32 v{tm+4}, 0x7f800000
    v_cmp_gt_f32 s[30:31], v{tm+4}, v{tm}
    v_cmp_gt_f32 vcc, v{tm+4}, v{tm+3}
    s_and_b64 s[26:27], s[26:27], s[28:29]
    s_and_b64 s[30:31], s[30:31], vcc
    s_and_b64 s[26:27], s[26:27], s[30:31]
    s_cmp_eq_u64 s[26:27], -1
    s_cselect_b32 s{sT0}, 1, s{sEv}
    s_cmp_eq_u32 s{sT0}, 0
    {'s_nop 0' if len(OPT - {'zrows', 'x8'}) else 's_cbranch_scc1 L2_slow'}
    v_rcp_f32 v{vT0}, v{vT0}
    v_rcp_f32 v{vT1}, v{vT1}
    v_lshlrev_b32 v{vKA}, 3, v0
    """)
    for u, rc in ((0, vT0), (1, vT1)):
        O = OA[u]
        for r in range(12):
            a(f"v_mul_f32 v{O+r}, v{O+r}, v{rc}")
        for j in range(6):
            a(f"v_cvt_pk_bf16_f32 v{O+j}, v{O+2*j}, v{O+2*j+1}")
    a(f"""
    s_add_u32 s{sT0}, s{sOo}, {O_TILE}
    buffer_store_dwordx2 {vr(OA[0],2)}, v{vKA}, s[{sWS}:{sWS+3}], s{sOo} offen
    buffer_store_dwordx2 {vr(OA[0]+2,2)}, v{vKA}, s[{sWS}:{sWS+3}], s{sOo} offen offset:512
    buffer_store_dwordx2 {vr(OA[1],2)}, v{vKA}, s[{sWS}:{sWS+3}], s{sT0} offen
    buffer_store_dwordx2 {vr(OA[1]+2,2)}, v{vKA}, s[{sWS}:{sWS+3}], s{sT0} offen offset:512
    s_mov_b32 exec_hi, 0
    buffer_store_dwordx2 {vr(OA[0]+4,2)}, v{vKA}, s[{sWS}:{sWS+3}], s{sOo} offen offset:1024
    buffer_store_dwordx2 {vr(OA[1]+4,2)}, v{vKA}, s[{sWS}:{sWS+3}], s{sT0} offen offset:1024
    """)
    if common.STAMP: a("s_waitcnt vmcnt(0)")
    stamp(a, 4)
    stamp_flush(a, 8, 1, sWS, sW, 8, 4)
    a("""
    L2_end:
    s_endpgm
    """)
    slow_path(a)


def slow_path(a):
    X = SB[0]
    m0, m1, t0, t1 = SB[1], SB[1] + 1, SB[1] + 2, SB[1] + 3
    a(f"""
    L2_slow:
    v_mov_b32 v{m0}, 0xff800000
    v_mov_b32 v{m1}, 0xff800000
    v_lshlrev_b32 v{vKA}, 3, v0
    s_mov_b32 s{sRem}, 0
    L2_slow_max:
    ds_read2st64_b64 {vr(Ke,4)}, v{vKA} offset0:0 offset1:1
    """)
    for t in range(4):
        a(f"ds_read2st64_b64 {vr(Km[0],4)}, v{vKA} offset0:{2+2*t} offset1:{3+2*t}")
        a("s_waitcnt lgkmcnt(0)")
        a(mfma32(X, Km[0], Qm[0], 0))
        a(mfma32(X + 16, Km[0], Qm[1], 0))
        a("s_nop 9")
        a(mfma2b(X, t, vr(X, 32)))
        a("s_nop 15\ns_nop 3")
        rowmax(a, X, t0, t1)
        a(f"v_max_f32 v{m0}, v{m0}, v{t0}")
        a(f"v_max_f32 v{m1}, v{m1}, v{t1}")
    a(f"""
    v_add_u32 v{vKA}, {QK_CHUNK}, v{vKA}
    s_add_u32 s{sRem}, s{sRem}, 1
    s_cmp_lt_u32 s{sRem}, 16
    s_cbranch_scc1 L2_slow_max
    """)
    cross_half_max(a, m0, t0)
    cross_half_max(a, m1, t0)
    fill_nm(a, m0, m1)
    for r in range(32):
        a(f"v_mov_b32 v{OA[0]+r}, 0")
    a(f"""
    v_lshlrev_b32 v{vKA}, 3, v0
    s_mov_b32 s{sRem}, 0
    s_sub_u32 s{sT2}, s{sVo}, s{sT1}
    L2_slow_pv:
    ds_read2st64_b64 {vr(Ke,4)}, v{vKA} offset0:0 offset1:1
    """)
    for t in range(4):
        a(f"ds_read2st64_b64 {vr(Km[0],4)}, v{vKA} offset0:{2+2*t} offset1:{3+2*t}")
        a(f"buffer_load_dwordx4 {vr(Vb[0][0],4)}, v{vVG}, s[{sWS}:{sWS+3}], s{sT2} offen")
        a(f"buffer_load_dwordx4 {vr(Vb[0][1],4)}, v{vVG}, s[{sWS}:{sWS+3}], s{sT2} offen offset:{V_TILE//2}")
        a(f"s_add_u32 s{sT2}, s{sT2}, {V_TILE}")
        a("s_waitcnt lgkmcnt(0)")
        a(mfma32(X, Km[0], Qm[0], vr(NM, 16)))
        a(mfma32(X + 16, Km[0], Qm[1], vr(NM + 16, 16)))
        a("s_nop 9")
        a(mfma2b(X, t, vr(X, 32)))
        a("s_nop 15\ns_nop 3")
        for r in range(32):
            a(f"v_exp_f32 v{X+r}, v{X+r}")
        a("s_nop 0")
        for j in range(16):
            a(f"v_cvt_pk_bf16_f32 v{X + 8*(j//4) + j%4}, v{X+2*j}, v{X+2*j+1}")
        a("s_waitcnt vmcnt(0)\ns_nop 1")
        a(mfma32(OA[0], Vb[0][0], X, vr(OA[0], 16)))
        a(mfma32(OA[0], Vb[0][1], X + 8, vr(OA[0], 16)))
        a(mfma32(OA[1], Vb[0][0], X + 16, vr(OA[1], 16)))
        a(mfma32(OA[1], Vb[0][1], X + 24, vr(OA[1], 16)))
    a(f"""
    v_add_u32 v{vKA}, {QK_CHUNK}, v{vKA}
    s_add_u32 s{sRem}, s{sRem}, 1
    s_cmp_lt_u32 s{sRem}, 16
    s_cbranch_scc1 L2_slow_pv
    s_nop 15
    s_mov_b32 s{sEv}, 1
    s_branch L2_epi
    """)


def desc(label):
    return kernel_desc(label, NVGPR, NVGPR)
```

```python
from common import *
import common

NWG = 256
LDS_BYTES = 640 * 160

sWo, sOut, sWS = 8, 12, 16
sW, sB, sCG, sTB = 20, 21, 22, 23
sT0, sT1, sT2, sT3 = 24, 25, 26, 27

vWA = 2
vOA = 3
WF = [8, 28]
ACC = 48
OF = 88
NVGPR = 248


def wreads(buf, s):
    out = []
    base = (s % 10) * 32 * 160
    for c in range(5):
        for u in range(2):
            out.append(f"ds_read_b64_tr_b16 {vr(WF[buf] + 4*c + 2*u, 2)}, v{vWA} offset:{base + u*16*160 + c*8}")
    return out


def gen(a, label):
    kernel_head(a, label)
    a(f"""
    s_cmp_ge_u32 s2, {NWG}
    s_cbranch_scc1 L3_end
    """)
    stamp(a, 0)
    a.c("xcd = id & 7: branch = xcd >> 2, token blocks 4*(xcd & 3) .. +3; column group = id >> 5")
    a(f"""
    s_and_b32 s{sT0}, s2, 7
    s_lshr_b32 s{sB}, s{sT0}, 2
    s_mul_i32 s{sT1}, s{sB}, 24
    s_add_u32 s4, s0, s{sT1}
    s_addc_u32 s5, s1, 0
    s_load_dwordx2 s[{sWo}:{sWo+1}], s[4:5], 16
    s_load_dwordx2 s[{sOut}:{sOut+1}], s[0:1], 48
    s_load_dwordx2 s[{sWS}:{sWS+1}], s[0:1], 64
    v_lshrrev_b32 v1, 6, v0
    v_and_b32 v0, 63, v0
    v_readfirstlane_b32 s{sW}, v1
    s_and_b32 s{sTB}, s{sT0}, 3
    s_lshl_b32 s{sTB}, s{sTB}, 2
    s_lshr_b32 s{sT1}, s2, 3
    s_and_b32 s{sT1}, s{sT1}, 3
    s_add_u32 s{sTB}, s{sTB}, s{sT1}
    s_lshr_b32 s{sCG}, s2, 5
    s_mov_b32 s{sWo+2}, {D * D * 2}
    s_mov_b32 s{sWo+3}, 0x00020000
    s_mov_b32 s{sOut+2}, {S * 2 * D * 2}
    s_mov_b32 s{sOut+3}, 0x00020000
    s_mov_b32 s{sWS+2}, {ws_records()}
    s_mov_b32 s{sWS+3}, 0x00020000
    s_cmp_lt_u32 s{sW}, 4
    s_cbranch_scc1 L3_compute
    """)
    a(f"s_sub_u32 s{sW}, s{sW}, 4")
    for i in range(5):
        a(f"""
        v_add_u32 v10, {64 * i}, v0
        v_mul_u32_u24 v11, 205, v10
        v_lshrrev_b32 v11, 11, v11
        v_mul_u32_u24 v12, 10, v11
        v_sub_u32 v12, v10, v12
        v_lshlrev_b32 v12, 4, v12
        v_mul_u32_u24 v11, 1280, v11
        v_add_u32 v{2+i}, v11, v12
        """)
    a(f"""
    s_mul_i32 s{sT0}, s{sW}, {32 * 1280}
    s_mul_i32 s{sT1}, s{sCG}, 160
    s_add_u32 s{sT0}, s{sT0}, s{sT1}
    s_mul_i32 s{sT1}, s{sW}, 5120
    s_mov_b32 s{sT2}, 0
    s_waitcnt lgkmcnt(0)
    s_and_b32 s{sWo+1}, s{sWo+1}, 0xffff
    L3_ld:
    s_mov_b32 m0, s{sT1}
    s_add_u32 s{sT2}, s{sT2}, 1
    """)
    for i in range(5):
        a(f"buffer_load_dwordx4 v{2+i}, s[{sWo}:{sWo+3}], s{sT0} offen lds")
        if i < 4:
            a("s_add_u32 m0, m0, 1024\ns_nop 0")
    a(f"""
    s_add_u32 s{sT0}, s{sT0}, {128 * 1280}
    s_add_u32 s{sT1}, s{sT1}, {4 * 5120}
    s_cmp_lt_u32 s{sT2}, 5
    s_cbranch_scc1 L3_ld
    """)
    for p in range(5):
        a(f"s_waitcnt vmcnt({20 - 5 * p})\ns_barrier")
    a("s_endpgm")
    a(f"""
    L3_compute:
    v_lshrrev_b32 v4, 4, v0
    v_lshlrev_b32 v4, 8, v4
    v_and_b32 v5, 15, v0
    v_lshlrev_b32 v5, 3, v5
    v_add_u32 v{vOA}, v4, v5
    s_lshl_b32 s{sT0}, s{sB}, 6
    s_lshl_b32 s{sT1}, s{sTB}, 2
    s_add_u32 s{sT0}, s{sT0}, s{sT1}
    s_add_u32 s{sT0}, s{sT0}, s{sW}
    s_mul_i32 s{sT0}, s{sT0}, {O_TILE}
    s_add_u32 s{sT0}, s{sT0}, {WS_O}
    s_waitcnt lgkmcnt(0)
    s_and_b32 s{sWS+1}, s{sWS+1}, 0xffff
    s_and_b32 s{sOut+1}, s{sOut+1}, 0xffff
    """)

    def oloads(s):
        for rt in range(2):
            for u in range(2):
                a(f"buffer_load_dwordx2 {vr(OF + 8*s + 4*rt + 2*u, 2)}, v{vOA}, s[{sWS}:{sWS+3}], s{sT0} offen offset:{rt*128 + u*1024 + (s & 1)*2048}")
        if s & 1:
            a(f"s_add_u32 s{sT0}, s{sT0}, 4096")
    AHEAD = 12
    for s in range(AHEAD):
        oloads(s)
    a(f"""
    v_lshrrev_b32 v4, 2, v0
    v_mul_u32_u24 v4, 160, v4
    v_and_b32 v5, 3, v0
    v_mul_u32_u24 v5, 40, v5
    v_add_u32 v{vWA}, v4, v5
    s_barrier
    """)
    stamp(a, 1)
    if common.STAMP:
        a("s_waitcnt lgkmcnt(0)")
    for r in wreads(0, 0):
        a(r)
    for s in range(20):
        buf = s & 1
        issued = min(20, AHEAD + s)
        a(f"s_waitcnt vmcnt({4 * (issued - s - 1)}) lgkmcnt(0)")
        if s + 1 < 20 and (s + 1) % 4 == 0:
            a("s_barrier")
        if s + 1 == 10:
            a(f"v_add_u32 v{vWA}, {10 * 32 * 160}, v{vWA}")
        rd = wreads(buf ^ 1, s + 1) if s + 1 < 20 else []
        i = 0
        for c in range(5):
            for rt in range(2):
                A = ACC + 4 * (5 * rt + c)
                cin = "0" if s == 0 else vr(A, 4)
                a(f"v_mfma_f32_16x16x32_bf16 {vr(A,4)}, {vr(WF[buf] + 4*c, 4)}, {vr(OF + 8*s + 4*rt, 4)}, {cin}")
                if rd:
                    a(rd[i])
                i += 1
        if AHEAD + s < 20:
            oloads(AHEAD + s)
    stamp(a, 2)
    a.c("lane holds token (l & 15), columns 20*(l >> 4) .. +19 of the group")
    a(f"""
    s_lshl_b32 s{sT0}, s{sTB}, 2
    s_add_u32 s{sT0}, s{sT0}, s{sW}
    s_mul_i32 s{sT0}, s{sT0}, {32 * 2560}
    s_mul_i32 s{sT1}, s{sB}, 1280
    s_add_u32 s{sT0}, s{sT0}, s{sT1}
    s_mul_i32 s{sT1}, s{sCG}, 160
    s_add_u32 s{sT0}, s{sT0}, s{sT1}
    s_add_u32 s{sT1}, s{sT0}, {16 * 2560}
    v_and_b32 v4, 15, v0
    v_mul_u32_u24 v4, 2560, v4
    v_lshrrev_b32 v5, 4, v0
    v_mul_u32_u24 v5, 40, v5
    v_add_u32 v4, v4, v5
    """)
    for rt in range(2):
        A = ACC + 20 * rt
        for j in range(10):
            a(f"v_cvt_pk_bf16_f32 v{A+j}, v{A+2*j}, v{A+2*j+1}")
        so = sT0 if rt == 0 else sT1
        a(f"buffer_store_dwordx4 {vr(A,4)}, v4, s[{sOut}:{sOut+3}], s{so} offen")
        a(f"buffer_store_dwordx4 {vr(A+4,4)}, v4, s[{sOut}:{sOut+3}], s{so} offen offset:16")
        a(f"buffer_store_dwordx2 {vr(A+8,2)}, v4, s[{sOut}:{sOut+3}], s{so} offen offset:32")
    if common.STAMP:
        a("s_waitcnt vmcnt(0)")
        stamp(a, 3)
        stamp_flush(a, 4, 2, sWS, sW, 4, 4)
    a("L3_end:\ns_endpgm")


def desc(label):
    return kernel_desc(label, NVGPR, NVGPR)
```

```python
import sys
sys.path.insert(0, "gen")
import build, k1, k2, k3, common
def full():
    k2.OPT = {'zrows'}
    return build.build([(k1, "qkv_kernel", k1.NWG, 512, k1.LDS_BYTES),
                        (k2, "attn_kernel", 256, 512, k2.LDS_BYTES),
                        (k3, "oproj_kernel", k3.NWG, 512, k3.LDS_BYTES)])
if __name__ == "__main__":
    out = sys.argv[1] if len(sys.argv) > 1 else f"cdna_kernels/{common.NAME}.s"
    open(out, "w").write(full())
```

```python
import sys, os
sys.path.insert(0, "gen")
from dev import *
import mk, common
common.STAMP = 'stamp' in sys.argv
co, launches = assemble(mk.full(), "all")
if not os.path.exists('/dev/kfd'): print("assembled"); raise SystemExit
d = make_inputs(0)
qkv, o, out = exact(d)
R = Runner(d); R.poison()
R.load(co, launches)
R.run(extra=3)
g = R.get_out()
print("out err vs fp64", np.abs(g - out).max(), "nan", np.isnan(g).sum(), "absmax", np.abs(out).max())
if 'ref' in sys.argv:
    ref = reference(d)
    print("err vs torch ref", np.abs(g - ref).max(), " ref vs fp64", np.abs(ref - out).max())
print("time warm", R.time(), "cold", R.time(cold=True))
if common.STAMP:
    R.time(5, cold=True)
    show_stamps(R, 0, 960, 4, 4); show_stamps(R, 1, 2048, 5, 8); show_stamps(R, 2, 1024, 4, 4)
    t = [R.ws_read(common.WS_STAMP + s * 4096 * 64, n * 32).view(np.uint32).reshape(n, 8, 2)[:, :, 1].astype(np.int64) for s, n in ((0, 960), (1, 2048), (2, 1024))]
    z = t[0][:, 0].min()
    print("K1 start 0, K1 end", (t[0][:, 3].max() - z) / 100, "K2 start", (t[1][:, 0].min() - z) / 100, "K2 end", (t[1][:, 4].max() - z) / 100, "K3 start", (t[2][:, 0].min() - z) / 100, "K3 end", (t[2][:, 3].max() - z) / 100)
```

```python
from common import Asm, vr, sr, f32bits, kernel_head, kernel_desc, QSCALE, S, D, HEADER, NAME
import common

OPT = set()
SK = 2

TILE = 40960
IMG = 64 * TILE
WS_WO = 8 * IMG
WO_SLAB = 102400
WS_F1 = WS_WO + 16 * WO_SLAB
WS_F3 = WS_F1 + 8192
WS_F4 = WS_F3 + 8192
WS_END = WS_F4 + 1024
WS_STAMP = WS_END + 65536

LDS_BYTES = 163840
GST = 32768
GXB = 16384
CH = 11264
BLK = 2 * CH
RING = 3 * BLK
ONES = 0
RB = 5120
RA = LDS_BYTES - RING
WOA = LDS_BYTES - WO_SLAB

sX, sWt, sWS, sOut, sDbg = 8, 12, 16, 20, 24
sPtr = 28
sW, sJ, sRole = 40, 41, 42
sHead, sQB, sCG, sTB = 43, 44, 45, 46
sT0, sT1, sT2, sT3, sT4 = 47, 48, 49, 50, 51
sIt, sSlot, sKB, sInc = 52, 53, 54, 55
sXo, sWo = 56, 57
sNext, sRb, sRe, sRem = 52, 53, 54, 55
sM, sMend = 56, 57
sOm, sExt = 58, 59
sSpin = 60
sLnk = 62
STAMP_S = 64

SPIN = 1 << 15


def stamp(a, i):
    if common.STAMP:
        a(f"s_memtime s[{STAMP_S+4*i}:{STAMP_S+4*i+1}]")
        a(f"s_memrealtime s[{STAMP_S+4*i+2}:{STAMP_S+4*i+3}]")
        a("s_waitcnt lgkmcnt(0)")


def stamp_flush(a, n, vt):
    if not common.STAMP:
        return
    a(f"""
    s_mov_b64 exec, 1
    s_lshl_b32 s{sT0}, s2, 3
    s_add_u32 s{sT0}, s{sT0}, s{sW}
    s_lshl_b32 s{sT0}, s{sT0}, 6
    s_add_u32 s{sT0}, s{sT0}, {WS_STAMP}
    v_mov_b32 v{vt+2}, 0
    """)
    for i in range(n):
        a(f"v_mov_b32 v{vt}, s{STAMP_S+4*i}")
        a(f"v_mov_b32 v{vt+1}, s{STAMP_S+4*i+2}")
        a(f"buffer_store_dwordx2 v[{vt}:{vt+1}], v{vt+2}, s[{sWS}:{sWS+3}], s{sT0} offen offset:{8*i}")
        a("s_nop 1")


def WSR():
    return f"s[{sWS}:{sWS+3}]"


_lbl = [0]


def poll(a, loads, expect, vtmp):
    _lbl[0] += 1
    L = f"LF_poll{_lbl[0]}"
    a(f"s_mov_b32 s{sSpin}, {SPIN}\n{L}:")
    for i, (vo, srd, so) in enumerate(loads):
        a(f"buffer_load_dword v{vtmp+i}, v{vo}, {srd}, {so} offen sc1")
    a("s_waitcnt vmcnt(0)")
    for i in range(len(loads)):
        a(f"v_xor_b32 v{vtmp+i}, {expect}, v{vtmp+i}")
    for i in range(1, len(loads)):
        a(f"v_or_b32 v{vtmp}, v{vtmp}, v{vtmp+i}")
    a(f"""
    v_cmp_ne_u32 vcc, 0, v{vtmp}
    s_cbranch_vccz {L}_ok
    s_sleep 2
    s_sub_u32 s{sSpin}, s{sSpin}, 1
    s_cbranch_scc0 {L}
    {L}_ok:
    """)


def flag_store(a, val, soff, vz, vd):
    a(f"""
    v_mov_b32 v{vz}, 0
    v_mov_b32 v{vd}, {val}
    s_mov_b64 exec, 1
    buffer_store_dword v{vd}, v{vz}, {WSR()}, s{soff} offen sc1
    s_mov_b64 exec, -1
    """)


gXA = [2, 3, 4, 5]
gWA = [6, 7]
gXF = [160, 168, 176, 184]
gWF = [192 - 64, 192 - 56, 192 - 48, 192 - 40]
gACC = 192


def g_reads(s):
    out = []
    for c in range(2):
        for u in range(2):
            out.append(f"ds_read_b64_tr_b16 {vr(gWF[s] + 4*c + 2*u, 2)}, v{gWA[c]} offset:{GXB + s*4096 + u*1024}")
    for t in range(2):
        out.append(f"ds_read_b128 {vr(gXF[s] + 4*t, 4)}, v{gXA[s]} offset:{t*4096}")
    return out


def g_mfma(s, vtype):
    out = []
    for t in range(2):
        for c in range(2):
            x, w = vr(gXF[s] + 4*t, 4), vr(gWF[s] + 4*c, 4)
            A, B = (x, w) if vtype else (w, x)
            d = vr(gACC + 16 * (2*t + c), 16)
            out.append(f"v_mfma_f32_32x32x16_bf16 {d}, {A}, {B}, {d}")
    return out


def weave(a, m, rd):
    k = 0
    for i, x in enumerate(m):
        a(x)
        n = (len(rd) * (i + 1) + len(m) - 1) // len(m)
        while k < n:
            a(rd[k]); k += 1


def f1_off(a, b_imm_or_none, dst):
    a(f"""
    s_lshl_b32 s{dst}, s{sCG}, 1
    s_lshr_b32 s{sT4}, s{sJ}, 1
    s_add_u32 s{dst}, s{dst}, s{sT4}
    s_lshl_b32 s{dst}, s{dst}, 5
    s_lshl_b32 s{sT4}, s{sTB}, 1
    s_add_u32 s{dst}, s{dst}, s{sT4}
    s_and_b32 s{sT4}, s{sJ}, 1
    s_add_u32 s{dst}, s{dst}, s{sT4}
    s_lshl_b32 s{dst}, s{dst}, 2
    s_add_u32 s{dst}, s{dst}, {WS_F1}
    """)


def gemm_compute(a, vtype):
    L = "LG_v" if vtype else "LG_q"
    a("s_barrier")
    a.c("every wave of this workgroup has cleared its flags: count the workgroup in")
    a(f"""
    s_cmp_eq_u32 s{sW}, 4
    s_cbranch_scc0 {L}_nocount
    s_and_b32 s{sT0}, s2, 63
    s_lshl_b32 s{sT0}, s{sT0}, 2
    v_mov_b32 v8, 0
    v_mov_b32 v9, 1
    s_mov_b64 exec, 1
    buffer_atomic_add v9, v8, s[{sDbg}:{sDbg+3}], s{sT0} offen sc1
    s_mov_b64 exec, -1
    {L}_nocount:
    """)
    stamp(a, 1)
    for r in g_reads(0) + g_reads(1):
        a(r)
    a(f"""
    s_mov_b32 s{sSlot}, 2
    s_mov_b32 s{sKB}, 0
    s_mov_b32 s{sT3}, {GST}
    {L}_gemm:
    s_mov_b32 s{sIt}, 9
    .p2align 6
    {L}_loop:
    s_waitcnt lgkmcnt(6)
    """)
    weave(a, g_mfma(0, vtype), g_reads(2))
    a("s_waitcnt lgkmcnt(6)")
    weave(a, g_mfma(1, vtype), g_reads(3))
    a("s_waitcnt lgkmcnt(6)")
    m = g_mfma(2, vtype)
    a(m[0])
    a(f"s_add_u32 s{sSlot}, s{sSlot}, 1")
    a(m[1])
    a(f"s_and_b32 s{sSlot}, s{sSlot}, 3")
    a(m[2])
    a(f"s_cselect_b32 s{sInc}, s{sT3}, {(-3 * GST) & 0xffffffff}")
    a(m[3])
    for r in gWA + gXA:
        a(f"v_add_u32 v{r}, s{sInc}, v{r}")
    a("s_waitcnt lgkmcnt(0)\ns_barrier")
    for r in g_reads(0):
        a(r)
    weave(a, g_mfma(3, vtype), g_reads(1))
    a.c("third stage of branch B: the stores of branch A have drained, publish them")
    a(f"""
    s_lshl_b32 s{sT0}, s{sKB}, 4
    s_add_u32 s{sT0}, s{sT0}, s{sIt}
    s_cmp_eq_u32 s{sT0}, {16 + 7}
    s_cbranch_scc0 {L}_noflag
    s_waitcnt vmcnt(0)
    """)
    flag_store(a, 1, sWo, 8, 9)
    a(f"""
    {L}_noflag:
    s_sub_u32 s{sIt}, s{sIt}, 1
    s_cbranch_scc0 {L}_loop
    s_nop 7
    """)
    for t in range(2):
        for c in range(2):
            A = gACC + 16 * (2*t + c)
            if not vtype:
                for r in range(0, 16, 2):
                    a(f"v_pk_mul_f32 {vr(A+r,2)}, {vr(A+r,2)}, v[10:11]")
            P = 16 + 8 * (2*t + c)
            for j in range(8):
                a(f"v_cvt_pk_bf16_f32 v{P+j}, v{A+2*j}, v{A+2*j+1}")
            if t == 1 and c == 0:
                a(f"s_add_u32 s{sT0}, s{sXo}, {TILE}")
                a(f"s_add_u32 s{sT1}, s{sXo}, {TILE + 20480}")
            if t == 0 and c == 0:
                a(f"s_mov_b32 s{sT0}, s{sXo}")
                a(f"s_add_u32 s{sT1}, s{sXo}, 20480")
            for i in range(2):
                if vtype:
                    a(f"buffer_store_dwordx4 {vr(P+4*i,4)}, v12, {WSR()}, s{sT1 if i else sT0} offen offset:{c*512} sc1")
                else:
                    a(f"buffer_store_dwordx4 {vr(P+4*i,4)}, v12, {WSR()}, s{sT0} offen offset:{c*2048 + i*1024} sc1")
    a(f"""
    s_cmp_eq_u32 s{sKB}, 1
    s_cbranch_scc1 LG_done
    s_mov_b32 s{sKB}, 1
    s_add_u32 s{sXo}, s{sXo}, {4 * IMG}
    """)
    stamp(a, 2)
    for r in range(64):
        a(f"v_mov_b32 v{gACC + r}, 0")
    a(f"s_nop 0\ns_branch {L}_gemm")


def gemm_compute_setup(a):
    t0, t1, t2 = 8, 9, 10
    a(f"""
    v_and_b32 v{t0}, 31, v0
    v_lshrrev_b32 v{t1}, 5, v0
    v_lshrrev_b32 v{t2}, 1, v{t0}
    v_and_b32 v{t2}, 7, v{t2}
    v_xor_b32 v{t2}, v{t2}, v{t1}
    v_lshlrev_b32 v{t2}, 4, v{t2}
    v_lshlrev_b32 v{t0}, 7, v{t0}
    v_add_u32 v{t2}, v{t2}, v{t0}
    s_and_b32 s{sT0}, s{sJ}, 1
    s_lshl_b32 s{sT0}, s{sT0}, 13
    s_add_u32 s{sT0}, s{sT0}, {2 * GST}
    v_add_u32 v{gXA[0]}, s{sT0}, v{t2}
    v_xor_b32 v{gXA[1]}, 32, v{gXA[0]}
    v_xor_b32 v{gXA[2]}, 64, v{gXA[0]}
    v_xor_b32 v{gXA[3]}, 96, v{gXA[0]}
    v_lshrrev_b32 v{t0}, 2, v0
    v_and_b32 v{t0}, 3, v{t0}
    v_lshlrev_b32 v{t2}, 3, v{t1}
    v_add_u32 v{t2}, v{t2}, v{t0}
    v_lshlrev_b32 v{t2}, 8, v{t2}
    s_and_b32 s{sT0}, s{sJ}, 2
    v_xor_b32 v{t0}, s{sT0}, v{t0}
    v_lshlrev_b32 v{t0}, 6, v{t0}
    v_add_u32 v{t2}, v{t2}, v{t0}
    v_and_b32 v{t0}, 16, v0
    v_lshlrev_b32 v{t0}, 1, v{t0}
    v_add_u32 v{gWA[0]}, v{t2}, v{t0}
    v_add_u32 v{gWA[0]}, {2 * GST}, v{gWA[0]}
    """)
    for r in range(64):
        a(f"v_mov_b32 v{gACC + r}, 0")
    a.c("kind = cg / 5, first column inside the kind = (cg % 5) * 128 + 64 * wn, first tile = 4 tb + 2 wm")
    a(f"""
    s_mul_i32 s{sT0}, s{sCG}, 205
    s_lshr_b32 s{sT0}, s{sT0}, 10
    s_mul_i32 s{sT1}, s{sT0}, 5
    s_sub_u32 s{sT1}, s{sCG}, s{sT1}
    s_lshl_b32 s{sT1}, s{sT1}, 1
    s_lshr_b32 s{sT2}, s{sJ}, 1
    s_add_u32 s{sT1}, s{sT1}, s{sT2}
    s_mul_i32 s{sXo}, s{sT0}, {IMG}
    s_lshl_b32 s{sT2}, s{sTB}, 1
    s_and_b32 s{sT3}, s{sJ}, 1
    s_add_u32 s{sT2}, s{sT2}, s{sT3}
    s_mul_i32 s{sT2}, s{sT2}, {2 * TILE}
    s_add_u32 s{sXo}, s{sXo}, s{sT2}
    s_cmp_eq_u32 s{sT0}, 2
    s_cbranch_scc1 LG_vsetup
    s_cmp_eq_u32 s{sT0}, 0
    s_cselect_b32 s{sT2}, {hex(f32bits(QSCALE))}, 1.0
    v_mov_b32 v10, s{sT2}
    v_mov_b32 v11, s{sT2}
    s_lshl_b32 s{sT1}, s{sT1}, 12
    s_add_u32 s{sXo}, s{sXo}, s{sT1}
    v_lshlrev_b32 v12, 4, v0
    v_and_b32 v8, 1, v0
    v_lshlrev_b32 v8, 4, v8
    v_and_b32 v9, 2, v0
    v_lshlrev_b32 v9, 2, v9
    v_add3_u32 v{gWA[0]}, v{gWA[0]}, v8, v9
    v_xor_b32 v{gWA[1]}, 64, v{gWA[0]}
    s_waitcnt vmcnt(0)
    """)
    gemm_compute(a, False)
    a(f"""
    LG_vsetup:
    s_lshl_b32 s{sT1}, s{sT1}, 10
    s_add_u32 s{sXo}, s{sXo}, s{sT1}
    v_lshrrev_b32 v8, 5, v0
    v_mul_u32_u24 v8, 10240, v8
    v_and_b32 v9, 31, v0
    v_lshlrev_b32 v9, 4, v9
    v_add_u32 v12, v8, v9
    v_and_b32 v8, 3, v0
    v_lshlrev_b32 v8, 3, v8
    v_add_u32 v{gWA[0]}, v{gWA[0]}, v8
    v_xor_b32 v{gWA[1]}, 64, v{gWA[0]}
    s_waitcnt vmcnt(0)
    """)
    gemm_compute(a, True)


def gemm_loader(a):
    vE, vO, vWs, vCnt = 190, 191, 192, 188
    a(f"""
    v_lshrrev_b32 v5, 3, v0
    v_mul_u32_u24 v5, 1280, v5
    v_and_b32 v6, 7, v0
    v_lshrrev_b32 v7, 4, v0
    v_xor_b32 v6, v6, v7
    v_lshlrev_b32 v6, 4, v6
    v_add_u32 v{vE}, v5, v6
    v_xor_b32 v6, 64, v6
    v_add_u32 v{vO}, v5, v6
    v_add_u32 v{vO}, {8 * 1280 - 1024}, v{vO}
    v_lshrrev_b32 v5, 2, v0
    v_and_b32 v5, 3, v5
    v_xor_b32 v5, v5, v7
    v_lshlrev_b32 v5, 6, v5
    v_and_b32 v6, 3, v0
    v_lshlrev_b32 v6, 4, v6
    v_add_u32 v5, v5, v6
    v_mul_u32_u24 v6, 3840, v7
    v_add_u32 v{vWs}, v5, v6
    s_lshl_b32 s{sXo}, s{sTB}, 2
    s_add_u32 s{sXo}, s{sXo}, s{sJ}
    s_mul_i32 s{sXo}, s{sXo}, {32 * 1280}
    s_mul_i32 s{sWo}, s{sJ}, {16 * 3840}
    s_lshl_b32 s{sT0}, s{sCG}, 8
    s_add_u32 s{sWo}, s{sWo}, s{sT0}
    s_lshl_b32 s{sSlot}, s{sJ}, 12
    s_add_u32 s{sSlot}, s{sSlot}, {2 * GST}
    s_mov_b32 s{sIt}, 0
    s_and_b32 s{sKB}, s{sCG}, 1
    s_call_b64 s[{sLnk}:{sLnk+1}], LL_issue
    s_call_b64 s[{sLnk}:{sLnk+1}], LL_issue
    s_call_b64 s[{sLnk}:{sLnk+1}], LL_issue
    s_call_b64 s[{sLnk}:{sLnk+1}], LA_setup
    v_mov_b32 v{vCnt}, 0
    s_branch LL_n19
    LL_issue:
    s_lshl_b32 s{sT0}, s{sKB}, 7
    s_add_u32 s{sT0}, s{sT0}, s{sXo}
    s_mul_i32 s{sT1}, s{sKB}, {64 * 3840}
    s_add_u32 s{sT1}, s{sT1}, s{sWo}
    s_mov_b32 m0, s{sSlot}
    s_add_u32 s{sKB}, s{sKB}, 1
    buffer_load_dwordx4 v{vE}, s[{sX}:{sX+3}], s{sT0} offen lds
    buffer_load_dwordx4 v{vO}, s[{sX}:{sX+3}], s{sT0} offen offset:1024 lds
    s_add_u32 m0, m0, 2048
    s_add_u32 s{sT0}, s{sT0}, {16 * 1280}
    buffer_load_dwordx4 v{vE}, s[{sX}:{sX+3}], s{sT0} offen lds
    buffer_load_dwordx4 v{vO}, s[{sX}:{sX+3}], s{sT0} offen offset:1024 lds
    s_add_u32 m0, s{sSlot}, {GXB}
    s_cmp_eq_u32 s{sKB}, 10
    """)
    for p in range(4):
        a(f"buffer_load_dwordx4 v{vWs}, s[{sWt}:{sWt+3}], s{sT1} offen lds")
        if p == 0:
            a(f"s_cselect_b32 s{sKB}, 0, s{sKB}")
        if p < 3:
            a(f"s_add_u32 m0, m0, 1024")
            a(f"s_add_u32 s{sT1}, s{sT1}, {4 * 3840}")
    a(f"""
    s_add_u32 s{sSlot}, s{sSlot}, {GST}
    s_and_b32 s{sSlot}, s{sSlot}, {4 * GST - 1}
    s_add_u32 s{sIt}, s{sIt}, 1
    s_setpc_b64 s[{sLnk}:{sLnk+1}]
    LL_ld:
    s_call_b64 s[{sLnk}:{sLnk+1}], LL_issue
    s_cmp_eq_u32 s{sIt}, 10
    s_cbranch_scc0 LL_n10
    s_mov_b32 s{sX}, s{sPtr+6}
    s_and_b32 s{sX+1}, s{sPtr+7}, 0xffff
    s_mov_b32 s{sWt}, s{sPtr+8}
    s_and_b32 s{sWt+1}, s{sPtr+9}, 0xffff
    LL_n10:
    s_cmp_eq_u32 s{sIt}, 13
    s_cbranch_scc0 LL_n13
    buffer_load_dword v{vCnt}, v{vP+5}, s[{sDbg}:{sDbg+3}], 0 offen sc1
    LL_n13:
    s_cmp_eq_u32 s{sIt}, 19
    s_cbranch_scc0 LL_n19
    """)
    a.c("all workgroups must have cleared their flags before any flag is trusted")
    a(f"v_cmp_ne_u32 vcc, 4, v{vCnt}\ns_cbranch_vccz LL_cnt_ok")
    poll(a, [(vP + 5, f"s[{sDbg}:{sDbg+3}]", "0")], 4, vP)
    a("LL_cnt_ok:")
    f1_poll_offsets(a)
    a(f"""
    buffer_load_dword v{vP}, v{vP+3}, {WSR()}, s{sT0} offen sc1
    buffer_load_dword v{vP+1}, v{vP+4}, {WSR()}, s{sT1} offen sc1
    buffer_load_dword v{vP+2}, v{vP+4}, {WSR()}, s{sT2} offen sc1
    LL_n19:
    s_waitcnt vmcnt(16)
    s_barrier
    s_cmp_lt_u32 s{sIt}, 20
    s_cbranch_scc1 LL_ld
    s_waitcnt vmcnt(8)
    s_barrier
    v_and_b32 v{vP}, v{vP}, v{vP+1}
    v_and_b32 v{vP}, v{vP}, v{vP+2}
    v_cmp_ne_u32 vcc, 1, v{vP}
    s_mov_b32 s{sIt}, 0
    s_cbranch_vccz LA_loadq
    s_waitcnt vmcnt(0)
    s_barrier
    s_mov_b32 s{sIt}, 1
    s_branch LA_pollf
    """)


vKA, vVA, vT0, vT1 = 1, 2, 3, 14
Qm = [4, 8]
Qe = 12
vL16 = 15
Km = [16, 20]
Ke = 24
Vb = [[28, 32], [36, 40]]
vVbase, vVflag, vE16, vVG = 44, 45, 46, 47
NM = 48
SB = [80, 112]
OA = [144, 160]
vD = 176
vP = 182
NVGPR = 256


def mfma32(d, a_, b, c):
    return f"v_mfma_f32_32x32x16_bf16 {vr(d,16)}, {vr(a_,4)}, {vr(b,4)}, {c}"


def mfma2b(d, ke_tile, c):
    return (f"v_mfma_f32_32x32x4_2b_bf16 {vr(d,32)}, {vr(Ke + 2 * (ke_tile >> 1), 2)}, {vr(Qe,2)}, {c}"
            f" cbsz:1 abid:{ke_tile & 1}")


def valu_stream(X, Y):
    def e(base, i): return f"v_exp_f32 v{base+i}, v{base+i}"
    def c(j):
        dst = X + 8 * (j // 4) + (j % 4)
        return f"v_cvt_pk_bf16_f32 v{dst}, v{X+2*j}, v{X+2*j+1}"
    out = [e(X, 1)]
    for j in range(16):
        out.append(e(X, 2 * j + 2) if j < 15 else e(Y, 0))
        out.append(c(j))
        if j < 15:
            out.append(e(X, 2 * j + 3))
    return out


def tile_iter(a, ii):
    par = ii & 1
    X, Y = SB[par], SB[par ^ 1]
    Vc, Vn = Vb[par], Vb[par ^ 1]
    Kc, Kn = Km[par ^ 1], Km[par]
    v = valu_stream(X, Y)
    t1 = (ii + 1) % 4
    t2 = (ii + 2) % 4
    ins = {}
    ins[2] = [mfma32(OA[1], Vn[1], Y + 24, vr(OA[1], 16)),
              f"ds_read_b128 {vr(Vn[0],4)}, v{vVA} offset:{t1 * 1280}"]
    ins[7] = [mfma2b(Y, t1, vr(NM, 32))]
    ins[17] = [mfma32(OA[0], Vc[0], X, vr(OA[0], 16)),
               f"ds_read_b128 {vr(Vn[1],4)}, v{vVA} offset:{t1 * 1280 + 640}"]
    ins[23] = [mfma32(Y, Kc, Qm[0], vr(Y, 16)),
               f"ds_read_b128 {vr(Kn,4)}, v{vKA} offset:{2048 + t2 * 1024}"]
    ins[29] = [mfma32(OA[0], Vc[1], X + 8, vr(OA[0], 16))]
    ins[35] = [mfma32(Y + 16, Kc, Qm[1], vr(Y + 16, 16))]
    ins[41] = [mfma32(OA[1], Vc[0], X + 16, vr(OA[1], 16)),
               "s_waitcnt lgkmcnt(0)"]
    if ii == 0:
        ins[29].append(f"s_add_u32 s{sNext}, s{sNext}, {CH}")
        ins[35].append(f"s_cmp_eq_u32 s{sNext}, s{sRe}")
    if ii == 1:
        ins[29].append(f"s_cselect_b32 s{sNext}, s{sRb}, s{sNext}")
        ins[44] = [f"v_add_u32 v{vKA}, s{sNext}, v{vL16}"]
    if ii == 2:
        ins[29].append(f"ds_read2_b64 {vr(Ke,4)}, v{vKA} offset0:0 offset1:128")
        ins[44] = [f"v_mad_u32_u24 v{vVA}, v{vVflag}, s{sNext}, v{vVbase}"]
    if ii == 3:
        ins[35].append(f"s_sub_u32 s{sRem}, s{sRem}, 1")
    for p, op in enumerate(v):
        for x in ins.get(p, []):
            a(x)
        a(op)


def rowmax(a, X, out0, out1):
    for base, o in ((X, out0), (X + 16, out1)):
        a(f"v_max3_f32 v{o}, v{base}, v{base+1}, v{base+2}")
        for r in range(3, 15, 2):
            a(f"v_max3_f32 v{o}, v{o}, v{base+r}, v{base+r+1}")
        a(f"v_max_f32 v{o}, v{o}, v{base+15}")


def cross_half_max(a, r, tmp):
    a(f"v_mov_b32 v{tmp}, v{r}\ns_nop 1\nv_permlane32_swap_b32 v{tmp}, v{r}\ns_nop 1\nv_max_f32 v{r}, v{r}, v{tmp}")


def fill_nm(a, m0, m1):
    for r in range(16):
        a(f"v_sub_f32 v{NM+r}, 0, v{m0}")
    for r in range(16):
        a(f"v_sub_f32 v{NM+16+r}, 0, v{m1}")


def attn_setup(a):
    a("LA_setup:")
    a.c("head offsets: main octs start at (5g+1)>>1; the ext quad shares an oct with the neighbouring head")
    a(f"""
    s_mul_i32 s{sOm}, s{sHead}, 5
    s_add_u32 s{sOm}, s{sOm}, 1
    s_lshr_b32 s{sOm}, s{sOm}, 1
    s_lshl_b32 s{sOm}, s{sOm}, 9
    s_and_b32 s{sT0}, s{sHead}, 1
    s_mov_b32 s{sT1}, 1024
    s_cselect_b32 s{sT1}, {(-512 + 8) & 0xffffffff}, s{sT1}
    s_add_u32 s{sExt}, s{sOm}, s{sT1}
    v_lshlrev_b32 v{vL16}, 4, v0
    v_lshrrev_b32 v{vT0}, 5, v0
    v_mul_u32_u24 v{vT1}, {TILE}, v{vT0}
    v_and_b32 v{vP}, 31, v0
    v_lshl_add_u32 v{vE16}, v{vP}, 4, v{vT1}
    """)
    a.c("V rows: 0..15 main dims, 16..19 ext dims, 20 and 24 ones, the others zero (address past the allocation)")
    a(f"""
    s_lshl_b32 s{sT0}, s{sT0}, 2
    v_and_b32 v{vP+1}, 3, v0
    v_and_b32 v{vP+2}, 4, v0
    v_lshl_add_u32 v{vP+1}, v{vP+2}, 1, v{vP+1}
    v_and_b32 v{vP+2}, 8, v0
    v_lshrrev_b32 v{vP+2}, 1, v{vP+2}
    v_add3_u32 v{vP+1}, v{vP+1}, v{vP+2}, s{sT0}
    s_lshl_b32 s{sT0}, s{sT0}, 2
    v_subrev_u32 v{vP+2}, s{sT0}, v{vP}
    v_cmp_gt_u32 vcc, 16, v{vP}
    v_mul_u32_u24 v{vT1}, 10240, v{vT0}
    v_mul_u32_u24 v{vT0}, 320, v{vT0}
    v_cndmask_b32 v{vP+1}, v{vP+2}, v{vP+1}, vcc
    v_lshlrev_b32 v{vP+1}, 4, v{vP+1}
    v_add_u32 v{vVG}, v{vP+1}, v{vT1}
    v_add3_u32 v{vVbase}, v{vP+1}, v{vT0}, 0
    v_add_u32 v{vVbase}, 6144, v{vVbase}
    v_cmp_gt_u32 vcc, 20, v{vP}
    v_mov_b32 v{vP+1}, 0x100000
    v_mov_b32 v{vP+2}, {ONES}
    v_cndmask_b32 v{vVflag}, 0, 1, vcc
    v_cndmask_b32 v{vVbase}, v{vP+1}, v{vVbase}, vcc
    v_cmp_eq_u32 vcc, 20, v{vP}
    v_cmp_eq_u32 s[{sT2+1}:{sT2+2}], 24, v{vP}
    s_or_b64 vcc, vcc, s[{sT2+1}:{sT2+2}]
    s_nop 1
    v_cndmask_b32 v{vVbase}, v{vVbase}, v{vP+2}, vcc
    """)
    a.c("DMA source offsets: even waves load K pieces, odd waves V pieces")
    a(f"""
    s_and_b32 s{sT0}, s{sJ}, 1
    s_cbranch_scc1 LA_dv
    v_add_u32 v{vD}, s{sExt}, v{vE16}
    v_add_u32 v{vD+1}, {2 * TILE}, v{vD}
    v_add_u32 v{vD+2}, s{sOm}, v{vL16}
    v_add_u32 v{vD+3}, {TILE}, v{vD+2}
    v_add_u32 v{vD+4}, {TILE}, v{vD+3}
    v_add_u32 v{vD+5}, {TILE}, v{vD+4}
    s_branch LA_dd
    LA_dv:
    s_mul_i32 s{sT0}, s{sHead}, 320
    s_add_u32 s{sT0}, s{sT0}, {IMG}
    """)
    for p in range(5):
        a(f"""
        v_add_u32 v{vP}, {64 * p}, v0
        v_mul_u32_u24 v{vP+1}, 3277, v{vP}
        v_lshrrev_b32 v{vP+1}, 16, v{vP+1}
        v_mul_u32_u24 v{vP+2}, 20, v{vP+1}
        v_sub_u32 v{vP+2}, v{vP}, v{vP+2}
        v_mul_u32_u24 v{vP+1}, 10240, v{vP+1}
        v_lshl_add_u32 v{vP+1}, v{vP+2}, 4, v{vP+1}
        v_add_u32 v{vD+p}, s{sT0}, v{vP+1}
        """)
    a(f"v_mov_b32 v{vD+5}, v{vD+4}\nLA_dd:")
    a.c("F1 poll offsets: lanes 0-31 the first, lanes 32-63 the last 64-column group that holds the head")
    a(f"""
    s_min_u32 s{sT0}, s{sOm}, s{sExt}
    s_max_u32 s{sT1}, s{sExt}, s{sOm}
    s_add_u32 s{sT2}, s{sOm}, 512
    s_max_u32 s{sT1}, s{sT1}, s{sT2}
    s_lshr_b32 s{sT0}, s{sT0}, 12
    s_lshr_b32 s{sT1}, s{sT1}, 12
    s_sub_u32 s{sT1}, s{sT1}, s{sT0}
    v_lshrrev_b32 v{vP}, 5, v0
    v_mul_u32_u24 v{vP}, s{sT1}, v{vP}
    v_add_u32 v{vP}, s{sT0}, v{vP}
    v_lshlrev_b32 v{vP}, 7, v{vP}
    v_and_b32 v{vP+1}, 31, v0
    v_lshl_add_u32 v{vP+4}, v{vP+1}, 2, v{vP}
    v_and_b32 v{vP+1}, 3, v0
    s_lshl_b32 s{sT0}, s{sQB}, 2
    v_add_u32 v{vP+1}, s{sT0}, v{vP+1}
    v_lshl_add_u32 v{vP+3}, v{vP+1}, 2, v{vP}
    v_lshlrev_b32 v{vP+5}, 2, v0
    s_setpc_b64 s[{sLnk}:{sLnk+1}]
    """)


def dma_sub(a):
    a(f"""
    LA_dma:
    s_add_u32 s{sT2}, s{sT1}, s{sQB}
    s_and_b32 s{sT2}, s{sT2}, 7
    s_lshl_b32 s{sT2}, s{sT2}, 1
    s_lshr_b32 s{sT3}, s{sJ}, 1
    s_add_u32 s{sT2}, s{sT2}, s{sT3}
    s_mul_i32 s{sT2}, s{sT2}, {4 * TILE}
    s_mul_i32 s{sT4}, s{sT0}, {4 * IMG}
    s_add_u32 s{sT2}, s{sT2}, s{sT4}
    s_add_u32 s{sT2}, s{sT2}, {IMG}
    s_add_u32 s{sT1}, s{sT1}, s{sT0}
    s_add_u32 s{sT1}, s{sT1}, 2
    s_mul_i32 s{sT4}, s{sT1}, 43
    s_lshr_b32 s{sT4}, s{sT4}, 7
    s_mul_i32 s{sT4}, s{sT4}, 3
    s_sub_u32 s{sT1}, s{sT1}, s{sT4}
    s_lshl_b32 s{sT1}, s{sT1}, 1
    s_add_u32 s{sT1}, s{sT1}, s{sT3}
    s_mul_i32 s{sT1}, s{sT1}, {CH}
    s_mul_i32 s{sT4}, s{sT0}, {RA - RB}
    s_sub_u32 s{sT1}, s{sT1}, s{sT4}
    s_add_u32 s{sT1}, s{sT1}, {RA}
    s_and_b32 s{sT3}, s{sJ}, 1
    s_mul_i32 s{sT4}, s{sT3}, 6144
    s_add_u32 m0, s{sT1}, s{sT4}
    s_nop 0
    """)
    for p in range(5):
        a(f"buffer_load_dwordx4 v{vD+p}, {WSR()}, s{sT2} offen sc1 lds")
        a("s_add_u32 m0, m0, 1024")
        a("s_nop 0" if p < 4 else f"s_cmp_eq_u32 s{sT3}, 1")
    a(f"""
    s_cbranch_scc1 LA_dma_ret
    buffer_load_dwordx4 v{vD+5}, {WSR()}, s{sT2} offen sc1 lds
    LA_dma_ret:
    s_setpc_b64 s[{sLnk}:{sLnk+1}]
    """)


def call_dma(a, b, blk):
    a(f"s_mov_b32 s{sT0}, {b}\ns_mov_b32 s{sT1}, {blk}\ns_call_b64 s[{sLnk}:{sLnk+1}], LA_dma")


def f1_poll_offsets(a):
    a(f"""
    s_lshl_b32 s{sT0}, s{sRole}, 12
    s_add_u32 s{sT0}, s{sT0}, {WS_F1}
    s_add_u32 s{sT1}, s{sT0}, {10 * 128}
    s_add_u32 s{sT2}, s{sT0}, {20 * 128}
    """)


def poll_f1(a):
    f1_poll_offsets(a)
    poll(a, [(vP + 3, WSR(), f"s{sT0}"), (vP + 4, WSR(), f"s{sT1}"), (vP + 4, WSR(), f"s{sT2}")], 1, vP)


def load_q(a):
    a(f"""
    s_lshl_b32 s{sT0}, s{sQB}, 2
    s_add_u32 s{sT0}, s{sT0}, s{sJ}
    s_mul_i32 s{sT0}, s{sT0}, {2 * TILE}
    s_mul_i32 s{sT1}, s{sRole}, {4 * IMG}
    s_add_u32 s{sT0}, s{sT0}, s{sT1}
    s_add_u32 s{sT1}, s{sT0}, s{sOm}
    s_add_u32 s{sT2}, s{sT1}, {TILE}
    s_add_u32 s{sT0}, s{sT0}, s{sExt}
    buffer_load_dwordx4 {vr(Qm[0],4)}, v{vL16}, {WSR()}, s{sT1} offen sc1
    buffer_load_dwordx4 {vr(Qm[1],4)}, v{vL16}, {WSR()}, s{sT2} offen sc1
    buffer_load_dwordx2 {vr(Qe,2)}, v{vE16}, {WSR()}, s{sT0} offen sc1
    """)


def attention(a):
    X = SB[0]
    a(f"""
    LA_start:
    s_add_u32 s{sRe}, s{sRb}, {RING}
    v_add_u32 v{vKA}, s{sNext}, v{vL16}
    v_mad_u32_u24 v{vVA}, v{vVflag}, s{sNext}, v{vVbase}
    ds_read2_b64 {vr(Ke,4)}, v{vKA} offset0:0 offset1:128
    ds_read_b128 {vr(Km[0],4)}, v{vKA} offset:2048
    ds_read_b128 {vr(Km[1],4)}, v{vKA} offset:3072
    ds_read_b128 {vr(Vb[0][0],4)}, v{vVA}
    ds_read_b128 {vr(Vb[0][1],4)}, v{vVA} offset:640
    """)
    for r in range(32):
        a(f"v_mov_b32 v{OA[0]+r}, 0")
    for r in range(4):
        a(f"v_mov_b32 v{SB[1]+24+r}, 0")
        a(f"v_mov_b32 v{Vb[1][1]+r}, 0")
    a(f"s_mov_b32 s{sRem}, 0\ns_waitcnt lgkmcnt(3)")
    a(mfma32(X, Km[0], Qm[0], 0))
    a(mfma32(X + 16, Km[0], Qm[1], 0))
    a("s_nop 9")
    a(mfma2b(X, 0, vr(X, 32)))
    a("s_nop 15\ns_nop 3")
    a.c("softmax shift: row max over the first key tile; the epilogue checks that it was safe")
    rowmax(a, X, vT0, vT1)
    cross_half_max(a, vT0, vP)
    cross_half_max(a, vT1, vP)
    fill_nm(a, vT0, vT1)
    for r in range(32):
        a(f"v_add_f32 v{X+r}, v{X+r}, v{NM+r}")
    a(f"v_exp_f32 v{X}, v{X}")
    a("s_waitcnt lgkmcnt(0)")
    a(".p2align 6\nLA_loop:")
    for ii in range(4):
        tile_iter(a, ii)
    a(f"""
    s_cbranch_scc0 LA_loop
    s_cmp_gt_u32 s{sM}, s{sMend}
    s_cbranch_scc1 LA_fin
    s_cmp_eq_u32 s{sM}, s{sMend}
    s_cselect_b32 s{sRem}, 0, 1
    s_waitcnt vmcnt(0)
    s_barrier
    s_add_u32 s{sM}, s{sM}, 1
    s_cmp_eq_u32 s{sRole}, 0
    s_cbranch_scc1 LA_loop
    """)
    a.c("branch-B waves refill both rings: after barrier m, A block m+2 and B block m-SK+2")
    a(f"""
    s_cmp_gt_u32 s{sM}, 6
    s_cbranch_scc1 LA_ev_b
    s_mov_b32 s{sT0}, 0
    s_add_u32 s{sT1}, s{sM}, 1
    s_call_b64 s[{sLnk}:{sLnk+1}], LA_dma
    LA_ev_b:
    s_sub_u32 s{sT1}, s{sM}, {SK - 1}
    s_cmp_lt_u32 s{sT1}, 3
    s_cbranch_scc1 LA_loop
    s_cmp_gt_u32 s{sT1}, 7
    s_cbranch_scc1 LA_loop
    s_mov_b32 s{sT0}, 1
    s_call_b64 s[{sLnk}:{sLnk+1}], LA_dma
    s_branch LA_loop
    LA_fin:
    """)
    a(mfma32(OA[1], Vb[1][1], SB[1] + 24, vr(OA[1], 16)))
    stamp(a, 4)
    a(f"""
    s_lshl_b32 s{sT0}, s{sQB}, 2
    s_add_u32 s{sT0}, s{sT0}, s{sJ}
    s_mul_i32 s{sXo}, s{sT0}, {2 * TILE}
    s_mul_i32 s{sT1}, s{sRole}, {4 * IMG}
    s_add_u32 s{sXo}, s{sXo}, s{sT1}
    s_add_u32 s{sXo}, s{sXo}, {3 * IMG}
    s_mov_b32 s{sRem}, 0
    s_nop 4
    LA_epi:
    v_cmp_lt_u32 vcc, 31, v0
    s_mov_b32 s{sT0}, {f32bits(2.0**30)}
    s_mov_b32 s{sT2}, {f32bits(2.0**-30)}
    v_cndmask_b32 v{vT0}, v{OA[0]+12}, v{OA[0]+8}, vcc
    v_cndmask_b32 v{vT1}, v{OA[1]+12}, v{OA[1]+8}, vcc
    """)
    a.c("safety check of the shift: row sums inside [2^-30, 2^30] and finite accumulators")
    tm = SB[0]
    a(f"v_add_f32 v{tm}, |v{OA[0]}|, |v{OA[1]}|")
    a(f"v_add_f32 v{tm+5}, |v{OA[0]+1}|, |v{OA[1]+1}|")
    for r in range(2, 12):
        a(f"v_add_f32 v{tm}, v{tm}, |v{OA[0]+r}|")
        a(f"v_add_f32 v{tm+5}, v{tm+5}, |v{OA[1]+r}|")
    a(f"""
    v_add_f32 v{tm}, v{tm}, v{tm+5}
    v_max_f32 v{tm+1}, v{vT0}, v{vT1}
    v_min_f32 v{tm+2}, v{vT0}, v{vT1}
    v_add_f32 v{tm}, v{tm}, v{vT0}
    v_add_f32 v{tm}, v{tm}, v{vT1}
    v_cmp_gt_f32 s[4:5], s{sT0}, v{tm+1}
    v_cmp_lt_f32 s[6:7], s{sT2}, v{tm+2}
    v_mov_b32 v{tm+4}, 0x7f800000
    v_cmp_gt_f32 vcc, v{tm+4}, v{tm}
    s_and_b64 s[4:5], s[4:5], s[6:7]
    s_and_b64 s[4:5], s[4:5], vcc
    s_cmp_eq_u64 s[4:5], -1
    s_cselect_b32 s{sT0}, 1, s{sRem}
    s_cmp_eq_u32 s{sT0}, 0
    s_cbranch_scc1 LA_slow
    v_rcp_f32 v{vT0}, v{vT0}
    v_rcp_f32 v{vT1}, v{vT1}
    s_add_u32 s{sT0}, s{sXo}, s{sOm}
    s_add_u32 s{sT1}, s{sT0}, {TILE}
    s_add_u32 s{sT2}, s{sXo}, s{sExt}
    """)
    for u, rc in ((0, vT0), (1, vT1)):
        O = OA[u]
        for r in range(12):
            a(f"v_mul_f32 v{O+r}, v{O+r}, v{rc}")
        for j in range(6):
            a(f"v_cvt_pk_bf16_f32 v{O+j}, v{O+2*j}, v{O+2*j+1}")
        a(f"buffer_store_dwordx4 {vr(O,4)}, v{vL16}, {WSR()}, s{sT1 if u else sT0} offen sc1")
    a(f"""
    s_nop 0
    v_permlane32_swap_b32 v{OA[0]+4}, v{OA[1]+4}
    v_permlane32_swap_b32 v{OA[0]+5}, v{OA[1]+5}
    s_nop 0
    buffer_store_dwordx2 {vr(OA[0]+4,2)}, v{vE16}, {WSR()}, s{sT2} offen sc1
    """)


def slow_path(a):
    X = SB[0]
    m0, m1, t0, t1 = SB[1], SB[1] + 1, SB[1] + 2, SB[1] + 3

    def kloads(t):
        a(f"buffer_load_dwordx4 {vr(Km[0],4)}, v{vL16}, {WSR()}, s{sT1} offen sc1")
        if t == 0:
            a(f"buffer_load_dwordx2 {vr(Ke,2)}, v{vE16}, {WSR()}, s{sT2} offen sc1")
            a(f"s_add_u32 s{sT2}, s{sT2}, {2 * TILE}")
        a(f"s_add_u32 s{sT1}, s{sT1}, {TILE}")

    def kbase():
        a(f"""
        s_mul_i32 s{sT0}, s{sRole}, {4 * IMG}
        s_add_u32 s{sT0}, s{sT0}, {IMG}
        s_add_u32 s{sT1}, s{sT0}, s{sOm}
        s_add_u32 s{sT2}, s{sT0}, s{sExt}
        s_mov_b32 s{sRem}, 0
        """)
    a(f"LA_slow:\nv_mov_b32 v{m0}, 0xff800000\nv_mov_b32 v{m1}, 0xff800000")
    kbase()
    a("LA_slow_max:")
    for t in range(2):
        kloads(t)
        a("s_waitcnt vmcnt(0)")
        a(mfma32(X, Km[0], Qm[0], 0))
        a(mfma32(X + 16, Km[0], Qm[1], 0))
        a("s_nop 9")
        a(mfma2b(X, t, vr(X, 32)))
        a("s_nop 15\ns_nop 3")
        rowmax(a, X, t0, t1)
        a(f"v_max_f32 v{m0}, v{m0}, v{t0}\nv_max_f32 v{m1}, v{m1}, v{t1}")
    a(f"s_add_u32 s{sRem}, s{sRem}, 1\ns_cmp_lt_u32 s{sRem}, 32\ns_cbranch_scc1 LA_slow_max")
    cross_half_max(a, m0, t0)
    cross_half_max(a, m1, t0)
    fill_nm(a, m0, m1)
    for r in range(32):
        a(f"v_mov_b32 v{OA[0]+r}, 0")
    for r in range(8):
        a(f"v_mov_b32 v{Vb[0][0]+r}, 0x3f803f80")
    kbase()
    a(f"""
    s_mul_i32 s{sT3}, s{sHead}, 320
    s_add_u32 s{sT3}, s{sT3}, s{sT0}
    s_add_u32 s{sT3}, s{sT3}, {IMG}
    LA_slow_pv:
    """)
    for t in range(2):
        kloads(t)
        a(f"""
        s_add_u32 s{sT4}, s{sT3}, 20480
        s_mov_b32 exec_lo, 0xfffff
        s_mov_b32 exec_hi, 0xfffff
        buffer_load_dwordx4 {vr(Vb[0][0],4)}, v{vVG}, {WSR()}, s{sT3} offen sc1
        buffer_load_dwordx4 {vr(Vb[0][1],4)}, v{vVG}, {WSR()}, s{sT4} offen sc1
        s_mov_b64 exec, -1
        s_add_u32 s{sT3}, s{sT3}, {TILE}
        s_waitcnt vmcnt(2)
        """)
        a(mfma32(X, Km[0], Qm[0], vr(NM, 16)))
        a(mfma32(X + 16, Km[0], Qm[1], vr(NM + 16, 16)))
        a("s_nop 9")
        a(mfma2b(X, t, vr(X, 32)))
        a("s_nop 15\ns_nop 3")
        for r in range(32):
            a(f"v_exp_f32 v{X+r}, v{X+r}")
        a("s_nop 0")
        for j in range(16):
            a(f"v_cvt_pk_bf16_f32 v{X + 8*(j//4) + j%4}, v{X+2*j}, v{X+2*j+1}")
        a("s_waitcnt vmcnt(0)\ns_nop 1")
        a(mfma32(OA[0], Vb[0][0], X, vr(OA[0], 16)))
        a(mfma32(OA[0], Vb[0][1], X + 8, vr(OA[0], 16)))
        a(mfma32(OA[1], Vb[0][0], X + 16, vr(OA[1], 16)))
        a(mfma32(OA[1], Vb[0][1], X + 24, vr(OA[1], 16)))
    a(f"""
    s_add_u32 s{sRem}, s{sRem}, 1
    s_cmp_lt_u32 s{sRem}, 32
    s_cbranch_scc1 LA_slow_pv
    s_nop 15
    s_mov_b32 s{sRem}, 1
    s_branch LA_epi
    """)


pWF = [16, 36]
pACC = 56
pOF = 80
pWA = 2


def f3_off(a, dst, t64_expr_reg):
    a(f"""
    s_lshl_b32 s{dst}, s{sRole}, 5
    s_add_u32 s{dst}, s{dst}, s{t64_expr_reg}
    s_lshl_b32 s{dst}, s{dst}, 7
    s_add_u32 s{dst}, s{dst}, {WS_F3}
    """)


def wo_dma(a, b, k0, k1, lds0):
    _lbl[0] += 1
    L = f"LP_wd{_lbl[0]}"
    a(f"""
    s_and_b32 s{sT0}, s{sHead}, 7
    s_add_u32 s{sT0}, s{sT0}, {8 * b}
    s_mul_i32 s{sT0}, s{sT0}, {WO_SLAB}
    s_lshl_b32 s{sT1}, s{sJ}, 10
    s_add_u32 s{sT0}, s{sT0}, s{sT1}
    s_add_u32 s{sT0}, s{sT0}, {WS_WO + 5120 * k0}
    s_add_u32 s{sT1}, s{sT1}, {lds0}
    {L}:
    s_mov_b32 m0, s{sT1}
    s_add_u32 s{sT1}, s{sT1}, 4096
    buffer_load_dwordx4 v{vL16}, {WSR()}, s{sT0} offen sc1 lds
    s_add_u32 s{sT0}, s{sT0}, 4096
    s_cmp_lt_u32 s{sT1}, {lds0 + 5120 * (k1 - k0)}
    s_cbranch_scc1 {L}
    """)


def o_poll_and_load(a):
    a(f"""
    s_lshl_b32 s{sT1}, s{sQB}, 2
    s_lshr_b32 s{sT2}, s{sHead}, 3
    s_add_u32 s{sT1}, s{sT1}, s{sT2}
    """)
    f3_off(a, sT0, sT1)
    a(f"v_and_b32 v{vP+3}, 31, v0\nv_lshlrev_b32 v{vP+3}, 2, v{vP+3}")
    poll(a, [(vP + 3, WSR(), f"s{sT0}")], 1, vP)
    a(f"""
    s_lshl_b32 s{sT1}, s{sT1}, 1
    s_lshr_b32 s{sT2}, s{sJ}, 1
    s_add_u32 s{sT1}, s{sT1}, s{sT2}
    s_mul_i32 s{sT0}, s{sT1}, {TILE}
    s_mul_i32 s{sT2}, s{sRole}, {4 * IMG}
    s_add_u32 s{sT0}, s{sT0}, s{sT2}
    s_and_b32 s{sT2}, s{sJ}, 1
    s_lshl_b32 s{sT2}, s{sT2}, 8
    s_add_u32 s{sT0}, s{sT0}, s{sT2}
    s_add_u32 s{sT0}, s{sT0}, {3 * IMG}
    v_lshrrev_b32 v3, 4, v0
    v_lshlrev_b32 v3, 9, v3
    v_and_b32 v4, 15, v0
    v_lshl_add_u32 v3, v4, 4, v3
    """)
    for s in range(20):
        a(f"buffer_load_dwordx4 {vr(pOF + 4*s, 4)}, v3, {WSR()}, s{sT0} offen offset:{(s & 1) * 2048} sc1")
        if s & 1 and s < 19:
            a(f"s_add_u32 s{sT0}, s{sT0}, 4096")


def oproj(a):
    def wreads(buf, s):
        return [f"ds_read_b128 {vr(pWF[buf] + 4*c, 4)}, v{pWA} offset:{(s % 10) * 5120 + c * 1024}" for c in range(5)]
    a(f"LP_go:\nv_add_u32 v{pWA}, s{sNext}, v{vL16}")
    for r in wreads(0, 0):
        a(r)
    for s in range(20):
        buf = s & 1
        if s + 1 == 10:
            a(f"v_add_u32 v{pWA}, {10 * 5120}, v{pWA}")
        rd = wreads(buf ^ 1, s + 1) if s + 1 < 20 else []
        for r in rd:
            a(r)
        a(f"s_waitcnt vmcnt({19 - s}) lgkmcnt({len(rd)})")
        for c in range(5):
            A = pACC + 4 * c
            cin = "0" if s == 0 else vr(A, 4)
            a(f"v_mfma_f32_16x16x32_bf16 {vr(A,4)}, {vr(pWF[buf] + 4*c, 4)}, {vr(pOF + 4*s, 4)}, {cin}")
    a.c("lane holds token (l & 15), columns 20*(l >> 4) .. +19 of the column group")
    a(f"""
    s_lshl_b32 s{sT0}, s{sQB}, 2
    s_lshr_b32 s{sT1}, s{sHead}, 3
    s_add_u32 s{sT0}, s{sT0}, s{sT1}
    s_lshl_b32 s{sT0}, s{sT0}, 2
    s_add_u32 s{sT0}, s{sT0}, s{sJ}
    s_mul_i32 s{sT0}, s{sT0}, {16 * 2560}
    s_mul_i32 s{sT1}, s{sRole}, 1280
    s_add_u32 s{sT0}, s{sT0}, s{sT1}
    s_and_b32 s{sT1}, s{sHead}, 7
    s_mul_i32 s{sT1}, s{sT1}, 160
    s_add_u32 s{sT0}, s{sT0}, s{sT1}
    v_and_b32 v4, 15, v0
    v_mul_u32_u24 v4, 2560, v4
    v_lshrrev_b32 v5, 4, v0
    v_mul_u32_u24 v5, 40, v5
    v_add_u32 v4, v4, v5
    """)
    A = pACC
    for j in range(10):
        a(f"v_cvt_pk_bf16_f32 v{A+j}, v{A+2*j}, v{A+2*j+1}")
    a(f"""
    buffer_store_dwordx4 {vr(A,4)}, v4, s[{sOut}:{sOut+3}], s{sT0} offen
    buffer_store_dwordx4 {vr(A+4,4)}, v4, s[{sOut}:{sOut+3}], s{sT0} offen offset:16
    buffer_store_dwordx2 {vr(A+8,2)}, v4, s[{sOut}:{sOut+3}], s{sT0} offen offset:32
    """)


def wo_repack(a):
    a.c("slab = (y - 30) * 8 + x: branch y - 30, column group x")
    a(f"""
    LR_start:
    s_lshr_b32 s{sT0}, s2, 3
    s_sub_u32 s{sKB}, s{sT0}, 30
    s_and_b32 s{sCG}, s2, 7
    s_cmp_eq_u32 s{sKB}, 0
    s_cselect_b32 s{sWt}, s{sPtr+4}, s{sPtr+10}
    s_cselect_b32 s{sWt+1}, s{sPtr+5}, s{sPtr+11}
    s_and_b32 s{sWt+1}, s{sWt+1}, 0xffff
    s_mov_b32 s{sWt+2}, {D * D * 2}
    s_lshl_b32 s{sKB}, s{sKB}, 3
    s_add_u32 s{sKB}, s{sKB}, s{sCG}
    s_lshl_b32 s{sWo}, s{sKB}, 3
    s_add_u32 s{sWo}, s{sWo}, s{sW}
    s_lshl_b32 s{sWo}, s{sWo}, 2
    s_add_u32 s{sWo}, s{sWo}, {WS_F4}
    """)
    flag_store(a, 0, sWo, 8, 9)
    for i in range(5):
        a(f"""
        v_add_u32 v10, {64 * i}, v0
        v_mul_u32_u24 v11, 205, v10
        v_lshrrev_b32 v11, 11, v11
        v_mul_u32_u24 v12, 10, v11
        v_sub_u32 v12, v10, v12
        v_lshlrev_b32 v12, 4, v12
        v_mul_u32_u24 v11, 1280, v11
        v_add_u32 v{2+i}, v11, v12
        """)
    a(f"""
    s_mov_b32 s{sIt}, s{sW}
    LR_ld:
    s_mul_i32 s{sT0}, s{sIt}, {32 * 1280}
    s_mul_i32 s{sT1}, s{sCG}, 160
    s_add_u32 s{sT0}, s{sT0}, s{sT1}
    s_mul_i32 s{sT1}, s{sIt}, 5120
    s_mov_b32 m0, s{sT1}
    s_add_u32 s{sIt}, s{sIt}, 8
    """)
    for i in range(5):
        a(f"buffer_load_dwordx4 v{2+i}, s[{sWt}:{sWt+3}], s{sT0} offen lds")
        if i < 4:
            a("s_add_u32 m0, m0, 1024\ns_nop 0")
    a(f"""
    s_cmp_lt_u32 s{sIt}, 20
    s_cbranch_scc1 LR_ld
    v_lshrrev_b32 v10, 4, v0
    v_lshlrev_b32 v10, 3, v10
    v_lshrrev_b32 v11, 2, v0
    v_and_b32 v11, 3, v11
    v_add_u32 v10, v10, v11
    v_mul_u32_u24 v10, 160, v10
    v_and_b32 v11, 3, v0
    v_mul_u32_u24 v11, 40, v11
    v_add_u32 v10, v10, v11
    v_lshlrev_b32 v12, 4, v0
    s_waitcnt vmcnt(0)
    s_barrier
    s_cmp_eq_u32 s{sW}, 4
    s_cbranch_scc0 LR_nocount
    s_and_b32 s{sT0}, s2, 63
    s_lshl_b32 s{sT0}, s{sT0}, 2
    v_mov_b32 v8, 0
    v_mov_b32 v9, 1
    s_mov_b64 exec, 1
    buffer_atomic_add v9, v8, s[{sDbg}:{sDbg+3}], s{sT0} offen sc1
    s_mov_b64 exec, -1
    LR_nocount:
    s_mov_b32 s{sIt}, s{sW}
    LR_tr:
    s_mul_i32 s{sT1}, s{sIt}, 5120
    v_add_u32 v11, s{sT1}, v10
    s_mul_i32 s{sT0}, s{sKB}, {WO_SLAB}
    s_add_u32 s{sT0}, s{sT0}, s{sT1}
    s_add_u32 s{sT0}, s{sT0}, {WS_WO}
    s_add_u32 s{sT2}, s{sT0}, 4096
    """)
    for c in range(5):
        for u in range(2):
            a(f"ds_read_b64_tr_b16 {vr(16 + 4*c + 2*u, 2)}, v11 offset:{u*4*160 + c*8}")
    a("s_waitcnt lgkmcnt(0)")
    for c in range(5):
        a(f"buffer_store_dwordx4 {vr(16 + 4*c, 4)}, v12, {WSR()}, s{sT0 if c < 4 else sT2} offen offset:{(c & 3) * 1024} sc1")
    a(f"""
    s_add_u32 s{sIt}, s{sIt}, 8
    s_waitcnt vmcnt(0)
    s_cmp_lt_u32 s{sIt}, 20
    s_cbranch_scc1 LR_tr
    """)
    flag_store(a, 1, sWo, 8, 9)
    a("s_barrier")


def gen(a, label):
    kernel_head(a, label)
    a("s_cmp_ge_u32 s2, 256\ns_cbranch_scc1 LF_end")
    stamp(a, 0)
    a(f"""
    s_load_dwordx8 s[{sPtr}:{sPtr+7}], s[0:1], 0
    s_load_dwordx4 s[{sPtr+8}:{sPtr+11}], s[0:1], 32
    s_load_dwordx2 s[{sOut}:{sOut+1}], s[0:1], 48
    s_load_dwordx2 s[{sDbg}:{sDbg+1}], s[0:1], 56
    s_load_dwordx2 s[{sWS}:{sWS+1}], s[0:1], 64
    v_lshrrev_b32 v1, 6, v0
    v_and_b32 v0, 63, v0
    v_readfirstlane_b32 s{sW}, v1
    s_and_b32 s{sT0}, s2, 7
    s_lshr_b32 s{sT1}, s2, 3
    s_lshl_b32 s{sHead}, s{sT0}, 2
    s_lshr_b32 s{sT2}, s{sT1}, 3
    s_add_u32 s{sHead}, s{sHead}, s{sT2}
    s_and_b32 s{sQB}, s{sT1}, 7
    s_and_b32 s{sT2}, s{sT0}, 1
    s_mul_i32 s{sT2}, s{sT2}, 30
    s_add_u32 s{sT2}, s{sT2}, s{sT1}
    s_lshr_b32 s{sCG}, s{sT2}, 2
    s_and_b32 s{sTB}, s{sT2}, 3
    s_and_b32 s{sT2}, s{sT0}, 6
    s_lshl_b32 s{sT2}, s{sT2}, 1
    s_add_u32 s{sTB}, s{sTB}, s{sT2}
    s_and_b32 s{sJ}, s{sW}, 3
    s_lshr_b32 s{sRole}, s{sW}, 2
    s_mov_b32 s{sX+2}, {S * D * 2}
    s_mov_b32 s{sX+3}, 0x00020000
    s_mov_b32 s{sWt+2}, {D * 3 * D * 2}
    s_mov_b32 s{sWt+3}, 0x00020000
    s_mov_b32 s{sWS+2}, {WS_STAMP + 2048 * 64 if common.STAMP else WS_END}
    s_mov_b32 s{sWS+3}, 0x00020000
    s_mov_b32 s{sOut+2}, {S * 2 * D * 2}
    s_mov_b32 s{sOut+3}, 0x00020000
    s_mov_b32 s{sDbg+2}, 256
    s_mov_b32 s{sDbg+3}, 0x00020000
    s_lshl_b32 s{sT2}, s{sQB}, 2
    s_add_u32 s{sT2}, s{sT2}, s{sJ}
    """)
    f3_off(a, sT3, sT2)
    a(f"""
    s_lshl_b32 s{sT2}, s{sHead}, 2
    s_add_u32 s{sT3}, s{sT3}, s{sT2}
    s_waitcnt lgkmcnt(0)
    s_mov_b32 s{sX}, s{sPtr}
    s_and_b32 s{sX+1}, s{sPtr+1}, 0xffff
    s_mov_b32 s{sWt}, s{sPtr+2}
    s_and_b32 s{sWt+1}, s{sPtr+3}, 0xffff
    s_and_b32 s{sWS+1}, s{sWS+1}, 0xffff
    s_and_b32 s{sOut+1}, s{sOut+1}, 0xffff
    s_and_b32 s{sDbg+1}, s{sDbg+1}, 0xffff
    """)
    a.c("clear this wave's hand-off flags")
    flag_store(a, 0, sT3, 8, 9)
    a(f"""
    s_cmp_ge_u32 s{sT1}, 30
    s_cbranch_scc1 LR_start
    s_cmp_eq_u32 s{sRole}, 0
    s_cbranch_scc1 LL_start
    """)
    f1_off(a, None, sWo)
    flag_store(a, 0, sWo, 8, 9)
    a(f"s_add_u32 s{sT0}, s{sWo}, 4096")
    flag_store(a, 0, sT0, 8, 9)
    gemm_compute_setup(a)
    a("LG_done:")
    stamp(a, 3)
    a(f"s_add_u32 s{sWo}, s{sWo}, 4096\ns_waitcnt lgkmcnt(0)")
    a(f"s_call_b64 s[{sLnk}:{sLnk+1}], LA_setup")
    a("s_waitcnt vmcnt(0)")
    flag_store(a, 1, sWo, 8, 9)
    a("s_branch LB_lead")

    wo_repack(a)
    a(f"s_call_b64 s[{sLnk}:{sLnk+1}], LA_setup")
    a(f"s_cmp_eq_u32 s{sRole}, 0\ns_cbranch_scc1 LR_a\ns_barrier\ns_branch LB_lead\nLR_a:\ns_mov_b32 s{sIt}, 1")
    poll(a, [(vP + 5, f"s[{sDbg}:{sDbg+3}]", "0")], 4, vP)
    a("s_branch LA_pollf")

    a("LL_start:")
    gemm_loader(a)
    a.c("branch-A lead-in; sIt = 0: barrier 19 is still to come")
    a("LA_pollf:")
    poll_f1(a)
    a("LA_loadq:")
    load_q(a)
    call_dma(a, 0, 0)
    a(f"s_cmp_eq_u32 s{sIt}, 1\ns_cbranch_scc1 LA_l1\ns_waitcnt vmcnt(8)\ns_barrier\nLA_l1:")
    call_dma(a, 0, 1)
    call_dma(a, 0, 2)
    a.c("ones rows for the softmax row sums")
    a(f"""
    v_and_b32 v{vT0}, 7, v0
    v_mul_u32_u24 v{vT0}, 640, v{vT0}
    v_mov_b32 v16, 0x3f803f80
    v_mov_b32 v17, 0x3f803f80
    v_mov_b32 v18, 0x3f803f80
    v_mov_b32 v19, 0x3f803f80
    ds_write_b128 v{vT0}, v[16:19] offset:{ONES}
    s_waitcnt vmcnt(10) lgkmcnt(0)
    s_barrier
    s_mov_b32 s{sM}, 0
    s_mov_b32 s{sMend}, 7
    s_mov_b32 s{sRb}, {RA}
    s_mov_b32 s{sNext}, {RA + 2 * BLK}
    """)
    stamp(a, 3)
    a("s_branch LA_start")
    a("LB_lead:")
    for m in range(SK - 1):
        a("s_waitcnt vmcnt(0)\ns_barrier")
        if m >= 1:
            call_dma(a, 0, m + 2)
    poll_f1(a)
    load_q(a)
    for blk in range(3):
        call_dma(a, 1, blk)
    a("s_waitcnt vmcnt(10)\ns_barrier")
    if SK - 1 >= 1:
        call_dma(a, 0, SK + 1)
    a(f"s_mov_b32 s{sM}, {SK}\ns_mov_b32 s{sMend}, {SK + 7}\ns_mov_b32 s{sRb}, {RB}\ns_mov_b32 s{sNext}, {RB}")
    stamp(a, 5)
    attention(a)
    a(f"s_cmp_eq_u32 s{sRole}, 1\ns_cbranch_scc0 LP_a\ns_barrier\nLP_a:")
    a(f"s_lshl_b32 s{sT2}, s{sQB}, 2\ns_add_u32 s{sT2}, s{sT2}, s{sJ}")
    f3_off(a, sT3, sT2)
    a(f"s_lshl_b32 s{sT2}, s{sHead}, 2\ns_add_u32 s{sT3}, s{sT3}, s{sT2}\ns_waitcnt vmcnt(0)")
    flag_store(a, 1, sT3, vP, vP + 1)
    a(f"s_cmp_eq_u32 s{sRole}, 1\ns_cbranch_scc1 LP_b")
    a.c("branch-A waves: fetch wo(A) and O(A) while branch B finishes its attention")
    a(f"v_and_b32 v{vP+3}, 7, v0\nv_lshlrev_b32 v{vP+3}, 2, v{vP+3}")
    a(f"s_and_b32 s{sT0}, s{sHead}, 7\ns_lshl_b32 s{sT0}, s{sT0}, 5\ns_add_u32 s{sT0}, s{sT0}, {WS_F4}\ns_add_u32 s{sT1}, s{sT0}, 256")
    poll(a, [(vP + 3, WSR(), f"s{sT0}"), (vP + 3, WSR(), f"s{sT1}")], 1, vP)
    for m in range(8, SK + 8):
        a("s_barrier")
        if m == SK + 6:
            wo_dma(a, 0, 0, 20, WOA)
    o_poll_and_load(a)
    a(f"s_barrier\ns_mov_b32 s{sNext}, {WOA}")
    stamp(a, 5)
    a("s_branch LP_go")
    a("LP_b:")
    wo_dma(a, 1, 0, 12, 0)
    a("s_barrier")
    wo_dma(a, 1, 12, 20, 12 * 5120)
    o_poll_and_load(a)
    a(f"s_barrier\ns_mov_b32 s{sNext}, 0")
    stamp(a, 6)
    oproj(a)
    a(f"s_cmp_eq_u32 s{sRole}, 1\ns_cbranch_scc1 LP_end\ns_barrier\nLP_end:")
    if common.STAMP:
        a("s_waitcnt vmcnt(0)")
        stamp(a, 7)
        stamp_flush(a, 8, 4)
    a("LF_end:\ns_endpgm")
    dma_sub(a)
    attn_setup(a)
    slow_path(a)


def build():
    a = Asm()
    label = NAME + "_kernel"
    a('.amdgcn_target "amdgcn-amd-amdhsa--gfx950"\n.text')
    gen(a, label)
    return (HEADER + f"; @launch grid=(256,1,1) block=(512,1,1) lds={LDS_BYTES}\n" + a.text()
            + '.section .rodata,"a"\n.p2align 6\n' + kernel_desc(label, NVGPR, NVGPR, 100))


if __name__ == "__main__":
    import sys
    out = sys.argv[1] if len(sys.argv) > 1 else f"cdna_kernels/{NAME}.s"
    open(out, "w").write(build())
```

```python
import sys, os
sys.path.insert(0, "gen")
import dev
from dev import *
import fk, common
common.STAMP = 'stamp' in sys.argv

def assemble1(asm, tag):
    os.makedirs("dev", exist_ok=True)
    full = cl.with_harness_metadata(asm, NAME + "_kernel", 9, launch_lists=True)
    s, co = f"dev/{tag}.s", f"dev/{tag}.co"
    open(s, "w").write(full)
    r = subprocess.run(["clang", "-x", "assembler", "-target", "amdgcn-amd-amdhsa",
                        "-mcpu=gfx950", s, "-o", co], capture_output=True, text=True)
    if r.returncode != 0:
        print(r.stderr[:4000]); raise SystemExit(1)
    p = cl.address_register_problem(co, NAME + "_kernel")
    if p: print(p); raise SystemExit(1)
    g, b, lds = cl.parse_launch_directive(asm)
    return co, [cl.Launch(NAME + "_kernel", g, b, lds)]

def t_unimage(u):
    return u.reshape(64, 80, 32, 8).transpose(0, 2, 1, 3).reshape(2048, 640)

def v_unimage(u):
    u = u.reshape(64, 2, 2, 640, 2, 4)
    return u.transpose(0, 1, 4, 2, 5, 3).reshape(2048, 640)

def check_images(R, qkv, o):
    for b in range(2):
        rd = lambda kind: R.ws_read((b * 4 + kind) * fk.IMG, fk.IMG // 2)
        q = from_u16(t_unimage(rd(0))); k = from_u16(t_unimage(rd(1))); v = from_u16(v_unimage(rd(2))); og = from_u16(t_unimage(rd(3)))
        print("branch", b, "Q", np.abs(q - qkv[b][:, :640] * QSCALE).max(), "K", np.abs(k - qkv[b][:, 640:1280]).max(),
              "V", np.abs(v - qkv[b][:, 1280:]).max(), "O", np.abs(og - o[b]).max(), "O nan", np.isnan(og).sum())

def stamps(R):
    u = R.ws_read(fk.WS_STAMP, 2048 * 32).view(np.uint32).reshape(256, 8, 8, 2).astype(np.int64)
    rt = u[..., 1]; t0 = rt[:, :, 0].min()
    names = {0: ["start", "-", "-", "attn start", "attn end", "oproj start", "-", "end"],
             1: ["start", "gemm first data", "gemm A done", "gemm B done", "attn end", "attn start", "oproj start", "end"]}
    for role in (0, 1):
        for i in range(8):
            if names[role][i] == "-": continue
            r = (rt[:240, 4*role:4*role+4, i] - t0) / 100.0
            print(f"  role {'AB'[role]} {names[role][i]:16s} min {r.min():6.2f} med {np.median(r):6.2f} max {r.max():6.2f}")

if __name__ == "__main__":
    co, launches = assemble1(fk.build(), "fk")
    if not os.path.exists('/dev/kfd'): print("assembled"); raise SystemExit
    d = make_inputs(0)
    qkv, o, out = exact(d)
    R = Runner(d); R.poison()
    R.load(co, launches)
    R.run(extra=3)
    check_images(R, qkv, o)
    g = R.get_out()
    print("out err vs fp64", np.abs(g - out).max(), "nan", np.isnan(g).sum(), "dbg", R.get_dbg()[:8])
    print("time warm", R.time(), "cold", R.time(cold=True))
    g = R.get_out()
    print("after replays: out err", np.abs(g - out).max(), "nan", np.isnan(g).sum())
    if common.STAMP:
        R.time(5, cold=True); stamps(R)
```

```python
from common import Asm, vr, sr, f32bits, kernel_head, kernel_desc, QSCALE, S, D, HEADER, NAME
import common

OPT = set()
SK = 3

TILE = 40960
IMG = 64 * TILE
WS_WO = 8 * IMG
WO_SLAB = 204800
WO_HALF = WO_SLAB // 2
WS_C1 = WS_WO + 8 * WO_SLAB
WS_C3 = WS_C1 + 256 * 128
WS_C4 = WS_C3 + 128 * 128
WS_END = WS_C1 + 512 * 128
WS_STAMP = WS_END + 65536

LDS_BYTES = 163840
GSL = 16384
CH = 11264
BLK = 2 * CH
RING = 3 * BLK
ONES = [90112, 0]
RB = 5120
RA = LDS_BYTES - RING
WOA = LDS_BYTES - WO_HALF
LCNT = 95232

sX, sWt, sWS, sOut, sDbg = 8, 12, 16, 20, 24
sPtr = 28
sW, sJ, sRole = 40, 41, 42
sHead, sQB, sTI, sTB = 43, 44, 45, 46
sT0, sT1, sT2, sT3, sT4 = 47, 48, 49, 50, 51
sIt, sSlot, sKB, sInc = 52, 53, 54, 55
sXo, sWo = 56, 57
sNext, sRb, sRe, sRem = 52, 53, 54, 55
sM, sMend = 56, 57
sOm, sExt = 58, 59
sSpin = 60
sBr = 61
sU0, sU1, sImg, sPh = 96, 97, 98, 99
sExp = 3
sE = 56
sLnk = 62
STAMP_S = 64

SPIN = 1 << 15
SLEEP = 6


NST = 32


def stamp(a, i):
    if common.STAMP:
        a(f"s_memrealtime s[4:5]\ns_waitcnt lgkmcnt(0)\ns_mov_b32 s{STAMP_S+i}, s4")


def stamp_idx(a, base, sreg):
    if common.STAMP:
        a(f"s_memrealtime s[4:5]\ns_mov_b32 m0, s{sreg}\ns_waitcnt lgkmcnt(0)\ns_movreld_b32 s{STAMP_S+base}, s4")


def stamp_flush(a, vt):
    if not common.STAMP:
        return
    a(f"""
    s_mov_b64 exec, 1
    s_lshl_b32 s{sT0}, s2, 3
    s_add_u32 s{sT0}, s{sT0}, s{sW}
    s_lshl_b32 s{sT0}, s{sT0}, 7
    s_add_u32 s{sT0}, s{sT0}, {WS_STAMP}
    v_mov_b32 v{vt+2}, 0
    """)
    for i in range(NST):
        a(f"v_mov_b32 v{vt}, s{STAMP_S+i}")
        a(f"buffer_store_dword v{vt}, v{vt+2}, s[{sWS}:{sWS+3}], s{sT0} offen offset:{4*i}")
    if 'dbgstamp' in OPT:
        a(f"s_cmp_eq_u32 s2, 100\ns_cbranch_scc0 LF_nodbg\ns_cmp_eq_u32 s{sJ}, 0\ns_cbranch_scc0 LF_nodbg\ns_lshl_b32 s{sT0}, s{sRole}, 5")
        for i in range(8):
            a(f"s_sub_u32 s{sT1}, s{STAMP_S+i}, s{STAMP_S}")
            a(f"v_mov_b32 v{vt}, s{sT1}")
            a(f"buffer_store_dword v{vt}, v{vt+2}, s[{sDbg}:{sDbg+3}], s{sT0} offen offset:{4*i}")
        a("LF_nodbg:")


def WSR():
    return f"s[{sWS}:{sWS+3}]"


_lbl = [0]


def poll(a, loads, expect, vtmp):
    _lbl[0] += 1
    L = f"LF_poll{_lbl[0]}"
    a(f"s_mov_b32 s{sSpin}, {SPIN}\n{L}:")
    for i, (vo, srd, so) in enumerate(loads):
        a(f"buffer_load_dword v{vtmp+i}, v{vo}, {srd}, {so} offen sc1")
    a("s_waitcnt vmcnt(0)")
    for i in range(1, len(loads)):
        a(f"v_min_u32 v{vtmp}, v{vtmp}, v{vtmp+i}")
    a(f"""
    v_cmp_gt_u32 vcc, {expect}, v{vtmp}
    s_cbranch_vccz {L}_ok
    s_sleep {SLEEP}
    s_sub_u32 s{sSpin}, s{sSpin}, 1
    s_cbranch_scc0 {L}
    {L}_ok:
    """)


def poll_counter(a, vo, so, expect, mask):
    _lbl[0] += 1
    L = f"LF_pc{_lbl[0]}"
    rd = (f"v_mov_b32 v{vPS}, 0\nbuffer_atomic_add v{vPS}, v{vo}, {WSR()}, {so} offen sc0 sc1" if 'ldpoll' not in OPT else
          f"buffer_load_dword v{vPS}, v{vo}, {WSR()}, {so} offen sc1")
    a(f"""
    s_mov_b32 s{sSpin}, {SPIN}
    s_mov_b64 exec, {mask}
    {L}:
    {rd}
    s_waitcnt vmcnt(0)
    v_cmp_gt_u32 vcc, {expect}, v{vPS}
    s_cbranch_vccz {L}_ok
    s_sleep {SLEEP}
    s_sub_u32 s{sSpin}, s{sSpin}, 1
    s_cbranch_scc0 {L}
    {L}_ok:
    s_mov_b64 exec, -1
    """)


def count_in(a, soff, vz, vd):
    a(f"""
    v_mov_b32 v{vz}, 0
    v_mov_b32 v{vd}, 1
    s_mov_b64 exec, 1
    buffer_atomic_add v{vd}, v{vz}, {WSR()}, s{soff} offen sc1
    s_mov_b64 exec, -1
    """)


gXF = 0
gWF = 160
gWA = [184, 185, 186, 187]
gXA = 188
gT = 189
gACC = 192


PUB_BAR = 12
LAST_BAR = 15
PAIR_BAR = 19
NFIRST = 6
ROT = 1


def stage_barriers():
    return list(range(0, LAST_BAR + 1))


def gemm_schedule():
    items = [x for n in range(10) for x in (("X", n), ("W", n))] + [("W", n) for n in range(10, 20)]
    rel = lambda it: it[1] + (1 if it[0] == "X" else 2)
    free = list(range(10))
    slot, when, freed = {}, {}, set()
    k = 0
    for bar in range(-1, LAST_BAR):
        for it in items:
            if it in slot and it not in freed and rel(it) <= min(bar, 11):
                free.append(slot[it])
                freed.add(it)
        n = 0
        while k < len(items) and free and n < (NFIRST if bar == -1 else MAXISS) and not (items[k][1] >= HOLD_W and bar < HOLD_BAR):
            slot[items[k]] = free.pop(0)
            when[items[k]] = bar
            k += 1
            n += 1
    assert k == len(items)
    order = [slot[("W", n)] for n in (15, 16, 17, 18, 19, 13, 14, 10, 11, 12)]
    assert sorted(order) == list(range(10)), order
    slot = {it: order.index(v) for it, v in slot.items()}
    return items, slot, when


MAXISS = 3
HOLD_W, HOLD_BAR = 13, 11


def lane_id(a, v):
    a(f"v_mbcnt_lo_u32_b32 v{v}, -1, 0\nv_mbcnt_hi_u32_b32 v{v}, -1, v{v}")


def gemm_body(a, vtype):
    L = "LG_v" if vtype else "LG_q"
    items, slot, when = gemm_schedule()

    def kc(q):
        return ((q & 3, (q >> 2) & 3) if q >= 144 else ((q >> 2) & 3, q & 3))

    def wreads(q):
        ks, c = kc(q)
        d = gWF + 4 * (q % 6)
        return [f"ds_read_b64_tr_b16 {vr(d + 2*u, 2)}, v{gWA[c]} offset:{ks*4096 + u*1024}" for u in range(2)]

    def xreads(n):
        for ks in range(4):
            d = gXF + 4 * (4 * n + ks)
            a(f"v_xor_b32 v{d}, {32 * ks}, v{gXA}")
        for ks in range(4):
            d = gXF + 4 * (4 * n + ks)
            a(f"ds_read_b128 {vr(d,4)}, v{d}")

    def advance(n):
        da = (slot[("W", n)] - slot[("W", n - 1)]) * GSL
        a(f"s_cmp_eq_u32 s{sPh}, 1\ns_mov_b32 s{sInc}, {da & 0xffffffff}")
        if n < 10:
            db = (slot[("W", n + 10)] - slot[("W", n + 9)]) * GSL
            a(f"s_cmov_b32 s{sInc}, {db & 0xffffffff}")
        for r in gWA:
            a(f"v_add_u32 v{r}, s{sInc}, v{r}")

    def pack(c):
        out = []
        A = gACC + 16 * c
        out += [f"v_cvt_pk_bf16_f32 v{gACC + 8*c + j}, v{A+2*j}, v{A+2*j+1}" for j in range(8)]
        return out

    def stores(c):
        out = []
        for i in range(2):
            d = vr(gACC + 8*c + 4*i, 4)
            if vtype:
                out.append(f"buffer_store_dwordx4 {d}, v{gT}, {WSR()}, s{sE + i} offen offset:{c * 512} sc1")
            else:
                out.append(f"buffer_store_dwordx4 {d}, v{gT}, {WSR()}, s{sE + (c >> 1)} offen offset:{(c & 1) * 2048 + i * 1024} sc1")
        return out

    a("s_barrier")
    a.c("this workgroup has cleared its share of the counters: count it in")
    a(f"""
    s_cmp_eq_u32 s{sW}, 4
    s_cbranch_scc0 {L}_nocount
    s_and_b32 s{sT0}, s2, 31
    s_lshl_b32 s{sT0}, s{sT0}, 2
    s_add_u32 s{sT0}, s{sT0}, 128
    v_mov_b32 v{gT+1}, 0
    v_mov_b32 v{gT+2}, 1
    s_mov_b64 exec, 1
    buffer_atomic_add v{gT+2}, v{gT+1}, s[{sDbg}:{sDbg+3}], s{sT0} offen sc1
    s_mov_b64 exec, -1
    {L}_nocount:
    """)
    stamp(a, 1)
    xreads(0)
    for q in range(6):
        for r in wreads(q):
            a(r)
    a(f"{L}_body:")
    for q in range(160):
        n = q >> 4
        ks, c = kc(q)
        if q <= 154:
            a(f"s_waitcnt lgkmcnt({2 * (min(q + 5, 159) - q)})")
        elif q == 155:
            a("s_waitcnt lgkmcnt(0)")
        x, w = vr(gXF + 4 * (4 * n + ks), 4), vr(gWF + 4 * (q % 6), 4)
        A, B = (x, w) if vtype else (w, x)
        d = vr(gACC + 16 * c, 16)
        a(f"v_mfma_f32_32x32x16_bf16 {d}, {A}, {B}, {'0' if q < 4 else d}")
        if (q & 15) == 10:
            advance(n + 1)
            both = n + 11 in stage_barriers() or n + 11 == PAIR_BAR
            if n + 11 == PUB_BAR:
                a(f"s_cbranch_scc0 {L}_nd\ns_waitcnt vmcnt(0)\n{L}_nd:")
            if both:
                a("s_barrier")
            a(f"s_cbranch_scc1 {L}_nx{n}")
            if not both:
                a("s_barrier")
            if n + 1 < 10:
                dx = (slot[("X", n + 1)] - slot[("X", n)]) * GSL
                a(f"v_add_u32 v{gXA}, {dx & 0xffffffff}, v{gXA}")
                xreads(n + 1)
            a(f"{L}_nx{n}:")
        if q + 6 < 160:
            for r in wreads(q + 6):
                a(r)
        if q == 144:
            a("s_setprio 2")
        if q in (150, 154):
            for x in pack((q - 150) // 4):
                a(x)
        if q in (151, 155):
            for x in stores((q - 151) // 4):
                a(x)
        if q == 156:
            if common.STAMP: a(f"s_cbranch_scc1 {L}_st1\ns_memrealtime s[{STAMP_S+28}:{STAMP_S+29}]\n{L}_st1:")
            a("s_nop 7")
        if q == 158:
            for x in pack(2):
                a(x)
    for x in stores(2):
        a(x)
    a(f"s_cbranch_scc1 {L}_nopre")
    for q in range(6):
        for r in wreads(q):
            a(r)
    if common.STAMP: a(f"s_memrealtime s[{STAMP_S+30}:{STAMP_S+31}]")
    a(f"{L}_nopre:\ns_nop 9")
    for x in pack(3) + stores(3):
        a(x)
    a(f"s_cbranch_scc1 LG_done")
    stamp(a, 2)
    next_units(a)
    step = 6 * 1024 if vtype else 5 * 4096
    a(f"s_add_u32 s{sE}, s{sE}, {step}\ns_add_u32 s{sE+1}, s{sE+1}, {step}")
    if vtype:
        a(f"s_cmp_eq_u32 s{sTI}, 7\ns_cbranch_scc1 LG_idle")
    a(f"s_branch {L}_body")


def next_units(a):
    a(f"""
    s_mov_b32 s{sPh}, 1
    s_cmp_ge_u32 s{sTI}, 5
    s_cselect_b32 s{sT0}, 6, 5
    s_add_u32 s{sU0}, s{sU0}, s{sT0}
    s_add_u32 s{sU1}, s{sU1}, s{sT0}
    """)


def publish_sub(a):
    t = vPS
    a(f"""
    LG_publish:
    v_cmp_lt_u32 vcc, 31, v0
    v_mov_b32 v{t+3}, s{sU0}
    v_mov_b32 v{t+4}, s{sU1}
    v_cndmask_b32 v{t+3}, v{t+3}, v{t+4}, vcc
    v_mul_u32_u24 v{t+4}, 205, v{t+3}
    v_lshrrev_b32 v{t+4}, 11, v{t+4}
    v_mul_u32_u24 v{t+5}, 10, v{t+4}
    v_sub_u32 v{t+3}, v{t+3}, v{t+5}
    v_lshlrev_b32 v{t+3}, 3, v{t+3}
    v_and_b32 v{t+5}, 31, v0
    v_lshl_add_u32 v{t+4}, v{t+5}, 2, v{t+4}
    v_lshlrev_b32 v{t+4}, 7, v{t+4}
    v_mul_u32_u24 v{t+5}, 5, v{t+5}
    v_lshrrev_b32 v{t+5}, 1, v{t+5}
    v_add_u32 v{t+5}, 2, v{t+5}
    v_sub_u32 v{t+5}, v{t+5}, v{t+3}
    v_cmp_gt_u32 vcc, 10, v{t+5}
    v_mov_b32 v{t+1}, 1
    s_lshl_b32 s{sT1}, s{sBr}, 14
    s_add_u32 s{sT1}, s{sT1}, {WS_C1}
    s_mov_b64 exec, vcc
    buffer_atomic_add v{t+1}, v{t+4}, {WSR()}, s{sT1} offen sc1
    s_mov_b64 exec, -1
    s_setpc_b64 s[{sLnk}:{sLnk+1}]
    """)


def gemm_compute(a):
    items, slot, when = gemm_schedule()
    t0, t1, t2 = 8, 9, 10
    a(f"""
    v_and_b32 v{t0}, 31, v0
    v_lshrrev_b32 v{t1}, 5, v0
    v_lshrrev_b32 v{t2}, 1, v{t0}
    v_and_b32 v{t2}, 7, v{t2}
    v_xor_b32 v{t2}, v{t2}, v{t1}
    v_lshlrev_b32 v{t2}, 4, v{t2}
    v_lshlrev_b32 v{t0}, 7, v{t0}
    v_add_u32 v{t2}, v{t2}, v{t0}
    s_lshl_b32 s{sT0}, s{sJ}, 12
    s_add_u32 s{sT0}, s{sT0}, {slot[("X", 0)] * GSL}
    v_add_u32 v{gXA}, s{sT0}, v{t2}
    v_lshrrev_b32 v{t0}, 2, v0
    v_and_b32 v{t0}, 3, v{t0}
    v_lshlrev_b32 v{t2}, 3, v{t1}
    v_add_u32 v{t2}, v{t2}, v{t0}
    v_lshlrev_b32 v{t2}, 8, v{t2}
    v_lshlrev_b32 v{t0}, 6, v{t0}
    v_add_u32 v{t2}, v{t2}, v{t0}
    v_and_b32 v{t0}, 16, v0
    v_lshlrev_b32 v{t0}, 1, v{t0}
    v_add_u32 v{t2}, v{t2}, v{t0}
    v_add_u32 v{t2}, {slot[("W", 0)] * GSL}, v{t2}
    v_and_b32 v{t0}, 1, v0
    v_and_b32 v{t1}, 2, v0
    s_cmp_ge_u32 s{sTI}, 5
    s_cselect_b32 s{sT0}, 3, 4
    s_cselect_b32 s{sT1}, 3, 2
    v_lshlrev_b32 v{t0}, s{sT0}, v{t0}
    v_lshlrev_b32 v{t1}, s{sT1}, v{t1}
    v_add3_u32 v{gWA[0]}, v{t2}, v{t0}, v{t1}
    v_xor_b32 v{gWA[1]}, 64, v{gWA[0]}
    v_xor_b32 v{gWA[2]}, 128, v{gWA[0]}
    v_xor_b32 v{gWA[3]}, 192, v{gWA[0]}
    s_lshl_b32 s{sT0}, s{sTB}, 2
    s_add_u32 s{sT0}, s{sT0}, s{sJ}
    s_mul_i32 s{sT0}, s{sT0}, {TILE}
    s_add_u32 s{sT0}, s{sT0}, s{sImg}
    v_lshlrev_b32 v{gT}, 4, v0
    s_waitcnt vmcnt(0)
    s_cmp_ge_u32 s{sTI}, 5
    s_cbranch_scc1 LG_vtype
    s_lshl_b32 s{sE}, s{sU0}, 12
    s_lshl_b32 s{sE+1}, s{sU1}, 12
    s_cmp_ge_u32 s{sU0}, 10
    s_cselect_b32 s{sT3}, {IMG - 40960}, 0
    s_add_u32 s{sE}, s{sE}, s{sT3}
    s_cmp_ge_u32 s{sU1}, 10
    s_cselect_b32 s{sT3}, {IMG - 40960}, 0
    s_add_u32 s{sE+1}, s{sE+1}, s{sT3}
    s_add_u32 s{sE}, s{sE}, s{sT0}
    s_add_u32 s{sE+1}, s{sE+1}, s{sT0}
    """)
    gemm_body(a, False)
    a(f"""
    LG_vtype:
    s_lshl_b32 s{sE}, s{sU0}, 10
    s_add_u32 s{sE}, s{sE}, {2 * IMG - 20480}
    s_add_u32 s{sE}, s{sE}, s{sT0}
    s_add_u32 s{sE+1}, s{sE}, 20480
    v_lshrrev_b32 v8, 5, v0
    v_mul_u32_u24 v8, 10240 - 512, v8
    v_add_u32 v{gT}, v{gT}, v8
    """)
    gemm_body(a, True)


def gemm_loader(a):
    items, slot, when = gemm_schedule()
    vE, vO, vWs, vCnt = 230, 231, 232, 233
    sKX, sKW = sKB, sSlot
    a(f"""
    v_lshrrev_b32 v5, 3, v0
    v_mul_u32_u24 v5, 1280, v5
    v_and_b32 v6, 7, v0
    v_lshrrev_b32 v7, 4, v0
    v_xor_b32 v6, v6, v7
    v_lshlrev_b32 v6, 4, v6
    v_add_u32 v{vE}, v5, v6
    v_xor_b32 v6, 64, v6
    v_add_u32 v{vO}, v5, v6
    v_add_u32 v{vO}, {8 * 1280 - 1024}, v{vO}
    v_lshrrev_b32 v5, 2, v0
    v_and_b32 v5, 3, v5
    v_xor_b32 v5, v5, v7
    v_lshrrev_b32 v6, 1, v5
    s_sub_u32 s{sT0}, s{sU1}, s{sU0}
    s_lshl_b32 s{sT0}, s{sT0}, 7
    v_mul_u32_u24 v6, s{sT0}, v6
    v_and_b32 v5, 1, v5
    v_lshl_add_u32 v5, v5, 6, v6
    v_and_b32 v6, 3, v0
    v_lshl_add_u32 v5, v6, 4, v5
    v_mul_u32_u24 v6, 3840, v7
    v_add_u32 v{vWs}, v5, v6
    s_lshl_b32 s{sXo}, s{sTB}, 2
    s_add_u32 s{sXo}, s{sXo}, s{sJ}
    s_mul_i32 s{sXo}, s{sXo}, {32 * 1280}
    s_mul_i32 s{sWo}, s{sJ}, {16 * 3840}
    s_lshl_b32 s{sT0}, s{sU0}, 7
    s_add_u32 s{sWo}, s{sWo}, s{sT0}
    s_lshl_b32 s{sInc}, s{sJ}, 12
    """)
    a.c("workgroups that share a tile start at different k-blocks, so that they fill the L2 together")
    if ROT:
        a(f"""
        s_and_b32 s{sKX}, s{sTB}, 3
        s_mul_i32 s{sKX}, s{sKX}, 5
        s_add_u32 s{sKX}, s{sKX}, 1
        s_lshr_b32 s{sKX}, s{sKX}, 1
        s_add_u32 s{sKX}, s{sKX}, s{sTI}
        s_cmp_ge_u32 s{sKX}, 10
        s_cselect_b32 s{sT0}, 10, 0
        s_sub_u32 s{sKX}, s{sKX}, s{sT0}
        """)
    else:
        a(f"s_and_b32 s{sKX}, s{sTI}, 1")
    a(f"s_mov_b32 s{sKW}, s{sKX}\ns_mov_b32 s{sIt}, 0")
    q = []

    def issue(it):
        if it == ("W", 10):
            a(f"s_cmp_ge_u32 s{sTI}, 5\ns_cselect_b32 s{sT0}, {6 * 128}, s{sC640}\ns_add_u32 s{sWo}, s{sWo}, s{sT0}")
            a(f"s_cmp_eq_u32 s{sTI}, 7\ns_cselect_b32 s{sIt}, 1, 0")
        a(f"s_add_u32 m0, s{sInc}, {slot[it] * GSL}\ns_call_b64 s[{sLnk}:{sLnk+1}], LL_{it[0]}")
        q.extend([it] * 4)

    def wait_for(names):
        last = max(i for i, x in enumerate(q) if x in names)
        a(f"s_waitcnt vmcnt({min(63, len(q) - 1 - last)})")

    sC640 = sT4
    first = [it for it in items if when[it] == -1]
    for it in first:
        issue(it)
    a(f"s_call_b64 s[{sLnk}:{sLnk+1}], LA_setup")
    a(f"v_mov_b32 v{vCnt}, 0")
    bars = stage_barriers()
    for bi, bar in enumerate(bars):
        upto = bars[bi + 1] - 1 if bi + 1 < len(bars) else 19
        wait_for([("X", bar), ("W", upto)] + (["cnt"] if bar == PUB_BAR else []))
        if bar == PUB_BAR:
            a.c("all counters must have been cleared before the first one is used")
            a(f"v_cmp_gt_u32 vcc, 8, v{vCnt}\ns_cbranch_vccz LL_cnt_ok")
            poll(a, [(vP + 5, f"s[{sDbg}:{sDbg+3}]", "0")], 8, vPS)
            a("LL_cnt_ok:")
        a("s_barrier")
        if bar == PUB_BAR:
            a(f"s_cmp_eq_u32 s{sJ}, 0\ns_cbranch_scc0 LL_pub\ns_call_b64 s[{sLnk}:{sLnk+1}], LG_publish\nLL_pub:")
            stamp(a, 27)
        if bar <= 11 or bar == LAST_BAR:
            stamp(a, 8 + bar)
        a(f"s_mov_b32 s{sC640}, 640")
        for it in items:
            if when[it] == bar:
                issue(it)
        if bar == 9:
            a(f"buffer_load_dword v{vCnt}, v{vP+5}, s[{sDbg}:{sDbg+3}], 0 offen sc1")
            q.append("cnt")
    write_ones(a, 0)
    a(f"v_mov_b32 v{vP}, {LCNT}\nv_mov_b32 v{vP+1}, 0\nds_write_b32 v{vP}, v{vP+1}")
    a("s_branch LA_lead")
    a(f"""
    LL_X:
    s_lshl_b32 s{sT0}, s{sKX}, 7
    s_add_u32 s{sT0}, s{sT0}, s{sXo}
    s_add_u32 s{sKX}, s{sKX}, 1
    buffer_load_dwordx4 v{vE}, s[{sX}:{sX+3}], s{sT0} offen lds
    buffer_load_dwordx4 v{vO}, s[{sX}:{sX+3}], s{sT0} offen offset:1024 lds
    s_add_u32 m0, m0, 2048
    s_add_u32 s{sT0}, s{sT0}, {16 * 1280}
    buffer_load_dwordx4 v{vE}, s[{sX}:{sX+3}], s{sT0} offen lds
    buffer_load_dwordx4 v{vO}, s[{sX}:{sX+3}], s{sT0} offen offset:1024 lds
    s_cmp_eq_u32 s{sKX}, 10
    s_cselect_b32 s{sKX}, 0, s{sKX}
    s_setpc_b64 s[{sLnk}:{sLnk+1}]
    LL_Wskip:
    s_waitcnt vmcnt(0)
    s_setpc_b64 s[{sLnk}:{sLnk+1}]
    LL_W:
    s_cmp_eq_u32 s{sIt}, 1
    s_cbranch_scc1 LL_Wskip
    s_mul_i32 s{sT1}, s{sKW}, {64 * 3840}
    s_add_u32 s{sT1}, s{sT1}, s{sWo}
    s_add_u32 s{sKW}, s{sKW}, 1
    """)
    for p in range(4):
        a(f"buffer_load_dwordx4 v{vWs}, s[{sWt}:{sWt+3}], s{sT1} offen lds")
        if p < 3:
            a(f"s_add_u32 m0, m0, 1024")
            a(f"s_add_u32 s{sT1}, s{sT1}, {4 * 3840}")
    a(f"""
    s_cmp_eq_u32 s{sKW}, 10
    s_cselect_b32 s{sKW}, 0, s{sKW}
    s_setpc_b64 s[{sLnk}:{sLnk+1}]
    """)


vKA, vVA, vT0, vT1 = 1, 2, 3, 14
Qm = [4, 8]
Qe = 12
vL16 = 15
Km = [16, 20]
Ke = 24
Vb = [[28, 32], [36, 40]]
vVbase, vVflag, vE16, vVG = 44, 45, 46, 47
NM = 48
SB = [80, 112]
OA = [144, 160]
vD = 176
vP = 182
vPS = 188
NVGPR = 256


def mfma32(d, a_, b, c):
    return f"v_mfma_f32_32x32x16_bf16 {vr(d,16)}, {vr(a_,4)}, {vr(b,4)}, {c}"


def mfma2b(d, ke_tile, c):
    return (f"v_mfma_f32_32x32x4_2b_bf16 {vr(d,32)}, {vr(Ke + 2 * (ke_tile >> 1), 2)}, {vr(Qe,2)}, {c}"
            f" cbsz:1 abid:{ke_tile & 1}")


def valu_stream(X, Y):
    def e(base, i): return f"v_exp_f32 v{base+i}, v{base+i}"
    def c(j):
        dst = X + 8 * (j // 4) + (j % 4)
        return f"v_cvt_pk_bf16_f32 v{dst}, v{X+2*j}, v{X+2*j+1}"
    out = [e(X, 1)]
    for j in range(16):
        out.append(e(X, 2 * j + 2) if j < 15 else e(Y, 0))
        out.append(c(j))
        if j < 15:
            out.append(e(X, 2 * j + 3))
    return out


def tile_iter(a, ii):
    par = ii & 1
    X, Y = SB[par], SB[par ^ 1]
    Vc, Vn = Vb[par], Vb[par ^ 1]
    Kc, Kn = Km[par ^ 1], Km[par]
    v = valu_stream(X, Y)
    t1 = (ii + 1) % 4
    t2 = (ii + 2) % 4
    ins = {}
    ins[2] = [mfma32(OA[1], Vn[1], Y + 24, vr(OA[1], 16)),
              f"ds_read_b128 {vr(Vn[0],4)}, v{vVA} offset:{t1 * 1280}"]
    ins[7] = [mfma2b(Y, t1, vr(NM, 32))]
    ins[17] = [mfma32(OA[0], Vc[0], X, vr(OA[0], 16)),
               f"ds_read_b128 {vr(Vn[1],4)}, v{vVA} offset:{t1 * 1280 + 640}"]
    ins[23] = [mfma32(Y, Kc, Qm[0], vr(Y, 16)),
               f"ds_read_b128 {vr(Kn,4)}, v{vKA} offset:{2048 + t2 * 1024}"]
    ins[29] = [mfma32(OA[0], Vc[1], X + 8, vr(OA[0], 16))]
    ins[35] = [mfma32(Y + 16, Kc, Qm[1], vr(Y + 16, 16))]
    ins[41] = [mfma32(OA[1], Vc[0], X + 16, vr(OA[1], 16)),
               "s_waitcnt lgkmcnt(0)"]
    if ii == 0:
        ins[29].append(f"s_add_u32 s{sNext}, s{sNext}, {CH}")
        ins[35].append(f"s_cmp_eq_u32 s{sNext}, s{sRe}")
    if ii == 1:
        ins[29].append(f"s_cselect_b32 s{sNext}, s{sRb}, s{sNext}")
        ins[44] = [f"v_add_u32 v{vKA}, s{sNext}, v{vL16}"]
    if ii == 2:
        ins[29].append(f"ds_read2_b64 {vr(Ke,4)}, v{vKA} offset0:0 offset1:128")
        ins[44] = [f"v_mad_u32_u24 v{vVA}, v{vVflag}, s{sNext}, v{vVbase}"]
    if ii == 3:
        ins[35].append(f"s_sub_u32 s{sRem}, s{sRem}, 1")
    for p, op in enumerate(v):
        for x in ins.get(p, []):
            a(x)
        a(op)


def rowmax(a, X, out0, out1):
    for base, o in ((X, out0), (X + 16, out1)):
        a(f"v_max3_f32 v{o}, v{base}, v{base+1}, v{base+2}")
        for r in range(3, 15, 2):
            a(f"v_max3_f32 v{o}, v{o}, v{base+r}, v{base+r+1}")
        a(f"v_max_f32 v{o}, v{o}, v{base+15}")


def cross_half_max(a, r, tmp):
    a(f"v_mov_b32 v{tmp}, v{r}\ns_nop 1\nv_permlane32_swap_b32 v{tmp}, v{r}\ns_nop 1\nv_max_f32 v{r}, v{r}, v{tmp}")


def fill_nm(a, m0, m1):
    for r in range(16):
        a(f"v_sub_f32 v{NM+r}, 0, v{m0}")
    for r in range(16):
        a(f"v_sub_f32 v{NM+16+r}, 0, v{m1}")


def attn_setup(a):
    a("LA_setup:")
    a.c("head offsets: main octs start at (5g+1)>>1; the ext quad shares an oct with the neighbouring head")
    a(f"""
    s_and_b32 s{sT3}, s{sHead}, 15
    s_mul_i32 s{sOm}, s{sT3}, 5
    s_add_u32 s{sOm}, s{sOm}, 1
    s_lshr_b32 s{sOm}, s{sOm}, 1
    s_lshl_b32 s{sOm}, s{sOm}, 9
    s_and_b32 s{sT0}, s{sHead}, 1
    s_mov_b32 s{sT1}, 1024
    s_cselect_b32 s{sT1}, {(-512 + 8) & 0xffffffff}, s{sT1}
    s_add_u32 s{sExt}, s{sOm}, s{sT1}
    v_lshlrev_b32 v{vL16}, 4, v0
    v_lshrrev_b32 v{vT0}, 5, v0
    v_mul_u32_u24 v{vT1}, {TILE}, v{vT0}
    v_and_b32 v{vP}, 31, v0
    v_lshl_add_u32 v{vE16}, v{vP}, 4, v{vT1}
    """)
    a.c("V rows: 0..15 main dims, 16..19 ext dims, 20 and 24 ones, the others zero (address past the allocation)")
    a(f"""
    s_cmp_eq_u32 s{sRole}, 0
    s_cselect_b32 s{sT4}, {ONES[0]}, {ONES[1]}
    v_mov_b32 v{vVflag}, s{sT4}
    s_lshl_b32 s{sT0}, s{sT0}, 2
    v_and_b32 v{vP+1}, 3, v0
    v_and_b32 v{vP+2}, 4, v0
    v_lshl_add_u32 v{vP+1}, v{vP+2}, 1, v{vP+1}
    v_and_b32 v{vP+2}, 8, v0
    v_lshrrev_b32 v{vP+2}, 1, v{vP+2}
    v_add3_u32 v{vP+1}, v{vP+1}, v{vP+2}, s{sT0}
    s_lshl_b32 s{sT0}, s{sT0}, 2
    v_subrev_u32 v{vP+2}, s{sT0}, v{vP}
    v_cmp_gt_u32 vcc, 16, v{vP}
    v_mul_u32_u24 v{vT1}, 10240, v{vT0}
    v_mul_u32_u24 v{vT0}, 320, v{vT0}
    v_cndmask_b32 v{vP+1}, v{vP+2}, v{vP+1}, vcc
    v_lshlrev_b32 v{vP+1}, 4, v{vP+1}
    v_add_u32 v{vVG}, v{vP+1}, v{vT1}
    v_add3_u32 v{vVbase}, v{vP+1}, v{vT0}, 0
    v_add_u32 v{vVbase}, 6144, v{vVbase}
    v_cmp_gt_u32 vcc, 20, v{vP}
    v_mov_b32 v{vP+1}, 0x100000
    v_mov_b32 v{vP+2}, v{vVflag}
    v_cndmask_b32 v{vVflag}, 0, 1, vcc
    v_cndmask_b32 v{vVbase}, v{vP+1}, v{vVbase}, vcc
    v_cmp_eq_u32 vcc, 20, v{vP}
    v_cmp_eq_u32 s[{sT2+1}:{sT2+2}], 24, v{vP}
    s_or_b64 vcc, vcc, s[{sT2+1}:{sT2+2}]
    s_nop 1
    v_cndmask_b32 v{vVbase}, v{vVbase}, v{vP+2}, vcc
    """)
    a.c("DMA source offsets: even waves load K pieces, odd waves V pieces")
    a(f"""
    s_and_b32 s{sT0}, s{sJ}, 1
    s_cbranch_scc1 LA_dv
    v_add_u32 v{vD}, s{sExt}, v{vE16}
    v_add_u32 v{vD+1}, {2 * TILE}, v{vD}
    v_add_u32 v{vD+2}, s{sOm}, v{vL16}
    v_add_u32 v{vD+3}, {TILE}, v{vD+2}
    v_add_u32 v{vD+4}, {TILE}, v{vD+3}
    v_add_u32 v{vD+5}, {TILE}, v{vD+4}
    s_branch LA_dd
    LA_dv:
    s_and_b32 s{sT0}, s{sHead}, 15
    s_mul_i32 s{sT0}, s{sT0}, 320
    s_add_u32 s{sT0}, s{sT0}, {IMG}
    """)
    for p in range(5):
        a(f"""
        v_add_u32 v{vP}, {64 * p}, v0
        v_mul_u32_u24 v{vP+1}, 3277, v{vP}
        v_lshrrev_b32 v{vP+1}, 16, v{vP+1}
        v_mul_u32_u24 v{vP+2}, 20, v{vP+1}
        v_sub_u32 v{vP+2}, v{vP}, v{vP+2}
        v_mul_u32_u24 v{vP+1}, 10240, v{vP+1}
        v_lshl_add_u32 v{vP+1}, v{vP+2}, 4, v{vP+1}
        v_add_u32 v{vD+p}, s{sT0}, v{vP+1}
        """)
    a(f"v_mov_b32 v{vD+5}, v{vD+4}\nLA_dd:")
    a.c("own head offsets; arrivals expected per kind: 16 token blocks x number of 64-column units that hold the head")
    a(f"""
    s_mul_i32 s{sT0}, s{sRole}, 20480
    s_add_u32 s{sOm}, s{sOm}, s{sT0}
    s_add_u32 s{sExt}, s{sExt}, s{sT0}
    s_min_u32 s{sT0}, s{sOm}, s{sExt}
    s_add_u32 s{sT2}, s{sOm}, 512
    s_max_u32 s{sT1}, s{sExt}, s{sT2}
    s_lshr_b32 s{sT0}, s{sT0}, 12
    s_lshr_b32 s{sT1}, s{sT1}, 12
    s_cmp_eq_u32 s{sT0}, s{sT1}
    s_cselect_b32 s{sExp}, 16, 32
    v_min_u32 v{vP+3}, 2, v0
    v_lshlrev_b32 v{vP+3}, 7, v{vP+3}
    v_mov_b32 v{vP+4}, 0
    v_lshlrev_b32 v{vP+5}, 2, v0
    v_or_b32 v{vP+5}, 128, v{vP+5}
    s_setpc_b64 s[{sLnk}:{sLnk+1}]
    """)


def dma_sub(a):
    a(f"""
    LA_dma:
    s_add_u32 s{sT2}, s{sT1}, s{sQB}
    s_and_b32 s{sT2}, s{sT2}, 7
    s_lshl_b32 s{sT2}, s{sT2}, 1
    s_lshr_b32 s{sT3}, s{sJ}, 1
    s_add_u32 s{sT2}, s{sT2}, s{sT3}
    s_mul_i32 s{sT2}, s{sT2}, {4 * TILE}
    s_lshl_b32 s{sT4}, s{sJ}, 1
    s_and_b32 s{sT4}, s{sT4}, 2
    s_lshr_b32 s{sT4}, 20480, s{sT4}
    s_mul_i32 s{sT4}, s{sT4}, s{sT0}
    s_add_u32 s{sT2}, s{sT2}, s{sT4}
    s_add_u32 s{sT2}, s{sT2}, s{sImg}
    s_add_u32 s{sT2}, s{sT2}, {IMG}
    s_sub_u32 s{sT1}, s{sT1}, s{sT0}
    s_add_u32 s{sT1}, s{sT1}, 1
    s_mul_i32 s{sT4}, s{sT1}, 43
    s_lshr_b32 s{sT4}, s{sT4}, 7
    s_mul_i32 s{sT4}, s{sT4}, 3
    s_sub_u32 s{sT1}, s{sT1}, s{sT4}
    s_lshl_b32 s{sT1}, s{sT1}, 1
    s_add_u32 s{sT1}, s{sT1}, s{sT3}
    s_mul_i32 s{sT1}, s{sT1}, {CH}
    s_mul_i32 s{sT4}, s{sT0}, {RA - RB}
    s_sub_u32 s{sT1}, s{sT1}, s{sT4}
    s_add_u32 s{sT1}, s{sT1}, {RA}
    s_and_b32 s{sT3}, s{sJ}, 1
    s_mul_i32 s{sT4}, s{sT3}, 6144
    s_add_u32 m0, s{sT1}, s{sT4}
    s_nop 0
    """)
    for p in range(5):
        a(f"buffer_load_dwordx4 v{vD+p}, {WSR()}, s{sT2} offen sc1 lds")
        a("s_add_u32 m0, m0, 1024")
        a("s_nop 0" if p < 4 else f"s_cmp_eq_u32 s{sT3}, 1")
    a(f"""
    s_cbranch_scc1 LA_dma_ret
    buffer_load_dwordx4 v{vD+5}, {WSR()}, s{sT2} offen sc1 lds
    LA_dma_ret:
    s_setpc_b64 s[{sLnk}:{sLnk+1}]
    """)


def call_dma(a, b, blk):
    a(f"s_mov_b32 s{sT0}, {b}\ns_mov_b32 s{sT1}, {blk}\ns_call_b64 s[{sLnk}:{sLnk+1}], LA_dma")


def poll_f1(a):
    a(f"""
    s_lshl_b32 s{sT0}, s{sBr}, 5
    s_add_u32 s{sT0}, s{sT0}, s{sHead}
    s_lshl_b32 s{sT0}, s{sT0}, 9
    s_add_u32 s{sT0}, s{sT0}, {WS_C1}
    """)
    poll_counter(a, vP + 3, f"s{sT0}", f"s{sExp}", 7)


def load_q(a):
    a(f"""
    s_lshl_b32 s{sT0}, s{sQB}, 2
    s_add_u32 s{sT0}, s{sT0}, s{sJ}
    s_mul_i32 s{sT0}, s{sT0}, {2 * TILE}
    s_add_u32 s{sT0}, s{sT0}, s{sImg}
    s_add_u32 s{sT1}, s{sT0}, s{sOm}
    s_add_u32 s{sT2}, s{sT1}, {TILE}
    s_add_u32 s{sT0}, s{sT0}, s{sExt}
    buffer_load_dwordx4 {vr(Qm[0],4)}, v{vL16}, {WSR()}, s{sT1} offen sc1
    buffer_load_dwordx4 {vr(Qm[1],4)}, v{vL16}, {WSR()}, s{sT2} offen sc1
    buffer_load_dwordx2 {vr(Qe,2)}, v{vE16}, {WSR()}, s{sT0} offen sc1
    """)


def scale_q(a, nyounger):
    a(f"s_mov_b32 s{sT0}, {hex(f32bits(QSCALE))}\ns_waitcnt vmcnt({nyounger})")
    for r in range(Qm[0], Qe + 2):
        a(f"""
        v_lshlrev_b32 v{vP}, 16, v{r}
        v_and_b32 v{vP+1}, 0xffff0000, v{r}
        v_mul_f32 v{vP}, s{sT0}, v{vP}
        v_mul_f32 v{vP+1}, s{sT0}, v{vP+1}
        v_cvt_pk_bf16_f32 v{r}, v{vP}, v{vP+1}
        """)


def attention(a):
    X = SB[0]
    a(f"""
    LA_start:
    s_add_u32 s{sRe}, s{sRb}, {RING}
    v_add_u32 v{vKA}, s{sNext}, v{vL16}
    v_mad_u32_u24 v{vVA}, v{vVflag}, s{sNext}, v{vVbase}
    ds_read2_b64 {vr(Ke,4)}, v{vKA} offset0:0 offset1:128
    ds_read_b128 {vr(Km[0],4)}, v{vKA} offset:2048
    ds_read_b128 {vr(Km[1],4)}, v{vKA} offset:3072
    ds_read_b128 {vr(Vb[0][0],4)}, v{vVA}
    ds_read_b128 {vr(Vb[0][1],4)}, v{vVA} offset:640
    """)
    for r in range(32):
        a(f"v_mov_b32 v{OA[0]+r}, 0")
    for r in range(4):
        a(f"v_mov_b32 v{SB[1]+24+r}, 0")
        a(f"v_mov_b32 v{Vb[1][1]+r}, 0")
    a(f"s_mov_b32 s{sRem}, 0\ns_waitcnt lgkmcnt(3)")
    a(mfma32(X, Km[0], Qm[0], 0))
    a(mfma32(X + 16, Km[0], Qm[1], 0))
    a("s_nop 9")
    a(mfma2b(X, 0, vr(X, 32)))
    a("s_nop 15\ns_nop 3")
    a.c("softmax shift: row max over the first key tile; the epilogue checks that it was safe")
    rowmax(a, X, vT0, vT1)
    cross_half_max(a, vT0, vP)
    cross_half_max(a, vT1, vP)
    fill_nm(a, vT0, vT1)
    for r in range(32):
        a(f"v_add_f32 v{X+r}, v{X+r}, v{NM+r}")
    a(f"v_exp_f32 v{X}, v{X}")
    a("s_waitcnt lgkmcnt(0)")
    a(".p2align 6\nLA_loop:")
    for ii in range(4):
        tile_iter(a, ii)
    a(f"""
    s_cbranch_scc0 LA_loop
    s_cmp_gt_u32 s{sM}, s{sMend}
    s_cbranch_scc1 LA_fin
    s_cmp_eq_u32 s{sM}, s{sMend}
    s_cselect_b32 s{sRem}, 0, 1
    s_waitcnt vmcnt(0)
    s_barrier
    s_add_u32 s{sM}, s{sM}, 1
    s_cmp_eq_u32 s{sRole}, 0
    s_cbranch_scc1 LA_loop
    """)
    a.c("branch-B waves refill both rings: after barrier m, A block m+2 and B block m-SK+2")
    a(f"""
    s_cmp_gt_u32 s{sM}, 6
    s_cbranch_scc1 LA_ev_b
    s_mov_b32 s{sT0}, 0
    s_add_u32 s{sT1}, s{sM}, 1
    s_call_b64 s[{sLnk}:{sLnk+1}], LA_dma
    LA_ev_b:
    s_sub_u32 s{sT1}, s{sM}, {SK - 1}
    s_cmp_lt_u32 s{sT1}, 3
    s_cbranch_scc1 LA_loop
    s_cmp_gt_u32 s{sT1}, 6
    s_cbranch_scc1 LA_loop
    s_mov_b32 s{sT0}, 1
    s_call_b64 s[{sLnk}:{sLnk+1}], LA_dma
    s_branch LA_loop
    LA_fin:
    """)
    a(mfma32(OA[1], Vb[1][1], SB[1] + 24, vr(OA[1], 16)))
    stamp(a, 4)
    a(f"""
    s_lshl_b32 s{sT0}, s{sQB}, 2
    s_add_u32 s{sT0}, s{sT0}, s{sJ}
    s_mul_i32 s{sXo}, s{sT0}, {2 * TILE}
    s_add_u32 s{sXo}, s{sXo}, s{sImg}
    s_add_u32 s{sXo}, s{sXo}, {3 * IMG}
    s_mov_b32 s{sRem}, 0
    s_nop 5
    LA_epi:
    v_cmp_lt_u32 vcc, 31, v0
    s_mov_b32 s{sT0}, {f32bits(2.0**30)}
    s_mov_b32 s{sT2}, {f32bits(2.0**-30)}
    v_cndmask_b32 v{vT0}, v{OA[0]+12}, v{OA[0]+8}, vcc
    v_cndmask_b32 v{vT1}, v{OA[1]+12}, v{OA[1]+8}, vcc
    """)
    a.c("safety check of the shift: row sums inside [2^-30, 2^30] and finite accumulators")
    tm = SB[0]
    a(f"v_add_f32 v{tm}, |v{OA[0]}|, |v{OA[1]}|")
    a(f"v_add_f32 v{tm+5}, |v{OA[0]+1}|, |v{OA[1]+1}|")
    for r in range(2, 12):
        a(f"v_add_f32 v{tm}, v{tm}, |v{OA[0]+r}|")
        a(f"v_add_f32 v{tm+5}, v{tm+5}, |v{OA[1]+r}|")
    a(f"""
    v_add_f32 v{tm}, v{tm}, v{tm+5}
    v_max_f32 v{tm+1}, v{vT0}, v{vT1}
    v_min_f32 v{tm+2}, v{vT0}, v{vT1}
    v_add_f32 v{tm}, v{tm}, v{vT0}
    v_add_f32 v{tm}, v{tm}, v{vT1}
    v_cmp_gt_f32 s[4:5], s{sT0}, v{tm+1}
    v_cmp_lt_f32 s[6:7], s{sT2}, v{tm+2}
    v_mov_b32 v{tm+4}, 0x7f800000
    v_cmp_gt_f32 vcc, v{tm+4}, v{tm}
    s_and_b64 s[4:5], s[4:5], s[6:7]
    s_and_b64 s[4:5], s[4:5], vcc
    s_cmp_eq_u64 s[4:5], -1
    s_cselect_b32 s{sT0}, 1, s{sRem}
    s_cmp_eq_u32 s{sT0}, 0
    s_cbranch_scc1 LA_slow
    v_rcp_f32 v{vT0}, v{vT0}
    v_rcp_f32 v{vT1}, v{vT1}
    s_add_u32 s{sT0}, s{sXo}, s{sOm}
    s_add_u32 s{sT1}, s{sT0}, {TILE}
    s_add_u32 s{sT2}, s{sXo}, s{sExt}
    """)
    for u, rc in ((0, vT0), (1, vT1)):
        O = OA[u]
        for r in range(12):
            a(f"v_mul_f32 v{O+r}, v{O+r}, v{rc}")
        for j in range(6):
            a(f"v_cvt_pk_bf16_f32 v{O+j}, v{O+2*j}, v{O+2*j+1}")
        a(f"buffer_store_dwordx4 {vr(O,4)}, v{vL16}, {WSR()}, s{sT1 if u else sT0} offen sc1")
    a(f"""
    s_nop 0
    v_permlane32_swap_b32 v{OA[0]+4}, v{OA[1]+4}
    v_permlane32_swap_b32 v{OA[0]+5}, v{OA[1]+5}
    s_nop 0
    buffer_store_dwordx2 {vr(OA[0]+4,2)}, v{vE16}, {WSR()}, s{sT2} offen sc1
    """)


def slow_path(a):
    X = SB[0]
    m0, m1, t0, t1 = SB[1], SB[1] + 1, SB[1] + 2, SB[1] + 3

    def kloads(t):
        a(f"buffer_load_dwordx4 {vr(Km[0],4)}, v{vL16}, {WSR()}, s{sT1} offen sc1")
        if t == 0:
            a(f"buffer_load_dwordx2 {vr(Ke,2)}, v{vE16}, {WSR()}, s{sT2} offen sc1")
            a(f"s_add_u32 s{sT2}, s{sT2}, {2 * TILE}")
        a(f"s_add_u32 s{sT1}, s{sT1}, {TILE}")

    def kbase():
        a(f"""
        s_add_u32 s{sT0}, s{sImg}, {IMG}
        s_add_u32 s{sT1}, s{sT0}, s{sOm}
        s_add_u32 s{sT2}, s{sT0}, s{sExt}
        s_mov_b32 s{sRem}, 0
        """)
    a(f"LA_slow:\nv_mov_b32 v{m0}, 0xff800000\nv_mov_b32 v{m1}, 0xff800000")
    kbase()
    a("LA_slow_max:")
    for t in range(2):
        kloads(t)
        a("s_waitcnt vmcnt(0)")
        a(mfma32(X, Km[0], Qm[0], 0))
        a(mfma32(X + 16, Km[0], Qm[1], 0))
        a("s_nop 9")
        a(mfma2b(X, t, vr(X, 32)))
        a("s_nop 15\ns_nop 3")
        rowmax(a, X, t0, t1)
        a(f"v_max_f32 v{m0}, v{m0}, v{t0}\nv_max_f32 v{m1}, v{m1}, v{t1}")
    a(f"s_add_u32 s{sRem}, s{sRem}, 1\ns_cmp_lt_u32 s{sRem}, 32\ns_cbranch_scc1 LA_slow_max")
    cross_half_max(a, m0, t0)
    cross_half_max(a, m1, t0)
    fill_nm(a, m0, m1)
    for r in range(32):
        a(f"v_mov_b32 v{OA[0]+r}, 0")
    for r in range(8):
        a(f"v_mov_b32 v{Vb[0][0]+r}, 0x3f803f80")
    kbase()
    a(f"""
    s_mul_i32 s{sT3}, s{sHead}, 320
    s_add_u32 s{sT3}, s{sT3}, s{sT0}
    s_add_u32 s{sT3}, s{sT3}, {IMG}
    LA_slow_pv:
    """)
    for t in range(2):
        kloads(t)
        a(f"""
        s_add_u32 s{sT4}, s{sT3}, 20480
        s_mov_b32 exec_lo, 0xfffff
        s_mov_b32 exec_hi, 0xfffff
        buffer_load_dwordx4 {vr(Vb[0][0],4)}, v{vVG}, {WSR()}, s{sT3} offen sc1
        buffer_load_dwordx4 {vr(Vb[0][1],4)}, v{vVG}, {WSR()}, s{sT4} offen sc1
        s_mov_b64 exec, -1
        s_add_u32 s{sT3}, s{sT3}, {TILE}
        s_waitcnt vmcnt(2)
        """)
        a(mfma32(X, Km[0], Qm[0], vr(NM, 16)))
        a(mfma32(X + 16, Km[0], Qm[1], vr(NM + 16, 16)))
        a("s_nop 9")
        a(mfma2b(X, t, vr(X, 32)))
        a("s_nop 15\ns_nop 3")
        for r in range(32):
            a(f"v_exp_f32 v{X+r}, v{X+r}")
        a("s_nop 0")
        for j in range(16):
            a(f"v_cvt_pk_bf16_f32 v{X + 8*(j//4) + j%4}, v{X+2*j}, v{X+2*j+1}")
        a("s_waitcnt vmcnt(0)\ns_nop 1")
        a(mfma32(OA[0], Vb[0][0], X, vr(OA[0], 16)))
        a(mfma32(OA[0], Vb[0][1], X + 8, vr(OA[0], 16)))
        a(mfma32(OA[1], Vb[0][0], X + 16, vr(OA[1], 16)))
        a(mfma32(OA[1], Vb[0][1], X + 24, vr(OA[1], 16)))
    a(f"""
    s_add_u32 s{sRem}, s{sRem}, 1
    s_cmp_lt_u32 s{sRem}, 32
    s_cbranch_scc1 LA_slow_pv
    s_nop 15
    s_mov_b32 s{sRem}, 1
    s_branch LA_epi
    """)


pWF = [16, 56]
pACC = 96
pOF = 136
pWA, pOA = 2, 3


def c3_off(a, dst, t64, part):
    a(f"""
    s_lshl_b32 s{dst}, s{sBr}, 5
    s_add_u32 s{dst}, s{dst}, s{t64}
    s_lshl_b32 s{dst}, s{dst}, 1
    s_add_u32 s{dst}, s{dst}, s{part}
    s_lshl_b32 s{dst}, s{dst}, 7
    s_add_u32 s{dst}, s{dst}, {WS_C3}
    """)


def wo_dma(a, k0, k1, lds0):
    _lbl[0] += 1
    L = f"LP_wd{_lbl[0]}"
    a(f"""
    s_and_b32 s{sT0}, s{sHead}, 3
    s_lshl_b32 s{sT1}, s{sBr}, 2
    s_add_u32 s{sT0}, s{sT0}, s{sT1}
    s_mul_i32 s{sT0}, s{sT0}, {WO_SLAB}
    s_lshl_b32 s{sT1}, s{sJ}, 10
    s_add_u32 s{sT0}, s{sT0}, s{sT1}
    s_add_u32 s{sT0}, s{sT0}, {WS_WO + 10240 * k0}
    s_add_u32 s{sT1}, s{sT1}, {lds0}
    {L}:
    s_mov_b32 m0, s{sT1}
    s_add_u32 s{sT1}, s{sT1}, 4096
    buffer_load_dwordx4 v{vL16}, {WSR()}, s{sT0} offen sc1 lds
    s_add_u32 s{sT0}, s{sT0}, 4096
    s_cmp_lt_u32 s{sT1}, {lds0 + 10240 * (k1 - k0)}
    s_cbranch_scc1 {L}
    """)


KORD = [2, 3, 4, 5, 6, 7, 8, 9, 0, 1]


def o_fetch_sub(a):
    a(f"""
    LP_fetch:
    s_lshl_b32 s{sT1}, s{sQB}, 2
    s_lshr_b32 s{sT2}, s{sHead}, 2
    s_add_u32 s{sT1}, s{sT1}, s{sT2}
    """)
    c3_off(a, sT0, sT1, sPh)
    a(f"""
    v_and_b32 v{vP+3}, 15, v0
    s_lshl_b32 s{sT1}, s{sT1}, 1
    s_lshr_b32 s{sT2}, s{sJ}, 1
    s_add_u32 s{sT1}, s{sT1}, s{sT2}
    s_mul_i32 s{sT1}, s{sT1}, {TILE}
    s_add_u32 s{sT1}, s{sT1}, s{sImg}
    s_and_b32 s{sT2}, s{sJ}, 1
    s_lshl_b32 s{sT2}, s{sT2}, 8
    s_add_u32 s{sT1}, s{sT1}, s{sT2}
    s_mul_i32 s{sT2}, s{sPh}, 20480
    s_add_u32 s{sT1}, s{sT1}, s{sT2}
    s_add_u32 s{sT1}, s{sT1}, {3 * IMG}
    s_add_u32 s{sT2}, s{sT1}, 4096
    v_lshrrev_b32 v{pOA}, 4, v0
    v_lshlrev_b32 v{pOA}, 9, v{pOA}
    v_lshl_add_u32 v{pOA}, v{vP+3}, 4, v{pOA}
    """)
    poll_counter(a, vP + 4, f"s{sT0}", 16, 1)
    for s in KORD:
        a(f"buffer_load_dwordx4 {vr(pOF + 4*s, 4)}, v{pOA}, {WSR()}, s{sT2 if s >= 2 else sT1} offen offset:{(s & 1) * 2048} sc1")
        if s & 1 and 2 <= s < 9:
            a(f"s_add_u32 s{sT2}, s{sT2}, 4096")
    a(f"s_setpc_b64 s[{sLnk}:{sLnk+1}]")


def oproj_sub(a, label, p0, p1):
    def wreads(p):
        return [f"ds_read_b128 {vr(pWF[p & 1] + 4*c, 4)}, v{pWA} offset:{((p - p0) % 4) * 10240 + c * 1024}" for c in range(10)]
    a(f"{label}:\nv_add_u32 v{pWA}, s{sNext}, v{vL16}")
    for r in wreads(p0):
        a(r)
    for p in range(p0, p1):
        if p + 1 - p0 == 4:
            a(f"v_add_u32 v{pWA}, {4 * 10240}, v{pWA}")
        rd = wreads(p + 1) if p + 1 < p1 else []
        a(f"s_waitcnt vmcnt({9 - p})")
        for c in range(10):
            A = pACC + 4 * c
            a(f"s_waitcnt lgkmcnt({9 if rd else 9 - c})")
            a(f"v_mfma_f32_16x16x32_bf16 {vr(A,4)}, {vr(pOF + 4*KORD[p], 4)}, {vr(pWF[p & 1] + 4*c, 4)}, {vr(A,4)}")
            if rd:
                a(rd[c])
    a(f"s_setpc_b64 s[{sLnk}:{sLnk+1}]")


def out_store(a):
    a.c("lane holds columns 10*(l & 15) .. +9 of tokens 4*(l >> 4) + r")
    a(f"""
    s_lshl_b32 s{sT0}, s{sQB}, 2
    s_lshr_b32 s{sT1}, s{sHead}, 2
    s_add_u32 s{sT0}, s{sT0}, s{sT1}
    s_lshl_b32 s{sT0}, s{sT0}, 2
    s_add_u32 s{sT0}, s{sT0}, s{sJ}
    s_mul_i32 s{sT0}, s{sT0}, {16 * 2560}
    s_mul_i32 s{sT1}, s{sBr}, 1280
    s_add_u32 s{sT0}, s{sT0}, s{sT1}
    s_and_b32 s{sT1}, s{sHead}, 3
    s_mul_i32 s{sT1}, s{sT1}, 320
    s_add_u32 s{sT0}, s{sT0}, s{sT1}
    s_add_u32 s{sT1}, s{sT0}, {2 * 2560}
    v_lshrrev_b32 v4, 4, v0
    v_mul_u32_u24 v4, {4 * 2560}, v4
    v_and_b32 v5, 15, v0
    v_mul_u32_u24 v5, 20, v5
    v_add_u32 v4, v4, v5
    """)
    for r in range(4):
        P = 16 + 6 * r
        for j in range(5):
            a(f"v_cvt_pk_bf16_f32 v{P+j}, v{pACC + 8*j + r}, v{pACC + 8*j + 4 + r}")
        so = sT0 if r < 2 else sT1
        a(f"buffer_store_dwordx4 {vr(P,4)}, v4, s[{sOut}:{sOut+3}], s{so} offen offset:{(r & 1) * 2560}")
        a(f"buffer_store_dword v{P+4}, v4, s[{sOut}:{sOut+3}], s{so} offen offset:{(r & 1) * 2560 + 16}")


def repack_subs(a):
    pre = f"""
    s_lshr_b32 s{sT2}, s2, 3
    s_sub_u32 s{sT2}, s{sT2}, 28
    s_mul_i32 s{sT2}, s{sT2}, 5
    s_add_u32 s{sT2}, s{sT2}, s{sT3}
    s_mul_i32 s{sT4}, s{sT3}, 10496
    """
    a("LR_load:" + pre + f"""
    s_mul_i32 s{sT0}, s{sT2}, {32 * 1280}
    s_and_b32 s{sT1}, s2, 3
    s_mul_i32 s{sT1}, s{sT1}, 320
    s_add_u32 s{sT0}, s{sT0}, s{sT1}
    s_add_u32 s{sT1}, s{sT0}, {16 * 1280}
    s_mov_b32 m0, s{sT4}
    """)
    for i in range(5):
        a(f"""
        v_add_u32 v80, {64 * i}, v0
        v_mul_u32_u24 v81, 3277, v80
        v_lshrrev_b32 v81, 16, v81
        v_mul_u32_u24 v82, 20, v81
        v_sub_u32 v82, v80, v82
        v_mul_u32_u24 v81, 1280, v81
        v_lshl_add_u32 v81, v82, 4, v81
        buffer_load_dwordx4 v81, s[{sWt}:{sWt+3}], s{sT0} offen lds
        s_add_u32 m0, m0, 5120
        s_nop 0
        buffer_load_dwordx4 v81, s[{sWt}:{sWt+3}], s{sT1} offen lds
        s_sub_u32 m0, m0, 4096
        """)
    a(f"s_setpc_b64 s[{sLnk}:{sLnk+1}]")
    a("LR_store:" + pre + f"""
    v_lshrrev_b32 v80, 4, v0
    v_lshl_add_u32 v83, v80, 8, s{sT4}
    v_lshlrev_b32 v80, 3, v80
    v_lshrrev_b32 v81, 2, v0
    v_and_b32 v81, 3, v81
    v_add_u32 v80, v80, v81
    v_mul_u32_u24 v80, 320, v80
    v_and_b32 v81, 3, v0
    v_lshl_add_u32 v80, v81, 3, v80
    v_add_u32 v80, s{sT4}, v80
    s_and_b32 s{sT0}, s2, 7
    s_mul_i32 s{sT0}, s{sT0}, {WO_SLAB}
    s_mul_i32 s{sT2}, s{sT2}, 10240
    s_add_u32 s{sT0}, s{sT0}, s{sT2}
    s_add_u32 s{sT0}, s{sT0}, {WS_WO}
    v_and_b32 v84, 15, v0
    v_mov_b32 v86, 1040
    """)
    for ct in range(10):
        for u in range(2):
            a(f"ds_read_b64_tr_b16 {vr(88 + 4*ct + 2*u, 2)}, v80 offset:{u*4*320 + ct*32}")
        if ct == 4:
            a("s_waitcnt lgkmcnt(0)")
    a("s_waitcnt lgkmcnt(0)")
    for ct in range(10):
        a(f"""
        v_add_u32 v81, {16 * ct}, v84
        v_mul_u32_u24 v82, 205, v81
        v_lshrrev_b32 v82, 11, v82
        v_mul_u32_u24 v85, 10, v82
        v_sub_u32 v85, v81, v85
        v_lshl_add_u32 v82, v82, 4, v83
        v_mad_u32_u24 v82, v85, v86, v82
        ds_write_b128 v82, {vr(88 + 4*ct, 4)}
        """)
    a(f"v_lshlrev_b32 v81, 4, v0\nv_add_u32 v80, s{sT4}, v81\ns_waitcnt lgkmcnt(0)")
    for c in range(10):
        a(f"ds_read_b128 {vr(88 + 4*c, 4)}, v80 offset:{1040 * c}")
    for c in range(10):
        a(f"s_waitcnt lgkmcnt({9 - c})")
        a(f"buffer_store_dwordx4 {vr(88 + 4*c, 4)}, v81, {WSR()}, s{sT0} offen offset:{1024 * (c & 3)} sc1")
        if c & 3 == 3:
            a(f"s_add_u32 s{sT0}, s{sT0}, 4096")
    a(f"s_setpc_b64 s[{sLnk}:{sLnk+1}]")


def write_ones(a, role):
    a(f"""
    v_and_b32 v{vT0}, 7, v0
    v_mul_u32_u24 v{vT0}, 640, v{vT0}
    v_add_u32 v{vT0}, {ONES[role]}, v{vT0}
    v_mov_b32 v16, 0x3f803f80
    v_mov_b32 v17, 0x3f803f80
    v_mov_b32 v18, 0x3f803f80
    v_mov_b32 v19, 0x3f803f80
    ds_write_b128 v{vT0}, v[16:19]
    """)


def gen(a, label):
    kernel_head(a, label)
    a("s_cmp_ge_u32 s2, 256\ns_cbranch_scc1 LF_end")
    stamp(a, 0)
    a(f"""
    s_load_dwordx8 s[{sPtr}:{sPtr+7}], s[0:1], 0
    s_load_dwordx4 s[{sPtr+8}:{sPtr+11}], s[0:1], 32
    s_load_dwordx2 s[{sOut}:{sOut+1}], s[0:1], 48
    s_load_dwordx2 s[{sDbg}:{sDbg+1}], s[0:1], 56
    s_load_dwordx2 s[{sWS}:{sWS+1}], s[0:1], 64
    v_lshrrev_b32 v1, 6, v0
    v_and_b32 v0, 63, v0
    v_readfirstlane_b32 s{sW}, v1
    s_lshr_b32 s{sBr}, s2, 2
    s_and_b32 s{sBr}, s{sBr}, 1
    s_and_b32 s{sT0}, s2, 3
    s_lshl_b32 s{sT0}, s{sT0}, 2
    s_lshr_b32 s{sT1}, s2, 3
    s_lshr_b32 s{sT2}, s{sT1}, 3
    s_add_u32 s{sHead}, s{sT0}, s{sT2}
    s_and_b32 s{sQB}, s{sT1}, 7
    s_and_b32 s{sT2}, s{sT1}, 3
    s_add_u32 s{sTB}, s{sT0}, s{sT2}
    s_lshr_b32 s{sTI}, s{sT1}, 2
    s_and_b32 s{sJ}, s{sW}, 3
    s_lshr_b32 s{sRole}, s{sW}, 2
    s_lshl_b32 s{sT2}, s{sRole}, 4
    s_add_u32 s{sHead}, s{sHead}, s{sT2}
    s_mul_i32 s{sImg}, s{sBr}, {4 * IMG}
    s_mov_b32 s{sPh}, 0
    """)
    a.c("phase-a units of tile ti: n = 2 ti + e, unit = n + 5 (n >= 5) + 5 (n >= 10)")
    a(f"""
    s_lshl_b32 s{sU0}, s{sTI}, 1
    s_add_u32 s{sU1}, s{sU0}, 1
    s_cmp_ge_u32 s{sTI}, 5
    s_cselect_b32 s{sT0}, 5, 0
    s_cmp_ge_u32 s{sTI}, 3
    s_cselect_b32 s{sT1}, 5, 0
    s_add_u32 s{sU0}, s{sU0}, s{sT0}
    s_add_u32 s{sU0}, s{sU0}, s{sT1}
    s_cmp_ge_u32 s{sTI}, 2
    s_cselect_b32 s{sT1}, 5, 0
    s_add_u32 s{sU1}, s{sU1}, s{sT0}
    s_add_u32 s{sU1}, s{sU1}, s{sT1}
    s_mov_b32 s{sX+2}, {S * D * 2}
    s_mov_b32 s{sX+3}, 0x00020000
    s_mov_b32 s{sWt+2}, {D * 3 * D * 2}
    s_mov_b32 s{sWt+3}, 0x00020000
    s_mov_b32 s{sWS+2}, {WS_STAMP + 2048 * 128 if common.STAMP else WS_END}
    s_mov_b32 s{sWS+3}, 0x00020000
    s_mov_b32 s{sOut+2}, {S * 2 * D * 2}
    s_mov_b32 s{sOut+3}, 0x00020000
    s_mov_b32 s{sDbg+2}, 256
    s_mov_b32 s{sDbg+3}, 0x00020000
    """)
    a(f"""
    s_cmp_eq_u32 s{sBr}, 0
    s_waitcnt lgkmcnt(0)
    s_cselect_b32 s{sX}, s{sPtr}, s{sPtr+6}
    s_cselect_b32 s{sX+1}, s{sPtr+1}, s{sPtr+7}
    s_cselect_b32 s{sWt}, s{sPtr+2}, s{sPtr+8}
    s_cselect_b32 s{sWt+1}, s{sPtr+3}, s{sPtr+9}
    s_and_b32 s{sX+1}, s{sX+1}, 0xffff
    s_and_b32 s{sWt+1}, s{sWt+1}, 0xffff
    s_and_b32 s{sWS+1}, s{sWS+1}, 0xffff
    s_and_b32 s{sOut+1}, s{sOut+1}, 0xffff
    s_and_b32 s{sDbg+1}, s{sDbg+1}, 0xffff
    """)
    a(f"s_cmp_eq_u32 s{sRole}, 0\ns_cbranch_scc0 LG_start")
    gemm_loader(a)
    a("LG_start:")
    a.c("wave 4 clears counter lines id and id + 256")
    a(f"""
    s_cmp_eq_u32 s{sJ}, 0
    s_cbranch_scc0 LG_cleared
    s_lshl_b32 s{sT0}, s2, 7
    s_add_u32 s{sT0}, s{sT0}, {WS_C1}
    v_lshlrev_b32 v8, 15, v0
    v_mov_b32 v9, 0
    s_mov_b64 exec, 3
    buffer_store_dword v9, v8, {WSR()}, s{sT0} offen sc1
    s_mov_b64 exec, -1
    LG_cleared:
    """)
    if 'pfb' in OPT:
        a.c("one load per 128-B line of the phase-b columns of five weight rows brings them on chip early")
        a(f"""
        s_lshr_b32 s{sT0}, s2, 3
        s_lshl_b32 s{sT0}, s{sT0}, 2
        s_and_b32 s{sT1}, s2, 3
        s_add_u32 s{sT0}, s{sT0}, s{sT1}
        s_mul_i32 s{sT0}, s{sT0}, {5 * 3840}
        s_mul_i32 s{sT1}, s{sJ}, 19
        v_add_u32 v8, s{sT1}, v0
        v_mul_u32_u24 v9, 205, v8
        v_lshrrev_b32 v9, 10, v9
        v_mul_u32_u24 v9, 5, v9
        v_add3_u32 v9, v9, v8, 5
        v_lshlrev_b32 v9, 7, v9
        v_cmp_gt_u32 vcc, 75, v8
        s_and_b64 exec, vcc, 0x7ffff
        buffer_load_dword v{gT+1}, v9, s[{sWt}:{sWt+3}], s{sT0} offen
        s_mov_b64 exec, -1
        """)
    gemm_compute(a)
    a("LG_done:")
    lane_id(a, 0)
    stamp(a, 3)
    a(f"s_call_b64 s[{sLnk}:{sLnk+1}], LA_setup")
    a.c("the last wave whose stores have drained publishes the tile")
    a(f"""
    v_mov_b32 v{vP}, {LCNT}
    v_mov_b32 v{vP+1}, 1
    s_waitcnt vmcnt(0)
    s_mov_b64 exec, 1
    ds_add_rtn_u32 v{vP+2}, v{vP}, v{vP+1}
    s_mov_b64 exec, -1
    s_waitcnt lgkmcnt(0)
    v_readfirstlane_b32 s{sT0}, v{vP+2}
    s_cmp_eq_u32 s{sT0}, 3
    s_cbranch_scc0 LG_nopub
    s_call_b64 s[{sLnk}:{sLnk+1}], LG_publish
    LG_nopub:
    """)
    stamp(a, 27)
    a("s_branch LB_lead")
    a.c("workgroups without a second tile repack wo: unit j per wave, unit 4 by wave 4")
    a("LG_idle:\ns_waitcnt lgkmcnt(0)")
    lane_id(a, 0)
    a(f"""
    s_cmp_eq_u32 s{sBr}, 0
    s_cselect_b32 s{sWt}, s{sPtr+4}, s{sPtr+10}
    s_cselect_b32 s{sWt+1}, s{sPtr+5}, s{sPtr+11}
    s_and_b32 s{sWt+1}, s{sWt+1}, 0xffff
    s_mov_b32 s{sWt+2}, {D * D * 2}
    s_call_b64 s[{sLnk}:{sLnk+1}], LA_setup
    s_barrier
    s_waitcnt vmcnt(0)
    """)
    for _ in range(12, LAST_BAR + 1):
        a("s_barrier")
    a(f"""
    s_mov_b32 s{sT3}, s{sJ}
    s_call_b64 s[{sLnk}:{sLnk+1}], LR_load
    s_cmp_eq_u32 s{sJ}, 0
    s_cbranch_scc0 LR_l1
    s_mov_b32 s{sT3}, 4
    s_call_b64 s[{sLnk}:{sLnk+1}], LR_load
    LR_l1:
    s_barrier
    s_waitcnt vmcnt(0)
    s_mov_b32 s{sT3}, s{sJ}
    s_call_b64 s[{sLnk}:{sLnk+1}], LR_store
    """)
    stamp(a, 3)
    a("LB_lead:")
    call_dma(a, 0, 2)
    a("s_barrier")
    write_ones(a, 1)
    a(f"""
    s_lshl_b32 s{sT0}, s{sJ}, 3
    s_add_u32 s{sT0}, s{sT0}, s{sTI}
    s_cmp_eq_u32 s{sT0}, 7
    s_cbranch_scc0 LR_l2
    s_mov_b32 s{sT3}, 4
    s_call_b64 s[{sLnk}:{sLnk+1}], LR_store
    LR_l2:
    s_waitcnt vmcnt(0)
    s_barrier
    """)
    poll_f1(a)
    stamp(a, 26)
    load_q(a)
    call_dma(a, 1, 0)
    call_dma(a, 0, 3)
    scale_q(a, 10)
    a("s_waitcnt vmcnt(0) lgkmcnt(0)\ns_barrier")
    call_dma(a, 1, 1)
    call_dma(a, 0, 4)
    call_dma(a, 1, 2)
    a(f"s_cmp_eq_u32 s{sTI}, 7\ns_cbranch_scc0 LR_l3\ns_and_b32 s{sT0}, s2, 7\ns_lshl_b32 s{sT0}, s{sT0}, 7\ns_add_u32 s{sT0}, s{sT0}, {WS_C4}")
    count_in(a, sT0, vP, vP + 1)
    a("LR_l3:")
    a(f"s_mov_b32 s{sM}, {SK}\ns_mov_b32 s{sMend}, {SK + 7}\ns_mov_b32 s{sRb}, {RB}\ns_mov_b32 s{sNext}, {RB}\ns_setprio 0")
    stamp(a, 5)
    a("s_branch LA_start")
    a("LA_lead:")
    poll_f1(a)
    stamp(a, 1)
    load_q(a)
    for blk in range(2):
        call_dma(a, 0, blk)
    scale_q(a, 10)
    a(f"""
    s_waitcnt vmcnt(5) lgkmcnt(0)
    s_barrier
    s_mov_b32 s{sM}, 0
    s_mov_b32 s{sMend}, 7
    s_mov_b32 s{sRb}, {RA}
    s_mov_b32 s{sNext}, {RA + BLK}
    """)
    stamp(a, 3)
    attention(a)
    a(f"s_lshl_b32 s{sT2}, s{sQB}, 2\ns_add_u32 s{sT2}, s{sT2}, s{sJ}")
    c3_off(a, sT3, sT2, sRole)
    a("s_waitcnt vmcnt(0)")
    count_in(a, sT3, vP, vP + 1)
    stamp(a, 6)
    a(f"s_cmp_eq_u32 s{sRole}, 1\ns_cbranch_scc1 LP_end")
    a.c("role-A waves: first half of K while role B finishes, second half once it is published")
    a(f"""
    s_and_b32 s{sT0}, s{sHead}, 3
    s_lshl_b32 s{sT1}, s{sBr}, 2
    s_add_u32 s{sT0}, s{sT0}, s{sT1}
    s_lshl_b32 s{sT0}, s{sT0}, 7
    s_add_u32 s{sT0}, s{sT0}, {WS_C4}
    """)
    poll_counter(a, vP + 4, f"s{sT0}", 16, 1)
    for r in range(40):
        a(f"v_mov_b32 v{pACC + r}, 0")
    HI = WOA + 2 * 10240
    call = lambda l: a(f"s_call_b64 s[{sLnk}:{sLnk+1}], {l}")
    assert SK == 3
    stamp(a, 20)
    a("s_barrier")
    stamp(a, 21)
    call_dma(a, 1, 7)
    wo_dma(a, 2, 10, HI)
    stamp(a, 22)
    a(f"s_mov_b32 s{sPh}, 0")
    call("LP_fetch")
    a("s_waitcnt vmcnt(0)")
    stamp(a, 25)
    a("s_barrier")
    stamp(a, 5)
    wo_dma(a, 0, 2, WOA)
    a(f"s_mov_b32 s{sNext}, {HI}")
    call("LP_hi")
    a("s_waitcnt vmcnt(0)")
    stamp(a, 26)
    a(f"s_barrier\ns_mov_b32 s{sNext}, {WOA}")
    stamp(a, 28)
    call("LP_lo")
    wo_dma(a, 12, 20, HI)
    wo_dma(a, 10, 12, RB)
    stamp(a, 29)
    a(f"s_mov_b32 s{sPh}, 1")
    call("LP_fetch")
    a("s_barrier")
    stamp(a, 2)
    a(f"s_mov_b32 s{sNext}, {HI}")
    call("LP_hi")
    a(f"s_mov_b32 s{sNext}, {RB}")
    call("LP_lo")
    out_store(a)
    a("LP_end:")
    if common.STAMP:
        a("s_waitcnt vmcnt(0)")
        stamp(a, 7)
        stamp_flush(a, 4)
    a("LF_end:\ns_endpgm")
    dma_sub(a)
    publish_sub(a)
    attn_setup(a)
    o_fetch_sub(a)
    oproj_sub(a, "LP_hi", 0, 8)
    oproj_sub(a, "LP_lo", 8, 10)
    repack_subs(a)
    slow_path(a)


def build():
    a = Asm()
    label = NAME + "_kernel"
    a('.amdgcn_target "amdgcn-amd-amdhsa--gfx950"\n.text')
    gen(a, label)
    return (HEADER + f"; @launch grid=(256,1,1) block=(512,1,1) lds={LDS_BYTES}\n" + a.text()
            + '.section .rodata,"a"\n.p2align 6\n' + kernel_desc(label, NVGPR, NVGPR, 100))


if __name__ == "__main__":
    import sys
    for x in sys.argv[2:]:
        if '=' in x:
            k, v = x.split('='); globals()[k] = int(v)
        else:
            OPT.add(x)
    if 'dbgstamp' in OPT:
        common.STAMP = True
    out = sys.argv[1] if len(sys.argv) > 1 else f"cdna_kernels/{NAME}.s"
    open(out, "w").write(build())
```

```python
from common import Asm, vr, sr, f32bits, kernel_head, kernel_desc, QSCALE, S, D, HEADER, NAME
import common

OPT = set()
SK = 3

TILE = 40960
IMG = 64 * TILE
WS_WO = 8 * IMG
WO_SLAB = 204800
WO_HALF = WO_SLAB // 2
WS_C1 = WS_WO + 8 * WO_SLAB
WS_C3 = WS_C1 + 256 * 128
WS_C4 = WS_C3 + 128 * 128
WS_END = WS_C1 + 512 * 128
WS_STAMP = WS_END + 65536

LDS_BYTES = 163840
GSL = 16384
CH = 11264
BLK = 2 * CH
RING = 3 * BLK
ONES = [90112, 0]
RB = 5120
RA = LDS_BYTES - RING
RPK = RB + RING
LCNT = 95232

sX, sWt, sWS, sOut, sDbg = 8, 12, 16, 20, 24
sPtr = 28
sW, sJ, sRole = 40, 41, 42
sHead, sQB, sTI, sTB = 43, 44, 45, 46
sT0, sT1, sT2, sT3, sT4 = 47, 48, 49, 50, 51
sIt, sSlot, sKB, sInc = 52, 53, 54, 55
sXo, sWo = 56, 57
sNext, sRb, sRe, sRem = 52, 53, 54, 55
sM, sMend = 56, 57
sOm, sExt = 58, 59
sSpin = 60
sBr = 61
sU0, sU1, sImg, sPh = 96, 97, 98, 99
sExp = 3
sRp = 96
sE = 56
sLnk = 62
STAMP_S = 64

SPIN = 1 << 15
SLEEP = 6


NST = 32


def stamp(a, i):
    if common.STAMP:
        a(f"s_memrealtime s[4:5]\ns_waitcnt lgkmcnt(0)\ns_mov_b32 s{STAMP_S+i}, s4")


def stamp_idx(a, base, sreg):
    if common.STAMP:
        a(f"s_memrealtime s[4:5]\ns_mov_b32 m0, s{sreg}\ns_waitcnt lgkmcnt(0)\ns_movreld_b32 s{STAMP_S+base}, s4")


def stamp_flush(a, vt):
    if not common.STAMP:
        return
    a(f"""
    s_mov_b64 exec, 1
    s_lshl_b32 s{sT0}, s2, 3
    s_add_u32 s{sT0}, s{sT0}, s{sW}
    s_lshl_b32 s{sT0}, s{sT0}, 7
    s_add_u32 s{sT0}, s{sT0}, {WS_STAMP}
    v_mov_b32 v{vt+2}, 0
    """)
    for i in range(NST):
        a(f"v_mov_b32 v{vt}, s{STAMP_S+i}")
        a(f"buffer_store_dword v{vt}, v{vt+2}, s[{sWS}:{sWS+3}], s{sT0} offen offset:{4*i}")
    if 'dbgstamp' in OPT:
        a(f"s_cmp_eq_u32 s2, 100\ns_cbranch_scc0 LF_nodbg\ns_cmp_eq_u32 s{sJ}, 0\ns_cbranch_scc0 LF_nodbg\ns_lshl_b32 s{sT0}, s{sRole}, 5")
        for i in range(8):
            a(f"s_sub_u32 s{sT1}, s{STAMP_S+i}, s{STAMP_S}")
            a(f"v_mov_b32 v{vt}, s{sT1}")
            a(f"buffer_store_dword v{vt}, v{vt+2}, s[{sDbg}:{sDbg+3}], s{sT0} offen offset:{4*i}")
        a("LF_nodbg:")


def WSR():
    return f"s[{sWS}:{sWS+3}]"


_lbl = [0]


def poll(a, loads, expect, vtmp):
    _lbl[0] += 1
    L = f"LF_poll{_lbl[0]}"
    a(f"s_mov_b32 s{sSpin}, {SPIN}\n{L}:")
    for i, (vo, srd, so) in enumerate(loads):
        a(f"buffer_load_dword v{vtmp+i}, v{vo}, {srd}, {so} offen sc1")
    a("s_waitcnt vmcnt(0)")
    for i in range(1, len(loads)):
        a(f"v_min_u32 v{vtmp}, v{vtmp}, v{vtmp+i}")
    a(f"""
    v_cmp_gt_u32 vcc, {expect}, v{vtmp}
    s_cbranch_vccz {L}_ok
    s_sleep {SLEEP}
    s_sub_u32 s{sSpin}, s{sSpin}, 1
    s_cbranch_scc0 {L}
    {L}_ok:
    """)


def poll_counter(a, vo, so, expect, mask):
    _lbl[0] += 1
    L = f"LF_pc{_lbl[0]}"
    rd = (f"v_mov_b32 v{vPS}, 0\nbuffer_atomic_add v{vPS}, v{vo}, {WSR()}, {so} offen sc0 sc1" if 'ldpoll' not in OPT else
          f"buffer_load_dword v{vPS}, v{vo}, {WSR()}, {so} offen sc1")
    a(f"""
    s_mov_b32 s{sSpin}, {SPIN}
    s_mov_b64 exec, {mask}
    {L}:
    {rd}
    s_waitcnt vmcnt(0)
    v_cmp_gt_u32 vcc, {expect}, v{vPS}
    s_cbranch_vccz {L}_ok
    s_sleep {SLEEP}
    s_sub_u32 s{sSpin}, s{sSpin}, 1
    s_cbranch_scc0 {L}
    {L}_ok:
    s_mov_b64 exec, -1
    """)


def count_in(a, soff, vz, vd):
    a(f"""
    v_mov_b32 v{vz}, 0
    v_mov_b32 v{vd}, 1
    s_mov_b64 exec, 1
    buffer_atomic_add v{vd}, v{vz}, {WSR()}, s{soff} offen sc1
    s_mov_b64 exec, -1
    """)


gXF = 0
gWF = 160
gWA = [184, 185, 186, 187]
gXA = 188
gT = 189
gACC = 192


PUB_BAR = 12
LAST_BAR = 15
PAIR_BAR = 19
NFIRST = 4
ROT = 1


def stage_barriers():
    return list(range(0, LAST_BAR + 1))


def gemm_schedule():
    items = [x for n in range(10) for x in (("X", n), ("W", n))] + [("W", n) for n in range(10, 20)]
    rel = lambda it: it[1] + (1 if it[0] == "X" else 2)
    free = list(range(10))
    slot, when, freed = {}, {}, set()
    k = 0
    for bar in range(-1, LAST_BAR):
        for it in items:
            if it in slot and it not in freed and rel(it) <= min(bar, 11):
                free.append(slot[it])
                freed.add(it)
        n = 0
        while k < len(items) and free and n < (NFIRST if bar == -1 else MAXISS) and not (items[k][1] >= HOLD_W and bar < HOLD_BAR):
            slot[items[k]] = free.pop(0)
            when[items[k]] = bar
            k += 1
            n += 1
    assert k == len(items)
    order = [slot[("W", n)] for n in (15, 16, 17, 18, 19, 13, 14, 10, 11, 12)]
    assert sorted(order) == list(range(10)), order
    slot = {it: order.index(v) for it, v in slot.items()}
    return items, slot, when


MAXISS = 3
HOLD_W, HOLD_BAR = 13, 11


def lane_id(a, v):
    a(f"v_mbcnt_lo_u32_b32 v{v}, -1, 0\nv_mbcnt_hi_u32_b32 v{v}, -1, v{v}")


def gemm_body(a, vtype):
    L = "LG_v" if vtype else "LG_q"
    items, slot, when = gemm_schedule()

    def kc(q):
        return ((q & 3, (q >> 2) & 3) if q >= 144 else ((q >> 2) & 3, q & 3))

    def wreads(q):
        ks, c = kc(q)
        d = gWF + 4 * (q % 6)
        return [f"ds_read_b64_tr_b16 {vr(d + 2*u, 2)}, v{gWA[c]} offset:{ks*4096 + u*1024}" for u in range(2)]

    def xreads(n):
        for ks in range(4):
            d = gXF + 4 * (4 * n + ks)
            a(f"v_xor_b32 v{d}, {32 * ks}, v{gXA}")
        for ks in range(4):
            d = gXF + 4 * (4 * n + ks)
            a(f"ds_read_b128 {vr(d,4)}, v{d}")

    def advance(n):
        da = (slot[("W", n)] - slot[("W", n - 1)]) * GSL
        a(f"s_cmp_eq_u32 s{sPh}, 1\ns_mov_b32 s{sInc}, {da & 0xffffffff}")
        if n < 10:
            db = (slot[("W", n + 10)] - slot[("W", n + 9)]) * GSL
            a(f"s_cmov_b32 s{sInc}, {db & 0xffffffff}")
        for r in gWA:
            a(f"v_add_u32 v{r}, s{sInc}, v{r}")

    def pack(c):
        out = []
        A = gACC + 16 * c
        out += [f"v_cvt_pk_bf16_f32 v{gACC + 8*c + j}, v{A+2*j}, v{A+2*j+1}" for j in range(8)]
        return out

    def stores(c):
        out = []
        for i in range(2):
            d = vr(gACC + 8*c + 4*i, 4)
            if vtype:
                out.append(f"buffer_store_dwordx4 {d}, v{gT}, {WSR()}, s{sE + i} offen offset:{c * 512} sc1")
            else:
                out.append(f"buffer_store_dwordx4 {d}, v{gT}, {WSR()}, s{sE + (c >> 1)} offen offset:{(c & 1) * 2048 + i * 1024} sc1")
        return out

    a("s_barrier")
    a.c("this workgroup has cleared its share of the counters: count it in")
    a(f"""
    s_cmp_eq_u32 s{sW}, 4
    s_cbranch_scc0 {L}_nocount
    s_and_b32 s{sT0}, s2, 31
    s_lshl_b32 s{sT0}, s{sT0}, 2
    s_add_u32 s{sT0}, s{sT0}, 128
    v_mov_b32 v{gT+1}, 0
    v_mov_b32 v{gT+2}, 1
    s_mov_b64 exec, 1
    buffer_atomic_add v{gT+2}, v{gT+1}, s[{sDbg}:{sDbg+3}], s{sT0} offen sc1
    s_mov_b64 exec, -1
    {L}_nocount:
    """)
    stamp(a, 1)
    xreads(0)
    for q in range(6):
        for r in wreads(q):
            a(r)
    a(f"{L}_body:")
    for q in range(160):
        n = q >> 4
        ks, c = kc(q)
        if q <= 154:
            a(f"s_waitcnt lgkmcnt({2 * (min(q + 5, 159) - q)})")
        elif q == 155:
            a("s_waitcnt lgkmcnt(0)")
        x, w = vr(gXF + 4 * (4 * n + ks), 4), vr(gWF + 4 * (q % 6), 4)
        A, B = (x, w) if vtype else (w, x)
        d = vr(gACC + 16 * c, 16)
        a(f"v_mfma_f32_32x32x16_bf16 {d}, {A}, {B}, {'0' if q < 4 else d}")
        if (q & 15) == 10:
            advance(n + 1)
            both = n + 11 in stage_barriers() or n + 11 == PAIR_BAR
            if n + 11 == PUB_BAR:
                a(f"s_cbranch_scc0 {L}_nd\ns_waitcnt vmcnt(0)\n{L}_nd:")
            if both:
                a("s_barrier")
            a(f"s_cbranch_scc1 {L}_nx{n}")
            if not both:
                a("s_barrier")
            if n + 1 < 10:
                dx = (slot[("X", n + 1)] - slot[("X", n)]) * GSL
                a(f"v_add_u32 v{gXA}, {dx & 0xffffffff}, v{gXA}")
                xreads(n + 1)
            a(f"{L}_nx{n}:")
        if q + 6 < 160:
            for r in wreads(q + 6):
                a(r)
        if q == 144:
            a("s_setprio 2")
        if q in (150, 154):
            for x in pack((q - 150) // 4):
                a(x)
        if q in (151, 155):
            for x in stores((q - 151) // 4):
                a(x)
        if q == 156:
            if common.STAMP: a(f"s_cbranch_scc1 {L}_st1\ns_memrealtime s[{STAMP_S+28}:{STAMP_S+29}]\n{L}_st1:")
            a("s_nop 7")
        if q == 158:
            for x in pack(2):
                a(x)
    for x in stores(2):
        a(x)
    a(f"s_cbranch_scc1 {L}_nopre")
    for q in range(6):
        for r in wreads(q):
            a(r)
    if common.STAMP: a(f"s_memrealtime s[{STAMP_S+30}:{STAMP_S+31}]")
    a(f"{L}_nopre:\ns_nop 9")
    for x in pack(3) + stores(3):
        a(x)
    a(f"s_cbranch_scc1 LG_done")
    stamp(a, 2)
    next_units(a)
    step = 6 * 1024 if vtype else 5 * 4096
    a(f"s_add_u32 s{sE}, s{sE}, {step}\ns_add_u32 s{sE+1}, s{sE+1}, {step}")
    if vtype:
        a(f"s_cmp_eq_u32 s{sTI}, 7\ns_cbranch_scc1 LG_idle")
    a(f"s_branch {L}_body")


def next_units(a):
    a(f"""
    s_mov_b32 s{sPh}, 1
    s_cmp_ge_u32 s{sTI}, 5
    s_cselect_b32 s{sT0}, 6, 5
    s_add_u32 s{sU0}, s{sU0}, s{sT0}
    s_add_u32 s{sU1}, s{sU1}, s{sT0}
    """)


def publish_sub(a):
    t = vPS
    a(f"""
    LG_publish:
    v_cmp_lt_u32 vcc, 31, v0
    v_mov_b32 v{t+3}, s{sU0}
    v_mov_b32 v{t+4}, s{sU1}
    v_cndmask_b32 v{t+3}, v{t+3}, v{t+4}, vcc
    v_mul_u32_u24 v{t+4}, 205, v{t+3}
    v_lshrrev_b32 v{t+4}, 11, v{t+4}
    v_mul_u32_u24 v{t+5}, 10, v{t+4}
    v_sub_u32 v{t+3}, v{t+3}, v{t+5}
    v_lshlrev_b32 v{t+3}, 3, v{t+3}
    v_and_b32 v{t+5}, 31, v0
    v_lshl_add_u32 v{t+4}, v{t+5}, 2, v{t+4}
    v_lshlrev_b32 v{t+4}, 7, v{t+4}
    v_mul_u32_u24 v{t+5}, 5, v{t+5}
    v_lshrrev_b32 v{t+5}, 1, v{t+5}
    v_add_u32 v{t+5}, 2, v{t+5}
    v_sub_u32 v{t+5}, v{t+5}, v{t+3}
    v_cmp_gt_u32 vcc, 10, v{t+5}
    v_mov_b32 v{t+1}, 1
    s_lshl_b32 s{sT1}, s{sBr}, 14
    s_add_u32 s{sT1}, s{sT1}, {WS_C1}
    s_mov_b64 exec, vcc
    buffer_atomic_add v{t+1}, v{t+4}, {WSR()}, s{sT1} offen sc1
    s_mov_b64 exec, -1
    s_setpc_b64 s[{sLnk}:{sLnk+1}]
    """)


def gemm_compute(a):
    items, slot, when = gemm_schedule()
    t0, t1, t2 = 8, 9, 10
    a(f"""
    v_and_b32 v{t0}, 31, v0
    v_lshrrev_b32 v{t1}, 5, v0
    v_lshrrev_b32 v{t2}, 1, v{t0}
    v_and_b32 v{t2}, 7, v{t2}
    v_xor_b32 v{t2}, v{t2}, v{t1}
    v_lshlrev_b32 v{t2}, 4, v{t2}
    v_lshlrev_b32 v{t0}, 7, v{t0}
    v_add_u32 v{t2}, v{t2}, v{t0}
    s_lshl_b32 s{sT0}, s{sJ}, 12
    s_add_u32 s{sT0}, s{sT0}, {slot[("X", 0)] * GSL}
    v_add_u32 v{gXA}, s{sT0}, v{t2}
    v_lshrrev_b32 v{t0}, 2, v0
    v_and_b32 v{t0}, 3, v{t0}
    v_lshlrev_b32 v{t2}, 3, v{t1}
    v_add_u32 v{t2}, v{t2}, v{t0}
    v_lshlrev_b32 v{t2}, 8, v{t2}
    v_lshlrev_b32 v{t0}, 6, v{t0}
    v_add_u32 v{t2}, v{t2}, v{t0}
    v_and_b32 v{t0}, 16, v0
    v_lshlrev_b32 v{t0}, 1, v{t0}
    v_add_u32 v{t2}, v{t2}, v{t0}
    v_add_u32 v{t2}, {slot[("W", 0)] * GSL}, v{t2}
    v_and_b32 v{t0}, 1, v0
    v_and_b32 v{t1}, 2, v0
    s_cmp_ge_u32 s{sTI}, 5
    s_cselect_b32 s{sT0}, 3, 4
    s_cselect_b32 s{sT1}, 3, 2
    v_lshlrev_b32 v{t0}, s{sT0}, v{t0}
    v_lshlrev_b32 v{t1}, s{sT1}, v{t1}
    v_add3_u32 v{gWA[0]}, v{t2}, v{t0}, v{t1}
    v_xor_b32 v{gWA[1]}, 64, v{gWA[0]}
    v_xor_b32 v{gWA[2]}, 128, v{gWA[0]}
    v_xor_b32 v{gWA[3]}, 192, v{gWA[0]}
    s_lshl_b32 s{sT0}, s{sTB}, 2
    s_add_u32 s{sT0}, s{sT0}, s{sJ}
    s_mul_i32 s{sT0}, s{sT0}, {TILE}
    s_add_u32 s{sT0}, s{sT0}, s{sImg}
    v_lshlrev_b32 v{gT}, 4, v0
    s_waitcnt vmcnt(0)
    s_cmp_ge_u32 s{sTI}, 5
    s_cbranch_scc1 LG_vtype
    s_lshl_b32 s{sE}, s{sU0}, 12
    s_lshl_b32 s{sE+1}, s{sU1}, 12
    s_cmp_ge_u32 s{sU0}, 10
    s_cselect_b32 s{sT3}, {IMG - 40960}, 0
    s_add_u32 s{sE}, s{sE}, s{sT3}
    s_cmp_ge_u32 s{sU1}, 10
    s_cselect_b32 s{sT3}, {IMG - 40960}, 0
    s_add_u32 s{sE+1}, s{sE+1}, s{sT3}
    s_add_u32 s{sE}, s{sE}, s{sT0}
    s_add_u32 s{sE+1}, s{sE+1}, s{sT0}
    """)
    gemm_body(a, False)
    a(f"""
    LG_vtype:
    s_lshl_b32 s{sE}, s{sU0}, 10
    s_add_u32 s{sE}, s{sE}, {2 * IMG - 20480}
    s_add_u32 s{sE}, s{sE}, s{sT0}
    s_add_u32 s{sE+1}, s{sE}, 20480
    v_lshrrev_b32 v8, 5, v0
    v_mul_u32_u24 v8, 10240 - 512, v8
    v_add_u32 v{gT}, v{gT}, v8
    """)
    gemm_body(a, True)


def gemm_loader(a):
    items, slot, when = gemm_schedule()
    vE, vO, vWs, vCnt = 230, 231, 232, 233
    sKX, sKW = sKB, sSlot
    a(f"""
    v_lshrrev_b32 v5, 3, v0
    v_mul_u32_u24 v5, 1280, v5
    v_and_b32 v6, 7, v0
    v_lshrrev_b32 v7, 4, v0
    v_xor_b32 v6, v6, v7
    v_lshlrev_b32 v6, 4, v6
    v_add_u32 v{vE}, v5, v6
    v_xor_b32 v6, 64, v6
    v_add_u32 v{vO}, v5, v6
    v_add_u32 v{vO}, {8 * 1280 - 1024}, v{vO}
    v_lshrrev_b32 v5, 2, v0
    v_and_b32 v5, 3, v5
    v_xor_b32 v5, v5, v7
    v_lshrrev_b32 v6, 1, v5
    s_sub_u32 s{sT0}, s{sU1}, s{sU0}
    s_lshl_b32 s{sT0}, s{sT0}, 7
    v_mul_u32_u24 v6, s{sT0}, v6
    v_and_b32 v5, 1, v5
    v_lshl_add_u32 v5, v5, 6, v6
    v_and_b32 v6, 3, v0
    v_lshl_add_u32 v5, v6, 4, v5
    v_mul_u32_u24 v6, 3840, v7
    v_add_u32 v{vWs}, v5, v6
    s_lshl_b32 s{sXo}, s{sTB}, 2
    s_add_u32 s{sXo}, s{sXo}, s{sJ}
    s_mul_i32 s{sXo}, s{sXo}, {32 * 1280}
    s_mul_i32 s{sWo}, s{sJ}, {16 * 3840}
    s_lshl_b32 s{sT0}, s{sU0}, 7
    s_add_u32 s{sWo}, s{sWo}, s{sT0}
    s_lshl_b32 s{sInc}, s{sJ}, 12
    """)
    a.c("workgroups that share a tile start at different k-blocks, so that they fill the L2 together")
    if ROT:
        a(f"""
        s_and_b32 s{sKX}, s{sTB}, 3
        s_mul_i32 s{sKX}, s{sKX}, 5
        s_add_u32 s{sKX}, s{sKX}, 1
        s_lshr_b32 s{sKX}, s{sKX}, 1
        s_add_u32 s{sKX}, s{sKX}, s{sTI}
        s_cmp_ge_u32 s{sKX}, 10
        s_cselect_b32 s{sT0}, 10, 0
        s_sub_u32 s{sKX}, s{sKX}, s{sT0}
        """)
    else:
        a(f"s_and_b32 s{sKX}, s{sTI}, 1")
    a(f"s_mov_b32 s{sKW}, s{sKX}\ns_mov_b32 s{sIt}, 0")
    a(f"""
    s_mov_b32 s{sX+2}, {S * D * 2}
    s_mov_b32 s{sX+3}, 0x00020000
    s_mov_b32 s{sWt+2}, {D * 3 * D * 2}
    s_mov_b32 s{sWt+3}, 0x00020000
    s_waitcnt lgkmcnt(0)
    s_and_b32 s{sX+1}, s{sX+1}, 0xffff
    s_mov_b32 s{sWt}, s{sPtr}
    s_and_b32 s{sWt+1}, s{sPtr+1}, 0xffff
    s_branch LL_go
    """)
    a(f"""
    LL_X:
    s_lshl_b32 s{sT0}, s{sKX}, 7
    s_add_u32 s{sT0}, s{sT0}, s{sXo}
    s_add_u32 s{sKX}, s{sKX}, 1
    buffer_load_dwordx4 v{vE}, s[{sX}:{sX+3}], s{sT0} offen lds
    buffer_load_dwordx4 v{vO}, s[{sX}:{sX+3}], s{sT0} offen offset:1024 lds
    s_add_u32 m0, m0, 2048
    s_add_u32 s{sT0}, s{sT0}, {16 * 1280}
    buffer_load_dwordx4 v{vE}, s[{sX}:{sX+3}], s{sT0} offen lds
    buffer_load_dwordx4 v{vO}, s[{sX}:{sX+3}], s{sT0} offen offset:1024 lds
    s_cmp_eq_u32 s{sKX}, 10
    s_cselect_b32 s{sKX}, 0, s{sKX}
    s_setpc_b64 s[{sLnk}:{sLnk+1}]
    LL_Wskip:
    s_waitcnt vmcnt(0)
    s_setpc_b64 s[{sLnk}:{sLnk+1}]
    LL_W:
    s_cmp_eq_u32 s{sIt}, 1
    s_cbranch_scc1 LL_Wskip
    s_mul_i32 s{sT1}, s{sKW}, {64 * 3840}
    s_add_u32 s{sT1}, s{sT1}, s{sWo}
    s_add_u32 s{sKW}, s{sKW}, 1
    """)
    for p in range(4):
        a(f"buffer_load_dwordx4 v{vWs}, s[{sWt}:{sWt+3}], s{sT1} offen lds")
        if p < 3:
            a(f"s_add_u32 m0, m0, 1024")
            a(f"s_add_u32 s{sT1}, s{sT1}, {4 * 3840}")
    a(f"""
    s_cmp_eq_u32 s{sKW}, 10
    s_cselect_b32 s{sKW}, 0, s{sKW}
    s_setpc_b64 s[{sLnk}:{sLnk+1}]
    """)
    a("LL_go:")
    q = []

    def issue(it):
        if it == ("W", 10):
            a(f"s_cmp_ge_u32 s{sTI}, 5\ns_cselect_b32 s{sT0}, {6 * 128}, s{sC640}\ns_add_u32 s{sWo}, s{sWo}, s{sT0}")
            a(f"s_cmp_eq_u32 s{sTI}, 7\ns_cselect_b32 s{sIt}, 1, 0")
        a(f"s_add_u32 m0, s{sInc}, {slot[it] * GSL}\ns_call_b64 s[{sLnk}:{sLnk+1}], LL_{it[0]}")
        q.extend([it] * 4)

    def wait_for(names):
        last = max(i for i, x in enumerate(q) if x in names)
        a(f"s_waitcnt vmcnt({min(63, len(q) - 1 - last)})")

    sC640 = sT4
    first = [it for it in items if when[it] == -1]
    for it in first:
        issue(it)
    common_setup(a)
    a(f"s_call_b64 s[{sLnk}:{sLnk+1}], LA_setup")
    repack_setup(a)
    a(f"v_mov_b32 v{vCnt}, 0")
    bars = stage_barriers()
    for bi, bar in enumerate(bars):
        upto = bars[bi + 1] - 1 if bi + 1 < len(bars) else 19
        wait_for([("X", bar), ("W", upto)] + (["cnt"] if bar == PUB_BAR else []))
        if bar == PUB_BAR:
            a.c("all counters must have been cleared before the first one is used")
            a(f"v_cmp_gt_u32 vcc, 8, v{vCnt}\ns_cbranch_vccz LL_cnt_ok")
            poll(a, [(vP + 5, f"s[{sDbg}:{sDbg+3}]", "0")], 8, vPS)
            a("LL_cnt_ok:")
        a("s_barrier")
        if bar == PUB_BAR:
            a(f"s_cmp_eq_u32 s{sJ}, 0\ns_cbranch_scc0 LL_pub\ns_call_b64 s[{sLnk}:{sLnk+1}], LG_publish\nLL_pub:")
            stamp(a, 27)
        if bar <= 11 or bar == LAST_BAR:
            stamp(a, 8 + bar)
        a(f"s_mov_b32 s{sC640}, 640")
        for it in items:
            if when[it] == bar:
                issue(it)
        if bar == 9:
            a(f"buffer_load_dword v{vCnt}, v{vP+5}, s[{sDbg}:{sDbg+3}], 0 offen sc1")
            q.append("cnt")
    write_ones(a, 0)
    a(f"v_mov_b32 v{vP}, {LCNT}\nv_mov_b32 v{vP+1}, 0\nds_write_b32 v{vP}, v{vP+1}")
    a("s_branch LA_lead")


vKA, vVA, vT0, vT1 = 1, 2, 3, 14
Qm = [4, 8]
Qe = 12
vL16 = 15
Km = [16, 20]
Ke = 24
Vb = [[28, 32], [36, 40]]
vVbase, vVflag, vE16, vVG = 44, 45, 46, 47
NM = 48
SB = [80, 112]
OA = [144, 160]
vD = 176
vP = 182
vPS = 188
NVGPR = 256


def mfma32(d, a_, b, c):
    return f"v_mfma_f32_32x32x16_bf16 {vr(d,16)}, {vr(a_,4)}, {vr(b,4)}, {c}"


def mfma2b(d, ke_tile, c):
    return (f"v_mfma_f32_32x32x4_2b_bf16 {vr(d,32)}, {vr(Ke + 2 * (ke_tile >> 1), 2)}, {vr(Qe,2)}, {c}"
            f" cbsz:1 abid:{ke_tile & 1}")


def valu_stream(X, Y):
    def e(base, i): return f"v_exp_f32 v{base+i}, v{base+i}"
    def c(j):
        dst = X + 8 * (j // 4) + (j % 4)
        return f"v_cvt_pk_bf16_f32 v{dst}, v{X+2*j}, v{X+2*j+1}"
    out = [e(X, 1)]
    for j in range(16):
        out.append(e(X, 2 * j + 2) if j < 15 else e(Y, 0))
        out.append(c(j))
        if j < 15:
            out.append(e(X, 2 * j + 3))
    return out


def tile_iter(a, ii):
    par = ii & 1
    X, Y = SB[par], SB[par ^ 1]
    Vc, Vn = Vb[par], Vb[par ^ 1]
    Kc, Kn = Km[par ^ 1], Km[par]
    v = valu_stream(X, Y)
    t1 = (ii + 1) % 4
    t2 = (ii + 2) % 4
    ins = {}
    ins[2] = [mfma32(OA[1], Vn[1], Y + 24, vr(OA[1], 16)),
              f"ds_read_b128 {vr(Vn[0],4)}, v{vVA} offset:{t1 * 1280}"]
    ins[7] = [mfma2b(Y, t1, vr(NM, 32))]
    ins[17] = [mfma32(OA[0], Vc[0], X, vr(OA[0], 16)),
               f"ds_read_b128 {vr(Vn[1],4)}, v{vVA} offset:{t1 * 1280 + 640}"]
    ins[23] = [mfma32(Y, Kc, Qm[0], vr(Y, 16)),
               f"ds_read_b128 {vr(Kn,4)}, v{vKA} offset:{2048 + t2 * 1024}"]
    ins[29] = [mfma32(OA[0], Vc[1], X + 8, vr(OA[0], 16))]
    ins[35] = [mfma32(Y + 16, Kc, Qm[1], vr(Y + 16, 16))]
    ins[41] = [mfma32(OA[1], Vc[0], X + 16, vr(OA[1], 16)),
               "s_waitcnt lgkmcnt(0)"]
    if ii == 0:
        ins[29].append(f"s_add_u32 s{sNext}, s{sNext}, {CH}")
        ins[35].append(f"s_cmp_eq_u32 s{sNext}, s{sRe}")
    if ii == 1:
        ins[29].append(f"s_cselect_b32 s{sNext}, s{sRb}, s{sNext}")
        ins[44] = [f"v_add_u32 v{vKA}, s{sNext}, v{vL16}"]
    if ii == 2:
        ins[29].append(f"ds_read2_b64 {vr(Ke,4)}, v{vKA} offset0:0 offset1:128")
        ins[44] = [f"v_mad_u32_u24 v{vVA}, v{vVflag}, s{sNext}, v{vVbase}"]
    if ii == 3:
        ins[35].append(f"s_sub_u32 s{sRem}, s{sRem}, 1")
    for p, op in enumerate(v):
        for x in ins.get(p, []):
            a(x)
        a(op)


def rowmax(a, X, out0, out1):
    for base, o in ((X, out0), (X + 16, out1)):
        a(f"v_max3_f32 v{o}, v{base}, v{base+1}, v{base+2}")
        for r in range(3, 15, 2):
            a(f"v_max3_f32 v{o}, v{o}, v{base+r}, v{base+r+1}")
        a(f"v_max_f32 v{o}, v{o}, v{base+15}")


def cross_half_max(a, r, tmp):
    a(f"v_mov_b32 v{tmp}, v{r}\ns_nop 1\nv_permlane32_swap_b32 v{tmp}, v{r}\ns_nop 1\nv_max_f32 v{r}, v{r}, v{tmp}")


def fill_nm(a, m0, m1):
    for r in range(16):
        a(f"v_sub_f32 v{NM+r}, 0, v{m0}")
    for r in range(16):
        a(f"v_sub_f32 v{NM+16+r}, 0, v{m1}")


def attn_setup(a):
    a("LA_setup:")
    a.c("head offsets: main octs start at (5g+1)>>1; the ext quad shares an oct with the neighbouring head")
    a(f"""
    s_and_b32 s{sT3}, s{sHead}, 15
    s_mul_i32 s{sOm}, s{sT3}, 5
    s_add_u32 s{sOm}, s{sOm}, 1
    s_lshr_b32 s{sOm}, s{sOm}, 1
    s_lshl_b32 s{sOm}, s{sOm}, 9
    s_and_b32 s{sT0}, s{sHead}, 1
    s_mov_b32 s{sT1}, 1024
    s_cselect_b32 s{sT1}, {(-512 + 8) & 0xffffffff}, s{sT1}
    s_add_u32 s{sExt}, s{sOm}, s{sT1}
    v_lshlrev_b32 v{vL16}, 4, v0
    v_lshrrev_b32 v{vT0}, 5, v0
    v_mul_u32_u24 v{vT1}, {TILE}, v{vT0}
    v_and_b32 v{vP}, 31, v0
    v_lshl_add_u32 v{vE16}, v{vP}, 4, v{vT1}
    """)
    a.c("V rows: 0..15 main dims, 16..19 ext dims, 20 and 24 ones, the others zero (address past the allocation)")
    a(f"""
    s_cmp_eq_u32 s{sRole}, 0
    s_cselect_b32 s{sT4}, {ONES[0]}, {ONES[1]}
    v_mov_b32 v{vVflag}, s{sT4}
    s_lshl_b32 s{sT0}, s{sT0}, 2
    v_and_b32 v{vP+1}, 3, v0
    v_and_b32 v{vP+2}, 4, v0
    v_lshl_add_u32 v{vP+1}, v{vP+2}, 1, v{vP+1}
    v_and_b32 v{vP+2}, 8, v0
    v_lshrrev_b32 v{vP+2}, 1, v{vP+2}
    v_add3_u32 v{vP+1}, v{vP+1}, v{vP+2}, s{sT0}
    s_lshl_b32 s{sT0}, s{sT0}, 2
    v_subrev_u32 v{vP+2}, s{sT0}, v{vP}
    v_cmp_gt_u32 vcc, 16, v{vP}
    v_mul_u32_u24 v{vT1}, 10240, v{vT0}
    v_mul_u32_u24 v{vT0}, 320, v{vT0}
    v_cndmask_b32 v{vP+1}, v{vP+2}, v{vP+1}, vcc
    v_lshlrev_b32 v{vP+1}, 4, v{vP+1}
    v_add_u32 v{vVG}, v{vP+1}, v{vT1}
    v_add3_u32 v{vVbase}, v{vP+1}, v{vT0}, 0
    v_add_u32 v{vVbase}, 6144, v{vVbase}
    v_cmp_gt_u32 vcc, 20, v{vP}
    v_mov_b32 v{vP+1}, 0x100000
    v_mov_b32 v{vP+2}, v{vVflag}
    v_cndmask_b32 v{vVflag}, 0, 1, vcc
    v_cndmask_b32 v{vVbase}, v{vP+1}, v{vVbase}, vcc
    v_cmp_eq_u32 vcc, 20, v{vP}
    v_cmp_eq_u32 s[{sT2+1}:{sT2+2}], 24, v{vP}
    s_or_b64 vcc, vcc, s[{sT2+1}:{sT2+2}]
    s_nop 1
    v_cndmask_b32 v{vVbase}, v{vVbase}, v{vP+2}, vcc
    """)
    a.c("DMA source offsets: even waves load K pieces, odd waves V pieces")
    a(f"""
    s_and_b32 s{sT0}, s{sJ}, 1
    s_cbranch_scc1 LA_dv
    v_add_u32 v{vD}, s{sExt}, v{vE16}
    v_add_u32 v{vD+1}, {2 * TILE}, v{vD}
    v_add_u32 v{vD+2}, s{sOm}, v{vL16}
    v_add_u32 v{vD+3}, {TILE}, v{vD+2}
    v_add_u32 v{vD+4}, {TILE}, v{vD+3}
    v_add_u32 v{vD+5}, {TILE}, v{vD+4}
    s_branch LA_dd
    LA_dv:
    s_and_b32 s{sT0}, s{sHead}, 15
    s_mul_i32 s{sT0}, s{sT0}, 320
    s_add_u32 s{sT0}, s{sT0}, {IMG}
    """)
    for p in range(5):
        a(f"""
        v_add_u32 v{vP}, {64 * p}, v0
        v_mul_u32_u24 v{vP+1}, 3277, v{vP}
        v_lshrrev_b32 v{vP+1}, 16, v{vP+1}
        v_mul_u32_u24 v{vP+2}, 20, v{vP+1}
        v_sub_u32 v{vP+2}, v{vP}, v{vP+2}
        v_mul_u32_u24 v{vP+1}, 10240, v{vP+1}
        v_lshl_add_u32 v{vP+1}, v{vP+2}, 4, v{vP+1}
        v_add_u32 v{vD+p}, s{sT0}, v{vP+1}
        """)
    a(f"v_mov_b32 v{vD+5}, v{vD+4}\nLA_dd:")
    a.c("own head offsets; arrivals expected per kind: 16 token blocks x number of 64-column units that hold the head")
    a(f"""
    s_mul_i32 s{sT0}, s{sRole}, 20480
    s_add_u32 s{sOm}, s{sOm}, s{sT0}
    s_add_u32 s{sExt}, s{sExt}, s{sT0}
    s_min_u32 s{sT0}, s{sOm}, s{sExt}
    s_add_u32 s{sT2}, s{sOm}, 512
    s_max_u32 s{sT1}, s{sExt}, s{sT2}
    s_lshr_b32 s{sT0}, s{sT0}, 12
    s_lshr_b32 s{sT1}, s{sT1}, 12
    s_cmp_eq_u32 s{sT0}, s{sT1}
    s_cselect_b32 s{sExp}, 16, 32
    v_min_u32 v{vP+3}, 2, v0
    v_lshlrev_b32 v{vP+3}, 7, v{vP+3}
    v_mov_b32 v{vP+4}, 0
    v_lshlrev_b32 v{vP+5}, 2, v0
    v_or_b32 v{vP+5}, 128, v{vP+5}
    s_setpc_b64 s[{sLnk}:{sLnk+1}]
    """)


def dma_sub(a):
    a(f"""
    LA_dma:
    s_add_u32 s{sT2}, s{sT1}, s{sQB}
    s_and_b32 s{sT2}, s{sT2}, 7
    s_lshl_b32 s{sT2}, s{sT2}, 1
    s_lshr_b32 s{sT3}, s{sJ}, 1
    s_add_u32 s{sT2}, s{sT2}, s{sT3}
    s_mul_i32 s{sT2}, s{sT2}, {4 * TILE}
    s_lshl_b32 s{sT4}, s{sJ}, 1
    s_and_b32 s{sT4}, s{sT4}, 2
    s_lshr_b32 s{sT4}, 20480, s{sT4}
    s_mul_i32 s{sT4}, s{sT4}, s{sT0}
    s_add_u32 s{sT2}, s{sT2}, s{sT4}
    s_add_u32 s{sT2}, s{sT2}, s{sImg}
    s_add_u32 s{sT2}, s{sT2}, {IMG}
    s_sub_u32 s{sT1}, s{sT1}, s{sT0}
    s_add_u32 s{sT1}, s{sT1}, 1
    s_mul_i32 s{sT4}, s{sT1}, 43
    s_lshr_b32 s{sT4}, s{sT4}, 7
    s_mul_i32 s{sT4}, s{sT4}, 3
    s_sub_u32 s{sT1}, s{sT1}, s{sT4}
    s_lshl_b32 s{sT1}, s{sT1}, 1
    s_add_u32 s{sT1}, s{sT1}, s{sT3}
    s_mul_i32 s{sT1}, s{sT1}, {CH}
    s_mul_i32 s{sT4}, s{sT0}, {RA - RB}
    s_sub_u32 s{sT1}, s{sT1}, s{sT4}
    s_add_u32 s{sT1}, s{sT1}, {RA}
    s_and_b32 s{sT3}, s{sJ}, 1
    s_mul_i32 s{sT4}, s{sT3}, 6144
    s_add_u32 m0, s{sT1}, s{sT4}
    s_nop 0
    """)
    for p in range(5):
        a(f"buffer_load_dwordx4 v{vD+p}, {WSR()}, s{sT2} offen sc1 lds")
        a("s_add_u32 m0, m0, 1024")
        a("s_nop 0" if p < 4 else f"s_cmp_eq_u32 s{sT3}, 1")
    a(f"""
    s_cbranch_scc1 LA_dma_ret
    buffer_load_dwordx4 v{vD+5}, {WSR()}, s{sT2} offen sc1 lds
    LA_dma_ret:
    s_setpc_b64 s[{sLnk}:{sLnk+1}]
    """)


def call_dma(a, b, blk):
    a(f"s_mov_b32 s{sT0}, {b}\ns_mov_b32 s{sT1}, {blk}\ns_call_b64 s[{sLnk}:{sLnk+1}], LA_dma")


def poll_f1(a):
    a(f"""
    s_lshl_b32 s{sT0}, s{sBr}, 5
    s_add_u32 s{sT0}, s{sT0}, s{sHead}
    s_lshl_b32 s{sT0}, s{sT0}, 9
    s_add_u32 s{sT0}, s{sT0}, {WS_C1}
    """)
    poll_counter(a, vP + 3, f"s{sT0}", f"s{sExp}", 7)


def load_q(a):
    a(f"""
    s_lshl_b32 s{sT0}, s{sQB}, 2
    s_add_u32 s{sT0}, s{sT0}, s{sJ}
    s_mul_i32 s{sT0}, s{sT0}, {2 * TILE}
    s_add_u32 s{sT0}, s{sT0}, s{sImg}
    s_add_u32 s{sT1}, s{sT0}, s{sOm}
    s_add_u32 s{sT2}, s{sT1}, {TILE}
    s_add_u32 s{sT0}, s{sT0}, s{sExt}
    buffer_load_dwordx4 {vr(Qm[0],4)}, v{vL16}, {WSR()}, s{sT1} offen sc1
    buffer_load_dwordx4 {vr(Qm[1],4)}, v{vL16}, {WSR()}, s{sT2} offen sc1
    buffer_load_dwordx2 {vr(Qe,2)}, v{vE16}, {WSR()}, s{sT0} offen sc1
    """)


def scale_q(a, nyounger):
    a(f"s_mov_b32 s{sT0}, {hex(f32bits(QSCALE))}\ns_waitcnt vmcnt({nyounger})")
    for r in range(Qm[0], Qe + 2):
        a(f"""
        v_lshlrev_b32 v{vP}, 16, v{r}
        v_and_b32 v{vP+1}, 0xffff0000, v{r}
        v_mul_f32 v{vP}, s{sT0}, v{vP}
        v_mul_f32 v{vP+1}, s{sT0}, v{vP+1}
        v_cvt_pk_bf16_f32 v{r}, v{vP}, v{vP+1}
        """)


def attention(a):
    X = SB[0]
    a(f"""
    LA_start:
    s_add_u32 s{sRe}, s{sRb}, {RING}
    v_add_u32 v{vKA}, s{sNext}, v{vL16}
    v_mad_u32_u24 v{vVA}, v{vVflag}, s{sNext}, v{vVbase}
    ds_read2_b64 {vr(Ke,4)}, v{vKA} offset0:0 offset1:128
    ds_read_b128 {vr(Km[0],4)}, v{vKA} offset:2048
    ds_read_b128 {vr(Km[1],4)}, v{vKA} offset:3072
    ds_read_b128 {vr(Vb[0][0],4)}, v{vVA}
    ds_read_b128 {vr(Vb[0][1],4)}, v{vVA} offset:640
    """)
    for r in range(32):
        a(f"v_mov_b32 v{OA[0]+r}, 0")
    for r in range(4):
        a(f"v_mov_b32 v{SB[1]+24+r}, 0")
        a(f"v_mov_b32 v{Vb[1][1]+r}, 0")
    a(f"s_mov_b32 s{sRem}, 0\ns_waitcnt lgkmcnt(3)")
    a(mfma32(X, Km[0], Qm[0], 0))
    a(mfma32(X + 16, Km[0], Qm[1], 0))
    a("s_nop 9")
    a(mfma2b(X, 0, vr(X, 32)))
    a("s_nop 15\ns_nop 3")
    a.c("softmax shift: row max over the first key tile; the epilogue checks that it was safe")
    rowmax(a, X, vT0, vT1)
    cross_half_max(a, vT0, vP)
    cross_half_max(a, vT1, vP)
    fill_nm(a, vT0, vT1)
    for r in range(32):
        a(f"v_add_f32 v{X+r}, v{X+r}, v{NM+r}")
    a(f"v_exp_f32 v{X}, v{X}")
    a("s_waitcnt lgkmcnt(0)")
    a(".p2align 6\nLA_loop:")
    for ii in range(4):
        tile_iter(a, ii)
    a(f"""
    s_cbranch_scc0 LA_loop
    s_cmp_gt_u32 s{sM}, s{sMend}
    s_cbranch_scc1 LA_fin
    s_cmp_eq_u32 s{sM}, s{sMend}
    s_cselect_b32 s{sRem}, 0, 1
    s_cmp_eq_u32 s{sM}, s{sRp}
    s_cbranch_scc1 LR_step
    LA_bar:
    s_waitcnt vmcnt(0)
    s_barrier
    s_add_u32 s{sM}, s{sM}, 1
    s_cmp_eq_u32 s{sRole}, 0
    s_cbranch_scc1 LA_loop
    """)
    a.c("branch-B waves refill both rings: after barrier m, A block m+2 and B block m-SK+2")
    a(f"""
    s_cmp_gt_u32 s{sM}, 6
    s_cbranch_scc1 LA_ev_b
    s_mov_b32 s{sT0}, 0
    s_add_u32 s{sT1}, s{sM}, 1
    s_call_b64 s[{sLnk}:{sLnk+1}], LA_dma
    LA_ev_b:
    s_sub_u32 s{sT1}, s{sM}, {SK - 1}
    s_cmp_lt_u32 s{sT1}, 3
    s_cbranch_scc1 LA_loop
    s_cmp_gt_u32 s{sT1}, 6
    s_cbranch_scc1 LA_loop
    s_mov_b32 s{sT0}, 1
    s_call_b64 s[{sLnk}:{sLnk+1}], LA_dma
    s_branch LA_loop
    LA_fin:
    """)
    a(mfma32(OA[1], Vb[1][1], SB[1] + 24, vr(OA[1], 16)))
    a(f"s_cmp_eq_u32 s{sRole}, 0\ns_cbranch_scc1 LA_fin2\ns_setprio 2\ns_barrier\nLA_fin2:")
    stamp(a, 4)
    a(f"""
    s_lshl_b32 s{sT0}, s{sQB}, 2
    s_add_u32 s{sT0}, s{sT0}, s{sJ}
    s_mul_i32 s{sXo}, s{sT0}, {2 * TILE}
    s_add_u32 s{sXo}, s{sXo}, s{sImg}
    s_add_u32 s{sXo}, s{sXo}, {3 * IMG}
    s_mov_b32 s{sRem}, 0
    s_nop 5
    LA_epi:
    v_cmp_lt_u32 vcc, 31, v0
    s_mov_b32 s{sT0}, {f32bits(2.0**30)}
    s_mov_b32 s{sT2}, {f32bits(2.0**-30)}
    v_cndmask_b32 v{vT0}, v{OA[0]+12}, v{OA[0]+8}, vcc
    v_cndmask_b32 v{vT1}, v{OA[1]+12}, v{OA[1]+8}, vcc
    """)
    a.c("safety check of the shift: row sums inside [2^-30, 2^30] and finite accumulators")
    tm = SB[0]
    a(f"v_add_f32 v{tm}, |v{OA[0]}|, |v{OA[1]}|")
    a(f"v_add_f32 v{tm+5}, |v{OA[0]+1}|, |v{OA[1]+1}|")
    for r in range(2, 12):
        a(f"v_add_f32 v{tm}, v{tm}, |v{OA[0]+r}|")
        a(f"v_add_f32 v{tm+5}, v{tm+5}, |v{OA[1]+r}|")
    a(f"""
    v_add_f32 v{tm}, v{tm}, v{tm+5}
    v_max_f32 v{tm+1}, v{vT0}, v{vT1}
    v_min_f32 v{tm+2}, v{vT0}, v{vT1}
    v_add_f32 v{tm}, v{tm}, v{vT0}
    v_add_f32 v{tm}, v{tm}, v{vT1}
    v_cmp_gt_f32 s[4:5], s{sT0}, v{tm+1}
    v_cmp_lt_f32 s[6:7], s{sT2}, v{tm+2}
    v_mov_b32 v{tm+4}, 0x7f800000
    v_cmp_gt_f32 vcc, v{tm+4}, v{tm}
    s_and_b64 s[4:5], s[4:5], s[6:7]
    s_and_b64 s[4:5], s[4:5], vcc
    s_cmp_eq_u64 s[4:5], -1
    s_cselect_b32 s{sT0}, 1, s{sRem}
    s_cmp_eq_u32 s{sT0}, 0
    s_cbranch_scc1 LA_slow
    v_rcp_f32 v{vT0}, v{vT0}
    v_rcp_f32 v{vT1}, v{vT1}
    s_add_u32 s{sT0}, s{sXo}, s{sOm}
    s_add_u32 s{sT1}, s{sT0}, {TILE}
    s_add_u32 s{sT2}, s{sXo}, s{sExt}
    """)
    for u, rc in ((0, vT0), (1, vT1)):
        O = OA[u]
        for r in range(12):
            a(f"v_mul_f32 v{O+r}, v{O+r}, v{rc}")
        for j in range(6):
            a(f"v_cvt_pk_bf16_f32 v{O+j}, v{O+2*j}, v{O+2*j+1}")
        a(f"buffer_store_dwordx4 {vr(O,4)}, v{vL16}, {WSR()}, s{sT1 if u else sT0} offen sc1")
    a(f"""
    s_nop 0
    v_permlane32_swap_b32 v{OA[0]+4}, v{OA[1]+4}
    v_permlane32_swap_b32 v{OA[0]+5}, v{OA[1]+5}
    s_nop 0
    buffer_store_dwordx2 {vr(OA[0]+4,2)}, v{vE16}, {WSR()}, s{sT2} offen sc1
    """)


def slow_path(a):
    X = SB[0]
    m0, m1, t0, t1 = SB[1], SB[1] + 1, SB[1] + 2, SB[1] + 3

    def kloads(t):
        a(f"buffer_load_dwordx4 {vr(Km[0],4)}, v{vL16}, {WSR()}, s{sT1} offen sc1")
        if t == 0:
            a(f"buffer_load_dwordx2 {vr(Ke,2)}, v{vE16}, {WSR()}, s{sT2} offen sc1")
            a(f"s_add_u32 s{sT2}, s{sT2}, {2 * TILE}")
        a(f"s_add_u32 s{sT1}, s{sT1}, {TILE}")

    def kbase():
        a(f"""
        s_add_u32 s{sT0}, s{sImg}, {IMG}
        s_add_u32 s{sT1}, s{sT0}, s{sOm}
        s_add_u32 s{sT2}, s{sT0}, s{sExt}
        s_mov_b32 s{sRem}, 0
        """)
    a(f"LA_slow:\nv_mov_b32 v{m0}, 0xff800000\nv_mov_b32 v{m1}, 0xff800000")
    kbase()
    a("LA_slow_max:")
    for t in range(2):
        kloads(t)
        a("s_waitcnt vmcnt(0)")
        a(mfma32(X, Km[0], Qm[0], 0))
        a(mfma32(X + 16, Km[0], Qm[1], 0))
        a("s_nop 9")
        a(mfma2b(X, t, vr(X, 32)))
        a("s_nop 15\ns_nop 3")
        rowmax(a, X, t0, t1)
        a(f"v_max_f32 v{m0}, v{m0}, v{t0}\nv_max_f32 v{m1}, v{m1}, v{t1}")
    a(f"s_add_u32 s{sRem}, s{sRem}, 1\ns_cmp_lt_u32 s{sRem}, 32\ns_cbranch_scc1 LA_slow_max")
    cross_half_max(a, m0, t0)
    cross_half_max(a, m1, t0)
    fill_nm(a, m0, m1)
    for r in range(32):
        a(f"v_mov_b32 v{OA[0]+r}, 0")
    for r in range(8):
        a(f"v_mov_b32 v{Vb[0][0]+r}, 0x3f803f80")
    kbase()
    a(f"""
    s_mul_i32 s{sT3}, s{sHead}, 320
    s_add_u32 s{sT3}, s{sT3}, s{sT0}
    s_add_u32 s{sT3}, s{sT3}, {IMG}
    LA_slow_pv:
    """)
    for t in range(2):
        kloads(t)
        a(f"""
        s_add_u32 s{sT4}, s{sT3}, 20480
        s_mov_b32 exec_lo, 0xfffff
        s_mov_b32 exec_hi, 0xfffff
        buffer_load_dwordx4 {vr(Vb[0][0],4)}, v{vVG}, {WSR()}, s{sT3} offen sc1
        buffer_load_dwordx4 {vr(Vb[0][1],4)}, v{vVG}, {WSR()}, s{sT4} offen sc1
        s_mov_b64 exec, -1
        s_add_u32 s{sT3}, s{sT3}, {TILE}
        s_waitcnt vmcnt(2)
        """)
        a(mfma32(X, Km[0], Qm[0], vr(NM, 16)))
        a(mfma32(X + 16, Km[0], Qm[1], vr(NM + 16, 16)))
        a("s_nop 9")
        a(mfma2b(X, t, vr(X, 32)))
        a("s_nop 15\ns_nop 3")
        for r in range(32):
            a(f"v_exp_f32 v{X+r}, v{X+r}")
        a("s_nop 0")
        for j in range(16):
            a(f"v_cvt_pk_bf16_f32 v{X + 8*(j//4) + j%4}, v{X+2*j}, v{X+2*j+1}")
        a("s_waitcnt vmcnt(0)\ns_nop 1")
        a(mfma32(OA[0], Vb[0][0], X, vr(OA[0], 16)))
        a(mfma32(OA[0], Vb[0][1], X + 8, vr(OA[0], 16)))
        a(mfma32(OA[1], Vb[0][0], X + 16, vr(OA[1], 16)))
        a(mfma32(OA[1], Vb[0][1], X + 24, vr(OA[1], 16)))
    a(f"""
    s_add_u32 s{sRem}, s{sRem}, 1
    s_cmp_lt_u32 s{sRem}, 32
    s_cbranch_scc1 LA_slow_pv
    s_nop 15
    s_mov_b32 s{sRem}, 1
    s_branch LA_epi
    """)


pWF = [16, 56]
pACC = 96
pOF = 136
pWA, pOA = 2, 3


def c3_off(a, dst, t64, part):
    a(f"""
    s_lshl_b32 s{dst}, s{sBr}, 5
    s_add_u32 s{dst}, s{dst}, s{t64}
    s_lshl_b32 s{dst}, s{dst}, 1
    s_add_u32 s{dst}, s{dst}, s{part}
    s_lshl_b32 s{dst}, s{dst}, 7
    s_add_u32 s{dst}, s{dst}, {WS_C3}
    """)


def wo_dma(a, k0, k1, lds0):
    _lbl[0] += 1
    L = f"LP_wd{_lbl[0]}"
    a(f"""
    s_and_b32 s{sT0}, s{sHead}, 3
    s_lshl_b32 s{sT1}, s{sBr}, 2
    s_add_u32 s{sT0}, s{sT0}, s{sT1}
    s_mul_i32 s{sT0}, s{sT0}, {WO_SLAB}
    s_lshl_b32 s{sT1}, s{sJ}, 10
    s_add_u32 s{sT0}, s{sT0}, s{sT1}
    s_add_u32 s{sT0}, s{sT0}, {WS_WO + 10240 * k0}
    s_add_u32 s{sT1}, s{sT1}, {lds0}
    {L}:
    s_mov_b32 m0, s{sT1}
    s_add_u32 s{sT1}, s{sT1}, 4096
    buffer_load_dwordx4 v{vL16}, {WSR()}, s{sT0} offen sc1 lds
    s_add_u32 s{sT0}, s{sT0}, 4096
    s_cmp_lt_u32 s{sT1}, {lds0 + 10240 * (k1 - k0)}
    s_cbranch_scc1 {L}
    """)


def o_fetch_sub(a):
    a(f"""
    LP_fetch:
    s_lshl_b32 s{sT1}, s{sQB}, 2
    s_lshr_b32 s{sT2}, s{sHead}, 2
    s_add_u32 s{sT1}, s{sT1}, s{sT2}
    """)
    c3_off(a, sT0, sT1, sPh)
    a(f"""
    v_and_b32 v{vP+3}, 15, v0
    s_lshl_b32 s{sT1}, s{sT1}, 1
    s_lshr_b32 s{sT2}, s{sJ}, 1
    s_add_u32 s{sT1}, s{sT1}, s{sT2}
    s_mul_i32 s{sT1}, s{sT1}, {TILE}
    s_add_u32 s{sT1}, s{sT1}, s{sImg}
    s_and_b32 s{sT2}, s{sJ}, 1
    s_lshl_b32 s{sT2}, s{sT2}, 8
    s_add_u32 s{sT1}, s{sT1}, s{sT2}
    s_mul_i32 s{sT2}, s{sPh}, 20480
    s_add_u32 s{sT1}, s{sT1}, s{sT2}
    s_add_u32 s{sT1}, s{sT1}, {3 * IMG}
    v_lshrrev_b32 v{pOA}, 4, v0
    v_lshlrev_b32 v{pOA}, 9, v{pOA}
    v_lshl_add_u32 v{pOA}, v{vP+3}, 4, v{pOA}
    """)
    poll_counter(a, vP + 4, f"s{sT0}", 16, 1)
    for s in range(10):
        a(f"buffer_load_dwordx4 {vr(pOF + 4*s, 4)}, v{pOA}, {WSR()}, s{sT1} offen offset:{(s & 1) * 2048} sc1")
        if s & 1 and s < 9:
            a(f"s_add_u32 s{sT1}, s{sT1}, 4096")
    a(f"s_setpc_b64 s[{sLnk}:{sLnk+1}]")


sTab = 52


def oproj_sub(a, label, p0):
    def wreads(p):
        return [f"ds_read_b128 {vr(pWF[p & 1] + 4*c, 4)}, v{pWA} offset:{c * 1024}" for c in range(10)]
    a(f"{label}:\nv_add_u32 v{pWA}, s{sTab}, v{vL16}")
    for r in wreads(p0):
        a(r)
    for p in range(p0, p0 + 5):
        rd = wreads(p + 1) if p + 1 < p0 + 5 else []
        if rd:
            a(f"v_add_u32 v{pWA}, s{sTab + p + 1 - p0}, v{vL16}")
        for c in range(10):
            A = pACC + 4 * c
            a(f"s_waitcnt lgkmcnt({9 if rd else 9 - c})")
            a(f"v_mfma_f32_16x16x32_bf16 {vr(A,4)}, {vr(pOF + 4*p, 4)}, {vr(pWF[p & 1] + 4*c, 4)}, {vr(A,4)}")
            if rd:
                a(rd[c])
    a(f"s_setpc_b64 s[{sLnk}:{sLnk+1}]")


def call_mm(a, label, addrs):
    for i, x in enumerate(addrs):
        a(f"s_mov_b32 s{sTab + i}, {x}")
    a(f"s_call_b64 s[{sLnk}:{sLnk+1}], {label}")


def out_store(a):
    a.c("lane holds columns 10*(l & 15) .. +9 of tokens 4*(l >> 4) + r")
    a(f"""
    s_lshl_b32 s{sT0}, s{sQB}, 2
    s_lshr_b32 s{sT1}, s{sHead}, 2
    s_add_u32 s{sT0}, s{sT0}, s{sT1}
    s_lshl_b32 s{sT0}, s{sT0}, 2
    s_add_u32 s{sT0}, s{sT0}, s{sJ}
    s_mul_i32 s{sT0}, s{sT0}, {16 * 2560}
    s_mul_i32 s{sT1}, s{sBr}, 1280
    s_add_u32 s{sT0}, s{sT0}, s{sT1}
    s_and_b32 s{sT1}, s{sHead}, 3
    s_mul_i32 s{sT1}, s{sT1}, 320
    s_add_u32 s{sT0}, s{sT0}, s{sT1}
    s_add_u32 s{sT1}, s{sT0}, {2 * 2560}
    v_lshrrev_b32 v4, 4, v0
    v_mul_u32_u24 v4, {4 * 2560}, v4
    v_and_b32 v5, 15, v0
    v_mul_u32_u24 v5, 20, v5
    v_add_u32 v4, v4, v5
    """)
    for r in range(4):
        P = 16 + 6 * r
        for j in range(5):
            a(f"v_cvt_pk_bf16_f32 v{P+j}, v{pACC + 8*j + r}, v{pACC + 8*j + 4 + r}")
        so = sT0 if r < 2 else sT1
        a(f"buffer_store_dwordx4 {vr(P,4)}, v4, s[{sOut}:{sOut+3}], s{so} offen offset:{(r & 1) * 2560}")
        a(f"buffer_store_dword v{P+4}, v4, s[{sOut}:{sOut+3}], s{so} offen offset:{(r & 1) * 2560 + 16}")


rL, rT, rD, rX, rData = 194, 199, 200, 205, 208


def repack_setup(a):
    x = rX
    for i in range(5):
        a(f"""
        v_add_u32 v{x}, {64 * i}, v0
        v_mul_u32_u24 v{x+1}, 3277, v{x}
        v_lshrrev_b32 v{x+1}, 16, v{x+1}
        v_mul_u32_u24 v{x+2}, 20, v{x+1}
        v_sub_u32 v{x+2}, v{x}, v{x+2}
        v_mul_u32_u24 v{x+1}, 1280, v{x+1}
        v_lshl_add_u32 v{rL+i}, v{x+2}, 4, v{x+1}
        v_and_b32 v{x}, 15, v0
        v_add_u32 v{x}, {16 * i}, v{x}
        v_mul_u32_u24 v{x+1}, 205, v{x}
        v_lshrrev_b32 v{x+1}, 11, v{x+1}
        v_mul_u32_u24 v{x+2}, 10, v{x+1}
        v_sub_u32 v{x+2}, v{x}, v{x+2}
        v_mul_u32_u24 v{x+2}, 1040, v{x+2}
        v_lshl_add_u32 v{x+2}, v{x+1}, 4, v{x+2}
        v_and_b32 v{x}, 48, v0
        v_lshl_add_u32 v{x+2}, v{x}, 4, v{x+2}
        v_add_u32 v{rD+i}, {RPK}, v{x+2}
        """)
    a(f"""
    v_lshrrev_b32 v{x}, 4, v0
    v_lshlrev_b32 v{x}, 3, v{x}
    v_lshrrev_b32 v{x+1}, 2, v0
    v_and_b32 v{x+1}, 3, v{x+1}
    v_add_u32 v{x}, v{x}, v{x+1}
    v_mul_u32_u24 v{x}, 320, v{x}
    v_and_b32 v{x+1}, 3, v0
    v_lshl_add_u32 v{x}, v{x+1}, 3, v{x}
    v_add_u32 v{rT}, {RPK}, v{x}
    v_add_u32 v{rX}, {RPK}, v{vL16}
    """)


def repack_steps(a):
    a(f"""
    LR_step:
    s_add_u32 s{sRp}, s{sRp}, 1
    s_lshr_b32 s{sT2}, s2, 3
    s_cmp_eq_u32 s{sM}, {SK + 1}
    s_cbranch_scc0 LR_s1
    s_mov_b32 s{sWt}, s{sPtr+2}
    s_and_b32 s{sWt+1}, s{sPtr+3}, 0xffff
    s_mov_b32 s{sWt+2}, {D * D * 2}
    s_mov_b32 s{sWt+3}, 0x00020000
    s_mul_i32 s{sT0}, s{sT2}, {32 * 1280}
    s_and_b32 s{sT1}, s2, 3
    s_mul_i32 s{sT1}, s{sT1}, 320
    s_add_u32 s{sT0}, s{sT0}, s{sT1}
    s_mov_b32 m0, {RPK}
    s_add_u32 s{sT1}, s{sT0}, {16 * 1280}
    """)
    for i in range(10):
        a(f"buffer_load_dwordx4 v{rL + i % 5}, s[{sWt}:{sWt+3}], s{sT1 if i >= 5 else sT0} offen lds")
        a("s_add_u32 m0, m0, 1024\ns_nop 0")
    a(f"""
    s_branch LA_bar
    LR_s1:
    s_cmp_eq_u32 s{sM}, {SK + 2}
    s_cbranch_scc0 LR_s2
    s_and_b32 s{sT0}, s2, 7
    s_mul_i32 s{sT0}, s{sT0}, {WO_SLAB}
    s_mul_i32 s{sT2}, s{sT2}, 10240
    s_add_u32 s{sT0}, s{sT0}, s{sT2}
    s_add_u32 s{sT0}, s{sT0}, {WS_WO}
    """)
    for ct in range(10):
        for u in range(2):
            a(f"ds_read_b64_tr_b16 {vr(rData + 4*ct + 2*u, 2)}, v{rT} offset:{u*4*320 + ct*32}")
        if ct == 4:
            a("s_waitcnt lgkmcnt(0)")
    a("s_waitcnt lgkmcnt(0)")
    for ct in range(10):
        a(f"ds_write_b128 v{rD + ct % 5}, {vr(rData + 4*ct, 4)} offset:{128 * (ct // 5)}")
    a("s_waitcnt lgkmcnt(0)")
    for c in range(10):
        a(f"ds_read_b128 {vr(rData + 4*c, 4)}, v{rX} offset:{1040 * c}")
    for c in range(10):
        a(f"s_waitcnt lgkmcnt({9 - c})")
        a(f"buffer_store_dwordx4 {vr(rData + 4*c, 4)}, v{vL16}, {WSR()}, s{sT0} offen offset:{1024 * (c & 3)} sc1")
        if c & 3 == 3:
            a(f"s_add_u32 s{sT0}, s{sT0}, 4096")
    a(f"""
    s_branch LA_bar
    LR_s2:
    s_mov_b32 s{sRp}, -1
    s_and_b32 s{sT0}, s2, 7
    s_lshl_b32 s{sT0}, s{sT0}, 7
    s_add_u32 s{sT0}, s{sT0}, {WS_C4}
    """)
    count_in(a, sT0, vP, vP + 1)
    a("s_branch LA_bar")


def write_ones(a, role):
    a(f"""
    v_and_b32 v{vT0}, 7, v0
    v_mul_u32_u24 v{vT0}, 640, v{vT0}
    v_add_u32 v{vT0}, {ONES[role]}, v{vT0}
    v_mov_b32 v16, 0x3f803f80
    v_mov_b32 v17, 0x3f803f80
    v_mov_b32 v18, 0x3f803f80
    v_mov_b32 v19, 0x3f803f80
    ds_write_b128 v{vT0}, v[16:19]
    """)


def common_setup(a):
    a(f"""
    s_and_b32 s{sT0}, s2, 3
    s_lshl_b32 s{sT0}, s{sT0}, 2
    s_lshr_b32 s{sT2}, s2, 6
    s_add_u32 s{sHead}, s{sT0}, s{sT2}
    s_lshr_b32 s{sQB}, s2, 3
    s_and_b32 s{sQB}, s{sQB}, 7
    s_lshl_b32 s{sT2}, s{sRole}, 4
    s_add_u32 s{sHead}, s{sHead}, s{sT2}
    s_mul_i32 s{sImg}, s{sBr}, {4 * IMG}
    s_mov_b32 s{sPh}, 0
    s_mov_b32 s{sWS+2}, {WS_STAMP + 2048 * 128 if common.STAMP else WS_END}
    s_mov_b32 s{sWS+3}, 0x00020000
    s_mov_b32 s{sOut+2}, {S * 2 * D * 2}
    s_mov_b32 s{sOut+3}, 0x00020000
    s_mov_b32 s{sDbg+2}, 256
    s_mov_b32 s{sDbg+3}, 0x00020000
    s_waitcnt lgkmcnt(0)
    s_mov_b32 s{sOut}, s{sPtr+4}
    s_and_b32 s{sOut+1}, s{sPtr+5}, 0xffff
    s_mov_b32 s{sDbg}, s{sPtr+6}
    s_and_b32 s{sDbg+1}, s{sPtr+7}, 0xffff
    s_and_b32 s{sWS+1}, s{sWS+1}, 0xffff
    """)


def gen(a, label):
    kernel_head(a, label)
    a("s_cmp_ge_u32 s2, 256\ns_cbranch_scc1 LF_end")
    stamp(a, 0)
    a(f"""
    s_bfe_u32 s{sBr}, s2, 0x10002
    s_mul_i32 s{sT0}, s{sBr}, 24
    s_load_dwordx2 s[{sX}:{sX+1}], s[0:1], s{sT0}
    s_add_u32 s{sT1}, s{sT0}, 8
    s_load_dwordx4 s[{sPtr}:{sPtr+3}], s[0:1], s{sT1}
    s_load_dwordx4 s[{sPtr+4}:{sPtr+7}], s[0:1], 48
    s_load_dwordx2 s[{sWS}:{sWS+1}], s[0:1], 64
    v_lshrrev_b32 v1, 6, v0
    v_and_b32 v0, 63, v0
    v_readfirstlane_b32 s{sW}, v1
    s_and_b32 s{sT0}, s2, 3
    s_lshl_b32 s{sT0}, s{sT0}, 2
    s_bfe_u32 s{sT2}, s2, 0x20003
    s_add_u32 s{sTB}, s{sT0}, s{sT2}
    s_lshr_b32 s{sTI}, s2, 5
    """)
    if 'nocw' not in OPT:
        a.c("wave 7 pulls a quarter of the code into the L2, so that later instruction fetches find it there")
        a(f"""
        s_cmp_eq_u32 s{sW}, 7
        s_cbranch_scc0 LG_nocw
        s_getpc_b64 s[4:5]
        LG_pc:
        s_sub_u32 s4, s4, LG_pc-{label}
        s_subb_u32 s5, s5, 0
        s_lshl_b32 s{sT0}, s{sT2}, 13
        v_lshl_add_u32 v8, v0, 7, s{sT0}
        v_min_u32 v8, LF_codeend-{label}-4, v8
        global_load_dword v{gT+1}, v8, s[4:5]
        LG_nocw:
        """)
    a.c("phase-a units of tile ti: n = 2 ti + e, unit = n + 5 (n >= 5) + 5 (n >= 10)")
    a(f"""
    s_lshl_b32 s{sU0}, s{sTI}, 1
    s_cmp_ge_u32 s{sTI}, 5
    s_cselect_b32 s{sT0}, 10, 5
    s_cmp_ge_u32 s{sTI}, 3
    s_cselect_b32 s{sT0}, s{sT0}, 0
    s_add_u32 s{sU0}, s{sU0}, s{sT0}
    s_cmp_eq_u32 s{sTI}, 2
    s_cselect_b32 s{sT0}, 6, 1
    s_add_u32 s{sU1}, s{sU0}, s{sT0}
    s_and_b32 s{sJ}, s{sW}, 3
    s_lshr_b32 s{sRole}, s{sW}, 2
    s_cbranch_scc1 LG_start
    """)
    gemm_loader(a)
    a("LG_start:")
    common_setup(a)
    a.c("wave 4 clears counter lines id and id + 256")
    a(f"""
    s_cmp_eq_u32 s{sJ}, 0
    s_cbranch_scc0 LG_cleared
    s_lshl_b32 s{sT0}, s2, 7
    s_add_u32 s{sT0}, s{sT0}, {WS_C1}
    v_lshlrev_b32 v8, 15, v0
    v_mov_b32 v9, 0
    s_mov_b64 exec, 3
    buffer_store_dword v9, v8, {WSR()}, s{sT0} offen sc1
    s_mov_b64 exec, -1
    LG_cleared:
    """)
    gemm_compute(a)
    a("LG_done:")
    lane_id(a, 0)
    stamp(a, 3)
    a(f"s_call_b64 s[{sLnk}:{sLnk+1}], LA_setup")
    a.c("the last wave whose stores have drained publishes the tile")
    a(f"""
    v_mov_b32 v{vP}, {LCNT}
    v_mov_b32 v{vP+1}, 1
    s_waitcnt vmcnt(0)
    s_mov_b64 exec, 1
    ds_add_rtn_u32 v{vP+2}, v{vP}, v{vP+1}
    s_mov_b64 exec, -1
    s_waitcnt lgkmcnt(0)
    v_readfirstlane_b32 s{sT0}, v{vP+2}
    s_cmp_eq_u32 s{sT0}, 3
    s_cbranch_scc0 LG_nopub
    s_call_b64 s[{sLnk}:{sLnk+1}], LG_publish
    LG_nopub:
    """)
    stamp(a, 27)
    a("s_branch LB_lead")
    a("LG_idle:\ns_waitcnt lgkmcnt(0)")
    lane_id(a, 0)
    a(f"s_call_b64 s[{sLnk}:{sLnk+1}], LA_setup\ns_barrier\ns_waitcnt vmcnt(0)")
    for _ in range(12, LAST_BAR + 2):
        a("s_barrier")
    stamp(a, 3)
    a("LB_lead:")
    call_dma(a, 0, 2)
    a("s_barrier")
    write_ones(a, 1)
    a("s_waitcnt vmcnt(0)\ns_barrier")
    poll_f1(a)
    stamp(a, 26)
    load_q(a)
    call_dma(a, 1, 0)
    call_dma(a, 0, 3)
    scale_q(a, 10)
    a("s_waitcnt vmcnt(0) lgkmcnt(0)\ns_barrier")
    call_dma(a, 1, 1)
    call_dma(a, 0, 4)
    call_dma(a, 1, 2)
    a(f"s_mov_b32 s{sM}, {SK}\ns_mov_b32 s{sMend}, {SK + 7}\ns_mov_b32 s{sRb}, {RB}\ns_mov_b32 s{sNext}, {RB}\ns_mov_b32 s{sRp}, -1\ns_setprio 0")
    stamp(a, 5)
    a("s_branch LA_start")
    a("LA_lead:")
    poll_f1(a)
    stamp(a, 1)
    load_q(a)
    for blk in range(2):
        call_dma(a, 0, blk)
    scale_q(a, 10)
    a(f"""
    s_cmp_lt_u32 s2, 160
    s_cselect_b32 s{sT0}, s{sJ}, 0
    s_cmp_eq_u32 s{sT0}, 1
    s_cselect_b32 s{sRp}, {SK + 1}, -1
    s_waitcnt vmcnt(5) lgkmcnt(0)
    s_barrier
    s_mov_b32 s{sM}, 0
    s_mov_b32 s{sMend}, 7
    s_mov_b32 s{sRb}, {RA}
    s_mov_b32 s{sNext}, {RA + BLK}
    """)
    stamp(a, 3)
    attention(a)
    a(f"s_lshl_b32 s{sT2}, s{sQB}, 2\ns_add_u32 s{sT2}, s{sT2}, s{sJ}")
    c3_off(a, sT3, sT2, sRole)
    a("s_waitcnt vmcnt(0)")
    count_in(a, sT3, vP, vP + 1)
    stamp(a, 6)
    a(f"s_cmp_eq_u32 s{sRole}, 1\ns_cbranch_scc1 LP_end")
    a.c("role-A waves: first half of K while role B finishes, second half once it is published")
    a(f"""
    s_and_b32 s{sT0}, s{sHead}, 3
    s_lshl_b32 s{sT1}, s{sBr}, 2
    s_add_u32 s{sT0}, s{sT0}, s{sT1}
    s_lshl_b32 s{sT0}, s{sT0}, 7
    s_add_u32 s{sT0}, s{sT0}, {WS_C4}
    """)
    poll_counter(a, vP + 4, f"s{sT0}", 20, 1)
    for r in range(40):
        a(f"v_mov_b32 v{pACC + r}, 0")
    G = lambda i: LDS_BYTES - (11 - i) * 10240
    Lo = lambda i: RB + i * 10240
    assert SK == 3 and G(0) >= RB + 2 * BLK and G(3) >= RB + RING and Lo(2) <= RB + BLK and Lo(4) <= G(0)
    stamp(a, 20)
    a("s_barrier")
    stamp(a, 21)
    call_dma(a, 1, 7)
    wo_dma(a, 0, 8, G(3))
    stamp(a, 22)
    a("s_waitcnt vmcnt(20)")
    stamp(a, 25)
    a("s_barrier")
    stamp(a, 5)
    wo_dma(a, 8, 11, G(0))
    a(f"s_mov_b32 s{sPh}, 0\ns_call_b64 s[{sLnk}:{sLnk+1}], LP_fetch")
    stamp(a, 26)
    a("s_barrier")
    stamp(a, 28)
    wo_dma(a, 11, 13, Lo(0))
    a("s_waitcnt vmcnt(0)")
    stamp(a, 29)
    a("s_barrier")
    wo_dma(a, 13, 15, Lo(2))
    call_mm(a, "LP_hi", [G(3), G(4), G(5), G(6), G(7)])
    call_mm(a, "LP_lo", [G(8), G(9), G(10), G(0), G(1)])
    a("s_waitcnt vmcnt(0)\ns_barrier")
    stamp(a, 30)
    wo_dma(a, 15, 20, G(3))
    a(f"s_mov_b32 s{sPh}, 1\ns_call_b64 s[{sLnk}:{sLnk+1}], LP_fetch")
    a("s_barrier")
    stamp(a, 2)
    a("s_waitcnt vmcnt(5)")
    call_mm(a, "LP_hi", [G(2), Lo(0), Lo(1), Lo(2), Lo(3)])
    a("s_waitcnt vmcnt(0)")
    call_mm(a, "LP_lo", [G(3), G(4), G(5), G(6), G(7)])
    out_store(a)
    a("LP_end:")
    if common.STAMP:
        a("s_waitcnt vmcnt(0)")
        stamp(a, 7)
        stamp_flush(a, 4)
    a("LF_end:\ns_endpgm")
    dma_sub(a)
    publish_sub(a)
    attn_setup(a)
    o_fetch_sub(a)
    oproj_sub(a, "LP_hi", 0)
    oproj_sub(a, "LP_lo", 5)
    repack_steps(a)
    slow_path(a)
    a("LF_codeend:")


def build():
    a = Asm()
    label = NAME + "_kernel"
    a('.amdgcn_target "amdgcn-amd-amdhsa--gfx950"\n.text')
    gen(a, label)
    return (HEADER + f"; @launch grid=(256,1,1) block=(512,1,1) lds={LDS_BYTES}\n" + a.text()
            + '.section .rodata,"a"\n.p2align 6\n' + kernel_desc(label, NVGPR, NVGPR, 100))


if __name__ == "__main__":
    import sys
    for x in sys.argv[2:]:
        if '=' in x:
            k, v = x.split('='); globals()[k] = int(v)
        else:
            OPT.add(x)
    if 'dbgstamp' in OPT:
        common.STAMP = True
    out = sys.argv[1] if len(sys.argv) > 1 else f"cdna_kernels/{NAME}.s"
    open(out, "w").write(build())
```

```python
import sys, os
sys.path.insert(0, "gen")
import dev
from dev import *
import fk, common
common.STAMP = 'stamp' in sys.argv
for x in sys.argv[1:]:
    if '=' in x:
        k, v = x.split('='); setattr(fk, k, int(v))
    elif x != 'stamp': fk.OPT.add(x)

def assemble1(asm, tag):
    os.makedirs("dev", exist_ok=True)
    full = cl.with_harness_metadata(asm, NAME + "_kernel", 9, launch_lists=True)
    s, co = f"dev/{tag}.s", f"dev/{tag}.co"
    open(s, "w").write(full)
    r = subprocess.run(["clang", "-x", "assembler", "-target", "amdgcn-amd-amdhsa",
                        "-mcpu=gfx950", s, "-o", co], capture_output=True, text=True)
    if r.returncode != 0:
        print(r.stderr[:4000]); raise SystemExit(1)
    p = cl.address_register_problem(co, NAME + "_kernel")
    if p: print(p); raise SystemExit(1)
    g, b, lds = cl.parse_launch_directive(asm)
    return co, [cl.Launch(NAME + "_kernel", g, b, lds)]

def t_unimage(u):
    return u.reshape(64, 80, 32, 8).transpose(0, 2, 1, 3).reshape(2048, 640)

def v_unimage(u):
    u = u.reshape(64, 2, 2, 640, 2, 4)
    return u.transpose(0, 1, 4, 2, 5, 3).reshape(2048, 640)

def check_images(R, qkv, o):
    for b in range(2):
        rd = lambda kind: R.ws_read((b * 4 + kind) * fk.IMG, fk.IMG // 2)
        q = from_u16(t_unimage(rd(0))); k = from_u16(t_unimage(rd(1))); v = from_u16(v_unimage(rd(2))); og = from_u16(t_unimage(rd(3)))
        print("branch", b, "Q", np.abs(q - qkv[b][:, :640]).max(), "K", np.abs(k - qkv[b][:, 640:1280]).max(),
              "V", np.abs(v - qkv[b][:, 1280:]).max(), "O", np.abs(og - o[b]).max(), "O nan", np.isnan(og).sum())

def stamps(R, stages=True):
    rt = R.ws_read(fk.WS_STAMP, 2048 * 64).view(np.uint32).reshape(256, 8, 32).astype(np.int64)
    t0 = rt[:, :, 0].min()
    names = {0: ["start", "F1 seen", "O(b) seen", "attn start", "attn end", "oproj start", "O flag", "end"],
             1: ["start", "gemm first data", "gemm A done", "gemm B done", "attn end", "attn start", "O flag", "end"]}
    for role in (0, 1):
        for i in range(8):
            if names[role][i] == "-": continue
            r = (rt[:224, 4*role:4*role+4, i] - t0) / 100.0
            print(f"  role {'AB'[role]} {names[role][i]:16s} min {r.min():6.2f} med {np.median(r):6.2f} max {r.max():6.2f}")
    if stages:
        r = (rt[:224, 0][:, [8 + b for b in fk.stage_barriers()] + [27]] - t0) / 100.0
        print("  barrier times med:", " ".join(f"{x:.2f}" for x in np.median(r, 0)))
        print("  barrier times max:", " ".join(f"{x:.2f}" for x in r.max(0)))

if __name__ == "__main__":
    co, launches = assemble1(fk.build(), "fk")
    if not os.path.exists('/dev/kfd'): print("assembled"); raise SystemExit
    d = make_inputs(0)
    qkv, o, out = exact(d)
    R = Runner(d); R.poison()
    R.load(co, launches)
    R.run(extra=3)
    check_images(R, qkv, o)
    g = R.get_out()
    print("out err vs fp64", np.abs(g - out).max(), "nan", np.isnan(g).sum(), "dbg", R.get_dbg()[:8])
    print("time warm", R.time(), "cold", R.time(cold=True))
    g = R.get_out()
    print("after replays: out err", np.abs(g - out).max(), "nan", np.isnan(g).sum())
    if common.STAMP:
        print('cold'); R.time(5, cold=True); stamps(R)
        print('warm'); R.time(5); stamps(R)
```

```python
import sys, os
sys.path.insert(0, "gen")
args = sys.argv[1:]
sys.argv = sys.argv[:1]
from test_fk import *
common.STAMP = True
modes = [int(x[1:]) for x in args if x.startswith('@')] or [2]
verbose = '-v' in args
variants = [x for x in args if not x.startswith('@') and x != '-v']
import importlib
cos = []; bl = []
for v in variants:
    importlib.reload(fk)
    for x in v.split('+'):
        if '=' in x:
            k, val = x.split('='); setattr(fk, k, [int(z) for z in val.split(',')] if ',' in val else int(val))
        elif x != 'base': fk.OPT.add(x)
    bl.append(list(range(12)) + [fk.LAST_BAR])
    cos.append(assemble1(fk.build(), "fk_" + v.replace('=', '').replace('+', '_').replace(',', '')))
if not os.path.exists('/dev/kfd'): print("assembled"); raise SystemExit
d = make_inputs(0)
qkv, o, out = exact(d)
R = Runner(d); R.poison()
def summary():
    rt = R.ws_read(fk.WS_STAMP, 2048 * 64).view(np.uint32).reshape(256, 8, 32).astype(np.int64)
    t0 = rt[:, :, 0].min()
    f = lambda role, i, fn: fn((rt[:224, 4*role:4*role+4, i] - t0) / 100.0)
    return [f(1, 1, np.median), f(1, 2, np.median), f(0, 3, np.median), f(1, 5, np.median), f(0, 4, np.median), f(1, 4, np.median), f(1, 4, np.max), f(0, 2, np.max), (rt[:, :, 7].max() - t0) / 100.0]
print("cols: first data | gemmA done | A attn start | B attn start | A attn end | B attn end med | B attn end max | O(b) seen max | end | events")
for rep in range(2):
    for v, (co, launches), bars in zip(variants, cos, bl):
        R.load(co, launches)
        for m in modes:
            rows = []; ev = []
            for it in range(7):
                ev.append(R.time(1, cold=m)[0]); rows.append(summary())
            err = np.abs(R.get_out() - out).max()
            print(f"{v:28s} cold={m} " + " ".join(f"{x:6.2f}" for x in np.median(np.array(rows), 0)) + f"  ev {np.median(ev):6.2f} err {err:.4f}", flush=True)
            if verbose and rep == 1:
                rt = R.ws_read(fk.WS_STAMP, 2048 * 64).view(np.uint32).reshape(256, 8, 32).astype(np.int64)
                t0 = rt[:, :, 0].min()
                r = (rt[:224, 0][:, [8 + b for b in bars] + [27, 1]] - t0) / 100.0
                print("    bars", bars, "flag, F1 seen")
                print("    med:", " ".join(f"{x:.2f}" for x in np.median(r, 0)))
                print("    max:", " ".join(f"{x:.2f}" for x in r.max(0)))
                lst = (("gemmA done", 4, 2), ("A start", 0, 3), ("B gemm done", 4, 3), ("B flag", 4, 27), ("B F1 seen", 4, 26), ("B start", 4, 5), ("A attn end", 0, 4), ("A O flag", 0, 6),
                       ("A at M8", 0, 20), ("M8", 0, 21), ("wo issued", 0, 22), ("A at M9", 0, 25), ("M9", 0, 5), ("A at M10", 0, 26), ("M10", 0, 28), ("A at E1", 0, 29), ("MM(a) done", 0, 30),
                       ("B end", 4, 4), ("B O flag", 4, 6), ("A O(b) seen", 0, 2), ("A end", 0, 7))
                for nm, w, i in lst:
                    g = (rt[:224, w, i] - t0) / 100.0; h = (rt[224:, w, i] - t0) / 100.0
                    print(f"    {nm:14s} min {g.min():.2f} med {np.median(g):.2f} max {g.max():.2f} | ti7: min {h.min():.2f} med {np.median(h):.2f} max {h.max():.2f}")
                for nm, w, i in (("#0", 0, 8), ("#10", 0, 18), ("#15", 0, 23), ("A start", 0, 3), ("A attn end", 0, 4), ("B end", 4, 4)):
                    g = (rt[:, w, i] - t0) / 100.0
                    print(f"    by xcd {nm:11s}", " ".join(f"{np.median(g[x::8]):.2f}/{g[x::8].max():.2f}" for x in range(8)))
                g = (rt[:, 4, 4] - rt[:, 0, 3]) / 100.0
                print(f"    by xcd attn dur   ", " ".join(f"{np.median(g[x::8]):.2f}/{g[x::8].max():.2f}" for x in range(8)))
```

```python
from common import Asm, vr, sr, f32bits, kernel_head, kernel_desc, QSCALE, S, D, HEADER, NAME
import common

OPT = set()
SK = 3

TILE = 40960
IMG = 64 * TILE
WS_WO = 8 * IMG
WO_SLAB = 204800
WO_HALF = WO_SLAB // 2
WS_C1 = WS_WO + 8 * WO_SLAB
WS_C3 = WS_C1 + 256 * 128
WS_C4 = WS_C3 + 128 * 128
WS_END = WS_C1 + 512 * 128
WS_STAMP = WS_END + 65536
WS_MB = 0

LDS_BYTES = 163840
GSL = 16384
CH = 11264
BLK = 2 * CH
RING = 3 * BLK
ONES = [90112, 0]
RB = 5120
RA = LDS_BYTES - RING
RPK = RB + RING
XFER = 81920
LCNT = 95232

sX, sWt, sWS, sOut, sDbg = 8, 12, 16, 20, 24
sPtr = 28
sW, sJ, sRole = 40, 41, 42
sHead, sQB, sTI, sTB = 43, 44, 45, 46
sT0, sT1, sT2, sT3, sT4 = 47, 48, 49, 50, 51
sIt, sSlot, sKB, sInc = 52, 53, 54, 55
sXo, sWo = 56, 57
sNext, sRb, sRe, sRem = 52, 53, 54, 55
sM, sMend = 56, 57
sOm, sExt = 58, 59
sSpin = 60
sBr = 61
sU0, sU1, sImg, sPh = 96, 97, 98, 99
sExp = 3
sDone = 36
sRp = 96
sE = 56
sLnk = 62
STAMP_S = 64

SPIN = 1 << 15
SLEEP = 6


NST = 32


def stamp(a, i):
    if common.STAMP:
        a(f"s_memrealtime s[4:5]\ns_waitcnt lgkmcnt(0)\ns_mov_b32 s{STAMP_S+i}, s4")


def stamp_cyc(a, i):
    if common.STAMP:
        a(f"s_memtime s[4:5]\ns_waitcnt lgkmcnt(0)\ns_mov_b32 s{STAMP_S+i}, s4")


def stamp_idx(a, base, sreg):
    if common.STAMP and 'cyc' in OPT:
        a(f"s_memtime s[4:5]\ns_mov_b32 m0, s{sreg}\ns_waitcnt lgkmcnt(0)\ns_movreld_b32 s{STAMP_S+base}, s4")


def stamp_flush(a, vt):
    if not common.STAMP:
        return
    a(f"""
    s_mov_b64 exec, 1
    s_lshl_b32 s{sT0}, s2, 3
    s_add_u32 s{sT0}, s{sT0}, s{sW}
    s_lshl_b32 s{sT0}, s{sT0}, 7
    s_add_u32 s{sT0}, s{sT0}, {WS_STAMP}
    v_mov_b32 v{vt+2}, 0
    """)
    for i in range(NST):
        a(f"v_mov_b32 v{vt}, s{STAMP_S+i}")
        a(f"buffer_store_dword v{vt}, v{vt+2}, s[{sWS}:{sWS+3}], s{sT0} offen offset:{4*i}")
    if 'dbgstamp' in OPT:
        a(f"s_cmp_eq_u32 s2, 100\ns_cbranch_scc0 LF_nodbg\ns_cmp_eq_u32 s{sJ}, 0\ns_cbranch_scc0 LF_nodbg\ns_lshl_b32 s{sT0}, s{sRole}, 5")
        for i in range(8):
            a(f"s_sub_u32 s{sT1}, s{STAMP_S+i}, s{STAMP_S}")
            a(f"v_mov_b32 v{vt}, s{sT1}")
            a(f"buffer_store_dword v{vt}, v{vt+2}, s[{sDbg}:{sDbg+3}], s{sT0} offen offset:{4*i}")
        a("LF_nodbg:")


def WSR():
    return f"s[{sWS}:{sWS+3}]"


_lbl = [0]


def poll(a, loads, expect, vtmp):
    _lbl[0] += 1
    L = f"LF_poll{_lbl[0]}"
    a(f"s_mov_b32 s{sSpin}, {SPIN}\n{L}:")
    for i, (vo, srd, so) in enumerate(loads):
        a(f"buffer_load_dword v{vtmp+i}, v{vo}, {srd}, {so} offen sc1")
    a("s_waitcnt vmcnt(0)")
    for i in range(1, len(loads)):
        a(f"v_min_u32 v{vtmp}, v{vtmp}, v{vtmp+i}")
    a(f"""
    v_cmp_gt_u32 vcc, {expect}, v{vtmp}
    s_cbranch_vccz {L}_ok
    s_sleep {SLEEP}
    s_sub_u32 s{sSpin}, s{sSpin}, 1
    s_cbranch_scc0 {L}
    {L}_ok:
    """)


def poll_counter(a, vo, so, expect, mask):
    _lbl[0] += 1
    L = f"LF_pc{_lbl[0]}"
    rd = (f"v_mov_b32 v{vPS}, 0\nbuffer_atomic_add v{vPS}, v{vo}, {WSR()}, {so} offen sc0 sc1" if 'ldpoll' not in OPT else
          f"buffer_load_dword v{vPS}, v{vo}, {WSR()}, {so} offen sc1")
    a(f"""
    s_mov_b32 s{sSpin}, {SPIN}
    s_mov_b64 exec, {mask}
    {L}:
    {rd}
    s_waitcnt vmcnt(0)
    v_cmp_gt_u32 vcc, {expect}, v{vPS}
    s_cbranch_vccz {L}_ok
    s_sleep {SLEEP}
    s_sub_u32 s{sSpin}, s{sSpin}, 1
    s_cbranch_scc0 {L}
    {L}_ok:
    s_mov_b64 exec, -1
    """)


def count_in(a, soff, vz, vd):
    a(f"""
    v_mov_b32 v{vz}, 0
    v_mov_b32 v{vd}, 1
    s_mov_b64 exec, 1
    buffer_atomic_add v{vd}, v{vz}, {WSR()}, s{soff} offen sc1
    s_mov_b64 exec, -1
    """)


gXF = 0
gWF = 160
gWA = [184, 185, 186, 187]
gXA = 188
gT = 189
gACC = 192


PUB_BAR = 12
LAST_BAR = 16
PAIR_BAR = 20
NFIRST = 4
MAXISS = 3
PF_BAR = 3
ROT = 1


def stage_barriers():
    return list(range(0, 12)) + [LAST_BAR]


def gemm_schedule():
    items = [x for n in range(10) for x in (("X", n), ("W", n))] + [("W", n) for n in range(10, 20)]
    rel = lambda it: it[1] + (1 if it[0] == "X" else 2)
    free = list(range(10))
    slot, when, freed = {}, {}, set()
    k = 0
    for bar in range(-1, 12):
        for it in items:
            if it in slot and it not in freed and rel(it) <= bar:
                free.append(slot[it])
                freed.add(it)
        n = 0
        while k < len(items) and free and n < (NFIRST if bar == -1 else MAXISS) and bar != 10:
            slot[items[k]] = free.pop(0)
            when[items[k]] = bar
            k += 1
            n += 1
    assert k == len(items) and when[("W", LAST_BAR - 1)] <= 9 and when[("W", 17)] == 11
    order = [slot[("W", n)] for n in (15, 16, 17, 18, 19, 13, 14, 10, 11, 12)]
    assert sorted(order) == list(range(10)), order
    slot = {it: order.index(v) for it, v in slot.items()}
    return items, slot, when


LCNT0 = 2 * GSL


def lane_id(a, v):
    a(f"v_mbcnt_lo_u32_b32 v{v}, -1, 0\nv_mbcnt_hi_u32_b32 v{v}, -1, v{v}")


def drained(a):
    a(f"s_waitcnt vmcnt(0)\ns_mov_b64 exec, 1\nds_add_u32 v{gT+1}, v{gT+2}\ns_mov_b64 exec, -1\ns_mov_b32 s{sDone}, 1")


def gemm_body(a, vtype):
    L = "LG_v" if vtype else "LG_q"
    items, slot, when = gemm_schedule()

    def kc(q):
        return ((q & 3, (q >> 2) & 3) if q >= 144 else ((q >> 2) & 3, q & 3))

    def wreads(q):
        ks, c = kc(q)
        d = gWF + 4 * (q % 6)
        return [f"ds_read_b64_tr_b16 {vr(d + 2*u, 2)}, v{gWA[c]} offset:{ks*4096 + u*1024}" for u in range(2)]

    def xreads(n):
        for ks in range(4):
            d = gXF + 4 * (4 * n + ks)
            a(f"v_xor_b32 v{d}, {32 * ks}, v{gXA}")
        for ks in range(4):
            d = gXF + 4 * (4 * n + ks)
            a(f"ds_read_b128 {vr(d,4)}, v{d}")

    def advance(n):
        da = (slot[("W", n)] - slot[("W", n - 1)]) * GSL
        a(f"s_cmp_eq_u32 s{sPh}, 1\ns_mov_b32 s{sInc}, {da & 0xffffffff}")
        if n < 10:
            db = (slot[("W", n + 10)] - slot[("W", n + 9)]) * GSL
            a(f"s_cmov_b32 s{sInc}, {db & 0xffffffff}")
        for r in gWA:
            a(f"v_add_u32 v{r}, s{sInc}, v{r}")

    def pack(c):
        out = []
        A = gACC + 16 * c
        out += [f"v_cvt_pk_bf16_f32 v{gACC + 8*c + j}, v{A+2*j}, v{A+2*j+1}" for j in range(8)]
        return out

    def stores(c):
        out = []
        for i in range(2):
            d = vr(gACC + 8*c + 4*i, 4)
            if vtype:
                out.append(f"buffer_store_dwordx4 {d}, v{gT}, {WSR()}, s{sE + i} offen offset:{c * 512} sc1")
            else:
                out.append(f"buffer_store_dwordx4 {d}, v{gT}, {WSR()}, s{sE + (c >> 1)} offen offset:{(c & 1) * 2048 + i * 1024} sc1")
        return out

    a("s_barrier")
    a.c("this workgroup has cleared its share of the counters: count it in")
    a(f"""
    s_cmp_eq_u32 s{sW}, 4
    s_cbranch_scc0 {L}_nocount
    s_and_b32 s{sT0}, s2, 31
    s_lshl_b32 s{sT0}, s{sT0}, 2
    s_add_u32 s{sT0}, s{sT0}, 128
    v_mov_b32 v{gT+1}, 0
    v_mov_b32 v{gT+2}, 1
    s_mov_b64 exec, 1
    buffer_atomic_add v{gT+2}, v{gT+1}, s[{sDbg}:{sDbg+3}], s{sT0} offen sc1
    s_mov_b64 exec, -1
    {L}_nocount:
    v_mov_b32 v{gT+1}, {LCNT0}
    v_mov_b32 v{gT+2}, 1
    s_mov_b32 s{sDone}, 1
    """)
    stamp(a, 1)
    xreads(0)
    for q in range(6):
        for r in wreads(q):
            a(r)
    a(f"{L}_body:")
    for q in range(160):
        n = q >> 4
        ks, c = kc(q)
        if q <= 154:
            a(f"s_waitcnt lgkmcnt({2 * (min(q + 5, 159) - q)})")
        elif q == 155:
            a("s_waitcnt lgkmcnt(0)")
        x, w = vr(gXF + 4 * (4 * n + ks), 4), vr(gWF + 4 * (q % 6), 4)
        A, B = (x, w) if vtype else (w, x)
        d = vr(gACC + 16 * c, 16)
        a(f"v_mfma_f32_32x32x16_bf16 {d}, {A}, {B}, {'0' if q < 4 else d}")
        if (q & 15) == 10:
            if PUB_BAR <= n + 11 <= LAST_BAR:
                a.c("phase b: report once that this wave's stores have drained")
                if n + 11 < LAST_BAR:
                    a(f"s_getreg_b32 s{sT0}, hwreg(HW_REG_IB_STS, 0, 4)\ns_or_b32 s{sT0}, s{sT0}, s{sDone}")
                else:
                    a(f"s_cmp_lg_u32 s{sDone}, 0")
                a(f"s_cbranch_scc1 {L}_nd{n}")
                drained(a)
                a(f"{L}_nd{n}:")
            advance(n + 1)
            both = n + 11 in stage_barriers() or n + 11 == PAIR_BAR
            if both:
                a("s_barrier")
            a(f"s_cbranch_scc1 {L}_nx{n}")
            if not both:
                a("s_barrier")
            if n + 1 < 10:
                dx = (slot[("X", n + 1)] - slot[("X", n)]) * GSL
                a(f"v_add_u32 v{gXA}, {dx & 0xffffffff}, v{gXA}")
                xreads(n + 1)
            a(f"{L}_nx{n}:")
        if q + 6 < 160:
            for r in wreads(q + 6):
                a(r)
        if q == 144:
            a("s_setprio 2")
        if q in (150, 154):
            for x in pack((q - 150) // 4):
                a(x)
        if q in (151, 155):
            for x in stores((q - 151) // 4):
                a(x)
        if q == 156:
            a("s_nop 7")
        if q == 158:
            for x in pack(2):
                a(x)
    for x in stores(2):
        a(x)
    a(f"s_cbranch_scc1 {L}_nopre")
    for q in range(6):
        for r in wreads(q):
            a(r)
    a(f"{L}_nopre:\ns_nop 9")
    for x in pack(3) + stores(3):
        a(x)
    a(f"s_cbranch_scc1 LG_done")
    stamp(a, 2)
    next_units(a)
    step = 6 * 1024 if vtype else 5 * 4096
    a(f"s_add_u32 s{sE}, s{sE}, {step}\ns_add_u32 s{sE+1}, s{sE+1}, {step}\ns_mov_b32 s{sDone}, 0")
    if vtype:
        a(f"s_cmp_eq_u32 s{sTI}, 7\ns_cbranch_scc1 LG_idle")
    a(f"s_branch {L}_body")


def next_units(a):
    a(f"""
    s_mov_b32 s{sPh}, 1
    s_cmp_ge_u32 s{sTI}, 5
    s_cselect_b32 s{sT0}, 6, 5
    s_add_u32 s{sU0}, s{sU0}, s{sT0}
    s_add_u32 s{sU1}, s{sU1}, s{sT0}
    """)


def publish_sub(a):
    t = vPS
    a(f"""
    LG_publish:
    v_cmp_lt_u32 vcc, 31, v0
    v_mov_b32 v{t+3}, s{sU0}
    v_mov_b32 v{t+4}, s{sU1}
    v_cndmask_b32 v{t+3}, v{t+3}, v{t+4}, vcc
    v_mul_u32_u24 v{t+4}, 205, v{t+3}
    v_lshrrev_b32 v{t+4}, 11, v{t+4}
    v_mul_u32_u24 v{t+5}, 10, v{t+4}
    v_sub_u32 v{t+3}, v{t+3}, v{t+5}
    v_lshlrev_b32 v{t+3}, 3, v{t+3}
    v_and_b32 v{t+5}, 31, v0
    v_lshl_add_u32 v{t+4}, v{t+5}, 2, v{t+4}
    v_lshlrev_b32 v{t+4}, 7, v{t+4}
    v_mul_u32_u24 v{t+5}, 5, v{t+5}
    v_lshrrev_b32 v{t+5}, 1, v{t+5}
    v_add_u32 v{t+5}, 2, v{t+5}
    v_sub_u32 v{t+5}, v{t+5}, v{t+3}
    v_cmp_gt_u32 vcc, 10, v{t+5}
    v_mov_b32 v{t+1}, 1
    s_lshl_b32 s{sT1}, s{sBr}, 14
    s_add_u32 s{sT1}, s{sT1}, {WS_C1}
    s_mov_b64 exec, vcc
    buffer_atomic_add v{t+1}, v{t+4}, {WSR()}, s{sT1} offen sc1
    s_mov_b64 exec, -1
    s_setpc_b64 s[{sLnk}:{sLnk+1}]
    """)


def gemm_compute(a):
    items, slot, when = gemm_schedule()
    t0, t1, t2 = 8, 9, 10
    a(f"""
    v_and_b32 v{t0}, 31, v0
    v_lshrrev_b32 v{t1}, 5, v0
    v_lshrrev_b32 v{t2}, 1, v{t0}
    v_and_b32 v{t2}, 7, v{t2}
    v_xor_b32 v{t2}, v{t2}, v{t1}
    v_lshlrev_b32 v{t2}, 4, v{t2}
    v_lshlrev_b32 v{t0}, 7, v{t0}
    v_add_u32 v{t2}, v{t2}, v{t0}
    s_lshl_b32 s{sT0}, s{sJ}, 12
    s_add_u32 s{sT0}, s{sT0}, {slot[("X", 0)] * GSL}
    v_add_u32 v{gXA}, s{sT0}, v{t2}
    v_lshrrev_b32 v{t0}, 2, v0
    v_and_b32 v{t0}, 3, v{t0}
    v_lshlrev_b32 v{t2}, 3, v{t1}
    v_add_u32 v{t2}, v{t2}, v{t0}
    v_lshlrev_b32 v{t2}, 8, v{t2}
    v_lshlrev_b32 v{t0}, 6, v{t0}
    v_add_u32 v{t2}, v{t2}, v{t0}
    v_and_b32 v{t0}, 16, v0
    v_lshlrev_b32 v{t0}, 1, v{t0}
    v_add_u32 v{t2}, v{t2}, v{t0}
    v_add_u32 v{t2}, {slot[("W", 0)] * GSL}, v{t2}
    v_and_b32 v{t0}, 1, v0
    v_and_b32 v{t1}, 2, v0
    s_cmp_ge_u32 s{sTI}, 5
    s_cselect_b32 s{sT0}, 3, 4
    s_cselect_b32 s{sT1}, 3, 2
    v_lshlrev_b32 v{t0}, s{sT0}, v{t0}
    v_lshlrev_b32 v{t1}, s{sT1}, v{t1}
    v_add3_u32 v{gWA[0]}, v{t2}, v{t0}, v{t1}
    v_xor_b32 v{gWA[1]}, 64, v{gWA[0]}
    v_xor_b32 v{gWA[2]}, 128, v{gWA[0]}
    v_xor_b32 v{gWA[3]}, 192, v{gWA[0]}
    s_lshl_b32 s{sT0}, s{sTB}, 2
    s_add_u32 s{sT0}, s{sT0}, s{sJ}
    s_mul_i32 s{sT0}, s{sT0}, {TILE}
    s_add_u32 s{sT0}, s{sT0}, s{sImg}
    v_lshlrev_b32 v{gT}, 4, v0
    s_waitcnt vmcnt(0)
    s_cmp_ge_u32 s{sTI}, 5
    s_cbranch_scc1 LG_vtype
    s_lshl_b32 s{sE}, s{sU0}, 12
    s_lshl_b32 s{sE+1}, s{sU1}, 12
    s_cmp_ge_u32 s{sU0}, 10
    s_cselect_b32 s{sT3}, {IMG - 40960}, 0
    s_add_u32 s{sE}, s{sE}, s{sT3}
    s_cmp_ge_u32 s{sU1}, 10
    s_cselect_b32 s{sT3}, {IMG - 40960}, 0
    s_add_u32 s{sE+1}, s{sE+1}, s{sT3}
    s_add_u32 s{sE}, s{sE}, s{sT0}
    s_add_u32 s{sE+1}, s{sE+1}, s{sT0}
    """)
    gemm_body(a, False)
    a(f"""
    LG_vtype:
    s_lshl_b32 s{sE}, s{sU0}, 10
    s_add_u32 s{sE}, s{sE}, {2 * IMG - 20480}
    s_add_u32 s{sE}, s{sE}, s{sT0}
    s_add_u32 s{sE+1}, s{sE}, 20480
    v_lshrrev_b32 v8, 5, v0
    v_mul_u32_u24 v8, 10240 - 512, v8
    v_add_u32 v{gT}, v{gT}, v8
    """)
    gemm_body(a, True)


def gemm_loader(a):
    items, slot, when = gemm_schedule()
    vE, vO, vWs, vCnt = 230, 231, 232, 233
    sKX, sKW = sKB, sSlot
    a(f"""
    v_lshrrev_b32 v5, 3, v0
    v_mul_u32_u24 v5, 1280, v5
    v_and_b32 v6, 7, v0
    v_lshrrev_b32 v7, 4, v0
    v_xor_b32 v6, v6, v7
    v_lshlrev_b32 v6, 4, v6
    v_add_u32 v{vE}, v5, v6
    v_xor_b32 v6, 64, v6
    v_add_u32 v{vO}, v5, v6
    v_add_u32 v{vO}, {8 * 1280 - 1024}, v{vO}
    v_lshrrev_b32 v5, 2, v0
    v_and_b32 v5, 3, v5
    v_xor_b32 v5, v5, v7
    v_lshrrev_b32 v6, 1, v5
    s_sub_u32 s{sT0}, s{sU1}, s{sU0}
    s_lshl_b32 s{sT0}, s{sT0}, 7
    v_mul_u32_u24 v6, s{sT0}, v6
    v_and_b32 v5, 1, v5
    v_lshl_add_u32 v5, v5, 6, v6
    v_and_b32 v6, 3, v0
    v_lshl_add_u32 v5, v6, 4, v5
    v_mul_u32_u24 v6, 3840, v7
    v_add_u32 v{vWs}, v5, v6
    s_lshl_b32 s{sXo}, s{sTB}, 2
    s_add_u32 s{sXo}, s{sXo}, s{sJ}
    s_mul_i32 s{sXo}, s{sXo}, {32 * 1280}
    s_mul_i32 s{sWo}, s{sJ}, {16 * 3840}
    s_lshl_b32 s{sT0}, s{sU0}, 7
    s_add_u32 s{sWo}, s{sWo}, s{sT0}
    s_lshl_b32 s{sInc}, s{sJ}, 12
    """)
    a.c("workgroups that share a tile start at different k-blocks, so that they fill the L2 together")
    if ROT:
        a(f"""
        s_and_b32 s{sKX}, s{sTB}, 3
        s_mul_i32 s{sKX}, s{sKX}, 5
        s_add_u32 s{sKX}, s{sKX}, 1
        s_lshr_b32 s{sKX}, s{sKX}, 1
        s_add_u32 s{sKX}, s{sKX}, s{sTI}
        s_cmp_ge_u32 s{sKX}, 10
        s_cselect_b32 s{sT0}, 10, 0
        s_sub_u32 s{sKX}, s{sKX}, s{sT0}
        """)
    else:
        a(f"s_and_b32 s{sKX}, s{sTI}, 1")
    a(f"s_mov_b32 s{sKW}, s{sKX}\ns_mov_b32 s{sIt}, 0")
    a(f"""
    s_mov_b32 s{sX+2}, {S * D * 2}
    s_mov_b32 s{sX+3}, 0x00020000
    s_mov_b32 s{sWt+2}, {D * 3 * D * 2}
    s_mov_b32 s{sWt+3}, 0x00020000
    s_waitcnt lgkmcnt(0)
    s_and_b32 s{sX+1}, s{sX+1}, 0xffff
    s_mov_b32 s{sWt}, s{sPtr}
    s_and_b32 s{sWt+1}, s{sPtr+1}, 0xffff
    s_branch LL_go
    """)
    a(f"""
    LL_X:
    s_lshl_b32 s{sT0}, s{sKX}, 7
    s_add_u32 s{sT0}, s{sT0}, s{sXo}
    s_add_u32 s{sKX}, s{sKX}, 1
    buffer_load_dwordx4 v{vE}, s[{sX}:{sX+3}], s{sT0} offen lds
    buffer_load_dwordx4 v{vO}, s[{sX}:{sX+3}], s{sT0} offen offset:1024 lds
    s_add_u32 m0, m0, 2048
    s_add_u32 s{sT0}, s{sT0}, {16 * 1280}
    buffer_load_dwordx4 v{vE}, s[{sX}:{sX+3}], s{sT0} offen lds
    buffer_load_dwordx4 v{vO}, s[{sX}:{sX+3}], s{sT0} offen offset:1024 lds
    s_cmp_eq_u32 s{sKX}, 10
    s_cselect_b32 s{sKX}, 0, s{sKX}
    s_setpc_b64 s[{sLnk}:{sLnk+1}]
    LL_Wskip:
    s_waitcnt vmcnt(0)
    s_setpc_b64 s[{sLnk}:{sLnk+1}]
    LL_W:
    s_cmp_eq_u32 s{sIt}, 1
    s_cbranch_scc1 LL_Wskip
    s_mul_i32 s{sT1}, s{sKW}, {64 * 3840}
    s_add_u32 s{sT1}, s{sT1}, s{sWo}
    s_add_u32 s{sKW}, s{sKW}, 1
    """)
    for p in range(4):
        a(f"buffer_load_dwordx4 v{vWs}, s[{sWt}:{sWt+3}], s{sT1} offen lds")
        if p < 3:
            a(f"s_add_u32 m0, m0, 1024")
            a(f"s_add_u32 s{sT1}, s{sT1}, {4 * 3840}")
    a(f"""
    s_cmp_eq_u32 s{sKW}, 10
    s_cselect_b32 s{sKW}, 0, s{sKW}
    s_setpc_b64 s[{sLnk}:{sLnk+1}]
    """)
    a("LL_go:")
    q = []

    def issue(it):
        if it == ("W", 10):
            a(f"s_cmp_ge_u32 s{sTI}, 5\ns_cselect_b32 s{sT0}, {6 * 128}, s{sC640}\ns_add_u32 s{sWo}, s{sWo}, s{sT0}")
            a(f"s_cmp_eq_u32 s{sTI}, 7\ns_cselect_b32 s{sIt}, 1, 0")
        a(f"s_add_u32 m0, s{sInc}, {slot[it] * GSL}\ns_call_b64 s[{sLnk}:{sLnk+1}], LL_{it[0]}")
        q.extend([it] * 4)

    def wait_for(names):
        last = max(i for i, x in enumerate(q) if x in names)
        a(f"s_waitcnt vmcnt({min(63, len(q) - 1 - last)})")

    sC640 = sT4
    first = [it for it in items if when[it] == -1]
    for it in first:
        issue(it)
    common_setup(a)
    attn_scalars(a)
    attn_vectors(a)
    repack_setup(a)
    vPf = 234
    a(f"""
    v_mov_b32 v{vCnt}, 0
    s_mul_i32 s{sT1}, s{sJ}, 19
    v_add_u32 v8, s{sT1}, v0
    v_min_u32 v8, 74, v8
    v_mul_u32_u24 v9, 205, v8
    v_lshrrev_b32 v9, 10, v9
    v_mul_u32_u24 v9, 5, v9
    v_add3_u32 v9, v9, v8, 5
    v_lshlrev_b32 v{vPf}, 7, v9
    """)
    bars = stage_barriers()
    for bi, bar in enumerate(bars):
        upto = bars[bi + 1] - 1 if bi + 1 < len(bars) else 19
        wait_for([("X", bar), ("W", upto)] + (["cnt"] if bar == 11 else []))
        if bar == 11:
            a.c("all counters must have been cleared before the first one is used")
            a(f"v_cmp_gt_u32 vcc, 8, v{vCnt}\ns_cbranch_vccz LL_cnt_ok")
            poll(a, [(vP + 5, f"s[{sDbg}:{sDbg+3}]", "0")], 8, vPS)
            a("LL_cnt_ok:")
        a("s_barrier")
        stamp(a, 8 + min(bar, 15))
        if bar == 11:
            a.c("wave 0 publishes the phase-a tile once its four storing waves have reported")
            a(f"""
            s_cmp_lg_u32 s{sJ}, 0
            s_cbranch_scc1 LL_pub
            s_mov_b32 s{sSpin}, {SPIN * 8}
            LL_try:
            ds_read_b32 v{vP}, v{vP+2}
            s_waitcnt lgkmcnt(0)
            v_readfirstlane_b32 s{sT0}, v{vP}
            s_cmp_eq_u32 s{sT0}, 4
            s_cbranch_scc1 LL_try_go
            s_sub_u32 s{sSpin}, s{sSpin}, 1
            s_cbranch_scc0 LL_try
            LL_try_go:
            s_call_b64 s[{sLnk}:{sLnk+1}], LG_publish
            """)
            stamp(a, 27)
            a("LL_pub:")
        a(f"s_mov_b32 s{sC640}, 640")
        for it in items:
            if when[it] == bar:
                issue(it)
        if bar == 10:
            a(f"v_mov_b32 v{vP}, 0\nv_mov_b32 v{vP+2}, {LCNT0}\nds_write_b32 v{vP+2}, v{vP}\ns_waitcnt lgkmcnt(0)")
        if bar == PF_BAR:
            a.c("one load per 128-B line of the phase-b columns of five weight rows brings them on chip ahead of use")
            a(f"""
            s_lshr_b32 s{sT0}, s2, 3
            s_lshl_b32 s{sT0}, s{sT0}, 2
            s_and_b32 s{sT1}, s2, 3
            s_add_u32 s{sT0}, s{sT0}, s{sT1}
            s_mul_i32 s{sT0}, s{sT0}, {5 * 3840}
            s_mov_b64 exec, 0x7ffff
            buffer_load_dword v{vPS}, v{vPf}, s[{sWt}:{sWt+3}], s{sT0} offen
            s_mov_b64 exec, -1
            """)
            q.append("pf")
        if bar == 8:
            a(f"buffer_load_dword v{vCnt}, v{vP+5}, s[{sDbg}:{sDbg+3}], 0 offen sc1")
            q.append("cnt")
    a(f"v_mov_b32 v{vP}, 0\nv_mov_b32 v{vP+2}, {LCNT}\nds_write_b32 v{vP+2}, v{vP}")
    write_ones(a, 0)
    vectors_put(a)
    a("s_branch LA_lead")


vKA, vVA, vT0, vT1 = 1, 2, 3, 14
Qm = [4, 8]
Qe = 12
vL16 = 15
Km = [16, 20]
Ke = 24
Vb = [[28, 32], [36, 40]]
vVbase, vVflag, vE16, vVG = 44, 45, 46, 47
NM = 48
SB = [80, 112]
OA = [144, 160]
vD = 176
vP = 182
vPS = 188
vVB2 = 248
NVGPR = 256


def mfma32(d, a_, b, c):
    return f"v_mfma_f32_32x32x16_bf16 {vr(d,16)}, {vr(a_,4)}, {vr(b,4)}, {c}"


def mfma2b(d, ke_tile, c):
    return (f"v_mfma_f32_32x32x4_2b_bf16 {vr(d,32)}, {vr(Ke + 2 * (ke_tile >> 1), 2)}, {vr(Qe,2)}, {c}"
            f" cbsz:1 abid:{ke_tile & 1}")


def valu_stream(X, Y):
    def e(base, i): return f"v_exp_f32 v{base+i}, v{base+i}"
    def c(j):
        dst = X + 8 * (j // 4) + (j % 4)
        return f"v_cvt_pk_bf16_f32 v{dst}, v{X+2*j}, v{X+2*j+1}"
    out = [e(X, 1)]
    for j in range(16):
        out.append(e(X, 2 * j + 2) if j < 15 else e(Y, 0))
        out.append(c(j))
        if j < 15:
            out.append(e(X, 2 * j + 3))
    return out


def tile_iter(a, ii, half=1):
    par = ii & 1
    X, Y = SB[par], SB[par ^ 1]
    Vc, Vn = Vb[par], Vb[par ^ 1]
    Kc, Kn = Km[par ^ 1], Km[par]
    v = valu_stream(X, Y)
    t1 = (ii + 1) % 4
    t2 = (ii + 2) % 4
    kch = CH if (half == 0) == (ii >= 2) else 0
    ins = {}
    ins[2] = [mfma32(OA[1], Vn[1], Y + 24, vr(OA[1], 16)),
              f"ds_read_b128 {vr(Vn[0],4)}, v{vVA} offset:{t1 * 1280}"]
    ins[7] = [mfma2b(Y, t1, vr(NM, 32))]
    ins[17] = [mfma32(OA[0], Vc[0], X, vr(OA[0], 16)),
               f"ds_read_b128 {vr(Vn[1],4)}, v{vVA} offset:{t1 * 1280 + 640}"]
    ins[23] = [mfma32(Y, Kc, Qm[0], vr(Y, 16)),
               f"ds_read_b128 {vr(Kn,4)}, v{vKA} offset:{kch + 2048 + t2 * 1024}"]
    ins[29] = [mfma32(OA[0], Vc[1], X + 8, vr(OA[0], 16))]
    ins[35] = [mfma32(Y + 16, Kc, Qm[1], vr(Y + 16, 16))]
    ins[41] = [mfma32(OA[1], Vc[0], X + 16, vr(OA[1], 16)),
               "s_waitcnt lgkmcnt(0)"]
    if ii == 0:
        ins[29].append(f"s_add_u32 s{sNext}, s{sNext}, {CH}")
    if ii == 2:
        ins[29].append(f"ds_read2st64_b64 {vr(Ke,4)}, v{vKA} offset0:{kch // 512} offset1:{kch // 512 + 2}")
        ins[44] = [f"v_mad_u32_u24 v{vVA}, v{vVflag}, s{sNext}, v{vVbase}"]
    if half == 0:
        if ii == 1:
            ins[29].append(f"s_cmp_eq_u32 s{sM}, s{sRp}")
            ins[35] += ["s_cbranch_scc1 LR_step", "LA_bar:"]
        if ii == 2 and 'noprio' not in OPT:
            ins[35].append("s_setprio 0")
        if ii == 3:
            ins[29].append(f"s_cmp_lt_u32 s{sM}, s{sMend}")
            ins[35] += ["s_waitcnt vmcnt(0)", "s_barrier"]
            if common.STAMP and 'cyc' in OPT:
                ins[35] += ["s_memtime s[4:5]", f"s_mov_b32 m0, s{sM}", "s_waitcnt lgkmcnt(0)", f"s_movreld_b32 s{STAMP_S+8}, s4"]
            if 'noprio' not in OPT:
                ins[35].append("s_setprio 1")
            ins[35] += ["s_cbranch_scc1 LA_refill", "LA_back:"]
    else:
        if ii == 0:
            ins[35].append(f"s_cmp_eq_u32 s{sNext}, s{sRe}")
        if ii == 1:
            ins[29].append(f"s_cselect_b32 s{sNext}, s{sRb}, s{sNext}")
            ins[35].append(f"s_add_u32 s{sM}, s{sM}, 1")
            ins[44] = [f"v_add_u32 v{vKA}, s{sNext}, v{vL16}"]
        if ii == 3:
            ins[35].append(f"s_sub_u32 s{sRem}, s{sRem}, 1")
    for p, op in enumerate(v):
        for x in ins.get(p, []):
            a(x)
        a(op)


def rowmax(a, X, out0, out1):
    for base, o in ((X, out0), (X + 16, out1)):
        a(f"v_max3_f32 v{o}, v{base}, v{base+1}, v{base+2}")
        for r in range(3, 15, 2):
            a(f"v_max3_f32 v{o}, v{o}, v{base+r}, v{base+r+1}")
        a(f"v_max_f32 v{o}, v{o}, v{base+15}")


def cross_half_max(a, r, tmp):
    a(f"v_mov_b32 v{tmp}, v{r}\ns_nop 1\nv_permlane32_swap_b32 v{tmp}, v{r}\ns_nop 1\nv_max_f32 v{r}, v{r}, v{tmp}")


def fill_nm(a, m0, m1):
    for r in range(16):
        a(f"v_sub_f32 v{NM+r}, 0, v{m0}")
    for r in range(16):
        a(f"v_sub_f32 v{NM+16+r}, 0, v{m1}")


def attn_scalars(a):
    a.c("head offsets: main octs start at (5g+1)>>1; the ext quad shares an oct with the neighbouring head;")
    a.c("arrivals expected per kind: 16 token blocks x number of 64-column units that hold the head")
    a(f"""
    s_mul_i32 s{sOm}, s{sHead}, 5
    s_add_u32 s{sOm}, s{sOm}, 1
    s_lshr_b32 s{sOm}, s{sOm}, 1
    s_lshl_b32 s{sOm}, s{sOm}, 9
    s_and_b32 s{sT0}, s{sHead}, 1
    s_mov_b32 s{sT1}, 1024
    s_cselect_b32 s{sT1}, {(-512 + 8) & 0xffffffff}, s{sT1}
    s_add_u32 s{sExt}, s{sOm}, s{sT1}
    s_min_u32 s{sT0}, s{sOm}, s{sExt}
    s_add_u32 s{sT2}, s{sOm}, 512
    s_max_u32 s{sT1}, s{sExt}, s{sT2}
    s_lshr_b32 s{sT0}, s{sT0}, 12
    s_lshr_b32 s{sT1}, s{sT1}, 12
    s_cmp_eq_u32 s{sT0}, s{sT1}
    s_cselect_b32 s{sExp}, 16, 32
    """)


def attn_vectors(a):
    a(f"""
    s_and_b32 s{sT0}, s{sHead}, 1
    v_lshlrev_b32 v{vL16}, 4, v0
    v_lshrrev_b32 v{vT0}, 5, v0
    v_mul_u32_u24 v{vT1}, {TILE}, v{vT0}
    v_and_b32 v{vP}, 31, v0
    v_lshl_add_u32 v{vE16}, v{vP}, 4, v{vT1}
    """)
    a.c("V rows: 0..15 main dims, 16..19 ext dims, 20 and 24 ones, the others zero (address past the allocation)")
    a(f"""
    s_lshl_b32 s{sT0}, s{sT0}, 2
    v_and_b32 v{vP+1}, 3, v0
    v_and_b32 v{vP+2}, 4, v0
    v_lshl_add_u32 v{vP+1}, v{vP+2}, 1, v{vP+1}
    v_and_b32 v{vP+2}, 8, v0
    v_lshrrev_b32 v{vP+2}, 1, v{vP+2}
    v_add3_u32 v{vP+1}, v{vP+1}, v{vP+2}, s{sT0}
    s_lshl_b32 s{sT0}, s{sT0}, 2
    v_subrev_u32 v{vP+2}, s{sT0}, v{vP}
    v_cmp_gt_u32 vcc, 16, v{vP}
    v_mul_u32_u24 v{vT1}, 10240, v{vT0}
    v_mul_u32_u24 v{vT0}, 320, v{vT0}
    v_cndmask_b32 v{vP+1}, v{vP+2}, v{vP+1}, vcc
    v_lshlrev_b32 v{vP+1}, 4, v{vP+1}
    v_add_u32 v{vVG}, v{vP+1}, v{vT1}
    v_add_u32 v{vVbase}, v{vP+1}, v{vT0}
    v_add_u32 v{vVbase}, 6144, v{vVbase}
    v_cmp_gt_u32 vcc, 20, v{vP}
    v_mov_b32 v{vP+1}, 0x100000
    v_mov_b32 v{vP+2}, {ONES[0]}
    v_cndmask_b32 v{vVflag}, 0, 1, vcc
    v_cndmask_b32 v{vVbase}, v{vP+1}, v{vVbase}, vcc
    v_cmp_eq_u32 vcc, 20, v{vP}
    v_cmp_eq_u32 s[{sT3}:{sT4}], 24, v{vP}
    s_or_b64 vcc, vcc, s[{sT3}:{sT4}]
    v_mov_b32 v{vP+1}, {ONES[1]}
    s_nop 0
    v_cndmask_b32 v{vVB2}, v{vVbase}, v{vP+1}, vcc
    v_cndmask_b32 v{vVbase}, v{vVbase}, v{vP+2}, vcc
    """)
    a.c("DMA source offsets: even waves load K pieces, odd waves V pieces")
    a(f"""
    s_and_b32 s{sT0}, s{sJ}, 1
    s_cbranch_scc1 LA_dv
    v_add_u32 v{vD}, s{sExt}, v{vE16}
    v_add_u32 v{vD+1}, {2 * TILE}, v{vD}
    v_add_u32 v{vD+2}, s{sOm}, v{vL16}
    v_add_u32 v{vD+3}, {TILE}, v{vD+2}
    v_add_u32 v{vD+4}, {TILE}, v{vD+3}
    v_add_u32 v{vD+5}, {TILE}, v{vD+4}
    s_branch LA_dd
    LA_dv:
    s_mul_i32 s{sT0}, s{sHead}, 320
    s_add_u32 s{sT0}, s{sT0}, {IMG}
    """)
    for p in range(5):
        a(f"""
        v_add_u32 v{vP}, {64 * p}, v0
        v_mul_u32_u24 v{vP+1}, 3277, v{vP}
        v_lshrrev_b32 v{vP+1}, 16, v{vP+1}
        v_mul_u32_u24 v{vP+2}, 20, v{vP+1}
        v_sub_u32 v{vP+2}, v{vP}, v{vP+2}
        v_mul_u32_u24 v{vP+1}, 10240, v{vP+1}
        v_lshl_add_u32 v{vP+1}, v{vP+2}, 4, v{vP+1}
        v_add_u32 v{vD+p}, s{sT0}, v{vP+1}
        """)
    a(f"""
    v_mov_b32 v{vD+5}, v{vD+4}
    LA_dd:
    v_lshlrev_b32 v{vP+3}, 7, v0
    v_mov_b32 v{vP+4}, 0
    v_lshlrev_b32 v{vP+5}, 2, v0
    v_or_b32 v{vP+5}, 128, v{vP+5}
    """)


def vectors_put(a):
    a(f"""
    s_and_b32 s{sT0}, s{sJ}, 1
    s_lshl_b32 s{sT0}, s{sT0}, 12
    s_add_u32 s{sT0}, s{sT0}, {XFER}
    v_add_u32 v{vT0}, s{sT0}, v{vL16}
    v_mov_b32 v20, v{vVB2}
    v_mov_b32 v21, v{vVflag}
    v_mov_b32 v22, v{vE16}
    v_mov_b32 v23, v{vVG}
    ds_write_b128 v{vT0}, v[20:23]
    ds_write_b128 v{vT0}, {vr(vD,4)} offset:1024
    ds_write_b64 v{vT0}, {vr(vD+4,2)} offset:2048
    """)


def vectors_get(a):
    lane_id(a, 0)
    a(f"""
    s_and_b32 s{sT0}, s{sJ}, 1
    s_lshl_b32 s{sT0}, s{sT0}, 12
    s_add_u32 s{sT0}, s{sT0}, {XFER}
    v_lshlrev_b32 v{vL16}, 4, v0
    v_add_u32 v{vT0}, s{sT0}, v{vL16}
    ds_read_b128 {vr(vVbase,4)}, v{vT0}
    ds_read_b128 {vr(vD,4)}, v{vT0} offset:1024
    ds_read_b64 {vr(vD+4,2)}, v{vT0} offset:2048
    v_lshlrev_b32 v{vP+3}, 7, v0
    """)
    attn_scalars(a)
    a("s_waitcnt lgkmcnt(0)")


def dma_sub(a):
    a(f"""
    LA_dma:
    s_add_u32 s{sT2}, s{sT1}, s{sQB}
    s_and_b32 s{sT2}, s{sT2}, 7
    s_lshl_b32 s{sT2}, s{sT2}, 1
    s_lshr_b32 s{sT3}, s{sJ}, 1
    s_add_u32 s{sT2}, s{sT2}, s{sT3}
    s_mul_i32 s{sT2}, s{sT2}, {4 * TILE}
    s_lshl_b32 s{sT4}, s{sJ}, 1
    s_and_b32 s{sT4}, s{sT4}, 2
    s_lshr_b32 s{sT4}, 20480, s{sT4}
    s_mul_i32 s{sT4}, s{sT4}, s{sT0}
    s_add_u32 s{sT2}, s{sT2}, s{sT4}
    s_add_u32 s{sT2}, s{sT2}, s{sImg}
    s_add_u32 s{sT2}, s{sT2}, {IMG}
    s_sub_u32 s{sT1}, s{sT1}, s{sT0}
    s_add_u32 s{sT1}, s{sT1}, 1
    s_mul_i32 s{sT4}, s{sT1}, 43
    s_lshr_b32 s{sT4}, s{sT4}, 7
    s_mul_i32 s{sT4}, s{sT4}, 3
    s_sub_u32 s{sT1}, s{sT1}, s{sT4}
    s_lshl_b32 s{sT1}, s{sT1}, 1
    s_add_u32 s{sT1}, s{sT1}, s{sT3}
    s_mul_i32 s{sT1}, s{sT1}, {CH}
    s_mul_i32 s{sT4}, s{sT0}, {RA - RB}
    s_sub_u32 s{sT1}, s{sT1}, s{sT4}
    s_add_u32 s{sT1}, s{sT1}, {RA}
    s_and_b32 s{sT3}, s{sJ}, 1
    s_mul_i32 s{sT4}, s{sT3}, 6144
    s_add_u32 m0, s{sT1}, s{sT4}
    s_nop 0
    """)
    for p in range(5):
        a(f"buffer_load_dwordx4 v{vD+p}, {WSR()}, s{sT2} offen sc1 lds")
        a("s_add_u32 m0, m0, 1024")
        a("s_nop 0" if p < 4 else f"s_cmp_eq_u32 s{sT3}, 1")
    a(f"""
    s_cbranch_scc1 LA_dma_ret
    buffer_load_dwordx4 v{vD+5}, {WSR()}, s{sT2} offen sc1 lds
    LA_dma_ret:
    s_setpc_b64 s[{sLnk}:{sLnk+1}]
    """)


def call_dma(a, b, blk):
    a(f"s_mov_b32 s{sT0}, {b}\ns_mov_b32 s{sT1}, {blk}\ns_call_b64 s[{sLnk}:{sLnk+1}], LA_dma")


def poll_f1(a):
    a(f"""
    s_lshl_b32 s{sT0}, s{sBr}, 5
    s_add_u32 s{sT0}, s{sT0}, s{sHead}
    s_lshl_b32 s{sT0}, s{sT0}, 9
    s_add_u32 s{sT0}, s{sT0}, {WS_C1}
    """)
    poll_counter(a, vP + 3, f"s{sT0}", f"s{sExp}", 7)


def load_q(a):
    a(f"""
    s_lshl_b32 s{sT0}, s{sQB}, 2
    s_add_u32 s{sT0}, s{sT0}, s{sJ}
    s_mul_i32 s{sT0}, s{sT0}, {2 * TILE}
    s_add_u32 s{sT0}, s{sT0}, s{sImg}
    s_add_u32 s{sT1}, s{sT0}, s{sOm}
    s_add_u32 s{sT2}, s{sT1}, {TILE}
    s_add_u32 s{sT0}, s{sT0}, s{sExt}
    buffer_load_dwordx4 {vr(Qm[0],4)}, v{vL16}, {WSR()}, s{sT1} offen sc1
    buffer_load_dwordx4 {vr(Qm[1],4)}, v{vL16}, {WSR()}, s{sT2} offen sc1
    buffer_load_dwordx2 {vr(Qe,2)}, v{vE16}, {WSR()}, s{sT0} offen sc1
    """)


def scale_q(a, nyounger):
    a(f"s_mov_b32 s4, {hex(f32bits(QSCALE))}\ns_mov_b32 s5, s4\ns_waitcnt vmcnt({nyounger})")
    for r in range(Qm[0], Qe + 2):
        a(f"""
        v_lshlrev_b32 v{vP}, 16, v{r}
        v_and_b32 v{vP+1}, 0xffff0000, v{r}
        v_pk_mul_f32 {vr(vP,2)}, {vr(vP,2)}, s[4:5]
        v_cvt_pk_bf16_f32 v{r}, v{vP}, v{vP+1}
        """)


def attn_zero(a):
    Z = Vb[1][1]
    for r in (Z, Z + 2, SB[1] + 24, SB[1] + 26):
        a(f"v_pk_mov_b32 {vr(r,2)}, 0, 0")
    a(f"v_mov_b32 v{vP}, 0xbf800000\nv_mov_b32 v{vP+1}, 0\nv_mov_b32 v{vPS+1}, 0")
    a(f"v_mfma_f32_32x32x4_2b_bf16 {vr(OA[0],32)}, {vr(Z,2)}, {vr(Z,2)}, 0")
    a(f"""
    s_add_u32 s{sRe}, s{sRb}, {RING}
    s_mov_b32 s{sRem}, 7
    v_add_u32 v{vKA}, s{sNext}, v{vL16}
    v_mad_u32_u24 v{vVA}, v{vVflag}, s{sNext}, v{vVbase}
    """)


def attention(a):
    X = SB[0]
    a("LA_start:")
    stamp_cyc(a, 24)
    a(f"""
    ds_read_b128 {vr(Km[0],4)}, v{vKA} offset:2048
    ds_read2st64_b64 {vr(Ke,4)}, v{vKA} offset0:0 offset1:2
    ds_read_b128 {vr(Km[1],4)}, v{vKA} offset:3072
    ds_read_b128 {vr(Vb[0][0],4)}, v{vVA}
    ds_read_b128 {vr(Vb[0][1],4)}, v{vVA} offset:640
    s_waitcnt lgkmcnt(4)
    """)
    a(mfma32(X, Km[0], Qm[0], 0))
    a(mfma32(X + 16, Km[0], Qm[1], 0))
    a("s_nop 8\ns_waitcnt lgkmcnt(3)")
    a(mfma2b(X, 0, vr(X, 32)))
    a("s_nop 15\ns_nop 3")
    a.c("softmax shift: row max over the first key tile, cut to bf16; the epilogue checks that it was safe.")
    a.c("A rank-1 MFMA (-1 x shift) subtracts it from the scores and spreads it over the C operand of the loop")
    rowmax(a, X, vT0, vT1)
    a(f"""
    s_nop 1
    v_permlane32_swap_b32 v{vT0}, v{vT1}
    s_nop 1
    v_max_f32 v{vT0}, v{vT0}, v{vT1}
    v_and_b32 v{vPS}, 0xffff0000, v{vT0}
    s_nop 1
    v_mfma_f32_32x32x4_2b_bf16 {vr(X,32)}, {vr(vP,2)}, {vr(vPS,2)}, {vr(X,32)}
    v_mfma_f32_32x32x4_2b_bf16 {vr(NM,32)}, {vr(vP,2)}, {vr(vPS,2)}, 0
    s_nop 15
    s_nop 1
    s_waitcnt lgkmcnt(0)
    v_exp_f32 v{X}, v{X}
    .p2align 6
    LA_loop:
    """)
    for half in range(2):
        for ii in range(4):
            tile_iter(a, ii, half)
    a("s_cbranch_scc0 LA_loop\ns_nop 0")
    a(mfma32(OA[1], Vb[1][1], SB[1] + 24, vr(OA[1], 16)))
    a(f"s_cmp_eq_u32 s{sRole}, 0\ns_cbranch_scc1 LA_fin2\ns_setprio 2\ns_barrier\nLA_fin2:")
    stamp(a, 4)
    stamp_cyc(a, 31)
    N = SB[0]
    rc = SB[1]
    a(f"""
    s_lshl_b32 s{sT0}, s{sQB}, 2
    s_add_u32 s{sT0}, s{sT0}, s{sJ}
    s_mul_i32 s{sXo}, s{sT0}, {2 * TILE}
    s_add_u32 s{sXo}, s{sXo}, s{sImg}
    s_add_u32 s{sXo}, s{sXo}, {3 * IMG}
    s_mov_b32 s{sRem}, 0
    LA_epi:
    v_cmp_lt_u32 vcc, 31, v0
    s_add_u32 s{sT0}, s{sXo}, s{sOm}
    s_add_u32 s{sT1}, s{sT0}, {TILE}
    s_add_u32 s{sT2}, s{sXo}, s{sExt}
    v_cndmask_b32 v{vT0}, v{OA[0]+12}, v{OA[0]+8}, vcc
    v_rcp_f32 v{rc}, v{vT0}
    v_cndmask_b32 v{vT1}, v{OA[1]+12}, v{OA[1]+8}, vcc
    v_rcp_f32 v{rc+2}, v{vT1}
    """)
    for u in range(2):
        O, P = OA[u], N + 12 * u
        for r in range(0, 12, 2):
            a(f"v_pk_mul_f32 {vr(P+r,2)}, {vr(O+r,2)}, {vr(rc+2*u,2)} op_sel_hi:[1,0]")
        for j in range(6):
            a(f"v_cvt_pk_bf16_f32 v{P+j}, v{P+2*j}, v{P+2*j+1}")
        a(f"buffer_store_dwordx4 {vr(P,4)}, v{vL16}, {WSR()}, s{sT1 if u else sT0} offen sc1")
    a(f"""
    s_mov_b32 s{sT0}, {f32bits(2.0**30)}
    v_permlane32_swap_b32 v{N+4}, v{N+16}
    v_permlane32_swap_b32 v{N+5}, v{N+17}
    s_mov_b32 s{sT1}, {f32bits(2.0**-30)}
    buffer_store_dwordx2 {vr(N+4,2)}, v{vE16}, {WSR()}, s{sT2} offen sc1
    """)
    a.c("safety check of the shift before anything is published: row sums inside [2^-30, 2^30], finite accumulators")
    tm = rc + 4
    a(f"v_pk_add_f32 {vr(tm,2)}, {vr(OA[0],2)}, {vr(OA[1],2)}")
    for r in range(2, 12, 2):
        a(f"v_pk_add_f32 {vr(tm,2)}, {vr(tm,2)}, {vr(OA[0]+r,2)}")
        a(f"v_pk_add_f32 {vr(tm,2)}, {vr(tm,2)}, {vr(OA[1]+r,2)}")
    a(f"""
    v_add_f32 v{tm}, v{tm}, v{tm+1}
    v_mul_f32 v{tm}, 0, v{tm}
    v_add_f32 v{tm+1}, v{vT0}, v{vT1}
    v_add_f32 v{tm}, v{tm}, v{tm+1}
    v_min_f32 v{tm+1}, v{vT0}, v{vT1}
    v_cmp_gt_f32 s[4:5], s{sT0}, v{tm}
    v_cmp_lt_f32 vcc, s{sT1}, v{tm+1}
    s_and_b64 s[4:5], s[4:5], vcc
    s_cmp_eq_u64 s[4:5], -1
    s_cselect_b32 s{sT0}, 1, s{sRem}
    s_cmp_eq_u32 s{sT0}, 0
    s_cbranch_scc1 LA_slow
    """)


def refill(a):
    a.c("role-B waves refill both rings: after barrier m, A block m+2 and B block m-SK+2")
    a(f"""
    LA_refill:
    s_cmp_gt_u32 s{sM}, 5
    s_cbranch_scc1 LA_ev_b
    s_mov_b32 s{sT0}, 0
    s_add_u32 s{sT1}, s{sM}, 2
    s_call_b64 s[{sLnk}:{sLnk+1}], LA_dma
    LA_ev_b:
    s_sub_u32 s{sT1}, s{sM}, {SK - 2}
    s_cmp_lt_u32 s{sT1}, 3
    s_cbranch_scc1 LA_back
    s_mov_b32 s{sT0}, 1
    s_call_b64 s[{sLnk}:{sLnk+1}], LA_dma
    s_branch LA_back
    """)


def slow_path(a):
    X = SB[0]
    m0, m1, t0, t1 = SB[1], SB[1] + 1, SB[1] + 2, SB[1] + 3

    def kloads(t):
        a(f"buffer_load_dwordx4 {vr(Km[0],4)}, v{vL16}, {WSR()}, s{sT1} offen sc1")
        if t == 0:
            a(f"buffer_load_dwordx2 {vr(Ke,2)}, v{vE16}, {WSR()}, s{sT2} offen sc1")
            a(f"s_add_u32 s{sT2}, s{sT2}, {2 * TILE}")
        a(f"s_add_u32 s{sT1}, s{sT1}, {TILE}")

    def kbase():
        a(f"""
        s_add_u32 s{sT0}, s{sImg}, {IMG}
        s_add_u32 s{sT1}, s{sT0}, s{sOm}
        s_add_u32 s{sT2}, s{sT0}, s{sExt}
        s_mov_b32 s{sRem}, 0
        """)
    a(f"LA_slow:\nv_mov_b32 v{m0}, 0xff800000\nv_mov_b32 v{m1}, 0xff800000")
    kbase()
    a("LA_slow_max:")
    for t in range(2):
        kloads(t)
        a("s_waitcnt vmcnt(0)")
        a(mfma32(X, Km[0], Qm[0], 0))
        a(mfma32(X + 16, Km[0], Qm[1], 0))
        a("s_nop 9")
        a(mfma2b(X, t, vr(X, 32)))
        a("s_nop 15\ns_nop 3")
        rowmax(a, X, t0, t1)
        a(f"v_max_f32 v{m0}, v{m0}, v{t0}\nv_max_f32 v{m1}, v{m1}, v{t1}")
    a(f"s_add_u32 s{sRem}, s{sRem}, 1\ns_cmp_lt_u32 s{sRem}, 32\ns_cbranch_scc1 LA_slow_max")
    cross_half_max(a, m0, t0)
    cross_half_max(a, m1, t0)
    fill_nm(a, m0, m1)
    for r in range(32):
        a(f"v_mov_b32 v{OA[0]+r}, 0")
    for r in range(8):
        a(f"v_mov_b32 v{Vb[0][0]+r}, 0x3f803f80")
    kbase()
    a(f"""
    s_mul_i32 s{sT3}, s{sHead}, 320
    s_add_u32 s{sT3}, s{sT3}, s{sT0}
    s_add_u32 s{sT3}, s{sT3}, {IMG}
    LA_slow_pv:
    """)
    for t in range(2):
        kloads(t)
        a(f"""
        s_add_u32 s{sT4}, s{sT3}, 20480
        s_mov_b32 exec_lo, 0xfffff
        s_mov_b32 exec_hi, 0xfffff
        buffer_load_dwordx4 {vr(Vb[0][0],4)}, v{vVG}, {WSR()}, s{sT3} offen sc1
        buffer_load_dwordx4 {vr(Vb[0][1],4)}, v{vVG}, {WSR()}, s{sT4} offen sc1
        s_mov_b64 exec, -1
        s_add_u32 s{sT3}, s{sT3}, {TILE}
        s_waitcnt vmcnt(2)
        """)
        a(mfma32(X, Km[0], Qm[0], vr(NM, 16)))
        a(mfma32(X + 16, Km[0], Qm[1], vr(NM + 16, 16)))
        a("s_nop 9")
        a(mfma2b(X, t, vr(X, 32)))
        a("s_nop 15\ns_nop 3")
        for r in range(32):
            a(f"v_exp_f32 v{X+r}, v{X+r}")
        a("s_nop 0")
        for j in range(16):
            a(f"v_cvt_pk_bf16_f32 v{X + 8*(j//4) + j%4}, v{X+2*j}, v{X+2*j+1}")
        a("s_waitcnt vmcnt(0)\ns_nop 1")
        a(mfma32(OA[0], Vb[0][0], X, vr(OA[0], 16)))
        a(mfma32(OA[0], Vb[0][1], X + 8, vr(OA[0], 16)))
        a(mfma32(OA[1], Vb[0][0], X + 16, vr(OA[1], 16)))
        a(mfma32(OA[1], Vb[0][1], X + 24, vr(OA[1], 16)))
    a(f"""
    s_add_u32 s{sRem}, s{sRem}, 1
    s_cmp_lt_u32 s{sRem}, 32
    s_cbranch_scc1 LA_slow_pv
    s_nop 15
    s_mov_b32 s{sRem}, 1
    s_branch LA_epi
    """)


pWF = [16, 56]
pACC = 96
pOF = 136
pWA, pOA = 2, 3


def c3_off(a, dst, t64, part):
    a(f"""
    s_lshl_b32 s{dst}, s{sBr}, 5
    s_add_u32 s{dst}, s{dst}, s{t64}
    s_lshl_b32 s{dst}, s{dst}, 1
    s_add_u32 s{dst}, s{dst}, s{part}
    s_lshl_b32 s{dst}, s{dst}, 7
    s_add_u32 s{dst}, s{dst}, {WS_C3}
    """)


def wo_dma(a, k0, k1, lds0):
    _lbl[0] += 1
    L = f"LP_wd{_lbl[0]}"
    a(f"""
    s_and_b32 s{sT0}, s{sHead}, 3
    s_lshl_b32 s{sT1}, s{sBr}, 2
    s_add_u32 s{sT0}, s{sT0}, s{sT1}
    s_mul_i32 s{sT0}, s{sT0}, {WO_SLAB}
    s_lshl_b32 s{sT1}, s{sJ}, 10
    s_add_u32 s{sT0}, s{sT0}, s{sT1}
    s_add_u32 s{sT0}, s{sT0}, {WS_WO + 10240 * k0}
    s_add_u32 s{sT1}, s{sT1}, {lds0}
    {L}:
    s_mov_b32 m0, s{sT1}
    s_add_u32 s{sT1}, s{sT1}, 4096
    buffer_load_dwordx4 v{vL16}, {WSR()}, s{sT0} offen sc1 lds
    s_add_u32 s{sT0}, s{sT0}, 4096
    s_cmp_lt_u32 s{sT1}, {lds0 + 10240 * (k1 - k0)}
    s_cbranch_scc1 {L}
    """)


def o_fetch_sub(a):
    a(f"""
    LP_fetch:
    s_lshl_b32 s{sT1}, s{sQB}, 2
    s_lshr_b32 s{sT2}, s{sHead}, 2
    s_add_u32 s{sT1}, s{sT1}, s{sT2}
    """)
    c3_off(a, sT0, sT1, sPh)
    a(f"""
    v_and_b32 v{vP+3}, 15, v0
    s_lshl_b32 s{sT1}, s{sT1}, 1
    s_lshr_b32 s{sT2}, s{sJ}, 1
    s_add_u32 s{sT1}, s{sT1}, s{sT2}
    s_mul_i32 s{sT1}, s{sT1}, {TILE}
    s_add_u32 s{sT1}, s{sT1}, s{sImg}
    s_and_b32 s{sT2}, s{sJ}, 1
    s_lshl_b32 s{sT2}, s{sT2}, 8
    s_add_u32 s{sT1}, s{sT1}, s{sT2}
    s_mul_i32 s{sT2}, s{sPh}, 20480
    s_add_u32 s{sT1}, s{sT1}, s{sT2}
    s_add_u32 s{sT1}, s{sT1}, {3 * IMG}
    v_lshrrev_b32 v{pOA}, 4, v0
    v_lshlrev_b32 v{pOA}, 9, v{pOA}
    v_lshl_add_u32 v{pOA}, v{vP+3}, 4, v{pOA}
    """)
    poll_counter(a, vP + 4, f"s{sT0}", 16, 1)
    for s in range(10):
        a(f"buffer_load_dwordx4 {vr(pOF + 4*s, 4)}, v{pOA}, {WSR()}, s{sT1} offen offset:{(s & 1) * 2048} sc1")
        if s & 1 and s < 9:
            a(f"s_add_u32 s{sT1}, s{sT1}, 4096")
    a(f"s_setpc_b64 s[{sLnk}:{sLnk+1}]")


sTab = 52


def oproj_sub(a, label, p0):
    def wreads(p):
        return [f"ds_read_b128 {vr(pWF[p & 1] + 4*c, 4)}, v{pWA} offset:{c * 1024}" for c in range(10)]
    a(f"{label}:\nv_add_u32 v{pWA}, s{sTab}, v{vL16}")
    for r in wreads(p0):
        a(r)
    for p in range(p0, p0 + 5):
        rd = wreads(p + 1) if p + 1 < p0 + 5 else []
        if rd:
            a(f"v_add_u32 v{pWA}, s{sTab + p + 1 - p0}, v{vL16}")
        for c in range(10):
            A = pACC + 4 * c
            a(f"s_waitcnt lgkmcnt({9 if rd else 9 - c})")
            a(f"v_mfma_f32_16x16x32_bf16 {vr(A,4)}, {vr(pOF + 4*p, 4)}, {vr(pWF[p & 1] + 4*c, 4)}, {vr(A,4)}")
            if rd:
                a(rd[c])
    a(f"s_setpc_b64 s[{sLnk}:{sLnk+1}]")


def call_mm(a, label, addrs):
    for i, x in enumerate(addrs):
        a(f"s_mov_b32 s{sTab + i}, {x}")
    a(f"s_call_b64 s[{sLnk}:{sLnk+1}], {label}")


def out_store(a):
    a.c("lane holds columns 10*(l & 15) .. +9 of tokens 4*(l >> 4) + r")
    a(f"""
    s_lshl_b32 s{sT0}, s{sQB}, 2
    s_lshr_b32 s{sT1}, s{sHead}, 2
    s_add_u32 s{sT0}, s{sT0}, s{sT1}
    s_lshl_b32 s{sT0}, s{sT0}, 2
    s_add_u32 s{sT0}, s{sT0}, s{sJ}
    s_mul_i32 s{sT0}, s{sT0}, {16 * 2560}
    s_mul_i32 s{sT1}, s{sBr}, 1280
    s_add_u32 s{sT0}, s{sT0}, s{sT1}
    s_and_b32 s{sT1}, s{sHead}, 3
    s_mul_i32 s{sT1}, s{sT1}, 320
    s_add_u32 s{sT0}, s{sT0}, s{sT1}
    s_add_u32 s{sT1}, s{sT0}, {2 * 2560}
    v_lshrrev_b32 v4, 4, v0
    v_mul_u32_u24 v4, {4 * 2560}, v4
    v_and_b32 v5, 15, v0
    v_mul_u32_u24 v5, 20, v5
    v_add_u32 v4, v4, v5
    """)
    for r in range(4):
        P = 16 + 6 * r
        for j in range(5):
            a(f"v_cvt_pk_bf16_f32 v{P+j}, v{pACC + 8*j + r}, v{pACC + 8*j + 4 + r}")
        so = sT0 if r < 2 else sT1
        a(f"buffer_store_dwordx4 {vr(P,4)}, v4, s[{sOut}:{sOut+3}], s{so} offen offset:{(r & 1) * 2560}")
        a(f"buffer_store_dword v{P+4}, v4, s[{sOut}:{sOut+3}], s{so} offen offset:{(r & 1) * 2560 + 16}")


rL, rT, rD, rX, rData = 194, 199, 200, 205, 208


def repack_setup(a):
    x = rX
    for i in range(5):
        a(f"""
        v_add_u32 v{x}, {64 * i}, v0
        v_mul_u32_u24 v{x+1}, 3277, v{x}
        v_lshrrev_b32 v{x+1}, 16, v{x+1}
        v_mul_u32_u24 v{x+2}, 20, v{x+1}
        v_sub_u32 v{x+2}, v{x}, v{x+2}
        v_mul_u32_u24 v{x+1}, 1280, v{x+1}
        v_lshl_add_u32 v{rL+i}, v{x+2}, 4, v{x+1}
        v_and_b32 v{x}, 15, v0
        v_add_u32 v{x}, {16 * i}, v{x}
        v_mul_u32_u24 v{x+1}, 205, v{x}
        v_lshrrev_b32 v{x+1}, 11, v{x+1}
        v_mul_u32_u24 v{x+2}, 10, v{x+1}
        v_sub_u32 v{x+2}, v{x}, v{x+2}
        v_mul_u32_u24 v{x+2}, 1040, v{x+2}
        v_lshl_add_u32 v{x+2}, v{x+1}, 4, v{x+2}
        v_and_b32 v{x}, 48, v0
        v_lshl_add_u32 v{x+2}, v{x}, 4, v{x+2}
        v_add_u32 v{rD+i}, {RPK}, v{x+2}
        """)
    a(f"""
    v_lshrrev_b32 v{x}, 4, v0
    v_lshlrev_b32 v{x}, 3, v{x}
    v_lshrrev_b32 v{x+1}, 2, v0
    v_and_b32 v{x+1}, 3, v{x+1}
    v_add_u32 v{x}, v{x}, v{x+1}
    v_mul_u32_u24 v{x}, 320, v{x}
    v_and_b32 v{x+1}, 3, v0
    v_lshl_add_u32 v{x}, v{x+1}, 3, v{x}
    v_add_u32 v{rT}, {RPK}, v{x}
    v_add_u32 v{rX}, {RPK}, v{vL16}
    """)


def repack_steps(a):
    a(f"""
    LR_step:
    s_add_u32 s{sRp}, s{sRp}, 1
    s_lshr_b32 s{sT2}, s2, 3
    s_cmp_eq_u32 s{sM}, {SK + 1}
    s_cbranch_scc0 LR_s1
    s_mov_b32 s{sWt}, s{sPtr+2}
    s_and_b32 s{sWt+1}, s{sPtr+3}, 0xffff
    s_mov_b32 s{sWt+2}, {D * D * 2}
    s_mov_b32 s{sWt+3}, 0x00020000
    s_mul_i32 s{sT0}, s{sT2}, {32 * 1280}
    s_and_b32 s{sT1}, s2, 3
    s_mul_i32 s{sT1}, s{sT1}, 320
    s_add_u32 s{sT0}, s{sT0}, s{sT1}
    s_mov_b32 m0, {RPK}
    s_add_u32 s{sT1}, s{sT0}, {16 * 1280}
    """)
    for i in range(10):
        a(f"buffer_load_dwordx4 v{rL + i % 5}, s[{sWt}:{sWt+3}], s{sT1 if i >= 5 else sT0} offen lds")
        a("s_add_u32 m0, m0, 1024\ns_nop 0")
    a(f"""
    s_branch LA_bar
    LR_s1:
    s_cmp_eq_u32 s{sM}, {SK + 2}
    s_cbranch_scc0 LR_s2
    s_and_b32 s{sT0}, s2, 7
    s_mul_i32 s{sT0}, s{sT0}, {WO_SLAB}
    s_mul_i32 s{sT2}, s{sT2}, 10240
    s_add_u32 s{sT0}, s{sT0}, s{sT2}
    s_add_u32 s{sT0}, s{sT0}, {WS_WO}
    """)
    for ct in range(10):
        for u in range(2):
            a(f"ds_read_b64_tr_b16 {vr(rData + 4*ct + 2*u, 2)}, v{rT} offset:{u*4*320 + ct*32}")
        if ct == 4:
            a("s_waitcnt lgkmcnt(0)")
    a("s_waitcnt lgkmcnt(0)")
    for ct in range(10):
        a(f"ds_write_b128 v{rD + ct % 5}, {vr(rData + 4*ct, 4)} offset:{128 * (ct // 5)}")
    a("s_waitcnt lgkmcnt(0)")
    for c in range(10):
        a(f"ds_read_b128 {vr(rData + 4*c, 4)}, v{rX} offset:{1040 * c}")
    for c in range(10):
        a(f"s_waitcnt lgkmcnt({9 - c})")
        a(f"buffer_store_dwordx4 {vr(rData + 4*c, 4)}, v{vL16}, {WSR()}, s{sT0} offen offset:{1024 * (c & 3)} sc1")
        if c & 3 == 3:
            a(f"s_add_u32 s{sT0}, s{sT0}, 4096")
    a(f"""
    s_branch LA_bar
    LR_s2:
    s_mov_b32 s{sRp}, -1
    s_and_b32 s{sT0}, s2, 7
    s_lshl_b32 s{sT0}, s{sT0}, 7
    s_add_u32 s{sT0}, s{sT0}, {WS_C4}
    """)
    count_in(a, sT0, vP, vP + 1)
    a("s_branch LA_bar")


def write_ones(a, role):
    a(f"""
    v_and_b32 v{vT0}, 7, v0
    v_mul_u32_u24 v{vT0}, 640, v{vT0}
    v_add_u32 v{vT0}, {ONES[role]}, v{vT0}
    v_mov_b32 v16, 0x3f803f80
    v_mov_b32 v17, 0x3f803f80
    v_mov_b32 v18, 0x3f803f80
    v_mov_b32 v19, 0x3f803f80
    ds_write_b128 v{vT0}, v[16:19]
    """)


def common_setup(a):
    a(f"""
    s_and_b32 s{sT0}, s2, 3
    s_lshl_b32 s{sT0}, s{sT0}, 2
    s_lshr_b32 s{sT2}, s2, 6
    s_add_u32 s{sHead}, s{sT0}, s{sT2}
    s_lshr_b32 s{sQB}, s2, 3
    s_and_b32 s{sQB}, s{sQB}, 7
    s_lshl_b32 s{sT2}, s{sRole}, 4
    s_add_u32 s{sHead}, s{sHead}, s{sT2}
    s_mul_i32 s{sImg}, s{sBr}, {4 * IMG}
    s_mov_b32 s{sPh}, 0
    s_mov_b32 s{sWS+2}, {WS_STAMP + 2048 * 128 if common.STAMP else WS_END}
    s_mov_b32 s{sWS+3}, 0x00020000
    s_mov_b32 s{sOut+2}, {S * 2 * D * 2}
    s_mov_b32 s{sOut+3}, 0x00020000
    s_mov_b32 s{sDbg+2}, 256
    s_mov_b32 s{sDbg+3}, 0x00020000
    s_waitcnt lgkmcnt(0)
    s_mov_b32 s{sOut}, s{sPtr+4}
    s_and_b32 s{sOut+1}, s{sPtr+5}, 0xffff
    s_mov_b32 s{sDbg}, s{sPtr+6}
    s_and_b32 s{sDbg+1}, s{sPtr+7}, 0xffff
    s_add_u32 s{sWS}, s{sWS}, {WS_MB << 20}
    s_addc_u32 s{sWS+1}, s{sWS+1}, 0
    s_and_b32 s{sWS+1}, s{sWS+1}, 0xffff
    """)


def gen(a, label):
    kernel_head(a, label)
    a("s_cmp_ge_u32 s2, 256\ns_cbranch_scc1 LF_end")
    stamp(a, 0)
    a(f"""
    s_bfe_u32 s{sBr}, s2, 0x10002
    s_mul_i32 s{sT0}, s{sBr}, 24
    s_load_dwordx2 s[{sX}:{sX+1}], s[0:1], s{sT0}
    s_add_u32 s{sT1}, s{sT0}, 8
    s_load_dwordx4 s[{sPtr}:{sPtr+3}], s[0:1], s{sT1}
    s_load_dwordx4 s[{sPtr+4}:{sPtr+7}], s[0:1], 48
    s_load_dwordx2 s[{sWS}:{sWS+1}], s[0:1], 64
    v_lshrrev_b32 v1, 6, v0
    v_and_b32 v0, 63, v0
    v_readfirstlane_b32 s{sW}, v1
    s_and_b32 s{sT0}, s2, 3
    s_lshl_b32 s{sT0}, s{sT0}, 2
    s_bfe_u32 s{sT2}, s2, 0x20003
    s_add_u32 s{sTB}, s{sT0}, s{sT2}
    s_lshr_b32 s{sTI}, s2, 5
    """)
    if 'nocw' not in OPT:
        a.c("wave 7 pulls a quarter of the code into the L2, so that later instruction fetches find it there")
        a(f"""
        s_cmp_eq_u32 s{sW}, 7
        s_cbranch_scc0 LG_nocw
        s_getpc_b64 s[4:5]
        LG_pc:
        s_sub_u32 s4, s4, LG_pc-{label}
        s_subb_u32 s5, s5, 0
        s_lshl_b32 s{sT0}, s{sT2}, 13
        v_lshl_add_u32 v8, v0, 7, s{sT0}
        v_min_u32 v8, LF_codeend-{label}-4, v8
        global_load_dword v{gT+1}, v8, s[4:5]
        LG_nocw:
        """)
    a.c("phase-a units of tile ti: n = 2 ti + e, unit = n + 5 (n >= 5) + 5 (n >= 10)")
    a(f"""
    s_lshl_b32 s{sU0}, s{sTI}, 1
    s_cmp_ge_u32 s{sTI}, 5
    s_cselect_b32 s{sT0}, 10, 5
    s_cmp_ge_u32 s{sTI}, 3
    s_cselect_b32 s{sT0}, s{sT0}, 0
    s_add_u32 s{sU0}, s{sU0}, s{sT0}
    s_cmp_eq_u32 s{sTI}, 2
    s_cselect_b32 s{sT0}, 6, 1
    s_add_u32 s{sU1}, s{sU0}, s{sT0}
    s_and_b32 s{sJ}, s{sW}, 3
    s_lshr_b32 s{sRole}, s{sW}, 2
    s_cbranch_scc1 LG_start
    """)
    gemm_loader(a)
    a("LG_start:")
    common_setup(a)
    a.c("wave 4 clears counter lines id and id + 256")
    a(f"""
    s_cmp_eq_u32 s{sJ}, 0
    s_cbranch_scc0 LG_cleared
    s_lshl_b32 s{sT0}, s2, 7
    s_add_u32 s{sT0}, s{sT0}, {WS_C1}
    v_lshlrev_b32 v8, 15, v0
    v_mov_b32 v9, 0
    s_mov_b64 exec, 3
    buffer_store_dword v9, v8, {WSR()}, s{sT0} offen sc1
    s_mov_b64 exec, -1
    LG_cleared:
    """)
    gemm_compute(a)
    a("LG_done:")
    stamp(a, 3)
    vectors_get(a)
    a.c("the last wave whose stores have drained publishes the tile")
    a(f"""
    v_mov_b32 v{vP}, {LCNT}
    v_mov_b32 v{vP+1}, 1
    s_waitcnt vmcnt(0)
    s_mov_b64 exec, 1
    ds_add_rtn_u32 v{vP+2}, v{vP}, v{vP+1}
    s_mov_b64 exec, -1
    s_waitcnt lgkmcnt(0)
    v_readfirstlane_b32 s{sT0}, v{vP+2}
    s_cmp_eq_u32 s{sT0}, 3
    s_cbranch_scc0 LG_nopub
    s_call_b64 s[{sLnk}:{sLnk+1}], LG_publish
    LG_nopub:
    """)
    stamp(a, 27)
    a("s_branch LB_lead")
    a("LG_idle:\ns_waitcnt lgkmcnt(0)\ns_barrier")
    drained(a)
    a("s_barrier\ns_barrier")
    vectors_get(a)
    stamp(a, 3)
    a("LB_lead:")
    call_dma(a, 0, 2)
    a("s_barrier")
    write_ones(a, 1)
    a("s_waitcnt vmcnt(0)\ns_barrier")
    poll_f1(a)
    stamp(a, 26)
    load_q(a)
    call_dma(a, 1, 0)
    call_dma(a, 0, 3)
    scale_q(a, 10)
    a(f"s_mov_b32 s{sM}, {SK}\ns_mov_b32 s{sMend}, {SK + 5}\ns_mov_b32 s{sRb}, {RB}\ns_mov_b32 s{sNext}, {RB}\ns_mov_b32 s{sRp}, -1")
    attn_zero(a)
    a("s_waitcnt vmcnt(0) lgkmcnt(0)\ns_barrier")
    call_dma(a, 1, 1)
    call_dma(a, 0, 4)
    call_dma(a, 1, 2)
    a("s_setprio 0" if 'noprio' in OPT else "s_setprio 1")
    stamp(a, 5)
    a("s_branch LA_start")
    a("LA_lead:")
    poll_f1(a)
    stamp(a, 1)
    load_q(a)
    for blk in range(2):
        call_dma(a, 0, blk)
    scale_q(a, 10)
    a(f"""
    s_cmp_lt_u32 s2, 160
    s_cselect_b32 s{sT0}, s{sJ}, 0
    s_cmp_eq_u32 s{sT0}, 1
    s_cselect_b32 s{sRp}, {SK + 1}, -1
    s_mov_b32 s{sM}, 0
    s_mov_b32 s{sMend}, 0
    s_mov_b32 s{sRb}, {RA}
    s_mov_b32 s{sNext}, {RA + BLK}
    """)
    attn_zero(a)
    a("s_waitcnt vmcnt(5) lgkmcnt(0)\ns_barrier")
    stamp(a, 3)
    attention(a)
    a(f"s_lshl_b32 s{sT2}, s{sQB}, 2\ns_add_u32 s{sT2}, s{sT2}, s{sJ}")
    c3_off(a, sT3, sT2, sRole)
    a("s_waitcnt vmcnt(0)")
    count_in(a, sT3, vP, vP + 1)
    stamp(a, 6)
    a(f"s_cmp_eq_u32 s{sRole}, 1\ns_cbranch_scc1 LP_end")
    a.c("role-A waves: first half of K while role B finishes, second half once it is published")
    a(f"""
    s_and_b32 s{sT0}, s{sHead}, 3
    s_lshl_b32 s{sT1}, s{sBr}, 2
    s_add_u32 s{sT0}, s{sT0}, s{sT1}
    s_lshl_b32 s{sT0}, s{sT0}, 7
    s_add_u32 s{sT0}, s{sT0}, {WS_C4}
    """)
    poll_counter(a, vP + 4, f"s{sT0}", 20, 1)
    for r in range(0, 40, 2):
        a(f"v_pk_mov_b32 {vr(pACC + r, 2)}, 0, 0")
    G = lambda i: LDS_BYTES - (11 - i) * 10240
    Lo = lambda i: RB + i * 10240
    assert SK == 3 and G(0) >= RB + 2 * BLK and G(3) >= RB + RING and Lo(2) <= RB + BLK and Lo(4) <= G(0)
    stamp(a, 20)
    a("s_barrier")
    stamp(a, 21)
    call_dma(a, 1, 7)
    wo_dma(a, 0, 8, G(3))
    stamp(a, 22)
    a("s_waitcnt vmcnt(20)")
    stamp(a, 25)
    a("s_barrier")
    stamp(a, 5)
    wo_dma(a, 8, 11, G(0))
    a(f"s_mov_b32 s{sPh}, 0\ns_call_b64 s[{sLnk}:{sLnk+1}], LP_fetch")
    stamp(a, 26)
    a("s_barrier")
    stamp(a, 28)
    wo_dma(a, 11, 13, Lo(0))
    a("s_waitcnt vmcnt(0)")
    stamp(a, 29)
    a("s_barrier")
    wo_dma(a, 13, 15, Lo(2))
    call_mm(a, "LP_hi", [G(3), G(4), G(5), G(6), G(7)])
    call_mm(a, "LP_lo", [G(8), G(9), G(10), G(0), G(1)])
    a("s_waitcnt vmcnt(0)\ns_barrier")
    stamp(a, 30)
    wo_dma(a, 15, 20, G(3))
    a(f"s_mov_b32 s{sPh}, 1\ns_call_b64 s[{sLnk}:{sLnk+1}], LP_fetch")
    a("s_barrier")
    stamp(a, 2)
    a("s_waitcnt vmcnt(5)")
    call_mm(a, "LP_hi", [G(2), Lo(0), Lo(1), Lo(2), Lo(3)])
    a("s_waitcnt vmcnt(0)")
    call_mm(a, "LP_lo", [G(3), G(4), G(5), G(6), G(7)])
    out_store(a)
    a("LP_end:")
    if common.STAMP:
        a("s_waitcnt vmcnt(0)")
        stamp(a, 7)
        stamp_flush(a, 4)
    a("LF_end:\ns_endpgm")
    dma_sub(a)
    refill(a)
    publish_sub(a)
    o_fetch_sub(a)
    oproj_sub(a, "LP_hi", 0)
    oproj_sub(a, "LP_lo", 5)
    repack_steps(a)
    slow_path(a)
    a("LF_codeend:")


def build():
    a = Asm()
    label = NAME + "_kernel"
    a('.amdgcn_target "amdgcn-amd-amdhsa--gfx950"\n.text')
    gen(a, label)
    return (HEADER + f"; @launch grid=(256,1,1) block=(512,1,1) lds={LDS_BYTES}\n" + a.text()
            + '.section .rodata,"a"\n.p2align 6\n' + kernel_desc(label, NVGPR, NVGPR, 100))


if __name__ == "__main__":
    import sys
    for x in sys.argv[2:]:
        if '=' in x:
            k, v = x.split('='); globals()[k] = int(v)
        else:
            OPT.add(x)
    if 'dbgstamp' in OPT:
        common.STAMP = True
    out = sys.argv[1] if len(sys.argv) > 1 else f"cdna_kernels/{NAME}.s"
    open(out, "w").write(build())
```

```python
from common import Asm, vr, sr, f32bits, kernel_head, kernel_desc, QSCALE, S, D, HEADER, NAME
import common

OPT = set()
SK = 3

TILE = 40960
IMG = 64 * TILE
WS_WO = 8 * IMG
WO_SLAB = 204800
WO_HALF = WO_SLAB // 2
WS_C1 = WS_WO + 8 * WO_SLAB
WS_C3 = WS_C1 + 256 * 128
WS_C4 = WS_C3 + 128 * 128
WS_END = WS_C1 + 512 * 128
WS_STAMP = WS_END + 65536

LDS_BYTES = 163840
GSL = 16384
CH = 11264
BLK = 2 * CH
RING = 3 * BLK
ONES = [90112, 0]
RB = 5120
RA = LDS_BYTES - RING
RPK = RB + RING
XFER = 81920
LCNT = 95232

sX, sWt, sWS, sOut, sDbg = 8, 12, 16, 20, 24
sPtr = 28
sW, sJ, sRole = 40, 41, 42
sHead, sQB, sTI, sTB = 43, 44, 45, 46
sT0, sT1, sT2, sT3, sT4 = 47, 48, 49, 50, 51
sIt, sSlot, sKB, sInc = 52, 53, 54, 55
sXo, sWo = 56, 57
sNext, sRb, sRe, sRem = 52, 53, 54, 55
sM, sMend = 56, 57
sOm, sExt = 58, 59
sSpin = 60
sBr = 61
sU0, sU1, sImg, sPh = 96, 97, 98, 99
sExp = 3
sDone = 36
sRp = 96
sE = 56
sLnk = 62
STAMP_S = 64

SPIN = 1 << 15
SLEEP = 6


NST = 32


def stamp(a, i):
    if common.STAMP:
        a(f"s_memrealtime s[4:5]\ns_waitcnt lgkmcnt(0)\ns_mov_b32 s{STAMP_S+i}, s4")


def stamp_cyc(a, i):
    if common.STAMP:
        a(f"s_memtime s[4:5]\ns_waitcnt lgkmcnt(0)\ns_mov_b32 s{STAMP_S+i}, s4")


def stamp_idx(a, base, sreg):
    if common.STAMP and 'cyc' in OPT:
        a(f"s_memtime s[4:5]\ns_mov_b32 m0, s{sreg}\ns_waitcnt lgkmcnt(0)\ns_movreld_b32 s{STAMP_S+base}, s4")


def stamp_flush(a, vt):
    if not common.STAMP:
        return
    a(f"""
    s_mov_b64 exec, 1
    s_lshl_b32 s{sT0}, s2, 3
    s_add_u32 s{sT0}, s{sT0}, s{sW}
    s_lshl_b32 s{sT0}, s{sT0}, 7
    s_add_u32 s{sT0}, s{sT0}, {WS_STAMP}
    v_mov_b32 v{vt+2}, 0
    """)
    for i in range(NST):
        a(f"v_mov_b32 v{vt}, s{STAMP_S+i}")
        a(f"buffer_store_dword v{vt}, v{vt+2}, s[{sWS}:{sWS+3}], s{sT0} offen offset:{4*i}")
    if 'dbgstamp' in OPT:
        a(f"s_cmp_eq_u32 s2, 100\ns_cbranch_scc0 LF_nodbg\ns_cmp_eq_u32 s{sJ}, 0\ns_cbranch_scc0 LF_nodbg\ns_lshl_b32 s{sT0}, s{sRole}, 5")
        for i in range(8):
            a(f"s_sub_u32 s{sT1}, s{STAMP_S+i}, s{STAMP_S}")
            a(f"v_mov_b32 v{vt}, s{sT1}")
            a(f"buffer_store_dword v{vt}, v{vt+2}, s[{sDbg}:{sDbg+3}], s{sT0} offen offset:{4*i}")
        a("LF_nodbg:")


def WSR():
    return f"s[{sWS}:{sWS+3}]"


_lbl = [0]


def poll(a, loads, expect, vtmp):
    _lbl[0] += 1
    L = f"LF_poll{_lbl[0]}"
    a(f"s_mov_b32 s{sSpin}, {SPIN}\n{L}:")
    for i, (vo, srd, so) in enumerate(loads):
        a(f"buffer_load_dword v{vtmp+i}, v{vo}, {srd}, {so} offen sc1")
    a("s_waitcnt vmcnt(0)")
    for i in range(1, len(loads)):
        a(f"v_min_u32 v{vtmp}, v{vtmp}, v{vtmp+i}")
    a(f"""
    v_cmp_gt_u32 vcc, {expect}, v{vtmp}
    s_cbranch_vccz {L}_ok
    s_sleep {SLEEP}
    s_sub_u32 s{sSpin}, s{sSpin}, 1
    s_cbranch_scc0 {L}
    {L}_ok:
    """)


def poll_counter(a, vo, so, expect, mask):
    _lbl[0] += 1
    L = f"LF_pc{_lbl[0]}"
    rd = (f"v_mov_b32 v{vPS}, 0\nbuffer_atomic_add v{vPS}, v{vo}, {WSR()}, {so} offen sc0 sc1" if 'ldpoll' not in OPT else
          f"buffer_load_dword v{vPS}, v{vo}, {WSR()}, {so} offen sc1")
    a(f"""
    s_mov_b32 s{sSpin}, {SPIN}
    s_mov_b64 exec, {mask}
    {L}:
    {rd}
    s_waitcnt vmcnt(0)
    v_cmp_gt_u32 vcc, {expect}, v{vPS}
    s_cbranch_vccz {L}_ok
    s_sleep {SLEEP}
    s_sub_u32 s{sSpin}, s{sSpin}, 1
    s_cbranch_scc0 {L}
    {L}_ok:
    s_mov_b64 exec, -1
    """)


def count_in(a, soff, vz, vd):
    a(f"""
    v_mov_b32 v{vz}, 0
    v_mov_b32 v{vd}, 1
    s_mov_b64 exec, 1
    buffer_atomic_add v{vd}, v{vz}, {WSR()}, s{soff} offen sc1
    s_mov_b64 exec, -1
    """)


gXF = 0
gWF = 160
gWA = [184, 185, 186, 187]
gXA = 188
gT = 189
gACC = 192


PUB_BAR = 12
LAST_BAR = 17
PAIR_BAR = 20
NFIRST = 4
MAXISS = 3
PF_BAR = 3
ROT = 1


def stage_barriers():
    return list(range(0, 12)) + [LAST_BAR]


def gemm_schedule():
    items = [x for n in range(10) for x in (("X", n), ("W", n))] + [("W", n) for n in range(10, 20)]
    rel = lambda it: it[1] + (1 if it[0] == "X" else 2)
    free = list(range(10))
    slot, when, freed = {}, {}, set()
    k = 0
    for bar in range(-1, 12):
        for it in items:
            if it in slot and it not in freed and rel(it) <= bar:
                free.append(slot[it])
                freed.add(it)
        n = 0
        while k < len(items) and free and n < (NFIRST if bar == -1 else MAXISS) and bar != 10:
            slot[items[k]] = free.pop(0)
            when[items[k]] = bar
            k += 1
            n += 1
    assert k == len(items) and when[("W", LAST_BAR - 1)] <= 9 and when[("W", 17)] == 11
    order = [slot[("W", n)] for n in (15, 16, 17, 18, 19, 13, 14, 10, 11, 12)]
    assert sorted(order) == list(range(10)), order
    slot = {it: order.index(v) for it, v in slot.items()}
    return items, slot, when


LCNT0 = 2 * GSL


def lane_id(a, v):
    a(f"v_mbcnt_lo_u32_b32 v{v}, -1, 0\nv_mbcnt_hi_u32_b32 v{v}, -1, v{v}")


def drained(a):
    a(f"s_waitcnt vmcnt(0)\ns_mov_b64 exec, 1\nds_add_u32 v{gT+1}, v{gT+2}\ns_mov_b64 exec, -1\ns_mov_b32 s{sDone}, 1")


def gemm_body(a, vtype):
    L = "LG_v" if vtype else "LG_q"
    items, slot, when = gemm_schedule()

    def kc(q):
        return ((q & 3, (q >> 2) & 3) if q >= 144 else ((q >> 2) & 3, q & 3))

    def wreads(q):
        ks, c = kc(q)
        d = gWF + 4 * (q % 6)
        return [f"ds_read_b64_tr_b16 {vr(d + 2*u, 2)}, v{gWA[c]} offset:{ks*4096 + u*1024}" for u in range(2)]

    def xreads(n):
        for ks in range(4):
            d = gXF + 4 * (4 * n + ks)
            a(f"v_xor_b32 v{d}, {32 * ks}, v{gXA}")
        for ks in range(4):
            d = gXF + 4 * (4 * n + ks)
            a(f"ds_read_b128 {vr(d,4)}, v{d}")

    def advance(n):
        da = (slot[("W", n)] - slot[("W", n - 1)]) * GSL
        a(f"s_cmp_eq_u32 s{sPh}, 1\ns_mov_b32 s{sInc}, {da & 0xffffffff}")
        if n < 10:
            db = (slot[("W", n + 10)] - slot[("W", n + 9)]) * GSL
            a(f"s_cmov_b32 s{sInc}, {db & 0xffffffff}")
        for r in gWA:
            a(f"v_add_u32 v{r}, s{sInc}, v{r}")

    def pack(c):
        out = []
        A = gACC + 16 * c
        out += [f"v_cvt_pk_bf16_f32 v{gACC + 8*c + j}, v{A+2*j}, v{A+2*j+1}" for j in range(8)]
        return out

    def stores(c):
        out = []
        for i in range(2):
            d = vr(gACC + 8*c + 4*i, 4)
            if vtype:
                out.append(f"buffer_store_dwordx4 {d}, v{gT}, {WSR()}, s{sE + i} offen offset:{c * 512} sc1")
            else:
                out.append(f"buffer_store_dwordx4 {d}, v{gT}, {WSR()}, s{sE + (c >> 1)} offen offset:{(c & 1) * 2048 + i * 1024} sc1")
        return out

    a("s_barrier")
    a.c("this workgroup has cleared its share of the counters: count it in")
    a(f"""
    s_cmp_eq_u32 s{sW}, 4
    s_cbranch_scc0 {L}_nocount
    s_and_b32 s{sT0}, s2, 31
    s_lshl_b32 s{sT0}, s{sT0}, 2
    s_add_u32 s{sT0}, s{sT0}, 128
    v_mov_b32 v{gT+1}, 0
    v_mov_b32 v{gT+2}, 1
    s_mov_b64 exec, 1
    buffer_atomic_add v{gT+2}, v{gT+1}, s[{sDbg}:{sDbg+3}], s{sT0} offen sc1
    s_mov_b64 exec, -1
    {L}_nocount:
    v_mov_b32 v{gT+1}, {LCNT0}
    v_mov_b32 v{gT+2}, 1
    s_mov_b32 s{sDone}, 1
    """)
    stamp(a, 1)
    xreads(0)
    for q in range(6):
        for r in wreads(q):
            a(r)
    a(f"{L}_body:")
    for q in range(160):
        n = q >> 4
        ks, c = kc(q)
        if q <= 154:
            a(f"s_waitcnt lgkmcnt({2 * (min(q + 5, 159) - q)})")
        elif q == 155:
            a("s_waitcnt lgkmcnt(0)")
        x, w = vr(gXF + 4 * (4 * n + ks), 4), vr(gWF + 4 * (q % 6), 4)
        A, B = (x, w) if vtype else (w, x)
        d = vr(gACC + 16 * c, 16)
        a(f"v_mfma_f32_32x32x16_bf16 {d}, {A}, {B}, {'0' if q < 4 else d}")
        if (q & 15) == 10:
            if PUB_BAR <= n + 11 <= LAST_BAR:
                a.c("phase b: report once that this wave's stores have drained")
                if n + 11 < LAST_BAR:
                    a(f"s_getreg_b32 s{sT0}, hwreg(HW_REG_IB_STS, 0, 4)\ns_or_b32 s{sT0}, s{sT0}, s{sDone}")
                else:
                    a(f"s_cmp_lg_u32 s{sDone}, 0")
                a(f"s_cbranch_scc1 {L}_nd{n}")
                drained(a)
                a(f"{L}_nd{n}:")
            advance(n + 1)
            both = n + 11 in stage_barriers() or n + 11 == PAIR_BAR
            if both:
                a("s_barrier")
            a(f"s_cbranch_scc1 {L}_nx{n}")
            if not both:
                a("s_barrier")
            if n + 1 < 10:
                dx = (slot[("X", n + 1)] - slot[("X", n)]) * GSL
                a(f"v_add_u32 v{gXA}, {dx & 0xffffffff}, v{gXA}")
                xreads(n + 1)
            a(f"{L}_nx{n}:")
        if q + 6 < 160:
            for r in wreads(q + 6):
                a(r)
        if q == 144:
            a("s_setprio 2")
        if q in (150, 154):
            for x in pack((q - 150) // 4):
                a(x)
        if q in (151, 155):
            for x in stores((q - 151) // 4):
                a(x)
        if q == 156:
            a("s_nop 7")
        if q == 158:
            for x in pack(2):
                a(x)
    for x in stores(2):
        a(x)
    a(f"s_cbranch_scc1 {L}_nopre")
    for q in range(6):
        for r in wreads(q):
            a(r)
    a(f"{L}_nopre:\ns_nop 9")
    for x in pack(3) + stores(3):
        a(x)
    a(f"s_cbranch_scc1 LG_done")
    stamp(a, 2)
    next_units(a)
    step = 6 * 1024 if vtype else 5 * 4096
    a(f"s_add_u32 s{sE}, s{sE}, {step}\ns_add_u32 s{sE+1}, s{sE+1}, {step}\ns_mov_b32 s{sDone}, 0")
    if vtype:
        a(f"s_cmp_eq_u32 s{sTI}, 7\ns_cbranch_scc1 LG_idle")
    a(f"s_branch {L}_body")


def next_units(a):
    a(f"""
    s_mov_b32 s{sPh}, 1
    s_cmp_ge_u32 s{sTI}, 5
    s_cselect_b32 s{sT0}, 6, 5
    s_add_u32 s{sU0}, s{sU0}, s{sT0}
    s_add_u32 s{sU1}, s{sU1}, s{sT0}
    """)


def publish_sub(a):
    t = vPS
    a(f"""
    LG_publish:
    v_cmp_lt_u32 vcc, 31, v0
    v_mov_b32 v{t+3}, s{sU0}
    v_mov_b32 v{t+4}, s{sU1}
    v_cndmask_b32 v{t+3}, v{t+3}, v{t+4}, vcc
    v_mul_u32_u24 v{t+4}, 205, v{t+3}
    v_lshrrev_b32 v{t+4}, 11, v{t+4}
    v_mul_u32_u24 v{t+5}, 10, v{t+4}
    v_sub_u32 v{t+3}, v{t+3}, v{t+5}
    v_lshlrev_b32 v{t+3}, 3, v{t+3}
    v_and_b32 v{t+5}, 31, v0
    v_lshl_add_u32 v{t+4}, v{t+5}, 2, v{t+4}
    v_lshlrev_b32 v{t+4}, 7, v{t+4}
    v_mul_u32_u24 v{t+5}, 5, v{t+5}
    v_lshrrev_b32 v{t+5}, 1, v{t+5}
    v_add_u32 v{t+5}, 2, v{t+5}
    v_sub_u32 v{t+5}, v{t+5}, v{t+3}
    v_cmp_gt_u32 vcc, 10, v{t+5}
    v_mov_b32 v{t+1}, 1
    s_lshl_b32 s{sT1}, s{sBr}, 14
    s_add_u32 s{sT1}, s{sT1}, {WS_C1}
    s_mov_b64 exec, vcc
    buffer_atomic_add v{t+1}, v{t+4}, {WSR()}, s{sT1} offen sc1
    s_mov_b64 exec, -1
    s_setpc_b64 s[{sLnk}:{sLnk+1}]
    """)


def gemm_compute(a):
    items, slot, when = gemm_schedule()
    t0, t1, t2 = 8, 9, 10
    a(f"""
    v_and_b32 v{t0}, 31, v0
    v_lshrrev_b32 v{t1}, 5, v0
    v_lshrrev_b32 v{t2}, 1, v{t0}
    v_and_b32 v{t2}, 7, v{t2}
    v_xor_b32 v{t2}, v{t2}, v{t1}
    v_lshlrev_b32 v{t2}, 4, v{t2}
    v_lshlrev_b32 v{t0}, 7, v{t0}
    v_add_u32 v{t2}, v{t2}, v{t0}
    s_lshl_b32 s{sT0}, s{sJ}, 12
    s_add_u32 s{sT0}, s{sT0}, {slot[("X", 0)] * GSL}
    v_add_u32 v{gXA}, s{sT0}, v{t2}
    v_lshrrev_b32 v{t0}, 2, v0
    v_and_b32 v{t0}, 3, v{t0}
    v_lshlrev_b32 v{t2}, 3, v{t1}
    v_add_u32 v{t2}, v{t2}, v{t0}
    v_lshlrev_b32 v{t2}, 8, v{t2}
    v_lshlrev_b32 v{t0}, 6, v{t0}
    v_add_u32 v{t2}, v{t2}, v{t0}
    v_and_b32 v{t0}, 16, v0
    v_lshlrev_b32 v{t0}, 1, v{t0}
    v_add_u32 v{t2}, v{t2}, v{t0}
    v_add_u32 v{t2}, {slot[("W", 0)] * GSL}, v{t2}
    v_and_b32 v{t0}, 1, v0
    v_and_b32 v{t1}, 2, v0
    s_cmp_ge_u32 s{sTI}, 5
    s_cselect_b32 s{sT0}, 3, 4
    s_cselect_b32 s{sT1}, 3, 2
    v_lshlrev_b32 v{t0}, s{sT0}, v{t0}
    v_lshlrev_b32 v{t1}, s{sT1}, v{t1}
    v_add3_u32 v{gWA[0]}, v{t2}, v{t0}, v{t1}
    v_xor_b32 v{gWA[1]}, 64, v{gWA[0]}
    v_xor_b32 v{gWA[2]}, 128, v{gWA[0]}
    v_xor_b32 v{gWA[3]}, 192, v{gWA[0]}
    s_lshl_b32 s{sT0}, s{sTB}, 2
    s_add_u32 s{sT0}, s{sT0}, s{sJ}
    s_mul_i32 s{sT0}, s{sT0}, {TILE}
    s_add_u32 s{sT0}, s{sT0}, s{sImg}
    v_lshlrev_b32 v{gT}, 4, v0
    s_waitcnt vmcnt(0)
    s_cmp_ge_u32 s{sTI}, 5
    s_cbranch_scc1 LG_vtype
    s_lshl_b32 s{sE}, s{sU0}, 12
    s_lshl_b32 s{sE+1}, s{sU1}, 12
    s_cmp_ge_u32 s{sU0}, 10
    s_cselect_b32 s{sT3}, {IMG - 40960}, 0
    s_add_u32 s{sE}, s{sE}, s{sT3}
    s_cmp_ge_u32 s{sU1}, 10
    s_cselect_b32 s{sT3}, {IMG - 40960}, 0
    s_add_u32 s{sE+1}, s{sE+1}, s{sT3}
    s_add_u32 s{sE}, s{sE}, s{sT0}
    s_add_u32 s{sE+1}, s{sE+1}, s{sT0}
    """)
    gemm_body(a, False)
    a(f"""
    LG_vtype:
    s_lshl_b32 s{sE}, s{sU0}, 10
    s_add_u32 s{sE}, s{sE}, {2 * IMG - 20480}
    s_add_u32 s{sE}, s{sE}, s{sT0}
    s_add_u32 s{sE+1}, s{sE}, 20480
    v_lshrrev_b32 v8, 5, v0
    v_mul_u32_u24 v8, 10240 - 512, v8
    v_add_u32 v{gT}, v{gT}, v8
    """)
    gemm_body(a, True)


def gemm_loader(a):
    items, slot, when = gemm_schedule()
    vE, vO, vWs, vCnt = 230, 231, 232, 233
    sKX, sKW = sKB, sSlot
    a(f"""
    v_lshrrev_b32 v5, 3, v0
    v_mul_u32_u24 v5, 1280, v5
    v_and_b32 v6, 7, v0
    v_lshrrev_b32 v7, 4, v0
    v_xor_b32 v6, v6, v7
    v_lshlrev_b32 v6, 4, v6
    v_add_u32 v{vE}, v5, v6
    v_xor_b32 v6, 64, v6
    v_add_u32 v{vO}, v5, v6
    v_add_u32 v{vO}, {8 * 1280 - 1024}, v{vO}
    v_lshrrev_b32 v5, 2, v0
    v_and_b32 v5, 3, v5
    v_xor_b32 v5, v5, v7
    v_lshrrev_b32 v6, 1, v5
    s_sub_u32 s{sT0}, s{sU1}, s{sU0}
    s_lshl_b32 s{sT0}, s{sT0}, 7
    v_mul_u32_u24 v6, s{sT0}, v6
    v_and_b32 v5, 1, v5
    v_lshl_add_u32 v5, v5, 6, v6
    v_and_b32 v6, 3, v0
    v_lshl_add_u32 v5, v6, 4, v5
    v_mul_u32_u24 v6, 3840, v7
    v_add_u32 v{vWs}, v5, v6
    s_lshl_b32 s{sXo}, s{sTB}, 2
    s_add_u32 s{sXo}, s{sXo}, s{sJ}
    s_mul_i32 s{sXo}, s{sXo}, {32 * 1280}
    s_mul_i32 s{sWo}, s{sJ}, {16 * 3840}
    s_lshl_b32 s{sT0}, s{sU0}, 7
    s_add_u32 s{sWo}, s{sWo}, s{sT0}
    s_lshl_b32 s{sInc}, s{sJ}, 12
    """)
    a.c("workgroups that share a tile start at different k-blocks, so that they fill the L2 together")
    if ROT:
        a(f"""
        s_and_b32 s{sKX}, s{sTB}, 3
        s_mul_i32 s{sKX}, s{sKX}, 5
        s_add_u32 s{sKX}, s{sKX}, 1
        s_lshr_b32 s{sKX}, s{sKX}, 1
        s_add_u32 s{sKX}, s{sKX}, s{sTI}
        s_cmp_ge_u32 s{sKX}, 10
        s_cselect_b32 s{sT0}, 10, 0
        s_sub_u32 s{sKX}, s{sKX}, s{sT0}
        """)
    else:
        a(f"s_and_b32 s{sKX}, s{sTI}, 1")
    a(f"s_mov_b32 s{sKW}, s{sKX}\ns_mov_b32 s{sIt}, 0")
    a(f"""
    s_mov_b32 s{sX+2}, {S * D * 2}
    s_mov_b32 s{sX+3}, 0x00020000
    s_mov_b32 s{sWt+2}, {D * 3 * D * 2}
    s_mov_b32 s{sWt+3}, 0x00020000
    s_waitcnt lgkmcnt(0)
    s_and_b32 s{sX+1}, s{sX+1}, 0xffff
    s_mov_b32 s{sWt}, s{sPtr}
    s_and_b32 s{sWt+1}, s{sPtr+1}, 0xffff
    s_branch LL_go
    """)
    a(f"""
    LL_X:
    s_lshl_b32 s{sT0}, s{sKX}, 7
    s_add_u32 s{sT0}, s{sT0}, s{sXo}
    s_add_u32 s{sKX}, s{sKX}, 1
    buffer_load_dwordx4 v{vE}, s[{sX}:{sX+3}], s{sT0} offen lds
    buffer_load_dwordx4 v{vO}, s[{sX}:{sX+3}], s{sT0} offen offset:1024 lds
    s_add_u32 m0, m0, 2048
    s_add_u32 s{sT0}, s{sT0}, {16 * 1280}
    buffer_load_dwordx4 v{vE}, s[{sX}:{sX+3}], s{sT0} offen lds
    buffer_load_dwordx4 v{vO}, s[{sX}:{sX+3}], s{sT0} offen offset:1024 lds
    s_cmp_eq_u32 s{sKX}, 10
    s_cselect_b32 s{sKX}, 0, s{sKX}
    s_setpc_b64 s[{sLnk}:{sLnk+1}]
    LL_Wskip:
    s_waitcnt vmcnt(0)
    s_setpc_b64 s[{sLnk}:{sLnk+1}]
    LL_W:
    s_cmp_eq_u32 s{sIt}, 1
    s_cbranch_scc1 LL_Wskip
    s_mul_i32 s{sT1}, s{sKW}, {64 * 3840}
    s_add_u32 s{sT1}, s{sT1}, s{sWo}
    s_add_u32 s{sKW}, s{sKW}, 1
    """)
    for p in range(4):
        a(f"buffer_load_dwordx4 v{vWs}, s[{sWt}:{sWt+3}], s{sT1} offen lds")
        if p < 3:
            a(f"s_add_u32 m0, m0, 1024")
            a(f"s_add_u32 s{sT1}, s{sT1}, {4 * 3840}")
    a(f"""
    s_cmp_eq_u32 s{sKW}, 10
    s_cselect_b32 s{sKW}, 0, s{sKW}
    s_setpc_b64 s[{sLnk}:{sLnk+1}]
    """)
    a("LL_go:")
    q = []

    def issue(it):
        if it == ("W", 10):
            a(f"s_cmp_ge_u32 s{sTI}, 5\ns_cselect_b32 s{sT0}, {6 * 128}, s{sC640}\ns_add_u32 s{sWo}, s{sWo}, s{sT0}")
            a(f"s_cmp_eq_u32 s{sTI}, 7\ns_cselect_b32 s{sIt}, 1, 0")
        a(f"s_add_u32 m0, s{sInc}, {slot[it] * GSL}\ns_call_b64 s[{sLnk}:{sLnk+1}], LL_{it[0]}")
        q.extend([it] * 4)

    def wait_for(names):
        last = max(i for i, x in enumerate(q) if x in names)
        a(f"s_waitcnt vmcnt({min(63, len(q) - 1 - last)})")

    sC640 = sT4
    first = [it for it in items if when[it] == -1]
    for it in first:
        issue(it)
    common_setup(a)
    attn_scalars(a)
    attn_vectors(a)
    repack_setup(a)
    vPf = 234
    a(f"""
    v_mov_b32 v{vCnt}, 0
    s_mul_i32 s{sT1}, s{sJ}, 19
    v_add_u32 v8, s{sT1}, v0
    v_min_u32 v8, 74, v8
    v_mul_u32_u24 v9, 205, v8
    v_lshrrev_b32 v9, 10, v9
    v_mul_u32_u24 v9, 5, v9
    v_add3_u32 v9, v9, v8, 5
    v_lshlrev_b32 v{vPf}, 7, v9
    """)
    bars = stage_barriers()
    for bi, bar in enumerate(bars):
        upto = bars[bi + 1] - 1 if bi + 1 < len(bars) else 19
        wait_for([("X", bar), ("W", upto)] + (["cnt"] if bar == 11 else []))
        if bar == 11:
            a.c("all counters must have been cleared before the first one is used")
            a(f"v_cmp_gt_u32 vcc, 8, v{vCnt}\ns_cbranch_vccz LL_cnt_ok")
            poll(a, [(vP + 5, f"s[{sDbg}:{sDbg+3}]", "0")], 8, vPS)
            a("LL_cnt_ok:")
        a("s_barrier")
        stamp(a, 8 + min(bar, 15))
        if bar == 11:
            a.c("wave 0 publishes the phase-a tile once its four storing waves have reported")
            a(f"""
            s_cmp_lg_u32 s{sJ}, 0
            s_cbranch_scc1 LL_pub
            s_mov_b32 s{sSpin}, {SPIN * 8}
            LL_try:
            ds_read_b32 v{vP}, v{vP+2}
            s_waitcnt lgkmcnt(0)
            v_readfirstlane_b32 s{sT0}, v{vP}
            s_cmp_eq_u32 s{sT0}, 4
            s_cbranch_scc1 LL_try_go
            s_sub_u32 s{sSpin}, s{sSpin}, 1
            s_cbranch_scc0 LL_try
            LL_try_go:
            s_call_b64 s[{sLnk}:{sLnk+1}], LG_publish
            """)
            stamp(a, 27)
            a("LL_pub:")
        a(f"s_mov_b32 s{sC640}, 640")
        for it in items:
            if when[it] == bar:
                issue(it)
        if bar == 10:
            a(f"v_mov_b32 v{vP}, 0\nv_mov_b32 v{vP+2}, {LCNT0}\nds_write_b32 v{vP+2}, v{vP}\ns_waitcnt lgkmcnt(0)")
        if bar == PF_BAR:
            a.c("one load per 128-B line of the phase-b columns of five weight rows brings them on chip ahead of use")
            a(f"""
            s_lshr_b32 s{sT0}, s2, 3
            s_lshl_b32 s{sT0}, s{sT0}, 2
            s_and_b32 s{sT1}, s2, 3
            s_add_u32 s{sT0}, s{sT0}, s{sT1}
            s_mul_i32 s{sT0}, s{sT0}, {5 * 3840}
            s_mov_b64 exec, 0x7ffff
            buffer_load_dword v{vPS}, v{vPf}, s[{sWt}:{sWt+3}], s{sT0} offen
            s_mov_b64 exec, -1
            """)
            q.append("pf")
        if bar == 8:
            a(f"buffer_load_dword v{vCnt}, v{vP+5}, s[{sDbg}:{sDbg+3}], 0 offen sc1")
            q.append("cnt")
    a(f"v_mov_b32 v{vP}, 0\nv_mov_b32 v{vP+2}, {LCNT}\nds_write_b32 v{vP+2}, v{vP}")
    write_ones(a, 0)
    vectors_put(a)
    a("s_branch LA_lead")


vKA, vVA, vT0, vT1 = 1, 2, 3, 14
Qm = [4, 8]
Qe = 12
vL16 = 15
Km = [16, 20]
Ke = 24
Vb = [[28, 32], [36, 40]]
vVbase, vVflag, vE16, vVG = 44, 45, 46, 47
NM = 48
SB = [80, 112]
OA = [144, 160]
vD = 176
vP = 182
vPS = 188
vVB2 = 248
NVGPR = 256


def mfma32(d, a_, b, c):
    return f"v_mfma_f32_32x32x16_bf16 {vr(d,16)}, {vr(a_,4)}, {vr(b,4)}, {c}"


def mfma2b(d, ke_tile, c):
    return (f"v_mfma_f32_32x32x4_2b_bf16 {vr(d,32)}, {vr(Ke + 2 * (ke_tile >> 1), 2)}, {vr(Qe,2)}, {c}"
            f" cbsz:1 abid:{ke_tile & 1}")


def valu_stream(X, Y):
    def e(base, i): return f"v_exp_f32 v{base+i}, v{base+i}"
    def c(j):
        dst = X + 8 * (j // 4) + (j % 4)
        return f"v_cvt_pk_bf16_f32 v{dst}, v{X+2*j}, v{X+2*j+1}"
    out = [e(X, 1)]
    for j in range(16):
        out.append(e(X, 2 * j + 2) if j < 15 else e(Y, 0))
        out.append(c(j))
        if j < 15:
            out.append(e(X, 2 * j + 3))
    return out


def tile_iter(a, ii, half=1):
    par = ii & 1
    X, Y = SB[par], SB[par ^ 1]
    Vc, Vn = Vb[par], Vb[par ^ 1]
    Kc, Kn = Km[par ^ 1], Km[par]
    v = valu_stream(X, Y)
    t1 = (ii + 1) % 4
    t2 = (ii + 2) % 4
    kch = CH if (half == 0) == (ii >= 2) else 0
    ins = {}
    ins[2] = [mfma32(OA[1], Vn[1], Y + 24, vr(OA[1], 16)),
              f"ds_read_b128 {vr(Vn[0],4)}, v{vVA} offset:{t1 * 1280}"]
    ins[7] = [mfma2b(Y, t1, vr(NM, 32))]
    ins[17] = [mfma32(OA[0], Vc[0], X, vr(OA[0], 16)),
               f"ds_read_b128 {vr(Vn[1],4)}, v{vVA} offset:{t1 * 1280 + 640}"]
    ins[23] = [mfma32(Y, Kc, Qm[0], vr(Y, 16)),
               f"ds_read_b128 {vr(Kn,4)}, v{vKA} offset:{kch + 2048 + t2 * 1024}"]
    ins[29] = [mfma32(OA[0], Vc[1], X + 8, vr(OA[0], 16))]
    ins[35] = [mfma32(Y + 16, Kc, Qm[1], vr(Y + 16, 16))]
    ins[41] = [mfma32(OA[1], Vc[0], X + 16, vr(OA[1], 16)),
               "s_waitcnt lgkmcnt(0)"]
    if ii == 0:
        ins[29].append(f"s_add_u32 s{sNext}, s{sNext}, {CH}")
    if ii == 2:
        ins[29].append(f"ds_read2st64_b64 {vr(Ke,4)}, v{vKA} offset0:{kch // 512} offset1:{kch // 512 + 2}")
        ins[44] = [f"v_mad_u32_u24 v{vVA}, v{vVflag}, s{sNext}, v{vVbase}"]
    if half == 0:
        if ii == 1:
            ins[29].append(f"s_cmp_eq_u32 s{sM}, s{sRp}")
            ins[35] += ["s_cbranch_scc1 LR_step", "LA_bar:"]
        if ii == 2 and 'noprio' not in OPT:
            ins[35].append("s_setprio 0")
        if ii == 3:
            ins[29].append(f"s_cmp_lt_u32 s{sM}, s{sMend}")
            ins[35] += ["s_waitcnt vmcnt(0)", "s_barrier"]
            if common.STAMP and 'cyc' in OPT:
                ins[35] += ["s_memtime s[4:5]", f"s_mov_b32 m0, s{sM}", "s_waitcnt lgkmcnt(0)", f"s_movreld_b32 s{STAMP_S+8}, s4"]
            if 'noprio' not in OPT:
                ins[35].append("s_setprio 1")
            ins[35] += ["s_cbranch_scc1 LA_refill", "LA_back:"]
    else:
        if ii == 0:
            ins[35].append(f"s_cmp_eq_u32 s{sNext}, s{sRe}")
        if ii == 1:
            ins[29].append(f"s_cselect_b32 s{sNext}, s{sRb}, s{sNext}")
            ins[35].append(f"s_add_u32 s{sM}, s{sM}, 1")
            ins[44] = [f"v_add_u32 v{vKA}, s{sNext}, v{vL16}"]
        if ii == 3:
            ins[35].append(f"s_sub_u32 s{sRem}, s{sRem}, 1")
    for p, op in enumerate(v):
        for x in ins.get(p, []):
            a(x)
        a(op)


def rowmax(a, X, out0, out1):
    for base, o in ((X, out0), (X + 16, out1)):
        a(f"v_max3_f32 v{o}, v{base}, v{base+1}, v{base+2}")
        for r in range(3, 15, 2):
            a(f"v_max3_f32 v{o}, v{o}, v{base+r}, v{base+r+1}")
        a(f"v_max_f32 v{o}, v{o}, v{base+15}")


def cross_half_max(a, r, tmp):
    a(f"v_mov_b32 v{tmp}, v{r}\ns_nop 1\nv_permlane32_swap_b32 v{tmp}, v{r}\ns_nop 1\nv_max_f32 v{r}, v{r}, v{tmp}")


def fill_nm(a, m0, m1):
    for r in range(16):
        a(f"v_sub_f32 v{NM+r}, 0, v{m0}")
    for r in range(16):
        a(f"v_sub_f32 v{NM+16+r}, 0, v{m1}")


def attn_scalars(a):
    a.c("head offsets: main octs start at (5g+1)>>1; the ext quad shares an oct with the neighbouring head;")
    a.c("arrivals expected per kind: 16 token blocks x number of 64-column units that hold the head")
    a(f"""
    s_mul_i32 s{sOm}, s{sHead}, 5
    s_add_u32 s{sOm}, s{sOm}, 1
    s_lshr_b32 s{sOm}, s{sOm}, 1
    s_lshl_b32 s{sOm}, s{sOm}, 9
    s_and_b32 s{sT0}, s{sHead}, 1
    s_mov_b32 s{sT1}, 1024
    s_cselect_b32 s{sT1}, {(-512 + 8) & 0xffffffff}, s{sT1}
    s_add_u32 s{sExt}, s{sOm}, s{sT1}
    s_min_u32 s{sT0}, s{sOm}, s{sExt}
    s_add_u32 s{sT2}, s{sOm}, 512
    s_max_u32 s{sT1}, s{sExt}, s{sT2}
    s_lshr_b32 s{sT0}, s{sT0}, 12
    s_lshr_b32 s{sT1}, s{sT1}, 12
    s_cmp_eq_u32 s{sT0}, s{sT1}
    s_cselect_b32 s{sExp}, 16, 32
    """)


def attn_vectors(a):
    a(f"""
    s_and_b32 s{sT0}, s{sHead}, 1
    v_lshlrev_b32 v{vL16}, 4, v0
    v_lshrrev_b32 v{vT0}, 5, v0
    v_mul_u32_u24 v{vT1}, {TILE}, v{vT0}
    v_and_b32 v{vP}, 31, v0
    v_lshl_add_u32 v{vE16}, v{vP}, 4, v{vT1}
    """)
    a.c("V rows: 0..15 main dims, 16..19 ext dims, 20 and 24 ones, the others zero (address past the allocation)")
    a(f"""
    s_lshl_b32 s{sT0}, s{sT0}, 2
    v_and_b32 v{vP+1}, 3, v0
    v_and_b32 v{vP+2}, 4, v0
    v_lshl_add_u32 v{vP+1}, v{vP+2}, 1, v{vP+1}
    v_and_b32 v{vP+2}, 8, v0
    v_lshrrev_b32 v{vP+2}, 1, v{vP+2}
    v_add3_u32 v{vP+1}, v{vP+1}, v{vP+2}, s{sT0}
    s_lshl_b32 s{sT0}, s{sT0}, 2
    v_subrev_u32 v{vP+2}, s{sT0}, v{vP}
    v_cmp_gt_u32 vcc, 16, v{vP}
    v_mul_u32_u24 v{vT1}, 10240, v{vT0}
    v_mul_u32_u24 v{vT0}, 320, v{vT0}
    v_cndmask_b32 v{vP+1}, v{vP+2}, v{vP+1}, vcc
    v_lshlrev_b32 v{vP+1}, 4, v{vP+1}
    v_add_u32 v{vVG}, v{vP+1}, v{vT1}
    v_add_u32 v{vVbase}, v{vP+1}, v{vT0}
    v_add_u32 v{vVbase}, 6144, v{vVbase}
    v_cmp_gt_u32 vcc, 20, v{vP}
    v_mov_b32 v{vP+1}, 0x100000
    v_mov_b32 v{vP+2}, {ONES[0]}
    v_cndmask_b32 v{vVflag}, 0, 1, vcc
    v_cndmask_b32 v{vVbase}, v{vP+1}, v{vVbase}, vcc
    v_cmp_eq_u32 vcc, 20, v{vP}
    v_cmp_eq_u32 s[{sT3}:{sT4}], 24, v{vP}
    s_or_b64 vcc, vcc, s[{sT3}:{sT4}]
    v_mov_b32 v{vP+1}, {ONES[1]}
    s_nop 0
    v_cndmask_b32 v{vVB2}, v{vVbase}, v{vP+1}, vcc
    v_cndmask_b32 v{vVbase}, v{vVbase}, v{vP+2}, vcc
    """)
    a.c("DMA source offsets: even waves load K pieces, odd waves V pieces")
    a(f"""
    s_and_b32 s{sT0}, s{sJ}, 1
    s_cbranch_scc1 LA_dv
    v_add_u32 v{vD}, s{sExt}, v{vE16}
    v_add_u32 v{vD+1}, {2 * TILE}, v{vD}
    v_add_u32 v{vD+2}, s{sOm}, v{vL16}
    v_add_u32 v{vD+3}, {TILE}, v{vD+2}
    v_add_u32 v{vD+4}, {TILE}, v{vD+3}
    v_add_u32 v{vD+5}, {TILE}, v{vD+4}
    s_branch LA_dd
    LA_dv:
    s_mul_i32 s{sT0}, s{sHead}, 320
    s_add_u32 s{sT0}, s{sT0}, {IMG}
    """)
    for p in range(5):
        a(f"""
        v_add_u32 v{vP}, {64 * p}, v0
        v_mul_u32_u24 v{vP+1}, 3277, v{vP}
        v_lshrrev_b32 v{vP+1}, 16, v{vP+1}
        v_mul_u32_u24 v{vP+2}, 20, v{vP+1}
        v_sub_u32 v{vP+2}, v{vP}, v{vP+2}
        v_mul_u32_u24 v{vP+1}, 10240, v{vP+1}
        v_lshl_add_u32 v{vP+1}, v{vP+2}, 4, v{vP+1}
        v_add_u32 v{vD+p}, s{sT0}, v{vP+1}
        """)
    a(f"""
    v_mov_b32 v{vD+5}, v{vD+4}
    LA_dd:
    v_lshlrev_b32 v{vP+3}, 7, v0
    v_mov_b32 v{vP+4}, 0
    v_lshlrev_b32 v{vP+5}, 2, v0
    v_or_b32 v{vP+5}, 128, v{vP+5}
    """)


def vectors_put(a):
    a(f"""
    s_and_b32 s{sT0}, s{sJ}, 1
    s_lshl_b32 s{sT0}, s{sT0}, 12
    s_add_u32 s{sT0}, s{sT0}, {XFER}
    v_add_u32 v{vT0}, s{sT0}, v{vL16}
    v_mov_b32 v20, v{vVB2}
    v_mov_b32 v21, v{vVflag}
    v_mov_b32 v22, v{vE16}
    v_mov_b32 v23, v{vVG}
    ds_write_b128 v{vT0}, v[20:23]
    ds_write_b128 v{vT0}, {vr(vD,4)} offset:1024
    ds_write_b64 v{vT0}, {vr(vD+4,2)} offset:2048
    """)


def vectors_get(a):
    lane_id(a, 0)
    a(f"""
    s_and_b32 s{sT0}, s{sJ}, 1
    s_lshl_b32 s{sT0}, s{sT0}, 12
    s_add_u32 s{sT0}, s{sT0}, {XFER}
    v_lshlrev_b32 v{vL16}, 4, v0
    v_add_u32 v{vT0}, s{sT0}, v{vL16}
    ds_read_b128 {vr(vVbase,4)}, v{vT0}
    ds_read_b128 {vr(vD,4)}, v{vT0} offset:1024
    ds_read_b64 {vr(vD+4,2)}, v{vT0} offset:2048
    v_lshlrev_b32 v{vP+3}, 7, v0
    """)
    attn_scalars(a)
    a("s_waitcnt lgkmcnt(0)")


def dma_sub(a):
    a(f"""
    LA_dma:
    s_add_u32 s{sT2}, s{sT1}, s{sQB}
    s_and_b32 s{sT2}, s{sT2}, 7
    s_lshl_b32 s{sT2}, s{sT2}, 1
    s_lshr_b32 s{sT3}, s{sJ}, 1
    s_add_u32 s{sT2}, s{sT2}, s{sT3}
    s_mul_i32 s{sT2}, s{sT2}, {4 * TILE}
    s_lshl_b32 s{sT4}, s{sJ}, 1
    s_and_b32 s{sT4}, s{sT4}, 2
    s_lshr_b32 s{sT4}, 20480, s{sT4}
    s_mul_i32 s{sT4}, s{sT4}, s{sT0}
    s_add_u32 s{sT2}, s{sT2}, s{sT4}
    s_add_u32 s{sT2}, s{sT2}, s{sImg}
    s_add_u32 s{sT2}, s{sT2}, {IMG}
    s_sub_u32 s{sT1}, s{sT1}, s{sT0}
    s_add_u32 s{sT1}, s{sT1}, 1
    s_mul_i32 s{sT4}, s{sT1}, 43
    s_lshr_b32 s{sT4}, s{sT4}, 7
    s_mul_i32 s{sT4}, s{sT4}, 3
    s_sub_u32 s{sT1}, s{sT1}, s{sT4}
    s_lshl_b32 s{sT1}, s{sT1}, 1
    s_add_u32 s{sT1}, s{sT1}, s{sT3}
    s_mul_i32 s{sT1}, s{sT1}, {CH}
    s_mul_i32 s{sT4}, s{sT0}, {RA - RB}
    s_sub_u32 s{sT1}, s{sT1}, s{sT4}
    s_add_u32 s{sT1}, s{sT1}, {RA}
    s_and_b32 s{sT3}, s{sJ}, 1
    s_mul_i32 s{sT4}, s{sT3}, 6144
    s_add_u32 m0, s{sT1}, s{sT4}
    s_nop 0
    """)
    for p in range(5):
        a(f"buffer_load_dwordx4 v{vD+p}, {WSR()}, s{sT2} offen sc1 lds")
        a("s_add_u32 m0, m0, 1024")
        a("s_nop 0" if p < 4 else f"s_cmp_eq_u32 s{sT3}, 1")
    a(f"""
    s_cbranch_scc1 LA_dma_ret
    buffer_load_dwordx4 v{vD+5}, {WSR()}, s{sT2} offen sc1 lds
    LA_dma_ret:
    s_setpc_b64 s[{sLnk}:{sLnk+1}]
    """)


def call_dma(a, b, blk):
    a(f"s_mov_b32 s{sT0}, {b}\ns_mov_b32 s{sT1}, {blk}\ns_call_b64 s[{sLnk}:{sLnk+1}], LA_dma")


def poll_f1(a):
    a(f"""
    s_lshl_b32 s{sT0}, s{sBr}, 5
    s_add_u32 s{sT0}, s{sT0}, s{sHead}
    s_lshl_b32 s{sT0}, s{sT0}, 9
    s_add_u32 s{sT0}, s{sT0}, {WS_C1}
    """)
    poll_counter(a, vP + 3, f"s{sT0}", f"s{sExp}", 7)


def load_q(a):
    a(f"""
    s_lshl_b32 s{sT0}, s{sQB}, 2
    s_add_u32 s{sT0}, s{sT0}, s{sJ}
    s_mul_i32 s{sT0}, s{sT0}, {2 * TILE}
    s_add_u32 s{sT0}, s{sT0}, s{sImg}
    s_add_u32 s{sT1}, s{sT0}, s{sOm}
    s_add_u32 s{sT2}, s{sT1}, {TILE}
    s_add_u32 s{sT0}, s{sT0}, s{sExt}
    buffer_load_dwordx4 {vr(Qm[0],4)}, v{vL16}, {WSR()}, s{sT1} offen sc1
    buffer_load_dwordx4 {vr(Qm[1],4)}, v{vL16}, {WSR()}, s{sT2} offen sc1
    buffer_load_dwordx2 {vr(Qe,2)}, v{vE16}, {WSR()}, s{sT0} offen sc1
    """)


def scale_q(a, nyounger):
    a(f"s_mov_b32 s4, {hex(f32bits(QSCALE))}\ns_mov_b32 s5, s4\ns_waitcnt vmcnt({nyounger})")
    for r in range(Qm[0], Qe + 2):
        a(f"""
        v_lshlrev_b32 v{vP}, 16, v{r}
        v_and_b32 v{vP+1}, 0xffff0000, v{r}
        v_pk_mul_f32 {vr(vP,2)}, {vr(vP,2)}, s[4:5]
        v_cvt_pk_bf16_f32 v{r}, v{vP}, v{vP+1}
        """)


def attn_zero(a):
    Z = Vb[1][1]
    for r in (Z, Z + 2, SB[1] + 24, SB[1] + 26):
        a(f"v_pk_mov_b32 {vr(r,2)}, 0, 0")
    a(f"v_mov_b32 v{vP}, 0xbf800000\nv_mov_b32 v{vP+1}, 0\nv_mov_b32 v{vPS+1}, 0")
    a(f"v_mfma_f32_32x32x4_2b_bf16 {vr(OA[0],32)}, {vr(Z,2)}, {vr(Z,2)}, 0")
    a(f"""
    s_add_u32 s{sRe}, s{sRb}, {RING}
    s_mov_b32 s{sRem}, 7
    v_add_u32 v{vKA}, s{sNext}, v{vL16}
    v_mad_u32_u24 v{vVA}, v{vVflag}, s{sNext}, v{vVbase}
    """)


def attention(a):
    X = SB[0]
    a("LA_start:")
    stamp_cyc(a, 24)
    a(f"""
    ds_read_b128 {vr(Km[0],4)}, v{vKA} offset:2048
    ds_read2st64_b64 {vr(Ke,4)}, v{vKA} offset0:0 offset1:2
    ds_read_b128 {vr(Km[1],4)}, v{vKA} offset:3072
    ds_read_b128 {vr(Vb[0][0],4)}, v{vVA}
    ds_read_b128 {vr(Vb[0][1],4)}, v{vVA} offset:640
    s_waitcnt lgkmcnt(4)
    """)
    a(mfma32(X, Km[0], Qm[0], 0))
    a(mfma32(X + 16, Km[0], Qm[1], 0))
    a("s_nop 8\ns_waitcnt lgkmcnt(3)")
    a(mfma2b(X, 0, vr(X, 32)))
    a("s_nop 15\ns_nop 3")
    a.c("softmax shift: row max over the first key tile, cut to bf16; the epilogue checks that it was safe.")
    a.c("A rank-1 MFMA (-1 x shift) subtracts it from the scores and spreads it over the C operand of the loop")
    rowmax(a, X, vT0, vT1)
    a(f"""
    s_nop 1
    v_permlane32_swap_b32 v{vT0}, v{vT1}
    s_nop 1
    v_max_f32 v{vT0}, v{vT0}, v{vT1}
    v_and_b32 v{vPS}, 0xffff0000, v{vT0}
    s_nop 1
    v_mfma_f32_32x32x4_2b_bf16 {vr(X,32)}, {vr(vP,2)}, {vr(vPS,2)}, {vr(X,32)}
    v_mfma_f32_32x32x4_2b_bf16 {vr(NM,32)}, {vr(vP,2)}, {vr(vPS,2)}, 0
    s_nop 15
    s_nop 1
    s_waitcnt lgkmcnt(0)
    v_exp_f32 v{X}, v{X}
    .p2align 6
    LA_loop:
    """)
    for half in range(2):
        for ii in range(4):
            tile_iter(a, ii, half)
    a("s_cbranch_scc0 LA_loop\ns_nop 0")
    a(mfma32(OA[1], Vb[1][1], SB[1] + 24, vr(OA[1], 16)))
    a(f"s_cmp_eq_u32 s{sRole}, 0\ns_cbranch_scc1 LA_fin2\ns_setprio 2\ns_barrier\nLA_fin2:")
    stamp(a, 4)
    stamp_cyc(a, 31)
    N = SB[0]
    rc = SB[1]
    a(f"""
    s_lshl_b32 s{sT0}, s{sQB}, 2
    s_add_u32 s{sT0}, s{sT0}, s{sJ}
    s_mul_i32 s{sXo}, s{sT0}, {2 * TILE}
    s_add_u32 s{sXo}, s{sXo}, s{sImg}
    s_add_u32 s{sXo}, s{sXo}, {3 * IMG}
    s_mov_b32 s{sRem}, 0
    LA_epi:
    v_cmp_lt_u32 vcc, 31, v0
    s_add_u32 s{sT0}, s{sXo}, s{sOm}
    s_add_u32 s{sT1}, s{sT0}, {TILE}
    s_add_u32 s{sT2}, s{sXo}, s{sExt}
    v_cndmask_b32 v{vT0}, v{OA[0]+12}, v{OA[0]+8}, vcc
    v_rcp_f32 v{rc}, v{vT0}
    v_cndmask_b32 v{vT1}, v{OA[1]+12}, v{OA[1]+8}, vcc
    v_rcp_f32 v{rc+2}, v{vT1}
    """)
    for u in range(2):
        O, P = OA[u], N + 12 * u
        for r in range(0, 12, 2):
            a(f"v_pk_mul_f32 {vr(P+r,2)}, {vr(O+r,2)}, {vr(rc+2*u,2)} op_sel_hi:[1,0]")
        for j in range(6):
            a(f"v_cvt_pk_bf16_f32 v{P+j}, v{P+2*j}, v{P+2*j+1}")
        a(f"buffer_store_dwordx4 {vr(P,4)}, v{vL16}, {WSR()}, s{sT1 if u else sT0} offen sc1")
    a(f"""
    s_mov_b32 s{sT0}, {f32bits(2.0**30)}
    v_permlane32_swap_b32 v{N+4}, v{N+16}
    v_permlane32_swap_b32 v{N+5}, v{N+17}
    s_mov_b32 s{sT1}, {f32bits(2.0**-30)}
    buffer_store_dwordx2 {vr(N+4,2)}, v{vE16}, {WSR()}, s{sT2} offen sc1
    """)
    a.c("safety check of the shift before anything is published: row sums inside [2^-30, 2^30], finite accumulators")
    tm = rc + 4
    a(f"v_pk_add_f32 {vr(tm,2)}, {vr(OA[0],2)}, {vr(OA[1],2)}")
    for r in range(2, 12, 2):
        a(f"v_pk_add_f32 {vr(tm,2)}, {vr(tm,2)}, {vr(OA[0]+r,2)}")
        a(f"v_pk_add_f32 {vr(tm,2)}, {vr(tm,2)}, {vr(OA[1]+r,2)}")
    a(f"""
    v_add_f32 v{tm}, v{tm}, v{tm+1}
    v_mul_f32 v{tm}, 0, v{tm}
    v_add_f32 v{tm+1}, v{vT0}, v{vT1}
    v_add_f32 v{tm}, v{tm}, v{tm+1}
    v_min_f32 v{tm+1}, v{vT0}, v{vT1}
    v_cmp_gt_f32 s[4:5], s{sT0}, v{tm}
    v_cmp_lt_f32 vcc, s{sT1}, v{tm+1}
    s_and_b64 s[4:5], s[4:5], vcc
    s_cmp_eq_u64 s[4:5], -1
    s_cselect_b32 s{sT0}, 1, s{sRem}
    s_cmp_eq_u32 s{sT0}, 0
    s_cbranch_scc1 LA_slow
    """)


def refill(a):
    a.c("role-B waves refill both rings: after barrier m, A block m+2 and B block m-SK+2")
    a(f"""
    LA_refill:
    s_cmp_gt_u32 s{sM}, 5
    s_cbranch_scc1 LA_ev_b
    s_mov_b32 s{sT0}, 0
    s_add_u32 s{sT1}, s{sM}, 2
    s_call_b64 s[{sLnk}:{sLnk+1}], LA_dma
    LA_ev_b:
    s_sub_u32 s{sT1}, s{sM}, {SK - 2}
    s_cmp_lt_u32 s{sT1}, 3
    s_cbranch_scc1 LA_back
    s_mov_b32 s{sT0}, 1
    s_call_b64 s[{sLnk}:{sLnk+1}], LA_dma
    s_branch LA_back
    """)


def slow_path(a):
    X = SB[0]
    m0, m1, t0, t1 = SB[1], SB[1] + 1, SB[1] + 2, SB[1] + 3

    def kloads(t):
        a(f"buffer_load_dwordx4 {vr(Km[0],4)}, v{vL16}, {WSR()}, s{sT1} offen sc1")
        if t == 0:
            a(f"buffer_load_dwordx2 {vr(Ke,2)}, v{vE16}, {WSR()}, s{sT2} offen sc1")
            a(f"s_add_u32 s{sT2}, s{sT2}, {2 * TILE}")
        a(f"s_add_u32 s{sT1}, s{sT1}, {TILE}")

    def kbase():
        a(f"""
        s_add_u32 s{sT0}, s{sImg}, {IMG}
        s_add_u32 s{sT1}, s{sT0}, s{sOm}
        s_add_u32 s{sT2}, s{sT0}, s{sExt}
        s_mov_b32 s{sRem}, 0
        """)
    a(f"LA_slow:\nv_mov_b32 v{m0}, 0xff800000\nv_mov_b32 v{m1}, 0xff800000")
    kbase()
    a("LA_slow_max:")
    for t in range(2):
        kloads(t)
        a("s_waitcnt vmcnt(0)")
        a(mfma32(X, Km[0], Qm[0], 0))
        a(mfma32(X + 16, Km[0], Qm[1], 0))
        a("s_nop 9")
        a(mfma2b(X, t, vr(X, 32)))
        a("s_nop 15\ns_nop 3")
        rowmax(a, X, t0, t1)
        a(f"v_max_f32 v{m0}, v{m0}, v{t0}\nv_max_f32 v{m1}, v{m1}, v{t1}")
    a(f"s_add_u32 s{sRem}, s{sRem}, 1\ns_cmp_lt_u32 s{sRem}, 32\ns_cbranch_scc1 LA_slow_max")
    cross_half_max(a, m0, t0)
    cross_half_max(a, m1, t0)
    fill_nm(a, m0, m1)
    for r in range(32):
        a(f"v_mov_b32 v{OA[0]+r}, 0")
    for r in range(8):
        a(f"v_mov_b32 v{Vb[0][0]+r}, 0x3f803f80")
    kbase()
    a(f"""
    s_mul_i32 s{sT3}, s{sHead}, 320
    s_add_u32 s{sT3}, s{sT3}, s{sT0}
    s_add_u32 s{sT3}, s{sT3}, {IMG}
    LA_slow_pv:
    """)
    for t in range(2):
        kloads(t)
        a(f"""
        s_add_u32 s{sT4}, s{sT3}, 20480
        s_mov_b32 exec_lo, 0xfffff
        s_mov_b32 exec_hi, 0xfffff
        buffer_load_dwordx4 {vr(Vb[0][0],4)}, v{vVG}, {WSR()}, s{sT3} offen sc1
        buffer_load_dwordx4 {vr(Vb[0][1],4)}, v{vVG}, {WSR()}, s{sT4} offen sc1
        s_mov_b64 exec, -1
        s_add_u32 s{sT3}, s{sT3}, {TILE}
        s_waitcnt vmcnt(2)
        """)
        a(mfma32(X, Km[0], Qm[0], vr(NM, 16)))
        a(mfma32(X + 16, Km[0], Qm[1], vr(NM + 16, 16)))
        a("s_nop 9")
        a(mfma2b(X, t, vr(X, 32)))
        a("s_nop 15\ns_nop 3")
        for r in range(32):
            a(f"v_exp_f32 v{X+r}, v{X+r}")
        a("s_nop 0")
        for j in range(16):
            a(f"v_cvt_pk_bf16_f32 v{X + 8*(j//4) + j%4}, v{X+2*j}, v{X+2*j+1}")
        a("s_waitcnt vmcnt(0)\ns_nop 1")
        a(mfma32(OA[0], Vb[0][0], X, vr(OA[0], 16)))
        a(mfma32(OA[0], Vb[0][1], X + 8, vr(OA[0], 16)))
        a(mfma32(OA[1], Vb[0][0], X + 16, vr(OA[1], 16)))
        a(mfma32(OA[1], Vb[0][1], X + 24, vr(OA[1], 16)))
    a(f"""
    s_add_u32 s{sRem}, s{sRem}, 1
    s_cmp_lt_u32 s{sRem}, 32
    s_cbranch_scc1 LA_slow_pv
    s_nop 15
    s_mov_b32 s{sRem}, 1
    s_branch LA_epi
    """)


pWF = [16, 56]
pACC = 96
pOF = 136
pWA, pOA = 2, 3


def c3_off(a, dst, t64, part):
    a(f"""
    s_lshl_b32 s{dst}, s{sBr}, 5
    s_add_u32 s{dst}, s{dst}, s{t64}
    s_lshl_b32 s{dst}, s{dst}, 1
    s_add_u32 s{dst}, s{dst}, s{part}
    s_lshl_b32 s{dst}, s{dst}, 7
    s_add_u32 s{dst}, s{dst}, {WS_C3}
    """)


def wo_dma(a, k0, k1, lds0):
    _lbl[0] += 1
    L = f"LP_wd{_lbl[0]}"
    a(f"""
    s_and_b32 s{sT0}, s{sHead}, 3
    s_lshl_b32 s{sT1}, s{sBr}, 2
    s_add_u32 s{sT0}, s{sT0}, s{sT1}
    s_mul_i32 s{sT0}, s{sT0}, {WO_SLAB}
    s_lshl_b32 s{sT1}, s{sJ}, 10
    s_add_u32 s{sT0}, s{sT0}, s{sT1}
    s_add_u32 s{sT0}, s{sT0}, {WS_WO + 10240 * k0}
    s_add_u32 s{sT1}, s{sT1}, {lds0}
    {L}:
    s_mov_b32 m0, s{sT1}
    s_add_u32 s{sT1}, s{sT1}, 4096
    buffer_load_dwordx4 v{vL16}, {WSR()}, s{sT0} offen sc1 lds
    s_add_u32 s{sT0}, s{sT0}, 4096
    s_cmp_lt_u32 s{sT1}, {lds0 + 10240 * (k1 - k0)}
    s_cbranch_scc1 {L}
    """)


def o_fetch_sub(a):
    a(f"""
    LP_fetch:
    s_lshl_b32 s{sT1}, s{sQB}, 2
    s_lshr_b32 s{sT2}, s{sHead}, 2
    s_add_u32 s{sT1}, s{sT1}, s{sT2}
    """)
    c3_off(a, sT0, sT1, sPh)
    a(f"""
    v_and_b32 v{vP+3}, 15, v0
    s_lshl_b32 s{sT1}, s{sT1}, 1
    s_lshr_b32 s{sT2}, s{sJ}, 1
    s_add_u32 s{sT1}, s{sT1}, s{sT2}
    s_mul_i32 s{sT1}, s{sT1}, {TILE}
    s_add_u32 s{sT1}, s{sT1}, s{sImg}
    s_and_b32 s{sT2}, s{sJ}, 1
    s_lshl_b32 s{sT2}, s{sT2}, 8
    s_add_u32 s{sT1}, s{sT1}, s{sT2}
    s_mul_i32 s{sT2}, s{sPh}, 20480
    s_add_u32 s{sT1}, s{sT1}, s{sT2}
    s_add_u32 s{sT1}, s{sT1}, {3 * IMG}
    v_lshrrev_b32 v{pOA}, 4, v0
    v_lshlrev_b32 v{pOA}, 9, v{pOA}
    v_lshl_add_u32 v{pOA}, v{vP+3}, 4, v{pOA}
    """)
    poll_counter(a, vP + 4, f"s{sT0}", 16, 1)
    for s in range(10):
        a(f"buffer_load_dwordx4 {vr(pOF + 4*s, 4)}, v{pOA}, {WSR()}, s{sT1} offen offset:{(s & 1) * 2048} sc1")
        if s & 1 and s < 9:
            a(f"s_add_u32 s{sT1}, s{sT1}, 4096")
    a(f"s_setpc_b64 s[{sLnk}:{sLnk+1}]")


sTab = 52


def oproj_sub(a, label, p0):
    def wreads(p):
        return [f"ds_read_b128 {vr(pWF[p & 1] + 4*c, 4)}, v{pWA} offset:{c * 1024}" for c in range(10)]
    a(f"{label}:\nv_add_u32 v{pWA}, s{sTab}, v{vL16}")
    for r in wreads(p0):
        a(r)
    for p in range(p0, p0 + 5):
        rd = wreads(p + 1) if p + 1 < p0 + 5 else []
        if rd:
            a(f"v_add_u32 v{pWA}, s{sTab + p + 1 - p0}, v{vL16}")
        for c in range(10):
            A = pACC + 4 * c
            a(f"s_waitcnt lgkmcnt({9 if rd else 9 - c})")
            a(f"v_mfma_f32_16x16x32_bf16 {vr(A,4)}, {vr(pOF + 4*p, 4)}, {vr(pWF[p & 1] + 4*c, 4)}, {vr(A,4)}")
            if rd:
                a(rd[c])
    a(f"s_setpc_b64 s[{sLnk}:{sLnk+1}]")


def call_mm(a, label, addrs):
    for i, x in enumerate(addrs):
        a(f"s_mov_b32 s{sTab + i}, {x}")
    a(f"s_call_b64 s[{sLnk}:{sLnk+1}], {label}")


def out_store(a):
    a.c("lane holds columns 10*(l & 15) .. +9 of tokens 4*(l >> 4) + r")
    a(f"""
    s_lshl_b32 s{sT0}, s{sQB}, 2
    s_lshr_b32 s{sT1}, s{sHead}, 2
    s_add_u32 s{sT0}, s{sT0}, s{sT1}
    s_lshl_b32 s{sT0}, s{sT0}, 2
    s_add_u32 s{sT0}, s{sT0}, s{sJ}
    s_mul_i32 s{sT0}, s{sT0}, {16 * 2560}
    s_mul_i32 s{sT1}, s{sBr}, 1280
    s_add_u32 s{sT0}, s{sT0}, s{sT1}
    s_and_b32 s{sT1}, s{sHead}, 3
    s_mul_i32 s{sT1}, s{sT1}, 320
    s_add_u32 s{sT0}, s{sT0}, s{sT1}
    s_add_u32 s{sT1}, s{sT0}, {2 * 2560}
    v_lshrrev_b32 v4, 4, v0
    v_mul_u32_u24 v4, {4 * 2560}, v4
    v_and_b32 v5, 15, v0
    v_mul_u32_u24 v5, 20, v5
    v_add_u32 v4, v4, v5
    """)
    for r in range(4):
        P = 16 + 6 * r
        for j in range(5):
            a(f"v_cvt_pk_bf16_f32 v{P+j}, v{pACC + 8*j + r}, v{pACC + 8*j + 4 + r}")
        so = sT0 if r < 2 else sT1
        a(f"buffer_store_dwordx4 {vr(P,4)}, v4, s[{sOut}:{sOut+3}], s{so} offen offset:{(r & 1) * 2560}")
        a(f"buffer_store_dword v{P+4}, v4, s[{sOut}:{sOut+3}], s{so} offen offset:{(r & 1) * 2560 + 16}")


rL, rT, rD, rX, rData = 194, 199, 200, 205, 208


def repack_setup(a):
    x = rX
    for i in range(5):
        a(f"""
        v_add_u32 v{x}, {64 * i}, v0
        v_mul_u32_u24 v{x+1}, 3277, v{x}
        v_lshrrev_b32 v{x+1}, 16, v{x+1}
        v_mul_u32_u24 v{x+2}, 20, v{x+1}
        v_sub_u32 v{x+2}, v{x}, v{x+2}
        v_mul_u32_u24 v{x+1}, 1280, v{x+1}
        v_lshl_add_u32 v{rL+i}, v{x+2}, 4, v{x+1}
        v_and_b32 v{x}, 15, v0
        v_add_u32 v{x}, {16 * i}, v{x}
        v_mul_u32_u24 v{x+1}, 205, v{x}
        v_lshrrev_b32 v{x+1}, 11, v{x+1}
        v_mul_u32_u24 v{x+2}, 10, v{x+1}
        v_sub_u32 v{x+2}, v{x}, v{x+2}
        v_mul_u32_u24 v{x+2}, 1040, v{x+2}
        v_lshl_add_u32 v{x+2}, v{x+1}, 4, v{x+2}
        v_and_b32 v{x}, 48, v0
        v_lshl_add_u32 v{x+2}, v{x}, 4, v{x+2}
        v_add_u32 v{rD+i}, {RPK}, v{x+2}
        """)
    a(f"""
    v_lshrrev_b32 v{x}, 4, v0
    v_lshlrev_b32 v{x}, 3, v{x}
    v_lshrrev_b32 v{x+1}, 2, v0
    v_and_b32 v{x+1}, 3, v{x+1}
    v_add_u32 v{x}, v{x}, v{x+1}
    v_mul_u32_u24 v{x}, 320, v{x}
    v_and_b32 v{x+1}, 3, v0
    v_lshl_add_u32 v{x}, v{x+1}, 3, v{x}
    v_add_u32 v{rT}, {RPK}, v{x}
    v_add_u32 v{rX}, {RPK}, v{vL16}
    """)


def repack_steps(a):
    a(f"""
    LR_step:
    s_add_u32 s{sRp}, s{sRp}, 1
    s_lshr_b32 s{sT2}, s2, 3
    s_cmp_eq_u32 s{sM}, {SK + 1}
    s_cbranch_scc0 LR_s1
    s_mov_b32 s{sWt}, s{sPtr+2}
    s_and_b32 s{sWt+1}, s{sPtr+3}, 0xffff
    s_mov_b32 s{sWt+2}, {D * D * 2}
    s_mov_b32 s{sWt+3}, 0x00020000
    s_mul_i32 s{sT0}, s{sT2}, {32 * 1280}
    s_and_b32 s{sT1}, s2, 3
    s_mul_i32 s{sT1}, s{sT1}, 320
    s_add_u32 s{sT0}, s{sT0}, s{sT1}
    s_mov_b32 m0, {RPK}
    s_add_u32 s{sT1}, s{sT0}, {16 * 1280}
    """)
    for i in range(10):
        a(f"buffer_load_dwordx4 v{rL + i % 5}, s[{sWt}:{sWt+3}], s{sT1 if i >= 5 else sT0} offen lds")
        a("s_add_u32 m0, m0, 1024\ns_nop 0")
    a(f"""
    s_branch LA_bar
    LR_s1:
    s_cmp_eq_u32 s{sM}, {SK + 2}
    s_cbranch_scc0 LR_s2
    s_and_b32 s{sT0}, s2, 7
    s_mul_i32 s{sT0}, s{sT0}, {WO_SLAB}
    s_mul_i32 s{sT2}, s{sT2}, 10240
    s_add_u32 s{sT0}, s{sT0}, s{sT2}
    s_add_u32 s{sT0}, s{sT0}, {WS_WO}
    """)
    for ct in range(10):
        for u in range(2):
            a(f"ds_read_b64_tr_b16 {vr(rData + 4*ct + 2*u, 2)}, v{rT} offset:{u*4*320 + ct*32}")
        if ct == 4:
            a("s_waitcnt lgkmcnt(0)")
    a("s_waitcnt lgkmcnt(0)")
    for ct in range(10):
        a(f"ds_write_b128 v{rD + ct % 5}, {vr(rData + 4*ct, 4)} offset:{128 * (ct // 5)}")
    a("s_waitcnt lgkmcnt(0)")
    for c in range(10):
        a(f"ds_read_b128 {vr(rData + 4*c, 4)}, v{rX} offset:{1040 * c}")
    for c in range(10):
        a(f"s_waitcnt lgkmcnt({9 - c})")
        a(f"buffer_store_dwordx4 {vr(rData + 4*c, 4)}, v{vL16}, {WSR()}, s{sT0} offen offset:{1024 * (c & 3)} sc1")
        if c & 3 == 3:
            a(f"s_add_u32 s{sT0}, s{sT0}, 4096")
    a(f"""
    s_branch LA_bar
    LR_s2:
    s_mov_b32 s{sRp}, -1
    s_and_b32 s{sT0}, s2, 7
    s_lshl_b32 s{sT0}, s{sT0}, 7
    s_add_u32 s{sT0}, s{sT0}, {WS_C4}
    """)
    count_in(a, sT0, vP, vP + 1)
    a("s_branch LA_bar")


def write_ones(a, role):
    a(f"""
    v_and_b32 v{vT0}, 7, v0
    v_mul_u32_u24 v{vT0}, 640, v{vT0}
    v_add_u32 v{vT0}, {ONES[role]}, v{vT0}
    v_mov_b32 v16, 0x3f803f80
    v_mov_b32 v17, 0x3f803f80
    v_mov_b32 v18, 0x3f803f80
    v_mov_b32 v19, 0x3f803f80
    ds_write_b128 v{vT0}, v[16:19]
    """)


def common_setup(a):
    a(f"""
    s_and_b32 s{sT0}, s2, 3
    s_lshl_b32 s{sT0}, s{sT0}, 2
    s_lshr_b32 s{sT2}, s2, 6
    s_add_u32 s{sHead}, s{sT0}, s{sT2}
    s_lshr_b32 s{sQB}, s2, 3
    s_and_b32 s{sQB}, s{sQB}, 7
    s_lshl_b32 s{sT2}, s{sRole}, 4
    s_add_u32 s{sHead}, s{sHead}, s{sT2}
    s_mul_i32 s{sImg}, s{sBr}, {4 * IMG}
    s_mov_b32 s{sPh}, 0
    s_mov_b32 s{sWS+2}, {WS_STAMP + 2048 * 128 if common.STAMP else WS_END}
    s_mov_b32 s{sWS+3}, 0x00020000
    s_mov_b32 s{sOut+2}, {S * 2 * D * 2}
    s_mov_b32 s{sOut+3}, 0x00020000
    s_mov_b32 s{sDbg+2}, 256
    s_mov_b32 s{sDbg+3}, 0x00020000
    s_waitcnt lgkmcnt(0)
    s_mov_b32 s{sOut}, s{sPtr+4}
    s_and_b32 s{sOut+1}, s{sPtr+5}, 0xffff
    s_mov_b32 s{sDbg}, s{sPtr+6}
    s_and_b32 s{sDbg+1}, s{sPtr+7}, 0xffff
    s_and_b32 s{sWS+1}, s{sWS+1}, 0xffff
    """)


def gen(a, label):
    kernel_head(a, label)
    a("s_cmp_ge_u32 s2, 256\ns_cbranch_scc1 LF_end")
    stamp(a, 0)
    a(f"""
    s_bfe_u32 s{sBr}, s2, 0x10002
    s_mul_i32 s{sT0}, s{sBr}, 24
    s_load_dwordx2 s[{sX}:{sX+1}], s[0:1], s{sT0}
    s_add_u32 s{sT1}, s{sT0}, 8
    s_load_dwordx4 s[{sPtr}:{sPtr+3}], s[0:1], s{sT1}
    s_load_dwordx4 s[{sPtr+4}:{sPtr+7}], s[0:1], 48
    s_load_dwordx2 s[{sWS}:{sWS+1}], s[0:1], 64
    v_lshrrev_b32 v1, 6, v0
    v_and_b32 v0, 63, v0
    v_readfirstlane_b32 s{sW}, v1
    s_and_b32 s{sT0}, s2, 3
    s_lshl_b32 s{sT0}, s{sT0}, 2
    s_bfe_u32 s{sT2}, s2, 0x20003
    s_add_u32 s{sTB}, s{sT0}, s{sT2}
    s_lshr_b32 s{sTI}, s2, 5
    """)
    if 'nocw' not in OPT:
        a.c("wave 7 pulls a quarter of the code into the L2, so that later instruction fetches find it there")
        a(f"""
        s_cmp_eq_u32 s{sW}, 7
        s_cbranch_scc0 LG_nocw
        s_getpc_b64 s[4:5]
        LG_pc:
        s_sub_u32 s4, s4, LG_pc-{label}
        s_subb_u32 s5, s5, 0
        s_lshl_b32 s{sT0}, s{sT2}, 13
        v_lshl_add_u32 v8, v0, 7, s{sT0}
        v_min_u32 v8, LF_codeend-{label}-4, v8
        global_load_dword v{gT+1}, v8, s[4:5]
        LG_nocw:
        """)
    a.c("phase-a units of tile ti: n = 2 ti + e, unit = n + 5 (n >= 5) + 5 (n >= 10)")
    a(f"""
    s_lshl_b32 s{sU0}, s{sTI}, 1
    s_cmp_ge_u32 s{sTI}, 5
    s_cselect_b32 s{sT0}, 10, 5
    s_cmp_ge_u32 s{sTI}, 3
    s_cselect_b32 s{sT0}, s{sT0}, 0
    s_add_u32 s{sU0}, s{sU0}, s{sT0}
    s_cmp_eq_u32 s{sTI}, 2
    s_cselect_b32 s{sT0}, 6, 1
    s_add_u32 s{sU1}, s{sU0}, s{sT0}
    s_and_b32 s{sJ}, s{sW}, 3
    s_lshr_b32 s{sRole}, s{sW}, 2
    s_cbranch_scc1 LG_start
    """)
    gemm_loader(a)
    a("LG_start:")
    common_setup(a)
    a.c("wave 4 clears counter lines id and id + 256")
    a(f"""
    s_cmp_eq_u32 s{sJ}, 0
    s_cbranch_scc0 LG_cleared
    s_lshl_b32 s{sT0}, s2, 7
    s_add_u32 s{sT0}, s{sT0}, {WS_C1}
    v_lshlrev_b32 v8, 15, v0
    v_mov_b32 v9, 0
    s_mov_b64 exec, 3
    buffer_store_dword v9, v8, {WSR()}, s{sT0} offen sc1
    s_mov_b64 exec, -1
    LG_cleared:
    """)
    gemm_compute(a)
    a("LG_done:")
    stamp(a, 3)
    vectors_get(a)
    a.c("the last wave whose stores have drained publishes the tile")
    a(f"""
    v_mov_b32 v{vP}, {LCNT}
    v_mov_b32 v{vP+1}, 1
    s_waitcnt vmcnt(0)
    s_mov_b64 exec, 1
    ds_add_rtn_u32 v{vP+2}, v{vP}, v{vP+1}
    s_mov_b64 exec, -1
    s_waitcnt lgkmcnt(0)
    v_readfirstlane_b32 s{sT0}, v{vP+2}
    s_cmp_eq_u32 s{sT0}, 3
    s_cbranch_scc0 LG_nopub
    s_call_b64 s[{sLnk}:{sLnk+1}], LG_publish
    LG_nopub:
    """)
    stamp(a, 27)
    a("s_branch LB_lead")
    a("LG_idle:\ns_waitcnt lgkmcnt(0)\ns_barrier")
    drained(a)
    a("s_barrier\ns_barrier")
    vectors_get(a)
    stamp(a, 3)
    a("LB_lead:")
    call_dma(a, 0, 2)
    a("s_barrier")
    write_ones(a, 1)
    a("s_waitcnt vmcnt(0)\ns_barrier")
    poll_f1(a)
    stamp(a, 26)
    load_q(a)
    call_dma(a, 1, 0)
    call_dma(a, 0, 3)
    scale_q(a, 10)
    a(f"s_mov_b32 s{sM}, {SK}\ns_mov_b32 s{sMend}, {SK + 5}\ns_mov_b32 s{sRb}, {RB}\ns_mov_b32 s{sNext}, {RB}\ns_mov_b32 s{sRp}, -1")
    attn_zero(a)
    a("s_waitcnt vmcnt(0) lgkmcnt(0)\ns_barrier")
    call_dma(a, 1, 1)
    call_dma(a, 0, 4)
    call_dma(a, 1, 2)
    a("s_setprio 0" if 'noprio' in OPT else "s_setprio 1")
    stamp(a, 5)
    a("s_branch LA_start")
    a("LA_lead:")
    poll_f1(a)
    stamp(a, 1)
    load_q(a)
    for blk in range(2):
        call_dma(a, 0, blk)
    scale_q(a, 10)
    a(f"""
    s_cmp_lt_u32 s2, 160
    s_cselect_b32 s{sT0}, s{sJ}, 0
    s_cmp_eq_u32 s{sT0}, 1
    s_cselect_b32 s{sRp}, {SK + 1}, -1
    s_mov_b32 s{sM}, 0
    s_mov_b32 s{sMend}, 0
    s_mov_b32 s{sRb}, {RA}
    s_mov_b32 s{sNext}, {RA + BLK}
    """)
    attn_zero(a)
    a("s_waitcnt vmcnt(5) lgkmcnt(0)\ns_barrier")
    stamp(a, 3)
    attention(a)
    a(f"s_lshl_b32 s{sT2}, s{sQB}, 2\ns_add_u32 s{sT2}, s{sT2}, s{sJ}")
    c3_off(a, sT3, sT2, sRole)
    a("s_waitcnt vmcnt(0)")
    count_in(a, sT3, vP, vP + 1)
    stamp(a, 6)
    a(f"s_cmp_eq_u32 s{sRole}, 1\ns_cbranch_scc1 LP_end")
    a.c("role-A waves: first half of K while role B finishes, second half once it is published")
    a(f"""
    s_and_b32 s{sT0}, s{sHead}, 3
    s_lshl_b32 s{sT1}, s{sBr}, 2
    s_add_u32 s{sT0}, s{sT0}, s{sT1}
    s_lshl_b32 s{sT0}, s{sT0}, 7
    s_add_u32 s{sT0}, s{sT0}, {WS_C4}
    """)
    poll_counter(a, vP + 4, f"s{sT0}", 20, 1)
    for r in range(0, 40, 2):
        a(f"v_pk_mov_b32 {vr(pACC + r, 2)}, 0, 0")
    G = lambda i: LDS_BYTES - (11 - i) * 10240
    Lo = lambda i: RB + i * 10240
    assert SK == 3 and G(0) >= RB + 2 * BLK and G(3) >= RB + RING and Lo(2) <= RB + BLK and Lo(4) <= G(0)
    stamp(a, 20)
    a("s_barrier")
    stamp(a, 21)
    call_dma(a, 1, 7)
    wo_dma(a, 0, 8, G(3))
    stamp(a, 22)
    a("s_waitcnt vmcnt(20)")
    stamp(a, 25)
    a("s_barrier")
    stamp(a, 5)
    wo_dma(a, 8, 11, G(0))
    a(f"s_mov_b32 s{sPh}, 0\ns_call_b64 s[{sLnk}:{sLnk+1}], LP_fetch")
    stamp(a, 26)
    a("s_barrier")
    stamp(a, 28)
    wo_dma(a, 11, 13, Lo(0))
    a("s_waitcnt vmcnt(0)")
    stamp(a, 29)
    a("s_barrier")
    wo_dma(a, 13, 15, Lo(2))
    call_mm(a, "LP_hi", [G(3), G(4), G(5), G(6), G(7)])
    call_mm(a, "LP_lo", [G(8), G(9), G(10), G(0), G(1)])
    a("s_waitcnt vmcnt(0)\ns_barrier")
    stamp(a, 30)
    wo_dma(a, 15, 20, G(3))
    a(f"s_mov_b32 s{sPh}, 1\ns_call_b64 s[{sLnk}:{sLnk+1}], LP_fetch")
    a("s_barrier")
    stamp(a, 2)
    a("s_waitcnt vmcnt(5)")
    call_mm(a, "LP_hi", [G(2), Lo(0), Lo(1), Lo(2), Lo(3)])
    a("s_waitcnt vmcnt(0)")
    call_mm(a, "LP_lo", [G(3), G(4), G(5), G(6), G(7)])
    out_store(a)
    a("LP_end:")
    if common.STAMP:
        a("s_waitcnt vmcnt(0)")
        stamp(a, 7)
        stamp_flush(a, 4)
    a("LF_end:\ns_endpgm")
    dma_sub(a)
    refill(a)
    publish_sub(a)
    o_fetch_sub(a)
    oproj_sub(a, "LP_hi", 0)
    oproj_sub(a, "LP_lo", 5)
    repack_steps(a)
    slow_path(a)
    a("LF_codeend:")


def build():
    a = Asm()
    label = NAME + "_kernel"
    a('.amdgcn_target "amdgcn-amd-amdhsa--gfx950"\n.text')
    gen(a, label)
    return (HEADER + f"; @launch grid=(256,1,1) block=(512,1,1) lds={LDS_BYTES}\n" + a.text()
            + '.section .rodata,"a"\n.p2align 6\n' + kernel_desc(label, NVGPR, NVGPR, 100))


if __name__ == "__main__":
    import sys
    for x in sys.argv[2:]:
        if '=' in x:
            k, v = x.split('='); globals()[k] = int(v)
        else:
            OPT.add(x)
    if 'dbgstamp' in OPT:
        common.STAMP = True
    out = sys.argv[1] if len(sys.argv) > 1 else f"cdna_kernels/{NAME}.s"
    open(out, "w").write(build())
```

```python
import sys, os
sys.path.insert(0, "gen")
args = sys.argv[1:]
sys.argv = sys.argv[:1]
from test_fk import *
common.STAMP = True
modes = [int(x[1:]) for x in args if x.startswith('@')] or [2]
verbose = '-v' in args
variants = [x for x in args if not x.startswith('@') and x != '-v']
import importlib
cos = []; bl = []
for v in variants:
    importlib.reload(fk)
    for x in v.split('+'):
        if '=' in x:
            k, val = x.split('='); setattr(fk, k, [int(z) for z in val.split(',')] if ',' in val else int(val))
        elif x != 'base': fk.OPT.add(x)
    bl.append(list(range(12)) + [15])
    cos.append(assemble1(fk.build(), "fk_" + v.replace('=', '').replace('+', '_').replace(',', '')))
if not os.path.exists('/dev/kfd'): print("assembled"); raise SystemExit
d = make_inputs(0)
qkv, o, out = exact(d)
R = Runner(d); R.poison()
def summary():
    rt = R.ws_read(fk.WS_STAMP, 2048 * 64).view(np.uint32).reshape(256, 8, 32).astype(np.int64)
    t0 = rt[:, :, 0].min()
    f = lambda role, i, fn: fn((rt[:224, 4*role:4*role+4, i] - t0) / 100.0)
    return [f(1, 1, np.median), f(1, 2, np.median), f(0, 3, np.median), f(1, 5, np.median), f(0, 4, np.median), f(1, 4, np.median), f(1, 4, np.max), f(0, 2, np.max), (rt[:, :, 7].max() - t0) / 100.0]
print("cols: first data | gemmA done | A attn start | B attn start | A attn end | B attn end med | B attn end max | O(b) seen max | end | events")
for rep in range(2):
    for v, (co, launches), bars in zip(variants, cos, bl):
        R.load(co, launches)
        for m in modes:
            rows = []; ev = []
            for it in range(7):
                ev.append(R.time(1, cold=m)[0]); rows.append(summary())
            err = np.abs(R.get_out() - out).max()
            print(f"{v:28s} cold={m} " + " ".join(f"{x:6.2f}" for x in np.median(np.array(rows), 0)) + f"  ev {np.median(ev):6.2f} err {err:.4f}", flush=True)
            if verbose and rep == 1:
                rt = R.ws_read(fk.WS_STAMP, 2048 * 64).view(np.uint32).reshape(256, 8, 32).astype(np.int64)
                t0 = rt[:, :, 0].min()
                r = (rt[:224, 0][:, [8 + b for b in bars] + [27, 1]] - t0) / 100.0
                print("    bars", bars, "flag, F1 seen")
                print("    med:", " ".join(f"{x:.2f}" for x in np.median(r, 0)))
                print("    max:", " ".join(f"{x:.2f}" for x in r.max(0)))
                lst = (("gemmA done", 4, 2), ("A start", 0, 3), ("B gemm done", 4, 3), ("B flag", 4, 27), ("B F1 seen", 4, 26), ("B start", 4, 5), ("A attn end", 0, 4), ("A O flag", 0, 6),
                       ("A at M8", 0, 20), ("M8", 0, 21), ("wo issued", 0, 22), ("A at M9", 0, 25), ("M9", 0, 5), ("A at M10", 0, 26), ("M10", 0, 28), ("A at E1", 0, 29), ("MM(a) done", 0, 30),
                       ("B end", 4, 4), ("B O flag", 4, 6), ("A O(b) seen", 0, 2), ("A end", 0, 7))
                for nm, w, i in lst:
                    g = (rt[:224, w, i] - t0) / 100.0; h = (rt[224:, w, i] - t0) / 100.0
                    print(f"    {nm:14s} min {g.min():.2f} med {np.median(g):.2f} max {g.max():.2f} | ti7: min {h.min():.2f} med {np.median(h):.2f} max {h.max():.2f}")
                for nm, w, i in (("#0", 0, 8), ("#10", 0, 18), ("#15", 0, 23), ("A start", 0, 3), ("A attn end", 0, 4), ("B end", 4, 4)):
                    g = (rt[:, w, i] - t0) / 100.0
                    print(f"    by xcd {nm:11s}", " ".join(f"{np.median(g[x::8]):.2f}/{g[x::8].max():.2f}" for x in range(8)))
                g = (rt[:, 4, 4] - rt[:, 0, 3]) / 100.0
                print(f"    by xcd attn dur   ", " ".join(f"{np.median(g[x::8]):.2f}/{g[x::8].max():.2f}" for x in range(8)))
                c0 = rt[:, 0, 24]
                d = lambda w, i: int(np.median((rt[:, w, i] - c0) & 0xffffffff))
                print("    cycles from A start: B start", d(4, 24), "A end", d(0, 31), "B end", d(4, 31))
                if 'cyc' in v:
                    print("    M barriers (cycles):", [d(0, 8 + m) for m in range(8)], [d(4, 8 + m) for m in range(8, 11)])
```

```python
from common import Asm, vr, sr, f32bits, kernel_head, kernel_desc, QSCALE, S, D, HEADER, NAME
import common

OPT = set()
SK = 3

TILE = 40960
IMG = 64 * TILE
WS_WO = 8 * IMG
WO_SLAB = 204800
WO_HALF = WO_SLAB // 2
WS_C1 = WS_WO + 8 * WO_SLAB
WS_C3 = WS_C1 + 256 * 128
WS_C4 = WS_C3 + 128 * 128
WS_END = WS_C1 + 512 * 128
WS_STAMP = WS_END + 65536
WS_MB = 0

LDS_BYTES = 163840
GSL = 16384
CH = 11264
BLK = 2 * CH
RING = 3 * BLK
ONES = [90112, 0]
RB = 5120
RA = LDS_BYTES - RING
RPK = RB + RING
XFER = 81920
LCNT = 95232

sX, sWt, sWS, sOut, sDbg = 8, 12, 16, 20, 24
sPtr = 28
sW, sJ, sRole = 40, 41, 42
sHead, sQB, sTI, sTB = 43, 44, 45, 46
sT0, sT1, sT2, sT3, sT4 = 47, 48, 49, 50, 51
sIt, sSlot, sKB, sInc = 52, 53, 54, 55
sXo, sWo = 56, 57
sNext, sRb, sRe, sRem = 52, 53, 54, 55
sM, sMend = 56, 57
sOm, sExt = 58, 59
sSpin = 60
sBr = 61
sU0, sU1, sImg, sPh = 96, 97, 98, 99
sExp = 3
sDone = 36
sOb = 37
sOc = 97
sFo, sFc = 38, 39
sRp = 96
sE = 56
sLnk = 62
STAMP_S = 64

SPIN = 1 << 15
SLEEP = 2


NST = 32


def stamp(a, i):
    if common.STAMP:
        a(f"s_memrealtime s[4:5]\ns_waitcnt lgkmcnt(0)\ns_mov_b32 s{STAMP_S+i}, s4")


def stamp_cyc(a, i):
    if common.STAMP:
        a(f"s_memtime s[4:5]\ns_waitcnt lgkmcnt(0)\ns_mov_b32 s{STAMP_S+i}, s4")


def stamp_idx(a, base, sreg):
    if common.STAMP and 'cyc' in OPT:
        a(f"s_memtime s[4:5]\ns_mov_b32 m0, s{sreg}\ns_waitcnt lgkmcnt(0)\ns_movreld_b32 s{STAMP_S+base}, s4")


def stamp_flush(a, vt):
    if not common.STAMP:
        return
    a(f"""
    s_mov_b64 exec, 1
    s_lshl_b32 s{sT0}, s2, 3
    s_add_u32 s{sT0}, s{sT0}, s{sW}
    s_lshl_b32 s{sT0}, s{sT0}, 7
    s_add_u32 s{sT0}, s{sT0}, {WS_STAMP}
    v_mov_b32 v{vt+2}, 0
    """)
    for i in range(NST):
        a(f"v_mov_b32 v{vt}, s{STAMP_S+i}")
        a(f"buffer_store_dword v{vt}, v{vt+2}, s[{sWS}:{sWS+3}], s{sT0} offen offset:{4*i}")
    if 'dbgstamp' in OPT:
        a(f"s_cmp_eq_u32 s2, 100\ns_cbranch_scc0 LF_nodbg\ns_cmp_eq_u32 s{sJ}, 0\ns_cbranch_scc0 LF_nodbg\ns_lshl_b32 s{sT0}, s{sRole}, 5")
        for i in range(8):
            a(f"s_sub_u32 s{sT1}, s{STAMP_S+i}, s{STAMP_S}")
            a(f"v_mov_b32 v{vt}, s{sT1}")
            a(f"buffer_store_dword v{vt}, v{vt+2}, s[{sDbg}:{sDbg+3}], s{sT0} offen offset:{4*i}")
        a("LF_nodbg:")


def WSR():
    return f"s[{sWS}:{sWS+3}]"


_lbl = [0]


def poll(a, loads, expect, vtmp):
    _lbl[0] += 1
    L = f"LF_poll{_lbl[0]}"
    a(f"s_mov_b32 s{sSpin}, {SPIN}\n{L}:")
    for i, (vo, srd, so) in enumerate(loads):
        a(f"buffer_load_dword v{vtmp+i}, v{vo}, {srd}, {so} offen sc1")
    a("s_waitcnt vmcnt(0)")
    for i in range(1, len(loads)):
        a(f"v_min_u32 v{vtmp}, v{vtmp}, v{vtmp+i}")
    a(f"""
    v_cmp_gt_u32 vcc, {expect}, v{vtmp}
    s_cbranch_vccz {L}_ok
    s_sleep {SLEEP}
    s_sub_u32 s{sSpin}, s{sSpin}, 1
    s_cbranch_scc0 {L}
    {L}_ok:
    """)


def poll_counter(a, vo, so, expect, mask):
    _lbl[0] += 1
    L = f"LF_pc{_lbl[0]}"
    rd = (f"v_mov_b32 v{vPS}, 0\nbuffer_atomic_add v{vPS}, v{vo}, {WSR()}, {so} offen sc0 sc1" if 'ldpoll' not in OPT else
          f"buffer_load_dword v{vPS}, v{vo}, {WSR()}, {so} offen sc1")
    a(f"""
    s_mov_b32 s{sSpin}, {SPIN}
    s_mov_b64 exec, {mask}
    {L}:
    {rd}
    s_waitcnt vmcnt(0)
    v_cmp_gt_u32 vcc, {expect}, v{vPS}
    s_cbranch_vccz {L}_ok
    s_sleep {SLEEP}
    s_sub_u32 s{sSpin}, s{sSpin}, 1
    s_cbranch_scc0 {L}
    {L}_ok:
    s_mov_b64 exec, -1
    """)


def count_in(a, soff, vz, vd):
    a(f"""
    v_mov_b32 v{vz}, 0
    v_mov_b32 v{vd}, 1
    s_mov_b64 exec, 1
    buffer_atomic_add v{vd}, v{vz}, {WSR()}, s{soff} offen sc1
    s_mov_b64 exec, -1
    """)


gXF = 0
gWF = 160
gWA = [184, 185, 186, 187]
gXA = 188
gT = 189
gACC = 192


PUB_BAR = 12
LAST_BAR = 16
PAIR_BAR = 20
NFIRST = 4
MAXISS = 3
PF_BAR = 3
ROT = 1


def stage_barriers():
    return list(range(0, 12)) + [LAST_BAR]


def gemm_schedule():
    items = [x for n in range(10) for x in (("X", n), ("W", n))] + [("W", n) for n in range(10, 20)]
    rel = lambda it: it[1] + (1 if it[0] == "X" else 2)
    free = list(range(10))
    slot, when, freed = {}, {}, set()
    k = 0
    for bar in range(-1, 12):
        for it in items:
            if it in slot and it not in freed and rel(it) <= bar:
                free.append(slot[it])
                freed.add(it)
        n = 0
        while k < len(items) and free and n < (NFIRST if bar == -1 else MAXISS) and bar != 10:
            slot[items[k]] = free.pop(0)
            when[items[k]] = bar
            k += 1
            n += 1
    assert k == len(items) and when[("W", LAST_BAR - 1)] <= 9 and when[("W", 17)] == 11
    order = [slot[("W", n)] for n in (15, 16, 17, 18, 19, 13, 14, 10, 11, 12)]
    assert sorted(order) == list(range(10)), order
    slot = {it: order.index(v) for it, v in slot.items()}
    return items, slot, when


LCNT0 = 2 * GSL


def lane_id(a, v):
    a(f"v_mbcnt_lo_u32_b32 v{v}, -1, 0\nv_mbcnt_hi_u32_b32 v{v}, -1, v{v}")


def drained(a):
    a(f"s_waitcnt vmcnt(0)\ns_mov_b64 exec, 1\nds_add_u32 v{gT+1}, v{gT+2}\ns_mov_b64 exec, -1\ns_mov_b32 s{sDone}, 1")


def gemm_body(a, vtype):
    L = "LG_v" if vtype else "LG_q"
    items, slot, when = gemm_schedule()

    def kc(q):
        return ((q & 3, (q >> 2) & 3) if q >= 144 else ((q >> 2) & 3, q & 3))

    def wreads(q):
        ks, c = kc(q)
        d = gWF + 4 * (q % 6)
        return [f"ds_read_b64_tr_b16 {vr(d + 2*u, 2)}, v{gWA[c]} offset:{ks*4096 + u*1024}" for u in range(2)]

    def xreads(n):
        for ks in range(4):
            d = gXF + 4 * (4 * n + ks)
            a(f"v_xor_b32 v{d}, {32 * ks}, v{gXA}")
        for ks in range(4):
            d = gXF + 4 * (4 * n + ks)
            a(f"ds_read_b128 {vr(d,4)}, v{d}")

    def advance(n):
        da = (slot[("W", n)] - slot[("W", n - 1)]) * GSL
        a(f"s_cmp_eq_u32 s{sPh}, 1\ns_mov_b32 s{sInc}, {da & 0xffffffff}")
        if n < 10:
            db = (slot[("W", n + 10)] - slot[("W", n + 9)]) * GSL
            a(f"s_cmov_b32 s{sInc}, {db & 0xffffffff}")
        for r in gWA:
            a(f"v_add_u32 v{r}, s{sInc}, v{r}")

    def pack(c):
        out = []
        A = gACC + 16 * c
        out += [f"v_cvt_pk_bf16_f32 v{gACC + 8*c + j}, v{A+2*j}, v{A+2*j+1}" for j in range(8)]
        return out

    def stores(c):
        out = []
        for i in range(2):
            d = vr(gACC + 8*c + 4*i, 4)
            if vtype:
                out.append(f"buffer_store_dwordx4 {d}, v{gT}, {WSR()}, s{sE + i} offen offset:{c * 512} sc1")
            else:
                out.append(f"buffer_store_dwordx4 {d}, v{gT}, {WSR()}, s{sE + (c >> 1)} offen offset:{(c & 1) * 2048 + i * 1024} sc1")
        return out

    a("s_barrier")
    a.c("this workgroup has cleared its share of the counters: count it in")
    a(f"""
    s_cmp_eq_u32 s{sW}, 4
    s_cbranch_scc0 {L}_nocount
    s_and_b32 s{sT0}, s2, 31
    s_lshl_b32 s{sT0}, s{sT0}, 2
    s_add_u32 s{sT0}, s{sT0}, 128
    v_mov_b32 v{gT+1}, 0
    v_mov_b32 v{gT+2}, 1
    s_mov_b64 exec, 1
    buffer_atomic_add v{gT+2}, v{gT+1}, s[{sDbg}:{sDbg+3}], s{sT0} offen sc1
    s_mov_b64 exec, -1
    {L}_nocount:
    v_mov_b32 v{gT+1}, {LCNT0}
    v_mov_b32 v{gT+2}, 1
    s_mov_b32 s{sDone}, 1
    """)
    stamp(a, 1)
    xreads(0)
    for q in range(6):
        for r in wreads(q):
            a(r)
    a(f"{L}_body:")
    for q in range(160):
        n = q >> 4
        ks, c = kc(q)
        if q <= 154:
            a(f"s_waitcnt lgkmcnt({2 * (min(q + 5, 159) - q)})")
        elif q == 155:
            a("s_waitcnt lgkmcnt(0)")
        x, w = vr(gXF + 4 * (4 * n + ks), 4), vr(gWF + 4 * (q % 6), 4)
        A, B = (x, w) if vtype else (w, x)
        d = vr(gACC + 16 * c, 16)
        a(f"v_mfma_f32_32x32x16_bf16 {d}, {A}, {B}, {'0' if q < 4 else d}")
        if (q & 15) == 10:
            if PUB_BAR <= n + 11 <= LAST_BAR:
                a.c("phase b: report once that this wave's stores have drained")
                if n + 11 < LAST_BAR:
                    a(f"s_getreg_b32 s{sT0}, hwreg(HW_REG_IB_STS, 0, 4)\ns_or_b32 s{sT0}, s{sT0}, s{sDone}")
                else:
                    a(f"s_cmp_lg_u32 s{sDone}, 0")
                a(f"s_cbranch_scc1 {L}_nd{n}")
                drained(a)
                a(f"{L}_nd{n}:")
            advance(n + 1)
            both = n + 11 in stage_barriers() or n + 11 == PAIR_BAR
            if both:
                a("s_barrier")
            a(f"s_cbranch_scc1 {L}_nx{n}")
            if not both:
                a("s_barrier")
            if n + 1 < 10:
                dx = (slot[("X", n + 1)] - slot[("X", n)]) * GSL
                a(f"v_add_u32 v{gXA}, {dx & 0xffffffff}, v{gXA}")
                xreads(n + 1)
            a(f"{L}_nx{n}:")
        if q + 6 < 160:
            for r in wreads(q + 6):
                a(r)
        if q == 144:
            a("s_setprio 2")
        if q in (150, 154):
            for x in pack((q - 150) // 4):
                a(x)
        if q in (151, 155):
            for x in stores((q - 151) // 4):
                a(x)
        if q == 156:
            a("s_nop 7")
        if q == 158:
            for x in pack(2):
                a(x)
    for x in stores(2):
        a(x)
    a(f"s_cbranch_scc1 {L}_nopre")
    for q in range(6):
        for r in wreads(q):
            a(r)
    a(f"{L}_nopre:\ns_nop 9")
    for x in pack(3) + stores(3):
        a(x)
    a(f"s_cbranch_scc1 LG_done")
    stamp(a, 2)
    next_units(a)
    step = 6 * 1024 if vtype else 5 * 4096
    a(f"s_add_u32 s{sE}, s{sE}, {step}\ns_add_u32 s{sE+1}, s{sE+1}, {step}\ns_mov_b32 s{sDone}, 0")
    if vtype:
        a(f"s_cmp_eq_u32 s{sTI}, 7\ns_cbranch_scc1 LG_idle")
    a(f"s_branch {L}_body")


def next_units(a):
    a(f"""
    s_mov_b32 s{sPh}, 1
    s_cmp_ge_u32 s{sTI}, 5
    s_cselect_b32 s{sT0}, 6, 5
    s_add_u32 s{sU0}, s{sU0}, s{sT0}
    s_add_u32 s{sU1}, s{sU1}, s{sT0}
    """)


def publish_sub(a):
    t = vPS
    a(f"""
    LG_publish:
    v_cmp_lt_u32 vcc, 31, v0
    v_mov_b32 v{t+3}, s{sU0}
    v_mov_b32 v{t+4}, s{sU1}
    v_cndmask_b32 v{t+3}, v{t+3}, v{t+4}, vcc
    v_mul_u32_u24 v{t+4}, 205, v{t+3}
    v_lshrrev_b32 v{t+4}, 11, v{t+4}
    v_mul_u32_u24 v{t+5}, 10, v{t+4}
    v_sub_u32 v{t+3}, v{t+3}, v{t+5}
    v_lshlrev_b32 v{t+3}, 3, v{t+3}
    v_and_b32 v{t+5}, 31, v0
    v_lshl_add_u32 v{t+4}, v{t+5}, 2, v{t+4}
    v_lshlrev_b32 v{t+4}, 7, v{t+4}
    v_mul_u32_u24 v{t+5}, 5, v{t+5}
    v_lshrrev_b32 v{t+5}, 1, v{t+5}
    v_add_u32 v{t+5}, 2, v{t+5}
    v_sub_u32 v{t+5}, v{t+5}, v{t+3}
    v_cmp_gt_u32 vcc, 10, v{t+5}
    v_mov_b32 v{t+1}, 1
    s_lshl_b32 s{sT1}, s{sBr}, 14
    s_add_u32 s{sT1}, s{sT1}, {WS_C1}
    s_mov_b64 exec, vcc
    buffer_atomic_add v{t+1}, v{t+4}, {WSR()}, s{sT1} offen sc1
    s_mov_b64 exec, -1
    s_setpc_b64 s[{sLnk}:{sLnk+1}]
    """)


def gemm_compute(a):
    items, slot, when = gemm_schedule()
    t0, t1, t2 = 8, 9, 10
    a(f"""
    v_and_b32 v{t0}, 31, v0
    v_lshrrev_b32 v{t1}, 5, v0
    v_lshrrev_b32 v{t2}, 1, v{t0}
    v_and_b32 v{t2}, 7, v{t2}
    v_xor_b32 v{t2}, v{t2}, v{t1}
    v_lshlrev_b32 v{t2}, 4, v{t2}
    v_lshlrev_b32 v{t0}, 7, v{t0}
    v_add_u32 v{t2}, v{t2}, v{t0}
    s_lshl_b32 s{sT0}, s{sJ}, 12
    s_add_u32 s{sT0}, s{sT0}, {slot[("X", 0)] * GSL}
    v_add_u32 v{gXA}, s{sT0}, v{t2}
    v_lshrrev_b32 v{t0}, 2, v0
    v_and_b32 v{t0}, 3, v{t0}
    v_lshlrev_b32 v{t2}, 3, v{t1}
    v_add_u32 v{t2}, v{t2}, v{t0}
    v_lshlrev_b32 v{t2}, 8, v{t2}
    v_lshlrev_b32 v{t0}, 6, v{t0}
    v_add_u32 v{t2}, v{t2}, v{t0}
    v_and_b32 v{t0}, 16, v0
    v_lshlrev_b32 v{t0}, 1, v{t0}
    v_add_u32 v{t2}, v{t2}, v{t0}
    v_add_u32 v{t2}, {slot[("W", 0)] * GSL}, v{t2}
    v_and_b32 v{t0}, 1, v0
    v_and_b32 v{t1}, 2, v0
    s_cmp_ge_u32 s{sTI}, 5
    s_cselect_b32 s{sT0}, 3, 4
    s_cselect_b32 s{sT1}, 3, 2
    v_lshlrev_b32 v{t0}, s{sT0}, v{t0}
    v_lshlrev_b32 v{t1}, s{sT1}, v{t1}
    v_add3_u32 v{gWA[0]}, v{t2}, v{t0}, v{t1}
    v_xor_b32 v{gWA[1]}, 64, v{gWA[0]}
    v_xor_b32 v{gWA[2]}, 128, v{gWA[0]}
    v_xor_b32 v{gWA[3]}, 192, v{gWA[0]}
    s_lshl_b32 s{sT0}, s{sTB}, 2
    s_add_u32 s{sT0}, s{sT0}, s{sJ}
    s_mul_i32 s{sT0}, s{sT0}, {TILE}
    s_add_u32 s{sT0}, s{sT0}, s{sImg}
    v_lshlrev_b32 v{gT}, 4, v0
    s_waitcnt vmcnt(0)
    s_cmp_ge_u32 s{sTI}, 5
    s_cbranch_scc1 LG_vtype
    s_lshl_b32 s{sE}, s{sU0}, 12
    s_lshl_b32 s{sE+1}, s{sU1}, 12
    s_cmp_ge_u32 s{sU0}, 10
    s_cselect_b32 s{sT3}, {IMG - 40960}, 0
    s_add_u32 s{sE}, s{sE}, s{sT3}
    s_cmp_ge_u32 s{sU1}, 10
    s_cselect_b32 s{sT3}, {IMG - 40960}, 0
    s_add_u32 s{sE+1}, s{sE+1}, s{sT3}
    s_add_u32 s{sE}, s{sE}, s{sT0}
    s_add_u32 s{sE+1}, s{sE+1}, s{sT0}
    """)
    gemm_body(a, False)
    a(f"""
    LG_vtype:
    s_lshl_b32 s{sE}, s{sU0}, 10
    s_add_u32 s{sE}, s{sE}, {2 * IMG - 20480}
    s_add_u32 s{sE}, s{sE}, s{sT0}
    s_add_u32 s{sE+1}, s{sE}, 20480
    v_lshrrev_b32 v8, 5, v0
    v_mul_u32_u24 v8, 10240 - 512, v8
    v_add_u32 v{gT}, v{gT}, v8
    """)
    gemm_body(a, True)


def gemm_loader(a):
    items, slot, when = gemm_schedule()
    vE, vO, vWs, vCnt = 230, 231, 232, 233
    sKX, sKW = sKB, sSlot
    a(f"""
    v_lshrrev_b32 v5, 3, v0
    v_mul_u32_u24 v5, 1280, v5
    v_and_b32 v6, 7, v0
    v_lshrrev_b32 v7, 4, v0
    v_xor_b32 v6, v6, v7
    v_lshlrev_b32 v6, 4, v6
    v_add_u32 v{vE}, v5, v6
    v_xor_b32 v6, 64, v6
    v_add_u32 v{vO}, v5, v6
    v_add_u32 v{vO}, {8 * 1280 - 1024}, v{vO}
    v_lshrrev_b32 v5, 2, v0
    v_and_b32 v5, 3, v5
    v_xor_b32 v5, v5, v7
    v_lshrrev_b32 v6, 1, v5
    s_sub_u32 s{sT0}, s{sU1}, s{sU0}
    s_lshl_b32 s{sT0}, s{sT0}, 7
    v_mul_u32_u24 v6, s{sT0}, v6
    v_and_b32 v5, 1, v5
    v_lshl_add_u32 v5, v5, 6, v6
    v_and_b32 v6, 3, v0
    v_lshl_add_u32 v5, v6, 4, v5
    v_mul_u32_u24 v6, 3840, v7
    v_add_u32 v{vWs}, v5, v6
    s_lshl_b32 s{sXo}, s{sTB}, 2
    s_add_u32 s{sXo}, s{sXo}, s{sJ}
    s_mul_i32 s{sXo}, s{sXo}, {32 * 1280}
    s_mul_i32 s{sWo}, s{sJ}, {16 * 3840}
    s_lshl_b32 s{sT0}, s{sU0}, 7
    s_add_u32 s{sWo}, s{sWo}, s{sT0}
    s_lshl_b32 s{sInc}, s{sJ}, 12
    """)
    a.c("workgroups that share a tile start at different k-blocks, so that they fill the L2 together")
    if ROT:
        a(f"""
        s_and_b32 s{sKX}, s{sTB}, 3
        s_mul_i32 s{sKX}, s{sKX}, 5
        s_add_u32 s{sKX}, s{sKX}, 1
        s_lshr_b32 s{sKX}, s{sKX}, 1
        s_add_u32 s{sKX}, s{sKX}, s{sTI}
        s_cmp_ge_u32 s{sKX}, 10
        s_cselect_b32 s{sT0}, 10, 0
        s_sub_u32 s{sKX}, s{sKX}, s{sT0}
        """)
    else:
        a(f"s_and_b32 s{sKX}, s{sTI}, 1")
    a(f"s_mov_b32 s{sKW}, s{sKX}\ns_mov_b32 s{sIt}, 0")
    a(f"""
    s_mov_b32 s{sX+2}, {S * D * 2}
    s_mov_b32 s{sX+3}, 0x00020000
    s_mov_b32 s{sWt+2}, {D * 3 * D * 2}
    s_mov_b32 s{sWt+3}, 0x00020000
    s_waitcnt lgkmcnt(0)
    s_and_b32 s{sX+1}, s{sX+1}, 0xffff
    s_mov_b32 s{sWt}, s{sPtr}
    s_and_b32 s{sWt+1}, s{sPtr+1}, 0xffff
    s_branch LL_go
    """)
    a(f"""
    LL_X:
    s_lshl_b32 s{sT0}, s{sKX}, 7
    s_add_u32 s{sT0}, s{sT0}, s{sXo}
    s_add_u32 s{sKX}, s{sKX}, 1
    buffer_load_dwordx4 v{vE}, s[{sX}:{sX+3}], s{sT0} offen lds
    buffer_load_dwordx4 v{vO}, s[{sX}:{sX+3}], s{sT0} offen offset:1024 lds
    s_add_u32 m0, m0, 2048
    s_add_u32 s{sT0}, s{sT0}, {16 * 1280}
    buffer_load_dwordx4 v{vE}, s[{sX}:{sX+3}], s{sT0} offen lds
    buffer_load_dwordx4 v{vO}, s[{sX}:{sX+3}], s{sT0} offen offset:1024 lds
    s_cmp_eq_u32 s{sKX}, 10
    s_cselect_b32 s{sKX}, 0, s{sKX}
    s_setpc_b64 s[{sLnk}:{sLnk+1}]
    LL_Wskip:
    s_waitcnt vmcnt(0)
    s_setpc_b64 s[{sLnk}:{sLnk+1}]
    LL_W:
    s_cmp_eq_u32 s{sIt}, 1
    s_cbranch_scc1 LL_Wskip
    s_mul_i32 s{sT1}, s{sKW}, {64 * 3840}
    s_add_u32 s{sT1}, s{sT1}, s{sWo}
    s_add_u32 s{sKW}, s{sKW}, 1
    """)
    for p in range(4):
        a(f"buffer_load_dwordx4 v{vWs}, s[{sWt}:{sWt+3}], s{sT1} offen lds")
        if p < 3:
            a(f"s_add_u32 m0, m0, 1024")
            a(f"s_add_u32 s{sT1}, s{sT1}, {4 * 3840}")
    a(f"""
    s_cmp_eq_u32 s{sKW}, 10
    s_cselect_b32 s{sKW}, 0, s{sKW}
    s_setpc_b64 s[{sLnk}:{sLnk+1}]
    """)
    a("LL_go:")
    q = []

    def issue(it):
        if it == ("W", 10):
            a(f"s_cmp_ge_u32 s{sTI}, 5\ns_cselect_b32 s{sT0}, {6 * 128}, s{sC640}\ns_add_u32 s{sWo}, s{sWo}, s{sT0}")
            a(f"s_cmp_eq_u32 s{sTI}, 7\ns_cselect_b32 s{sIt}, 1, 0")
        a(f"s_add_u32 m0, s{sInc}, {slot[it] * GSL}\ns_call_b64 s[{sLnk}:{sLnk+1}], LL_{it[0]}")
        q.extend([it] * 4)

    def wait_for(names):
        last = max(i for i, x in enumerate(q) if x in names)
        a(f"s_waitcnt vmcnt({min(63, len(q) - 1 - last)})")

    sC640 = sT4
    first = [it for it in items if when[it] == -1]
    for it in first:
        issue(it)
    common_setup(a)
    attn_scalars(a)
    attn_vectors(a)
    repack_setup(a)
    vPf = 234
    a(f"""
    v_mov_b32 v{vCnt}, 0
    s_mul_i32 s{sT1}, s{sJ}, 19
    v_add_u32 v8, s{sT1}, v0
    v_min_u32 v8, 74, v8
    v_mul_u32_u24 v9, 205, v8
    v_lshrrev_b32 v9, 10, v9
    v_mul_u32_u24 v9, 5, v9
    v_add3_u32 v9, v9, v8, 5
    v_lshlrev_b32 v{vPf}, 7, v9
    """)
    bars = stage_barriers()
    for bi, bar in enumerate(bars):
        upto = bars[bi + 1] - 1 if bi + 1 < len(bars) else 19
        wait_for([("X", bar), ("W", upto)] + (["cnt"] if bar == 11 else []))
        if bar == 11:
            a.c("all counters must have been cleared before the first one is used")
            a(f"v_cmp_gt_u32 vcc, 8, v{vCnt}\ns_cbranch_vccz LL_cnt_ok")
            poll(a, [(vP + 5, f"s[{sDbg}:{sDbg+3}]", "0")], 8, vPS)
            a("LL_cnt_ok:")
        a("s_barrier")
        stamp(a, 8 + min(bar, 15))
        if bar == 11:
            a.c("wave 0 publishes the phase-a tile once its four storing waves have reported")
            a(f"""
            s_cmp_lg_u32 s{sJ}, 0
            s_cbranch_scc1 LL_pub
            s_mov_b32 s{sSpin}, {SPIN * 8}
            LL_try:
            ds_read_b32 v{vP}, v{vP+2}
            s_waitcnt lgkmcnt(0)
            v_readfirstlane_b32 s{sT0}, v{vP}
            s_cmp_eq_u32 s{sT0}, 4
            s_cbranch_scc1 LL_try_go
            s_sub_u32 s{sSpin}, s{sSpin}, 1
            s_cbranch_scc0 LL_try
            LL_try_go:
            s_call_b64 s[{sLnk}:{sLnk+1}], LG_publish
            """)
            stamp(a, 27)
            a("LL_pub:")
        a(f"s_mov_b32 s{sC640}, 640")
        for it in items:
            if when[it] == bar:
                issue(it)
        if bar == 10:
            a(f"v_mov_b32 v{vP}, 0\nv_mov_b32 v{vP+2}, {LCNT0}\nds_write_b32 v{vP+2}, v{vP}\ns_waitcnt lgkmcnt(0)")
        if bar == PF_BAR:
            a.c("one load per 128-B line of the phase-b columns of five weight rows brings them on chip ahead of use")
            a(f"""
            s_lshr_b32 s{sT0}, s2, 3
            s_lshl_b32 s{sT0}, s{sT0}, 2
            s_and_b32 s{sT1}, s2, 3
            s_add_u32 s{sT0}, s{sT0}, s{sT1}
            s_mul_i32 s{sT0}, s{sT0}, {5 * 3840}
            s_mov_b64 exec, 0x7ffff
            buffer_load_dword v{vPS}, v{vPf}, s[{sWt}:{sWt+3}], s{sT0} offen
            s_mov_b64 exec, -1
            """)
            q.append("pf")
        if bar == 8:
            a(f"buffer_load_dword v{vCnt}, v{vP+5}, s[{sDbg}:{sDbg+3}], 0 offen sc1")
            q.append("cnt")
    a(f"v_mov_b32 v{vP}, 0\nv_mov_b32 v{vP+2}, {LCNT}\nds_write_b32 v{vP+2}, v{vP}")
    write_ones(a, 0)
    vectors_put(a)
    a("s_branch LA_lead")


vKA, vVA, vT0, vT1 = 1, 2, 3, 14
Qm = [4, 8]
Qe = 12
vL16 = 15
Km = [16, 20]
Ke = 24
Vb = [[28, 32], [36, 40]]
vVbase, vVflag, vE16, vVG = 44, 45, 46, 47
NM = 48
SB = [80, 112]
OA = [144, 160]
vD = 176
vP = 182
vPS = 188
vVB2 = 248
NVGPR = 256


def mfma32(d, a_, b, c):
    return f"v_mfma_f32_32x32x16_bf16 {vr(d,16)}, {vr(a_,4)}, {vr(b,4)}, {c}"


def mfma2b(d, ke_tile, c):
    return (f"v_mfma_f32_32x32x4_2b_bf16 {vr(d,32)}, {vr(Ke + 2 * (ke_tile >> 1), 2)}, {vr(Qe,2)}, {c}"
            f" cbsz:1 abid:{ke_tile & 1}")


def valu_stream(X, Y):
    def e(base, i): return f"v_exp_f32 v{base+i}, v{base+i}"
    def c(j):
        dst = X + 8 * (j // 4) + (j % 4)
        return f"v_cvt_pk_bf16_f32 v{dst}, v{X+2*j}, v{X+2*j+1}"
    out = [e(X, 1)]
    for j in range(16):
        out.append(e(X, 2 * j + 2) if j < 15 else e(Y, 0))
        out.append(c(j))
        if j < 15:
            out.append(e(X, 2 * j + 3))
    return out


def tile_iter(a, ii, half=1):
    par = ii & 1
    X, Y = SB[par], SB[par ^ 1]
    Vc, Vn = Vb[par], Vb[par ^ 1]
    Kc, Kn = Km[par ^ 1], Km[par]
    v = valu_stream(X, Y)
    t1 = (ii + 1) % 4
    t2 = (ii + 2) % 4
    kch = CH if (half == 0) == (ii >= 2) else 0
    ins = {}
    ins[2] = [mfma32(OA[1], Vn[1], Y + 24, vr(OA[1], 16)),
              f"ds_read_b128 {vr(Vn[0],4)}, v{vVA} offset:{t1 * 1280}"]
    ins[7] = [mfma2b(Y, t1, vr(NM, 32))]
    ins[17] = [mfma32(OA[0], Vc[0], X, vr(OA[0], 16)),
               f"ds_read_b128 {vr(Vn[1],4)}, v{vVA} offset:{t1 * 1280 + 640}"]
    ins[23] = [mfma32(Y, Kc, Qm[0], vr(Y, 16)),
               f"ds_read_b128 {vr(Kn,4)}, v{vKA} offset:{kch + 2048 + t2 * 1024}"]
    ins[29] = [mfma32(OA[0], Vc[1], X + 8, vr(OA[0], 16))]
    ins[35] = [mfma32(Y + 16, Kc, Qm[1], vr(Y + 16, 16))]
    ins[41] = [mfma32(OA[1], Vc[0], X + 16, vr(OA[1], 16)),
               "s_waitcnt lgkmcnt(0)"]
    if ii == 0:
        ins[29].append(f"s_add_u32 s{sNext}, s{sNext}, {CH}")
    if ii == 2:
        ins[29].append(f"ds_read2st64_b64 {vr(Ke,4)}, v{vKA} offset0:{kch // 512} offset1:{kch // 512 + 2}")
        ins[44] = [f"v_mad_u32_u24 v{vVA}, v{vVflag}, s{sNext}, v{vVbase}"]
    if half == 0:
        if ii == 1:
            ins[29].append(f"s_cmp_eq_u32 s{sM}, s{sRp}")
            ins[35] += ["s_cbranch_scc1 LR_step", "LA_bar:"]
        if ii == 2 and 'noprio' not in OPT:
            ins[35].append("s_setprio 0")
        if ii == 3:
            ins[29].append(f"s_bitcmp1_b32 s{sMend}, s{sM}")
            ins[35] += ["s_waitcnt vmcnt(0)", "s_barrier"]
            if common.STAMP and 'cyc' in OPT:
                ins[35] += ["s_memtime s[4:5]", f"s_mov_b32 m0, s{sM}", "s_waitcnt lgkmcnt(0)", f"s_movreld_b32 s{STAMP_S+8}, s4"]
            if 'noprio' not in OPT:
                ins[35].append("s_setprio 1")
            ins[35] += ["s_cbranch_scc1 LA_refill", "LA_back:"]
    else:
        if ii == 0:
            ins[35].append(f"s_cmp_eq_u32 s{sNext}, s{sRe}")
        if ii == 1:
            ins[29].append(f"s_cselect_b32 s{sNext}, s{sRb}, s{sNext}")
            ins[35].append(f"s_add_u32 s{sM}, s{sM}, 1")
            ins[44] = [f"v_add_u32 v{vKA}, s{sNext}, v{vL16}"]
        if ii == 3:
            ins[35].append(f"s_sub_u32 s{sRem}, s{sRem}, 1")
    for p, op in enumerate(v):
        for x in ins.get(p, []):
            a(x)
        a(op)


def rowmax(a, X, out0, out1):
    for base, o in ((X, out0), (X + 16, out1)):
        a(f"v_max3_f32 v{o}, v{base}, v{base+1}, v{base+2}")
        for r in range(3, 15, 2):
            a(f"v_max3_f32 v{o}, v{o}, v{base+r}, v{base+r+1}")
        a(f"v_max_f32 v{o}, v{o}, v{base+15}")


def cross_half_max(a, r, tmp):
    a(f"v_mov_b32 v{tmp}, v{r}\ns_nop 1\nv_permlane32_swap_b32 v{tmp}, v{r}\ns_nop 1\nv_max_f32 v{r}, v{r}, v{tmp}")


def fill_nm(a, m0, m1):
    for r in range(16):
        a(f"v_sub_f32 v{NM+r}, 0, v{m0}")
    for r in range(16):
        a(f"v_sub_f32 v{NM+16+r}, 0, v{m1}")


def attn_scalars(a):
    a.c("head offsets: main octs start at (5g+1)>>1; the ext quad shares an oct with the neighbouring head;")
    a.c("arrivals expected per kind: 16 token blocks x number of 64-column units that hold the head")
    a(f"""
    s_mul_i32 s{sOm}, s{sHead}, 5
    s_add_u32 s{sOm}, s{sOm}, 1
    s_lshr_b32 s{sOm}, s{sOm}, 1
    s_lshl_b32 s{sOm}, s{sOm}, 9
    s_and_b32 s{sT0}, s{sHead}, 1
    s_mov_b32 s{sT1}, 1024
    s_cselect_b32 s{sT1}, {(-512 + 8) & 0xffffffff}, s{sT1}
    s_add_u32 s{sExt}, s{sOm}, s{sT1}
    s_min_u32 s{sT0}, s{sOm}, s{sExt}
    s_add_u32 s{sT2}, s{sOm}, 512
    s_max_u32 s{sT1}, s{sExt}, s{sT2}
    s_lshr_b32 s{sT0}, s{sT0}, 12
    s_lshr_b32 s{sT1}, s{sT1}, 12
    s_cmp_eq_u32 s{sT0}, s{sT1}
    s_cselect_b32 s{sExp}, 16, 32
    """)


def attn_vectors(a):
    a(f"""
    s_and_b32 s{sT0}, s{sHead}, 1
    v_lshlrev_b32 v{vL16}, 4, v0
    v_lshrrev_b32 v{vT0}, 5, v0
    v_mul_u32_u24 v{vT1}, {TILE}, v{vT0}
    v_and_b32 v{vP}, 31, v0
    v_lshl_add_u32 v{vE16}, v{vP}, 4, v{vT1}
    """)
    a.c("V rows: 0..15 main dims, 16..19 ext dims, 20 and 24 ones, the others zero (address past the allocation)")
    a(f"""
    s_lshl_b32 s{sT0}, s{sT0}, 2
    v_and_b32 v{vP+1}, 3, v0
    v_and_b32 v{vP+2}, 4, v0
    v_lshl_add_u32 v{vP+1}, v{vP+2}, 1, v{vP+1}
    v_and_b32 v{vP+2}, 8, v0
    v_lshrrev_b32 v{vP+2}, 1, v{vP+2}
    v_add3_u32 v{vP+1}, v{vP+1}, v{vP+2}, s{sT0}
    s_lshl_b32 s{sT0}, s{sT0}, 2
    v_subrev_u32 v{vP+2}, s{sT0}, v{vP}
    v_cmp_gt_u32 vcc, 16, v{vP}
    v_mul_u32_u24 v{vT1}, 10240, v{vT0}
    v_mul_u32_u24 v{vT0}, 320, v{vT0}
    v_cndmask_b32 v{vP+1}, v{vP+2}, v{vP+1}, vcc
    v_lshlrev_b32 v{vP+1}, 4, v{vP+1}
    v_add_u32 v{vVG}, v{vP+1}, v{vT1}
    v_add_u32 v{vVbase}, v{vP+1}, v{vT0}
    v_add_u32 v{vVbase}, 6144, v{vVbase}
    v_cmp_gt_u32 vcc, 20, v{vP}
    v_mov_b32 v{vP+1}, 0x100000
    v_mov_b32 v{vP+2}, {ONES[0]}
    v_cndmask_b32 v{vVflag}, 0, 1, vcc
    v_cndmask_b32 v{vVbase}, v{vP+1}, v{vVbase}, vcc
    v_cmp_eq_u32 vcc, 20, v{vP}
    v_cmp_eq_u32 s[{sT3}:{sT4}], 24, v{vP}
    s_or_b64 vcc, vcc, s[{sT3}:{sT4}]
    v_mov_b32 v{vP+1}, {ONES[1]}
    s_nop 0
    v_cndmask_b32 v{vVB2}, v{vVbase}, v{vP+1}, vcc
    v_cndmask_b32 v{vVbase}, v{vVbase}, v{vP+2}, vcc
    """)
    a.c("DMA source offsets: even waves load K pieces, odd waves V pieces")
    a(f"""
    s_and_b32 s{sT0}, s{sJ}, 1
    s_cbranch_scc1 LA_dv
    v_add_u32 v{vD}, s{sExt}, v{vE16}
    v_add_u32 v{vD+1}, {2 * TILE}, v{vD}
    v_add_u32 v{vD+2}, s{sOm}, v{vL16}
    v_add_u32 v{vD+3}, {TILE}, v{vD+2}
    v_add_u32 v{vD+4}, {TILE}, v{vD+3}
    v_add_u32 v{vD+5}, {TILE}, v{vD+4}
    s_branch LA_dd
    LA_dv:
    s_mul_i32 s{sT0}, s{sHead}, 320
    s_add_u32 s{sT0}, s{sT0}, {IMG}
    """)
    for p in range(5):
        a(f"""
        v_add_u32 v{vP}, {64 * p}, v0
        v_mul_u32_u24 v{vP+1}, 3277, v{vP}
        v_lshrrev_b32 v{vP+1}, 16, v{vP+1}
        v_mul_u32_u24 v{vP+2}, 20, v{vP+1}
        v_sub_u32 v{vP+2}, v{vP}, v{vP+2}
        v_mul_u32_u24 v{vP+1}, 10240, v{vP+1}
        v_lshl_add_u32 v{vP+1}, v{vP+2}, 4, v{vP+1}
        v_add_u32 v{vD+p}, s{sT0}, v{vP+1}
        """)
    a(f"""
    v_mov_b32 v{vD+5}, v{vD+4}
    LA_dd:
    v_lshlrev_b32 v{vP+3}, 7, v0
    v_mov_b32 v{vP+4}, 0
    v_lshlrev_b32 v{vP+5}, 2, v0
    v_or_b32 v{vP+5}, 128, v{vP+5}
    """)


def vectors_put(a):
    a(f"""
    s_and_b32 s{sT0}, s{sJ}, 1
    s_lshl_b32 s{sT0}, s{sT0}, 12
    s_add_u32 s{sT0}, s{sT0}, {XFER}
    v_add_u32 v{vT0}, s{sT0}, v{vL16}
    v_mov_b32 v20, v{vVB2}
    v_mov_b32 v21, v{vVflag}
    v_mov_b32 v22, v{vE16}
    v_mov_b32 v23, v{vVG}
    ds_write_b128 v{vT0}, v[20:23]
    ds_write_b128 v{vT0}, {vr(vD,4)} offset:1024
    ds_write_b64 v{vT0}, {vr(vD+4,2)} offset:2048
    """)


def vectors_get(a):
    lane_id(a, 0)
    a(f"""
    s_and_b32 s{sT0}, s{sJ}, 1
    s_lshl_b32 s{sT0}, s{sT0}, 12
    s_add_u32 s{sT0}, s{sT0}, {XFER}
    v_lshlrev_b32 v{vL16}, 4, v0
    v_add_u32 v{vT0}, s{sT0}, v{vL16}
    ds_read_b128 {vr(vVbase,4)}, v{vT0}
    ds_read_b128 {vr(vD,4)}, v{vT0} offset:1024
    ds_read_b64 {vr(vD+4,2)}, v{vT0} offset:2048
    v_lshlrev_b32 v{vP+3}, 7, v0
    """)
    attn_scalars(a)
    a("s_waitcnt lgkmcnt(0)")


def dma_sub(a):
    a(f"""
    LA_dma:
    s_add_u32 s{sT2}, s{sT1}, s{sQB}
    s_and_b32 s{sT2}, s{sT2}, 7
    s_lshl_b32 s{sT2}, s{sT2}, 1
    s_lshr_b32 s{sT3}, s{sJ}, 1
    s_add_u32 s{sT2}, s{sT2}, s{sT3}
    s_mul_i32 s{sT2}, s{sT2}, {4 * TILE}
    s_lshl_b32 s{sT4}, s{sJ}, 1
    s_and_b32 s{sT4}, s{sT4}, 2
    s_lshr_b32 s{sT4}, 20480, s{sT4}
    s_mul_i32 s{sT4}, s{sT4}, s{sT0}
    s_add_u32 s{sT2}, s{sT2}, s{sT4}
    s_add_u32 s{sT2}, s{sT2}, s{sImg}
    s_add_u32 s{sT2}, s{sT2}, {IMG}
    s_sub_u32 s{sT1}, s{sT1}, s{sT0}
    s_add_u32 s{sT1}, s{sT1}, 1
    s_mul_i32 s{sT4}, s{sT1}, 43
    s_lshr_b32 s{sT4}, s{sT4}, 7
    s_mul_i32 s{sT4}, s{sT4}, 3
    s_sub_u32 s{sT1}, s{sT1}, s{sT4}
    s_lshl_b32 s{sT1}, s{sT1}, 1
    s_add_u32 s{sT1}, s{sT1}, s{sT3}
    s_mul_i32 s{sT1}, s{sT1}, {CH}
    s_mul_i32 s{sT4}, s{sT0}, {RA - RB}
    s_sub_u32 s{sT1}, s{sT1}, s{sT4}
    s_add_u32 s{sT1}, s{sT1}, {RA}
    s_and_b32 s{sT3}, s{sJ}, 1
    s_mul_i32 s{sT4}, s{sT3}, 6144
    s_add_u32 m0, s{sT1}, s{sT4}
    s_nop 0
    """)
    for p in range(5):
        a(f"buffer_load_dwordx4 v{vD+p}, {WSR()}, s{sT2} offen sc1 lds")
        a("s_add_u32 m0, m0, 1024")
        a("s_nop 0" if p < 4 else f"s_cmp_eq_u32 s{sT3}, 1")
    a(f"""
    s_cbranch_scc1 LA_dma_ret
    buffer_load_dwordx4 v{vD+5}, {WSR()}, s{sT2} offen sc1 lds
    LA_dma_ret:
    s_setpc_b64 s[{sLnk}:{sLnk+1}]
    """)


def call_dma(a, b, blk):
    a(f"s_mov_b32 s{sT0}, {b}\ns_mov_b32 s{sT1}, {blk}\ns_call_b64 s[{sLnk}:{sLnk+1}], LA_dma")


def poll_f1(a):
    a(f"""
    s_lshl_b32 s{sT0}, s{sBr}, 5
    s_add_u32 s{sT0}, s{sT0}, s{sHead}
    s_lshl_b32 s{sT0}, s{sT0}, 9
    s_add_u32 s{sT0}, s{sT0}, {WS_C1}
    """)
    poll_counter(a, vP + 3, f"s{sT0}", f"s{sExp}", 7)


def load_q(a):
    a(f"""
    s_lshl_b32 s{sT0}, s{sQB}, 2
    s_add_u32 s{sT0}, s{sT0}, s{sJ}
    s_mul_i32 s{sT0}, s{sT0}, {2 * TILE}
    s_add_u32 s{sT0}, s{sT0}, s{sImg}
    s_add_u32 s{sT1}, s{sT0}, s{sOm}
    s_add_u32 s{sT2}, s{sT1}, {TILE}
    s_add_u32 s{sT0}, s{sT0}, s{sExt}
    buffer_load_dwordx4 {vr(Qm[0],4)}, v{vL16}, {WSR()}, s{sT1} offen sc1
    buffer_load_dwordx4 {vr(Qm[1],4)}, v{vL16}, {WSR()}, s{sT2} offen sc1
    buffer_load_dwordx2 {vr(Qe,2)}, v{vE16}, {WSR()}, s{sT0} offen sc1
    """)


def scale_q(a, nyounger):
    a(f"s_mov_b32 s4, {hex(f32bits(QSCALE))}\ns_mov_b32 s5, s4\ns_waitcnt vmcnt({nyounger})")
    for r in range(Qm[0], Qe + 2):
        a(f"""
        v_lshlrev_b32 v{vP}, 16, v{r}
        v_and_b32 v{vP+1}, 0xffff0000, v{r}
        v_pk_mul_f32 {vr(vP,2)}, {vr(vP,2)}, s[4:5]
        v_cvt_pk_bf16_f32 v{r}, v{vP}, v{vP+1}
        """)


def attn_zero(a):
    Z = Vb[1][1]
    for r in (Z, Z + 2, SB[1] + 24, SB[1] + 26):
        a(f"v_pk_mov_b32 {vr(r,2)}, 0, 0")
    a(f"v_mov_b32 v{vP}, 0xbf800000\nv_mov_b32 v{vP+1}, 0\nv_mov_b32 v{vPS+1}, 0")
    a(f"v_mfma_f32_32x32x4_2b_bf16 {vr(OA[0],32)}, {vr(Z,2)}, {vr(Z,2)}, 0")
    a(f"""
    s_add_u32 s{sRe}, s{sRb}, {RING}
    s_mov_b32 s{sRem}, 7
    v_add_u32 v{vKA}, s{sNext}, v{vL16}
    v_mad_u32_u24 v{vVA}, v{vVflag}, s{sNext}, v{vVbase}
    """)


def attention(a):
    X = SB[0]
    a("LA_start:")
    stamp_cyc(a, 24)
    a(f"""
    ds_read_b128 {vr(Km[0],4)}, v{vKA} offset:2048
    ds_read2st64_b64 {vr(Ke,4)}, v{vKA} offset0:0 offset1:2
    ds_read_b128 {vr(Km[1],4)}, v{vKA} offset:3072
    ds_read_b128 {vr(Vb[0][0],4)}, v{vVA}
    ds_read_b128 {vr(Vb[0][1],4)}, v{vVA} offset:640
    s_waitcnt lgkmcnt(4)
    """)
    a(mfma32(X, Km[0], Qm[0], 0))
    a(mfma32(X + 16, Km[0], Qm[1], 0))
    a("s_nop 8\ns_waitcnt lgkmcnt(3)")
    a(mfma2b(X, 0, vr(X, 32)))
    a("s_nop 15\ns_nop 3")
    a.c("softmax shift: row max over the first key tile, cut to bf16; the epilogue checks that it was safe.")
    a.c("A rank-1 MFMA (-1 x shift) subtracts it from the scores and spreads it over the C operand of the loop")
    rowmax(a, X, vT0, vT1)
    a(f"""
    s_nop 1
    v_permlane32_swap_b32 v{vT0}, v{vT1}
    s_nop 1
    v_max_f32 v{vT0}, v{vT0}, v{vT1}
    v_and_b32 v{vPS}, 0xffff0000, v{vT0}
    s_nop 1
    v_mfma_f32_32x32x4_2b_bf16 {vr(X,32)}, {vr(vP,2)}, {vr(vPS,2)}, {vr(X,32)}
    v_mfma_f32_32x32x4_2b_bf16 {vr(NM,32)}, {vr(vP,2)}, {vr(vPS,2)}, 0
    s_nop 15
    s_nop 1
    s_waitcnt lgkmcnt(0)
    v_exp_f32 v{X}, v{X}
    .p2align 6
    LA_loop:
    """)
    for half in range(2):
        for ii in range(4):
            tile_iter(a, ii, half)
    a("s_cbranch_scc0 LA_loop\ns_nop 0")
    a(mfma32(OA[1], Vb[1][1], SB[1] + 24, vr(OA[1], 16)))
    a(f"s_cmp_eq_u32 s{sRole}, 0\ns_cbranch_scc1 LA_fin2\ns_setprio 2")
    if 'hint1' not in OPT:
        a.c("announce that the results are about to be stored; readers then wait for the markers to disappear")
        count_in(a, sOc, vP, vP + 1)
    a("LA_fin2:")
    stamp(a, 4)
    stamp_cyc(a, 31)
    N = SB[0]
    rc = SB[1]
    tm = rc + 4

    def norm(u):
        O, P = OA[u], N + 12 * u
        for r in range(0, 12, 2):
            a(f"v_pk_mul_f32 {vr(P+r,2)}, {vr(O+r,2)}, {vr(rc+2*u,2)} op_sel_hi:[1,0]")
        for j in range(6):
            a(f"v_cvt_pk_bf16_f32 v{P+j}, v{P+2*j}, v{P+2*j+1}")
    a(f"""
    s_mov_b32 s{sRem}, 0
    LA_epi:
    v_cmp_lt_u32 vcc, 31, v0
    s_add_u32 s{sT0}, s{sOb}, s{sOm}
    s_add_u32 s{sT1}, s{sT0}, {TILE}
    v_cndmask_b32 v{vT0}, v{OA[0]+12}, v{OA[0]+8}, vcc
    v_rcp_f32 v{rc}, v{vT0}
    v_pk_add_f32 {vr(tm,2)}, {vr(OA[0],2)}, {vr(OA[0]+2,2)}
    """)
    a.c("safety check of the shift before anything is stored: row sums inside [2^-30, 2^30], finite accumulators")
    for r in range(4, 12, 2):
        a(f"v_pk_add_f32 {vr(tm,2)}, {vr(tm,2)}, {vr(OA[0]+r,2)}")
    norm(0)
    a(f"v_cndmask_b32 v{vT1}, v{OA[1]+12}, v{OA[1]+8}, vcc\nv_rcp_f32 v{rc+2}, v{vT1}")
    for r in range(0, 12, 2):
        a(f"v_pk_add_f32 {vr(tm,2)}, {vr(tm,2)}, {vr(OA[1]+r,2)}")
    a(f"""
    v_add_f32 v{tm}, v{tm}, v{tm+1}
    v_add_f32 v{tm+1}, v{vT0}, v{vT1}
    v_fma_f32 v{tm}, 0, v{tm}, v{tm+1}
    v_min_f32 v{tm+1}, v{vT0}, v{vT1}
    v_cmp_gt_f32 vcc, {hex(f32bits(2.0**30))}, v{tm}
    s_mov_b64 s[4:5], vcc
    v_cmp_lt_f32 vcc, {hex(f32bits(2.0**-30))}, v{tm+1}
    """)
    for j in range(4):
        a(f"v_min_u32 v{N+j}, -2, v{N+j}")
    a(f"""
    s_and_b64 s[4:5], s[4:5], vcc
    s_cmp_eq_u64 s[4:5], -1
    s_cselect_b32 s{sT3}, 1, s{sRem}
    s_cmp_eq_u32 s{sT3}, 0
    s_cbranch_scc1 LA_slow
    buffer_store_dwordx4 {vr(N,4)}, v{vL16}, {WSR()}, s{sT0} offen sc1
    """)
    norm(1)
    for j in range(4):
        a(f"v_min_u32 v{N+12+j}, -2, v{N+12+j}")
    a(f"""
    buffer_store_dwordx4 {vr(N+12,4)}, v{vL16}, {WSR()}, s{sT1} offen sc1
    v_permlane32_swap_b32 v{N+4}, v{N+16}
    v_permlane32_swap_b32 v{N+5}, v{N+17}
    s_add_u32 s{sT2}, s{sOb}, s{sExt}
    v_min_u32 v{N+4}, -2, v{N+4}
    v_min_u32 v{N+5}, -2, v{N+5}
    buffer_store_dwordx2 {vr(N+4,2)}, v{vE16}, {WSR()}, s{sT2} offen sc1
    """)


def o_base(a):
    a(f"""
    s_lshl_b32 s{sT0}, s{sQB}, 2
    s_add_u32 s{sT0}, s{sT0}, s{sJ}
    s_mul_i32 s{sOb}, s{sT0}, {2 * TILE}
    s_add_u32 s{sOb}, s{sOb}, s{sImg}
    s_add_u32 s{sOb}, s{sOb}, {3 * IMG}
    """)
    c3_off(a, sOc, sT0, sRole)


def o_mark(a):
    o_base(a)
    a(f"""
    v_mov_b32 v16, -1
    v_mov_b32 v17, -1
    v_mov_b32 v18, -1
    v_mov_b32 v19, -1
    s_add_u32 s{sT0}, s{sOb}, s{sOm}
    s_add_u32 s{sT1}, s{sT0}, {TILE}
    s_add_u32 s{sT2}, s{sOb}, s{sExt}
    buffer_store_dwordx4 v[16:19], v{vL16}, {WSR()}, s{sT0} offen sc1
    buffer_store_dwordx4 v[16:19], v{vL16}, {WSR()}, s{sT1} offen sc1
    buffer_store_dwordx2 v[16:17], v{vE16}, {WSR()}, s{sT2} offen sc1
    """)


def refill(a):
    a.c("role-B waves refill both rings: after barrier m, A block m+2 and B block m-SK+2")
    a(f"""
    LA_refill:
    s_cmp_gt_u32 s{sM}, 5
    s_cbranch_scc1 LA_ev_b
    s_mov_b32 s{sT0}, 0
    s_add_u32 s{sT1}, s{sM}, 2
    s_call_b64 s[{sLnk}:{sLnk+1}], LA_dma
    LA_ev_b:
    s_sub_u32 s{sT1}, s{sM}, {SK - 2}
    s_cmp_lt_u32 s{sT1}, 3
    s_cbranch_scc1 LA_back
    s_mov_b32 s{sT0}, 1
    s_call_b64 s[{sLnk}:{sLnk+1}], LA_dma
    s_branch LA_back
    """)


def slow_path(a):
    X = SB[0]
    m0, m1, t0, t1 = SB[1], SB[1] + 1, SB[1] + 2, SB[1] + 3

    def kloads(t):
        a(f"buffer_load_dwordx4 {vr(Km[0],4)}, v{vL16}, {WSR()}, s{sT1} offen sc1")
        if t == 0:
            a(f"buffer_load_dwordx2 {vr(Ke,2)}, v{vE16}, {WSR()}, s{sT2} offen sc1")
            a(f"s_add_u32 s{sT2}, s{sT2}, {2 * TILE}")
        a(f"s_add_u32 s{sT1}, s{sT1}, {TILE}")

    def kbase():
        a(f"""
        s_add_u32 s{sT0}, s{sImg}, {IMG}
        s_add_u32 s{sT1}, s{sT0}, s{sOm}
        s_add_u32 s{sT2}, s{sT0}, s{sExt}
        s_mov_b32 s{sRem}, 0
        """)
    a(f"LA_slow:\nv_mov_b32 v{m0}, 0xff800000\nv_mov_b32 v{m1}, 0xff800000")
    kbase()
    a("LA_slow_max:")
    for t in range(2):
        kloads(t)
        a("s_waitcnt vmcnt(0)")
        a(mfma32(X, Km[0], Qm[0], 0))
        a(mfma32(X + 16, Km[0], Qm[1], 0))
        a("s_nop 9")
        a(mfma2b(X, t, vr(X, 32)))
        a("s_nop 15\ns_nop 3")
        rowmax(a, X, t0, t1)
        a(f"v_max_f32 v{m0}, v{m0}, v{t0}\nv_max_f32 v{m1}, v{m1}, v{t1}")
    a(f"s_add_u32 s{sRem}, s{sRem}, 1\ns_cmp_lt_u32 s{sRem}, 32\ns_cbranch_scc1 LA_slow_max")
    cross_half_max(a, m0, t0)
    cross_half_max(a, m1, t0)
    fill_nm(a, m0, m1)
    for r in range(32):
        a(f"v_mov_b32 v{OA[0]+r}, 0")
    for r in range(8):
        a(f"v_mov_b32 v{Vb[0][0]+r}, 0x3f803f80")
    kbase()
    a(f"""
    s_mul_i32 s{sT3}, s{sHead}, 320
    s_add_u32 s{sT3}, s{sT3}, s{sT0}
    s_add_u32 s{sT3}, s{sT3}, {IMG}
    LA_slow_pv:
    """)
    for t in range(2):
        kloads(t)
        a(f"""
        s_add_u32 s{sT4}, s{sT3}, 20480
        s_mov_b32 exec_lo, 0xfffff
        s_mov_b32 exec_hi, 0xfffff
        buffer_load_dwordx4 {vr(Vb[0][0],4)}, v{vVG}, {WSR()}, s{sT3} offen sc1
        buffer_load_dwordx4 {vr(Vb[0][1],4)}, v{vVG}, {WSR()}, s{sT4} offen sc1
        s_mov_b64 exec, -1
        s_add_u32 s{sT3}, s{sT3}, {TILE}
        s_waitcnt vmcnt(2)
        """)
        a(mfma32(X, Km[0], Qm[0], vr(NM, 16)))
        a(mfma32(X + 16, Km[0], Qm[1], vr(NM + 16, 16)))
        a("s_nop 9")
        a(mfma2b(X, t, vr(X, 32)))
        a("s_nop 15\ns_nop 3")
        for r in range(32):
            a(f"v_exp_f32 v{X+r}, v{X+r}")
        a("s_nop 0")
        for j in range(16):
            a(f"v_cvt_pk_bf16_f32 v{X + 8*(j//4) + j%4}, v{X+2*j}, v{X+2*j+1}")
        a("s_waitcnt vmcnt(0)\ns_nop 1")
        a(mfma32(OA[0], Vb[0][0], X, vr(OA[0], 16)))
        a(mfma32(OA[0], Vb[0][1], X + 8, vr(OA[0], 16)))
        a(mfma32(OA[1], Vb[0][0], X + 16, vr(OA[1], 16)))
        a(mfma32(OA[1], Vb[0][1], X + 24, vr(OA[1], 16)))
    a(f"""
    s_add_u32 s{sRem}, s{sRem}, 1
    s_cmp_lt_u32 s{sRem}, 32
    s_cbranch_scc1 LA_slow_pv
    s_nop 15
    s_mov_b32 s{sRem}, 1
    s_branch LA_epi
    """)


pWF = [16, 56]
pACC = 96
pOF = 136
pWA, pOA = 2, 3


def c3_off(a, dst, t64, part):
    a(f"""
    s_lshl_b32 s{dst}, s{sBr}, 5
    s_add_u32 s{dst}, s{dst}, s{t64}
    s_lshl_b32 s{dst}, s{dst}, 1
    s_add_u32 s{dst}, s{dst}, s{part}
    s_lshl_b32 s{dst}, s{dst}, 7
    s_add_u32 s{dst}, s{dst}, {WS_C3}
    """)


def wo_dma(a, k0, k1, lds0):
    _lbl[0] += 1
    L = f"LP_wd{_lbl[0]}"
    a(f"""
    s_and_b32 s{sT0}, s{sHead}, 3
    s_lshl_b32 s{sT1}, s{sBr}, 2
    s_add_u32 s{sT0}, s{sT0}, s{sT1}
    s_mul_i32 s{sT0}, s{sT0}, {WO_SLAB}
    s_lshl_b32 s{sT1}, s{sJ}, 10
    s_add_u32 s{sT0}, s{sT0}, s{sT1}
    s_add_u32 s{sT0}, s{sT0}, {WS_WO + 10240 * k0}
    s_add_u32 s{sT1}, s{sT1}, {lds0}
    {L}:
    s_mov_b32 m0, s{sT1}
    s_add_u32 s{sT1}, s{sT1}, 4096
    buffer_load_dwordx4 v{vL16}, {WSR()}, s{sT0} offen sc1 lds
    s_add_u32 s{sT0}, s{sT0}, 4096
    s_cmp_lt_u32 s{sT1}, {lds0 + 10240 * (k1 - k0)}
    s_cbranch_scc1 {L}
    """)


def o_addr(a):
    a(f"""
    s_lshl_b32 s{sT1}, s{sQB}, 2
    s_lshr_b32 s{sT2}, s{sHead}, 2
    s_add_u32 s{sT1}, s{sT1}, s{sT2}
    """)
    c3_off(a, sFc, sT1, sRole)
    a(f"""
    v_and_b32 v{vP+3}, 15, v0
    s_lshl_b32 s{sT1}, s{sT1}, 1
    s_lshr_b32 s{sT2}, s{sJ}, 1
    s_add_u32 s{sT1}, s{sT1}, s{sT2}
    s_mul_i32 s{sT1}, s{sT1}, {TILE}
    s_add_u32 s{sT1}, s{sT1}, s{sImg}
    s_and_b32 s{sT2}, s{sJ}, 1
    s_lshl_b32 s{sT2}, s{sT2}, 8
    s_add_u32 s{sT1}, s{sT1}, s{sT2}
    s_add_u32 s{sFo}, s{sT1}, {3 * IMG}
    v_lshrrev_b32 v{pOA}, 4, v0
    v_lshlrev_b32 v{pOA}, 9, v{pOA}
    v_lshl_add_u32 v{pOA}, v{vP+3}, 4, v{pOA}
    """)


def o_load_sub(a):
    a(f"LP_ld:\ns_mov_b32 s{sT1}, s{sFo}")
    for i in range(10):
        a(f"buffer_load_dwordx4 {vr(pOF + 4*i, 4)}, v{pOA}, {WSR()}, s{sT1} offen offset:{(i & 1) * 2048} sc1")
        if i & 1 and i < 9:
            a(f"s_add_u32 s{sT1}, s{sT1}, 4096")
    a(f"s_setpc_b64 s[{sLnk}:{sLnk+1}]")


def o_fetch_checked(a):
    a(f"s_mov_b32 s{sSpin}, {SPIN}\nLP_again:\ns_call_b64 s[{sLnk}:{sLnk+1}], LP_ld\nv_mov_b32 v{vPS}, 0\nv_mov_b32 v{vPS+1}, 0")
    for i in range(10):
        r = pOF + 4 * i
        a(f"s_waitcnt vmcnt({9 - i})")
        a(f"v_max3_u32 v{vPS}, v{vPS}, v{r}, v{r+1}\nv_max3_u32 v{vPS+1}, v{vPS+1}, v{r+2}, v{r+3}")
    a(f"""
    v_max_u32 v{vPS}, v{vPS}, v{vPS+1}
    v_cmp_eq_u32 vcc, -1, v{vPS}
    s_cbranch_vccz LP_valid
    s_sub_u32 s{sSpin}, s{sSpin}, 1
    s_cbranch_scc0 LP_again
    LP_valid:
    """)


TAB = [8, 9, 10, 11, 12, 13, 14, 15, 52, 53]


def oproj_subs(a):
    def wreads(p):
        return [f"ds_read_b128 {vr(pWF[p & 1] + 4*c, 4)}, v{pWA} offset:{c * 1024}" for c in range(10)]
    a(f"LP_pro:\nv_add_u32 v{pWA}, s{TAB[0]}, v{vL16}")
    for r in wreads(0):
        a(r)
    a(f"s_setpc_b64 s[{sLnk}:{sLnk+1}]")
    for p in range(10):
        if p % 5 == 0:
            a("LP_lo:" if p else "LP_hi:")
        rd = wreads(p + 1) if p < 9 else []
        if rd:
            a(f"v_add_u32 v{pWA}, s{TAB[p + 1]}, v{vL16}")
        for c in range(10):
            A = pACC + 4 * c
            a(f"s_waitcnt lgkmcnt({9 if rd else 9 - c})")
            a(f"v_mfma_f32_16x16x32_bf16 {vr(A,4)}, {vr(pOF + 4*p, 4)}, {vr(pWF[p & 1] + 4*c, 4)}, {vr(A,4)}")
            if rd:
                a(rd[c])
        if p == 4:
            a(f"s_cbranch_scc1 LP_lo\ns_setpc_b64 s[{sLnk}:{sLnk+1}]")
        if p == 9:
            a(f"s_setpc_b64 s[{sLnk}:{sLnk+1}]")


def set_tab(a, addrs):
    for r, x in zip(TAB, addrs):
        a(f"s_mov_b32 s{r}, {x}")


def out_addr(a):
    a.c("lane holds columns 10*(l & 15) .. +9 of tokens 4*(l >> 4) + r")
    a(f"""
    s_lshl_b32 s{sT0}, s{sQB}, 2
    s_lshr_b32 s{sT1}, s{sHead}, 2
    s_add_u32 s{sT0}, s{sT0}, s{sT1}
    s_lshl_b32 s{sT0}, s{sT0}, 2
    s_add_u32 s{sT0}, s{sT0}, s{sJ}
    s_mul_i32 s{sT0}, s{sT0}, {16 * 2560}
    s_mul_i32 s{sT1}, s{sBr}, 1280
    s_add_u32 s{sT0}, s{sT0}, s{sT1}
    s_and_b32 s{sT1}, s{sHead}, 3
    s_mul_i32 s{sT1}, s{sT1}, 320
    s_add_u32 s{sXo}, s{sT0}, s{sT1}
    s_add_u32 s{sWo}, s{sXo}, {2 * 2560}
    v_lshrrev_b32 v4, 4, v0
    v_mul_u32_u24 v4, {4 * 2560}, v4
    v_and_b32 v5, 15, v0
    v_mul_u32_u24 v5, 20, v5
    v_add_u32 v4, v4, v5
    """)


def out_store(a):
    OUTMOD = " sc1" if 'outsc1' in OPT else " nt" if 'outnt' in OPT else "" if 'outplain' in OPT else " nt"
    a("s_nop 6")
    for r in range(4):
        P = 16 + 6 * r
        for j in range(5):
            a(f"v_cvt_pk_bf16_f32 v{P+j}, v{pACC + 8*j + r}, v{pACC + 8*j + 4 + r}")
        so = sXo if r < 2 else sWo
        a(f"buffer_store_dwordx4 {vr(P,4)}, v4, s[{sOut}:{sOut+3}], s{so} offen offset:{(r & 1) * 2560}{OUTMOD}")
        a(f"buffer_store_dword v{P+4}, v4, s[{sOut}:{sOut+3}], s{so} offen offset:{(r & 1) * 2560 + 16}{OUTMOD}")


rL, rT, rD, rX, rData = 194, 199, 200, 205, 208


def repack_setup(a):
    x = rX
    for i in range(5):
        a(f"""
        v_add_u32 v{x}, {64 * i}, v0
        v_mul_u32_u24 v{x+1}, 3277, v{x}
        v_lshrrev_b32 v{x+1}, 16, v{x+1}
        v_mul_u32_u24 v{x+2}, 20, v{x+1}
        v_sub_u32 v{x+2}, v{x}, v{x+2}
        v_mul_u32_u24 v{x+1}, 1280, v{x+1}
        v_lshl_add_u32 v{rL+i}, v{x+2}, 4, v{x+1}
        v_and_b32 v{x}, 15, v0
        v_add_u32 v{x}, {16 * i}, v{x}
        v_mul_u32_u24 v{x+1}, 205, v{x}
        v_lshrrev_b32 v{x+1}, 11, v{x+1}
        v_mul_u32_u24 v{x+2}, 10, v{x+1}
        v_sub_u32 v{x+2}, v{x}, v{x+2}
        v_mul_u32_u24 v{x+2}, 1040, v{x+2}
        v_lshl_add_u32 v{x+2}, v{x+1}, 4, v{x+2}
        v_and_b32 v{x}, 48, v0
        v_lshl_add_u32 v{x+2}, v{x}, 4, v{x+2}
        v_add_u32 v{rD+i}, {RPK}, v{x+2}
        """)
    a(f"""
    v_lshrrev_b32 v{x}, 4, v0
    v_lshlrev_b32 v{x}, 3, v{x}
    v_lshrrev_b32 v{x+1}, 2, v0
    v_and_b32 v{x+1}, 3, v{x+1}
    v_add_u32 v{x}, v{x}, v{x+1}
    v_mul_u32_u24 v{x}, 320, v{x}
    v_and_b32 v{x+1}, 3, v0
    v_lshl_add_u32 v{x}, v{x+1}, 3, v{x}
    v_add_u32 v{rT}, {RPK}, v{x}
    v_add_u32 v{rX}, {RPK}, v{vL16}
    """)


def repack_steps(a):
    a(f"""
    LR_step:
    s_add_u32 s{sRp}, s{sRp}, 1
    s_lshr_b32 s{sT2}, s2, 3
    s_cmp_eq_u32 s{sM}, {SK + 1}
    s_cbranch_scc0 LR_s1
    s_mov_b32 s{sWt}, s{sPtr+2}
    s_and_b32 s{sWt+1}, s{sPtr+3}, 0xffff
    s_mov_b32 s{sWt+2}, {D * D * 2}
    s_mov_b32 s{sWt+3}, 0x00020000
    s_mul_i32 s{sT0}, s{sT2}, {32 * 1280}
    s_and_b32 s{sT1}, s2, 3
    s_mul_i32 s{sT1}, s{sT1}, 320
    s_add_u32 s{sT0}, s{sT0}, s{sT1}
    s_mov_b32 m0, {RPK}
    s_add_u32 s{sT1}, s{sT0}, {16 * 1280}
    """)
    for i in range(10):
        a(f"buffer_load_dwordx4 v{rL + i % 5}, s[{sWt}:{sWt+3}], s{sT1 if i >= 5 else sT0} offen lds")
        a("s_add_u32 m0, m0, 1024\ns_nop 0")
    a(f"""
    s_branch LA_bar
    LR_s1:
    s_cmp_eq_u32 s{sM}, {SK + 2}
    s_cbranch_scc0 LR_s2
    s_and_b32 s{sT0}, s2, 7
    s_mul_i32 s{sT0}, s{sT0}, {WO_SLAB}
    s_mul_i32 s{sT2}, s{sT2}, 10240
    s_add_u32 s{sT0}, s{sT0}, s{sT2}
    s_add_u32 s{sT0}, s{sT0}, {WS_WO}
    """)
    for ct in range(10):
        for u in range(2):
            a(f"ds_read_b64_tr_b16 {vr(rData + 4*ct + 2*u, 2)}, v{rT} offset:{u*4*320 + ct*32}")
        if ct == 4:
            a("s_waitcnt lgkmcnt(0)")
    a("s_waitcnt lgkmcnt(0)")
    for ct in range(10):
        a(f"ds_write_b128 v{rD + ct % 5}, {vr(rData + 4*ct, 4)} offset:{128 * (ct // 5)}")
    a("s_waitcnt lgkmcnt(0)")
    for c in range(10):
        a(f"ds_read_b128 {vr(rData + 4*c, 4)}, v{rX} offset:{1040 * c}")
    for c in range(10):
        a(f"s_waitcnt lgkmcnt({9 - c})")
        a(f"buffer_store_dwordx4 {vr(rData + 4*c, 4)}, v{vL16}, {WSR()}, s{sT0} offen offset:{1024 * (c & 3)} sc1")
        if c & 3 == 3:
            a(f"s_add_u32 s{sT0}, s{sT0}, 4096")
    a(f"""
    s_branch LA_bar
    LR_s2:
    s_mov_b32 s{sRp}, -1
    s_and_b32 s{sT0}, s2, 7
    s_lshl_b32 s{sT0}, s{sT0}, 7
    s_add_u32 s{sT0}, s{sT0}, {WS_C4}
    """)
    count_in(a, sT0, vP, vP + 1)
    a("s_branch LA_bar")


def write_ones(a, role):
    a(f"""
    v_and_b32 v{vT0}, 7, v0
    v_mul_u32_u24 v{vT0}, 640, v{vT0}
    v_add_u32 v{vT0}, {ONES[role]}, v{vT0}
    v_mov_b32 v16, 0x3f803f80
    v_mov_b32 v17, 0x3f803f80
    v_mov_b32 v18, 0x3f803f80
    v_mov_b32 v19, 0x3f803f80
    ds_write_b128 v{vT0}, v[16:19]
    """)


def common_setup(a):
    a(f"""
    s_and_b32 s{sT0}, s2, 3
    s_lshl_b32 s{sT0}, s{sT0}, 2
    s_lshr_b32 s{sT2}, s2, 6
    s_add_u32 s{sHead}, s{sT0}, s{sT2}
    s_lshr_b32 s{sQB}, s2, 3
    s_and_b32 s{sQB}, s{sQB}, 7
    s_lshl_b32 s{sT2}, s{sRole}, 4
    s_add_u32 s{sHead}, s{sHead}, s{sT2}
    s_mul_i32 s{sImg}, s{sBr}, {4 * IMG}
    s_mov_b32 s{sPh}, 0
    s_mov_b32 s{sWS+2}, {WS_STAMP + 2048 * 128 if common.STAMP else WS_END}
    s_mov_b32 s{sWS+3}, 0x00020000
    s_mov_b32 s{sOut+2}, {S * 2 * D * 2}
    s_mov_b32 s{sOut+3}, 0x00020000
    s_mov_b32 s{sDbg+2}, 256
    s_mov_b32 s{sDbg+3}, 0x00020000
    s_waitcnt lgkmcnt(0)
    s_mov_b32 s{sOut}, s{sPtr+4}
    s_and_b32 s{sOut+1}, s{sPtr+5}, 0xffff
    s_mov_b32 s{sDbg}, s{sPtr+6}
    s_and_b32 s{sDbg+1}, s{sPtr+7}, 0xffff
    s_add_u32 s{sWS}, s{sWS}, {WS_MB << 20}
    s_addc_u32 s{sWS+1}, s{sWS+1}, 0
    s_and_b32 s{sWS+1}, s{sWS+1}, 0xffff
    """)


def gen(a, label):
    kernel_head(a, label)
    a("s_cmp_ge_u32 s2, 256\ns_cbranch_scc1 LF_end")
    stamp(a, 0)
    a(f"""
    s_bfe_u32 s{sBr}, s2, 0x10002
    s_mul_i32 s{sT0}, s{sBr}, 24
    s_load_dwordx2 s[{sX}:{sX+1}], s[0:1], s{sT0}
    s_add_u32 s{sT1}, s{sT0}, 8
    s_load_dwordx4 s[{sPtr}:{sPtr+3}], s[0:1], s{sT1}
    s_load_dwordx4 s[{sPtr+4}:{sPtr+7}], s[0:1], 48
    s_load_dwordx2 s[{sWS}:{sWS+1}], s[0:1], 64
    v_lshrrev_b32 v1, 6, v0
    v_and_b32 v0, 63, v0
    v_readfirstlane_b32 s{sW}, v1
    s_and_b32 s{sT0}, s2, 3
    s_lshl_b32 s{sT0}, s{sT0}, 2
    s_bfe_u32 s{sT2}, s2, 0x20003
    s_add_u32 s{sTB}, s{sT0}, s{sT2}
    s_lshr_b32 s{sTI}, s2, 5
    """)
    if 'nocw' not in OPT:
        a.c("wave 7 pulls a quarter of the code into the L2, so that later instruction fetches find it there")
        a(f"""
        s_cmp_eq_u32 s{sW}, 7
        s_cbranch_scc0 LG_nocw
        s_getpc_b64 s[4:5]
        LG_pc:
        s_sub_u32 s4, s4, LG_pc-{label}
        s_subb_u32 s5, s5, 0
        s_lshl_b32 s{sT0}, s{sT2}, 13
        v_lshl_add_u32 v8, v0, 7, s{sT0}
        v_min_u32 v8, LF_codeend-{label}-4, v8
        global_load_dword v{gT+1}, v8, s[4:5]
        LG_nocw:
        """)
    a.c("phase-a units of tile ti: n = 2 ti + e, unit = n + 5 (n >= 5) + 5 (n >= 10)")
    a(f"""
    s_lshl_b32 s{sU0}, s{sTI}, 1
    s_cmp_ge_u32 s{sTI}, 5
    s_cselect_b32 s{sT0}, 10, 5
    s_cmp_ge_u32 s{sTI}, 3
    s_cselect_b32 s{sT0}, s{sT0}, 0
    s_add_u32 s{sU0}, s{sU0}, s{sT0}
    s_cmp_eq_u32 s{sTI}, 2
    s_cselect_b32 s{sT0}, 6, 1
    s_add_u32 s{sU1}, s{sU0}, s{sT0}
    s_and_b32 s{sJ}, s{sW}, 3
    s_lshr_b32 s{sRole}, s{sW}, 2
    s_cbranch_scc1 LG_start
    """)
    gemm_loader(a)
    a("LG_start:")
    common_setup(a)
    a.c("wave 4 clears counter lines id and id + 256")
    a(f"""
    s_cmp_eq_u32 s{sJ}, 0
    s_cbranch_scc0 LG_cleared
    s_lshl_b32 s{sT0}, s2, 7
    s_add_u32 s{sT0}, s{sT0}, {WS_C1}
    v_lshlrev_b32 v8, 15, v0
    v_mov_b32 v9, 0
    s_mov_b64 exec, 3
    buffer_store_dword v9, v8, {WSR()}, s{sT0} offen sc1
    s_mov_b64 exec, -1
    LG_cleared:
    """)
    gemm_compute(a)
    a("LG_done:")
    stamp(a, 3)
    vectors_get(a)
    a.c("the last wave whose stores have drained publishes the tile")
    a(f"""
    v_mov_b32 v{vP}, {LCNT}
    v_mov_b32 v{vP+1}, 1
    s_waitcnt vmcnt(0)
    s_mov_b64 exec, 1
    ds_add_rtn_u32 v{vP+2}, v{vP}, v{vP+1}
    s_mov_b64 exec, -1
    s_waitcnt lgkmcnt(0)
    v_readfirstlane_b32 s{sT0}, v{vP+2}
    s_cmp_eq_u32 s{sT0}, 3
    s_cbranch_scc0 LG_nopub
    s_call_b64 s[{sLnk}:{sLnk+1}], LG_publish
    LG_nopub:
    """)
    stamp(a, 27)
    a("s_branch LB_lead")
    a("LG_idle:\ns_waitcnt lgkmcnt(0)\ns_barrier")
    drained(a)
    a("s_barrier\ns_barrier")
    vectors_get(a)
    stamp(a, 3)
    a("LB_lead:")
    call_dma(a, 0, 2)
    a("s_barrier")
    o_mark(a)
    a("s_nop 0")
    write_ones(a, 1)
    a("s_waitcnt vmcnt(0)\ns_barrier")
    poll_f1(a)
    stamp(a, 26)
    load_q(a)
    call_dma(a, 1, 0)
    call_dma(a, 0, 3)
    scale_q(a, 10)
    a(f"s_mov_b32 s{sM}, {SK}\ns_mov_b32 s{sMend}, {(1 << (SK + 5)) - 1}\ns_mov_b32 s{sRb}, {RB}\ns_mov_b32 s{sNext}, {RB}\ns_mov_b32 s{sRp}, -1")
    attn_zero(a)
    a("s_waitcnt vmcnt(0) lgkmcnt(0)\ns_barrier")
    call_dma(a, 1, 1)
    call_dma(a, 0, 4)
    call_dma(a, 1, 2)
    a("s_setprio 0" if 'noprio' in OPT else "s_setprio 1")
    stamp(a, 5)
    a("s_branch LA_start")
    a("LA_lead:")
    poll_f1(a)
    stamp(a, 1)
    load_q(a)
    for blk in range(2):
        call_dma(a, 0, blk)
    scale_q(a, 10)
    a(f"""
    s_cmp_lt_u32 s2, 160
    s_cselect_b32 s{sT0}, s{sJ}, 0
    s_cmp_eq_u32 s{sT0}, 1
    s_cselect_b32 s{sRp}, {SK + 1}, -1
    s_mov_b32 s{sM}, 0
    s_mov_b32 s{sMend}, 0
    s_mov_b32 s{sRb}, {RA}
    s_mov_b32 s{sNext}, {RA + BLK}
    """)
    attn_zero(a)
    o_base(a)
    a("s_waitcnt vmcnt(5) lgkmcnt(0)\ns_barrier")
    stamp(a, 3)
    attention(a)
    if 'hint1' in OPT:
        a(f"s_cmp_eq_u32 s{sRole}, 1\ns_cbranch_scc1 LP_nw\ns_waitcnt vmcnt(0)\nLP_nw:")
        count_in(a, sOc, vP, vP + 1)
    stamp(a, 6)
    a(f"s_cmp_eq_u32 s{sRole}, 1\ns_cbranch_scc1 {'LF_end' if 'astamp' in OPT else 'LP_end'}")
    if 'hint1' not in OPT:
        a("s_waitcnt vmcnt(0)")
        count_in(a, sOc, vP, vP + 1)
    a.c("role-A waves: first half of K while role B finishes, second half once it is published")
    a(f"""
    s_and_b32 s{sT0}, s{sHead}, 3
    s_lshl_b32 s{sT1}, s{sBr}, 2
    s_add_u32 s{sT0}, s{sT0}, s{sT1}
    s_lshl_b32 s{sT0}, s{sT0}, 7
    s_add_u32 s{sT0}, s{sT0}, {WS_C4}
    """)
    poll_counter(a, vP + 4, f"s{sT0}", 20, 1)
    for r in range(0, 40, 2):
        a(f"v_pk_mov_b32 {vr(pACC + r, 2)}, 0, 0")
    G = lambda i: LDS_BYTES - (11 - i) * 10240
    Lo = lambda i: RB + i * 10240
    assert SK == 3 and G(0) >= RB + 2 * BLK and G(3) >= RB + RING and Lo(3) <= RB + BLK + CH
    call = lambda l: a(f"s_call_b64 s[{sLnk}:{sLnk+1}], {l}")
    o_addr(a)
    out_addr(a)
    a("s_setprio 0")
    stamp(a, 20)
    a("s_barrier")
    stamp(a, 21)
    call_dma(a, 1, 7)
    wo_dma(a, 0, 8, G(3))
    stamp(a, 22)
    poll_counter(a, vP + 4, f"s{sFc}", 16, 1)
    call("LP_ld")
    a(f"s_add_u32 s{sFo}, s{sFo}, 20480\ns_add_u32 s{sFc}, s{sFc}, 128")
    stamp(a, 25)
    a("s_barrier")
    stamp(a, 5)
    set_tab(a, [G(3), G(4), G(5), G(6), G(7), G(8), G(9), G(10), G(0), G(1)])
    call("LP_pro")
    a("s_waitcnt vmcnt(0)")
    wo_dma(a, 8, 11, G(0))
    a("s_cmp_eq_u32 0, 1")
    call("LP_hi")
    a("s_waitcnt vmcnt(0) lgkmcnt(0)")
    stamp(a, 26)
    a("s_barrier")
    stamp(a, 28)
    wo_dma(a, 11, 17, G(3))
    wo_dma(a, 17, 20, Lo(0))
    stamp(a, 29)
    call("LP_lo")
    stamp(a, 10)
    set_tab(a, [G(2), G(3), G(4), G(5), G(6), G(7), G(8), Lo(0), Lo(1), Lo(2)])
    call("LP_pro")
    poll_counter(a, vP + 4, f"s{sFc}", 16, 1)
    stamp(a, 11)
    o_fetch_checked(a)
    stamp(a, 2)
    if common.STAMP: a(f"s_mov_b32 s{STAMP_S+17}, s{sSpin}")
    a("s_barrier")
    stamp(a, 30)
    a("s_cmp_eq_u32 0, 0")
    call("LP_hi")
    stamp(a, 16)
    out_store(a)
    a("LP_end:")
    if common.STAMP:
        a("s_waitcnt vmcnt(0)")
        stamp(a, 7)
        stamp_flush(a, 4)
    a("LF_end:\ns_endpgm")
    dma_sub(a)
    refill(a)
    publish_sub(a)
    o_load_sub(a)
    oproj_subs(a)
    repack_steps(a)
    slow_path(a)
    a("LF_codeend:")


def build():
    a = Asm()
    label = NAME + "_kernel"
    a('.amdgcn_target "amdgcn-amd-amdhsa--gfx950"\n.text')
    gen(a, label)
    return (HEADER + f"; @launch grid=(256,1,1) block=(512,1,1) lds={LDS_BYTES}\n" + a.text()
            + '.section .rodata,"a"\n.p2align 6\n' + kernel_desc(label, NVGPR, NVGPR, 100))


if __name__ == "__main__":
    import sys
    for x in sys.argv[2:]:
        if '=' in x:
            k, v = x.split('='); globals()[k] = int(v)
        else:
            OPT.add(x)
    if 'dbgstamp' in OPT:
        common.STAMP = True
    out = sys.argv[1] if len(sys.argv) > 1 else f"cdna_kernels/{NAME}.s"
    open(out, "w").write(build())
```

```python
import sys, os, subprocess, struct, ctypes
sys.path.insert(0, "cdna_kernels")
import numpy as np
import cdna_launch as cl

TEMPLATE = """
.amdgcn_target "amdgcn-amd-amdhsa--gfx950"
.text
.globl mb_kernel
.p2align 8
.type mb_kernel,@function
mb_kernel:
    s_load_dwordx2 s[4:5], s[0:1], 0
    s_waitcnt lgkmcnt(0)
    s_mov_b32 s16, s4
    s_mov_b32 s17, s5
    s_mov_b32 s18, 0x100000
    s_mov_b32 s19, 0x00020000
    v_lshrrev_b32 v1, 6, v0
    s_nop 1
    v_readfirstlane_b32 s20, v1
    s_mul_i32 s21, s2, {NW}
    s_add_u32 s21, s21, s20
    s_lshl_b32 s21, s21, 3
{INIT}
    s_barrier
    s_memtime s[8:9]
    s_memrealtime s[22:23]
    s_waitcnt lgkmcnt(0)
    s_mov_b32 s10, {ITER}
    .p2align 6
L_loop:
{BODY}
    s_sub_u32 s10, s10, 1
    s_cmp_lg_u32 s10, 0
    s_cbranch_scc1 L_loop
    s_nop 15
    s_nop 15
    s_memtime s[12:13]
    s_memrealtime s[24:25]
    s_waitcnt lgkmcnt(0)
    s_sub_u32 s12, s12, s8
    s_sub_u32 s24, s24, s22
    v_mov_b32 v2, s12
    v_mov_b32 v3, s24
    v_mov_b32 v1, s21
    v_and_b32 v0, 63, v0
    v_cmp_eq_u32 vcc, 0, v0
    s_and_saveexec_b64 s[14:15], vcc
    buffer_store_dwordx2 v[2:3], v1, s[16:19], 0 offen
    s_waitcnt vmcnt(0)
    s_endpgm
.section .rodata,"a"
.p2align 6
.amdhsa_kernel mb_kernel
  .amdhsa_next_free_vgpr {NV}
  .amdhsa_next_free_sgpr 64
  .amdhsa_accum_offset {AO}
  .amdhsa_group_segment_fixed_size 0
  .amdhsa_kernarg_size 8
  .amdhsa_user_sgpr_count 2
  .amdhsa_user_sgpr_kernarg_segment_ptr 1
  .amdhsa_system_sgpr_workgroup_id_x 1
.end_amdhsa_kernel
.amdgpu_metadata
---
amdhsa.version: [1, 2]
amdhsa.kernels:
  - .name: mb_kernel
    .symbol: mb_kernel.kd
    .kernarg_segment_size: 8
    .kernarg_segment_align: 8
    .group_segment_fixed_size: 0
    .private_segment_fixed_size: 0
    .wavefront_size: 64
    .sgpr_count: 64
    .vgpr_count: {NV}
    .max_flat_workgroup_size: 1024
    .args:
      - {{.name: kernargs, .size: 8, .offset: 0, .value_kind: by_value}}
...
.end_amdgpu_metadata
"""

def build(name, body, init="", iters=1000, nw=4, nv=128):
    src = TEMPLATE.format(BODY=body, INIT=init, ITER=iters, NW=nw, NV=nv, AO=min(256, (nv + 3) // 4 * 4))
    os.makedirs("mb", exist_ok=True)
    s = f"mb/{name}.s"; co = f"mb/{name}.co"
    open(s, "w").write(src)
    r = subprocess.run(["clang", "-x", "assembler", "-target", "amdgcn-amd-amdhsa",
                        "-mcpu=gfx950", s, "-o", co], capture_output=True, text=True)
    if r.returncode != 0:
        print(r.stderr); raise SystemExit(1)
    return co

_buf = None
def run(name, body, init="", iters=1000, nw=4, nv=128, grid=256, lds=0, reps=3):
    global _buf
    co = build(name, body, init, iters, nw, nv)
    if not os.path.exists('/dev/kfd'):
        return None
    k = cl.AsmKernel(co, "mb_kernel")
    if _buf is None:
        _buf = cl.DeviceBuffer(0x100000)
    res = None
    for _ in range(reps):
        k.launch((grid, 1, 1), (nw * 64, 1, 1), struct.pack("<Q", _buf.ptr), lds)
        cl._check(cl._hip.hipDeviceSynchronize())
        out = _buf.to_numpy(np.uint32, (0x100000 // 4,))[: grid * nw * 2].reshape(-1, 2)
        res = out
    k.unload()
    cyc = res[:, 0].astype(np.float64) / iters
    rt = res[:, 1].astype(np.float64)
    ghz = np.median(res[:, 0] / np.maximum(rt, 1)) * 0.1
    return float(np.median(cyc)), float(cyc.min()), float(cyc.max()), float(ghz)
```

```python
from mb import run
INIT = "    v_mov_b32 v2, v0\n    s_mov_b32 s40, 0x9E3779B1\n    s_mov_b32 s41, 0x807f807f\n"
for i in range(4, 64):
    INIT += f"    v_mul_lo_u32 v2, v2, s40\n    v_add_u32 v2, {12345 + i}, v2\n    v_lshrrev_b32 v3, 7, v2\n    v_xor_b32 v3, v3, v2\n    v_and_b32 v3, s41, v3\n    v_or_b32 v{i}, 0x3e003e00, v3\n"
for i in range(64, 128): INIT += f"    v_mov_b32 v{i}, 0\n"
def b32():
    l = []
    for k in range(4):
        for c in range(4):
            l.append(f"    v_mfma_f32_32x32x16_bf16 v[{64+16*c}:{79+16*c}], v[{20+4*((4*k+c)%10)}:{23+4*((4*k+c)%10)}], v[{4+4*k}:{7+4*k}], v[{64+16*c}:{79+16*c}]")
    return "\n".join(l)
def b16():
    l = []
    for k in range(2):
        for c in range(8):
            for t in range(2):
                a = 64 + 4*(2*c+t)
                l.append(f"    v_mfma_f32_16x16x32_bf16 v[{a}:{a+3}], v[{20+4*((8*k+c)%10)}:{23+4*((8*k+c)%10)}], v[{4+4*(2*k+t)}:{7+4*(2*k+t)}], v[{a}:{a+3}]")
    return "\n".join(l)
for rep in range(2):
    for name, body in (("32x32x16", b32()), ("16x16x32", b16())):
        for iters in (12, 400):
            r = run("pw", "\n".join([body]*2), INIT, iters=iters, nw=4, nv=128)
            if r: print(f"{name} iters {iters}: cycles/iter {r[0]:.0f}  GHz {r[3]:.3f}  ns/iter {r[0]/r[3]:.1f}", flush=True)
```

```python
from common import Asm, vr, sr, f32bits, kernel_head, kernel_desc, QSCALE, S, D, HEADER, NAME
import common

OPT = set()
SK = 3

TILE = 40960
IMG = 64 * TILE
WS_WO = 8 * IMG
WO_SLAB = 204800
WO_HALF = WO_SLAB // 2
WS_C1 = WS_WO + 8 * WO_SLAB
WS_C3 = WS_C1 + 256 * 128
WS_C4 = WS_C3 + 192 * 128
WS_END = WS_C1 + 512 * 128
WS_STAMP = WS_END + 65536
WS_MB = 0

LDS_BYTES = 163840
GSL = 16384
CH = 11264
BLK = 2 * CH
RING = 3 * BLK
ONES = [90112, 0]
RB = 5120
RA = LDS_BYTES - RING
RPK = RB + RING
XFER = 81920
LCNT = 95232

sX, sWt, sWS, sOut, sDbg = 8, 12, 16, 20, 24
sPtr = 28
sW, sJ, sRole = 40, 41, 42
sHead, sQB, sTI, sTB = 43, 44, 45, 46
sT0, sT1, sT2, sT3, sT4 = 47, 48, 49, 50, 51
sIt, sSlot, sKB, sInc = 52, 53, 54, 55
sXo, sWo = 56, 57
sNext, sRb, sRe, sRem = 52, 53, 54, 55
sM, sMend = 56, 57
sOm, sExt = 58, 59
sSpin = 60
sBr = 61
sU0, sU1, sImg, sPh = 96, 97, 98, 99
sExp = 3
sDone = 36
sOb = 37
sOc = 97
sFo, sFc = 38, 39
sRp = 96
sE = 56
sLnk = 62
STAMP_S = 64

SPIN = 1 << 15
SLEEP = 2


NST = 32


def stamp(a, i):
    if common.STAMP:
        a(f"s_memrealtime s[4:5]\ns_waitcnt lgkmcnt(0)\ns_mov_b32 s{STAMP_S+i}, s4")


def stamp_cyc(a, i):
    if common.STAMP:
        a(f"s_memtime s[4:5]\ns_waitcnt lgkmcnt(0)\ns_mov_b32 s{STAMP_S+i}, s4")


def stamp_idx(a, base, sreg):
    if common.STAMP and 'cyc' in OPT:
        a(f"s_memtime s[4:5]\ns_mov_b32 m0, s{sreg}\ns_waitcnt lgkmcnt(0)\ns_movreld_b32 s{STAMP_S+base}, s4")


def stamp_flush(a, vt):
    if not common.STAMP:
        return
    a(f"""
    s_mov_b64 exec, 1
    s_lshl_b32 s{sT0}, s2, 3
    s_add_u32 s{sT0}, s{sT0}, s{sW}
    s_lshl_b32 s{sT0}, s{sT0}, 7
    s_add_u32 s{sT0}, s{sT0}, {WS_STAMP}
    v_mov_b32 v{vt+2}, 0
    """)
    for i in range(NST):
        a(f"v_mov_b32 v{vt}, s{STAMP_S+i}")
        a(f"buffer_store_dword v{vt}, v{vt+2}, s[{sWS}:{sWS+3}], s{sT0} offen offset:{4*i}")
    if 'dbgstamp' in OPT:
        a(f"s_cmp_eq_u32 s2, 100\ns_cbranch_scc0 LF_nodbg\ns_cmp_eq_u32 s{sJ}, 0\ns_cbranch_scc0 LF_nodbg\ns_lshl_b32 s{sT0}, s{sRole}, 5")
        for i in range(8):
            a(f"s_sub_u32 s{sT1}, s{STAMP_S+i}, s{STAMP_S}")
            a(f"v_mov_b32 v{vt}, s{sT1}")
            a(f"buffer_store_dword v{vt}, v{vt+2}, s[{sDbg}:{sDbg+3}], s{sT0} offen offset:{4*i}")
        a("LF_nodbg:")


def WSR():
    return f"s[{sWS}:{sWS+3}]"


_lbl = [0]


def poll(a, loads, expect, vtmp):
    _lbl[0] += 1
    L = f"LF_poll{_lbl[0]}"
    a(f"s_mov_b32 s{sSpin}, {SPIN}\n{L}:")
    for i, (vo, srd, so) in enumerate(loads):
        a(f"buffer_load_dword v{vtmp+i}, v{vo}, {srd}, {so} offen sc1")
    a("s_waitcnt vmcnt(0)")
    for i in range(1, len(loads)):
        a(f"v_min_u32 v{vtmp}, v{vtmp}, v{vtmp+i}")
    a(f"""
    v_cmp_gt_u32 vcc, {expect}, v{vtmp}
    s_cbranch_vccz {L}_ok
    s_sleep {SLEEP}
    s_sub_u32 s{sSpin}, s{sSpin}, 1
    s_cbranch_scc0 {L}
    {L}_ok:
    """)


def poll_counter(a, vo, so, expect, mask, meanwhile=None):
    _lbl[0] += 1
    L = f"LF_pc{_lbl[0]}"
    rd = (f"v_mov_b32 v{vPS}, 0\nbuffer_atomic_add v{vPS}, v{vo}, {WSR()}, {so} offen sc0 sc1" if 'ldpoll' not in OPT else
          f"buffer_load_dword v{vPS}, v{vo}, {WSR()}, {so} offen sc1")
    a(f"s_mov_b32 s{sSpin}, {SPIN}\ns_mov_b64 exec, {mask}")
    if meanwhile:
        a(f"{rd}\ns_mov_b64 exec, -1")
        meanwhile()
        a(f"s_mov_b64 exec, {mask}\ns_branch {L}_w")
    a(f"""
    {L}:
    {rd}
    {L}_w:
    s_waitcnt vmcnt(0)
    v_cmp_gt_u32 vcc, {expect}, v{vPS}
    s_cbranch_vccz {L}_ok
    s_sleep {SLEEP}
    s_sub_u32 s{sSpin}, s{sSpin}, 1
    s_cbranch_scc0 {L}
    {L}_ok:
    s_mov_b64 exec, -1
    """)


def count_in(a, soff, vz, vd):
    a(f"""
    v_mov_b32 v{vz}, 0
    v_mov_b32 v{vd}, 1
    s_mov_b64 exec, 1
    buffer_atomic_add v{vd}, v{vz}, {WSR()}, s{soff} offen sc1
    s_mov_b64 exec, -1
    """)


gXF = 0
gWF = 160
gWA = [184, 185, 186, 187]
gXA = 188
gT = 189
gACC = 192


PUB_BAR = 12
LAST_BAR = 16
PAIR_Q = 155
NFIRST = 4
MAXISS = 3
PF_BAR = 3
ROT = 4


def stage_barriers():
    return list(range(0, 12)) + [LAST_BAR]


def gemm_schedule():
    items = [x for n in range(10) for x in (("X", n), ("W", n))] + [("W", n) for n in range(10, 20)]
    rel = lambda it: it[1] + (1 if it[0] == "X" else 2)
    free = list(range(10))
    slot, when, freed = {}, {}, set()
    k = 0
    for bar in range(-1, 12):
        for it in items:
            if it in slot and it not in freed and rel(it) <= bar:
                free.append(slot[it])
                freed.add(it)
        n = 0
        while k < len(items) and free and n < (NFIRST if bar == -1 else MAXISS) and bar != 10:
            slot[items[k]] = free.pop(0)
            when[items[k]] = bar
            k += 1
            n += 1
    assert k == len(items) and when[("W", LAST_BAR - 1)] <= 9 and when[("W", 17)] == 11
    order = [slot[("W", n)] for n in (15, 16, 17, 18, 19, 13, 14, 10, 11, 12)]
    assert sorted(order) == list(range(10)), order
    slot = {it: order.index(v) for it, v in slot.items()}
    return items, slot, when


LCNT0 = 2 * GSL


def lane_id(a, v):
    a(f"v_mbcnt_lo_u32_b32 v{v}, -1, 0\nv_mbcnt_hi_u32_b32 v{v}, -1, v{v}")


def drained(a):
    a(f"s_waitcnt vmcnt(0)\ns_mov_b64 exec, 1\nds_add_u32 v{gT+1}, v{gT+2}\ns_mov_b64 exec, -1\ns_mov_b32 s{sDone}, 1")


def gemm_body(a, vtype):
    L = "LG_v" if vtype else "LG_q"
    items, slot, when = gemm_schedule()

    def kc(q):
        return ((q & 3, (q >> 2) & 3) if q >= 144 else ((q >> 2) & 3, q & 3))

    def wreads(q):
        ks, c = kc(q)
        d = gWF + 4 * (q % 6)
        return [f"ds_read_b64_tr_b16 {vr(d + 2*u, 2)}, v{gWA[c]} offset:{ks*4096 + u*1024}" for u in range(2)]

    def xreads(n):
        for ks in range(4):
            d = gXF + 4 * (4 * n + ks)
            a(f"v_xor_b32 v{d}, {32 * ks}, v{gXA}")
        for ks in range(4):
            d = gXF + 4 * (4 * n + ks)
            a(f"ds_read_b128 {vr(d,4)}, v{d}")

    def advance(n):
        da = (slot[("W", n)] - slot[("W", n - 1)]) * GSL
        a(f"s_cmp_eq_u32 s{sPh}, 1\ns_mov_b32 s{sInc}, {da & 0xffffffff}")
        if n < 10:
            db = (slot[("W", n + 10)] - slot[("W", n + 9)]) * GSL
            a(f"s_cmov_b32 s{sInc}, {db & 0xffffffff}")
        for r in gWA:
            a(f"v_add_u32 v{r}, s{sInc}, v{r}")

    def pack(c):
        out = []
        A = gACC + 16 * c
        out += [f"v_cvt_pk_bf16_f32 v{gACC + 8*c + j}, v{A+2*j}, v{A+2*j+1}" for j in range(8)]
        return out

    def stores(c):
        out = []
        for i in range(2):
            d = vr(gACC + 8*c + 4*i, 4)
            if vtype:
                out.append(f"buffer_store_dwordx4 {d}, v{gT}, {WSR()}, s{sE + i} offen offset:{c * 512} sc1")
            else:
                out.append(f"buffer_store_dwordx4 {d}, v{gT}, {WSR()}, s{sE + (c >> 1)} offen offset:{(c & 1) * 2048 + i * 1024} sc1")
        return out

    a("s_barrier")
    a.c("this workgroup has cleared its share of the counters: count it in")
    a(f"""
    s_cmp_eq_u32 s{sW}, 4
    s_cbranch_scc0 {L}_nocount
    s_and_b32 s{sT0}, s2, 31
    s_lshl_b32 s{sT0}, s{sT0}, 2
    s_add_u32 s{sT0}, s{sT0}, 128
    v_mov_b32 v{gT+1}, 0
    v_mov_b32 v{gT+2}, 1
    s_mov_b64 exec, 1
    buffer_atomic_add v{gT+2}, v{gT+1}, s[{sDbg}:{sDbg+3}], s{sT0} offen sc1
    s_mov_b64 exec, -1
    {L}_nocount:
    v_mov_b32 v{gT+1}, {LCNT0}
    v_mov_b32 v{gT+2}, 1
    s_mov_b32 s{sDone}, 1
    """)
    stamp(a, 1)
    xreads(0)
    for q in range(6):
        for r in wreads(q):
            a(r)
    a(f"{L}_body:")
    for q in range(160):
        n = q >> 4
        ks, c = kc(q)
        if q <= 154:
            a(f"s_waitcnt lgkmcnt({2 * (min(q + 5, 159) - q)})")
        elif q == 155:
            a("s_waitcnt lgkmcnt(0)")
        x, w = vr(gXF + 4 * (4 * n + ks), 4), vr(gWF + 4 * (q % 6), 4)
        A, B = (x, w) if vtype else (w, x)
        d = vr(gACC + 16 * c, 16)
        a(f"v_mfma_f32_32x32x16_bf16 {d}, {A}, {B}, {'0' if q < 4 else d}")
        if (q & 15) == 10:
            if PUB_BAR <= n + 11 <= LAST_BAR:
                a.c("phase b: report once that this wave's stores have drained")
                if n + 11 < LAST_BAR:
                    a(f"s_getreg_b32 s{sT0}, hwreg(HW_REG_IB_STS, 0, 4)\ns_or_b32 s{sT0}, s{sT0}, s{sDone}")
                else:
                    a(f"s_cmp_lg_u32 s{sDone}, 0")
                a(f"s_cbranch_scc1 {L}_nd{n}")
                drained(a)
                a(f"{L}_nd{n}:")
            advance(n + 1)
            both = n + 11 in stage_barriers()
            if both:
                a("s_barrier")
            a(f"s_cbranch_scc1 {L}_nx{n}")
            if not both:
                a("s_barrier")
            if n + 1 < 10:
                dx = (slot[("X", n + 1)] - slot[("X", n)]) * GSL
                a(f"v_add_u32 v{gXA}, {dx & 0xffffffff}, v{gXA}")
                xreads(n + 1)
            a(f"{L}_nx{n}:")
        if q + 6 < 160:
            for r in wreads(q + 6):
                a(r)
        if q == 144:
            a("s_setprio 2")
        if q == PAIR_Q:
            a(f"s_cbranch_scc0 {L}_np\ns_barrier\n{L}_np:")
        if q in (150, 154):
            for x in pack((q - 150) // 4):
                a(x)
        if q in (151, 155):
            for x in stores((q - 151) // 4):
                a(x)
        if q == 156:
            a("s_nop 7")
        if q == 158:
            for x in pack(2):
                a(x)
    for x in stores(2):
        a(x)
    a(f"s_cbranch_scc1 {L}_nopre")
    for q in range(6):
        for r in wreads(q):
            a(r)
    a(f"{L}_nopre:\ns_nop 9")
    for x in pack(3) + stores(3):
        a(x)
    a(f"s_cbranch_scc1 LG_done")
    stamp(a, 2)
    next_units(a)
    step = 6 * 1024 if vtype else 5 * 4096
    a(f"s_add_u32 s{sE}, s{sE}, {step}\ns_add_u32 s{sE+1}, s{sE+1}, {step}\ns_mov_b32 s{sDone}, 0")
    if vtype:
        a(f"s_cmp_eq_u32 s{sTI}, 7\ns_cbranch_scc1 LG_idle")
    a(f"s_branch {L}_body")


def next_units(a):
    a(f"""
    s_mov_b32 s{sPh}, 1
    s_cmp_ge_u32 s{sTI}, 5
    s_cselect_b32 s{sT0}, 6, 5
    s_add_u32 s{sU0}, s{sU0}, s{sT0}
    s_add_u32 s{sU1}, s{sU1}, s{sT0}
    """)


def publish_sub(a):
    t = vPS
    a(f"""
    LG_publish:
    v_cmp_lt_u32 vcc, 31, v0
    v_mov_b32 v{t+3}, s{sU0}
    v_mov_b32 v{t+4}, s{sU1}
    v_cndmask_b32 v{t+3}, v{t+3}, v{t+4}, vcc
    v_mul_u32_u24 v{t+4}, 205, v{t+3}
    v_lshrrev_b32 v{t+4}, 11, v{t+4}
    v_mul_u32_u24 v{t+5}, 10, v{t+4}
    v_sub_u32 v{t+3}, v{t+3}, v{t+5}
    v_lshlrev_b32 v{t+3}, 3, v{t+3}
    v_and_b32 v{t+5}, 31, v0
    v_lshl_add_u32 v{t+4}, v{t+5}, 2, v{t+4}
    v_lshlrev_b32 v{t+4}, 7, v{t+4}
    v_mul_u32_u24 v{t+5}, 5, v{t+5}
    v_lshrrev_b32 v{t+5}, 1, v{t+5}
    v_add_u32 v{t+5}, 2, v{t+5}
    v_sub_u32 v{t+5}, v{t+5}, v{t+3}
    v_cmp_gt_u32 vcc, 10, v{t+5}
    v_mov_b32 v{t+1}, 1
    s_lshl_b32 s{sT1}, s{sBr}, 14
    s_add_u32 s{sT1}, s{sT1}, {WS_C1}
    s_mov_b64 exec, vcc
    buffer_atomic_add v{t+1}, v{t+4}, {WSR()}, s{sT1} offen sc1
    s_mov_b64 exec, -1
    s_setpc_b64 s[{sLnk}:{sLnk+1}]
    """)


def gemm_compute(a):
    items, slot, when = gemm_schedule()
    t0, t1, t2 = 8, 9, 10
    a(f"""
    v_and_b32 v{t0}, 31, v0
    v_lshrrev_b32 v{t1}, 5, v0
    v_lshrrev_b32 v{t2}, 1, v{t0}
    v_and_b32 v{t2}, 7, v{t2}
    v_xor_b32 v{t2}, v{t2}, v{t1}
    v_lshlrev_b32 v{t2}, 4, v{t2}
    v_lshlrev_b32 v{t0}, 7, v{t0}
    v_add_u32 v{t2}, v{t2}, v{t0}
    s_lshl_b32 s{sT0}, s{sJ}, 12
    s_add_u32 s{sT0}, s{sT0}, {slot[("X", 0)] * GSL}
    v_add_u32 v{gXA}, s{sT0}, v{t2}
    v_lshrrev_b32 v{t0}, 2, v0
    v_and_b32 v{t0}, 3, v{t0}
    v_lshlrev_b32 v{t2}, 3, v{t1}
    v_add_u32 v{t2}, v{t2}, v{t0}
    v_lshlrev_b32 v{t2}, 8, v{t2}
    v_lshlrev_b32 v{t0}, 6, v{t0}
    v_add_u32 v{t2}, v{t2}, v{t0}
    v_and_b32 v{t0}, 16, v0
    v_lshlrev_b32 v{t0}, 1, v{t0}
    v_add_u32 v{t2}, v{t2}, v{t0}
    v_add_u32 v{t2}, {slot[("W", 0)] * GSL}, v{t2}
    v_and_b32 v{t0}, 1, v0
    v_and_b32 v{t1}, 2, v0
    s_cmp_ge_u32 s{sTI}, 5
    s_cselect_b32 s{sT0}, 3, 4
    s_cselect_b32 s{sT1}, 3, 2
    v_lshlrev_b32 v{t0}, s{sT0}, v{t0}
    v_lshlrev_b32 v{t1}, s{sT1}, v{t1}
    v_add3_u32 v{gWA[0]}, v{t2}, v{t0}, v{t1}
    v_xor_b32 v{gWA[1]}, 64, v{gWA[0]}
    v_xor_b32 v{gWA[2]}, 128, v{gWA[0]}
    v_xor_b32 v{gWA[3]}, 192, v{gWA[0]}
    s_lshl_b32 s{sT0}, s{sTB}, 2
    s_add_u32 s{sT0}, s{sT0}, s{sJ}
    s_mul_i32 s{sT0}, s{sT0}, {TILE}
    s_add_u32 s{sT0}, s{sT0}, s{sImg}
    v_lshlrev_b32 v{gT}, 4, v0
    s_waitcnt vmcnt(0)
    s_cmp_ge_u32 s{sTI}, 5
    s_cbranch_scc1 LG_vtype
    s_lshl_b32 s{sE}, s{sU0}, 12
    s_lshl_b32 s{sE+1}, s{sU1}, 12
    s_cmp_ge_u32 s{sU0}, 10
    s_cselect_b32 s{sT3}, {IMG - 40960}, 0
    s_add_u32 s{sE}, s{sE}, s{sT3}
    s_cmp_ge_u32 s{sU1}, 10
    s_cselect_b32 s{sT3}, {IMG - 40960}, 0
    s_add_u32 s{sE+1}, s{sE+1}, s{sT3}
    s_add_u32 s{sE}, s{sE}, s{sT0}
    s_add_u32 s{sE+1}, s{sE+1}, s{sT0}
    """)
    gemm_body(a, False)
    a(f"""
    LG_vtype:
    s_lshl_b32 s{sE}, s{sU0}, 10
    s_add_u32 s{sE}, s{sE}, {2 * IMG - 20480}
    s_add_u32 s{sE}, s{sE}, s{sT0}
    s_add_u32 s{sE+1}, s{sE}, 20480
    v_lshrrev_b32 v8, 5, v0
    v_mul_u32_u24 v8, 10240 - 512, v8
    v_add_u32 v{gT}, v{gT}, v8
    """)
    gemm_body(a, True)


def gemm_loader(a):
    items, slot, when = gemm_schedule()
    vE, vO, vWs, vCnt = 230, 231, 232, 233
    sKX, sKW = sKB, sSlot
    a(f"""
    v_lshrrev_b32 v5, 3, v0
    v_mul_u32_u24 v5, 1280, v5
    v_and_b32 v6, 7, v0
    v_lshrrev_b32 v7, 4, v0
    v_xor_b32 v6, v6, v7
    v_lshlrev_b32 v6, 4, v6
    v_add_u32 v{vE}, v5, v6
    v_xor_b32 v6, 64, v6
    v_add_u32 v{vO}, v5, v6
    v_add_u32 v{vO}, {8 * 1280 - 1024}, v{vO}
    v_lshrrev_b32 v5, 2, v0
    v_and_b32 v5, 3, v5
    v_xor_b32 v5, v5, v7
    v_lshrrev_b32 v6, 1, v5
    s_sub_u32 s{sT0}, s{sU1}, s{sU0}
    s_lshl_b32 s{sT0}, s{sT0}, 7
    v_mul_u32_u24 v6, s{sT0}, v6
    v_and_b32 v5, 1, v5
    v_lshl_add_u32 v5, v5, 6, v6
    v_and_b32 v6, 3, v0
    v_lshl_add_u32 v5, v6, 4, v5
    v_mul_u32_u24 v6, 3840, v7
    v_add_u32 v{vWs}, v5, v6
    s_lshl_b32 s{sXo}, s{sTB}, 2
    s_add_u32 s{sXo}, s{sXo}, s{sJ}
    s_mul_i32 s{sXo}, s{sXo}, {32 * 1280}
    s_mul_i32 s{sWo}, s{sJ}, {16 * 3840}
    s_lshl_b32 s{sT0}, s{sU0}, 7
    s_add_u32 s{sWo}, s{sWo}, s{sT0}
    s_lshl_b32 s{sInc}, s{sJ}, 12
    """)
    a.c("workgroups that share a tile start at different k-blocks, so that they fill the L2 together")
    if ROT == 2:
        a(f"s_xor_b32 s{sKX}, s{sTB}, s{sTI}\ns_and_b32 s{sKX}, s{sKX}, 1\ns_mul_i32 s{sKX}, s{sKX}, 5")
    elif ROT == 3:
        a(f"""
        s_and_b32 s{sKX}, s{sTB}, 3
        s_add_u32 s{sKX}, s{sKX}, s{sTI}
        s_mul_i32 s{sT0}, s{sKX}, 43
        s_lshr_b32 s{sT0}, s{sT0}, 7
        s_mul_i32 s{sT0}, s{sT0}, 3
        s_sub_u32 s{sKX}, s{sKX}, s{sT0}
        s_mul_i32 s{sKX}, s{sKX}, 7
        s_lshr_b32 s{sKX}, s{sKX}, 1
        """)
    elif ROT == 4:
        a(f"""
        s_add_u32 s{sKX}, s{sTB}, s{sTI}
        s_and_b32 s{sKX}, s{sKX}, 3
        s_mul_i32 s{sKX}, s{sKX}, 5
        s_add_u32 s{sKX}, s{sKX}, 1
        s_lshr_b32 s{sKX}, s{sKX}, 1
        """)
    elif ROT:
        a(f"""
        s_and_b32 s{sKX}, s{sTB}, 3
        s_mul_i32 s{sKX}, s{sKX}, 5
        s_add_u32 s{sKX}, s{sKX}, 1
        s_lshr_b32 s{sKX}, s{sKX}, 1
        s_add_u32 s{sKX}, s{sKX}, s{sTI}
        s_cmp_ge_u32 s{sKX}, 10
        s_cselect_b32 s{sT0}, 10, 0
        s_sub_u32 s{sKX}, s{sKX}, s{sT0}
        """)
    else:
        a(f"s_and_b32 s{sKX}, s{sTI}, 1")
    a(f"s_mov_b32 s{sKW}, s{sKX}\ns_mov_b32 s{sIt}, 0")
    a(f"""
    s_mov_b32 s{sX+2}, {S * D * 2}
    s_mov_b32 s{sX+3}, 0x00020000
    s_mov_b32 s{sWt+2}, {D * 3 * D * 2}
    s_mov_b32 s{sWt+3}, 0x00020000
    s_waitcnt lgkmcnt(0)
    s_and_b32 s{sX+1}, s{sX+1}, 0xffff
    s_mov_b32 s{sWt}, s{sPtr}
    s_and_b32 s{sWt+1}, s{sPtr+1}, 0xffff
    s_branch LL_go
    """)
    a(f"""
    LL_X:
    s_lshl_b32 s{sT0}, s{sKX}, 7
    s_add_u32 s{sT0}, s{sT0}, s{sXo}
    s_add_u32 s{sKX}, s{sKX}, 1
    buffer_load_dwordx4 v{vE}, s[{sX}:{sX+3}], s{sT0} offen lds
    buffer_load_dwordx4 v{vO}, s[{sX}:{sX+3}], s{sT0} offen offset:1024 lds
    s_add_u32 m0, m0, 2048
    s_add_u32 s{sT0}, s{sT0}, {16 * 1280}
    buffer_load_dwordx4 v{vE}, s[{sX}:{sX+3}], s{sT0} offen lds
    buffer_load_dwordx4 v{vO}, s[{sX}:{sX+3}], s{sT0} offen offset:1024 lds
    s_cmp_eq_u32 s{sKX}, 10
    s_cselect_b32 s{sKX}, 0, s{sKX}
    s_setpc_b64 s[{sLnk}:{sLnk+1}]
    LL_Wskip:
    s_waitcnt vmcnt(0)
    s_setpc_b64 s[{sLnk}:{sLnk+1}]
    LL_W:
    s_cmp_eq_u32 s{sIt}, 1
    s_cbranch_scc1 LL_Wskip
    s_mul_i32 s{sT1}, s{sKW}, {64 * 3840}
    s_add_u32 s{sT1}, s{sT1}, s{sWo}
    s_add_u32 s{sKW}, s{sKW}, 1
    """)
    for p in range(4):
        a(f"buffer_load_dwordx4 v{vWs}, s[{sWt}:{sWt+3}], s{sT1} offen lds")
        if p < 3:
            a(f"s_add_u32 m0, m0, 1024")
            a(f"s_add_u32 s{sT1}, s{sT1}, {4 * 3840}")
    a(f"""
    s_cmp_eq_u32 s{sKW}, 10
    s_cselect_b32 s{sKW}, 0, s{sKW}
    s_setpc_b64 s[{sLnk}:{sLnk+1}]
    """)
    a("LL_go:")
    q = []

    def issue(it):
        if it == ("W", 10):
            a(f"s_cmp_ge_u32 s{sTI}, 5\ns_cselect_b32 s{sT0}, {6 * 128}, s{sC640}\ns_add_u32 s{sWo}, s{sWo}, s{sT0}")
            a(f"s_cmp_eq_u32 s{sTI}, 7\ns_cselect_b32 s{sIt}, 1, 0")
        a(f"s_add_u32 m0, s{sInc}, {slot[it] * GSL}\ns_call_b64 s[{sLnk}:{sLnk+1}], LL_{it[0]}")
        q.extend([it] * 4)

    def wait_for(names):
        last = max(i for i, x in enumerate(q) if x in names)
        a(f"s_waitcnt vmcnt({min(63, len(q) - 1 - last)})")

    sC640 = sT4
    first = [it for it in items if when[it] == -1]
    for it in first:
        issue(it)
    common_setup(a)
    attn_scalars(a)
    attn_vectors(a)
    repack_setup(a)
    vPf = 234
    a(f"""
    v_mov_b32 v{vCnt}, 0
    s_mul_i32 s{sT1}, s{sJ}, 19
    v_add_u32 v8, s{sT1}, v0
    v_min_u32 v8, 74, v8
    v_mul_u32_u24 v9, 205, v8
    v_lshrrev_b32 v9, 10, v9
    v_mul_u32_u24 v9, 5, v9
    v_add3_u32 v9, v9, v8, 5
    v_lshlrev_b32 v{vPf}, 7, v9
    """)
    bars = stage_barriers()
    for bi, bar in enumerate(bars):
        upto = bars[bi + 1] - 1 if bi + 1 < len(bars) else 19
        wait_for([("X", bar), ("W", upto)] + (["cnt"] if bar == 11 else []))
        if bar == 11:
            a.c("all counters must have been cleared before the first one is used")
            a(f"v_cmp_gt_u32 vcc, 8, v{vCnt}\ns_cbranch_vccz LL_cnt_ok")
            poll(a, [(vP + 5, f"s[{sDbg}:{sDbg+3}]", "0")], 8, vPS)
            a("LL_cnt_ok:")
        a("s_barrier")
        stamp(a, 8 + min(bar, 15))
        if bar == 11:
            a.c("wave 0 publishes the phase-a tile once its four storing waves have reported")
            a(f"""
            s_cmp_lg_u32 s{sJ}, 0
            s_cbranch_scc1 LL_pub
            s_mov_b32 s{sSpin}, {SPIN * 8}
            LL_try:
            ds_read_b32 v{vP}, v{vP+2}
            s_waitcnt lgkmcnt(0)
            v_readfirstlane_b32 s{sT0}, v{vP}
            s_cmp_eq_u32 s{sT0}, 4
            s_cbranch_scc1 LL_try_go
            s_sub_u32 s{sSpin}, s{sSpin}, 1
            s_cbranch_scc0 LL_try
            LL_try_go:
            s_call_b64 s[{sLnk}:{sLnk+1}], LG_publish
            """)
            stamp(a, 27)
            a("LL_pub:")
        a(f"s_mov_b32 s{sC640}, 640")
        for it in items:
            if when[it] == bar:
                issue(it)
        if bar == 11:
            lead_prepare(a)
        if bar == 10:
            a(f"v_mov_b32 v{vP}, 0\nv_mov_b32 v{vP+2}, {LCNT0}\nds_write_b32 v{vP+2}, v{vP}\ns_waitcnt lgkmcnt(0)")
        if bar == PF_BAR:
            a.c("one load per 128-B line of the phase-b columns of five weight rows brings them on chip ahead of use")
            a(f"""
            s_lshr_b32 s{sT0}, s2, 3
            s_lshl_b32 s{sT0}, s{sT0}, 2
            s_and_b32 s{sT1}, s2, 3
            s_add_u32 s{sT0}, s{sT0}, s{sT1}
            s_mul_i32 s{sT0}, s{sT0}, {5 * 3840}
            s_mov_b64 exec, 0x7ffff
            buffer_load_dword v{vPS}, v{vPf}, s[{sWt}:{sWt+3}], s{sT0} offen
            s_mov_b64 exec, -1
            """)
            q.append("pf")
        if bar == 8:
            a(f"buffer_load_dword v{vCnt}, v{vP+5}, s[{sDbg}:{sDbg+3}], 0 offen sc1")
            q.append("cnt")
    a("s_branch LA_lead")


vKA, vVA, vT0, vT1 = 1, 2, 3, 14
Qm = [4, 8]
Qe = 12
vL16 = 15
Km = [16, 20]
Ke = 24
Vb = [[28, 32], [36, 40]]
vVbase, vVflag, vE16, vVG = 44, 45, 46, 47
NM = 48
SB = [80, 112]
OA = [144, 160]
vD = 176
vP = 182
vPS = 188
vVB2 = 248
NVGPR = 256


def mfma32(d, a_, b, c):
    return f"v_mfma_f32_32x32x16_bf16 {vr(d,16)}, {vr(a_,4)}, {vr(b,4)}, {c}"


def mfma2b(d, ke_tile, c):
    return (f"v_mfma_f32_32x32x4_2b_bf16 {vr(d,32)}, {vr(Ke + 2 * (ke_tile >> 1), 2)}, {vr(Qe,2)}, {c}"
            f" cbsz:1 abid:{ke_tile & 1}")


def valu_stream(X, Y):
    def e(base, i): return f"v_exp_f32 v{base+i}, v{base+i}"
    def c(j):
        dst = X + 8 * (j // 4) + (j % 4)
        if 'cvt' in OPT:
            return f"v_cvt_pk_bf16_f32 v{dst}, v{X+2*j}, v{X+2*j+1}"
        return f"v_pack_b32_f16 v{dst}, v{X+2*j}, v{X+2*j+1} op_sel:[1,1,0]"
    out = [e(X, 1)]
    for j in range(16):
        out.append(e(X, 2 * j + 2) if j < 15 else e(Y, 0))
        out.append(c(j))
        if j < 15:
            out.append(e(X, 2 * j + 3))
    return out


def tile_iter(a, ii, half=1):
    par = ii & 1
    X, Y = SB[par], SB[par ^ 1]
    Vc, Vn = Vb[par], Vb[par ^ 1]
    Kc, Kn = Km[par ^ 1], Km[par]
    v = valu_stream(X, Y)
    t1 = (ii + 1) % 4
    t2 = (ii + 2) % 4
    kch = CH if (half == 0) == (ii >= 2) else 0
    ins = {}
    ins[2] = [mfma32(OA[1], Vn[1], Y + 24, vr(OA[1], 16)),
              f"ds_read_b128 {vr(Vn[0],4)}, v{vVA} offset:{t1 * 1280}"]
    ins[7] = [mfma2b(Y, t1, 0 if 'c0' in OPT else vr(NM, 32))]
    ins[17] = [mfma32(OA[0], Vc[0], X, vr(OA[0], 16)),
               f"ds_read_b128 {vr(Vn[1],4)}, v{vVA} offset:{t1 * 1280 + 640}"]
    ins[23] = [mfma32(Y, Kc, Qm[0], vr(Y, 16)),
               f"ds_read_b128 {vr(Kn,4)}, v{vKA} offset:{kch + 2048 + t2 * 1024}"]
    ins[29] = [mfma32(OA[0], Vc[1], X + 8, vr(OA[0], 16))]
    ins[35] = [mfma32(Y + 16, Kc, Qm[1], vr(Y + 16, 16))]
    ins[41] = [mfma32(OA[1], Vc[0], X + 16, vr(OA[1], 16)),
               "s_waitcnt lgkmcnt(0)"]
    if ii == 0:
        ins[29].append(f"s_add_u32 s{sNext}, s{sNext}, {CH}")
    if ii == 2:
        ins[29].append(f"ds_read2st64_b64 {vr(Ke,4)}, v{vKA} offset0:{kch // 512} offset1:{kch // 512 + 2}")
        ins[44] = [f"v_mad_u32_u24 v{vVA}, v{vVflag}, s{sNext}, v{vVbase}"]
    if half == 0:
        if ii == 1:
            ins[29].append(f"s_cmp_eq_u32 s{sM}, s{sRp}")
            ins[35] += ["s_cbranch_scc1 LR_step", "LA_bar:"]
        if ii == 2 and 'noprio' not in OPT:
            ins[35].append("s_setprio 0")
        if ii == 3:
            ins[29].append(f"s_bitcmp1_b32 s{sMend}, s{sM}")
            ins[35] += ["s_waitcnt vmcnt(0)", "s_barrier"]
            if common.STAMP and 'cyc' in OPT:
                ins[35] += ["s_memtime s[4:5]", f"s_mov_b32 m0, s{sM}", "s_waitcnt lgkmcnt(0)", f"s_movreld_b32 s{STAMP_S+8}, s4"]
            if 'noprio' not in OPT:
                ins[35].append("s_setprio 1")
            ins[35] += ["s_cbranch_scc1 LA_refill", "LA_back:"]
    else:
        if ii == 0:
            ins[35].append(f"s_cmp_eq_u32 s{sNext}, s{sRe}")
        if ii == 1:
            ins[29].append(f"s_cselect_b32 s{sNext}, s{sRb}, s{sNext}")
            ins[35].append(f"s_add_u32 s{sM}, s{sM}, 1")
            ins[44] = [f"v_add_u32 v{vKA}, s{sNext}, v{vL16}"]
        if ii == 3:
            ins[35].append(f"s_sub_u32 s{sRem}, s{sRem}, 1")
    for p, op in enumerate(v):
        for x in ins.get(p, []):
            a(x)
        a(op)


def rowmax(a, X, out0, out1):
    for base, o in ((X, out0), (X + 16, out1)):
        a(f"v_max3_f32 v{o}, v{base}, v{base+1}, v{base+2}")
        for r in range(3, 15, 2):
            a(f"v_max3_f32 v{o}, v{o}, v{base+r}, v{base+r+1}")
        a(f"v_max_f32 v{o}, v{o}, v{base+15}")


def cross_half_max(a, r, tmp):
    a(f"v_mov_b32 v{tmp}, v{r}\ns_nop 1\nv_permlane32_swap_b32 v{tmp}, v{r}\ns_nop 1\nv_max_f32 v{r}, v{r}, v{tmp}")


def fill_nm(a, m0, m1):
    for r in range(16):
        a(f"v_sub_f32 v{NM+r}, 0, v{m0}")
    for r in range(16):
        a(f"v_sub_f32 v{NM+16+r}, 0, v{m1}")


def attn_scalars(a):
    a.c("head offsets: main octs start at (5g+1)>>1; the ext quad shares an oct with the neighbouring head;")
    a.c("arrivals expected per kind: 16 token blocks x number of 64-column units that hold the head")
    a(f"""
    s_mul_i32 s{sOm}, s{sHead}, 5
    s_add_u32 s{sOm}, s{sOm}, 1
    s_lshr_b32 s{sOm}, s{sOm}, 1
    s_lshl_b32 s{sOm}, s{sOm}, 9
    s_and_b32 s{sT0}, s{sHead}, 1
    s_mov_b32 s{sT1}, 1024
    s_cselect_b32 s{sT1}, {(-512 + 8) & 0xffffffff}, s{sT1}
    s_add_u32 s{sExt}, s{sOm}, s{sT1}
    s_min_u32 s{sT0}, s{sOm}, s{sExt}
    s_add_u32 s{sT2}, s{sOm}, 512
    s_max_u32 s{sT1}, s{sExt}, s{sT2}
    s_lshr_b32 s{sT0}, s{sT0}, 12
    s_lshr_b32 s{sT1}, s{sT1}, 12
    s_cmp_eq_u32 s{sT0}, s{sT1}
    s_cselect_b32 s{sExp}, 16, 32
    """)


def attn_vectors(a):
    a(f"""
    s_and_b32 s{sT0}, s{sHead}, 1
    v_lshlrev_b32 v{vL16}, 4, v0
    v_lshrrev_b32 v{vT0}, 5, v0
    v_mul_u32_u24 v{vT1}, {TILE}, v{vT0}
    v_and_b32 v{vP}, 31, v0
    v_lshl_add_u32 v{vE16}, v{vP}, 4, v{vT1}
    """)
    a.c("V rows: 0..15 main dims, 16..19 ext dims, 20 and 24 ones, the others zero (address past the allocation)")
    a(f"""
    s_lshl_b32 s{sT0}, s{sT0}, 2
    v_and_b32 v{vP+1}, 3, v0
    v_and_b32 v{vP+2}, 4, v0
    v_lshl_add_u32 v{vP+1}, v{vP+2}, 1, v{vP+1}
    v_and_b32 v{vP+2}, 8, v0
    v_lshrrev_b32 v{vP+2}, 1, v{vP+2}
    v_add3_u32 v{vP+1}, v{vP+1}, v{vP+2}, s{sT0}
    s_lshl_b32 s{sT0}, s{sT0}, 2
    v_subrev_u32 v{vP+2}, s{sT0}, v{vP}
    v_cmp_gt_u32 vcc, 16, v{vP}
    v_mul_u32_u24 v{vT1}, 10240, v{vT0}
    v_mul_u32_u24 v{vT0}, 320, v{vT0}
    v_cndmask_b32 v{vP+1}, v{vP+2}, v{vP+1}, vcc
    v_lshlrev_b32 v{vP+1}, 4, v{vP+1}
    v_add_u32 v{vVG}, v{vP+1}, v{vT1}
    v_add_u32 v{vVbase}, v{vP+1}, v{vT0}
    v_add_u32 v{vVbase}, 6144, v{vVbase}
    v_cmp_gt_u32 vcc, 20, v{vP}
    v_mov_b32 v{vP+1}, 0x100000
    v_mov_b32 v{vP+2}, {ONES[0]}
    v_cndmask_b32 v{vVflag}, 0, 1, vcc
    v_cndmask_b32 v{vVbase}, v{vP+1}, v{vVbase}, vcc
    v_cmp_eq_u32 vcc, 20, v{vP}
    v_cmp_eq_u32 s[{sT3}:{sT4}], 24, v{vP}
    s_or_b64 vcc, vcc, s[{sT3}:{sT4}]
    v_mov_b32 v{vP+1}, {ONES[1]}
    s_nop 0
    v_cndmask_b32 v{vVB2}, v{vVbase}, v{vP+1}, vcc
    v_cndmask_b32 v{vVbase}, v{vVbase}, v{vP+2}, vcc
    """)
    a.c("DMA source offsets: even waves load K pieces, odd waves V pieces")
    a(f"""
    s_and_b32 s{sT0}, s{sJ}, 1
    s_cbranch_scc1 LA_dv
    v_add_u32 v{vD}, s{sExt}, v{vE16}
    v_add_u32 v{vD+1}, {2 * TILE}, v{vD}
    v_add_u32 v{vD+2}, s{sOm}, v{vL16}
    v_add_u32 v{vD+3}, {TILE}, v{vD+2}
    v_add_u32 v{vD+4}, {TILE}, v{vD+3}
    v_add_u32 v{vD+5}, {TILE}, v{vD+4}
    s_branch LA_dd
    LA_dv:
    s_mul_i32 s{sT0}, s{sHead}, 320
    s_add_u32 s{sT0}, s{sT0}, {IMG}
    """)
    for p in range(5):
        a(f"""
        v_add_u32 v{vP}, {64 * p}, v0
        v_mul_u32_u24 v{vP+1}, 3277, v{vP}
        v_lshrrev_b32 v{vP+1}, 16, v{vP+1}
        v_mul_u32_u24 v{vP+2}, 20, v{vP+1}
        v_sub_u32 v{vP+2}, v{vP}, v{vP+2}
        v_mul_u32_u24 v{vP+1}, 10240, v{vP+1}
        v_lshl_add_u32 v{vP+1}, v{vP+2}, 4, v{vP+1}
        v_add_u32 v{vD+p}, s{sT0}, v{vP+1}
        """)
    a(f"""
    v_mov_b32 v{vD+5}, v{vD+4}
    LA_dd:
    v_lshlrev_b32 v{vP+3}, 7, v0
    v_mov_b32 v{vP+4}, 0
    v_lshlrev_b32 v{vP+5}, 2, v0
    v_or_b32 v{vP+5}, 128, v{vP+5}
    """)


def vectors_put(a):
    a(f"""
    s_and_b32 s{sT0}, s{sJ}, 1
    s_lshl_b32 s{sT0}, s{sT0}, 12
    s_add_u32 s{sT0}, s{sT0}, {XFER}
    v_add_u32 v{vT0}, s{sT0}, v{vL16}
    v_mov_b32 v20, v{vVB2}
    v_mov_b32 v21, v{vVflag}
    v_mov_b32 v22, v{vE16}
    v_mov_b32 v23, v{vVG}
    ds_write_b128 v{vT0}, v[20:23]
    ds_write_b128 v{vT0}, {vr(vD,4)} offset:1024
    ds_write_b64 v{vT0}, {vr(vD+4,2)} offset:2048
    """)


def vectors_get(a):
    lane_id(a, 0)
    a(f"""
    s_and_b32 s{sT0}, s{sJ}, 1
    s_lshl_b32 s{sT0}, s{sT0}, 12
    s_add_u32 s{sT0}, s{sT0}, {XFER}
    v_lshlrev_b32 v{vL16}, 4, v0
    v_add_u32 v{vT0}, s{sT0}, v{vL16}
    ds_read_b128 {vr(vVbase,4)}, v{vT0}
    ds_read_b128 {vr(vD,4)}, v{vT0} offset:1024
    ds_read_b64 {vr(vD+4,2)}, v{vT0} offset:2048
    v_lshlrev_b32 v{vP+3}, 7, v0
    """)
    attn_scalars(a)
    a("s_waitcnt lgkmcnt(0)")


def dma_sub(a):
    a(f"""
    LA_dma:
    s_add_u32 s{sT2}, s{sT1}, s{sQB}
    s_and_b32 s{sT2}, s{sT2}, 7
    s_lshl_b32 s{sT2}, s{sT2}, 1
    s_lshr_b32 s{sT3}, s{sJ}, 1
    s_add_u32 s{sT2}, s{sT2}, s{sT3}
    s_mul_i32 s{sT2}, s{sT2}, {4 * TILE}
    s_lshl_b32 s{sT4}, s{sJ}, 1
    s_and_b32 s{sT4}, s{sT4}, 2
    s_lshr_b32 s{sT4}, 20480, s{sT4}
    s_mul_i32 s{sT4}, s{sT4}, s{sT0}
    s_add_u32 s{sT2}, s{sT2}, s{sT4}
    s_add_u32 s{sT2}, s{sT2}, s{sImg}
    s_add_u32 s{sT2}, s{sT2}, {IMG}
    s_sub_u32 s{sT1}, s{sT1}, s{sT0}
    s_add_u32 s{sT1}, s{sT1}, 1
    s_mul_i32 s{sT4}, s{sT1}, 43
    s_lshr_b32 s{sT4}, s{sT4}, 7
    s_mul_i32 s{sT4}, s{sT4}, 3
    s_sub_u32 s{sT1}, s{sT1}, s{sT4}
    s_lshl_b32 s{sT1}, s{sT1}, 1
    s_add_u32 s{sT1}, s{sT1}, s{sT3}
    s_mul_i32 s{sT1}, s{sT1}, {CH}
    s_mul_i32 s{sT4}, s{sT0}, {RA - RB}
    s_sub_u32 s{sT1}, s{sT1}, s{sT4}
    s_add_u32 s{sT1}, s{sT1}, {RA}
    s_and_b32 s{sT3}, s{sJ}, 1
    s_mul_i32 s{sT4}, s{sT3}, 6144
    s_add_u32 m0, s{sT1}, s{sT4}
    s_nop 0
    """)
    for p in range(5):
        a(f"buffer_load_dwordx4 v{vD+p}, {WSR()}, s{sT2} offen sc1 lds")
        a("s_add_u32 m0, m0, 1024")
        a("s_nop 0" if p < 4 else f"s_cmp_eq_u32 s{sT3}, 1")
    a(f"""
    s_cbranch_scc1 LA_dma_ret
    buffer_load_dwordx4 v{vD+5}, {WSR()}, s{sT2} offen sc1 lds
    LA_dma_ret:
    s_setpc_b64 s[{sLnk}:{sLnk+1}]
    """)


def call_dma(a, b, blk):
    a(f"s_mov_b32 s{sT0}, {b}\ns_mov_b32 s{sT1}, {blk}\ns_call_b64 s[{sLnk}:{sLnk+1}], LA_dma")


def poll_f1(a):
    a(f"""
    s_lshl_b32 s{sT0}, s{sBr}, 5
    s_add_u32 s{sT0}, s{sT0}, s{sHead}
    s_lshl_b32 s{sT0}, s{sT0}, 9
    s_add_u32 s{sT0}, s{sT0}, {WS_C1}
    """)
    poll_counter(a, vP + 3, f"s{sT0}", f"s{sExp}", 7)


def load_q(a):
    a(f"""
    s_lshl_b32 s{sT0}, s{sQB}, 2
    s_add_u32 s{sT0}, s{sT0}, s{sJ}
    s_mul_i32 s{sT0}, s{sT0}, {2 * TILE}
    s_add_u32 s{sT0}, s{sT0}, s{sImg}
    s_add_u32 s{sT1}, s{sT0}, s{sOm}
    s_add_u32 s{sT2}, s{sT1}, {TILE}
    s_add_u32 s{sT0}, s{sT0}, s{sExt}
    buffer_load_dwordx4 {vr(Qm[0],4)}, v{vL16}, {WSR()}, s{sT1} offen sc1
    buffer_load_dwordx4 {vr(Qm[1],4)}, v{vL16}, {WSR()}, s{sT2} offen sc1
    buffer_load_dwordx2 {vr(Qe,2)}, v{vE16}, {WSR()}, s{sT0} offen sc1
    """)


def scale_q(a, nyounger):
    a(f"s_mov_b32 s4, {hex(f32bits(QSCALE))}\ns_mov_b32 s5, s4\ns_waitcnt vmcnt({nyounger})")
    for r in range(Qm[0], Qe + 2):
        a(f"""
        v_lshlrev_b32 v{vPS+2}, 16, v{r}
        v_and_b32 v{vPS+3}, 0xffff0000, v{r}
        v_pk_mul_f32 {vr(vPS+2,2)}, {vr(vPS+2,2)}, s[4:5]
        v_cvt_pk_bf16_f32 v{r}, v{vPS+2}, v{vPS+3}
        """)


def attn_zero(a):
    Z = Vb[1][1]
    for r in (Z, Z + 2, SB[1] + 24, SB[1] + 26):
        a(f"v_pk_mov_b32 {vr(r,2)}, 0, 0")
    a(f"v_mov_b32 v{vP}, 0xbf800000\nv_mov_b32 v{vP+1}, 0\nv_mov_b32 v{vPS+1}, 0")
    a(f"v_mfma_f32_32x32x4_2b_bf16 {vr(OA[0],32)}, {vr(Z,2)}, {vr(Z,2)}, 0")
    a(f"""
    s_add_u32 s{sRe}, s{sRb}, {RING}
    s_mov_b32 s{sRem}, 7
    v_add_u32 v{vKA}, s{sNext}, v{vL16}
    v_mad_u32_u24 v{vVA}, v{vVflag}, s{sNext}, v{vVbase}
    """)


def attention(a):
    X = SB[0]
    a("LA_start:")
    stamp_cyc(a, 24)
    a(f"""
    ds_read_b128 {vr(Km[0],4)}, v{vKA} offset:2048
    ds_read2st64_b64 {vr(Ke,4)}, v{vKA} offset0:0 offset1:2
    ds_read_b128 {vr(Km[1],4)}, v{vKA} offset:3072
    ds_read_b128 {vr(Vb[0][0],4)}, v{vVA}
    ds_read_b128 {vr(Vb[0][1],4)}, v{vVA} offset:640
    s_waitcnt lgkmcnt(4)
    """)
    a(mfma32(X, Km[0], Qm[0], 0))
    a(mfma32(X + 16, Km[0], Qm[1], 0))
    a("s_nop 8\ns_waitcnt lgkmcnt(3)")
    a(mfma2b(X, 0, vr(X, 32)))
    a("s_nop 15\ns_nop 3")
    a.c("softmax shift: row max over the first key tile, cut to bf16; the epilogue checks that it was safe.")
    a.c("A rank-1 MFMA (-1 x shift) subtracts it from the scores and spreads it over the C operand of the loop")
    rowmax(a, X, vT0, vT1)
    a(f"""
    s_nop 1
    v_permlane32_swap_b32 v{vT0}, v{vT1}
    s_nop 1
    v_max_f32 v{vT0}, v{vT0}, v{vT1}
    v_and_b32 v{vPS}, {0 if 'c0' in OPT else '0xffff0000'}, v{vT0}
    s_nop 1
    v_mfma_f32_32x32x4_2b_bf16 {vr(X,32)}, {vr(vP,2)}, {vr(vPS,2)}, {vr(X,32)}
    v_mfma_f32_32x32x4_2b_bf16 {vr(NM,32)}, {vr(vP,2)}, {vr(vPS,2)}, 0
    s_nop 15
    s_nop 1
    s_waitcnt lgkmcnt(0)
    v_exp_f32 v{X}, v{X}
    .p2align 6
    LA_loop:
    """)
    for half in range(2):
        for ii in range(4):
            tile_iter(a, ii, half)
    a("s_cbranch_scc0 LA_loop\ns_nop 0")
    a(mfma32(OA[1], Vb[1][1], SB[1] + 24, vr(OA[1], 16)))
    a(f"s_cmp_eq_u32 s{sRole}, 0\ns_cbranch_scc1 LA_fin2\ns_setprio 2")
    a.c("announce that the results are about to be stored; readers then wait for the markers to disappear")
    count_in(a, sOc, vP, vP + 1)
    a("LA_fin2:")
    stamp(a, 4)
    stamp_cyc(a, 31)
    N = SB[0]
    rc = SB[1]
    tm = rc + 4

    def norm(u):
        O, P = OA[u], N + 12 * u
        for r in range(0, 12, 2):
            a(f"v_pk_mul_f32 {vr(P+r,2)}, {vr(O+r,2)}, {vr(rc+2*u,2)} op_sel_hi:[1,0]")
        for j in range(6):
            a(f"v_cvt_pk_bf16_f32 v{P+j}, v{P+2*j}, v{P+2*j+1}")
    a(f"""
    s_mov_b32 s{sRem}, 0
    LA_epi:
    v_cmp_lt_u32 vcc, 31, v0
    s_add_u32 s{sT0}, s{sOb}, s{sOm}
    s_add_u32 s{sT1}, s{sT0}, {TILE}
    v_cndmask_b32 v{vT0}, v{OA[0]+12}, v{OA[0]+8}, vcc
    v_rcp_f32 v{rc}, v{vT0}
    v_pk_add_f32 {vr(tm,2)}, {vr(OA[0],2)}, {vr(OA[0]+2,2)}
    """)
    a.c("safety check of the shift before anything is stored: row sums inside [2^-30, 2^30], finite accumulators")
    for r in range(4, 12, 2):
        a(f"v_pk_add_f32 {vr(tm,2)}, {vr(tm,2)}, {vr(OA[0]+r,2)}")
    norm(0)
    a(f"v_cndmask_b32 v{vT1}, v{OA[1]+12}, v{OA[1]+8}, vcc\nv_rcp_f32 v{rc+2}, v{vT1}")
    for r in range(0, 12, 2):
        a(f"v_pk_add_f32 {vr(tm,2)}, {vr(tm,2)}, {vr(OA[1]+r,2)}")
    a(f"""
    v_add_f32 v{tm}, v{tm}, v{tm+1}
    v_add_f32 v{tm+1}, v{vT0}, v{vT1}
    v_fma_f32 v{tm}, 0, v{tm}, v{tm+1}
    v_min_f32 v{tm+1}, v{vT0}, v{vT1}
    v_cmp_gt_f32 vcc, {hex(f32bits(2.0**30))}, v{tm}
    s_mov_b64 s[4:5], vcc
    v_cmp_lt_f32 vcc, {hex(f32bits(2.0**-30))}, v{tm+1}
    """)
    for j in range(4):
        a(f"v_min_u32 v{N+j}, -2, v{N+j}")
    a(f"""
    s_and_b64 s[4:5], s[4:5], vcc
    s_cmp_eq_u64 s[4:5], -1
    s_cselect_b32 s{sT3}, 1, s{sRem}
    s_cmp_eq_u32 s{sT3}, 0
    s_cbranch_scc1 LA_slow
    buffer_store_dwordx4 {vr(N,4)}, v{vL16}, {WSR()}, s{sT0} offen sc1
    """)
    norm(1)
    for j in range(4):
        a(f"v_min_u32 v{N+12+j}, -2, v{N+12+j}")
    a(f"""
    buffer_store_dwordx4 {vr(N+12,4)}, v{vL16}, {WSR()}, s{sT1} offen sc1
    v_permlane32_swap_b32 v{N+4}, v{N+16}
    v_permlane32_swap_b32 v{N+5}, v{N+17}
    s_add_u32 s{sT2}, s{sOb}, s{sExt}
    v_min_u32 v{N+4}, -2, v{N+4}
    v_min_u32 v{N+5}, -2, v{N+5}
    buffer_store_dwordx2 {vr(N+4,2)}, v{vE16}, {WSR()}, s{sT2} offen sc1
    """)


def o_base(a):
    a(f"""
    s_lshl_b32 s{sT0}, s{sQB}, 2
    s_add_u32 s{sT0}, s{sT0}, s{sJ}
    s_mul_i32 s{sOb}, s{sT0}, {2 * TILE}
    s_add_u32 s{sOb}, s{sOb}, s{sImg}
    s_add_u32 s{sOb}, s{sOb}, {3 * IMG}
    """)
    a(f"s_lshr_b32 s{sT1}, s{sHead}, 3\ns_max_u32 s{sT1}, s{sT1}, 1\ns_sub_u32 s{sT1}, s{sT1}, 1")
    c3_off(a, sOc, sT0, sT1)


def o_mark(a):
    o_base(a)
    a(f"""
    v_mov_b32 v16, -1
    v_mov_b32 v17, -1
    v_mov_b32 v18, -1
    v_mov_b32 v19, -1
    s_add_u32 s{sT0}, s{sOb}, s{sOm}
    s_add_u32 s{sT1}, s{sT0}, {TILE}
    s_add_u32 s{sT2}, s{sOb}, s{sExt}
    buffer_store_dwordx4 v[16:19], v{vL16}, {WSR()}, s{sT0} offen sc1
    buffer_store_dwordx4 v[16:19], v{vL16}, {WSR()}, s{sT1} offen sc1
    buffer_store_dwordx2 v[16:17], v{vE16}, {WSR()}, s{sT2} offen sc1
    """)


def refill(a):
    a.c("role-B waves refill both rings: after barrier m, A block m+2 and B block m-SK+2")
    a(f"""
    LA_refill:
    s_cmp_gt_u32 s{sM}, 5
    s_cbranch_scc1 LA_ev_b
    s_mov_b32 s{sT0}, 0
    s_add_u32 s{sT1}, s{sM}, 2
    s_call_b64 s[{sLnk}:{sLnk+1}], LA_dma
    LA_ev_b:
    s_sub_u32 s{sT1}, s{sM}, {SK - 2}
    s_cmp_lt_u32 s{sT1}, 3
    s_cbranch_scc1 LA_back
    s_mov_b32 s{sT0}, 1
    s_call_b64 s[{sLnk}:{sLnk+1}], LA_dma
    s_branch LA_back
    """)


def slow_path(a):
    X = SB[0]
    m0, m1, t0, t1 = SB[1], SB[1] + 1, SB[1] + 2, SB[1] + 3

    def kloads(t):
        a(f"buffer_load_dwordx4 {vr(Km[0],4)}, v{vL16}, {WSR()}, s{sT1} offen sc1")
        if t == 0:
            a(f"buffer_load_dwordx2 {vr(Ke,2)}, v{vE16}, {WSR()}, s{sT2} offen sc1")
            a(f"s_add_u32 s{sT2}, s{sT2}, {2 * TILE}")
        a(f"s_add_u32 s{sT1}, s{sT1}, {TILE}")

    def kbase():
        a(f"""
        s_add_u32 s{sT0}, s{sImg}, {IMG}
        s_add_u32 s{sT1}, s{sT0}, s{sOm}
        s_add_u32 s{sT2}, s{sT0}, s{sExt}
        s_mov_b32 s{sRem}, 0
        """)
    a(f"LA_slow:\nv_mov_b32 v{m0}, 0xff800000\nv_mov_b32 v{m1}, 0xff800000")
    kbase()
    a("LA_slow_max:")
    for t in range(2):
        kloads(t)
        a("s_waitcnt vmcnt(0)")
        a(mfma32(X, Km[0], Qm[0], 0))
        a(mfma32(X + 16, Km[0], Qm[1], 0))
        a("s_nop 9")
        a(mfma2b(X, t, vr(X, 32)))
        a("s_nop 15\ns_nop 3")
        rowmax(a, X, t0, t1)
        a(f"v_max_f32 v{m0}, v{m0}, v{t0}\nv_max_f32 v{m1}, v{m1}, v{t1}")
    a(f"s_add_u32 s{sRem}, s{sRem}, 1\ns_cmp_lt_u32 s{sRem}, 32\ns_cbranch_scc1 LA_slow_max")
    cross_half_max(a, m0, t0)
    cross_half_max(a, m1, t0)
    fill_nm(a, m0, m1)
    for r in range(32):
        a(f"v_mov_b32 v{OA[0]+r}, 0")
    for r in range(8):
        a(f"v_mov_b32 v{Vb[0][0]+r}, 0x3f803f80")
    kbase()
    a(f"""
    s_mul_i32 s{sT3}, s{sHead}, 320
    s_add_u32 s{sT3}, s{sT3}, s{sT0}
    s_add_u32 s{sT3}, s{sT3}, {IMG}
    LA_slow_pv:
    """)
    for t in range(2):
        kloads(t)
        a(f"""
        s_add_u32 s{sT4}, s{sT3}, 20480
        s_mov_b32 exec_lo, 0xfffff
        s_mov_b32 exec_hi, 0xfffff
        buffer_load_dwordx4 {vr(Vb[0][0],4)}, v{vVG}, {WSR()}, s{sT3} offen sc1
        buffer_load_dwordx4 {vr(Vb[0][1],4)}, v{vVG}, {WSR()}, s{sT4} offen sc1
        s_mov_b64 exec, -1
        s_add_u32 s{sT3}, s{sT3}, {TILE}
        s_waitcnt vmcnt(2)
        """)
        a(mfma32(X, Km[0], Qm[0], vr(NM, 16)))
        a(mfma32(X + 16, Km[0], Qm[1], vr(NM + 16, 16)))
        a("s_nop 9")
        a(mfma2b(X, t, vr(X, 32)))
        a("s_nop 15\ns_nop 3")
        for r in range(32):
            a(f"v_exp_f32 v{X+r}, v{X+r}")
        a("s_nop 0")
        for j in range(16):
            a(f"v_cvt_pk_bf16_f32 v{X + 8*(j//4) + j%4}, v{X+2*j}, v{X+2*j+1}")
        a("s_waitcnt vmcnt(0)\ns_nop 1")
        a(mfma32(OA[0], Vb[0][0], X, vr(OA[0], 16)))
        a(mfma32(OA[0], Vb[0][1], X + 8, vr(OA[0], 16)))
        a(mfma32(OA[1], Vb[0][0], X + 16, vr(OA[1], 16)))
        a(mfma32(OA[1], Vb[0][1], X + 24, vr(OA[1], 16)))
    a(f"""
    s_add_u32 s{sRem}, s{sRem}, 1
    s_cmp_lt_u32 s{sRem}, 32
    s_cbranch_scc1 LA_slow_pv
    s_nop 15
    s_mov_b32 s{sRem}, 1
    s_branch LA_epi
    """)


pWF = [16, 56]
pACC = 96
pACL = 196
pOF = 136
pWA, pOA = 2, 3


def c3_off(a, dst, t64, part):
    a(f"""
    s_lshl_b32 s{dst}, s{sBr}, 5
    s_add_u32 s{dst}, s{dst}, s{t64}
    s_mul_i32 s{dst}, s{dst}, 3
    s_add_u32 s{dst}, s{dst}, s{part}
    s_lshl_b32 s{dst}, s{dst}, 7
    s_add_u32 s{dst}, s{dst}, {WS_C3}
    """)


def wo_dma(a, k0, k1, lds0):
    _lbl[0] += 1
    L = f"LP_wd{_lbl[0]}"
    a(f"""
    s_and_b32 s{sT0}, s{sHead}, 3
    s_lshl_b32 s{sT1}, s{sBr}, 2
    s_add_u32 s{sT0}, s{sT0}, s{sT1}
    s_mul_i32 s{sT0}, s{sT0}, {WO_SLAB}
    s_lshl_b32 s{sT1}, s{sJ}, 10
    s_add_u32 s{sT0}, s{sT0}, s{sT1}
    s_add_u32 s{sT0}, s{sT0}, {WS_WO + 10240 * k0}
    s_add_u32 s{sT1}, s{sT1}, {lds0}
    {L}:
    s_mov_b32 m0, s{sT1}
    s_add_u32 s{sT1}, s{sT1}, 4096
    buffer_load_dwordx4 v{vL16}, {WSR()}, s{sT0} offen sc1 lds
    s_add_u32 s{sT0}, s{sT0}, 4096
    s_cmp_lt_u32 s{sT1}, {lds0 + 10240 * (k1 - k0)}
    s_cbranch_scc1 {L}
    """)


def o_addr(a):
    a(f"""
    s_lshl_b32 s{sT1}, s{sQB}, 2
    s_lshr_b32 s{sT2}, s{sHead}, 2
    s_add_u32 s{sT1}, s{sT1}, s{sT2}
    """)
    c3_off(a, sFc, sT1, sRole)
    a(f"""
    v_and_b32 v{vP+3}, 15, v0
    s_lshl_b32 s{sT1}, s{sT1}, 1
    s_lshr_b32 s{sT2}, s{sJ}, 1
    s_add_u32 s{sT1}, s{sT1}, s{sT2}
    s_mul_i32 s{sT1}, s{sT1}, {TILE}
    s_add_u32 s{sT1}, s{sT1}, s{sImg}
    s_and_b32 s{sT2}, s{sJ}, 1
    s_lshl_b32 s{sT2}, s{sT2}, 8
    s_add_u32 s{sT1}, s{sT1}, s{sT2}
    s_add_u32 s{sFo}, s{sT1}, {3 * IMG}
    v_lshrrev_b32 v{pOA}, 4, v0
    v_lshlrev_b32 v{pOA}, 9, v{pOA}
    v_lshl_add_u32 v{pOA}, v{vP+3}, 4, v{pOA}
    v_lshlrev_b32 v{vP+5}, 7, v0
    s_mov_b32 s{sF[0]}, s{sFo}
    s_add_u32 s{sF[1]}, s{sFo}, 10240
    """)


sF = [54, 55]


def o_load_sub(a, label, p0):
    a(f"{label}:\ns_mov_b32 s{sT1}, s{sF[p0 // 5]}")
    for i in range(5):
        a(f"buffer_load_dwordx4 {vr(pOF + 4*(p0 + i), 4)}, v{pOA}, {WSR()}, s{sT1} offen offset:{(i & 1) * 2048} sc1")
        if i & 1:
            a(f"s_add_u32 s{sT1}, s{sT1}, 4096")
    a(f"s_setpc_b64 s[{sLnk}:{sLnk+1}]")


def o_checked(a, label, p0, counted):
    a(f"s_mov_b32 s{sSpin}, {SPIN}\n{label}_chk:\nv_mov_b32 v{vPS}, 0\nv_mov_b32 v{vPS+1}, 0")
    for i in range(5):
        r = pOF + 4 * (p0 + i)
        if counted:
            a(f"s_waitcnt vmcnt({4 - i})")
        a(f"v_max3_u32 v{vPS}, v{vPS}, v{r}, v{r+1}\nv_max3_u32 v{vPS+1}, v{vPS+1}, v{r+2}, v{r+3}")
    a(f"""
    v_max_u32 v{vPS}, v{vPS}, v{vPS+1}
    v_cmp_eq_u32 vcc, -1, v{vPS}
    s_cbranch_vccz {label}_ok
    s_call_b64 s[{sLnk}:{sLnk+1}], {label}
    s_waitcnt vmcnt(0)
    s_sub_u32 s{sSpin}, s{sSpin}, 1
    s_cbranch_scc0 {label}_chk
    {label}_ok:
    """)


def peek(a, mask):
    a(f"""
    v_mov_b32 v{vPS+2}, 0
    s_mov_b64 exec, {mask}
    buffer_atomic_add v{vPS+2}, v{vP+5}, {WSR()}, s{sFc} offen sc0 sc1
    s_mov_b64 exec, -1
    """)


def ready_mask(a):
    a(f"v_cmp_le_u32 vcc, 8, v{vPS+2}\ns_and_b32 s{sPh}, vcc_lo, 3")


def order_sub(a):
    a(f"""
    LP_order:
    s_and_b32 s{sDone}, s{sPh}, 1
    s_xor_b32 s{sDone}, s{sDone}, 1
    s_mul_i32 s{sT0}, s{sDone}, 10240
    s_add_u32 s{sF[0]}, s{sFo}, s{sT0}
    s_sub_u32 s{sF[1]}, s{sFo}, s{sT0}
    s_add_u32 s{sF[1]}, s{sF[1]}, 10240
    """)


TAB = [8, 9, 10, 11, 12, 13, 14, 15, 52, 53]


def oproj_subs(a):
    def wreads(p):
        return [f"ds_read_b128 {vr(pWF[p & 1] + 4*c, 4)}, v{pWA} offset:{c * 1024}" for c in range(10)]
    a(f"LP_pro:\nv_add_u32 v{pWA}, s{TAB[0]}, v{vL16}")
    for r in wreads(0):
        a(r)
    a(f"s_setpc_b64 s[{sLnk}:{sLnk+1}]")
    for p in range(10):
        if p % 5 == 0:
            a("LP_lo:" if p else "LP_hi:")
        rd = wreads(p + 1) if p < 9 else []
        if rd:
            a(f"v_add_u32 v{pWA}, s{TAB[p + 1]}, v{vL16}")
        for c in range(10):
            A = (pACL if p >= 5 else pACC) + 4 * c
            a(f"s_waitcnt lgkmcnt({9 if rd else 9 - c})")
            a(f"v_mfma_f32_16x16x32_bf16 {vr(A,4)}, {vr(pOF + 4*p, 4)}, {vr(pWF[p & 1] + 4*c, 4)}, {vr(A,4)}")
            if rd:
                a(rd[c])
        if p % 5 == 4:
            a(f"s_setpc_b64 s[{sLnk}:{sLnk+1}]")


def set_tab(a, addrs):
    for r, x in zip(TAB, addrs):
        a(f"s_mov_b32 s{r}, {x}")


def out_addr(a):
    a.c("lane holds columns 10*(l & 15) .. +9 of tokens 4*(l >> 4) + r")
    a(f"""
    s_lshl_b32 s{sT0}, s{sQB}, 2
    s_lshr_b32 s{sT1}, s{sHead}, 2
    s_add_u32 s{sT0}, s{sT0}, s{sT1}
    s_lshl_b32 s{sT0}, s{sT0}, 2
    s_add_u32 s{sT0}, s{sT0}, s{sJ}
    s_mul_i32 s{sT0}, s{sT0}, {16 * 2560}
    s_mul_i32 s{sT1}, s{sBr}, 1280
    s_add_u32 s{sT0}, s{sT0}, s{sT1}
    s_and_b32 s{sT1}, s{sHead}, 3
    s_mul_i32 s{sT1}, s{sT1}, 320
    s_add_u32 s{sXo}, s{sT0}, s{sT1}
    s_add_u32 s{sWo}, s{sXo}, {2 * 2560}
    v_lshrrev_b32 v4, 4, v0
    v_mul_u32_u24 v4, {4 * 2560}, v4
    v_and_b32 v5, 15, v0
    v_mul_u32_u24 v5, 20, v5
    v_add_u32 v4, v4, v5
    """)


def out_store(a):
    OUTMOD = " sc1" if 'outsc1' in OPT else " nt" if 'outnt' in OPT else "" if 'outplain' in OPT else " nt"
    a("s_nop 1")
    for r in range(0, 40, 2):
        a(f"v_pk_add_f32 {vr(pACC + r, 2)}, {vr(pACC + r, 2)}, {vr(pACL + r, 2)}")
    for r in range(4):
        P = 16 + 6 * r
        for j in range(5):
            a(f"v_cvt_pk_bf16_f32 v{P+j}, v{pACC + 8*j + r}, v{pACC + 8*j + 4 + r}")
        so = sXo if r < 2 else sWo
        a(f"buffer_store_dwordx4 {vr(P,4)}, v4, s[{sOut}:{sOut+3}], s{so} offen offset:{(r & 1) * 2560}{OUTMOD}")
        a(f"buffer_store_dword v{P+4}, v4, s[{sOut}:{sOut+3}], s{so} offen offset:{(r & 1) * 2560 + 16}{OUTMOD}")


rL, rT, rD, rX, rData = 194, 199, 200, 205, 208


def repack_setup(a):
    x = rX
    for i in range(5):
        a(f"""
        v_add_u32 v{x}, {64 * i}, v0
        v_mul_u32_u24 v{x+1}, 3277, v{x}
        v_lshrrev_b32 v{x+1}, 16, v{x+1}
        v_mul_u32_u24 v{x+2}, 20, v{x+1}
        v_sub_u32 v{x+2}, v{x}, v{x+2}
        v_mul_u32_u24 v{x+1}, 1280, v{x+1}
        v_lshl_add_u32 v{rL+i}, v{x+2}, 4, v{x+1}
        v_and_b32 v{x}, 15, v0
        v_add_u32 v{x}, {16 * i}, v{x}
        v_mul_u32_u24 v{x+1}, 205, v{x}
        v_lshrrev_b32 v{x+1}, 11, v{x+1}
        v_mul_u32_u24 v{x+2}, 10, v{x+1}
        v_sub_u32 v{x+2}, v{x}, v{x+2}
        v_mul_u32_u24 v{x+2}, 1040, v{x+2}
        v_lshl_add_u32 v{x+2}, v{x+1}, 4, v{x+2}
        v_and_b32 v{x}, 48, v0
        v_lshl_add_u32 v{x+2}, v{x}, 4, v{x+2}
        v_add_u32 v{rD+i}, {RPK}, v{x+2}
        """)
    a(f"""
    v_lshrrev_b32 v{x}, 4, v0
    v_lshlrev_b32 v{x}, 3, v{x}
    v_lshrrev_b32 v{x+1}, 2, v0
    v_and_b32 v{x+1}, 3, v{x+1}
    v_add_u32 v{x}, v{x}, v{x+1}
    v_mul_u32_u24 v{x}, 320, v{x}
    v_and_b32 v{x+1}, 3, v0
    v_lshl_add_u32 v{x}, v{x+1}, 3, v{x}
    v_add_u32 v{rT}, {RPK}, v{x}
    v_add_u32 v{rX}, {RPK}, v{vL16}
    """)


def repack_steps(a):
    a(f"""
    LR_step:
    s_add_u32 s{sRp}, s{sRp}, 1
    s_lshr_b32 s{sT2}, s2, 3
    s_cmp_eq_u32 s{sM}, {SK + 1}
    s_cbranch_scc0 LR_s1
    s_mov_b32 s{sWt}, s{sPtr+2}
    s_and_b32 s{sWt+1}, s{sPtr+3}, 0xffff
    s_mov_b32 s{sWt+2}, {D * D * 2}
    s_mov_b32 s{sWt+3}, 0x00020000
    s_mul_i32 s{sT0}, s{sT2}, {32 * 1280}
    s_and_b32 s{sT1}, s2, 3
    s_mul_i32 s{sT1}, s{sT1}, 320
    s_add_u32 s{sT0}, s{sT0}, s{sT1}
    s_mov_b32 m0, {RPK}
    s_add_u32 s{sT1}, s{sT0}, {16 * 1280}
    """)
    for i in range(10):
        a(f"buffer_load_dwordx4 v{rL + i % 5}, s[{sWt}:{sWt+3}], s{sT1 if i >= 5 else sT0} offen lds")
        a("s_add_u32 m0, m0, 1024\ns_nop 0")
    a(f"""
    s_branch LA_bar
    LR_s1:
    s_cmp_eq_u32 s{sM}, {SK + 2}
    s_cbranch_scc0 LR_s2
    s_and_b32 s{sT0}, s2, 7
    s_mul_i32 s{sT0}, s{sT0}, {WO_SLAB}
    s_mul_i32 s{sT2}, s{sT2}, 10240
    s_add_u32 s{sT0}, s{sT0}, s{sT2}
    s_add_u32 s{sT0}, s{sT0}, {WS_WO}
    """)
    for ct in range(10):
        for u in range(2):
            a(f"ds_read_b64_tr_b16 {vr(rData + 4*ct + 2*u, 2)}, v{rT} offset:{u*4*320 + ct*32}")
        if ct == 4:
            a("s_waitcnt lgkmcnt(0)")
    a("s_waitcnt lgkmcnt(0)")
    for ct in range(10):
        a(f"ds_write_b128 v{rD + ct % 5}, {vr(rData + 4*ct, 4)} offset:{128 * (ct // 5)}")
    a("s_waitcnt lgkmcnt(0)")
    for c in range(10):
        a(f"ds_read_b128 {vr(rData + 4*c, 4)}, v{rX} offset:{1040 * c}")
    for c in range(10):
        a(f"s_waitcnt lgkmcnt({9 - c})")
        a(f"buffer_store_dwordx4 {vr(rData + 4*c, 4)}, v{vL16}, {WSR()}, s{sT0} offen offset:{1024 * (c & 3)} sc1")
        if c & 3 == 3:
            a(f"s_add_u32 s{sT0}, s{sT0}, 4096")
    a(f"""
    s_branch LA_bar
    LR_s2:
    s_mov_b32 s{sRp}, -1
    s_and_b32 s{sT0}, s2, 7
    s_lshl_b32 s{sT0}, s{sT0}, 7
    s_add_u32 s{sT0}, s{sT0}, {WS_C4}
    """)
    count_in(a, sT0, vP, vP + 1)
    a("s_branch LA_bar")


def write_ones(a, role):
    a(f"""
    v_and_b32 v{vT0}, 7, v0
    v_mul_u32_u24 v{vT0}, 640, v{vT0}
    v_add_u32 v{vT0}, {ONES[role]}, v{vT0}
    v_mov_b32 v16, 0x3f803f80
    v_mov_b32 v17, 0x3f803f80
    v_mov_b32 v18, 0x3f803f80
    v_mov_b32 v19, 0x3f803f80
    ds_write_b128 v{vT0}, v[16:19]
    """)


sL = 8


def lead_prepare(a):
    a(f"""
    s_cmp_lt_u32 s2, 160
    s_cselect_b32 s{sT0}, s{sJ}, 0
    s_cmp_eq_u32 s{sT0}, 1
    s_cselect_b32 s{sRp}, {SK + 1}, -1
    s_mov_b32 s{sM}, 0
    s_mov_b32 s{sMend}, 0
    s_mov_b32 s{sRb}, {RA}
    s_mov_b32 s{sNext}, {RA + BLK}
    """)
    attn_zero(a)
    o_base(a)
    a(f"""
    s_sub_u32 s{sT0}, s{sOb}, {3 * IMG}
    s_add_u32 s{sL},  s{sT0}, s{sOm}
    s_add_u32 s{sL+1}, s{sL},  {TILE}
    s_add_u32 s{sL+2}, s{sT0}, s{sExt}
    s_lshr_b32 s{sT3}, s{sJ}, 1
    s_mul_i32 s{sT1}, s{sT3}, {4 * TILE}
    s_add_u32 s{sT1}, s{sT1}, s{sImg}
    s_add_u32 s{sT1}, s{sT1}, {IMG}
    s_mul_i32 s{sL+3}, s{sQB}, {8 * TILE}
    s_add_u32 s{sL+3}, s{sL+3}, s{sT1}
    s_add_u32 s{sL+4}, s{sQB}, 1
    s_and_b32 s{sL+4}, s{sL+4}, 7
    s_mul_i32 s{sL+4}, s{sL+4}, {8 * TILE}
    s_add_u32 s{sL+4}, s{sL+4}, s{sT1}
    s_mul_i32 s{sL+5}, s{sT3}, {CH}
    s_and_b32 s{sL+6}, s{sJ}, 1
    s_mul_i32 s{sT4}, s{sL+6}, 6144
    s_add_u32 s{sL+5}, s{sL+5}, s{sT4}
    s_add_u32 m0, s{sL+5}, {RA + BLK}
    """)
    a(f"""
    s_lshl_b32 s{sL+7}, s{sBr}, 5
    s_add_u32 s{sL+7}, s{sL+7}, s{sHead}
    s_lshl_b32 s{sL+7}, s{sL+7}, 9
    s_add_u32 s{sL+7}, s{sL+7}, {WS_C1}
    """)


def common_setup(a):
    a(f"""
    s_and_b32 s{sT0}, s2, 1
    s_lshl_b32 s{sT0}, s{sT0}, 3
    s_and_b32 s{sT1}, s2, 2
    s_lshl_b32 s{sT1}, s{sT1}, 1
    s_add_u32 s{sT0}, s{sT0}, s{sT1}
    s_lshr_b32 s{sT2}, s2, 6
    s_add_u32 s{sHead}, s{sT0}, s{sT2}
    s_lshr_b32 s{sQB}, s2, 3
    s_and_b32 s{sQB}, s{sQB}, 7
    s_lshl_b32 s{sT2}, s{sRole}, 4
    s_add_u32 s{sHead}, s{sHead}, s{sT2}
    s_mul_i32 s{sImg}, s{sBr}, {4 * IMG}
    s_mov_b32 s{sPh}, 0
    s_mov_b32 s{sWS+2}, {WS_STAMP + 2048 * 128 if common.STAMP else WS_END}
    s_mov_b32 s{sWS+3}, 0x00020000
    s_mov_b32 s{sOut+2}, {S * 2 * D * 2}
    s_mov_b32 s{sOut+3}, 0x00020000
    s_mov_b32 s{sDbg+2}, 256
    s_mov_b32 s{sDbg+3}, 0x00020000
    s_waitcnt lgkmcnt(0)
    s_mov_b32 s{sOut}, s{sPtr+4}
    s_and_b32 s{sOut+1}, s{sPtr+5}, 0xffff
    s_mov_b32 s{sDbg}, s{sPtr+6}
    s_and_b32 s{sDbg+1}, s{sPtr+7}, 0xffff
    s_add_u32 s{sWS}, s{sWS}, {WS_MB << 20}
    s_addc_u32 s{sWS+1}, s{sWS+1}, 0
    s_and_b32 s{sWS+1}, s{sWS+1}, 0xffff
    """)


def gen(a, label):
    kernel_head(a, label)
    a("s_cmp_ge_u32 s2, 256\ns_cbranch_scc1 LF_end")
    stamp(a, 0)
    a(f"""
    s_bfe_u32 s{sBr}, s2, 0x10002
    s_mul_i32 s{sT0}, s{sBr}, 24
    s_load_dwordx2 s[{sX}:{sX+1}], s[0:1], s{sT0}
    s_add_u32 s{sT1}, s{sT0}, 8
    s_load_dwordx4 s[{sPtr}:{sPtr+3}], s[0:1], s{sT1}
    s_load_dwordx4 s[{sPtr+4}:{sPtr+7}], s[0:1], 48
    s_load_dwordx2 s[{sWS}:{sWS+1}], s[0:1], 64
    v_lshrrev_b32 v1, 6, v0
    v_and_b32 v0, 63, v0
    v_readfirstlane_b32 s{sW}, v1
    s_and_b32 s{sT0}, s2, 3
    s_lshl_b32 s{sT0}, s{sT0}, 2
    s_bfe_u32 s{sT2}, s2, 0x20003
    s_add_u32 s{sTB}, s{sT0}, s{sT2}
    s_lshr_b32 s{sTI}, s2, 5
    """)
    if 'nocw' not in OPT:
        a.c("wave 7 pulls a quarter of the code into the L2, so that later instruction fetches find it there")
        a(f"""
        s_cmp_eq_u32 s{sW}, 7
        s_cbranch_scc0 LG_nocw
        s_getpc_b64 s[4:5]
        LG_pc:
        s_sub_u32 s4, s4, LG_pc-{label}
        s_subb_u32 s5, s5, 0
        s_lshl_b32 s{sT0}, s{sT2}, 13
        v_lshl_add_u32 v8, v0, 7, s{sT0}
        v_min_u32 v8, LF_codeend-{label}-4, v8
        global_load_dword v{gT+1}, v8, s[4:5]
        LG_nocw:
        """)
    a.c("phase-a units of tile ti: n = 2 ti + e, unit = n + 5 (n >= 5) + 5 (n >= 10)")
    a(f"""
    s_lshl_b32 s{sU0}, s{sTI}, 1
    s_cmp_ge_u32 s{sTI}, 5
    s_cselect_b32 s{sT0}, 10, 5
    s_cmp_ge_u32 s{sTI}, 3
    s_cselect_b32 s{sT0}, s{sT0}, 0
    s_add_u32 s{sU0}, s{sU0}, s{sT0}
    s_cmp_eq_u32 s{sTI}, 2
    s_cselect_b32 s{sT0}, 6, 1
    s_add_u32 s{sU1}, s{sU0}, s{sT0}
    s_and_b32 s{sJ}, s{sW}, 3
    s_lshr_b32 s{sRole}, s{sW}, 2
    s_cbranch_scc1 LG_start
    """)
    gemm_loader(a)
    a("LG_start:")
    common_setup(a)
    a.c("wave 4 clears counter lines id and id + 256")
    a(f"""
    s_cmp_eq_u32 s{sJ}, 0
    s_cbranch_scc0 LG_cleared
    s_lshl_b32 s{sT0}, s2, 7
    s_add_u32 s{sT0}, s{sT0}, {WS_C1}
    v_lshlrev_b32 v8, 15, v0
    v_mov_b32 v9, 0
    s_mov_b64 exec, 3
    buffer_store_dword v9, v8, {WSR()}, s{sT0} offen sc1
    s_mov_b64 exec, -1
    LG_cleared:
    """)
    gemm_compute(a)
    a("LG_done:")
    if PAIR_Q >= 160:
        a("s_barrier")
    stamp(a, 3)
    vectors_get(a)
    a.c("the last wave whose stores have drained publishes the tile")
    a(f"""
    v_mov_b32 v{vP}, {LCNT}
    v_mov_b32 v{vP+1}, 1
    s_waitcnt vmcnt(0)
    s_mov_b64 exec, 1
    ds_add_rtn_u32 v{vP+2}, v{vP}, v{vP+1}
    s_mov_b64 exec, -1
    s_waitcnt lgkmcnt(0)
    v_readfirstlane_b32 s{sT0}, v{vP+2}
    s_cmp_eq_u32 s{sT0}, 3
    s_cbranch_scc0 LG_nopub
    s_call_b64 s[{sLnk}:{sLnk+1}], LG_publish
    LG_nopub:
    """)
    stamp(a, 27)
    a("s_branch LB_lead")
    a("LG_idle:\ns_waitcnt lgkmcnt(0)\ns_barrier")
    drained(a)
    a("s_barrier\ns_barrier")
    vectors_get(a)
    stamp(a, 3)
    a("LB_lead:")
    call_dma(a, 0, 2)
    a("s_barrier")
    o_mark(a)
    a("s_nop 0")
    write_ones(a, 1)
    a("s_waitcnt vmcnt(0)\ns_barrier")
    poll_f1(a)
    stamp(a, 26)
    load_q(a)
    call_dma(a, 1, 0)
    call_dma(a, 0, 3)
    scale_q(a, 10)
    a(f"s_mov_b32 s{sM}, {SK}\ns_mov_b32 s{sMend}, {(1 << (SK + 5)) - 1}\ns_mov_b32 s{sRb}, {RB}\ns_mov_b32 s{sNext}, {RB}\ns_mov_b32 s{sRp}, -1")
    attn_zero(a)
    a("s_waitcnt vmcnt(0) lgkmcnt(0)\ns_barrier")
    call_dma(a, 1, 1)
    call_dma(a, 0, 4)
    call_dma(a, 1, 2)
    a("s_setprio 0" if 'noprio' in OPT else "s_setprio 1")
    stamp(a, 5)
    a("s_branch LA_start")
    a("LA_lead:")
    a("s_setprio 3")
    def small_writes():
        a(f"s_cmp_lt_u32 s{sJ}, 2\ns_cbranch_scc0 LA_sw1")
        vectors_put(a)
        a(f"s_branch LA_sw2\nLA_sw1:\nv_mov_b32 v{vP+2}, {LCNT}\ns_mov_b64 exec, 0xff\nds_write_b32 v{vP+2}, v{vP+1}")
        write_ones(a, 0)
        a("LA_sw2:")
    poll_counter(a, vP + 3, f"s{sL+7}", f"s{sExp}", 7, small_writes)
    stamp(a, 1)
    a(f"""
    buffer_load_dwordx4 {vr(Qm[0],4)}, v{vL16}, {WSR()}, s8 offen sc1
    buffer_load_dwordx4 {vr(Qm[1],4)}, v{vL16}, {WSR()}, s9 offen sc1
    buffer_load_dwordx2 {vr(Qe,2)}, v{vE16}, {WSR()}, s10 offen sc1
    """)
    for blk in range(2):
        for p in range(5):
            a(f"buffer_load_dwordx4 v{vD+p}, {WSR()}, s{11 + blk} offen sc1 lds")
            a("s_add_u32 m0, m0, 1024")
            a("s_nop 0" if p < 4 else "s_cmp_eq_u32 s14, 1")
        a(f"s_cbranch_scc1 LA_ld{blk}\nbuffer_load_dwordx4 v{vD+5}, {WSR()}, s{11 + blk} offen sc1 lds\nLA_ld{blk}:")
        if blk == 0:
            a(f"s_add_u32 m0, s13, {RA + 2 * BLK}\ns_nop 0")
    scale_q(a, 10)
    a("s_waitcnt vmcnt(5) lgkmcnt(0)\ns_barrier\ns_setprio 1")
    stamp(a, 3)
    attention(a)
    a(f"s_cmp_eq_u32 s{sRole}, 0\ns_cbranch_scc1 LP_a\ns_barrier")
    stamp(a, 6)
    a(f"s_branch {'LF_end' if 'astamp' in OPT else 'LP_end'}\nLP_a:\ns_waitcnt vmcnt(0)")
    count_in(a, sOc, vP, vP + 1)
    stamp(a, 6)
    a.c("role-A waves: first half of K while role B finishes, second half once it is published")
    a(f"""
    s_and_b32 s{sT0}, s{sHead}, 3
    s_lshl_b32 s{sT1}, s{sBr}, 2
    s_add_u32 s{sT0}, s{sT0}, s{sT1}
    s_lshl_b32 s{sT0}, s{sT0}, 7
    s_add_u32 s{sT0}, s{sT0}, {WS_C4}
    """)
    poll_counter(a, vP + 4, f"s{sT0}", 20, 1)
    a(f"v_pk_mov_b32 {vr(pACC + 32, 2)}, 0, 0")
    for r in range(34, 40, 2):
        a(f"v_pk_mov_b32 {vr(pACC + r, 2)}, 0, 0")
    for r in range(32, 40, 2):
        a(f"v_pk_mov_b32 {vr(pACL + r, 2)}, 0, 0")
    for A in (pACC, pACL):
        a(f"v_mfma_f32_32x32x4_2b_bf16 {vr(A,32)}, {vr(pACC + 32, 2)}, {vr(pACC + 32, 2)}, 0")
    G = lambda i: LDS_BYTES - (11 - i) * 10240
    Lo = lambda i: RB + i * 10240
    assert SK == 3 and G(0) >= RB + 2 * BLK and G(3) >= RB + RING and Lo(3) <= RB + BLK + CH
    call = lambda l: a(f"s_call_b64 s[{sLnk}:{sLnk+1}], {l}")
    o_addr(a)
    out_addr(a)
    a("s_setprio 0")
    stamp(a, 20)
    a("s_barrier")
    stamp(a, 21)
    call_dma(a, 1, 7)
    wo_dma(a, 0, 4, G(3))
    peek(a, 1)
    wo_dma(a, 4, 8, G(7))
    stamp(a, 22)
    a(f"s_waitcnt vmcnt(0)\nv_readfirstlane_b32 s{sT0}, v{vPS+2}\ns_cmp_ge_u32 s{sT0}, 16\ns_cbranch_scc1 LP_seen")
    poll_counter(a, vP + 4, f"s{sFc}", 16, 1)
    a("LP_seen:")
    call("LP_ldhi")
    call("LP_ldlo")
    a(f"s_add_u32 s{sFo}, s{sFo}, 20480\ns_add_u32 s{sFc}, s{sFc}, 128")
    stamp(a, 25)
    a("s_barrier")
    stamp(a, 5)
    set_tab(a, [G(3), G(4), G(5), G(6), G(7), G(8), G(9), G(10), G(0), G(1)])
    call("LP_pro")
    a("s_waitcnt vmcnt(0)")
    wo_dma(a, 8, 11, G(0))
    call("LP_hi")
    a("s_waitcnt vmcnt(0) lgkmcnt(0)")
    stamp(a, 26)
    a("s_barrier")
    stamp(a, 28)
    wo_dma(a, 11, 17, G(3))
    peek(a, 3)
    wo_dma(a, 17, 20, Lo(0))
    a("s_waitcnt vmcnt(7)")
    ready_mask(a)
    a("s_cbranch_scc0 LP_n1")
    call("LP_order")
    a("LP_n1:")
    stamp(a, 29)
    call("LP_lo")
    stamp(a, 10)
    a(f"s_waitcnt vmcnt(0)\ns_barrier\ns_cmp_lg_u32 s{sPh}, 0\ns_cbranch_scc1 LP_n2\ns_mov_b32 s{sSpin}, {SPIN}\nLP_any:")
    peek(a, 3)
    a("s_waitcnt vmcnt(0)")
    ready_mask(a)
    a(f"s_cbranch_scc1 LP_got\ns_sleep {SLEEP}\ns_sub_u32 s{sSpin}, s{sSpin}, 1\ns_cbranch_scc0 LP_any\nLP_got:")
    call("LP_order")
    a("LP_n2:")
    stamp(a, 30)
    T = [G(2), G(3), G(4), G(5), G(6), G(7), G(8), Lo(0), Lo(1), Lo(2)]
    a(f"s_cmp_eq_u32 s{sPh}, 3\ns_cbranch_scc0 LP_n3")
    call("LP_ldlo")
    a(f"LP_n3:\ns_cmp_eq_u32 s{sDone}, 1")
    for r, x, y in zip(TAB, T, T[5:] + T[:5]):
        a(f"s_mov_b32 s{r}, {x}\ns_cmov_b32 s{r}, {y}")
    call("LP_pro")
    a.c("each group keeps its own accumulators, so the result does not depend on the order of arrival")
    a("s_cbranch_scc0 LP_n4")
    for r in range(40):
        a(f"v_swap_b32 v{pACC + r}, v{pACL + r}")
    a("LP_n4:")
    a(f"s_waitcnt vmcnt(5)\ns_cmp_eq_u32 s{sPh}, 3\ns_cbranch_scc1 LP_n5\ns_waitcnt vmcnt(0)")
    peek(a, 3)
    a("LP_n5:")
    o_checked(a, "LP_ldhi", 0, False)
    stamp(a, 11)
    call("LP_hi")
    stamp(a, 12)
    a(f"s_cmp_eq_u32 s{sPh}, 3\ns_cbranch_scc1 LP_n6\ns_waitcnt vmcnt(0)")
    ready_mask(a)
    a(f"s_cmp_eq_u32 s{sPh}, 3\ns_cbranch_scc1 LP_n7")
    poll_counter(a, vP + 5, f"s{sFc}", 8, 3)
    a("LP_n7:")
    call("LP_ldlo")
    a("LP_n6:")
    o_checked(a, "LP_ldlo", 5, True)
    stamp(a, 2)
    if common.STAMP: a(f"s_mov_b32 s{STAMP_S+17}, s{sSpin}")
    call("LP_lo")
    stamp(a, 16)
    out_store(a)
    a("LP_end:")
    if common.STAMP:
        a("s_waitcnt vmcnt(0)")
        stamp(a, 7)
        stamp_flush(a, 4)
    a("LF_end:\ns_endpgm")
    dma_sub(a)
    refill(a)
    publish_sub(a)
    order_sub(a)
    o_load_sub(a, "LP_ldhi", 0)
    o_load_sub(a, "LP_ldlo", 5)
    oproj_subs(a)
    repack_steps(a)
    slow_path(a)
    a("LF_codeend:")


def build():
    a = Asm()
    label = NAME + "_kernel"
    a('.amdgcn_target "amdgcn-amd-amdhsa--gfx950"\n.text')
    gen(a, label)
    return (HEADER + f"; @launch grid=(256,1,1) block=(512,1,1) lds={LDS_BYTES}\n" + a.text()
            + '.section .rodata,"a"\n.p2align 6\n' + kernel_desc(label, NVGPR, NVGPR, 100))


if __name__ == "__main__":
    import sys
    for x in sys.argv[2:]:
        if '=' in x:
            k, v = x.split('='); globals()[k] = int(v)
        else:
            OPT.add(x)
    if 'dbgstamp' in OPT:
        common.STAMP = True
    out = sys.argv[1] if len(sys.argv) > 1 else f"cdna_kernels/{NAME}.s"
    open(out, "w").write(build())
```

```python
import sys, os, importlib
sys.path.insert(0, "gen")
args = sys.argv[1:]; sys.argv = sys.argv[:1]
from test_fk import *
mode = [int(x[1:]) for x in args if x.startswith('@')] or [1]
variants = [x for x in args if not x.startswith('@')]
cos = []
for v in variants:
    mn, _, o = v.rpartition(':')
    m = importlib.reload(importlib.import_module(mn or 'fk'))
    for x in o.split('+'):
        if '=' in x:
            k, val = x.split('='); setattr(m, k, [int(z) for z in val.split(',')] if ',' in val else int(val))
        elif x != 'base': m.OPT.add(x)
    cos.append(assemble1(m.build(), "d_" + v.replace('=', '').replace('+', '_').replace(':', '_').replace(',', '')))
if not os.path.exists('/dev/kfd'): print("assembled"); raise SystemExit
d = make_inputs(0); out = exact(d)[2]
R = Runner(d); R.poison()
ks = []
for co, l in cos:
    R.load(co, l); ks.append(R.k)
open('variants.txt', 'w').write("\n".join(variants))
for rep in range(40):
    for k in ks:
        R.k = k; R.time(1, cold=mode[0])
for v, k in zip(variants, ks):
    R.k = k; R.run(); print(v, "err", np.abs(R.get_out() - out).max())
```

```python
from common import Asm, vr, sr, f32bits, kernel_head, kernel_desc, QSCALE, S, D, HEADER, NAME
import common

OPT = set()
SK = 3

TILE = 40960
IMG = 64 * TILE
WS_WO = 8 * IMG
WO_SLAB = 204800
WO_HALF = WO_SLAB // 2
WS_C1 = WS_WO + 8 * WO_SLAB
WS_C3 = WS_C1 + 256 * 128
WS_C4 = WS_C3 + 192 * 128
WS_END = WS_C1 + 512 * 128
WS_STAMP = WS_END + 65536
WS_MB = 0

LDS_BYTES = 163840
GSL = 16384
CH = 11264
BLK = 2 * CH
RING = 3 * BLK
ONES = [90112, 0]
RB = 5120
RA = LDS_BYTES - RING
RPK = RB + RING
XFER = 81920
LCNT = 95232

sX, sWt, sWS, sOut, sDbg = 8, 12, 16, 20, 24
sPtr = 28
sW, sJ, sRole = 40, 41, 42
sHead, sQB, sTI, sTB = 43, 44, 45, 46
sT0, sT1, sT2, sT3, sT4 = 47, 48, 49, 50, 51
sIt, sSlot, sKB, sInc = 52, 53, 54, 55
sXo, sWo = 56, 57
sNext, sRb, sRe, sRem = 52, 53, 54, 55
sM, sMend = 56, 57
sOm, sExt = 58, 59
sSpin = 60
sBr = 61
sU0, sU1, sImg, sPh = 96, 97, 98, 99
sExp = 3
sDone = 36
sOb = 37
sOc = 97
sFo, sFc = 38, 39
sRp = 96
sE = 56
sLnk = 62
STAMP_S = 64

RP_AT = 4
SPIN = 1 << 15
SLEEP = 2


NST = 32


def stamp(a, i):
    if common.STAMP:
        a(f"s_memrealtime s[4:5]\ns_waitcnt lgkmcnt(0)\ns_mov_b32 s{STAMP_S+i}, s4")


def stamp_cyc(a, i):
    if common.STAMP:
        a(f"s_memtime s[4:5]\ns_waitcnt lgkmcnt(0)\ns_mov_b32 s{STAMP_S+i}, s4")


def stamp_idx(a, base, sreg):
    if common.STAMP and 'cyc' in OPT:
        a(f"s_memtime s[4:5]\ns_mov_b32 m0, s{sreg}\ns_waitcnt lgkmcnt(0)\ns_movreld_b32 s{STAMP_S+base}, s4")


def stamp_flush(a, vt):
    if not common.STAMP:
        return
    a(f"""
    s_mov_b64 exec, 1
    s_lshl_b32 s{sT0}, s2, 3
    s_add_u32 s{sT0}, s{sT0}, s{sW}
    s_lshl_b32 s{sT0}, s{sT0}, 7
    s_add_u32 s{sT0}, s{sT0}, {WS_STAMP}
    v_mov_b32 v{vt+2}, 0
    """)
    for i in range(NST):
        a(f"v_mov_b32 v{vt}, s{STAMP_S+i}")
        a(f"buffer_store_dword v{vt}, v{vt+2}, s[{sWS}:{sWS+3}], s{sT0} offen offset:{4*i}")
    if 'dbgstamp' in OPT:
        a(f"s_cmp_eq_u32 s2, 100\ns_cbranch_scc0 LF_nodbg\ns_cmp_eq_u32 s{sJ}, 0\ns_cbranch_scc0 LF_nodbg\ns_lshl_b32 s{sT0}, s{sRole}, 5")
        for i in range(8):
            a(f"s_sub_u32 s{sT1}, s{STAMP_S+i}, s{STAMP_S}")
            a(f"v_mov_b32 v{vt}, s{sT1}")
            a(f"buffer_store_dword v{vt}, v{vt+2}, s[{sDbg}:{sDbg+3}], s{sT0} offen offset:{4*i}")
        a("LF_nodbg:")


def WSR():
    return f"s[{sWS}:{sWS+3}]"


_lbl = [0]


def poll(a, loads, expect, vtmp):
    _lbl[0] += 1
    L = f"LF_poll{_lbl[0]}"
    a(f"s_mov_b32 s{sSpin}, {SPIN}\n{L}:")
    for i, (vo, srd, so) in enumerate(loads):
        a(f"buffer_load_dword v{vtmp+i}, v{vo}, {srd}, {so} offen sc1")
    a("s_waitcnt vmcnt(0)")
    for i in range(1, len(loads)):
        a(f"v_min_u32 v{vtmp}, v{vtmp}, v{vtmp+i}")
    a(f"""
    v_cmp_gt_u32 vcc, {expect}, v{vtmp}
    s_cbranch_vccz {L}_ok
    s_sleep {SLEEP}
    s_sub_u32 s{sSpin}, s{sSpin}, 1
    s_cbranch_scc0 {L}
    {L}_ok:
    """)


def poll_counter(a, vo, so, expect, mask, meanwhile=None):
    _lbl[0] += 1
    L = f"LF_pc{_lbl[0]}"
    rd = (f"v_mov_b32 v{vPS}, 0\nbuffer_atomic_add v{vPS}, v{vo}, {WSR()}, {so} offen sc0 sc1" if 'ldpoll' not in OPT else
          f"buffer_load_dword v{vPS}, v{vo}, {WSR()}, {so} offen sc1")
    a(f"s_mov_b32 s{sSpin}, {SPIN}\ns_mov_b64 exec, {mask}")
    if meanwhile:
        a(f"{rd}\ns_mov_b64 exec, -1")
        meanwhile()
        a(f"s_mov_b64 exec, {mask}\ns_branch {L}_w")
    a(f"""
    {L}:
    {rd}
    {L}_w:
    s_waitcnt vmcnt(0)
    v_cmp_gt_u32 vcc, {expect}, v{vPS}
    s_cbranch_vccz {L}_ok
    s_sleep {SLEEP}
    s_sub_u32 s{sSpin}, s{sSpin}, 1
    s_cbranch_scc0 {L}
    {L}_ok:
    s_mov_b64 exec, -1
    """)


def count_in(a, soff, vz, vd):
    a(f"""
    v_mov_b32 v{vz}, 0
    v_mov_b32 v{vd}, 1
    s_mov_b64 exec, 1
    buffer_atomic_add v{vd}, v{vz}, {WSR()}, s{soff} offen sc1
    s_mov_b64 exec, -1
    """)


gXF = 0
gWF = 160
gWA = [184, 185, 186, 187]
gXA = 188
gT = 189
gACC = 192


PUB_BAR = 12
LAST_BAR = 16
PAIR_Q = 155
HIGH_Q = 144
NFIRST = 5
MAXISS = 3
FAST_BAR = 7
PF_BAR = 3
ROT = 4


def stage_barriers():
    return list(range(0, 12)) + [LAST_BAR]


def gemm_schedule():
    items = [x for n in range(10) for x in (("X", n), ("W", n))] + [("W", n) for n in range(10, 20)]
    rel = lambda it: it[1] + (1 if it[0] == "X" else 2)
    free = list(range(10))
    slot, when, freed = {}, {}, set()
    k = 0
    for bar in range(-1, 12):
        for it in items:
            if it in slot and it not in freed and rel(it) <= bar:
                free.append(slot[it])
                freed.add(it)
        n = 0
        while k < len(items) and free and n < (NFIRST if bar == -1 else 10 if bar == 11 else MAXISS if bar >= FAST_BAR else 2) and bar != 10:
            slot[items[k]] = free.pop(0)
            when[items[k]] = bar
            k += 1
            n += 1
    assert k == len(items) and when[("W", LAST_BAR - 1)] <= 9 and when[("W", 17)] == 11
    assert max(rel(it) for it in items[:-3] if slot[it] == slot[("W", 17)]) <= 10
    order = [slot[("W", n)] for n in (15, 16, 17, 18, 19, 13, 14, 10, 11, 12)]
    assert sorted(order) == list(range(10)), order
    slot = {it: order.index(v) for it, v in slot.items()}
    return items, slot, when


LCNT0 = 2 * GSL


def lane_id(a, v):
    a(f"v_mbcnt_lo_u32_b32 v{v}, -1, 0\nv_mbcnt_hi_u32_b32 v{v}, -1, v{v}")


def drained(a):
    a(f"s_waitcnt vmcnt(0)\ns_mov_b64 exec, 1\nds_add_u32 v{gT+1}, v{gT+2}\ns_mov_b64 exec, -1\ns_mov_b32 s{sDone}, 1")


def gemm_body(a, vtype):
    L = "LG_v" if vtype else "LG_q"
    items, slot, when = gemm_schedule()

    def kc(q):
        return ((q & 3, (q >> 2) & 3) if q >= 144 else ((q >> 2) & 3, q & 3))

    def wreads(q):
        ks, c = kc(q)
        d = gWF + 4 * (q % 6)
        return [f"ds_read_b64_tr_b16 {vr(d + 2*u, 2)}, v{gWA[c]} offset:{ks*4096 + u*1024}" for u in range(2)]

    def xreads(n, between=""):
        for ks in range(4):
            d = gXF + 4 * (4 * n + ks)
            a(f"v_xor_b32 v{d}, {32 * ks}, v{gXA}")
        a(between)
        for ks in range(4):
            d = gXF + 4 * (4 * n + ks)
            a(f"ds_read_b128 {vr(d,4)}, v{d}")

    def pack(c):
        out = []
        A = gACC + 16 * c
        out += [f"v_cvt_pk_bf16_f32 v{gACC + 8*c + j}, v{A+2*j}, v{A+2*j+1}" for j in range(8)]
        return out

    def stores(c):
        out = []
        for i in range(2):
            d = vr(gACC + 8*c + 4*i, 4)
            if vtype:
                out.append(f"buffer_store_dwordx4 {d}, v{gT}, {WSR()}, s{sE + i} offen offset:{c * 512} sc1")
            else:
                out.append(f"buffer_store_dwordx4 {d}, v{gT}, {WSR()}, s{sE + (c >> 1)} offen offset:{(c & 1) * 2048 + i * 1024} sc1")
        return out

    a("s_barrier")
    a.c("this workgroup has cleared its share of the counters: count it in")
    a(f"""
    s_cmp_eq_u32 s{sW}, 4
    s_cbranch_scc0 {L}_nocount
    s_and_b32 s{sT0}, s2, 31
    s_lshl_b32 s{sT0}, s{sT0}, 2
    s_add_u32 s{sT0}, s{sT0}, 128
    v_mov_b32 v{gT+1}, 0
    v_mov_b32 v{gT+2}, 1
    s_mov_b64 exec, 1
    buffer_atomic_add v{gT+2}, v{gT+1}, s[{sDbg}:{sDbg+3}], s{sT0} offen sc1
    s_mov_b64 exec, -1
    {L}_nocount:
    v_mov_b32 v{gT+1}, {LCNT0}
    v_mov_b32 v{gT+2}, 1
    s_mov_b32 s{sDone}, 1
    """)
    stamp(a, 1)
    xreads(0)
    for q in range(6):
        for r in wreads(q):
            a(r)
    a(f"{L}_body:")
    for q in range(160):
        n = q >> 4
        ks, c = kc(q)
        if q <= 154:
            a(f"s_waitcnt lgkmcnt({2 * (min(q + 5, 159) - q)})")
        elif q == 155:
            a("s_waitcnt lgkmcnt(0)")
        x, w = vr(gXF + 4 * (4 * n + ks), 4), vr(gWF + 4 * (q % 6), 4)
        A, B = (x, w) if vtype else (w, x)
        d = vr(gACC + 16 * c, 16)
        a(f"v_mfma_f32_32x32x16_bf16 {d}, {A}, {B}, {'0' if q < 4 else d}")
        r16 = q & 15
        if r16 == 10:
            if n + 11 in stage_barriers():
                a("s_barrier")
            a(f"s_cbranch_scc0 {L}_xa{n}\n{L}_xb{n}:")
        if q + 6 < 160:
            for r in wreads(q + 6):
                a(r)
        if PUB_BAR <= n + 11 <= LAST_BAR:
            if r16 == 0:
                a.c("phase b: report once that this wave's stores have drained")
                a(f"s_getreg_b32 s{sT0}, hwreg(HW_REG_IB_STS, 0, 4)" if n + 11 < LAST_BAR else f"s_mov_b32 s{sT0}, 0")
            if r16 == 1:
                a(f"s_or_b32 s{sT0}, s{sT0}, s{sDone}")
            if r16 == 2:
                a(f"s_cbranch_scc0 {L}_da{n}\n{L}_db{n}:")
        if r16 == 3:
            a(f"s_cmp_eq_u32 s{sPh}, 1")
        if r16 == 4:
            a(f"s_mov_b32 s{sInc}, {((slot[('W', n + 1)] - slot[('W', n)]) * GSL) & 0xffffffff}")
        if r16 == 5 and n < 9:
            a(f"s_cmov_b32 s{sInc}, {((slot[('W', n + 11)] - slot[('W', n + 10)]) * GSL) & 0xffffffff}")
        if 6 <= r16 <= 9:
            a(f"v_add_u32 v{gWA[r16 - 6]}, s{sInc}, v{gWA[r16 - 6]}")
        if q == HIGH_Q:
            a("s_setprio 2")
        if q == PAIR_Q:
            low = "s_setprio 0\n" if PAIR_Q < HIGH_Q else ""
            a(f"s_cbranch_scc0 {L}_np\ns_barrier\n{low}{L}_np:")
        if q in (150, 154):
            for x in pack((q - 150) // 4):
                a(x)
        if q in (151, 155):
            for x in stores((q - 151) // 4):
                a(x)
        if q == 156:
            a("s_nop 7")
        if q == 158:
            for x in pack(2):
                a(x)
    for x in stores(2):
        a(x)
    a(f"s_cbranch_scc1 {L}_nopre")
    for q in range(6):
        for r in wreads(q):
            a(r)
    a(f"{L}_nopre:\ns_nop 9")
    for x in pack(3) + stores(3):
        a(x)
    a(f"s_cbranch_scc1 LG_done")
    stamp(a, 2)
    next_units(a)
    step = 6 * 1024 if vtype else 5 * 4096
    a(f"s_add_u32 s{sE}, s{sE}, {step}\ns_add_u32 s{sE+1}, s{sE+1}, {step}\ns_mov_b32 s{sDone}, 0")
    if vtype:
        a(f"s_cmp_eq_u32 s{sTI}, 7\ns_cbranch_scc1 LG_idle")
    a(f"s_branch {L}_body")
    for n in range(10):
        a(f"{L}_xa{n}:")
        if n + 1 < 10:
            dx = (slot[("X", n + 1)] - slot[("X", n)]) * GSL
            a(f"v_add_u32 v{gXA}, {dx & 0xffffffff}, v{gXA}")
            xreads(n + 1, "" if n + 11 in stage_barriers() else "s_barrier")
        else:
            a("s_barrier")
        a(f"s_branch {L}_xb{n}")
    for n in range(PUB_BAR - 11, LAST_BAR - 10):
        a(f"{L}_da{n}:")
        drained(a)
        a(f"s_branch {L}_db{n}")


def next_units(a):
    a(f"""
    s_mov_b32 s{sPh}, 1
    s_cmp_ge_u32 s{sTI}, 5
    s_cselect_b32 s{sT0}, 6, 5
    s_add_u32 s{sU0}, s{sU0}, s{sT0}
    s_add_u32 s{sU1}, s{sU1}, s{sT0}
    """)


def publish_sub(a):
    t = vPS
    a(f"""
    LG_publish:
    v_cmp_lt_u32 vcc, 31, v0
    v_mov_b32 v{t+3}, s{sU0}
    v_mov_b32 v{t+4}, s{sU1}
    v_cndmask_b32 v{t+3}, v{t+3}, v{t+4}, vcc
    v_mul_u32_u24 v{t+4}, 205, v{t+3}
    v_lshrrev_b32 v{t+4}, 11, v{t+4}
    v_mul_u32_u24 v{t+5}, 10, v{t+4}
    v_sub_u32 v{t+3}, v{t+3}, v{t+5}
    v_lshlrev_b32 v{t+3}, 3, v{t+3}
    v_and_b32 v{t+5}, 31, v0
    v_lshl_add_u32 v{t+4}, v{t+5}, 2, v{t+4}
    v_lshlrev_b32 v{t+4}, 7, v{t+4}
    v_mul_u32_u24 v{t+5}, 5, v{t+5}
    v_lshrrev_b32 v{t+5}, 1, v{t+5}
    v_add_u32 v{t+5}, 2, v{t+5}
    v_sub_u32 v{t+5}, v{t+5}, v{t+3}
    v_cmp_gt_u32 vcc, 10, v{t+5}
    v_mov_b32 v{t+1}, 1
    s_lshl_b32 s{sT1}, s{sBr}, 14
    s_add_u32 s{sT1}, s{sT1}, {WS_C1}
    s_mov_b64 exec, vcc
    buffer_atomic_add v{t+1}, v{t+4}, {WSR()}, s{sT1} offen sc1
    s_mov_b64 exec, -1
    s_setpc_b64 s[{sLnk}:{sLnk+1}]
    """)


def gemm_compute(a):
    items, slot, when = gemm_schedule()
    t0, t1, t2 = 8, 9, 10
    a(f"""
    v_and_b32 v{t0}, 31, v0
    v_lshrrev_b32 v{t1}, 5, v0
    v_lshrrev_b32 v{t2}, 1, v{t0}
    v_and_b32 v{t2}, 7, v{t2}
    v_xor_b32 v{t2}, v{t2}, v{t1}
    v_lshlrev_b32 v{t2}, 4, v{t2}
    v_lshlrev_b32 v{t0}, 7, v{t0}
    v_add_u32 v{t2}, v{t2}, v{t0}
    s_lshl_b32 s{sT0}, s{sJ}, 12
    s_add_u32 s{sT0}, s{sT0}, {slot[("X", 0)] * GSL}
    v_add_u32 v{gXA}, s{sT0}, v{t2}
    v_lshrrev_b32 v{t0}, 2, v0
    v_and_b32 v{t0}, 3, v{t0}
    v_lshlrev_b32 v{t2}, 3, v{t1}
    v_add_u32 v{t2}, v{t2}, v{t0}
    v_lshlrev_b32 v{t2}, 8, v{t2}
    v_lshlrev_b32 v{t0}, 6, v{t0}
    v_add_u32 v{t2}, v{t2}, v{t0}
    v_and_b32 v{t0}, 16, v0
    v_lshlrev_b32 v{t0}, 1, v{t0}
    v_add_u32 v{t2}, v{t2}, v{t0}
    v_add_u32 v{t2}, {slot[("W", 0)] * GSL}, v{t2}
    v_and_b32 v{t0}, 1, v0
    v_and_b32 v{t1}, 2, v0
    s_cmp_ge_u32 s{sTI}, 5
    s_cselect_b32 s{sT0}, 3, 4
    s_cselect_b32 s{sT1}, 3, 2
    v_lshlrev_b32 v{t0}, s{sT0}, v{t0}
    v_lshlrev_b32 v{t1}, s{sT1}, v{t1}
    v_add3_u32 v{gWA[0]}, v{t2}, v{t0}, v{t1}
    v_xor_b32 v{gWA[1]}, 64, v{gWA[0]}
    v_xor_b32 v{gWA[2]}, 128, v{gWA[0]}
    v_xor_b32 v{gWA[3]}, 192, v{gWA[0]}
    s_lshl_b32 s{sT0}, s{sTB}, 2
    s_add_u32 s{sT0}, s{sT0}, s{sJ}
    s_mul_i32 s{sT0}, s{sT0}, {TILE}
    s_add_u32 s{sT0}, s{sT0}, s{sImg}
    v_lshlrev_b32 v{gT}, 4, v0
    s_waitcnt vmcnt(0)
    s_cmp_ge_u32 s{sTI}, 5
    s_cbranch_scc1 LG_vtype
    s_lshl_b32 s{sE}, s{sU0}, 12
    s_lshl_b32 s{sE+1}, s{sU1}, 12
    s_cmp_ge_u32 s{sU0}, 10
    s_cselect_b32 s{sT3}, {IMG - 40960}, 0
    s_add_u32 s{sE}, s{sE}, s{sT3}
    s_cmp_ge_u32 s{sU1}, 10
    s_cselect_b32 s{sT3}, {IMG - 40960}, 0
    s_add_u32 s{sE+1}, s{sE+1}, s{sT3}
    s_add_u32 s{sE}, s{sE}, s{sT0}
    s_add_u32 s{sE+1}, s{sE+1}, s{sT0}
    """)
    gemm_body(a, False)
    a(f"""
    LG_vtype:
    s_lshl_b32 s{sE}, s{sU0}, 10
    s_add_u32 s{sE}, s{sE}, {2 * IMG - 20480}
    s_add_u32 s{sE}, s{sE}, s{sT0}
    s_add_u32 s{sE+1}, s{sE}, 20480
    v_lshrrev_b32 v8, 5, v0
    v_mul_u32_u24 v8, 10240 - 512, v8
    v_add_u32 v{gT}, v{gT}, v8
    """)
    gemm_body(a, True)


def gemm_loader(a):
    items, slot, when = gemm_schedule()
    vE, vO, vWs, vCnt = 230, 231, 232, 233
    sKX, sKW = sKB, sSlot
    a(f"""
    v_lshrrev_b32 v5, 3, v0
    v_mul_u32_u24 v5, 1280, v5
    v_and_b32 v6, 7, v0
    v_lshrrev_b32 v7, 4, v0
    v_xor_b32 v6, v6, v7
    v_lshlrev_b32 v6, 4, v6
    v_add_u32 v{vE}, v5, v6
    v_xor_b32 v6, 64, v6
    v_add_u32 v{vO}, v5, v6
    v_add_u32 v{vO}, {8 * 1280 - 1024}, v{vO}
    v_lshrrev_b32 v5, 2, v0
    v_and_b32 v5, 3, v5
    v_xor_b32 v5, v5, v7
    v_lshrrev_b32 v6, 1, v5
    s_sub_u32 s{sT0}, s{sU1}, s{sU0}
    s_lshl_b32 s{sT0}, s{sT0}, 7
    v_mul_u32_u24 v6, s{sT0}, v6
    v_and_b32 v5, 1, v5
    v_lshl_add_u32 v5, v5, 6, v6
    v_and_b32 v6, 3, v0
    v_lshl_add_u32 v5, v6, 4, v5
    v_mul_u32_u24 v6, 3840, v7
    v_add_u32 v{vWs}, v5, v6
    s_lshl_b32 s{sXo}, s{sTB}, 2
    s_add_u32 s{sXo}, s{sXo}, s{sJ}
    s_mul_i32 s{sXo}, s{sXo}, {32 * 1280}
    s_mul_i32 s{sWo}, s{sJ}, {16 * 3840}
    s_lshl_b32 s{sT0}, s{sU0}, 7
    s_add_u32 s{sWo}, s{sWo}, s{sT0}
    s_lshl_b32 s{sInc}, s{sJ}, 12
    """)
    a.c("workgroups that share a tile start at different k-blocks, so that they fill the L2 together")
    if ROT == 2:
        a(f"s_xor_b32 s{sKX}, s{sTB}, s{sTI}\ns_and_b32 s{sKX}, s{sKX}, 1\ns_mul_i32 s{sKX}, s{sKX}, 5")
    elif ROT == 3:
        a(f"""
        s_and_b32 s{sKX}, s{sTB}, 3
        s_add_u32 s{sKX}, s{sKX}, s{sTI}
        s_mul_i32 s{sT0}, s{sKX}, 43
        s_lshr_b32 s{sT0}, s{sT0}, 7
        s_mul_i32 s{sT0}, s{sT0}, 3
        s_sub_u32 s{sKX}, s{sKX}, s{sT0}
        s_mul_i32 s{sKX}, s{sKX}, 7
        s_lshr_b32 s{sKX}, s{sKX}, 1
        """)
    elif ROT == 4:
        a(f"""
        s_add_u32 s{sKX}, s{sTB}, s{sTI}
        s_and_b32 s{sKX}, s{sKX}, 3
        s_mul_i32 s{sKX}, s{sKX}, 5
        s_add_u32 s{sKX}, s{sKX}, 1
        s_lshr_b32 s{sKX}, s{sKX}, 1
        """)
    elif ROT:
        a(f"""
        s_and_b32 s{sKX}, s{sTB}, 3
        s_mul_i32 s{sKX}, s{sKX}, 5
        s_add_u32 s{sKX}, s{sKX}, 1
        s_lshr_b32 s{sKX}, s{sKX}, 1
        s_add_u32 s{sKX}, s{sKX}, s{sTI}
        s_cmp_ge_u32 s{sKX}, 10
        s_cselect_b32 s{sT0}, 10, 0
        s_sub_u32 s{sKX}, s{sKX}, s{sT0}
        """)
    else:
        a(f"s_and_b32 s{sKX}, s{sTI}, 1")
    a(f"s_mov_b32 s{sKW}, s{sKX}\ns_mov_b32 s{sIt}, 0")
    a(f"""
    s_mov_b32 s{sX+2}, {S * D * 2}
    s_mov_b32 s{sX+3}, 0x00020000
    s_mov_b32 s{sWt+2}, {D * 3 * D * 2}
    s_mov_b32 s{sWt+3}, 0x00020000
    s_waitcnt lgkmcnt(0)
    s_and_b32 s{sX+1}, s{sX+1}, 0xffff
    s_mov_b32 s{sWt}, s{sPtr}
    s_and_b32 s{sWt+1}, s{sPtr+1}, 0xffff
    s_branch LL_go
    """)
    a(f"""
    LL_X:
    s_lshl_b32 s{sT0}, s{sKX}, 7
    s_add_u32 s{sT0}, s{sT0}, s{sXo}
    s_add_u32 s{sKX}, s{sKX}, 1
    buffer_load_dwordx4 v{vE}, s[{sX}:{sX+3}], s{sT0} offen lds
    buffer_load_dwordx4 v{vO}, s[{sX}:{sX+3}], s{sT0} offen offset:1024 lds
    s_add_u32 m0, m0, 2048
    s_add_u32 s{sT0}, s{sT0}, {16 * 1280}
    buffer_load_dwordx4 v{vE}, s[{sX}:{sX+3}], s{sT0} offen lds
    buffer_load_dwordx4 v{vO}, s[{sX}:{sX+3}], s{sT0} offen offset:1024 lds
    s_cmp_eq_u32 s{sKX}, 10
    s_cselect_b32 s{sKX}, 0, s{sKX}
    s_setpc_b64 s[{sLnk}:{sLnk+1}]
    LL_Wskip:
    s_waitcnt vmcnt(0)
    s_setpc_b64 s[{sLnk}:{sLnk+1}]
    LL_W:
    s_cmp_eq_u32 s{sIt}, 1
    s_cbranch_scc1 LL_Wskip
    s_mul_i32 s{sT1}, s{sKW}, {64 * 3840}
    s_add_u32 s{sT1}, s{sT1}, s{sWo}
    s_add_u32 s{sKW}, s{sKW}, 1
    """)
    for p in range(4):
        a(f"buffer_load_dwordx4 v{vWs}, s[{sWt}:{sWt+3}], s{sT1} offen lds")
        if p < 3:
            a(f"s_add_u32 m0, m0, 1024")
            a(f"s_add_u32 s{sT1}, s{sT1}, {4 * 3840}")
    a(f"""
    s_cmp_eq_u32 s{sKW}, 10
    s_cselect_b32 s{sKW}, 0, s{sKW}
    s_setpc_b64 s[{sLnk}:{sLnk+1}]
    """)
    a("LL_go:")
    delay(a, 2)
    stamp(a, 13)
    q = []

    def issue(it):
        if it == ("W", 10):
            a(f"s_cmp_ge_u32 s{sTI}, 5\ns_cselect_b32 s{sT0}, {6 * 128}, s{sC640}\ns_add_u32 s{sWo}, s{sWo}, s{sT0}")
            a(f"s_cmp_eq_u32 s{sTI}, 7\ns_cselect_b32 s{sIt}, 1, 0")
        a(f"s_add_u32 m0, s{sInc}, {slot[it] * GSL}\ns_call_b64 s[{sLnk}:{sLnk+1}], LL_{it[0]}")
        q.extend([it] * 4)

    def wait_for(names):
        last = max(i for i, x in enumerate(q) if x in names)
        a(f"s_waitcnt vmcnt({min(63, len(q) - 1 - last)})")

    sC640 = sT4
    first = [it for it in items if when[it] == -1]
    for it in first:
        issue(it)
    stamp(a, 14)
    vPf = 234
    bars = stage_barriers()
    stamp(a, 15)
    for bi, bar in enumerate(bars):
        upto = bars[bi + 1] - 1 if bi + 1 < len(bars) else 19
        wait_for([("X", bar), ("W", upto)] + (["cnt"] if bar == 11 else []))
        if bar == 11:
            a.c("all counters must have been cleared before the first one is used")
            a(f"v_cmp_gt_u32 vcc, 8, v{vCnt}\ns_cbranch_vccz LL_cnt_ok")
            poll(a, [(vP + 5, f"s[{sDbg}:{sDbg+3}]", "0")], 8, vPS)
            a("LL_cnt_ok:")
        a("s_barrier")
        if bar not in (2, 3, 4, 5, 6, 7, 8, 9): stamp(a, 8 + min(bar, 15))
        if bar == 11:
            attn_scalars(a)
            attn_vectors(a)
            repack_setup(a)
            a.c("wave 0 publishes the phase-a tile once its four storing waves have reported")
            a(f"""
            v_mov_b32 v{vP+2}, {LCNT0}
            s_cmp_lg_u32 s{sJ}, 0
            s_cbranch_scc1 LL_pub
            s_mov_b32 s{sSpin}, {SPIN * 8}
            LL_try:
            ds_read_b32 v{vP}, v{vP+2}
            s_waitcnt lgkmcnt(0)
            v_readfirstlane_b32 s{sT0}, v{vP}
            s_cmp_eq_u32 s{sT0}, 4
            s_cbranch_scc1 LL_try_go
            s_sub_u32 s{sSpin}, s{sSpin}, 1
            s_cbranch_scc0 LL_try
            LL_try_go:
            s_call_b64 s[{sLnk}:{sLnk+1}], LG_publish
            """)
            stamp(a, 27)
            a("LL_pub:")
        a(f"s_mov_b32 s{sC640}, 640")
        for it in items:
            if when[it] == bar:
                issue(it)
        if bar == 11:
            lead_prepare(a)
        if bar == 10:
            a(f"v_mov_b32 v{vP}, 0\nv_mov_b32 v{vP+2}, {LCNT0}\nds_write_b32 v{vP+2}, v{vP}\ns_waitcnt lgkmcnt(0)")
        if bar == PF_BAR:
            a.c("one load per 128-B line of the phase-b columns of five weight rows brings them on chip ahead of use")
            a(f"""
            s_lshr_b32 s{sT0}, s2, 3
            s_lshl_b32 s{sT0}, s{sT0}, 2
            s_and_b32 s{sT1}, s2, 3
            s_add_u32 s{sT0}, s{sT0}, s{sT1}
            s_mul_i32 s{sT0}, s{sT0}, {5 * 3840}
            s_mul_i32 s{sT1}, s{sJ}, 19
            v_add_u32 v8, s{sT1}, v0
            v_min_u32 v8, 74, v8
            v_mul_u32_u24 v9, 205, v8
            v_lshrrev_b32 v9, 10, v9
            v_mul_u32_u24 v9, 5, v9
            v_add3_u32 v9, v9, v8, 5
            v_lshlrev_b32 v{vPf}, 7, v9
            s_mov_b64 exec, 0x7ffff
            buffer_load_dword v{vPS}, v{vPf}, s[{sWt}:{sWt+3}], s{sT0} offen
            s_mov_b64 exec, -1
            """)
            q.append("pf")
        if bar == 8:
            common_setup(a)
            a(f"v_lshlrev_b32 v{vP+5}, 2, v0\nv_or_b32 v{vP+5}, 128, v{vP+5}")
            a(f"buffer_load_dword v{vCnt}, v{vP+5}, s[{sDbg}:{sDbg+3}], 0 offen sc1")
            q.append("cnt")
    a("s_branch LA_lead")


vKA, vVA, vT0, vT1 = 1, 2, 3, 14
Qm = [4, 8]
Qe = 12
vL16 = 15
Km = [16, 20]
Ke = 24
Vb = [[28, 32], [36, 40]]
vVbase, vVflag, vE16, vVG = 44, 45, 46, 47
NM = 48
SB = [80, 112]
OA = [144, 160]
vD = 176
vP = 182
vPS = 188
vVB2 = 248
NVGPR = 256


def mfma32(d, a_, b, c):
    return f"v_mfma_f32_32x32x16_bf16 {vr(d,16)}, {vr(a_,4)}, {vr(b,4)}, {c}"


def mfma2b(d, ke_tile, c):
    return (f"v_mfma_f32_32x32x4_2b_bf16 {vr(d,32)}, {vr(Ke + 2 * (ke_tile >> 1), 2)}, {vr(Qe,2)}, {c}"
            f" cbsz:1 abid:{ke_tile & 1}")


def valu_stream(X, Y):
    def e(base, i): return f"v_exp_f32 v{base+i}, v{base+i}"
    def c(j):
        dst = X + 8 * (j // 4) + (j % 4)
        if 'cvt' in OPT:
            return f"v_cvt_pk_bf16_f32 v{dst}, v{X+2*j}, v{X+2*j+1}"
        return f"v_pack_b32_f16 v{dst}, v{X+2*j}, v{X+2*j+1} op_sel:[1,1,0]"
    out = [e(X, 1)]
    for j in range(16):
        out.append(e(X, 2 * j + 2) if j < 15 else e(Y, 0))
        out.append(c(j))
        if j < 15:
            out.append(e(X, 2 * j + 3))
    return out


def tile_iter(a, ii, half=1):
    par = ii & 1
    X, Y = SB[par], SB[par ^ 1]
    Vc, Vn = Vb[par], Vb[par ^ 1]
    Kc, Kn = Km[par ^ 1], Km[par]
    v = valu_stream(X, Y)
    t1 = (ii + 1) % 4
    t2 = (ii + 2) % 4
    kch = CH if (half == 0) == (ii >= 2) else 0
    ins = {}
    ins[2] = [mfma32(OA[1], Vn[1], Y + 24, vr(OA[1], 16)),
              f"ds_read_b128 {vr(Vn[0],4)}, v{vVA} offset:{t1 * 1280}"]
    ins[7] = [mfma2b(Y, t1, 0 if 'c0' in OPT else vr(NM, 32))]
    ins[17] = [mfma32(OA[0], Vc[0], X, vr(OA[0], 16)),
               f"ds_read_b128 {vr(Vn[1],4)}, v{vVA} offset:{t1 * 1280 + 640}"]
    ins[23] = [mfma32(Y, Kc, Qm[0], vr(Y, 16)),
               f"ds_read_b128 {vr(Kn,4)}, v{vKA} offset:{kch + 2048 + t2 * 1024}"]
    ins[29] = [mfma32(OA[0], Vc[1], X + 8, vr(OA[0], 16))]
    ins[35] = [mfma32(Y + 16, Kc, Qm[1], vr(Y + 16, 16))]
    ins[41] = [mfma32(OA[1], Vc[0], X + 16, vr(OA[1], 16)),
               "s_waitcnt lgkmcnt(0)"]
    if ii == 0:
        ins[29].append(f"s_add_u32 s{sNext}, s{sNext}, {CH}")
    if ii == 2:
        ins[29].append(f"ds_read2st64_b64 {vr(Ke,4)}, v{vKA} offset0:{kch // 512} offset1:{kch // 512 + 2}")
        ins[44] = [f"v_mad_u32_u24 v{vVA}, v{vVflag}, s{sNext}, v{vVbase}"]
    if half == 0:
        if ii == 1:
            ins[29].append(f"s_cmp_eq_u32 s{sM}, s{sRp}")
            ins[35] += ["s_cbranch_scc1 LR_step", "LA_bar:"]
        if ii == 2 and 'noprio' not in OPT:
            ins[35].append("s_setprio 0")
        if ii == 3:
            ins[29].append(f"s_bitcmp1_b32 s{sMend}, s{sM}")
            ins[35] += ["s_waitcnt vmcnt(0)", "s_barrier"]
            if common.STAMP and 'cyc' in OPT:
                ins[35] += ["s_memtime s[4:5]", f"s_mov_b32 m0, s{sM}", "s_waitcnt lgkmcnt(0)", f"s_movreld_b32 s{STAMP_S+8}, s4"]
            if 'noprio' not in OPT:
                ins[35].append("s_setprio 1")
            ins[35] += ["s_cbranch_scc1 LA_refill", "LA_back:"]
    else:
        if ii == 0:
            ins[35].append(f"s_cmp_eq_u32 s{sNext}, s{sRe}")
        if ii == 1:
            ins[29].append(f"s_cselect_b32 s{sNext}, s{sRb}, s{sNext}")
            ins[35].append(f"s_add_u32 s{sM}, s{sM}, 1")
            ins[44] = [f"v_add_u32 v{vKA}, s{sNext}, v{vL16}"]
        if ii == 3:
            ins[35].append(f"s_sub_u32 s{sRem}, s{sRem}, 1")
    for p, op in enumerate(v):
        for x in ins.get(p, []):
            a(x)
        a(op)


def rowmax(a, X, out0, out1):
    for base, o in ((X, out0), (X + 16, out1)):
        a(f"v_max3_f32 v{o}, v{base}, v{base+1}, v{base+2}")
        for r in range(3, 15, 2):
            a(f"v_max3_f32 v{o}, v{o}, v{base+r}, v{base+r+1}")
        a(f"v_max_f32 v{o}, v{o}, v{base+15}")


def cross_half_max(a, r, tmp):
    a(f"v_mov_b32 v{tmp}, v{r}\ns_nop 1\nv_permlane32_swap_b32 v{tmp}, v{r}\ns_nop 1\nv_max_f32 v{r}, v{r}, v{tmp}")


def fill_nm(a, m0, m1):
    for r in range(16):
        a(f"v_sub_f32 v{NM+r}, 0, v{m0}")
    for r in range(16):
        a(f"v_sub_f32 v{NM+16+r}, 0, v{m1}")


def attn_scalars(a):
    a.c("head offsets: main octs start at (5g+1)>>1; the ext quad shares an oct with the neighbouring head;")
    a.c("arrivals expected per kind: 16 token blocks x number of 64-column units that hold the head")
    a(f"""
    s_mul_i32 s{sOm}, s{sHead}, 5
    s_add_u32 s{sOm}, s{sOm}, 1
    s_lshr_b32 s{sOm}, s{sOm}, 1
    s_lshl_b32 s{sOm}, s{sOm}, 9
    s_and_b32 s{sT0}, s{sHead}, 1
    s_mov_b32 s{sT1}, 1024
    s_cselect_b32 s{sT1}, {(-512 + 8) & 0xffffffff}, s{sT1}
    s_add_u32 s{sExt}, s{sOm}, s{sT1}
    s_min_u32 s{sT0}, s{sOm}, s{sExt}
    s_add_u32 s{sT2}, s{sOm}, 512
    s_max_u32 s{sT1}, s{sExt}, s{sT2}
    s_lshr_b32 s{sT0}, s{sT0}, 12
    s_lshr_b32 s{sT1}, s{sT1}, 12
    s_cmp_eq_u32 s{sT0}, s{sT1}
    s_cselect_b32 s{sExp}, 16, 32
    """)


def attn_vectors(a):
    a(f"""
    s_and_b32 s{sT0}, s{sHead}, 1
    v_lshlrev_b32 v{vL16}, 4, v0
    v_lshrrev_b32 v{vT0}, 5, v0
    v_mul_u32_u24 v{vT1}, {TILE}, v{vT0}
    v_and_b32 v{vP}, 31, v0
    v_lshl_add_u32 v{vE16}, v{vP}, 4, v{vT1}
    """)
    a.c("V rows: 0..15 main dims, 16..19 ext dims, 20 and 24 ones, the others zero (address past the allocation)")
    a(f"""
    s_lshl_b32 s{sT0}, s{sT0}, 2
    v_and_b32 v{vP+1}, 3, v0
    v_and_b32 v{vP+2}, 4, v0
    v_lshl_add_u32 v{vP+1}, v{vP+2}, 1, v{vP+1}
    v_and_b32 v{vP+2}, 8, v0
    v_lshrrev_b32 v{vP+2}, 1, v{vP+2}
    v_add3_u32 v{vP+1}, v{vP+1}, v{vP+2}, s{sT0}
    s_lshl_b32 s{sT0}, s{sT0}, 2
    v_subrev_u32 v{vP+2}, s{sT0}, v{vP}
    v_cmp_gt_u32 vcc, 16, v{vP}
    v_mul_u32_u24 v{vT1}, 10240, v{vT0}
    v_mul_u32_u24 v{vT0}, 320, v{vT0}
    v_cndmask_b32 v{vP+1}, v{vP+2}, v{vP+1}, vcc
    v_lshlrev_b32 v{vP+1}, 4, v{vP+1}
    v_add_u32 v{vVG}, v{vP+1}, v{vT1}
    v_add_u32 v{vVbase}, v{vP+1}, v{vT0}
    v_add_u32 v{vVbase}, 6144, v{vVbase}
    v_cmp_gt_u32 vcc, 20, v{vP}
    v_mov_b32 v{vP+1}, 0x100000
    v_mov_b32 v{vP+2}, {ONES[0]}
    v_cndmask_b32 v{vVflag}, 0, 1, vcc
    v_cndmask_b32 v{vVbase}, v{vP+1}, v{vVbase}, vcc
    v_cmp_eq_u32 vcc, 20, v{vP}
    v_cmp_eq_u32 s[{sT3}:{sT4}], 24, v{vP}
    s_or_b64 vcc, vcc, s[{sT3}:{sT4}]
    v_mov_b32 v{vP+1}, {ONES[1]}
    s_nop 0
    v_cndmask_b32 v{vVB2}, v{vVbase}, v{vP+1}, vcc
    v_cndmask_b32 v{vVbase}, v{vVbase}, v{vP+2}, vcc
    """)
    a.c("DMA source offsets: even waves load K pieces, odd waves V pieces")
    a(f"""
    s_and_b32 s{sT0}, s{sJ}, 1
    s_cbranch_scc1 LA_dv
    v_add_u32 v{vD}, s{sExt}, v{vE16}
    v_add_u32 v{vD+1}, {2 * TILE}, v{vD}
    v_add_u32 v{vD+2}, s{sOm}, v{vL16}
    v_add_u32 v{vD+3}, {TILE}, v{vD+2}
    v_add_u32 v{vD+4}, {TILE}, v{vD+3}
    v_add_u32 v{vD+5}, {TILE}, v{vD+4}
    s_branch LA_dd
    LA_dv:
    s_mul_i32 s{sT0}, s{sHead}, 320
    s_add_u32 s{sT0}, s{sT0}, {IMG}
    """)
    for p in range(5):
        a(f"""
        v_add_u32 v{vP}, {64 * p}, v0
        v_mul_u32_u24 v{vP+1}, 3277, v{vP}
        v_lshrrev_b32 v{vP+1}, 16, v{vP+1}
        v_mul_u32_u24 v{vP+2}, 20, v{vP+1}
        v_sub_u32 v{vP+2}, v{vP}, v{vP+2}
        v_mul_u32_u24 v{vP+1}, 10240, v{vP+1}
        v_lshl_add_u32 v{vP+1}, v{vP+2}, 4, v{vP+1}
        v_add_u32 v{vD+p}, s{sT0}, v{vP+1}
        """)
    a(f"""
    v_mov_b32 v{vD+5}, v{vD+4}
    LA_dd:
    v_lshlrev_b32 v{vP+3}, 7, v0
    v_mov_b32 v{vP+4}, 0
    """)


def vectors_put(a):
    a(f"""
    s_and_b32 s{sT0}, s{sJ}, 1
    s_lshl_b32 s{sT0}, s{sT0}, 12
    s_add_u32 s{sT0}, s{sT0}, {XFER}
    v_add_u32 v{vT0}, s{sT0}, v{vL16}
    v_mov_b32 v20, v{vVB2}
    v_mov_b32 v21, v{vVflag}
    v_mov_b32 v22, v{vE16}
    v_mov_b32 v23, v{vVG}
    ds_write_b128 v{vT0}, v[20:23]
    ds_write_b128 v{vT0}, {vr(vD,4)} offset:1024
    ds_write_b64 v{vT0}, {vr(vD+4,2)} offset:2048
    """)


def vectors_get(a):
    lane_id(a, 0)
    a(f"""
    s_and_b32 s{sT0}, s{sJ}, 1
    s_lshl_b32 s{sT0}, s{sT0}, 12
    s_add_u32 s{sT0}, s{sT0}, {XFER}
    v_lshlrev_b32 v{vL16}, 4, v0
    v_add_u32 v{vT0}, s{sT0}, v{vL16}
    ds_read_b128 {vr(vVbase,4)}, v{vT0}
    ds_read_b128 {vr(vD,4)}, v{vT0} offset:1024
    ds_read_b64 {vr(vD+4,2)}, v{vT0} offset:2048
    v_lshlrev_b32 v{vP+3}, 7, v0
    """)
    attn_scalars(a)
    a("s_waitcnt lgkmcnt(0)")


def dma_sub(a):
    a(f"""
    LA_dma:
    s_add_u32 s{sT2}, s{sT1}, s{sQB if 'kvrot' in OPT else sHead}
    s_and_b32 s{sT2}, s{sT2}, 7
    s_lshl_b32 s{sT2}, s{sT2}, 1
    s_lshr_b32 s{sT3}, s{sJ}, 1
    s_add_u32 s{sT2}, s{sT2}, s{sT3}
    s_mul_i32 s{sT2}, s{sT2}, {4 * TILE}
    s_lshl_b32 s{sT4}, s{sJ}, 1
    s_and_b32 s{sT4}, s{sT4}, 2
    s_lshr_b32 s{sT4}, 20480, s{sT4}
    s_mul_i32 s{sT4}, s{sT4}, s{sT0}
    s_add_u32 s{sT2}, s{sT2}, s{sT4}
    s_add_u32 s{sT2}, s{sT2}, s{sImg}
    s_add_u32 s{sT2}, s{sT2}, {IMG}
    s_sub_u32 s{sT1}, s{sT1}, s{sT0}
    s_add_u32 s{sT1}, s{sT1}, 1
    s_mul_i32 s{sT4}, s{sT1}, 43
    s_lshr_b32 s{sT4}, s{sT4}, 7
    s_mul_i32 s{sT4}, s{sT4}, 3
    s_sub_u32 s{sT1}, s{sT1}, s{sT4}
    s_lshl_b32 s{sT1}, s{sT1}, 1
    s_add_u32 s{sT1}, s{sT1}, s{sT3}
    s_mul_i32 s{sT1}, s{sT1}, {CH}
    s_mul_i32 s{sT4}, s{sT0}, {RA - RB}
    s_sub_u32 s{sT1}, s{sT1}, s{sT4}
    s_add_u32 s{sT1}, s{sT1}, {RA}
    s_and_b32 s{sT3}, s{sJ}, 1
    s_mul_i32 s{sT4}, s{sT3}, 6144
    s_add_u32 m0, s{sT1}, s{sT4}
    s_nop 0
    """)
    for p in range(5):
        a(f"buffer_load_dwordx4 v{vD+p}, {WSR()}, s{sT2} offen sc1 lds")
        a("s_add_u32 m0, m0, 1024")
        a("s_nop 0" if p < 4 else f"s_cmp_eq_u32 s{sT3}, 1")
    a(f"""
    s_cbranch_scc1 LA_dma_ret
    buffer_load_dwordx4 v{vD+5}, {WSR()}, s{sT2} offen sc1 lds
    LA_dma_ret:
    s_setpc_b64 s[{sLnk}:{sLnk+1}]
    """)


def call_dma(a, b, blk):
    a(f"s_mov_b32 s{sT0}, {b}\ns_mov_b32 s{sT1}, {blk}\ns_call_b64 s[{sLnk}:{sLnk+1}], LA_dma")


def poll_f1(a):
    a(f"""
    s_lshl_b32 s{sT0}, s{sBr}, 5
    s_add_u32 s{sT0}, s{sT0}, s{sHead}
    s_lshl_b32 s{sT0}, s{sT0}, 9
    s_add_u32 s{sT0}, s{sT0}, {WS_C1}
    """)
    poll_counter(a, vP + 3, f"s{sT0}", f"s{sExp}", 7)


def load_q(a):
    a(f"""
    s_lshl_b32 s{sT0}, s{sQB}, 2
    s_add_u32 s{sT0}, s{sT0}, s{sJ}
    s_mul_i32 s{sT0}, s{sT0}, {2 * TILE}
    s_add_u32 s{sT0}, s{sT0}, s{sImg}
    s_add_u32 s{sT1}, s{sT0}, s{sOm}
    s_add_u32 s{sT2}, s{sT1}, {TILE}
    s_add_u32 s{sT0}, s{sT0}, s{sExt}
    buffer_load_dwordx4 {vr(Qm[0],4)}, v{vL16}, {WSR()}, s{sT1} offen sc1
    buffer_load_dwordx4 {vr(Qm[1],4)}, v{vL16}, {WSR()}, s{sT2} offen sc1
    buffer_load_dwordx2 {vr(Qe,2)}, v{vE16}, {WSR()}, s{sT0} offen sc1
    """)


def scale_q(a, nyounger):
    a(f"s_mov_b32 s4, {hex(f32bits(QSCALE))}\ns_mov_b32 s5, s4\ns_waitcnt vmcnt({nyounger})")
    for r in range(Qm[0], Qe + 2):
        a(f"""
        v_lshlrev_b32 v{vPS+2}, 16, v{r}
        v_and_b32 v{vPS+3}, 0xffff0000, v{r}
        v_pk_mul_f32 {vr(vPS+2,2)}, {vr(vPS+2,2)}, s[4:5]
        v_cvt_pk_bf16_f32 v{r}, v{vPS+2}, v{vPS+3}
        """)


def attn_zero(a):
    Z = Vb[1][1]
    for r in (Z, Z + 2, SB[1] + 24, SB[1] + 26):
        a(f"v_pk_mov_b32 {vr(r,2)}, 0, 0")
    a(f"v_mov_b32 v{vP}, 0xbf800000\nv_mov_b32 v{vP+1}, 0\nv_mov_b32 v{vPS+1}, 0")
    a(f"v_mfma_f32_32x32x4_2b_bf16 {vr(OA[0],32)}, {vr(Z,2)}, {vr(Z,2)}, 0")
    a(f"""
    s_add_u32 s{sRe}, s{sRb}, {RING}
    s_mov_b32 s{sRem}, 7
    v_add_u32 v{vKA}, s{sNext}, v{vL16}
    v_mad_u32_u24 v{vVA}, v{vVflag}, s{sNext}, v{vVbase}
    """)


DELAY_AT, DELAY = 0, 0


def delay(a, at):
    if DELAY_AT == at and DELAY:
        a(f"s_memrealtime s[4:5]\ns_waitcnt lgkmcnt(0)\ns_add_u32 s6, s4, {DELAY}\nLD_{at}:\ns_sleep 1\ns_memrealtime s[4:5]\ns_waitcnt lgkmcnt(0)\ns_cmp_lt_u32 s4, s6\ns_cbranch_scc1 LD_{at}")


def attention(a):
    X = SB[0]
    delay(a, 1)
    a("LA_start:")
    stamp_cyc(a, 24)
    a(f"""
    ds_read_b128 {vr(Km[0],4)}, v{vKA} offset:2048
    ds_read2st64_b64 {vr(Ke,4)}, v{vKA} offset0:0 offset1:2
    ds_read_b128 {vr(Km[1],4)}, v{vKA} offset:3072
    ds_read_b128 {vr(Vb[0][0],4)}, v{vVA}
    ds_read_b128 {vr(Vb[0][1],4)}, v{vVA} offset:640
    s_waitcnt lgkmcnt(4)
    """)
    a(mfma32(X, Km[0], Qm[0], 0))
    a(mfma32(X + 16, Km[0], Qm[1], 0))
    a("s_nop 8\ns_waitcnt lgkmcnt(3)")
    a(mfma2b(X, 0, vr(X, 32)))
    a("s_nop 15\ns_nop 3")
    a.c("softmax shift: row max over the first key tile, cut to bf16; the epilogue checks that it was safe.")
    a.c("A rank-1 MFMA (-1 x shift) subtracts it from the scores and spreads it over the C operand of the loop")
    rowmax(a, X, vT0, vT1)
    a(f"""
    s_nop 1
    v_permlane32_swap_b32 v{vT0}, v{vT1}
    s_nop 1
    v_max_f32 v{vT0}, v{vT0}, v{vT1}
    v_and_b32 v{vPS}, {0 if 'c0' in OPT else '0xffff0000'}, v{vT0}
    s_nop 1
    v_mfma_f32_32x32x4_2b_bf16 {vr(X,32)}, {vr(vP,2)}, {vr(vPS,2)}, {vr(X,32)}
    v_mfma_f32_32x32x4_2b_bf16 {vr(NM,32)}, {vr(vP,2)}, {vr(vPS,2)}, 0
    s_nop 15
    s_nop 1
    s_waitcnt lgkmcnt(0)
    v_exp_f32 v{X}, v{X}
    .p2align 6
    LA_loop:
    """)
    for half in range(2):
        for ii in range(4):
            tile_iter(a, ii, half)
    a("s_cbranch_scc0 LA_loop\ns_nop 0")
    a(mfma32(OA[1], Vb[1][1], SB[1] + 24, vr(OA[1], 16)))
    if 'alow' in OPT:
        a("s_setprio 0")
    a(f"s_cmp_eq_u32 s{sRole}, 0\ns_cbranch_scc1 LA_fin2\ns_setprio 2")
    a.c("announce that the results are about to be stored; readers then wait for the markers to disappear")
    count_in(a, sOc, vP, vP + 1)
    a("LA_fin2:")
    stamp(a, 4)
    stamp_cyc(a, 31)
    N = SB[0]
    rc = SB[1]
    tm = rc + 4

    def norm(u):
        O, P = OA[u], N + 12 * u
        for r in range(0, 12, 2):
            a(f"v_pk_mul_f32 {vr(P+r,2)}, {vr(O+r,2)}, {vr(rc+2*u,2)} op_sel_hi:[1,0]")
        for j in range(6):
            a(f"v_cvt_pk_bf16_f32 v{P+j}, v{P+2*j}, v{P+2*j+1}")
    a(f"""
    s_mov_b32 s{sRem}, 0
    LA_epi:
    v_cmp_lt_u32 vcc, 31, v0
    s_add_u32 s{sT0}, s{sOb}, s{sOm}
    s_add_u32 s{sT1}, s{sT0}, {TILE}
    v_cndmask_b32 v{vT0}, v{OA[0]+12}, v{OA[0]+8}, vcc
    v_rcp_f32 v{rc}, v{vT0}
    v_pk_add_f32 {vr(tm,2)}, {vr(OA[0],2)}, {vr(OA[0]+2,2)}
    """)
    a.c("safety check of the shift before anything is stored: row sums inside [2^-30, 2^30], finite accumulators")
    for r in range(4, 12, 2):
        a(f"v_pk_add_f32 {vr(tm,2)}, {vr(tm,2)}, {vr(OA[0]+r,2)}")
    norm(0)
    a(f"v_cndmask_b32 v{vT1}, v{OA[1]+12}, v{OA[1]+8}, vcc\nv_rcp_f32 v{rc+2}, v{vT1}")
    for r in range(0, 12, 2):
        a(f"v_pk_add_f32 {vr(tm,2)}, {vr(tm,2)}, {vr(OA[1]+r,2)}")
    a(f"""
    v_add_f32 v{tm}, v{tm}, v{tm+1}
    v_add_f32 v{tm+1}, v{vT0}, v{vT1}
    v_fma_f32 v{tm}, 0, v{tm}, v{tm+1}
    v_min_f32 v{tm+1}, v{vT0}, v{vT1}
    v_cmp_gt_f32 vcc, {hex(f32bits(2.0**30))}, v{tm}
    s_mov_b64 s[4:5], vcc
    v_cmp_lt_f32 vcc, {hex(f32bits(2.0**-30))}, v{tm+1}
    """)
    for j in range(4):
        a(f"v_min_u32 v{N+j}, -2, v{N+j}")
    a(f"""
    s_and_b64 s[4:5], s[4:5], vcc
    s_cmp_eq_u64 s[4:5], -1
    s_cselect_b32 s{sT3}, 1, s{sRem}
    s_cmp_eq_u32 s{sT3}, 0
    s_cbranch_scc1 LA_slow
    buffer_store_dwordx4 {vr(N,4)}, v{vL16}, {WSR()}, s{sT0} offen sc1
    """)
    norm(1)
    for j in range(4):
        a(f"v_min_u32 v{N+12+j}, -2, v{N+12+j}")
    a(f"""
    buffer_store_dwordx4 {vr(N+12,4)}, v{vL16}, {WSR()}, s{sT1} offen sc1
    v_permlane32_swap_b32 v{N+4}, v{N+16}
    v_permlane32_swap_b32 v{N+5}, v{N+17}
    s_add_u32 s{sT2}, s{sOb}, s{sExt}
    v_min_u32 v{N+4}, -2, v{N+4}
    v_min_u32 v{N+5}, -2, v{N+5}
    buffer_store_dwordx2 {vr(N+4,2)}, v{vE16}, {WSR()}, s{sT2} offen sc1
    """)


def o_base(a):
    a(f"""
    s_lshl_b32 s{sT0}, s{sQB}, 2
    s_add_u32 s{sT0}, s{sT0}, s{sJ}
    s_mul_i32 s{sOb}, s{sT0}, {2 * TILE}
    s_add_u32 s{sOb}, s{sOb}, s{sImg}
    s_add_u32 s{sOb}, s{sOb}, {3 * IMG}
    """)
    a(f"s_lshr_b32 s{sT1}, s{sHead}, 3\ns_max_u32 s{sT1}, s{sT1}, 1\ns_sub_u32 s{sT1}, s{sT1}, 1")
    c3_off(a, sOc, sT0, sT1)


def o_mark(a):
    o_base(a)
    a(f"""
    v_mov_b32 v16, -1
    v_mov_b32 v17, -1
    v_mov_b32 v18, -1
    v_mov_b32 v19, -1
    s_add_u32 s{sT0}, s{sOb}, s{sOm}
    s_add_u32 s{sT1}, s{sT0}, {TILE}
    s_add_u32 s{sT2}, s{sOb}, s{sExt}
    buffer_store_dwordx4 v[16:19], v{vL16}, {WSR()}, s{sT0} offen sc1
    buffer_store_dwordx4 v[16:19], v{vL16}, {WSR()}, s{sT1} offen sc1
    buffer_store_dwordx2 v[16:17], v{vE16}, {WSR()}, s{sT2} offen sc1
    """)


def refill(a):
    a.c("role-B waves refill both rings: after barrier m, A block m+2 and B block m-SK+2")
    a(f"""
    LA_refill:
    s_cmp_gt_u32 s{sM}, 5
    s_cbranch_scc1 LA_ev_b
    s_mov_b32 s{sT0}, 0
    s_add_u32 s{sT1}, s{sM}, 2
    s_call_b64 s[{sLnk}:{sLnk+1}], LA_dma
    LA_ev_b:
    s_sub_u32 s{sT1}, s{sM}, {SK - 2}
    s_cmp_lt_u32 s{sT1}, 3
    s_cbranch_scc1 LA_back
    s_mov_b32 s{sT0}, 1
    s_call_b64 s[{sLnk}:{sLnk+1}], LA_dma
    s_branch LA_back
    """)


def slow_path(a):
    X = SB[0]
    m0, m1, t0, t1 = SB[1], SB[1] + 1, SB[1] + 2, SB[1] + 3

    def kloads(t):
        a(f"buffer_load_dwordx4 {vr(Km[0],4)}, v{vL16}, {WSR()}, s{sT1} offen sc1")
        if t == 0:
            a(f"buffer_load_dwordx2 {vr(Ke,2)}, v{vE16}, {WSR()}, s{sT2} offen sc1")
            a(f"s_add_u32 s{sT2}, s{sT2}, {2 * TILE}")
        a(f"s_add_u32 s{sT1}, s{sT1}, {TILE}")

    def kbase():
        a(f"""
        s_add_u32 s{sT0}, s{sImg}, {IMG}
        s_add_u32 s{sT1}, s{sT0}, s{sOm}
        s_add_u32 s{sT2}, s{sT0}, s{sExt}
        s_mov_b32 s{sRem}, 0
        """)
    a(f"LA_slow:\nv_mov_b32 v{m0}, 0xff800000\nv_mov_b32 v{m1}, 0xff800000")
    kbase()
    a("LA_slow_max:")
    for t in range(2):
        kloads(t)
        a("s_waitcnt vmcnt(0)")
        a(mfma32(X, Km[0], Qm[0], 0))
        a(mfma32(X + 16, Km[0], Qm[1], 0))
        a("s_nop 9")
        a(mfma2b(X, t, vr(X, 32)))
        a("s_nop 15\ns_nop 3")
        rowmax(a, X, t0, t1)
        a(f"v_max_f32 v{m0}, v{m0}, v{t0}\nv_max_f32 v{m1}, v{m1}, v{t1}")
    a(f"s_add_u32 s{sRem}, s{sRem}, 1\ns_cmp_lt_u32 s{sRem}, 32\ns_cbranch_scc1 LA_slow_max")
    cross_half_max(a, m0, t0)
    cross_half_max(a, m1, t0)
    fill_nm(a, m0, m1)
    for r in range(32):
        a(f"v_mov_b32 v{OA[0]+r}, 0")
    for r in range(8):
        a(f"v_mov_b32 v{Vb[0][0]+r}, 0x3f803f80")
    kbase()
    a(f"""
    s_mul_i32 s{sT3}, s{sHead}, 320
    s_add_u32 s{sT3}, s{sT3}, s{sT0}
    s_add_u32 s{sT3}, s{sT3}, {IMG}
    LA_slow_pv:
    """)
    for t in range(2):
        kloads(t)
        a(f"""
        s_add_u32 s{sT4}, s{sT3}, 20480
        s_mov_b32 exec_lo, 0xfffff
        s_mov_b32 exec_hi, 0xfffff
        buffer_load_dwordx4 {vr(Vb[0][0],4)}, v{vVG}, {WSR()}, s{sT3} offen sc1
        buffer_load_dwordx4 {vr(Vb[0][1],4)}, v{vVG}, {WSR()}, s{sT4} offen sc1
        s_mov_b64 exec, -1
        s_add_u32 s{sT3}, s{sT3}, {TILE}
        s_waitcnt vmcnt(2)
        """)
        a(mfma32(X, Km[0], Qm[0], vr(NM, 16)))
        a(mfma32(X + 16, Km[0], Qm[1], vr(NM + 16, 16)))
        a("s_nop 9")
        a(mfma2b(X, t, vr(X, 32)))
        a("s_nop 15\ns_nop 3")
        for r in range(32):
            a(f"v_exp_f32 v{X+r}, v{X+r}")
        a("s_nop 0")
        for j in range(16):
            a(f"v_cvt_pk_bf16_f32 v{X + 8*(j//4) + j%4}, v{X+2*j}, v{X+2*j+1}")
        a("s_waitcnt vmcnt(0)\ns_nop 1")
        a(mfma32(OA[0], Vb[0][0], X, vr(OA[0], 16)))
        a(mfma32(OA[0], Vb[0][1], X + 8, vr(OA[0], 16)))
        a(mfma32(OA[1], Vb[0][0], X + 16, vr(OA[1], 16)))
        a(mfma32(OA[1], Vb[0][1], X + 24, vr(OA[1], 16)))
    a(f"""
    s_add_u32 s{sRem}, s{sRem}, 1
    s_cmp_lt_u32 s{sRem}, 32
    s_cbranch_scc1 LA_slow_pv
    s_nop 15
    s_mov_b32 s{sRem}, 1
    s_branch LA_epi
    """)


pWF = [16, 56]
pACC = 96
pACL = 196
pOF = 136
pWA, pOA = 2, 3


def c3_off(a, dst, t64, part):
    a(f"""
    s_lshl_b32 s{dst}, s{sBr}, 5
    s_add_u32 s{dst}, s{dst}, s{t64}
    s_mul_i32 s{dst}, s{dst}, 3
    s_add_u32 s{dst}, s{dst}, s{part}
    s_lshl_b32 s{dst}, s{dst}, 7
    s_add_u32 s{dst}, s{dst}, {WS_C3}
    """)


def wo_dma(a, k0, k1, lds0):
    _lbl[0] += 1
    L = f"LP_wd{_lbl[0]}"
    a(f"""
    s_and_b32 s{sT0}, s{sHead}, 3
    s_lshl_b32 s{sT1}, s{sBr}, 2
    s_add_u32 s{sT0}, s{sT0}, s{sT1}
    s_mul_i32 s{sT0}, s{sT0}, {WO_SLAB}
    s_lshl_b32 s{sT1}, s{sJ}, 10
    s_add_u32 s{sT0}, s{sT0}, s{sT1}
    s_add_u32 s{sT0}, s{sT0}, {WS_WO + 10240 * k0}
    s_add_u32 s{sT1}, s{sT1}, {lds0}
    {L}:
    s_mov_b32 m0, s{sT1}
    s_add_u32 s{sT1}, s{sT1}, 4096
    buffer_load_dwordx4 v{vL16}, {WSR()}, s{sT0} offen sc1 lds
    s_add_u32 s{sT0}, s{sT0}, 4096
    s_cmp_lt_u32 s{sT1}, {lds0 + 10240 * (k1 - k0)}
    s_cbranch_scc1 {L}
    """)


def o_addr(a):
    a(f"""
    s_lshl_b32 s{sT1}, s{sQB}, 2
    s_lshr_b32 s{sT2}, s{sHead}, 2
    s_add_u32 s{sT1}, s{sT1}, s{sT2}
    """)
    c3_off(a, sFc, sT1, sRole)
    a(f"""
    v_and_b32 v{vP+3}, 15, v0
    s_lshl_b32 s{sT1}, s{sT1}, 1
    s_lshr_b32 s{sT2}, s{sJ}, 1
    s_add_u32 s{sT1}, s{sT1}, s{sT2}
    s_mul_i32 s{sT1}, s{sT1}, {TILE}
    s_add_u32 s{sT1}, s{sT1}, s{sImg}
    s_and_b32 s{sT2}, s{sJ}, 1
    s_lshl_b32 s{sT2}, s{sT2}, 8
    s_add_u32 s{sT1}, s{sT1}, s{sT2}
    s_add_u32 s{sFo}, s{sT1}, {3 * IMG}
    v_lshrrev_b32 v{pOA}, 4, v0
    v_lshlrev_b32 v{pOA}, 9, v{pOA}
    v_lshl_add_u32 v{pOA}, v{vP+3}, 4, v{pOA}
    v_lshlrev_b32 v{vP+5}, 7, v0
    s_mov_b32 s{sF[0]}, s{sFo}
    s_add_u32 s{sF[1]}, s{sFo}, 10240
    """)


sF = [54, 55]


def o_load_sub(a, label, p0):
    a(f"{label}:\ns_mov_b32 s{sT1}, s{sF[p0 // 5]}")
    for i in range(5):
        a(f"buffer_load_dwordx4 {vr(pOF + 4*(p0 + i), 4)}, v{pOA}, {WSR()}, s{sT1} offen offset:{(i & 1) * 2048} sc1")
        if i & 1:
            a(f"s_add_u32 s{sT1}, s{sT1}, 4096")
    a(f"s_setpc_b64 s[{sLnk}:{sLnk+1}]")


def o_checked(a, label, p0, counted):
    a(f"s_mov_b32 s{sSpin}, {SPIN}\n{label}_chk:\nv_mov_b32 v{vPS}, 0\nv_mov_b32 v{vPS+1}, 0")
    for i in range(5):
        r = pOF + 4 * (p0 + i)
        if counted:
            a(f"s_waitcnt vmcnt({4 - i})")
        a(f"v_max3_u32 v{vPS}, v{vPS}, v{r}, v{r+1}\nv_max3_u32 v{vPS+1}, v{vPS+1}, v{r+2}, v{r+3}")
    a(f"""
    v_max_u32 v{vPS}, v{vPS}, v{vPS+1}
    v_cmp_eq_u32 vcc, -1, v{vPS}
    s_cbranch_vccz {label}_ok
    s_call_b64 s[{sLnk}:{sLnk+1}], {label}
    s_waitcnt vmcnt(0)
    s_sub_u32 s{sSpin}, s{sSpin}, 1
    s_cbranch_scc0 {label}_chk
    {label}_ok:
    """)


def peek(a, mask):
    a(f"""
    v_mov_b32 v{vPS+2}, 0
    s_mov_b64 exec, {mask}
    buffer_atomic_add v{vPS+2}, v{vP+5}, {WSR()}, s{sFc} offen sc0 sc1
    s_mov_b64 exec, -1
    """)


def ready_mask(a):
    a(f"v_cmp_le_u32 vcc, 8, v{vPS+2}\ns_and_b32 s{sPh}, vcc_lo, 3")


def order_sub(a):
    a(f"""
    LP_order:
    s_and_b32 s{sDone}, s{sPh}, 1
    s_xor_b32 s{sDone}, s{sDone}, 1
    s_mul_i32 s{sT0}, s{sDone}, 10240
    s_add_u32 s{sF[0]}, s{sFo}, s{sT0}
    s_sub_u32 s{sF[1]}, s{sFo}, s{sT0}
    s_add_u32 s{sF[1]}, s{sF[1]}, 10240
    """)


TAB = [8, 9, 10, 11, 12, 13, 14, 15, 52, 53]


def oproj_subs(a):
    def wreads(p):
        return [f"ds_read_b128 {vr(pWF[p & 1] + 4*c, 4)}, v{pWA} offset:{c * 1024}" for c in range(10)]
    a(f"LP_pro:\nv_add_u32 v{pWA}, s{TAB[0]}, v{vL16}")
    for r in wreads(0):
        a(r)
    a(f"s_setpc_b64 s[{sLnk}:{sLnk+1}]")
    for p in range(10):
        if p % 5 == 0:
            a("LP_lo:" if p else "LP_hi:")
        rd = wreads(p + 1) if p < 9 else []
        if rd:
            a(f"v_add_u32 v{pWA}, s{TAB[p + 1]}, v{vL16}")
        for c in range(10):
            A = (pACL if p >= 5 else pACC) + 4 * c
            a(f"s_waitcnt lgkmcnt({9 if rd else 9 - c})")
            a(f"v_mfma_f32_16x16x32_bf16 {vr(A,4)}, {vr(pOF + 4*p, 4)}, {vr(pWF[p & 1] + 4*c, 4)}, {vr(A,4)}")
            if rd:
                a(rd[c])
        if p % 5 == 4:
            a(f"s_setpc_b64 s[{sLnk}:{sLnk+1}]")


def set_tab(a, addrs):
    for r, x in zip(TAB, addrs):
        a(f"s_mov_b32 s{r}, {x}")


def out_addr(a):
    a.c("lane n = l & 15 holds columns 8n..8n+7 of a 128-column piece and 2n, 2n+1 of a 32-column piece (tokens 4*(l >> 4) + r);")
    a.c("odd column groups start with the narrow piece, so that the wide one covers whole 128-B lines")
    a(f"""
    s_lshl_b32 s{sT0}, s{sQB}, 2
    s_lshr_b32 s{sT1}, s{sHead}, 2
    s_add_u32 s{sT0}, s{sT0}, s{sT1}
    s_lshl_b32 s{sT0}, s{sT0}, 2
    s_add_u32 s{sT0}, s{sT0}, s{sJ}
    s_mul_i32 s{sT0}, s{sT0}, {16 * 2560}
    s_mul_i32 s{sT1}, s{sBr}, 1280
    s_add_u32 s{sT0}, s{sT0}, s{sT1}
    s_and_b32 s{sT1}, s{sHead}, 3
    s_mul_i32 s{sT1}, s{sT1}, 320
    s_add_u32 s{sXo}, s{sT0}, s{sT1}
    s_add_u32 s{sWo}, s{sXo}, {2 * 2560}
    v_lshrrev_b32 v4, 4, v0
    v_mul_u32_u24 v4, {4 * 2560}, v4
    v_and_b32 v6, 15, v0
    s_and_b32 s{sT0}, s{sHead}, 1
    s_cselect_b32 s{sT0}, 64, 0
    s_cselect_b32 s{sT1}, 0, 256
    v_lshl_add_u32 v5, v6, 2, v4
    v_lshl_add_u32 v4, v6, 4, v4
    v_add_u32 v4, s{sT0}, v4
    v_add_u32 v5, s{sT1}, v5
    """)


def out_store(a):
    OUTMOD = " nt" if 'outnt' in OPT else " sc1"
    for r in range(4):
        if r % 2 == 0:
            for c in range(10):
                a(f"v_pk_add_f32 {vr(pACC + 4*c + r, 2)}, {vr(pACC + 4*c + r, 2)}, {vr(pACL + 4*c + r, 2)}")
        P = 16 + 6 * r
        for j in range(5):
            a(f"v_cvt_pk_bf16_f32 v{P+j}, v{pACC + 8*j + r}, v{pACC + 8*j + 4 + r}")
        so = sXo if r < 2 else sWo
        a(f"buffer_store_dwordx4 {vr(P,4)}, v4, s[{sOut}:{sOut+3}], s{so} offen offset:{(r & 1) * 2560}{OUTMOD}")
        a(f"buffer_store_dword v{P+4}, v5, s[{sOut}:{sOut+3}], s{so} offen offset:{(r & 1) * 2560}{OUTMOD}")


rL, rT, rD, rX, rData = 194, 199, 201, 205, 208


def repack_setup(a):
    x = rX
    for i in range(5):
        a(f"""
        v_add_u32 v{x}, {64 * i}, v0
        v_mul_u32_u24 v{x+1}, 3277, v{x}
        v_lshrrev_b32 v{x+1}, 16, v{x+1}
        v_mul_u32_u24 v{x+2}, 20, v{x+1}
        v_sub_u32 v{x+2}, v{x}, v{x+2}
        v_mul_u32_u24 v{x+1}, 1280, v{x+1}
        v_lshl_add_u32 v{rL+i}, v{x+2}, 4, v{x+1}
        """)
    a(f"""
    v_and_b32 v{x}, 48, v0
    v_lshlrev_b32 v{x}, 4, v{x}
    v_add_u32 v{x}, {RPK}, v{x}
    v_and_b32 v{x+1}, 7, v0
    v_mul_u32_u24 v{x+1}, 1040, v{x+1}
    v_and_b32 v{x+2}, 8, v0
    v_lshl_add_u32 v{x+1}, v{x+2}, 1, v{x+1}
    v_add_u32 v{rD}, v{x}, v{x+1}
    v_and_b32 v{x+1}, 1, v0
    v_mul_u32_u24 v{x+1}, 1040, v{x+1}
    v_and_b32 v{x+2}, 14, v0
    v_lshl_add_u32 v{x+1}, v{x+2}, 3, v{x+1}
    v_add3_u32 v{rD+1}, v{x}, v{x+1}, 0
    v_lshrrev_b32 v{x}, 4, v0
    v_lshlrev_b32 v{x}, 3, v{x}
    v_lshrrev_b32 v{x+1}, 2, v0
    v_and_b32 v{x+1}, 3, v{x+1}
    v_add_u32 v{x}, v{x}, v{x+1}
    v_mul_u32_u24 v{x}, 320, v{x}
    v_and_b32 v{x+1}, 3, v0
    v_lshl_add_u32 v{x}, v{x+1}, 3, v{x}
    v_add_u32 v{x}, {RPK}, v{x}
    s_and_b32 s{sT0}, s2, 1
    s_cselect_b32 s{sT0}, 64, 0
    s_cselect_b32 s{sT1}, 0, 256
    v_add_u32 v{rT}, s{sT0}, v{x}
    v_add_u32 v{rT+1}, s{sT1}, v{x}
    v_add_u32 v{rX}, {RPK}, v{vL16}
    """)


def repack_steps(a):
    a(f"""
    LR_step:
    s_add_u32 s{sRp}, s{sRp}, 1
    s_lshr_b32 s{sT2}, s2, 3
    s_cmp_eq_u32 s{sM}, {RP_AT}
    s_cbranch_scc0 LR_s1
    s_mov_b32 s{sWt}, s{sPtr+2}
    s_and_b32 s{sWt+1}, s{sPtr+3}, 0xffff
    s_mov_b32 s{sWt+2}, {D * D * 2}
    s_mov_b32 s{sWt+3}, 0x00020000
    s_mul_i32 s{sT0}, s{sT2}, {32 * 1280}
    s_and_b32 s{sT1}, s2, 3
    s_mul_i32 s{sT1}, s{sT1}, 320
    s_add_u32 s{sT0}, s{sT0}, s{sT1}
    s_mov_b32 m0, {RPK}
    s_add_u32 s{sT1}, s{sT0}, {16 * 1280}
    """)
    for i in range(10):
        a(f"buffer_load_dwordx4 v{rL + i % 5}, s[{sWt}:{sWt+3}], s{sT1 if i >= 5 else sT0} offen lds")
        a("s_add_u32 m0, m0, 1024\ns_nop 0")
    a(f"""
    s_branch LA_bar
    LR_s1:
    s_cmp_eq_u32 s{sM}, {RP_AT + 1}
    s_cbranch_scc0 LR_s2
    s_and_b32 s{sT0}, s2, 7
    s_mul_i32 s{sT0}, s{sT0}, {WO_SLAB}
    s_mul_i32 s{sT2}, s{sT2}, 10240
    s_add_u32 s{sT0}, s{sT0}, s{sT2}
    s_add_u32 s{sT0}, s{sT0}, {WS_WO}
    """)
    for ct in range(10):
        for u in range(2):
            a(f"ds_read_b64_tr_b16 {vr(rData + 4*ct + 2*u, 2)}, v{rT + ct // 8} offset:{u*4*320 + (ct % 8)*32}")
        if ct == 4:
            a("s_waitcnt lgkmcnt(0)")
    a("s_waitcnt lgkmcnt(0)")
    for ct in range(10):
        a(f"ds_write_b128 v{rD + ct // 8}, {vr(rData + 4*ct, 4)} offset:{32 * ct if ct < 8 else 8 * 1040 + 128 * (ct - 8)}")
    a("s_waitcnt lgkmcnt(0)")
    for c in range(10):
        a(f"ds_read_b128 {vr(rData + 4*c, 4)}, v{rX} offset:{1040 * c}")
    for c in range(10):
        a(f"s_waitcnt lgkmcnt({9 - c})")
        a(f"buffer_store_dwordx4 {vr(rData + 4*c, 4)}, v{vL16}, {WSR()}, s{sT0} offen offset:{1024 * (c & 3)} sc1")
        if c & 3 == 3:
            a(f"s_add_u32 s{sT0}, s{sT0}, 4096")
    a(f"""
    s_branch LA_bar
    LR_s2:
    s_mov_b32 s{sRp}, -1
    s_and_b32 s{sT0}, s2, 7
    s_lshl_b32 s{sT0}, s{sT0}, 7
    s_add_u32 s{sT0}, s{sT0}, {WS_C4}
    """)
    count_in(a, sT0, vP, vP + 1)
    a("s_branch LA_bar")


def write_ones(a, role):
    a(f"""
    v_and_b32 v{vT0}, 7, v0
    v_mul_u32_u24 v{vT0}, 640, v{vT0}
    v_add_u32 v{vT0}, {ONES[role]}, v{vT0}
    v_mov_b32 v16, 0x3f803f80
    v_mov_b32 v17, 0x3f803f80
    v_mov_b32 v18, 0x3f803f80
    v_mov_b32 v19, 0x3f803f80
    ds_write_b128 v{vT0}, v[16:19]
    """)


sL = 8


def lead_prepare(a):
    a(f"""
    s_cmp_lt_u32 s2, 160
    s_cselect_b32 s{sT0}, s{sJ}, 0
    s_cmp_eq_u32 s{sT0}, 1
    s_cselect_b32 s{sRp}, {RP_AT}, -1
    s_mov_b32 s{sM}, 0
    s_mov_b32 s{sMend}, 0
    s_mov_b32 s{sRb}, {RA}
    s_mov_b32 s{sNext}, {RA + BLK}
    """)
    attn_zero(a)
    o_base(a)
    a(f"""
    s_sub_u32 s{sT0}, s{sOb}, {3 * IMG}
    s_add_u32 s{sL},  s{sT0}, s{sOm}
    s_add_u32 s{sL+1}, s{sL},  {TILE}
    s_add_u32 s{sL+2}, s{sT0}, s{sExt}
    s_lshr_b32 s{sT3}, s{sJ}, 1
    s_mul_i32 s{sT1}, s{sT3}, {4 * TILE}
    s_add_u32 s{sT1}, s{sT1}, s{sImg}
    s_add_u32 s{sT1}, s{sT1}, {IMG}
    s_and_b32 s{sL+4}, s{sQB if 'kvrot' in OPT else sHead}, 7
    s_mul_i32 s{sL+3}, s{sL+4}, {8 * TILE}
    s_add_u32 s{sL+3}, s{sL+3}, s{sT1}
    s_add_u32 s{sL+4}, s{sL+4}, 1
    s_and_b32 s{sL+4}, s{sL+4}, 7
    s_mul_i32 s{sL+4}, s{sL+4}, {8 * TILE}
    s_add_u32 s{sL+4}, s{sL+4}, s{sT1}
    s_mul_i32 s{sL+5}, s{sT3}, {CH}
    s_and_b32 s{sL+6}, s{sJ}, 1
    s_mul_i32 s{sT4}, s{sL+6}, 6144
    s_add_u32 s{sL+5}, s{sL+5}, s{sT4}
    s_add_u32 m0, s{sL+5}, {RA + BLK}
    """)
    a(f"""
    s_lshl_b32 s{sL+7}, s{sBr}, 5
    s_add_u32 s{sL+7}, s{sL+7}, s{sHead}
    s_lshl_b32 s{sL+7}, s{sL+7}, 9
    s_add_u32 s{sL+7}, s{sL+7}, {WS_C1}
    """)


def common_setup(a):
    a(f"""
    s_and_b32 s{sT0}, s2, 1
    s_lshl_b32 s{sT0}, s{sT0}, 3
    s_and_b32 s{sT1}, s2, 2
    s_lshl_b32 s{sT1}, s{sT1}, 1
    s_add_u32 s{sT0}, s{sT0}, s{sT1}
    s_lshr_b32 s{sT2}, s2, 6
    s_add_u32 s{sHead}, s{sT0}, s{sT2}
    s_lshr_b32 s{sQB}, s2, 3
    s_and_b32 s{sQB}, s{sQB}, 7
    s_lshl_b32 s{sT2}, s{sRole}, 4
    s_add_u32 s{sHead}, s{sHead}, s{sT2}
    s_mul_i32 s{sImg}, s{sBr}, {4 * IMG}
    s_mov_b32 s{sPh}, 0
    s_mov_b32 s{sWS+2}, {WS_STAMP + 2048 * 128 if common.STAMP else WS_END}
    s_mov_b32 s{sWS+3}, 0x00020000
    s_mov_b32 s{sOut+2}, {S * 2 * D * 2}
    s_mov_b32 s{sOut+3}, 0x00020000
    s_mov_b32 s{sDbg+2}, 256
    s_mov_b32 s{sDbg+3}, 0x00020000
    s_waitcnt lgkmcnt(0)
    s_mov_b32 s{sOut}, s{sPtr+4}
    s_and_b32 s{sOut+1}, s{sPtr+5}, 0xffff
    s_mov_b32 s{sDbg}, s{sPtr+6}
    s_and_b32 s{sDbg+1}, s{sPtr+7}, 0xffff
    s_add_u32 s{sWS}, s{sWS}, {WS_MB << 20}
    s_addc_u32 s{sWS+1}, s{sWS+1}, 0
    s_and_b32 s{sWS+1}, s{sWS+1}, 0xffff
    """)


def gen(a, label):
    kernel_head(a, label)
    a("s_cmp_ge_u32 s2, 256\ns_cbranch_scc1 LF_end")
    stamp(a, 0)
    a(f"""
    s_bfe_u32 s{sBr}, s2, 0x10002
    s_mul_i32 s{sT0}, s{sBr}, 24
    s_load_dwordx2 s[{sX}:{sX+1}], s[0:1], s{sT0}
    s_add_u32 s{sT1}, s{sT0}, 8
    s_load_dwordx4 s[{sPtr}:{sPtr+3}], s[0:1], s{sT1}
    s_load_dwordx4 s[{sPtr+4}:{sPtr+7}], s[0:1], 48
    s_load_dwordx2 s[{sWS}:{sWS+1}], s[0:1], 64
    v_lshrrev_b32 v1, 6, v0
    v_and_b32 v0, 63, v0
    v_readfirstlane_b32 s{sW}, v1
    s_and_b32 s{sT0}, s2, 3
    s_lshl_b32 s{sT0}, s{sT0}, 2
    s_bfe_u32 s{sT2}, s2, 0x20003
    s_add_u32 s{sTB}, s{sT0}, s{sT2}
    s_lshr_b32 s{sTI}, s2, 5
    """)
    if 'nocw' not in OPT:
        a.c("wave 7 pulls a quarter of the code into the L2, so that later instruction fetches find it there")
        a(f"""
        s_cmp_eq_u32 s{sW}, 7
        s_cbranch_scc0 LG_nocw
        s_getpc_b64 s[4:5]
        LG_pc:
        s_sub_u32 s4, s4, LG_pc-{label}
        s_subb_u32 s5, s5, 0
        s_lshl_b32 s{sT0}, s{sT2}, 13
        v_lshl_add_u32 v8, v0, 7, s{sT0}
        v_min_u32 v8, LF_codeend-{label}-4, v8
        global_load_dword v{gT+1}, v8, s[4:5]
        LG_nocw:
        """)
    a.c("phase-a units of tile ti: n = 2 ti + e, unit = n + 5 (n >= 5) + 5 (n >= 10)")
    a(f"""
    s_lshl_b32 s{sU0}, s{sTI}, 1
    s_cmp_ge_u32 s{sTI}, 5
    s_cselect_b32 s{sT0}, 10, 5
    s_cmp_ge_u32 s{sTI}, 3
    s_cselect_b32 s{sT0}, s{sT0}, 0
    s_add_u32 s{sU0}, s{sU0}, s{sT0}
    s_cmp_eq_u32 s{sTI}, 2
    s_cselect_b32 s{sT0}, 6, 1
    s_add_u32 s{sU1}, s{sU0}, s{sT0}
    s_and_b32 s{sJ}, s{sW}, 3
    s_lshr_b32 s{sRole}, s{sW}, 2
    s_cbranch_scc1 LG_start
    """)
    gemm_loader(a)
    a("LG_start:")
    common_setup(a)
    a.c("wave 4 clears counter lines id and id + 256")
    a(f"""
    s_cmp_eq_u32 s{sJ}, 0
    s_cbranch_scc0 LG_cleared
    s_lshl_b32 s{sT0}, s2, 7
    s_add_u32 s{sT0}, s{sT0}, {WS_C1}
    v_lshlrev_b32 v8, 15, v0
    v_mov_b32 v9, 0
    s_mov_b64 exec, 3
    buffer_store_dword v9, v8, {WSR()}, s{sT0} offen sc1
    s_mov_b64 exec, -1
    LG_cleared:
    """)
    gemm_compute(a)
    a("LG_done:")
    if PAIR_Q >= 160:
        a("s_barrier")
    stamp(a, 3)
    vectors_get(a)
    a.c("the last wave whose stores have drained publishes the tile")
    a(f"""
    v_mov_b32 v{vP}, {LCNT}
    v_mov_b32 v{vP+1}, 1
    s_waitcnt vmcnt(0)
    s_mov_b64 exec, 1
    ds_add_rtn_u32 v{vP+2}, v{vP}, v{vP+1}
    s_mov_b64 exec, -1
    s_waitcnt lgkmcnt(0)
    v_readfirstlane_b32 s{sT0}, v{vP+2}
    s_cmp_eq_u32 s{sT0}, 3
    s_cbranch_scc0 LG_nopub
    s_call_b64 s[{sLnk}:{sLnk+1}], LG_publish
    LG_nopub:
    """)
    stamp(a, 27)
    a("s_branch LB_lead")
    a("LG_idle:\ns_waitcnt lgkmcnt(0)\ns_barrier")
    drained(a)
    a("s_barrier\ns_barrier")
    vectors_get(a)
    stamp(a, 3)
    a("LB_lead:")
    if 'oldlead' not in OPT:
        a("s_setprio 0")
    call_dma(a, 0, 2)
    a("s_barrier")
    o_mark(a)
    a("s_nop 0")
    write_ones(a, 1)
    a(f"s_mov_b32 s{sM}, {SK}\ns_mov_b32 s{sMend}, {(1 << (SK + 5)) - 1}\ns_mov_b32 s{sRb}, {RB}\ns_mov_b32 s{sNext}, {RB}\ns_mov_b32 s{sRp}, -1")
    attn_zero(a)
    a("s_setprio 2\ns_waitcnt vmcnt(0)\ns_barrier")
    poll_f1(a)
    stamp(a, 26)
    load_q(a)
    call_dma(a, 1, 0)
    call_dma(a, 0, 3)
    if 'oldlead' in OPT:
        scale_q(a, 10)
    a("s_waitcnt vmcnt(0) lgkmcnt(0)\ns_barrier")
    call_dma(a, 1, 1)
    call_dma(a, 0, 4)
    call_dma(a, 1, 2)
    a("s_setprio 0" if 'noprio' in OPT else "s_setprio 1")
    if 'oldlead' not in OPT:
        scale_q(a, 63)
    stamp(a, 5)
    a("s_branch LA_start")
    a("LA_lead:")
    a("s_setprio 3")
    def small_writes():
        a(f"s_cmp_lt_u32 s{sJ}, 2\ns_cbranch_scc0 LA_sw1")
        vectors_put(a)
        a(f"s_branch LA_sw2\nLA_sw1:\nv_mov_b32 v{vP+2}, {LCNT}\ns_mov_b64 exec, 0xff\nds_write_b32 v{vP+2}, v{vP+1}")
        write_ones(a, 0)
        a("LA_sw2:")
    poll_counter(a, vP + 3, f"s{sL+7}", f"s{sExp}", 7, small_writes)
    stamp(a, 1)
    a(f"""
    buffer_load_dwordx4 {vr(Qm[0],4)}, v{vL16}, {WSR()}, s8 offen sc1
    buffer_load_dwordx4 {vr(Qm[1],4)}, v{vL16}, {WSR()}, s9 offen sc1
    buffer_load_dwordx2 {vr(Qe,2)}, v{vE16}, {WSR()}, s10 offen sc1
    """)
    for blk in range(2):
        for p in range(5):
            a(f"buffer_load_dwordx4 v{vD+p}, {WSR()}, s{11 + blk} offen sc1 lds")
            a("s_add_u32 m0, m0, 1024")
            a("s_nop 0" if p < 4 else "s_cmp_eq_u32 s14, 1")
        a(f"s_cbranch_scc1 LA_ld{blk}\nbuffer_load_dwordx4 v{vD+5}, {WSR()}, s{11 + blk} offen sc1 lds\nLA_ld{blk}:")
        if blk == 0:
            a(f"s_add_u32 m0, s13, {RA + 2 * BLK}\ns_nop 0")
    scale_q(a, 10)
    a("s_waitcnt vmcnt(5) lgkmcnt(0)\ns_barrier\ns_setprio 1")
    stamp(a, 3)
    attention(a)
    a(f"s_cmp_eq_u32 s{sRole}, 0\ns_cbranch_scc1 LP_a\ns_barrier")
    stamp(a, 6)
    a(f"s_branch {'LF_end' if 'astamp' in OPT else 'LP_end'}\nLP_a:\ns_waitcnt vmcnt(0)")
    count_in(a, sOc, vP, vP + 1)
    stamp(a, 6)
    a.c("role-A waves: first half of K while role B finishes, second half once it is published")
    a(f"""
    s_and_b32 s{sT0}, s{sHead}, 3
    s_lshl_b32 s{sT1}, s{sBr}, 2
    s_add_u32 s{sT0}, s{sT0}, s{sT1}
    s_lshl_b32 s{sT0}, s{sT0}, 7
    s_add_u32 s{sT0}, s{sT0}, {WS_C4}
    """)
    poll_counter(a, vP + 4, f"s{sT0}", 20, 1)
    a(f"v_pk_mov_b32 {vr(pACC + 32, 2)}, 0, 0")
    for r in range(34, 40, 2):
        a(f"v_pk_mov_b32 {vr(pACC + r, 2)}, 0, 0")
    for r in range(32, 40, 2):
        a(f"v_pk_mov_b32 {vr(pACL + r, 2)}, 0, 0")
    for A in (pACC, pACL):
        a(f"v_mfma_f32_32x32x4_2b_bf16 {vr(A,32)}, {vr(pACC + 32, 2)}, {vr(pACC + 32, 2)}, 0")
    G = lambda i: LDS_BYTES - (11 - i) * 10240
    Lo = lambda i: RB + i * 10240
    assert SK == 3 and G(0) >= RB + 2 * BLK and G(3) >= RB + RING and Lo(3) <= RB + BLK + CH
    call = lambda l: a(f"s_call_b64 s[{sLnk}:{sLnk+1}], {l}")
    o_addr(a)
    out_addr(a)
    a("s_setprio 0")
    stamp(a, 20)
    a("s_barrier")
    stamp(a, 21)
    call_dma(a, 1, 7)
    wo_dma(a, 0, 3, G(3))
    peek(a, 1)
    wo_dma(a, 3, 6, G(6))
    stamp(a, 22)
    a(f"s_waitcnt vmcnt(0)\nv_readfirstlane_b32 s{sT0}, v{vPS+2}\ns_cmp_ge_u32 s{sT0}, 16\ns_cbranch_scc1 LP_seen")
    poll_counter(a, vP + 4, f"s{sFc}", 16, 1)
    a("LP_seen:")
    call("LP_ldhi")
    call("LP_ldlo")
    a(f"s_add_u32 s{sFo}, s{sFo}, 20480\ns_add_u32 s{sFc}, s{sFc}, 128")
    stamp(a, 25)
    a("s_barrier")
    stamp(a, 5)
    set_tab(a, [G(3), G(4), G(5), G(6), G(7), G(8), G(9), G(10), G(0), G(1)])
    call("LP_pro")
    a("s_waitcnt vmcnt(0)")
    wo_dma(a, 6, 8, G(9))
    wo_dma(a, 8, 11, G(0))
    call("LP_hi")
    a("s_waitcnt vmcnt(0) lgkmcnt(0)")
    stamp(a, 26)
    a("s_barrier")
    stamp(a, 28)
    wo_dma(a, 11, 17, G(3))
    peek(a, 3)
    wo_dma(a, 17, 20, Lo(0))
    a("s_waitcnt vmcnt(7)")
    ready_mask(a)
    a("s_cbranch_scc0 LP_n1")
    call("LP_order")
    a("LP_n1:")
    stamp(a, 29)
    call("LP_lo")
    stamp(a, 10)
    a(f"s_waitcnt vmcnt(0)\ns_barrier\ns_cmp_lg_u32 s{sPh}, 0\ns_cbranch_scc1 LP_n2\ns_mov_b32 s{sSpin}, {SPIN}\nLP_any:")
    peek(a, 3)
    a("s_waitcnt vmcnt(0)")
    ready_mask(a)
    a(f"s_cbranch_scc1 LP_got\ns_sleep {SLEEP}\ns_sub_u32 s{sSpin}, s{sSpin}, 1\ns_cbranch_scc0 LP_any\nLP_got:")
    call("LP_order")
    a("LP_n2:")
    stamp(a, 30)
    T = [G(2), G(3), G(4), G(5), G(6), G(7), G(8), Lo(0), Lo(1), Lo(2)]
    a(f"s_cmp_eq_u32 s{sPh}, 3\ns_cbranch_scc0 LP_n3")
    call("LP_ldlo")
    a(f"LP_n3:\ns_cmp_eq_u32 s{sDone}, 1")
    for r, x, y in zip(TAB, T, T[5:] + T[:5]):
        a(f"s_mov_b32 s{r}, {x}\ns_cmov_b32 s{r}, {y}")
    call("LP_pro")
    a.c("each group keeps its own accumulators, so the result does not depend on the order of arrival")
    a("s_cbranch_scc0 LP_n4")
    for r in range(40):
        a(f"v_swap_b32 v{pACC + r}, v{pACL + r}")
    a("LP_n4:")
    a(f"s_waitcnt vmcnt(5)\ns_cmp_eq_u32 s{sPh}, 3\ns_cbranch_scc1 LP_n5\ns_waitcnt vmcnt(0)")
    peek(a, 3)
    a("LP_n5:")
    o_checked(a, "LP_ldhi", 0, False)
    stamp(a, 11)
    call("LP_hi")
    stamp(a, 12)
    a(f"s_cmp_eq_u32 s{sPh}, 3\ns_cbranch_scc1 LP_n6\ns_waitcnt vmcnt(0)")
    ready_mask(a)
    a(f"s_cmp_eq_u32 s{sPh}, 3\ns_cbranch_scc1 LP_n7")
    poll_counter(a, vP + 5, f"s{sFc}", 8, 3)
    a("LP_n7:")
    call("LP_ldlo")
    a("LP_n6:")
    o_checked(a, "LP_ldlo", 5, True)
    stamp(a, 2)
    if common.STAMP: a(f"s_mov_b32 s{STAMP_S+17}, s{sSpin}")
    call("LP_lo")
    stamp(a, 16)
    out_store(a)
    a("LP_end:")
    if common.STAMP:
        a("s_waitcnt vmcnt(0)")
        stamp(a, 7)
        stamp_flush(a, 4)
    a("LF_end:\ns_endpgm")
    dma_sub(a)
    refill(a)
    publish_sub(a)
    order_sub(a)
    o_load_sub(a, "LP_ldhi", 0)
    o_load_sub(a, "LP_ldlo", 5)
    oproj_subs(a)
    repack_steps(a)
    slow_path(a)
    a("LF_codeend:")


def build():
    a = Asm()
    label = NAME + "_kernel"
    a('.amdgcn_target "amdgcn-amd-amdhsa--gfx950"\n.text')
    gen(a, label)
    return (HEADER + f"; @launch grid=(256,1,1) block=(512,1,1) lds={LDS_BYTES}\n" + a.text()
            + '.section .rodata,"a"\n.p2align 6\n' + kernel_desc(label, NVGPR, NVGPR, 100))


if __name__ == "__main__":
    import sys
    for x in sys.argv[2:]:
        if '=' in x:
            k, v = x.split('='); globals()[k] = int(v)
        else:
            OPT.add(x)
    if 'dbgstamp' in OPT:
        common.STAMP = True
    out = sys.argv[1] if len(sys.argv) > 1 else f"cdna_kernels/{NAME}.s"
    open(out, "w").write(build())
```

```python
from common import Asm, vr, sr, f32bits, kernel_head, kernel_desc, QSCALE, S, D, HEADER, NAME
import common

OPT = set()
SK = 3

TILE = 40960
IMG = 64 * TILE
WS_WO = 8 * IMG
WO_SLAB = 204800
WO_HALF = WO_SLAB // 2
WS_C1 = WS_WO + 8 * WO_SLAB
WS_C3 = WS_C1 + 256 * 128
WS_C4 = WS_C3 + 192 * 128
WS_END = WS_C1 + 512 * 128
WS_STAMP = WS_END + 65536
WS_MB = 0

LDS_BYTES = 163840
GSL = 16384
CH = 11264
BLK = 2 * CH
RING = 3 * BLK
ONES = [90112, 0]
RB = 5120
RA = LDS_BYTES - RING
RPK = RB + RING
XFER = 81920
LCNT = 95232

sX, sWt, sWS, sOut, sDbg = 8, 12, 16, 20, 24
sPtr = 28
sW, sJ, sRole = 40, 41, 42
sHead, sQB, sTI, sTB = 43, 44, 45, 46
sT0, sT1, sT2, sT3, sT4 = 47, 48, 49, 50, 51
sIt, sSlot, sKB, sInc = 52, 53, 54, 55
sXo, sWo = 56, 57
sNext, sRb, sRe, sRem = 52, 53, 54, 55
sM, sMend = 56, 57
sOm, sExt = 58, 59
sSpin = 60
sBr = 61
sU0, sU1, sImg, sPh = 96, 97, 98, 99
sExp = 3
sDone = 36
sOb = 37
sOc = 97
sFo, sFc = 38, 39
sRp = 96
sE = 56
sLnk = 62
STAMP_S = 64

RP_AT = 4
TLB_KB = 1024
SPIN = 1 << 15
SLEEP = 2


NST = 32


def stamp(a, i):
    if common.STAMP:
        a(f"s_memrealtime s[4:5]\ns_waitcnt lgkmcnt(0)\ns_mov_b32 s{STAMP_S+i}, s4")


def stamp_cyc(a, i):
    if common.STAMP:
        a(f"s_memtime s[4:5]\ns_waitcnt lgkmcnt(0)\ns_mov_b32 s{STAMP_S+i}, s4")


def stamp_idx(a, base, sreg):
    if common.STAMP and 'cyc' in OPT:
        a(f"s_memtime s[4:5]\ns_mov_b32 m0, s{sreg}\ns_waitcnt lgkmcnt(0)\ns_movreld_b32 s{STAMP_S+base}, s4")


def stamp_flush(a, vt):
    if not common.STAMP:
        return
    a(f"""
    s_mov_b64 exec, 1
    s_lshl_b32 s{sT0}, s2, 3
    s_add_u32 s{sT0}, s{sT0}, s{sW}
    s_lshl_b32 s{sT0}, s{sT0}, 7
    s_add_u32 s{sT0}, s{sT0}, {WS_STAMP}
    v_mov_b32 v{vt+2}, 0
    """)
    for i in range(NST):
        a(f"v_mov_b32 v{vt}, s{STAMP_S+i}")
        a(f"buffer_store_dword v{vt}, v{vt+2}, s[{sWS}:{sWS+3}], s{sT0} offen offset:{4*i}")
    if 'dbgstamp' in OPT:
        a(f"s_cmp_eq_u32 s2, 100\ns_cbranch_scc0 LF_nodbg\ns_cmp_eq_u32 s{sJ}, 0\ns_cbranch_scc0 LF_nodbg\ns_lshl_b32 s{sT0}, s{sRole}, 5")
        for i in range(8):
            a(f"s_sub_u32 s{sT1}, s{STAMP_S+i}, s{STAMP_S}")
            a(f"v_mov_b32 v{vt}, s{sT1}")
            a(f"buffer_store_dword v{vt}, v{vt+2}, s[{sDbg}:{sDbg+3}], s{sT0} offen offset:{4*i}")
        a("LF_nodbg:")


def WSR():
    return f"s[{sWS}:{sWS+3}]"


_lbl = [0]


def poll(a, loads, expect, vtmp):
    _lbl[0] += 1
    L = f"LF_poll{_lbl[0]}"
    a(f"s_mov_b32 s{sSpin}, {SPIN}\n{L}:")
    for i, (vo, srd, so) in enumerate(loads):
        a(f"buffer_load_dword v{vtmp+i}, v{vo}, {srd}, {so} offen sc1")
    a("s_waitcnt vmcnt(0)")
    for i in range(1, len(loads)):
        a(f"v_min_u32 v{vtmp}, v{vtmp}, v{vtmp+i}")
    a(f"""
    v_cmp_gt_u32 vcc, {expect}, v{vtmp}
    s_cbranch_vccz {L}_ok
    s_sleep {SLEEP}
    s_sub_u32 s{sSpin}, s{sSpin}, 1
    s_cbranch_scc0 {L}
    {L}_ok:
    """)


def poll_counter(a, vo, so, expect, mask, meanwhile=None):
    _lbl[0] += 1
    L = f"LF_pc{_lbl[0]}"
    rd = (f"v_mov_b32 v{vPS}, 0\nbuffer_atomic_add v{vPS}, v{vo}, {WSR()}, {so} offen sc0 sc1" if 'ldpoll' not in OPT else
          f"buffer_load_dword v{vPS}, v{vo}, {WSR()}, {so} offen sc1")
    a(f"s_mov_b32 s{sSpin}, {SPIN}\ns_mov_b64 exec, {mask}")
    if meanwhile:
        a(f"{rd}\ns_mov_b64 exec, -1")
        meanwhile()
        a(f"s_mov_b64 exec, {mask}\ns_branch {L}_w")
    a(f"""
    {L}:
    {rd}
    {L}_w:
    s_waitcnt vmcnt(0)
    v_cmp_gt_u32 vcc, {expect}, v{vPS}
    s_cbranch_vccz {L}_ok
    s_sleep {SLEEP}
    s_sub_u32 s{sSpin}, s{sSpin}, 1
    s_cbranch_scc0 {L}
    {L}_ok:
    s_mov_b64 exec, -1
    """)


def count_in(a, soff, vz, vd):
    a(f"""
    v_mov_b32 v{vz}, 0
    v_mov_b32 v{vd}, 1
    s_mov_b64 exec, 1
    buffer_atomic_add v{vd}, v{vz}, {WSR()}, s{soff} offen sc1
    s_mov_b64 exec, -1
    """)


gXF = 0
gWF = 160
gWA = [184, 185, 186, 187]
gXA = 188
gT = 189
gACC = 192


PUB_BAR = 12
LAST_BAR = 16
PAIR_Q = 155
HIGH_Q = 144
NFIRST = 5
MAXISS = 3
FAST_BAR = 7
PF_BAR = 3
ROT = 4


def stage_barriers():
    return list(range(0, 12)) + [LAST_BAR]


def gemm_schedule():
    items = [x for n in range(10) for x in (("X", n), ("W", n))] + [("W", n) for n in range(10, 20)]
    rel = lambda it: it[1] + (1 if it[0] == "X" else 2)
    free = list(range(10))
    slot, when, freed = {}, {}, set()
    k = 0
    for bar in range(-1, 12):
        for it in items:
            if it in slot and it not in freed and rel(it) <= bar:
                free.append(slot[it])
                freed.add(it)
        n = 0
        while k < len(items) and free and n < (NFIRST if bar == -1 else 10 if bar == 11 else MAXISS if bar >= FAST_BAR else 2) and bar != 10:
            slot[items[k]] = free.pop(0)
            when[items[k]] = bar
            k += 1
            n += 1
    assert k == len(items) and when[("W", LAST_BAR - 1)] <= 9 and when[("W", 17)] == 11
    assert max(rel(it) for it in items[:-3] if slot[it] == slot[("W", 17)]) <= 10
    order = [slot[("W", n)] for n in (15, 16, 17, 18, 19, 13, 14, 10, 11, 12)]
    assert sorted(order) == list(range(10)), order
    slot = {it: order.index(v) for it, v in slot.items()}
    return items, slot, when


LCNT0 = 2 * GSL


def lane_id(a, v):
    a(f"v_mbcnt_lo_u32_b32 v{v}, -1, 0\nv_mbcnt_hi_u32_b32 v{v}, -1, v{v}")


def drained(a):
    a(f"s_waitcnt vmcnt(0)\ns_mov_b64 exec, 1\nds_add_u32 v{gT+1}, v{gT+2}\ns_mov_b64 exec, -1\ns_mov_b32 s{sDone}, 1")


def gemm_body(a, vtype):
    L = "LG_v" if vtype else "LG_q"
    items, slot, when = gemm_schedule()

    def kc(q):
        return ((q & 3, (q >> 2) & 3) if q >= 144 else ((q >> 2) & 3, q & 3))

    def wreads(q):
        ks, c = kc(q)
        d = gWF + 4 * (q % 6)
        return [f"ds_read_b64_tr_b16 {vr(d + 2*u, 2)}, v{gWA[c]} offset:{ks*4096 + u*1024}" for u in range(2)]

    def xreads(n, between=""):
        for ks in range(4):
            d = gXF + 4 * (4 * n + ks)
            a(f"v_xor_b32 v{d}, {32 * ks}, v{gXA}")
        a(between)
        for ks in range(4):
            d = gXF + 4 * (4 * n + ks)
            a(f"ds_read_b128 {vr(d,4)}, v{d}")

    def pack(c):
        out = []
        A = gACC + 16 * c
        out += [f"v_cvt_pk_bf16_f32 v{gACC + 8*c + j}, v{A+2*j}, v{A+2*j+1}" for j in range(8)]
        return out

    def stores(c):
        out = []
        for i in range(2):
            d = vr(gACC + 8*c + 4*i, 4)
            if vtype:
                out.append(f"buffer_store_dwordx4 {d}, v{gT}, {WSR()}, s{sE + i} offen offset:{c * 512} sc1")
            else:
                out.append(f"buffer_store_dwordx4 {d}, v{gT}, {WSR()}, s{sE + (c >> 1)} offen offset:{(c & 1) * 2048 + i * 1024} sc1")
        return out

    a("s_barrier")
    a.c("this workgroup has cleared its share of the counters: count it in")
    a(f"""
    s_cmp_eq_u32 s{sW}, 4
    s_cbranch_scc0 {L}_nocount
    s_and_b32 s{sT0}, s2, 31
    s_lshl_b32 s{sT0}, s{sT0}, 2
    s_add_u32 s{sT0}, s{sT0}, 128
    v_mov_b32 v{gT+1}, 0
    v_mov_b32 v{gT+2}, 1
    s_mov_b64 exec, 1
    buffer_atomic_add v{gT+2}, v{gT+1}, s[{sDbg}:{sDbg+3}], s{sT0} offen sc1
    s_mov_b64 exec, -1
    {L}_nocount:
    v_mov_b32 v{gT+1}, {LCNT0}
    v_mov_b32 v{gT+2}, 1
    s_mov_b32 s{sDone}, 1
    """)
    stamp(a, 1)
    xreads(0)
    for q in range(6):
        for r in wreads(q):
            a(r)
    a(f"{L}_body:")
    for q in range(160):
        n = q >> 4
        ks, c = kc(q)
        if q <= 154:
            a(f"s_waitcnt lgkmcnt({2 * (min(q + 5, 159) - q)})")
        elif q == 155:
            a("s_waitcnt lgkmcnt(0)")
        x, w = vr(gXF + 4 * (4 * n + ks), 4), vr(gWF + 4 * (q % 6), 4)
        A, B = (x, w) if vtype else (w, x)
        d = vr(gACC + 16 * c, 16)
        a(f"v_mfma_f32_32x32x16_bf16 {d}, {A}, {B}, {'0' if q < 4 else d}")
        r16 = q & 15
        if r16 == 10:
            if n + 11 in stage_barriers():
                a("s_barrier")
            a(f"s_cbranch_scc0 {L}_xa{n}\n{L}_xb{n}:")
        if q + 6 < 160:
            for r in wreads(q + 6):
                a(r)
        if PUB_BAR <= n + 11 <= LAST_BAR:
            if r16 == 0:
                a.c("phase b: report once that this wave's stores have drained")
                a(f"s_getreg_b32 s{sT0}, hwreg(HW_REG_IB_STS, 0, 4)" if n + 11 < LAST_BAR else f"s_mov_b32 s{sT0}, 0")
            if r16 == 1:
                a(f"s_or_b32 s{sT0}, s{sT0}, s{sDone}")
            if r16 == 2:
                a(f"s_cbranch_scc0 {L}_da{n}\n{L}_db{n}:")
        if r16 == 3:
            a(f"s_cmp_eq_u32 s{sPh}, 1")
        if r16 == 4:
            a(f"s_mov_b32 s{sInc}, {((slot[('W', n + 1)] - slot[('W', n)]) * GSL) & 0xffffffff}")
        if r16 == 5 and n < 9:
            a(f"s_cmov_b32 s{sInc}, {((slot[('W', n + 11)] - slot[('W', n + 10)]) * GSL) & 0xffffffff}")
        if 6 <= r16 <= 9:
            a(f"v_add_u32 v{gWA[r16 - 6]}, s{sInc}, v{gWA[r16 - 6]}")
        if q == HIGH_Q:
            a("s_setprio 2")
        if q == PAIR_Q:
            low = "s_setprio 0\n" if PAIR_Q < HIGH_Q else ""
            a(f"s_cbranch_scc0 {L}_np\ns_barrier\n{low}{L}_np:")
        if q in (150, 154):
            for x in pack((q - 150) // 4):
                a(x)
        if q in (151, 155):
            for x in stores((q - 151) // 4):
                a(x)
        if q == 156:
            a("s_nop 7")
        if q == 158:
            for x in pack(2):
                a(x)
    for x in stores(2):
        a(x)
    a(f"s_cbranch_scc1 {L}_nopre")
    for q in range(6):
        for r in wreads(q):
            a(r)
    a(f"{L}_nopre:\ns_nop 9")
    for x in pack(3) + stores(3):
        a(x)
    a(f"s_cbranch_scc1 LG_done")
    stamp(a, 2)
    next_units(a)
    step = 6 * 1024 if vtype else 5 * 4096
    a(f"s_add_u32 s{sE}, s{sE}, {step}\ns_add_u32 s{sE+1}, s{sE+1}, {step}\ns_mov_b32 s{sDone}, 0")
    if vtype:
        a(f"s_cmp_eq_u32 s{sTI}, 7\ns_cbranch_scc1 LG_idle")
    a(f"s_branch {L}_body")
    for n in range(10):
        a(f"{L}_xa{n}:")
        if n + 1 < 10:
            dx = (slot[("X", n + 1)] - slot[("X", n)]) * GSL
            a(f"v_add_u32 v{gXA}, {dx & 0xffffffff}, v{gXA}")
            xreads(n + 1, "" if n + 11 in stage_barriers() else "s_barrier")
        else:
            a("s_barrier")
        a(f"s_branch {L}_xb{n}")
    for n in range(PUB_BAR - 11, LAST_BAR - 10):
        a(f"{L}_da{n}:")
        drained(a)
        a(f"s_branch {L}_db{n}")


def next_units(a):
    a(f"""
    s_mov_b32 s{sPh}, 1
    s_cmp_ge_u32 s{sTI}, 5
    s_cselect_b32 s{sT0}, 6, 5
    s_add_u32 s{sU0}, s{sU0}, s{sT0}
    s_add_u32 s{sU1}, s{sU1}, s{sT0}
    """)


def publish_sub(a):
    t = vPS
    a(f"""
    LG_publish:
    v_cmp_lt_u32 vcc, 31, v0
    v_mov_b32 v{t+3}, s{sU0}
    v_mov_b32 v{t+4}, s{sU1}
    v_cndmask_b32 v{t+3}, v{t+3}, v{t+4}, vcc
    v_mul_u32_u24 v{t+4}, 205, v{t+3}
    v_lshrrev_b32 v{t+4}, 11, v{t+4}
    v_mul_u32_u24 v{t+5}, 10, v{t+4}
    v_sub_u32 v{t+3}, v{t+3}, v{t+5}
    v_lshlrev_b32 v{t+3}, 3, v{t+3}
    v_and_b32 v{t+5}, 31, v0
    v_lshl_add_u32 v{t+4}, v{t+5}, 2, v{t+4}
    v_lshlrev_b32 v{t+4}, 7, v{t+4}
    v_mul_u32_u24 v{t+5}, 5, v{t+5}
    v_lshrrev_b32 v{t+5}, 1, v{t+5}
    v_add_u32 v{t+5}, 2, v{t+5}
    v_sub_u32 v{t+5}, v{t+5}, v{t+3}
    v_cmp_gt_u32 vcc, 10, v{t+5}
    v_mov_b32 v{t+1}, 1
    s_lshl_b32 s{sT1}, s{sBr}, 14
    s_add_u32 s{sT1}, s{sT1}, {WS_C1}
    s_mov_b64 exec, vcc
    buffer_atomic_add v{t+1}, v{t+4}, {WSR()}, s{sT1} offen sc1
    s_mov_b64 exec, -1
    s_setpc_b64 s[{sLnk}:{sLnk+1}]
    """)


def gemm_compute(a):
    items, slot, when = gemm_schedule()
    t0, t1, t2 = 8, 9, 10
    a(f"""
    v_and_b32 v{t0}, 31, v0
    v_lshrrev_b32 v{t1}, 5, v0
    v_lshrrev_b32 v{t2}, 1, v{t0}
    v_and_b32 v{t2}, 7, v{t2}
    v_xor_b32 v{t2}, v{t2}, v{t1}
    v_lshlrev_b32 v{t2}, 4, v{t2}
    v_lshlrev_b32 v{t0}, 7, v{t0}
    v_add_u32 v{t2}, v{t2}, v{t0}
    s_lshl_b32 s{sT0}, s{sJ}, 12
    s_add_u32 s{sT0}, s{sT0}, {slot[("X", 0)] * GSL}
    v_add_u32 v{gXA}, s{sT0}, v{t2}
    v_lshrrev_b32 v{t0}, 2, v0
    v_and_b32 v{t0}, 3, v{t0}
    v_lshlrev_b32 v{t2}, 3, v{t1}
    v_add_u32 v{t2}, v{t2}, v{t0}
    v_lshlrev_b32 v{t2}, 8, v{t2}
    v_lshlrev_b32 v{t0}, 6, v{t0}
    v_add_u32 v{t2}, v{t2}, v{t0}
    v_and_b32 v{t0}, 16, v0
    v_lshlrev_b32 v{t0}, 1, v{t0}
    v_add_u32 v{t2}, v{t2}, v{t0}
    v_add_u32 v{t2}, {slot[("W", 0)] * GSL}, v{t2}
    v_and_b32 v{t0}, 1, v0
    v_and_b32 v{t1}, 2, v0
    s_cmp_ge_u32 s{sTI}, 5
    s_cselect_b32 s{sT0}, 3, 4
    s_cselect_b32 s{sT1}, 3, 2
    v_lshlrev_b32 v{t0}, s{sT0}, v{t0}
    v_lshlrev_b32 v{t1}, s{sT1}, v{t1}
    v_add3_u32 v{gWA[0]}, v{t2}, v{t0}, v{t1}
    v_xor_b32 v{gWA[1]}, 64, v{gWA[0]}
    v_xor_b32 v{gWA[2]}, 128, v{gWA[0]}
    v_xor_b32 v{gWA[3]}, 192, v{gWA[0]}
    s_lshl_b32 s{sT0}, s{sTB}, 2
    s_add_u32 s{sT0}, s{sT0}, s{sJ}
    s_mul_i32 s{sT0}, s{sT0}, {TILE}
    s_add_u32 s{sT0}, s{sT0}, s{sImg}
    v_lshlrev_b32 v{gT}, 4, v0
    s_waitcnt vmcnt(0) lgkmcnt(0)
    s_cmp_ge_u32 s{sTI}, 5
    s_cbranch_scc1 LG_vtype
    s_lshl_b32 s{sE}, s{sU0}, 12
    s_lshl_b32 s{sE+1}, s{sU1}, 12
    s_cmp_ge_u32 s{sU0}, 10
    s_cselect_b32 s{sT3}, {IMG - 40960}, 0
    s_add_u32 s{sE}, s{sE}, s{sT3}
    s_cmp_ge_u32 s{sU1}, 10
    s_cselect_b32 s{sT3}, {IMG - 40960}, 0
    s_add_u32 s{sE+1}, s{sE+1}, s{sT3}
    s_add_u32 s{sE}, s{sE}, s{sT0}
    s_add_u32 s{sE+1}, s{sE+1}, s{sT0}
    """)
    gemm_body(a, False)
    a(f"""
    LG_vtype:
    s_lshl_b32 s{sE}, s{sU0}, 10
    s_add_u32 s{sE}, s{sE}, {2 * IMG - 20480}
    s_add_u32 s{sE}, s{sE}, s{sT0}
    s_add_u32 s{sE+1}, s{sE}, 20480
    v_lshrrev_b32 v8, 5, v0
    v_mul_u32_u24 v8, 10240 - 512, v8
    v_add_u32 v{gT}, v{gT}, v8
    """)
    gemm_body(a, True)


def gemm_loader(a):
    items, slot, when = gemm_schedule()
    vE, vO, vWs, vCnt = 230, 231, 232, 233
    sKX, sKW = sKB, sSlot
    a(f"""
    v_lshrrev_b32 v5, 3, v0
    v_mul_u32_u24 v5, 1280, v5
    v_and_b32 v6, 7, v0
    v_lshrrev_b32 v7, 4, v0
    v_xor_b32 v6, v6, v7
    v_lshlrev_b32 v6, 4, v6
    v_add_u32 v{vE}, v5, v6
    v_xor_b32 v6, 64, v6
    v_add_u32 v{vO}, v5, v6
    v_add_u32 v{vO}, {8 * 1280 - 1024}, v{vO}
    v_lshrrev_b32 v5, 2, v0
    v_and_b32 v5, 3, v5
    v_xor_b32 v5, v5, v7
    v_lshrrev_b32 v6, 1, v5
    s_sub_u32 s{sT0}, s{sU1}, s{sU0}
    s_lshl_b32 s{sT0}, s{sT0}, 7
    v_mul_u32_u24 v6, s{sT0}, v6
    v_and_b32 v5, 1, v5
    v_lshl_add_u32 v5, v5, 6, v6
    v_and_b32 v6, 3, v0
    v_lshl_add_u32 v5, v6, 4, v5
    v_mul_u32_u24 v6, 3840, v7
    v_add_u32 v{vWs}, v5, v6
    s_lshl_b32 s{sXo}, s{sTB}, 2
    s_add_u32 s{sXo}, s{sXo}, s{sJ}
    s_mul_i32 s{sXo}, s{sXo}, {32 * 1280}
    s_mul_i32 s{sWo}, s{sJ}, {16 * 3840}
    s_lshl_b32 s{sT0}, s{sU0}, 7
    s_add_u32 s{sWo}, s{sWo}, s{sT0}
    s_lshl_b32 s{sInc}, s{sJ}, 12
    """)
    a.c("workgroups that share a tile start at different k-blocks, so that they fill the L2 together")
    if ROT == 2:
        a(f"s_xor_b32 s{sKX}, s{sTB}, s{sTI}\ns_and_b32 s{sKX}, s{sKX}, 1\ns_mul_i32 s{sKX}, s{sKX}, 5")
    elif ROT == 3:
        a(f"""
        s_and_b32 s{sKX}, s{sTB}, 3
        s_add_u32 s{sKX}, s{sKX}, s{sTI}
        s_mul_i32 s{sT0}, s{sKX}, 43
        s_lshr_b32 s{sT0}, s{sT0}, 7
        s_mul_i32 s{sT0}, s{sT0}, 3
        s_sub_u32 s{sKX}, s{sKX}, s{sT0}
        s_mul_i32 s{sKX}, s{sKX}, 7
        s_lshr_b32 s{sKX}, s{sKX}, 1
        """)
    elif ROT == 4:
        a(f"""
        s_add_u32 s{sKX}, s{sTB}, s{sTI}
        s_and_b32 s{sKX}, s{sKX}, 3
        s_mul_i32 s{sKX}, s{sKX}, 5
        s_add_u32 s{sKX}, s{sKX}, 1
        s_lshr_b32 s{sKX}, s{sKX}, 1
        """)
    elif ROT:
        a(f"""
        s_and_b32 s{sKX}, s{sTB}, 3
        s_mul_i32 s{sKX}, s{sKX}, 5
        s_add_u32 s{sKX}, s{sKX}, 1
        s_lshr_b32 s{sKX}, s{sKX}, 1
        s_add_u32 s{sKX}, s{sKX}, s{sTI}
        s_cmp_ge_u32 s{sKX}, 10
        s_cselect_b32 s{sT0}, 10, 0
        s_sub_u32 s{sKX}, s{sKX}, s{sT0}
        """)
    else:
        a(f"s_and_b32 s{sKX}, s{sTI}, 1")
    a(f"s_mov_b32 s{sKW}, s{sKX}\ns_mov_b32 s{sIt}, 0")
    a(f"""
    s_mov_b32 s{sX+2}, {S * D * 2}
    s_mov_b32 s{sX+3}, 0x00020000
    s_mov_b32 s{sWt+2}, {D * 3 * D * 2}
    s_mov_b32 s{sWt+3}, 0x00020000
    s_waitcnt lgkmcnt(0)
    s_and_b32 s{sX+1}, s{sX+1}, 0xffff
    s_mov_b32 s{sWt}, s{sPtr}
    s_and_b32 s{sWt+1}, s{sPtr+1}, 0xffff
    s_branch LL_go
    """)
    a(f"""
    LL_X:
    s_lshl_b32 s{sT0}, s{sKX}, 7
    s_add_u32 s{sT0}, s{sT0}, s{sXo}
    s_add_u32 s{sKX}, s{sKX}, 1
    buffer_load_dwordx4 v{vE}, s[{sX}:{sX+3}], s{sT0} offen lds
    buffer_load_dwordx4 v{vO}, s[{sX}:{sX+3}], s{sT0} offen offset:1024 lds
    s_add_u32 m0, m0, 2048
    s_add_u32 s{sT0}, s{sT0}, {16 * 1280}
    buffer_load_dwordx4 v{vE}, s[{sX}:{sX+3}], s{sT0} offen lds
    buffer_load_dwordx4 v{vO}, s[{sX}:{sX+3}], s{sT0} offen offset:1024 lds
    s_cmp_eq_u32 s{sKX}, 10
    s_cselect_b32 s{sKX}, 0, s{sKX}
    s_setpc_b64 s[{sLnk}:{sLnk+1}]
    LL_Wskip:
    s_waitcnt vmcnt(0)
    s_setpc_b64 s[{sLnk}:{sLnk+1}]
    LL_W:
    s_cmp_eq_u32 s{sIt}, 1
    s_cbranch_scc1 LL_Wskip
    s_mul_i32 s{sT1}, s{sKW}, {64 * 3840}
    s_add_u32 s{sT1}, s{sT1}, s{sWo}
    s_add_u32 s{sKW}, s{sKW}, 1
    """)
    for p in range(4):
        a(f"buffer_load_dwordx4 v{vWs}, s[{sWt}:{sWt+3}], s{sT1} offen lds")
        if p < 3:
            a(f"s_add_u32 m0, m0, 1024")
            a(f"s_add_u32 s{sT1}, s{sT1}, {4 * 3840}")
    a(f"""
    s_cmp_eq_u32 s{sKW}, 10
    s_cselect_b32 s{sKW}, 0, s{sKW}
    s_setpc_b64 s[{sLnk}:{sLnk+1}]
    """)
    a("LL_go:")
    delay(a, 2)
    stamp(a, 13)
    q = []

    def issue(it):
        if it == ("W", 10):
            a(f"s_cmp_ge_u32 s{sTI}, 5\ns_cselect_b32 s{sT0}, {6 * 128}, s{sC640}\ns_add_u32 s{sWo}, s{sWo}, s{sT0}")
            a(f"s_cmp_eq_u32 s{sTI}, 7\ns_cselect_b32 s{sIt}, 1, 0")
        a(f"s_add_u32 m0, s{sInc}, {slot[it] * GSL}\ns_call_b64 s[{sLnk}:{sLnk+1}], LL_{it[0]}")
        q.extend([it] * 4)

    def wait_for(names):
        last = max(i for i, x in enumerate(q) if x in names)
        a(f"s_waitcnt vmcnt({min(63, len(q) - 1 - last)})")

    sC640 = sT4
    first = [it for it in items if when[it] == -1]
    for it in first:
        issue(it)
    stamp(a, 14)
    vPf = 234
    bars = stage_barriers()
    stamp(a, 15)
    for bi, bar in enumerate(bars):
        upto = bars[bi + 1] - 1 if bi + 1 < len(bars) else 19
        wait_for([("X", bar), ("W", upto)] + (["cnt"] if bar == 11 else []))
        if bar == 11:
            a.c("all counters must have been cleared before the first one is used")
            a(f"v_cmp_gt_u32 vcc, 8, v{vCnt}\ns_cbranch_vccz LL_cnt_ok")
            poll(a, [(vP + 5, f"s[{sDbg}:{sDbg+3}]", "0")], 8, vPS)
            a("LL_cnt_ok:")
        a("s_barrier")
        if bar not in (2, 3, 4, 5, 6, 7, 8, 9): stamp(a, 8 + min(bar, 15))
        if bar == 11:
            attn_scalars(a)
            attn_vectors(a)
            repack_setup(a)
            a.c("wave 0 publishes the phase-a tile once its four storing waves have reported")
            a(f"""
            v_mov_b32 v{vP+2}, {LCNT0}
            s_cmp_lg_u32 s{sJ}, 0
            s_cbranch_scc1 LL_pub
            s_mov_b32 s{sSpin}, {SPIN * 8}
            LL_try:
            ds_read_b32 v{vP}, v{vP+2}
            s_waitcnt lgkmcnt(0)
            v_readfirstlane_b32 s{sT0}, v{vP}
            s_cmp_eq_u32 s{sT0}, 4
            s_cbranch_scc1 LL_try_go
            s_sub_u32 s{sSpin}, s{sSpin}, 1
            s_cbranch_scc0 LL_try
            LL_try_go:
            s_call_b64 s[{sLnk}:{sLnk+1}], LG_publish
            """)
            stamp(a, 27)
            a("LL_pub:")
        a(f"s_mov_b32 s{sC640}, 640")
        for it in items:
            if when[it] == bar:
                issue(it)
        if bar == 11:
            lead_prepare(a)
        if bar == 10:
            a(f"v_mov_b32 v{vP}, 0\nv_mov_b32 v{vP+2}, {LCNT0}\nds_write_b32 v{vP+2}, v{vP}\ns_waitcnt lgkmcnt(0)")
        if bar == PF_BAR:
            a.c("one load per 128-B line of the phase-b columns of five weight rows brings them on chip ahead of use")
            a(f"""
            s_lshr_b32 s{sT0}, s2, 3
            s_lshl_b32 s{sT0}, s{sT0}, 2
            s_and_b32 s{sT1}, s2, 3
            s_add_u32 s{sT0}, s{sT0}, s{sT1}
            s_mul_i32 s{sT0}, s{sT0}, {5 * 3840}
            s_mul_i32 s{sT1}, s{sJ}, 19
            v_add_u32 v8, s{sT1}, v0
            v_min_u32 v8, 74, v8
            v_mul_u32_u24 v9, 205, v8
            v_lshrrev_b32 v9, 10, v9
            v_mul_u32_u24 v9, 5, v9
            v_add3_u32 v9, v9, v8, 5
            v_lshlrev_b32 v{vPf}, 7, v9
            s_mov_b64 exec, 0x7ffff
            buffer_load_dword v{vPS}, v{vPf}, s[{sWt}:{sWt+3}], s{sT0} offen
            s_mov_b64 exec, -1
            """)
            q.append("pf")
        if bar == 8:
            common_setup(a)
            a(f"v_lshlrev_b32 v{vP+5}, 2, v0\nv_or_b32 v{vP+5}, 128, v{vP+5}")
            a(f"buffer_load_dword v{vCnt}, v{vP+5}, s[{sDbg}:{sDbg+3}], 0 offen sc1")
            q.append("cnt")
    a("s_branch LA_lead")


vKA, vVA, vT0, vT1 = 1, 2, 3, 14
Qm = [4, 8]
Qe = 12
vL16 = 15
Km = [16, 20]
Ke = 24
Vb = [[28, 32], [36, 40]]
vVbase, vVflag, vE16, vVG = 44, 45, 46, 47
NM = 48
SB = [80, 112]
OA = [144, 160]
vD = 176
vP = 182
vPS = 188
vVB2 = 248
NVGPR = 256


def mfma32(d, a_, b, c):
    return f"v_mfma_f32_32x32x16_bf16 {vr(d,16)}, {vr(a_,4)}, {vr(b,4)}, {c}"


def mfma2b(d, ke_tile, c):
    return (f"v_mfma_f32_32x32x4_2b_bf16 {vr(d,32)}, {vr(Ke + 2 * (ke_tile >> 1), 2)}, {vr(Qe,2)}, {c}"
            f" cbsz:1 abid:{ke_tile & 1}")


def valu_stream(X, Y):
    def e(base, i): return f"v_exp_f32 v{base+i}, v{base+i}"
    def c(j):
        dst = X + 8 * (j // 4) + (j % 4)
        if 'cvt' in OPT:
            return f"v_cvt_pk_bf16_f32 v{dst}, v{X+2*j}, v{X+2*j+1}"
        return f"v_pack_b32_f16 v{dst}, v{X+2*j}, v{X+2*j+1} op_sel:[1,1,0]"
    out = [e(X, 1)]
    for j in range(16):
        out.append(e(X, 2 * j + 2) if j < 15 else e(Y, 0))
        out.append(c(j))
        if j < 15:
            out.append(e(X, 2 * j + 3))
    return out


def tile_iter(a, ii, half=1):
    par = ii & 1
    X, Y = SB[par], SB[par ^ 1]
    Vc, Vn = Vb[par], Vb[par ^ 1]
    Kc, Kn = Km[par ^ 1], Km[par]
    v = valu_stream(X, Y)
    t1 = (ii + 1) % 4
    t2 = (ii + 2) % 4
    kch = CH if (half == 0) == (ii >= 2) else 0
    ins = {}
    ins[2] = [mfma32(OA[1], Vn[1], Y + 24, vr(OA[1], 16)),
              f"ds_read_b128 {vr(Vn[0],4)}, v{vVA} offset:{t1 * 1280}"]
    ins[7] = [mfma2b(Y, t1, 0 if 'c0' in OPT else vr(NM, 32))]
    ins[17] = [mfma32(OA[0], Vc[0], X, vr(OA[0], 16)),
               f"ds_read_b128 {vr(Vn[1],4)}, v{vVA} offset:{t1 * 1280 + 640}"]
    ins[23] = [mfma32(Y, Kc, Qm[0], vr(Y, 16)),
               f"ds_read_b128 {vr(Kn,4)}, v{vKA} offset:{kch + 2048 + t2 * 1024}"]
    ins[29] = [mfma32(OA[0], Vc[1], X + 8, vr(OA[0], 16))]
    ins[35] = [mfma32(Y + 16, Kc, Qm[1], vr(Y + 16, 16))]
    ins[41] = [mfma32(OA[1], Vc[0], X + 16, vr(OA[1], 16)),
               "s_waitcnt lgkmcnt(0)"]
    if ii == 0:
        ins[29].append(f"s_add_u32 s{sNext}, s{sNext}, {CH}")
    if ii == 2:
        ins[29].append(f"ds_read2st64_b64 {vr(Ke,4)}, v{vKA} offset0:{kch // 512} offset1:{kch // 512 + 2}")
        ins[44] = [f"v_mad_u32_u24 v{vVA}, v{vVflag}, s{sNext}, v{vVbase}"]
    if half == 0:
        if ii == 1:
            ins[29].append(f"s_cmp_eq_u32 s{sM}, s{sRp}")
            ins[35] += ["s_cbranch_scc1 LR_step", "LA_bar:"]
        if ii == 2 and 'noprio' not in OPT:
            ins[35].append("s_setprio 0")
        if ii == 3:
            ins[29].append(f"s_bitcmp1_b32 s{sMend}, s{sM}")
            ins[35] += ["s_waitcnt vmcnt(0)", "s_barrier"]
            if common.STAMP and 'cyc' in OPT:
                ins[35] += ["s_memtime s[4:5]", f"s_mov_b32 m0, s{sM}", "s_waitcnt lgkmcnt(0)", f"s_movreld_b32 s{STAMP_S+8}, s4"]
            if 'noprio' not in OPT:
                ins[35].append("s_setprio 1")
            ins[35] += ["s_cbranch_scc1 LA_refill", "LA_back:"]
    else:
        if ii == 0:
            ins[35].append(f"s_cmp_eq_u32 s{sNext}, s{sRe}")
        if ii == 1:
            ins[29].append(f"s_cselect_b32 s{sNext}, s{sRb}, s{sNext}")
            ins[35].append(f"s_add_u32 s{sM}, s{sM}, 1")
            ins[44] = [f"v_add_u32 v{vKA}, s{sNext}, v{vL16}"]
        if ii == 3:
            ins[35].append(f"s_sub_u32 s{sRem}, s{sRem}, 1")
    for p, op in enumerate(v):
        for x in ins.get(p, []):
            a(x)
        a(op)


def rowmax(a, X, out0, out1):
    for base, o in ((X, out0), (X + 16, out1)):
        a(f"v_max3_f32 v{o}, v{base}, v{base+1}, v{base+2}")
        for r in range(3, 15, 2):
            a(f"v_max3_f32 v{o}, v{o}, v{base+r}, v{base+r+1}")
        a(f"v_max_f32 v{o}, v{o}, v{base+15}")


def cross_half_max(a, r, tmp):
    a(f"v_mov_b32 v{tmp}, v{r}\ns_nop 1\nv_permlane32_swap_b32 v{tmp}, v{r}\ns_nop 1\nv_max_f32 v{r}, v{r}, v{tmp}")


def fill_nm(a, m0, m1):
    for r in range(16):
        a(f"v_sub_f32 v{NM+r}, 0, v{m0}")
    for r in range(16):
        a(f"v_sub_f32 v{NM+16+r}, 0, v{m1}")


def attn_scalars(a):
    a.c("head offsets: main octs start at (5g+1)>>1; the ext quad shares an oct with the neighbouring head;")
    a.c("arrivals expected per kind: 16 token blocks x number of 64-column units that hold the head")
    a(f"""
    s_mul_i32 s{sOm}, s{sHead}, 5
    s_add_u32 s{sOm}, s{sOm}, 1
    s_lshr_b32 s{sOm}, s{sOm}, 1
    s_lshl_b32 s{sOm}, s{sOm}, 9
    s_and_b32 s{sT0}, s{sHead}, 1
    s_mov_b32 s{sT1}, 1024
    s_cselect_b32 s{sT1}, {(-512 + 8) & 0xffffffff}, s{sT1}
    s_add_u32 s{sExt}, s{sOm}, s{sT1}
    s_min_u32 s{sT0}, s{sOm}, s{sExt}
    s_add_u32 s{sT2}, s{sOm}, 512
    s_max_u32 s{sT1}, s{sExt}, s{sT2}
    s_lshr_b32 s{sT0}, s{sT0}, 12
    s_lshr_b32 s{sT1}, s{sT1}, 12
    s_cmp_eq_u32 s{sT0}, s{sT1}
    s_cselect_b32 s{sExp}, 16, 32
    """)


def attn_vectors(a):
    a(f"""
    s_and_b32 s{sT0}, s{sHead}, 1
    v_lshlrev_b32 v{vL16}, 4, v0
    v_lshrrev_b32 v{vT0}, 5, v0
    v_mul_u32_u24 v{vT1}, {TILE}, v{vT0}
    v_and_b32 v{vP}, 31, v0
    v_lshl_add_u32 v{vE16}, v{vP}, 4, v{vT1}
    """)
    a.c("V rows: 0..15 main dims, 16..19 ext dims, 20 and 24 ones, the others zero (address past the allocation)")
    a(f"""
    s_lshl_b32 s{sT0}, s{sT0}, 2
    v_and_b32 v{vP+1}, 3, v0
    v_and_b32 v{vP+2}, 4, v0
    v_lshl_add_u32 v{vP+1}, v{vP+2}, 1, v{vP+1}
    v_and_b32 v{vP+2}, 8, v0
    v_lshrrev_b32 v{vP+2}, 1, v{vP+2}
    v_add3_u32 v{vP+1}, v{vP+1}, v{vP+2}, s{sT0}
    s_lshl_b32 s{sT0}, s{sT0}, 2
    v_subrev_u32 v{vP+2}, s{sT0}, v{vP}
    v_cmp_gt_u32 vcc, 16, v{vP}
    v_mul_u32_u24 v{vT1}, 10240, v{vT0}
    v_mul_u32_u24 v{vT0}, 320, v{vT0}
    v_cndmask_b32 v{vP+1}, v{vP+2}, v{vP+1}, vcc
    v_lshlrev_b32 v{vP+1}, 4, v{vP+1}
    v_add_u32 v{vVG}, v{vP+1}, v{vT1}
    v_add_u32 v{vVbase}, v{vP+1}, v{vT0}
    v_add_u32 v{vVbase}, 6144, v{vVbase}
    v_cmp_gt_u32 vcc, 20, v{vP}
    v_mov_b32 v{vP+1}, 0x100000
    v_mov_b32 v{vP+2}, {ONES[0]}
    v_cndmask_b32 v{vVflag}, 0, 1, vcc
    v_cndmask_b32 v{vVbase}, v{vP+1}, v{vVbase}, vcc
    v_cmp_eq_u32 vcc, 20, v{vP}
    v_cmp_eq_u32 s[{sT3}:{sT4}], 24, v{vP}
    s_or_b64 vcc, vcc, s[{sT3}:{sT4}]
    v_mov_b32 v{vP+1}, {ONES[1]}
    s_nop 0
    v_cndmask_b32 v{vVB2}, v{vVbase}, v{vP+1}, vcc
    v_cndmask_b32 v{vVbase}, v{vVbase}, v{vP+2}, vcc
    """)
    a.c("DMA source offsets: even waves load K pieces, odd waves V pieces")
    a(f"""
    s_and_b32 s{sT0}, s{sJ}, 1
    s_cbranch_scc1 LA_dv
    v_add_u32 v{vD}, s{sExt}, v{vE16}
    v_add_u32 v{vD+1}, {2 * TILE}, v{vD}
    v_add_u32 v{vD+2}, s{sOm}, v{vL16}
    v_add_u32 v{vD+3}, {TILE}, v{vD+2}
    v_add_u32 v{vD+4}, {TILE}, v{vD+3}
    v_add_u32 v{vD+5}, {TILE}, v{vD+4}
    s_branch LA_dd
    LA_dv:
    s_mul_i32 s{sT0}, s{sHead}, 320
    s_add_u32 s{sT0}, s{sT0}, {IMG}
    """)
    for p in range(5):
        a(f"""
        v_add_u32 v{vP}, {64 * p}, v0
        v_mul_u32_u24 v{vP+1}, 3277, v{vP}
        v_lshrrev_b32 v{vP+1}, 16, v{vP+1}
        v_mul_u32_u24 v{vP+2}, 20, v{vP+1}
        v_sub_u32 v{vP+2}, v{vP}, v{vP+2}
        v_mul_u32_u24 v{vP+1}, 10240, v{vP+1}
        v_lshl_add_u32 v{vP+1}, v{vP+2}, 4, v{vP+1}
        v_add_u32 v{vD+p}, s{sT0}, v{vP+1}
        """)
    a(f"""
    v_mov_b32 v{vD+5}, v{vD+4}
    LA_dd:
    v_lshlrev_b32 v{vP+3}, 7, v0
    v_mov_b32 v{vP+4}, 0
    """)


def vectors_put(a):
    a(f"""
    s_and_b32 s{sT0}, s{sJ}, 1
    s_lshl_b32 s{sT0}, s{sT0}, 12
    s_add_u32 s{sT0}, s{sT0}, {XFER}
    v_add_u32 v{vT0}, s{sT0}, v{vL16}
    v_mov_b32 v20, v{vVB2}
    v_mov_b32 v21, v{vVflag}
    v_mov_b32 v22, v{vE16}
    v_mov_b32 v23, v{vVG}
    ds_write_b128 v{vT0}, v[20:23]
    ds_write_b128 v{vT0}, {vr(vD,4)} offset:1024
    ds_write_b64 v{vT0}, {vr(vD+4,2)} offset:2048
    """)


def vectors_get(a):
    lane_id(a, 0)
    a(f"""
    s_and_b32 s{sT0}, s{sJ}, 1
    s_lshl_b32 s{sT0}, s{sT0}, 12
    s_add_u32 s{sT0}, s{sT0}, {XFER}
    v_lshlrev_b32 v{vL16}, 4, v0
    v_add_u32 v{vT0}, s{sT0}, v{vL16}
    ds_read_b128 {vr(vVbase,4)}, v{vT0}
    ds_read_b128 {vr(vD,4)}, v{vT0} offset:1024
    ds_read_b64 {vr(vD+4,2)}, v{vT0} offset:2048
    v_lshlrev_b32 v{vP+3}, 7, v0
    """)
    attn_scalars(a)
    a("s_waitcnt lgkmcnt(0)")


def dma_sub(a):
    a(f"""
    LA_dma:
    s_add_u32 s{sT2}, s{sT1}, s{sQB if 'kvrot' in OPT else sHead}
    s_and_b32 s{sT2}, s{sT2}, 7
    s_lshl_b32 s{sT2}, s{sT2}, 1
    s_lshr_b32 s{sT3}, s{sJ}, 1
    s_add_u32 s{sT2}, s{sT2}, s{sT3}
    s_mul_i32 s{sT2}, s{sT2}, {4 * TILE}
    s_lshl_b32 s{sT4}, s{sJ}, 1
    s_and_b32 s{sT4}, s{sT4}, 2
    s_lshr_b32 s{sT4}, 20480, s{sT4}
    s_mul_i32 s{sT4}, s{sT4}, s{sT0}
    s_add_u32 s{sT2}, s{sT2}, s{sT4}
    s_add_u32 s{sT2}, s{sT2}, s{sImg}
    s_add_u32 s{sT2}, s{sT2}, {IMG}
    s_sub_u32 s{sT1}, s{sT1}, s{sT0}
    s_add_u32 s{sT1}, s{sT1}, 1
    s_mul_i32 s{sT4}, s{sT1}, 43
    s_lshr_b32 s{sT4}, s{sT4}, 7
    s_mul_i32 s{sT4}, s{sT4}, 3
    s_sub_u32 s{sT1}, s{sT1}, s{sT4}
    s_lshl_b32 s{sT1}, s{sT1}, 1
    s_add_u32 s{sT1}, s{sT1}, s{sT3}
    s_mul_i32 s{sT1}, s{sT1}, {CH}
    s_mul_i32 s{sT4}, s{sT0}, {RA - RB}
    s_sub_u32 s{sT1}, s{sT1}, s{sT4}
    s_add_u32 s{sT1}, s{sT1}, {RA}
    s_and_b32 s{sT3}, s{sJ}, 1
    s_mul_i32 s{sT4}, s{sT3}, 6144
    s_add_u32 m0, s{sT1}, s{sT4}
    s_nop 0
    """)
    for p in range(5):
        a(f"buffer_load_dwordx4 v{vD+p}, {WSR()}, s{sT2} offen sc1 lds")
        a("s_add_u32 m0, m0, 1024")
        a("s_nop 0" if p < 4 else f"s_cmp_eq_u32 s{sT3}, 1")
    a(f"""
    s_cbranch_scc1 LA_dma_ret
    buffer_load_dwordx4 v{vD+5}, {WSR()}, s{sT2} offen sc1 lds
    LA_dma_ret:
    s_setpc_b64 s[{sLnk}:{sLnk+1}]
    """)


def call_dma(a, b, blk):
    a(f"s_mov_b32 s{sT0}, {b}\ns_mov_b32 s{sT1}, {blk}\ns_call_b64 s[{sLnk}:{sLnk+1}], LA_dma")


def poll_f1(a):
    a(f"""
    s_lshl_b32 s{sT0}, s{sBr}, 5
    s_add_u32 s{sT0}, s{sT0}, s{sHead}
    s_lshl_b32 s{sT0}, s{sT0}, 9
    s_add_u32 s{sT0}, s{sT0}, {WS_C1}
    """)
    poll_counter(a, vP + 3, f"s{sT0}", f"s{sExp}", 7)


def load_q(a):
    a(f"""
    s_lshl_b32 s{sT0}, s{sQB}, 2
    s_add_u32 s{sT0}, s{sT0}, s{sJ}
    s_mul_i32 s{sT0}, s{sT0}, {2 * TILE}
    s_add_u32 s{sT0}, s{sT0}, s{sImg}
    s_add_u32 s{sT1}, s{sT0}, s{sOm}
    s_add_u32 s{sT2}, s{sT1}, {TILE}
    s_add_u32 s{sT0}, s{sT0}, s{sExt}
    buffer_load_dwordx4 {vr(Qm[0],4)}, v{vL16}, {WSR()}, s{sT1} offen sc1
    buffer_load_dwordx4 {vr(Qm[1],4)}, v{vL16}, {WSR()}, s{sT2} offen sc1
    buffer_load_dwordx2 {vr(Qe,2)}, v{vE16}, {WSR()}, s{sT0} offen sc1
    """)


def scale_q(a, nyounger):
    a(f"s_mov_b32 s4, {hex(f32bits(QSCALE))}\ns_mov_b32 s5, s4\ns_waitcnt vmcnt({nyounger})")
    for r in range(Qm[0], Qe + 2):
        a(f"""
        v_lshlrev_b32 v{vPS+2}, 16, v{r}
        v_and_b32 v{vPS+3}, 0xffff0000, v{r}
        v_pk_mul_f32 {vr(vPS+2,2)}, {vr(vPS+2,2)}, s[4:5]
        v_cvt_pk_bf16_f32 v{r}, v{vPS+2}, v{vPS+3}
        """)


def attn_zero(a):
    Z = Vb[1][1]
    for r in (Z, Z + 2, SB[1] + 24, SB[1] + 26):
        a(f"v_pk_mov_b32 {vr(r,2)}, 0, 0")
    a(f"v_mov_b32 v{vP}, 0xbf800000\nv_mov_b32 v{vP+1}, 0\nv_mov_b32 v{vPS+1}, 0")
    a(f"v_mfma_f32_32x32x4_2b_bf16 {vr(OA[0],32)}, {vr(Z,2)}, {vr(Z,2)}, 0")
    a(f"""
    s_add_u32 s{sRe}, s{sRb}, {RING}
    s_mov_b32 s{sRem}, 7
    v_add_u32 v{vKA}, s{sNext}, v{vL16}
    v_mad_u32_u24 v{vVA}, v{vVflag}, s{sNext}, v{vVbase}
    """)


DELAY_AT, DELAY = 0, 0


def delay(a, at):
    if DELAY_AT == at and DELAY:
        a(f"s_memrealtime s[4:5]\ns_waitcnt lgkmcnt(0)\ns_add_u32 s6, s4, {DELAY}\nLD_{at}:\ns_sleep 1\ns_memrealtime s[4:5]\ns_waitcnt lgkmcnt(0)\ns_cmp_lt_u32 s4, s6\ns_cbranch_scc1 LD_{at}")


def attention(a):
    X = SB[0]
    delay(a, 1)
    a("LA_start:")
    stamp_cyc(a, 24)
    a(f"""
    ds_read_b128 {vr(Km[0],4)}, v{vKA} offset:2048
    ds_read2st64_b64 {vr(Ke,4)}, v{vKA} offset0:0 offset1:2
    ds_read_b128 {vr(Km[1],4)}, v{vKA} offset:3072
    ds_read_b128 {vr(Vb[0][0],4)}, v{vVA}
    ds_read_b128 {vr(Vb[0][1],4)}, v{vVA} offset:640
    s_waitcnt lgkmcnt(4)
    """)
    a(mfma32(X, Km[0], Qm[0], 0))
    a(mfma32(X + 16, Km[0], Qm[1], 0))
    a("s_nop 8\ns_waitcnt lgkmcnt(3)")
    a(mfma2b(X, 0, vr(X, 32)))
    a("s_nop 15\ns_nop 3")
    a.c("softmax shift: row max over the first key tile, cut to bf16; the epilogue checks that it was safe.")
    a.c("A rank-1 MFMA (-1 x shift) subtracts it from the scores and spreads it over the C operand of the loop")
    rowmax(a, X, vT0, vT1)
    a(f"""
    s_nop 1
    v_permlane32_swap_b32 v{vT0}, v{vT1}
    s_nop 1
    v_max_f32 v{vT0}, v{vT0}, v{vT1}
    v_and_b32 v{vPS}, {0 if 'c0' in OPT else '0xffff0000'}, v{vT0}
    s_nop 1
    v_mfma_f32_32x32x4_2b_bf16 {vr(X,32)}, {vr(vP,2)}, {vr(vPS,2)}, {vr(X,32)}
    v_mfma_f32_32x32x4_2b_bf16 {vr(NM,32)}, {vr(vP,2)}, {vr(vPS,2)}, 0
    s_nop 15
    s_nop 1
    s_waitcnt lgkmcnt(0)
    v_exp_f32 v{X}, v{X}
    .p2align 6
    LA_loop:
    """)
    for half in range(2):
        for ii in range(4):
            tile_iter(a, ii, half)
    a("s_cbranch_scc0 LA_loop\ns_nop 0")
    a(mfma32(OA[1], Vb[1][1], SB[1] + 24, vr(OA[1], 16)))
    if 'alow' in OPT:
        a("s_setprio 0")
    a(f"s_cmp_eq_u32 s{sRole}, 0\ns_cbranch_scc1 LA_fin2\ns_setprio 2")
    a.c("announce that the results are about to be stored; readers then wait for the markers to disappear")
    count_in(a, sOc, vP, vP + 1)
    a("LA_fin2:")
    stamp(a, 4)
    stamp_cyc(a, 31)
    N = SB[0]
    rc = SB[1]
    tm = rc + 4

    def norm(u):
        O, P = OA[u], N + 12 * u
        for r in range(0, 12, 2):
            a(f"v_pk_mul_f32 {vr(P+r,2)}, {vr(O+r,2)}, {vr(rc+2*u,2)} op_sel_hi:[1,0]")
        for j in range(6):
            a(f"v_cvt_pk_bf16_f32 v{P+j}, v{P+2*j}, v{P+2*j+1}")
    a(f"""
    s_mov_b32 s{sRem}, 0
    LA_epi:
    v_cmp_lt_u32 vcc, 31, v0
    s_add_u32 s{sT0}, s{sOb}, s{sOm}
    s_add_u32 s{sT1}, s{sT0}, {TILE}
    v_cndmask_b32 v{vT0}, v{OA[0]+12}, v{OA[0]+8}, vcc
    v_rcp_f32 v{rc}, v{vT0}
    v_pk_add_f32 {vr(tm,2)}, {vr(OA[0],2)}, {vr(OA[0]+2,2)}
    """)
    a.c("safety check of the shift before anything is stored: row sums inside [2^-30, 2^30], finite accumulators")
    for r in range(4, 12, 2):
        a(f"v_pk_add_f32 {vr(tm,2)}, {vr(tm,2)}, {vr(OA[0]+r,2)}")
    norm(0)
    a(f"v_cndmask_b32 v{vT1}, v{OA[1]+12}, v{OA[1]+8}, vcc\nv_rcp_f32 v{rc+2}, v{vT1}")
    for r in range(0, 12, 2):
        a(f"v_pk_add_f32 {vr(tm,2)}, {vr(tm,2)}, {vr(OA[1]+r,2)}")
    a(f"""
    v_add_f32 v{tm}, v{tm}, v{tm+1}
    v_add_f32 v{tm+1}, v{vT0}, v{vT1}
    v_fma_f32 v{tm}, 0, v{tm}, v{tm+1}
    v_min_f32 v{tm+1}, v{vT0}, v{vT1}
    v_cmp_gt_f32 vcc, {hex(f32bits(2.0**30))}, v{tm}
    s_mov_b64 s[4:5], vcc
    v_cmp_lt_f32 vcc, {hex(f32bits(2.0**-30))}, v{tm+1}
    """)
    for j in range(4):
        a(f"v_min_u32 v{N+j}, -2, v{N+j}")
    a(f"""
    s_and_b64 s[4:5], s[4:5], vcc
    s_cmp_eq_u64 s[4:5], -1
    s_cselect_b32 s{sT3}, 1, s{sRem}
    s_cmp_eq_u32 s{sT3}, 0
    s_cbranch_scc1 LA_slow
    buffer_store_dwordx4 {vr(N,4)}, v{vL16}, {WSR()}, s{sT0} offen sc1
    """)
    norm(1)
    for j in range(4):
        a(f"v_min_u32 v{N+12+j}, -2, v{N+12+j}")
    a(f"""
    buffer_store_dwordx4 {vr(N+12,4)}, v{vL16}, {WSR()}, s{sT1} offen sc1
    v_permlane32_swap_b32 v{N+4}, v{N+16}
    v_permlane32_swap_b32 v{N+5}, v{N+17}
    s_add_u32 s{sT2}, s{sOb}, s{sExt}
    v_min_u32 v{N+4}, -2, v{N+4}
    v_min_u32 v{N+5}, -2, v{N+5}
    buffer_store_dwordx2 {vr(N+4,2)}, v{vE16}, {WSR()}, s{sT2} offen sc1
    """)


def o_base(a):
    a(f"""
    s_lshl_b32 s{sT0}, s{sQB}, 2
    s_add_u32 s{sT0}, s{sT0}, s{sJ}
    s_mul_i32 s{sOb}, s{sT0}, {2 * TILE}
    s_add_u32 s{sOb}, s{sOb}, s{sImg}
    s_add_u32 s{sOb}, s{sOb}, {3 * IMG}
    """)
    a(f"s_lshr_b32 s{sT1}, s{sHead}, 3\ns_max_u32 s{sT1}, s{sT1}, 1\ns_sub_u32 s{sT1}, s{sT1}, 1")
    c3_off(a, sOc, sT0, sT1)


def o_mark(a):
    o_base(a)
    a(f"""
    v_mov_b32 v16, -1
    v_mov_b32 v17, -1
    v_mov_b32 v18, -1
    v_mov_b32 v19, -1
    s_add_u32 s{sT0}, s{sOb}, s{sOm}
    s_add_u32 s{sT1}, s{sT0}, {TILE}
    s_add_u32 s{sT2}, s{sOb}, s{sExt}
    buffer_store_dwordx4 v[16:19], v{vL16}, {WSR()}, s{sT0} offen sc1
    buffer_store_dwordx4 v[16:19], v{vL16}, {WSR()}, s{sT1} offen sc1
    buffer_store_dwordx2 v[16:17], v{vE16}, {WSR()}, s{sT2} offen sc1
    """)


def refill(a):
    a.c("role-B waves refill both rings: after barrier m, A block m+2 and B block m-SK+2")
    a(f"""
    LA_refill:
    s_cmp_gt_u32 s{sM}, 5
    s_cbranch_scc1 LA_ev_b
    s_mov_b32 s{sT0}, 0
    s_add_u32 s{sT1}, s{sM}, 2
    s_call_b64 s[{sLnk}:{sLnk+1}], LA_dma
    LA_ev_b:
    s_sub_u32 s{sT1}, s{sM}, {SK - 2}
    s_cmp_lt_u32 s{sT1}, 3
    s_cbranch_scc1 LA_back
    s_mov_b32 s{sT0}, 1
    s_call_b64 s[{sLnk}:{sLnk+1}], LA_dma
    s_branch LA_back
    """)


def slow_path(a):
    X = SB[0]
    m0, m1, t0, t1 = SB[1], SB[1] + 1, SB[1] + 2, SB[1] + 3

    def kloads(t):
        a(f"buffer_load_dwordx4 {vr(Km[0],4)}, v{vL16}, {WSR()}, s{sT1} offen sc1")
        if t == 0:
            a(f"buffer_load_dwordx2 {vr(Ke,2)}, v{vE16}, {WSR()}, s{sT2} offen sc1")
            a(f"s_add_u32 s{sT2}, s{sT2}, {2 * TILE}")
        a(f"s_add_u32 s{sT1}, s{sT1}, {TILE}")

    def kbase():
        a(f"""
        s_add_u32 s{sT0}, s{sImg}, {IMG}
        s_add_u32 s{sT1}, s{sT0}, s{sOm}
        s_add_u32 s{sT2}, s{sT0}, s{sExt}
        s_mov_b32 s{sRem}, 0
        """)
    a(f"LA_slow:\nv_mov_b32 v{m0}, 0xff800000\nv_mov_b32 v{m1}, 0xff800000")
    kbase()
    a("LA_slow_max:")
    for t in range(2):
        kloads(t)
        a("s_waitcnt vmcnt(0)")
        a(mfma32(X, Km[0], Qm[0], 0))
        a(mfma32(X + 16, Km[0], Qm[1], 0))
        a("s_nop 9")
        a(mfma2b(X, t, vr(X, 32)))
        a("s_nop 15\ns_nop 3")
        rowmax(a, X, t0, t1)
        a(f"v_max_f32 v{m0}, v{m0}, v{t0}\nv_max_f32 v{m1}, v{m1}, v{t1}")
    a(f"s_add_u32 s{sRem}, s{sRem}, 1\ns_cmp_lt_u32 s{sRem}, 32\ns_cbranch_scc1 LA_slow_max")
    cross_half_max(a, m0, t0)
    cross_half_max(a, m1, t0)
    fill_nm(a, m0, m1)
    for r in range(32):
        a(f"v_mov_b32 v{OA[0]+r}, 0")
    for r in range(8):
        a(f"v_mov_b32 v{Vb[0][0]+r}, 0x3f803f80")
    kbase()
    a(f"""
    s_mul_i32 s{sT3}, s{sHead}, 320
    s_add_u32 s{sT3}, s{sT3}, s{sT0}
    s_add_u32 s{sT3}, s{sT3}, {IMG}
    LA_slow_pv:
    """)
    for t in range(2):
        kloads(t)
        a(f"""
        s_add_u32 s{sT4}, s{sT3}, 20480
        s_mov_b32 exec_lo, 0xfffff
        s_mov_b32 exec_hi, 0xfffff
        buffer_load_dwordx4 {vr(Vb[0][0],4)}, v{vVG}, {WSR()}, s{sT3} offen sc1
        buffer_load_dwordx4 {vr(Vb[0][1],4)}, v{vVG}, {WSR()}, s{sT4} offen sc1
        s_mov_b64 exec, -1
        s_add_u32 s{sT3}, s{sT3}, {TILE}
        s_waitcnt vmcnt(2)
        """)
        a(mfma32(X, Km[0], Qm[0], vr(NM, 16)))
        a(mfma32(X + 16, Km[0], Qm[1], vr(NM + 16, 16)))
        a("s_nop 9")
        a(mfma2b(X, t, vr(X, 32)))
        a("s_nop 15\ns_nop 3")
        for r in range(32):
            a(f"v_exp_f32 v{X+r}, v{X+r}")
        a("s_nop 0")
        for j in range(16):
            a(f"v_cvt_pk_bf16_f32 v{X + 8*(j//4) + j%4}, v{X+2*j}, v{X+2*j+1}")
        a("s_waitcnt vmcnt(0)\ns_nop 1")
        a(mfma32(OA[0], Vb[0][0], X, vr(OA[0], 16)))
        a(mfma32(OA[0], Vb[0][1], X + 8, vr(OA[0], 16)))
        a(mfma32(OA[1], Vb[0][0], X + 16, vr(OA[1], 16)))
        a(mfma32(OA[1], Vb[0][1], X + 24, vr(OA[1], 16)))
    a(f"""
    s_add_u32 s{sRem}, s{sRem}, 1
    s_cmp_lt_u32 s{sRem}, 32
    s_cbranch_scc1 LA_slow_pv
    s_nop 15
    s_mov_b32 s{sRem}, 1
    s_branch LA_epi
    """)


pWF = [16, 56]
pACC = 96
pACL = 196
pOF = 136
pWA, pOA = 2, 3


def c3_off(a, dst, t64, part):
    a(f"""
    s_lshl_b32 s{dst}, s{sBr}, 5
    s_add_u32 s{dst}, s{dst}, s{t64}
    s_mul_i32 s{dst}, s{dst}, 3
    s_add_u32 s{dst}, s{dst}, s{part}
    s_lshl_b32 s{dst}, s{dst}, 7
    s_add_u32 s{dst}, s{dst}, {WS_C3}
    """)


def wo_dma(a, k0, k1, lds0):
    _lbl[0] += 1
    L = f"LP_wd{_lbl[0]}"
    a(f"""
    s_and_b32 s{sT0}, s{sHead}, 3
    s_lshl_b32 s{sT1}, s{sBr}, 2
    s_add_u32 s{sT0}, s{sT0}, s{sT1}
    s_mul_i32 s{sT0}, s{sT0}, {WO_SLAB}
    s_lshl_b32 s{sT1}, s{sJ}, 10
    s_add_u32 s{sT0}, s{sT0}, s{sT1}
    s_add_u32 s{sT0}, s{sT0}, {WS_WO + 10240 * k0}
    s_add_u32 s{sT1}, s{sT1}, {lds0}
    {L}:
    s_mov_b32 m0, s{sT1}
    s_add_u32 s{sT1}, s{sT1}, 4096
    buffer_load_dwordx4 v{vL16}, {WSR()}, s{sT0} offen sc1 lds
    s_add_u32 s{sT0}, s{sT0}, 4096
    s_cmp_lt_u32 s{sT1}, {lds0 + 10240 * (k1 - k0)}
    s_cbranch_scc1 {L}
    """)


def o_addr(a):
    a(f"""
    s_lshl_b32 s{sT1}, s{sQB}, 2
    s_lshr_b32 s{sT2}, s{sHead}, 2
    s_add_u32 s{sT1}, s{sT1}, s{sT2}
    """)
    c3_off(a, sFc, sT1, sRole)
    a(f"""
    v_and_b32 v{vP+3}, 15, v0
    s_lshl_b32 s{sT1}, s{sT1}, 1
    s_lshr_b32 s{sT2}, s{sJ}, 1
    s_add_u32 s{sT1}, s{sT1}, s{sT2}
    s_mul_i32 s{sT1}, s{sT1}, {TILE}
    s_add_u32 s{sT1}, s{sT1}, s{sImg}
    s_and_b32 s{sT2}, s{sJ}, 1
    s_lshl_b32 s{sT2}, s{sT2}, 8
    s_add_u32 s{sT1}, s{sT1}, s{sT2}
    s_add_u32 s{sFo}, s{sT1}, {3 * IMG}
    v_lshrrev_b32 v{pOA}, 4, v0
    v_lshlrev_b32 v{pOA}, 9, v{pOA}
    v_lshl_add_u32 v{pOA}, v{vP+3}, 4, v{pOA}
    v_lshlrev_b32 v{vP+5}, 7, v0
    s_mov_b32 s{sF[0]}, s{sFo}
    s_add_u32 s{sF[1]}, s{sFo}, 10240
    """)


sF = [54, 55]


def o_load_sub(a, label, p0):
    a(f"{label}:\ns_mov_b32 s{sT1}, s{sF[p0 // 5]}")
    for i in range(5):
        a(f"buffer_load_dwordx4 {vr(pOF + 4*(p0 + i), 4)}, v{pOA}, {WSR()}, s{sT1} offen offset:{(i & 1) * 2048} sc1")
        if i & 1:
            a(f"s_add_u32 s{sT1}, s{sT1}, 4096")
    a(f"s_setpc_b64 s[{sLnk}:{sLnk+1}]")


def o_checked(a, label, p0, counted):
    a(f"s_mov_b32 s{sSpin}, {SPIN}\n{label}_chk:\nv_mov_b32 v{vPS}, 0\nv_mov_b32 v{vPS+1}, 0")
    for i in range(5):
        r = pOF + 4 * (p0 + i)
        if counted:
            a(f"s_waitcnt vmcnt({4 - i})")
        a(f"v_max3_u32 v{vPS}, v{vPS}, v{r}, v{r+1}\nv_max3_u32 v{vPS+1}, v{vPS+1}, v{r+2}, v{r+3}")
    a(f"""
    v_max_u32 v{vPS}, v{vPS}, v{vPS+1}
    v_cmp_eq_u32 vcc, -1, v{vPS}
    s_cbranch_vccz {label}_ok
    s_call_b64 s[{sLnk}:{sLnk+1}], {label}
    s_waitcnt vmcnt(0)
    s_sub_u32 s{sSpin}, s{sSpin}, 1
    s_cbranch_scc0 {label}_chk
    {label}_ok:
    """)


def peek(a, mask):
    a(f"""
    v_mov_b32 v{vPS+2}, 0
    s_mov_b64 exec, {mask}
    buffer_atomic_add v{vPS+2}, v{vP+5}, {WSR()}, s{sFc} offen sc0 sc1
    s_mov_b64 exec, -1
    """)


def ready_mask(a):
    a(f"v_cmp_le_u32 vcc, 8, v{vPS+2}\ns_and_b32 s{sPh}, vcc_lo, 3")


def order_sub(a):
    a(f"""
    LP_order:
    s_and_b32 s{sDone}, s{sPh}, 1
    s_xor_b32 s{sDone}, s{sDone}, 1
    s_mul_i32 s{sT0}, s{sDone}, 10240
    s_add_u32 s{sF[0]}, s{sFo}, s{sT0}
    s_sub_u32 s{sF[1]}, s{sFo}, s{sT0}
    s_add_u32 s{sF[1]}, s{sF[1]}, 10240
    """)


TAB = [8, 9, 10, 11, 12, 13, 14, 15, 52, 53]


def oproj_subs(a):
    def wreads(p):
        return [f"ds_read_b128 {vr(pWF[p & 1] + 4*c, 4)}, v{pWA} offset:{c * 1024}" for c in range(10)]
    a(f"LP_pro:\nv_add_u32 v{pWA}, s{TAB[0]}, v{vL16}")
    for r in wreads(0):
        a(r)
    a(f"s_setpc_b64 s[{sLnk}:{sLnk+1}]")
    for p in range(10):
        if p % 5 == 0:
            a("LP_lo:" if p else "LP_hi:")
        rd = wreads(p + 1) if p < 9 else []
        if rd:
            a(f"v_add_u32 v{pWA}, s{TAB[p + 1]}, v{vL16}")
        for c in range(10):
            A = (pACL if p >= 5 else pACC) + 4 * c
            a(f"s_waitcnt lgkmcnt({9 if rd else 9 - c})")
            a(f"v_mfma_f32_16x16x32_bf16 {vr(A,4)}, {vr(pOF + 4*p, 4)}, {vr(pWF[p & 1] + 4*c, 4)}, {vr(A,4)}")
            if rd:
                a(rd[c])
        if p % 5 == 4:
            a(f"s_setpc_b64 s[{sLnk}:{sLnk+1}]")


def set_tab(a, addrs):
    for r, x in zip(TAB, addrs):
        a(f"s_mov_b32 s{r}, {x}")


def out_addr(a):
    a.c("lane n = l & 15 holds columns 8n..8n+7 of a 128-column piece and 2n, 2n+1 of a 32-column piece (tokens 4*(l >> 4) + r);")
    a.c("odd column groups start with the narrow piece, so that the wide one covers whole 128-B lines")
    a(f"""
    s_lshl_b32 s{sT0}, s{sQB}, 2
    s_lshr_b32 s{sT1}, s{sHead}, 2
    s_add_u32 s{sT0}, s{sT0}, s{sT1}
    s_lshl_b32 s{sT0}, s{sT0}, 2
    s_add_u32 s{sT0}, s{sT0}, s{sJ}
    s_mul_i32 s{sT0}, s{sT0}, {16 * 2560}
    s_mul_i32 s{sT1}, s{sBr}, 1280
    s_add_u32 s{sT0}, s{sT0}, s{sT1}
    s_and_b32 s{sT1}, s{sHead}, 3
    s_mul_i32 s{sT1}, s{sT1}, 320
    s_add_u32 s{sXo}, s{sT0}, s{sT1}
    s_add_u32 s{sWo}, s{sXo}, {2 * 2560}
    v_lshrrev_b32 v4, 4, v0
    v_mul_u32_u24 v4, {4 * 2560}, v4
    v_and_b32 v6, 15, v0
    s_and_b32 s{sT0}, s{sHead}, 1
    s_cselect_b32 s{sT0}, 64, 0
    s_cselect_b32 s{sT1}, 0, 256
    v_lshl_add_u32 v5, v6, 2, v4
    v_lshl_add_u32 v4, v6, 4, v4
    v_add_u32 v4, s{sT0}, v4
    v_add_u32 v5, s{sT1}, v5
    """)


def out_store(a):
    OUTMOD = " nt" if 'outnt' in OPT else " sc1"
    for r in range(4):
        if r % 2 == 0:
            for c in range(10):
                a(f"v_pk_add_f32 {vr(pACC + 4*c + r, 2)}, {vr(pACC + 4*c + r, 2)}, {vr(pACL + 4*c + r, 2)}")
        P = 16 + 6 * r
        for j in range(5):
            a(f"v_cvt_pk_bf16_f32 v{P+j}, v{pACC + 8*j + r}, v{pACC + 8*j + 4 + r}")
        so = sXo if r < 2 else sWo
        a(f"buffer_store_dwordx4 {vr(P,4)}, v4, s[{sOut}:{sOut+3}], s{so} offen offset:{(r & 1) * 2560}{OUTMOD}")
        a(f"buffer_store_dword v{P+4}, v5, s[{sOut}:{sOut+3}], s{so} offen offset:{(r & 1) * 2560}{OUTMOD}")


rL, rT, rD, rX, rData = 194, 199, 201, 205, 208


def repack_setup(a):
    x = rX
    for i in range(5):
        a(f"""
        v_add_u32 v{x}, {64 * i}, v0
        v_mul_u32_u24 v{x+1}, 3277, v{x}
        v_lshrrev_b32 v{x+1}, 16, v{x+1}
        v_mul_u32_u24 v{x+2}, 20, v{x+1}
        v_sub_u32 v{x+2}, v{x}, v{x+2}
        v_mul_u32_u24 v{x+1}, 1280, v{x+1}
        v_lshl_add_u32 v{rL+i}, v{x+2}, 4, v{x+1}
        """)
    a(f"""
    v_and_b32 v{x}, 48, v0
    v_lshlrev_b32 v{x}, 4, v{x}
    v_add_u32 v{x}, {RPK}, v{x}
    v_and_b32 v{x+1}, 7, v0
    v_mul_u32_u24 v{x+1}, 1040, v{x+1}
    v_and_b32 v{x+2}, 8, v0
    v_lshl_add_u32 v{x+1}, v{x+2}, 1, v{x+1}
    v_add_u32 v{rD}, v{x}, v{x+1}
    v_and_b32 v{x+1}, 1, v0
    v_mul_u32_u24 v{x+1}, 1040, v{x+1}
    v_and_b32 v{x+2}, 14, v0
    v_lshl_add_u32 v{x+1}, v{x+2}, 3, v{x+1}
    v_add3_u32 v{rD+1}, v{x}, v{x+1}, 0
    v_lshrrev_b32 v{x}, 4, v0
    v_lshlrev_b32 v{x}, 3, v{x}
    v_lshrrev_b32 v{x+1}, 2, v0
    v_and_b32 v{x+1}, 3, v{x+1}
    v_add_u32 v{x}, v{x}, v{x+1}
    v_mul_u32_u24 v{x}, 320, v{x}
    v_and_b32 v{x+1}, 3, v0
    v_lshl_add_u32 v{x}, v{x+1}, 3, v{x}
    v_add_u32 v{x}, {RPK}, v{x}
    s_and_b32 s{sT0}, s2, 1
    s_cselect_b32 s{sT0}, 64, 0
    s_cselect_b32 s{sT1}, 0, 256
    v_add_u32 v{rT}, s{sT0}, v{x}
    v_add_u32 v{rT+1}, s{sT1}, v{x}
    v_add_u32 v{rX}, {RPK}, v{vL16}
    """)


def repack_steps(a):
    a(f"""
    LR_step:
    s_add_u32 s{sRp}, s{sRp}, 1
    s_lshr_b32 s{sT2}, s2, 3
    s_cmp_eq_u32 s{sM}, {RP_AT}
    s_cbranch_scc0 LR_s1
    s_mov_b32 s{sWt}, s{sPtr+2}
    s_and_b32 s{sWt+1}, s{sPtr+3}, 0xffff
    s_mov_b32 s{sWt+2}, {D * D * 2}
    s_mov_b32 s{sWt+3}, 0x00020000
    s_mul_i32 s{sT0}, s{sT2}, {32 * 1280}
    s_and_b32 s{sT1}, s2, 3
    s_mul_i32 s{sT1}, s{sT1}, 320
    s_add_u32 s{sT0}, s{sT0}, s{sT1}
    s_mov_b32 m0, {RPK}
    s_add_u32 s{sT1}, s{sT0}, {16 * 1280}
    """)
    for i in range(10):
        a(f"buffer_load_dwordx4 v{rL + i % 5}, s[{sWt}:{sWt+3}], s{sT1 if i >= 5 else sT0} offen lds")
        a("s_add_u32 m0, m0, 1024\ns_nop 0")
    a(f"""
    s_branch LA_bar
    LR_s1:
    s_cmp_eq_u32 s{sM}, {RP_AT + 1}
    s_cbranch_scc0 LR_s2
    s_and_b32 s{sT0}, s2, 7
    s_mul_i32 s{sT0}, s{sT0}, {WO_SLAB}
    s_mul_i32 s{sT2}, s{sT2}, 10240
    s_add_u32 s{sT0}, s{sT0}, s{sT2}
    s_add_u32 s{sT0}, s{sT0}, {WS_WO}
    """)
    for ct in range(10):
        for u in range(2):
            a(f"ds_read_b64_tr_b16 {vr(rData + 4*ct + 2*u, 2)}, v{rT + ct // 8} offset:{u*4*320 + (ct % 8)*32}")
        if ct == 4:
            a("s_waitcnt lgkmcnt(0)")
    a("s_waitcnt lgkmcnt(0)")
    for ct in range(10):
        a(f"ds_write_b128 v{rD + ct // 8}, {vr(rData + 4*ct, 4)} offset:{32 * ct if ct < 8 else 8 * 1040 + 128 * (ct - 8)}")
    a("s_waitcnt lgkmcnt(0)")
    for c in range(10):
        a(f"ds_read_b128 {vr(rData + 4*c, 4)}, v{rX} offset:{1040 * c}")
    for c in range(10):
        a(f"s_waitcnt lgkmcnt({9 - c})")
        a(f"buffer_store_dwordx4 {vr(rData + 4*c, 4)}, v{vL16}, {WSR()}, s{sT0} offen offset:{1024 * (c & 3)} sc1")
        if c & 3 == 3:
            a(f"s_add_u32 s{sT0}, s{sT0}, 4096")
    a(f"""
    s_branch LA_bar
    LR_s2:
    s_mov_b32 s{sRp}, -1
    s_and_b32 s{sT0}, s2, 7
    s_lshl_b32 s{sT0}, s{sT0}, 7
    s_add_u32 s{sT0}, s{sT0}, {WS_C4}
    """)
    count_in(a, sT0, vP, vP + 1)
    a("s_branch LA_bar")


def write_ones(a, role):
    a(f"""
    v_and_b32 v{vT0}, 7, v0
    v_mul_u32_u24 v{vT0}, 640, v{vT0}
    v_add_u32 v{vT0}, {ONES[role]}, v{vT0}
    v_mov_b32 v16, 0x3f803f80
    v_mov_b32 v17, 0x3f803f80
    v_mov_b32 v18, 0x3f803f80
    v_mov_b32 v19, 0x3f803f80
    ds_write_b128 v{vT0}, v[16:19]
    """)


sL = 8


def lead_prepare(a):
    a(f"""
    s_cmp_lt_u32 s2, 160
    s_cselect_b32 s{sT0}, s{sJ}, 0
    s_cmp_eq_u32 s{sT0}, 1
    s_cselect_b32 s{sRp}, {RP_AT}, -1
    s_mov_b32 s{sM}, 0
    s_mov_b32 s{sMend}, 0
    s_mov_b32 s{sRb}, {RA}
    s_mov_b32 s{sNext}, {RA + BLK}
    """)
    attn_zero(a)
    o_base(a)
    a(f"""
    s_sub_u32 s{sT0}, s{sOb}, {3 * IMG}
    s_add_u32 s{sL},  s{sT0}, s{sOm}
    s_add_u32 s{sL+1}, s{sL},  {TILE}
    s_add_u32 s{sL+2}, s{sT0}, s{sExt}
    s_lshr_b32 s{sT3}, s{sJ}, 1
    s_mul_i32 s{sT1}, s{sT3}, {4 * TILE}
    s_add_u32 s{sT1}, s{sT1}, s{sImg}
    s_add_u32 s{sT1}, s{sT1}, {IMG}
    s_and_b32 s{sL+4}, s{sQB if 'kvrot' in OPT else sHead}, 7
    s_mul_i32 s{sL+3}, s{sL+4}, {8 * TILE}
    s_add_u32 s{sL+3}, s{sL+3}, s{sT1}
    s_add_u32 s{sL+4}, s{sL+4}, 1
    s_and_b32 s{sL+4}, s{sL+4}, 7
    s_mul_i32 s{sL+4}, s{sL+4}, {8 * TILE}
    s_add_u32 s{sL+4}, s{sL+4}, s{sT1}
    s_mul_i32 s{sL+5}, s{sT3}, {CH}
    s_and_b32 s{sL+6}, s{sJ}, 1
    s_mul_i32 s{sT4}, s{sL+6}, 6144
    s_add_u32 s{sL+5}, s{sL+5}, s{sT4}
    s_add_u32 m0, s{sL+5}, {RA + BLK}
    """)
    a(f"""
    s_lshl_b32 s{sL+7}, s{sBr}, 5
    s_add_u32 s{sL+7}, s{sL+7}, s{sHead}
    s_lshl_b32 s{sL+7}, s{sL+7}, 9
    s_add_u32 s{sL+7}, s{sL+7}, {WS_C1}
    """)


def common_setup(a):
    a(f"""
    s_and_b32 s{sT0}, s2, 1
    s_lshl_b32 s{sT0}, s{sT0}, 3
    s_and_b32 s{sT1}, s2, 2
    s_lshl_b32 s{sT1}, s{sT1}, 1
    s_add_u32 s{sT0}, s{sT0}, s{sT1}
    s_lshr_b32 s{sT2}, s2, 6
    s_add_u32 s{sHead}, s{sT0}, s{sT2}
    s_lshr_b32 s{sQB}, s2, 3
    s_and_b32 s{sQB}, s{sQB}, 7
    s_lshl_b32 s{sT2}, s{sRole}, 4
    s_add_u32 s{sHead}, s{sHead}, s{sT2}
    s_mul_i32 s{sImg}, s{sBr}, {4 * IMG}
    s_mov_b32 s{sPh}, 0
    s_mov_b32 s{sWS+2}, {WS_STAMP + 2048 * 128 if common.STAMP else WS_END}
    s_mov_b32 s{sWS+3}, 0x00020000
    s_mov_b32 s{sOut+2}, {S * 2 * D * 2}
    s_mov_b32 s{sOut+3}, 0x00020000
    s_mov_b32 s{sDbg+2}, 256
    s_mov_b32 s{sDbg+3}, 0x00020000
    s_waitcnt lgkmcnt(0)
    s_mov_b32 s{sOut}, s{sPtr+4}
    s_and_b32 s{sOut+1}, s{sPtr+5}, 0xffff
    s_mov_b32 s{sDbg}, s{sPtr+6}
    s_and_b32 s{sDbg+1}, s{sPtr+7}, 0xffff
    s_add_u32 s{sWS}, s{sWS}, {WS_MB << 20}
    s_addc_u32 s{sWS+1}, s{sWS+1}, 0
    s_and_b32 s{sWS+1}, s{sWS+1}, 0xffff
    """)


def gen(a, label):
    kernel_head(a, label)
    a("s_cmp_ge_u32 s2, 256\ns_cbranch_scc1 LF_end")
    stamp(a, 0)
    a(f"""
    s_bfe_u32 s{sBr}, s2, 0x10002
    s_mul_i32 s{sT0}, s{sBr}, 24
    s_load_dwordx2 s[{sX}:{sX+1}], s[0:1], s{sT0}
    s_add_u32 s{sT1}, s{sT0}, 8
    s_load_dwordx4 s[{sPtr}:{sPtr+3}], s[0:1], s{sT1}
    s_load_dwordx4 s[{sPtr+4}:{sPtr+7}], s[0:1], 48
    s_load_dwordx2 s[{sWS}:{sWS+1}], s[0:1], 64
    v_lshrrev_b32 v1, 6, v0
    v_and_b32 v0, 63, v0
    v_readfirstlane_b32 s{sW}, v1
    s_and_b32 s{sT0}, s2, 3
    s_lshl_b32 s{sT0}, s{sT0}, 2
    s_bfe_u32 s{sT2}, s2, 0x20003
    s_add_u32 s{sTB}, s{sT0}, s{sT2}
    s_lshr_b32 s{sTI}, s2, 5
    """)
    if 'nocw' not in OPT:
        a.c("wave 7 pulls a quarter of the code into the L2, so that later instruction fetches find it there")
        a(f"""
        s_cmp_eq_u32 s{sW}, 7
        s_cbranch_scc0 LG_nocw
        s_getpc_b64 s[4:5]
        LG_pc:
        s_sub_u32 s4, s4, LG_pc-{label}
        s_subb_u32 s5, s5, 0
        s_lshl_b32 s{sT0}, s{sT2}, 13
        v_lshl_add_u32 v8, v0, 7, s{sT0}
        v_min_u32 v8, LF_codeend-{label}-4, v8
        global_load_dword v{gT+1}, v8, s[4:5]
        LG_nocw:
        """)
    a.c("phase-a units of tile ti: n = 2 ti + e, unit = n + 5 (n >= 5) + 5 (n >= 10)")
    a(f"""
    s_lshl_b32 s{sU0}, s{sTI}, 1
    s_cmp_ge_u32 s{sTI}, 5
    s_cselect_b32 s{sT0}, 10, 5
    s_cmp_ge_u32 s{sTI}, 3
    s_cselect_b32 s{sT0}, s{sT0}, 0
    s_add_u32 s{sU0}, s{sU0}, s{sT0}
    s_cmp_eq_u32 s{sTI}, 2
    s_cselect_b32 s{sT0}, 6, 1
    s_add_u32 s{sU1}, s{sU0}, s{sT0}
    s_and_b32 s{sJ}, s{sW}, 3
    s_lshr_b32 s{sRole}, s{sW}, 2
    s_cbranch_scc1 LG_start
    """)
    gemm_loader(a)
    a("LG_start:")
    common_setup(a)
    if 'tlb' in OPT:
        a.c("waves 5 and 6 touch every page that is first used later, so that its translation is at hand")
        a(f"s_cmp_eq_u32 s{sJ}, 1\ns_cbranch_scc0 LG_t1")
        step = TLB_KB << 10
        a(f"""
        s_lshr_b32 s{sT0}, s2, 3
        s_mul_i32 s{sT0}, s{sT0}, {step}
        LG_t0:
        s_buffer_load_dword s4, s[{sWS}:{sWS+3}], s{sT0}
        s_add_u32 s{sT0}, s{sT0}, {32 * step}
        s_cmp_lt_u32 s{sT0}, {WS_END}
        s_cbranch_scc1 LG_t0
        LG_t1:
        s_cmp_eq_u32 s{sJ}, 2
        s_cbranch_scc0 LG_t3
        s_lshr_b32 s{sT0}, s2, 3
        s_mul_i32 s{sT0}, s{sT0}, {step}
        s_min_u32 s{sT1}, s{sT0}, {D * D * 2 - 4}
        s_load_dword s4, s[{sPtr+2}:{sPtr+3}], s{sT1}
        LG_t2:
        s_buffer_load_dword s4, s[{sOut}:{sOut+3}], s{sT0}
        s_add_u32 s{sT0}, s{sT0}, {32 * step}
        s_cmp_lt_u32 s{sT0}, {S * 2 * D * 2}
        s_cbranch_scc1 LG_t2
        LG_t3:
        """)
    a.c("wave 4 clears counter lines id and id + 256")
    a(f"""
    s_cmp_eq_u32 s{sJ}, 0
    s_cbranch_scc0 LG_cleared
    s_lshl_b32 s{sT0}, s2, 7
    s_add_u32 s{sT0}, s{sT0}, {WS_C1}
    v_lshlrev_b32 v8, 15, v0
    v_mov_b32 v9, 0
    s_mov_b64 exec, 3
    buffer_store_dword v9, v8, {WSR()}, s{sT0} offen sc1
    s_mov_b64 exec, -1
    LG_cleared:
    """)
    gemm_compute(a)
    a("LG_done:")
    if PAIR_Q >= 160:
        a("s_barrier")
    stamp(a, 3)
    vectors_get(a)
    a.c("the last wave whose stores have drained publishes the tile")
    a(f"""
    v_mov_b32 v{vP}, {LCNT}
    v_mov_b32 v{vP+1}, 1
    s_waitcnt vmcnt(0)
    s_mov_b64 exec, 1
    ds_add_rtn_u32 v{vP+2}, v{vP}, v{vP+1}
    s_mov_b64 exec, -1
    s_waitcnt lgkmcnt(0)
    v_readfirstlane_b32 s{sT0}, v{vP+2}
    s_cmp_eq_u32 s{sT0}, 3
    s_cbranch_scc0 LG_nopub
    s_call_b64 s[{sLnk}:{sLnk+1}], LG_publish
    LG_nopub:
    """)
    stamp(a, 27)
    a("s_branch LB_lead")
    a("LG_idle:\ns_waitcnt lgkmcnt(0)\ns_barrier")
    drained(a)
    a("s_barrier\ns_barrier")
    vectors_get(a)
    stamp(a, 3)
    a("LB_lead:")
    if 'oldlead' not in OPT:
        a("s_setprio 0")
    call_dma(a, 0, 2)
    a("s_barrier")
    o_mark(a)
    a("s_nop 0")
    write_ones(a, 1)
    a(f"s_mov_b32 s{sM}, {SK}\ns_mov_b32 s{sMend}, {(1 << (SK + 5)) - 1}\ns_mov_b32 s{sRb}, {RB}\ns_mov_b32 s{sNext}, {RB}\ns_mov_b32 s{sRp}, -1")
    attn_zero(a)
    a("s_setprio 2\ns_waitcnt vmcnt(0)\ns_barrier")
    poll_f1(a)
    stamp(a, 26)
    load_q(a)
    call_dma(a, 1, 0)
    call_dma(a, 0, 3)
    if 'oldlead' in OPT:
        scale_q(a, 10)
    a("s_waitcnt vmcnt(0) lgkmcnt(0)\ns_barrier")
    call_dma(a, 1, 1)
    call_dma(a, 0, 4)
    call_dma(a, 1, 2)
    a("s_setprio 0" if 'noprio' in OPT else "s_setprio 1")
    if 'oldlead' not in OPT:
        scale_q(a, 63)
    stamp(a, 5)
    a("s_branch LA_start")
    a("LA_lead:")
    a("s_setprio 3")
    def small_writes():
        a(f"s_cmp_lt_u32 s{sJ}, 2\ns_cbranch_scc0 LA_sw1")
        vectors_put(a)
        a(f"s_branch LA_sw2\nLA_sw1:\nv_mov_b32 v{vP+2}, {LCNT}\ns_mov_b64 exec, 0xff\nds_write_b32 v{vP+2}, v{vP+1}")
        write_ones(a, 0)
        a("LA_sw2:")
    poll_counter(a, vP + 3, f"s{sL+7}", f"s{sExp}", 7, small_writes)
    stamp(a, 1)
    a(f"""
    buffer_load_dwordx4 {vr(Qm[0],4)}, v{vL16}, {WSR()}, s8 offen sc1
    buffer_load_dwordx4 {vr(Qm[1],4)}, v{vL16}, {WSR()}, s9 offen sc1
    buffer_load_dwordx2 {vr(Qe,2)}, v{vE16}, {WSR()}, s10 offen sc1
    """)
    for blk in range(2):
        for p in range(5):
            a(f"buffer_load_dwordx4 v{vD+p}, {WSR()}, s{11 + blk} offen sc1 lds")
            a("s_add_u32 m0, m0, 1024")
            a("s_nop 0" if p < 4 else "s_cmp_eq_u32 s14, 1")
        a(f"s_cbranch_scc1 LA_ld{blk}\nbuffer_load_dwordx4 v{vD+5}, {WSR()}, s{11 + blk} offen sc1 lds\nLA_ld{blk}:")
        if blk == 0:
            a(f"s_add_u32 m0, s13, {RA + 2 * BLK}\ns_nop 0")
    scale_q(a, 10)
    a("s_waitcnt vmcnt(5) lgkmcnt(0)\ns_barrier\ns_setprio 1")
    stamp(a, 3)
    attention(a)
    a(f"s_cmp_eq_u32 s{sRole}, 0\ns_cbranch_scc1 LP_a\ns_barrier")
    stamp(a, 6)
    a(f"s_branch {'LF_end' if 'astamp' in OPT else 'LP_end'}\nLP_a:\ns_waitcnt vmcnt(0)")
    count_in(a, sOc, vP, vP + 1)
    stamp(a, 6)
    a.c("role-A waves: first half of K while role B finishes, second half once it is published")
    a(f"""
    s_and_b32 s{sT0}, s{sHead}, 3
    s_lshl_b32 s{sT1}, s{sBr}, 2
    s_add_u32 s{sT0}, s{sT0}, s{sT1}
    s_lshl_b32 s{sT0}, s{sT0}, 7
    s_add_u32 s{sT0}, s{sT0}, {WS_C4}
    """)
    poll_counter(a, vP + 4, f"s{sT0}", 20, 1)
    a(f"v_pk_mov_b32 {vr(pACC + 32, 2)}, 0, 0")
    for r in range(34, 40, 2):
        a(f"v_pk_mov_b32 {vr(pACC + r, 2)}, 0, 0")
    for r in range(32, 40, 2):
        a(f"v_pk_mov_b32 {vr(pACL + r, 2)}, 0, 0")
    for A in (pACC, pACL):
        a(f"v_mfma_f32_32x32x4_2b_bf16 {vr(A,32)}, {vr(pACC + 32, 2)}, {vr(pACC + 32, 2)}, 0")
    G = lambda i: LDS_BYTES - (11 - i) * 10240
    Lo = lambda i: RB + i * 10240
    assert SK == 3 and G(0) >= RB + 2 * BLK and G(3) >= RB + RING and Lo(3) <= RB + BLK + CH
    call = lambda l: a(f"s_call_b64 s[{sLnk}:{sLnk+1}], {l}")
    o_addr(a)
    out_addr(a)
    a("s_setprio 0")
    stamp(a, 20)
    a("s_barrier")
    stamp(a, 21)
    call_dma(a, 1, 7)
    wo_dma(a, 0, 3, G(3))
    peek(a, 1)
    wo_dma(a, 3, 6, G(6))
    stamp(a, 22)
    a(f"s_waitcnt vmcnt(0)\nv_readfirstlane_b32 s{sT0}, v{vPS+2}\ns_cmp_ge_u32 s{sT0}, 16\ns_cbranch_scc1 LP_seen")
    poll_counter(a, vP + 4, f"s{sFc}", 16, 1)
    a("LP_seen:")
    call("LP_ldhi")
    call("LP_ldlo")
    a(f"s_add_u32 s{sFo}, s{sFo}, 20480\ns_add_u32 s{sFc}, s{sFc}, 128")
    stamp(a, 25)
    a("s_barrier")
    stamp(a, 5)
    set_tab(a, [G(3), G(4), G(5), G(6), G(7), G(8), G(9), G(10), G(0), G(1)])
    call("LP_pro")
    a("s_waitcnt vmcnt(0)")
    wo_dma(a, 6, 8, G(9))
    wo_dma(a, 8, 11, G(0))
    call("LP_hi")
    a("s_waitcnt vmcnt(0) lgkmcnt(0)")
    stamp(a, 26)
    a("s_barrier")
    stamp(a, 28)
    wo_dma(a, 11, 17, G(3))
    peek(a, 3)
    wo_dma(a, 17, 20, Lo(0))
    a("s_waitcnt vmcnt(7)")
    ready_mask(a)
    a("s_cbranch_scc0 LP_n1")
    call("LP_order")
    a("LP_n1:")
    stamp(a, 29)
    call("LP_lo")
    stamp(a, 10)
    a(f"s_waitcnt vmcnt(0)\ns_barrier\ns_cmp_lg_u32 s{sPh}, 0\ns_cbranch_scc1 LP_n2\ns_mov_b32 s{sSpin}, {SPIN}\nLP_any:")
    peek(a, 3)
    a("s_waitcnt vmcnt(0)")
    ready_mask(a)
    a(f"s_cbranch_scc1 LP_got\ns_sleep {SLEEP}\ns_sub_u32 s{sSpin}, s{sSpin}, 1\ns_cbranch_scc0 LP_any\nLP_got:")
    call("LP_order")
    a("LP_n2:")
    stamp(a, 30)
    T = [G(2), G(3), G(4), G(5), G(6), G(7), G(8), Lo(0), Lo(1), Lo(2)]
    a(f"s_cmp_eq_u32 s{sPh}, 3\ns_cbranch_scc0 LP_n3")
    call("LP_ldlo")
    a(f"LP_n3:\ns_cmp_eq_u32 s{sDone}, 1")
    for r, x, y in zip(TAB, T, T[5:] + T[:5]):
        a(f"s_mov_b32 s{r}, {x}\ns_cmov_b32 s{r}, {y}")
    call("LP_pro")
    a.c("each group keeps its own accumulators, so the result does not depend on the order of arrival")
    a("s_cbranch_scc0 LP_n4")
    for r in range(40):
        a(f"v_swap_b32 v{pACC + r}, v{pACL + r}")
    a("LP_n4:")
    a(f"s_waitcnt vmcnt(5)\ns_cmp_eq_u32 s{sPh}, 3\ns_cbranch_scc1 LP_n5\ns_waitcnt vmcnt(0)")
    peek(a, 3)
    a("LP_n5:")
    o_checked(a, "LP_ldhi", 0, False)
    stamp(a, 11)
    call("LP_hi")
    stamp(a, 12)
    a(f"s_cmp_eq_u32 s{sPh}, 3\ns_cbranch_scc1 LP_n6\ns_waitcnt vmcnt(0)")
    ready_mask(a)
    a(f"s_cmp_eq_u32 s{sPh}, 3\ns_cbranch_scc1 LP_n7")
    poll_counter(a, vP + 5, f"s{sFc}", 8, 3)
    a("LP_n7:")
    call("LP_ldlo")
    a("LP_n6:")
    o_checked(a, "LP_ldlo", 5, True)
    stamp(a, 2)
    if common.STAMP: a(f"s_mov_b32 s{STAMP_S+17}, s{sSpin}")
    call("LP_lo")
    stamp(a, 16)
    out_store(a)
    a("LP_end:")
    if common.STAMP:
        a("s_waitcnt vmcnt(0)")
        stamp(a, 7)
        stamp_flush(a, 4)
    a("LF_end:\ns_endpgm")
    dma_sub(a)
    refill(a)
    publish_sub(a)
    order_sub(a)
    o_load_sub(a, "LP_ldhi", 0)
    o_load_sub(a, "LP_ldlo", 5)
    oproj_subs(a)
    repack_steps(a)
    slow_path(a)
    a("LF_codeend:")


def build():
    a = Asm()
    label = NAME + "_kernel"
    a('.amdgcn_target "amdgcn-amd-amdhsa--gfx950"\n.text')
    gen(a, label)
    return (HEADER + f"; @launch grid=(256,1,1) block=(512,1,1) lds={LDS_BYTES}\n" + a.text()
            + '.section .rodata,"a"\n.p2align 6\n' + kernel_desc(label, NVGPR, NVGPR, 100))


if __name__ == "__main__":
    import sys
    for x in sys.argv[2:]:
        if '=' in x:
            k, v = x.split('='); globals()[k] = int(v)
        else:
            OPT.add(x)
    if 'dbgstamp' in OPT:
        common.STAMP = True
    out = sys.argv[1] if len(sys.argv) > 1 else f"cdna_kernels/{NAME}.s"
    open(out, "w").write(build())
```

```python
from common import Asm, vr, sr, f32bits, kernel_head, kernel_desc, QSCALE, S, D, HEADER, NAME
import common

OPT = set()
SK = 3

TILE = 40960
IMG = 64 * TILE
WS_WO = 8 * IMG
WO_SLAB = 204800
WO_HALF = WO_SLAB // 2
WS_C1 = WS_WO + 8 * WO_SLAB
WS_C3 = WS_C1 + 256 * 128
WS_C4 = WS_C3 + 192 * 128
WS_END = WS_C1 + 512 * 128
WS_STAMP = WS_END + 65536

LDS_BYTES = 163840
GSL = 16384
CH = 11264
BLK = 2 * CH
RING = 3 * BLK
ONES = [90112, 0]
RB = 5120
RA = LDS_BYTES - RING
RPK = RB + RING
XFER = 81920
LCNT = 95232

sX, sWt, sWS, sOut, sDbg = 8, 12, 16, 20, 24
sPtr = 28
sW, sJ, sRole = 40, 41, 42
sHead, sQB, sTI, sTB = 43, 44, 45, 46
sT0, sT1, sT2, sT3, sT4 = 47, 48, 49, 50, 51
sIt, sSlot, sKB, sInc = 52, 53, 54, 55
sXo, sWo = 56, 57
sNext, sRb, sRe, sRem = 52, 53, 54, 55
sM, sMend = 56, 57
sOm, sExt = 58, 59
sSpin = 60
sBr = 61
sU0, sU1, sImg, sPh = 96, 97, 98, 99
sExp = 3
sDone = 36
sOb = 37
sOc = 97
sFo, sFc = 38, 39
sRp = 96
sE = 56
sLnk = 62
STAMP_S = 64

RP_AT = 4
TLB_AT = 2
SPIN = 1 << 15
SLEEP = 2


NST = 32


def stamp(a, i):
    if common.STAMP:
        a(f"s_memrealtime s[4:5]\ns_waitcnt lgkmcnt(0)\ns_mov_b32 s{STAMP_S+i}, s4")


def stamp_cyc(a, i):
    if common.STAMP:
        a(f"s_memtime s[4:5]\ns_waitcnt lgkmcnt(0)\ns_mov_b32 s{STAMP_S+i}, s4")


def stamp_idx(a, base, sreg):
    if common.STAMP and 'cyc' in OPT:
        a(f"s_memtime s[4:5]\ns_mov_b32 m0, s{sreg}\ns_waitcnt lgkmcnt(0)\ns_movreld_b32 s{STAMP_S+base}, s4")


def stamp_flush(a, vt):
    if not common.STAMP:
        return
    a(f"""
    s_mov_b64 exec, 1
    s_lshl_b32 s{sT0}, s2, 3
    s_add_u32 s{sT0}, s{sT0}, s{sW}
    s_lshl_b32 s{sT0}, s{sT0}, 7
    s_add_u32 s{sT0}, s{sT0}, {WS_STAMP}
    v_mov_b32 v{vt+2}, 0
    """)
    for i in range(NST):
        a(f"v_mov_b32 v{vt}, s{STAMP_S+i}")
        a(f"buffer_store_dword v{vt}, v{vt+2}, s[{sWS}:{sWS+3}], s{sT0} offen offset:{4*i}")
    if 'dbgstamp' in OPT:
        a(f"s_cmp_eq_u32 s2, 100\ns_cbranch_scc0 LF_nodbg\ns_cmp_eq_u32 s{sJ}, 0\ns_cbranch_scc0 LF_nodbg\ns_lshl_b32 s{sT0}, s{sRole}, 5")
        for i in range(8):
            a(f"s_sub_u32 s{sT1}, s{STAMP_S+i}, s{STAMP_S}")
            a(f"v_mov_b32 v{vt}, s{sT1}")
            a(f"buffer_store_dword v{vt}, v{vt+2}, s[{sDbg}:{sDbg+3}], s{sT0} offen offset:{4*i}")
        a("LF_nodbg:")


def WSR():
    return f"s[{sWS}:{sWS+3}]"


_lbl = [0]


def poll(a, loads, expect, vtmp):
    _lbl[0] += 1
    L = f"LF_poll{_lbl[0]}"
    a(f"s_mov_b32 s{sSpin}, {SPIN}\n{L}:")
    for i, (vo, srd, so) in enumerate(loads):
        a(f"buffer_load_dword v{vtmp+i}, v{vo}, {srd}, {so} offen sc1")
    a("s_waitcnt vmcnt(0)")
    for i in range(1, len(loads)):
        a(f"v_min_u32 v{vtmp}, v{vtmp}, v{vtmp+i}")
    a(f"""
    v_cmp_gt_u32 vcc, {expect}, v{vtmp}
    s_cbranch_vccz {L}_ok
    s_sleep {SLEEP}
    s_sub_u32 s{sSpin}, s{sSpin}, 1
    s_cbranch_scc0 {L}
    {L}_ok:
    """)


def poll_counter(a, vo, so, expect, mask, meanwhile=None):
    _lbl[0] += 1
    L = f"LF_pc{_lbl[0]}"
    rd = (f"v_mov_b32 v{vPS}, 0\nbuffer_atomic_add v{vPS}, v{vo}, {WSR()}, {so} offen sc0 sc1" if 'ldpoll' not in OPT else
          f"buffer_load_dword v{vPS}, v{vo}, {WSR()}, {so} offen sc1")
    a(f"s_mov_b32 s{sSpin}, {SPIN}\ns_mov_b64 exec, {mask}")
    if meanwhile:
        a(f"{rd}\ns_mov_b64 exec, -1")
        meanwhile()
        a(f"s_mov_b64 exec, {mask}\ns_branch {L}_w")
    a(f"""
    {L}:
    {rd}
    {L}_w:
    s_waitcnt vmcnt(0)
    v_cmp_gt_u32 vcc, {expect}, v{vPS}
    s_cbranch_vccz {L}_ok
    s_sleep {SLEEP}
    s_sub_u32 s{sSpin}, s{sSpin}, 1
    s_cbranch_scc0 {L}
    {L}_ok:
    s_mov_b64 exec, -1
    """)


def count_in(a, soff, vz, vd):
    a(f"""
    v_mov_b32 v{vz}, 0
    v_mov_b32 v{vd}, 1
    s_mov_b64 exec, 1
    buffer_atomic_add v{vd}, v{vz}, {WSR()}, s{soff} offen sc1
    s_mov_b64 exec, -1
    """)


gXF = 0
gWF = 160
gWA = [184, 185, 186, 187]
gXA = 188
gT = 189
gACC = 192


PUB_BAR = 12
LAST_BAR = 16
PAIR_Q = 155
HIGH_Q = 144
CNT_AT = 1
NFIRST = 5
MAXISS = 3
FAST_BAR = 7
PF_BAR = 3
ROT = 4


def stage_barriers():
    return list(range(0, 12)) + [LAST_BAR]


def gemm_schedule():
    items = [x for n in range(10) for x in (("X", n), ("W", n))] + [("W", n) for n in range(10, 20)]
    rel = lambda it: it[1] + (1 if it[0] == "X" else 2)
    free = list(range(10))
    slot, when, freed = {}, {}, set()
    k = 0
    for bar in range(-1, 12):
        for it in items:
            if it in slot and it not in freed and rel(it) <= bar:
                free.append(slot[it])
                freed.add(it)
        n = 0
        while k < len(items) and free and n < (NFIRST if bar == -1 else 10 if bar == 11 else MAXISS if bar >= FAST_BAR else 2) and bar != 10:
            slot[items[k]] = free.pop(0)
            when[items[k]] = bar
            k += 1
            n += 1
    assert k == len(items) and when[("W", LAST_BAR - 1)] <= 9 and when[("W", 17)] == 11
    assert max(rel(it) for it in items[:-3] if slot[it] == slot[("W", 17)]) <= 10
    order = [slot[("W", n)] for n in (15, 16, 17, 18, 19, 13, 14, 10, 11, 12)]
    assert sorted(order) == list(range(10)), order
    slot = {it: order.index(v) for it, v in slot.items()}
    return items, slot, when


LCNT0 = 2 * GSL


def lane_id(a, v):
    a(f"v_mbcnt_lo_u32_b32 v{v}, -1, 0\nv_mbcnt_hi_u32_b32 v{v}, -1, v{v}")


def drained(a):
    a(f"s_waitcnt vmcnt(0)\ns_mov_b64 exec, 1\nds_add_u32 v{gT+1}, v{gT+2}\ns_mov_b64 exec, -1\ns_mov_b32 s{sDone}, 1")


def gemm_body(a, vtype):
    L = "LG_v" if vtype else "LG_q"
    items, slot, when = gemm_schedule()

    def kc(q):
        return ((q & 3, (q >> 2) & 3) if q >= 144 else ((q >> 2) & 3, q & 3))

    def wreads(q):
        ks, c = kc(q)
        d = gWF + 4 * (q % 6)
        return [f"ds_read_b64_tr_b16 {vr(d + 2*u, 2)}, v{gWA[c]} offset:{ks*4096 + u*1024}" for u in range(2)]

    def xreads(n, between=""):
        for ks in range(4):
            d = gXF + 4 * (4 * n + ks)
            a(f"v_xor_b32 v{d}, {32 * ks}, v{gXA}")
        a(between)
        for ks in range(4):
            d = gXF + 4 * (4 * n + ks)
            a(f"ds_read_b128 {vr(d,4)}, v{d}")

    def pack(c):
        out = []
        A = gACC + 16 * c
        out += [f"v_cvt_pk_bf16_f32 v{gACC + 8*c + j}, v{A+2*j}, v{A+2*j+1}" for j in range(8)]
        return out

    def stores(c):
        out = []
        for i in range(2):
            d = vr(gACC + 8*c + 4*i, 4)
            if vtype:
                out.append(f"buffer_store_dwordx4 {d}, v{gT}, {WSR()}, s{sE + i} offen offset:{c * 512} sc1")
            else:
                out.append(f"buffer_store_dwordx4 {d}, v{gT}, {WSR()}, s{sE + (c >> 1)} offen offset:{(c & 1) * 2048 + i * 1024} sc1")
        return out

    a("s_barrier")
    a(f"s_mov_b32 s{sDone}, 1")
    stamp(a, 1)
    xreads(0)
    for q in range(6):
        for r in wreads(q):
            a(r)
    a(f"{L}_body:")
    for q in range(160):
        n = q >> 4
        ks, c = kc(q)
        if q <= 154:
            a(f"s_waitcnt lgkmcnt({2 * (min(q + 5, 159) - q)})")
        elif q == 155:
            a("s_waitcnt lgkmcnt(0)")
        x, w = vr(gXF + 4 * (4 * n + ks), 4), vr(gWF + 4 * (q % 6), 4)
        A, B = (x, w) if vtype else (w, x)
        d = vr(gACC + 16 * c, 16)
        a(f"v_mfma_f32_32x32x16_bf16 {d}, {A}, {B}, {'0' if q < 4 else d}")
        r16 = q & 15
        if r16 == 10:
            if n + 11 in stage_barriers():
                a("s_barrier")
            a(f"s_cbranch_scc0 {L}_xa{n}\n{L}_xb{n}:")
        if q + 6 < 160:
            for r in wreads(q + 6):
                a(r)
        if PUB_BAR <= n + 11 <= LAST_BAR:
            if r16 == 0:
                a.c("phase b: report once that this wave's stores have drained")
                a(f"s_getreg_b32 s{sT0}, hwreg(HW_REG_IB_STS, 0, 4)" if n + 11 < LAST_BAR else f"s_mov_b32 s{sT0}, 0")
            if r16 == 1:
                a(f"s_or_b32 s{sT0}, s{sT0}, s{sDone}")
            if r16 == 2:
                a(f"s_cbranch_scc0 {L}_da{n}\n{L}_db{n}:")
        if r16 == 3:
            a(f"s_cmp_eq_u32 s{sPh}, 1")
        if r16 == 4:
            a(f"s_mov_b32 s{sInc}, {((slot[('W', n + 1)] - slot[('W', n)]) * GSL) & 0xffffffff}")
        if r16 == 5 and n < 9:
            a(f"s_cmov_b32 s{sInc}, {((slot[('W', n + 11)] - slot[('W', n + 10)]) * GSL) & 0xffffffff}")
        if 6 <= r16 <= 9:
            a(f"v_add_u32 v{gWA[r16 - 6]}, s{sInc}, v{gWA[r16 - 6]}")
        if q == HIGH_Q:
            a("s_setprio 2")
        if q == PAIR_Q:
            low = "s_setprio 0\n" if PAIR_Q < HIGH_Q else ""
            a(f"s_cbranch_scc0 {L}_np\ns_barrier\n{low}{L}_np:")
        if q in (150, 154):
            for x in pack((q - 150) // 4):
                a(x)
        if q in (151, 155):
            for x in stores((q - 151) // 4):
                a(x)
        if q == 156:
            a("s_nop 7")
        if q == 158:
            for x in pack(2):
                a(x)
    for x in stores(2):
        a(x)
    a(f"s_cbranch_scc1 {L}_nopre")
    for q in range(6):
        for r in wreads(q):
            a(r)
    a(f"{L}_nopre:\ns_nop 9")
    for x in pack(3) + stores(3):
        a(x)
    a(f"s_cbranch_scc1 LG_done")
    stamp(a, 2)
    next_units(a)
    step = 6 * 1024 if vtype else 5 * 4096
    a(f"s_add_u32 s{sE}, s{sE}, {step}\ns_add_u32 s{sE+1}, s{sE+1}, {step}\ns_mov_b32 s{sDone}, 0")
    if vtype:
        a(f"s_cmp_eq_u32 s{sTI}, 7\ns_cbranch_scc1 LG_idle")
    a(f"s_branch {L}_body")
    for n in range(10):
        a(f"{L}_xa{n}:")
        if n == CNT_AT:
            a.c("this workgroup has cleared its share of the counters: count it in")
            a(f"""
            s_waitcnt vmcnt(0)
            s_cmp_eq_u32 s{sW}, 4
            s_cbranch_scc0 {L}_nocount
            s_and_b32 s{sT0}, s2, 31
            s_lshl_b32 s{sT0}, s{sT0}, 2
            s_add_u32 s{sT0}, s{sT0}, 128
            v_mov_b32 v{gT+1}, 0
            v_mov_b32 v{gT+2}, 1
            s_mov_b64 exec, 1
            buffer_atomic_add v{gT+2}, v{gT+1}, s[{sDbg}:{sDbg+3}], s{sT0} offen sc1
            s_mov_b64 exec, -1
            {L}_nocount:
            v_mov_b32 v{gT+1}, {LCNT0}
            v_mov_b32 v{gT+2}, 1
            s_cmp_eq_u32 s{sPh}, 1
            """)
        if n + 1 < 10:
            dx = (slot[("X", n + 1)] - slot[("X", n)]) * GSL
            a(f"v_add_u32 v{gXA}, {dx & 0xffffffff}, v{gXA}")
            xreads(n + 1, "" if n + 11 in stage_barriers() else "s_barrier")
        else:
            a("s_barrier")
        a(f"s_branch {L}_xb{n}")
    for n in range(PUB_BAR - 11, LAST_BAR - 10):
        a(f"{L}_da{n}:")
        drained(a)
        a(f"s_branch {L}_db{n}")


def next_units(a):
    a(f"""
    s_mov_b32 s{sPh}, 1
    s_cmp_ge_u32 s{sTI}, 5
    s_cselect_b32 s{sT0}, 6, 5
    s_add_u32 s{sU0}, s{sU0}, s{sT0}
    s_add_u32 s{sU1}, s{sU1}, s{sT0}
    """)


def publish_sub(a):
    t = vPS
    a(f"""
    LG_publish:
    v_cmp_lt_u32 vcc, 31, v0
    v_mov_b32 v{t+3}, s{sU0}
    v_mov_b32 v{t+4}, s{sU1}
    v_cndmask_b32 v{t+3}, v{t+3}, v{t+4}, vcc
    v_mul_u32_u24 v{t+4}, 205, v{t+3}
    v_lshrrev_b32 v{t+4}, 11, v{t+4}
    v_mul_u32_u24 v{t+5}, 10, v{t+4}
    v_sub_u32 v{t+3}, v{t+3}, v{t+5}
    v_lshlrev_b32 v{t+3}, 3, v{t+3}
    v_and_b32 v{t+5}, 31, v0
    v_lshl_add_u32 v{t+4}, v{t+5}, 2, v{t+4}
    v_lshlrev_b32 v{t+4}, 7, v{t+4}
    v_mul_u32_u24 v{t+5}, 5, v{t+5}
    v_lshrrev_b32 v{t+5}, 1, v{t+5}
    v_add_u32 v{t+5}, 2, v{t+5}
    v_sub_u32 v{t+5}, v{t+5}, v{t+3}
    v_cmp_gt_u32 vcc, 10, v{t+5}
    v_mov_b32 v{t+1}, 1
    s_lshl_b32 s{sT1}, s{sBr}, 14
    s_add_u32 s{sT1}, s{sT1}, {WS_C1}
    s_mov_b64 exec, vcc
    buffer_atomic_add v{t+1}, v{t+4}, {WSR()}, s{sT1} offen sc1
    s_mov_b64 exec, -1
    s_setpc_b64 s[{sLnk}:{sLnk+1}]
    """)


def gemm_compute(a):
    items, slot, when = gemm_schedule()
    t0, t1, t2 = 8, 9, 10
    a(f"""
    v_and_b32 v{t0}, 31, v0
    v_lshrrev_b32 v{t1}, 5, v0
    v_lshrrev_b32 v{t2}, 1, v{t0}
    v_and_b32 v{t2}, 7, v{t2}
    v_xor_b32 v{t2}, v{t2}, v{t1}
    v_lshlrev_b32 v{t2}, 4, v{t2}
    v_lshlrev_b32 v{t0}, 7, v{t0}
    v_add_u32 v{t2}, v{t2}, v{t0}
    s_lshl_b32 s{sT0}, s{sJ}, 12
    s_add_u32 s{sT0}, s{sT0}, {slot[("X", 0)] * GSL}
    v_add_u32 v{gXA}, s{sT0}, v{t2}
    v_lshrrev_b32 v{t0}, 2, v0
    v_and_b32 v{t0}, 3, v{t0}
    v_lshlrev_b32 v{t2}, 3, v{t1}
    v_add_u32 v{t2}, v{t2}, v{t0}
    v_lshlrev_b32 v{t2}, 8, v{t2}
    v_lshlrev_b32 v{t0}, 6, v{t0}
    v_add_u32 v{t2}, v{t2}, v{t0}
    v_and_b32 v{t0}, 16, v0
    v_lshlrev_b32 v{t0}, 1, v{t0}
    v_add_u32 v{t2}, v{t2}, v{t0}
    v_add_u32 v{t2}, {slot[("W", 0)] * GSL}, v{t2}
    v_and_b32 v{t0}, 1, v0
    v_and_b32 v{t1}, 2, v0
    s_cmp_ge_u32 s{sTI}, 5
    s_cselect_b32 s{sT0}, 3, 4
    s_cselect_b32 s{sT1}, 3, 2
    v_lshlrev_b32 v{t0}, s{sT0}, v{t0}
    v_lshlrev_b32 v{t1}, s{sT1}, v{t1}
    v_add3_u32 v{gWA[0]}, v{t2}, v{t0}, v{t1}
    v_xor_b32 v{gWA[1]}, 64, v{gWA[0]}
    v_xor_b32 v{gWA[2]}, 128, v{gWA[0]}
    v_xor_b32 v{gWA[3]}, 192, v{gWA[0]}
    s_lshl_b32 s{sT0}, s{sTB}, 2
    s_add_u32 s{sT0}, s{sT0}, s{sJ}
    s_mul_i32 s{sT0}, s{sT0}, {TILE}
    s_add_u32 s{sT0}, s{sT0}, s{sImg}
    v_lshlrev_b32 v{gT}, 4, v0
    s_cmp_ge_u32 s{sTI}, 5
    s_cbranch_scc1 LG_vtype
    s_lshl_b32 s{sE}, s{sU0}, 12
    s_lshl_b32 s{sE+1}, s{sU1}, 12
    s_cmp_ge_u32 s{sU0}, 10
    s_cselect_b32 s{sT3}, {IMG - 40960}, 0
    s_add_u32 s{sE}, s{sE}, s{sT3}
    s_cmp_ge_u32 s{sU1}, 10
    s_cselect_b32 s{sT3}, {IMG - 40960}, 0
    s_add_u32 s{sE+1}, s{sE+1}, s{sT3}
    s_add_u32 s{sE}, s{sE}, s{sT0}
    s_add_u32 s{sE+1}, s{sE+1}, s{sT0}
    """)
    gemm_body(a, False)
    a(f"""
    LG_vtype:
    s_lshl_b32 s{sE}, s{sU0}, 10
    s_add_u32 s{sE}, s{sE}, {2 * IMG - 20480}
    s_add_u32 s{sE}, s{sE}, s{sT0}
    s_add_u32 s{sE+1}, s{sE}, 20480
    v_lshrrev_b32 v8, 5, v0
    v_mul_u32_u24 v8, 10240 - 512, v8
    v_add_u32 v{gT}, v{gT}, v8
    """)
    gemm_body(a, True)


def touch_pages(a):
    a.c("every MiB that is first used later is touched once per group of workgroups, so that its translation is at hand")
    a(f"""
    s_lshr_b32 s{sT0}, s2, 3
    s_lshl_b32 s{sT0}, s{sT0}, 20
    s_cmp_eq_u32 s{sJ}, 1
    s_cbranch_scc0 LL_t1
    s_min_u32 s{sT1}, s{sT0}, {WS_END - 4}
    s_load_dword s6, s[{sWS}:{sWS+1}], s{sT1}
    LL_t1:
    s_cmp_eq_u32 s{sJ}, 2
    s_cbranch_scc0 LL_t2
    s_min_u32 s{sT1}, s{sT0}, {S * 2 * D * 2 - 4}
    s_load_dword s7, s[{sPtr+4}:{sPtr+5}], s{sT1}
    s_min_u32 s{sT1}, s{sT0}, {D * D * 2 - 4}
    s_load_dword s7, s[{sPtr+2}:{sPtr+3}], s{sT1}
    s_load_dword s6, s[{sPtr+6}:{sPtr+7}], 0
    LL_t2:
    """)


def gemm_loader(a):
    items, slot, when = gemm_schedule()
    vE, vO, vWs, vCnt = 230, 231, 232, 233
    sKX, sKW = sKB, sSlot
    a(f"""
    v_lshrrev_b32 v5, 3, v0
    v_mul_u32_u24 v5, 1280, v5
    v_and_b32 v6, 7, v0
    v_lshrrev_b32 v7, 4, v0
    v_xor_b32 v6, v6, v7
    v_lshlrev_b32 v6, 4, v6
    v_add_u32 v{vE}, v5, v6
    v_xor_b32 v6, 64, v6
    v_add_u32 v{vO}, v5, v6
    v_add_u32 v{vO}, {8 * 1280 - 1024}, v{vO}
    v_lshrrev_b32 v5, 2, v0
    v_and_b32 v5, 3, v5
    v_xor_b32 v5, v5, v7
    v_lshrrev_b32 v6, 1, v5
    s_sub_u32 s{sT0}, s{sU1}, s{sU0}
    s_lshl_b32 s{sT0}, s{sT0}, 7
    v_mul_u32_u24 v6, s{sT0}, v6
    v_and_b32 v5, 1, v5
    v_lshl_add_u32 v5, v5, 6, v6
    v_and_b32 v6, 3, v0
    v_lshl_add_u32 v5, v6, 4, v5
    v_mul_u32_u24 v6, 3840, v7
    v_add_u32 v{vWs}, v5, v6
    s_lshl_b32 s{sXo}, s{sTB}, 2
    s_add_u32 s{sXo}, s{sXo}, s{sJ}
    s_mul_i32 s{sXo}, s{sXo}, {32 * 1280}
    s_mul_i32 s{sWo}, s{sJ}, {16 * 3840}
    s_lshl_b32 s{sT0}, s{sU0}, 7
    s_add_u32 s{sWo}, s{sWo}, s{sT0}
    s_lshl_b32 s{sInc}, s{sJ}, 12
    """)
    a.c("workgroups that share a tile start at different k-blocks, so that they fill the L2 together")
    if ROT == 2:
        a(f"s_xor_b32 s{sKX}, s{sTB}, s{sTI}\ns_and_b32 s{sKX}, s{sKX}, 1\ns_mul_i32 s{sKX}, s{sKX}, 5")
    elif ROT == 3:
        a(f"""
        s_and_b32 s{sKX}, s{sTB}, 3
        s_add_u32 s{sKX}, s{sKX}, s{sTI}
        s_mul_i32 s{sT0}, s{sKX}, 43
        s_lshr_b32 s{sT0}, s{sT0}, 7
        s_mul_i32 s{sT0}, s{sT0}, 3
        s_sub_u32 s{sKX}, s{sKX}, s{sT0}
        s_mul_i32 s{sKX}, s{sKX}, 7
        s_lshr_b32 s{sKX}, s{sKX}, 1
        """)
    elif ROT == 4:
        a(f"""
        s_add_u32 s{sKX}, s{sTB}, s{sTI}
        s_and_b32 s{sKX}, s{sKX}, 3
        s_mul_i32 s{sKX}, s{sKX}, 5
        s_add_u32 s{sKX}, s{sKX}, 1
        s_lshr_b32 s{sKX}, s{sKX}, 1
        """)
    elif ROT:
        a(f"""
        s_and_b32 s{sKX}, s{sTB}, 3
        s_mul_i32 s{sKX}, s{sKX}, 5
        s_add_u32 s{sKX}, s{sKX}, 1
        s_lshr_b32 s{sKX}, s{sKX}, 1
        s_add_u32 s{sKX}, s{sKX}, s{sTI}
        s_cmp_ge_u32 s{sKX}, 10
        s_cselect_b32 s{sT0}, 10, 0
        s_sub_u32 s{sKX}, s{sKX}, s{sT0}
        """)
    else:
        a(f"s_and_b32 s{sKX}, s{sTI}, 1")
    a(f"s_mov_b32 s{sKW}, s{sKX}\ns_mov_b32 s{sIt}, 0")
    a(f"""
    s_mov_b32 s{sX+2}, {S * D * 2}
    s_mov_b32 s{sX+3}, 0x00020000
    s_mov_b32 s{sWt+2}, {D * 3 * D * 2}
    s_mov_b32 s{sWt+3}, 0x00020000
    s_waitcnt lgkmcnt(0)
    s_and_b32 s{sX+1}, s{sX+1}, 0xffff
    s_mov_b32 s{sWt}, s{sPtr}
    s_and_b32 s{sWt+1}, s{sPtr+1}, 0xffff
    """)
    if 'tlb2' in OPT:
        a.c("start the address translations of the pages of W (and the other end of X) together with the first X loads")
        a(f"""
        s_mul_i32 s{sT0}, s{sJ}, {(D * 3 * D * 2 - 4) // 3 // 4 * 4}
        s_buffer_load_dword s6, s[{sWt}:{sWt+3}], s{sT0}
        """)
    a(f"""
    s_branch LL_go
    """)
    a(f"""
    LL_X:
    s_lshl_b32 s{sT0}, s{sKX}, 7
    s_add_u32 s{sT0}, s{sT0}, s{sXo}
    s_add_u32 s{sKX}, s{sKX}, 1
    buffer_load_dwordx4 v{vE}, s[{sX}:{sX+3}], s{sT0} offen lds
    buffer_load_dwordx4 v{vO}, s[{sX}:{sX+3}], s{sT0} offen offset:1024 lds
    s_add_u32 m0, m0, 2048
    s_add_u32 s{sT0}, s{sT0}, {16 * 1280}
    buffer_load_dwordx4 v{vE}, s[{sX}:{sX+3}], s{sT0} offen lds
    buffer_load_dwordx4 v{vO}, s[{sX}:{sX+3}], s{sT0} offen offset:1024 lds
    s_cmp_eq_u32 s{sKX}, 10
    s_cselect_b32 s{sKX}, 0, s{sKX}
    s_setpc_b64 s[{sLnk}:{sLnk+1}]
    LL_Wskip:
    s_waitcnt vmcnt(0)
    s_setpc_b64 s[{sLnk}:{sLnk+1}]
    LL_W:
    s_cmp_eq_u32 s{sIt}, 1
    s_cbranch_scc1 LL_Wskip
    s_mul_i32 s{sT1}, s{sKW}, {64 * 3840}
    s_add_u32 s{sT1}, s{sT1}, s{sWo}
    s_add_u32 s{sKW}, s{sKW}, 1
    """)
    for p in range(4):
        a(f"buffer_load_dwordx4 v{vWs}, s[{sWt}:{sWt+3}], s{sT1} offen lds")
        if p < 3:
            a(f"s_add_u32 m0, m0, 1024")
            a(f"s_add_u32 s{sT1}, s{sT1}, {4 * 3840}")
    a(f"""
    s_cmp_eq_u32 s{sKW}, 10
    s_cselect_b32 s{sKW}, 0, s{sKW}
    s_setpc_b64 s[{sLnk}:{sLnk+1}]
    """)
    a("LL_go:")
    delay(a, 2)
    stamp(a, 13)
    q = []

    def issue(it):
        if it == ("W", 10):
            a(f"s_cmp_ge_u32 s{sTI}, 5\ns_cselect_b32 s{sT0}, {6 * 128}, s{sC640}\ns_add_u32 s{sWo}, s{sWo}, s{sT0}")
            a(f"s_cmp_eq_u32 s{sTI}, 7\ns_cselect_b32 s{sIt}, 1, 0")
        a(f"s_add_u32 m0, s{sInc}, {slot[it] * GSL}\ns_call_b64 s[{sLnk}:{sLnk+1}], LL_{it[0]}")
        q.extend([it] * 4)

    def wait_for(names):
        last = max(i for i, x in enumerate(q) if x in names)
        a(f"s_waitcnt vmcnt({min(63, len(q) - 1 - last)})")

    sC640 = sT4
    first = [it for it in items if when[it] == -1]
    for i, it in enumerate(first):
        if i == TLB_AT:
            touch_pages(a)
        issue(it)
    stamp(a, 14)
    vPf = 234
    bars = stage_barriers()
    stamp(a, 15)
    for bi, bar in enumerate(bars):
        upto = bars[bi + 1] - 1 if bi + 1 < len(bars) else 19
        wait_for([("X", bar), ("W", upto)] + (["cnt"] if bar == 11 else []))
        if bar == 11:
            a.c("all counters must have been cleared before the first one is used")
            a(f"v_cmp_gt_u32 vcc, 8, v{vCnt}\ns_cbranch_vccz LL_cnt_ok")
            poll(a, [(vP + 5, f"s[{sDbg}:{sDbg+3}]", "0")], 8, vPS)
            a("LL_cnt_ok:")
        a("s_barrier")
        if bar not in (2, 3, 4, 5, 6, 7, 8, 9): stamp(a, 8 + min(bar, 15))
        if bar == 11:
            attn_scalars(a)
            attn_vectors(a)
            repack_setup(a)
            a.c("wave 0 publishes the phase-a tile once its four storing waves have reported")
            a(f"""
            v_mov_b32 v{vP+2}, {LCNT0}
            s_cmp_lg_u32 s{sJ}, 0
            s_cbranch_scc1 LL_pub
            s_mov_b32 s{sSpin}, {SPIN * 8}
            LL_try:
            ds_read_b32 v{vP}, v{vP+2}
            s_waitcnt lgkmcnt(0)
            v_readfirstlane_b32 s{sT0}, v{vP}
            s_cmp_eq_u32 s{sT0}, 4
            s_cbranch_scc1 LL_try_go
            s_sub_u32 s{sSpin}, s{sSpin}, 1
            s_cbranch_scc0 LL_try
            LL_try_go:
            s_call_b64 s[{sLnk}:{sLnk+1}], LG_publish
            """)
            stamp(a, 27)
            a("LL_pub:")
        a(f"s_mov_b32 s{sC640}, 640")
        for it in items:
            if when[it] == bar:
                issue(it)
        if bar == 11:
            lead_prepare(a)
        if bar == 10:
            a(f"v_mov_b32 v{vP}, 0\nv_mov_b32 v{vP+2}, {LCNT0}\nds_write_b32 v{vP+2}, v{vP}\ns_waitcnt lgkmcnt(0)")
        if bar + 10 == TLB_AT:
            touch_pages(a)
        if bar == PF_BAR:
            a.c("one load per 128-B line of the phase-b columns of five weight rows brings them on chip ahead of use")
            a(f"""
            s_lshr_b32 s{sT0}, s2, 3
            s_lshl_b32 s{sT0}, s{sT0}, 2
            s_and_b32 s{sT1}, s2, 3
            s_add_u32 s{sT0}, s{sT0}, s{sT1}
            s_mul_i32 s{sT0}, s{sT0}, {5 * 3840}
            s_mul_i32 s{sT1}, s{sJ}, 19
            v_add_u32 v8, s{sT1}, v0
            v_min_u32 v8, 74, v8
            v_mul_u32_u24 v9, 205, v8
            v_lshrrev_b32 v9, 10, v9
            v_mul_u32_u24 v9, 5, v9
            v_add3_u32 v9, v9, v8, 5
            v_lshlrev_b32 v{vPf}, 7, v9
            s_mov_b64 exec, 0x7ffff
            buffer_load_dword v{vPS}, v{vPf}, s[{sWt}:{sWt+3}], s{sT0} offen
            s_mov_b64 exec, -1
            """)
            q.append("pf")
        if bar == 8:
            common_setup(a)
            a(f"v_lshlrev_b32 v{vP+5}, 2, v0\nv_or_b32 v{vP+5}, 128, v{vP+5}")
            a(f"buffer_load_dword v{vCnt}, v{vP+5}, s[{sDbg}:{sDbg+3}], 0 offen sc1")
            q.append("cnt")
    a("s_branch LA_lead")


vKA, vVA, vT0, vT1 = 1, 2, 3, 14
Qm = [4, 8]
Qe = 12
vL16 = 15
Km = [16, 20]
Ke = 24
Vb = [[28, 32], [36, 40]]
vVbase, vVflag, vE16, vVG = 44, 45, 46, 47
NM = 48
SB = [80, 112]
OA = [144, 160]
vD = 176
vP = 182
vPS = 188
vVB2 = 248
NVGPR = 256


def mfma32(d, a_, b, c):
    return f"v_mfma_f32_32x32x16_bf16 {vr(d,16)}, {vr(a_,4)}, {vr(b,4)}, {c}"


def mfma2b(d, ke_tile, c):
    return (f"v_mfma_f32_32x32x4_2b_bf16 {vr(d,32)}, {vr(Ke + 2 * (ke_tile >> 1), 2)}, {vr(Qe,2)}, {c}"
            f" cbsz:1 abid:{ke_tile & 1}")


def valu_stream(X, Y):
    def e(base, i): return f"v_exp_f32 v{base+i}, v{base+i}"
    def c(j):
        dst = X + 8 * (j // 4) + (j % 4)
        if 'cvt' in OPT:
            return f"v_cvt_pk_bf16_f32 v{dst}, v{X+2*j}, v{X+2*j+1}"
        return f"v_pack_b32_f16 v{dst}, v{X+2*j}, v{X+2*j+1} op_sel:[1,1,0]"
    out = [e(X, 1)]
    for j in range(16):
        out.append(e(X, 2 * j + 2) if j < 15 else e(Y, 0))
        out.append(c(j))
        if j < 15:
            out.append(e(X, 2 * j + 3))
    return out


def tile_iter(a, ii, half=1):
    par = ii & 1
    X, Y = SB[par], SB[par ^ 1]
    Vc, Vn = Vb[par], Vb[par ^ 1]
    Kc, Kn = Km[par ^ 1], Km[par]
    v = valu_stream(X, Y)
    t1 = (ii + 1) % 4
    t2 = (ii + 2) % 4
    kch = CH if (half == 0) == (ii >= 2) else 0
    ins = {}
    ins[2] = [mfma32(OA[1], Vn[1], Y + 24, vr(OA[1], 16)),
              f"ds_read_b128 {vr(Vn[0],4)}, v{vVA} offset:{t1 * 1280}"]
    ins[7] = [mfma2b(Y, t1, 0 if 'c0' in OPT else vr(NM, 32))]
    ins[17] = [mfma32(OA[0], Vc[0], X, vr(OA[0], 16)),
               f"ds_read_b128 {vr(Vn[1],4)}, v{vVA} offset:{t1 * 1280 + 640}"]
    ins[23] = [mfma32(Y, Kc, Qm[0], vr(Y, 16)),
               f"ds_read_b128 {vr(Kn,4)}, v{vKA} offset:{kch + 2048 + t2 * 1024}"]
    ins[29] = [mfma32(OA[0], Vc[1], X + 8, vr(OA[0], 16))]
    ins[35] = [mfma32(Y + 16, Kc, Qm[1], vr(Y + 16, 16))]
    ins[41] = [mfma32(OA[1], Vc[0], X + 16, vr(OA[1], 16)),
               "s_waitcnt lgkmcnt(0)"]
    if ii == 0:
        ins[29].append(f"s_add_u32 s{sNext}, s{sNext}, {CH}")
    if ii == 2:
        ins[29].append(f"ds_read2st64_b64 {vr(Ke,4)}, v{vKA} offset0:{kch // 512} offset1:{kch // 512 + 2}")
        ins[44] = [f"v_mad_u32_u24 v{vVA}, v{vVflag}, s{sNext}, v{vVbase}"]
    if half == 0:
        if ii == 1:
            ins[29].append(f"s_cmp_eq_u32 s{sM}, s{sRp}")
            ins[35] += ["s_cbranch_scc1 LR_step", "LA_bar:"]
        if ii == 2 and 'noprio' not in OPT:
            ins[35].append("s_setprio 0")
        if ii == 3:
            ins[29].append(f"s_bitcmp1_b32 s{sMend}, s{sM}")
            ins[35] += ["s_waitcnt vmcnt(0)", "s_barrier"]
            if common.STAMP and 'cyc' in OPT:
                ins[35] += ["s_memtime s[4:5]", f"s_mov_b32 m0, s{sM}", "s_waitcnt lgkmcnt(0)", f"s_movreld_b32 s{STAMP_S+8}, s4"]
            if 'noprio' not in OPT:
                ins[35].append("s_setprio 1")
            ins[35] += ["s_cbranch_scc1 LA_refill", "LA_back:"]
    else:
        if ii == 0:
            ins[35].append(f"s_cmp_eq_u32 s{sNext}, s{sRe}")
        if ii == 1:
            ins[29].append(f"s_cselect_b32 s{sNext}, s{sRb}, s{sNext}")
            ins[35].append(f"s_add_u32 s{sM}, s{sM}, 1")
            ins[44] = [f"v_add_u32 v{vKA}, s{sNext}, v{vL16}"]
        if ii == 3:
            ins[35].append(f"s_sub_u32 s{sRem}, s{sRem}, 1")
    for p, op in enumerate(v):
        for x in ins.get(p, []):
            a(x)
        a(op)


def rowmax(a, X, out0, out1):
    for base, o in ((X, out0), (X + 16, out1)):
        a(f"v_max3_f32 v{o}, v{base}, v{base+1}, v{base+2}")
        for r in range(3, 15, 2):
            a(f"v_max3_f32 v{o}, v{o}, v{base+r}, v{base+r+1}")
        a(f"v_max_f32 v{o}, v{o}, v{base+15}")


def cross_half_max(a, r, tmp):
    a(f"v_mov_b32 v{tmp}, v{r}\ns_nop 1\nv_permlane32_swap_b32 v{tmp}, v{r}\ns_nop 1\nv_max_f32 v{r}, v{r}, v{tmp}")


def fill_nm(a, m0, m1):
    for r in range(16):
        a(f"v_sub_f32 v{NM+r}, 0, v{m0}")
    for r in range(16):
        a(f"v_sub_f32 v{NM+16+r}, 0, v{m1}")


def attn_scalars(a):
    a.c("head offsets: main octs start at (5g+1)>>1; the ext quad shares an oct with the neighbouring head;")
    a.c("arrivals expected per kind: 16 token blocks x number of 64-column units that hold the head")
    a(f"""
    s_mul_i32 s{sOm}, s{sHead}, 5
    s_add_u32 s{sOm}, s{sOm}, 1
    s_lshr_b32 s{sOm}, s{sOm}, 1
    s_lshl_b32 s{sOm}, s{sOm}, 9
    s_and_b32 s{sT0}, s{sHead}, 1
    s_mov_b32 s{sT1}, 1024
    s_cselect_b32 s{sT1}, {(-512 + 8) & 0xffffffff}, s{sT1}
    s_add_u32 s{sExt}, s{sOm}, s{sT1}
    s_min_u32 s{sT0}, s{sOm}, s{sExt}
    s_add_u32 s{sT2}, s{sOm}, 512
    s_max_u32 s{sT1}, s{sExt}, s{sT2}
    s_lshr_b32 s{sT0}, s{sT0}, 12
    s_lshr_b32 s{sT1}, s{sT1}, 12
    s_cmp_eq_u32 s{sT0}, s{sT1}
    s_cselect_b32 s{sExp}, 16, 32
    """)


def attn_vectors(a):
    a(f"""
    s_and_b32 s{sT0}, s{sHead}, 1
    v_lshlrev_b32 v{vL16}, 4, v0
    v_lshrrev_b32 v{vT0}, 5, v0
    v_mul_u32_u24 v{vT1}, {TILE}, v{vT0}
    v_and_b32 v{vP}, 31, v0
    v_lshl_add_u32 v{vE16}, v{vP}, 4, v{vT1}
    """)
    a.c("V rows: 0..15 main dims, 16..19 ext dims, 20 and 24 ones, the others zero (address past the allocation)")
    a(f"""
    s_lshl_b32 s{sT0}, s{sT0}, 2
    v_and_b32 v{vP+1}, 3, v0
    v_and_b32 v{vP+2}, 4, v0
    v_lshl_add_u32 v{vP+1}, v{vP+2}, 1, v{vP+1}
    v_and_b32 v{vP+2}, 8, v0
    v_lshrrev_b32 v{vP+2}, 1, v{vP+2}
    v_add3_u32 v{vP+1}, v{vP+1}, v{vP+2}, s{sT0}
    s_lshl_b32 s{sT0}, s{sT0}, 2
    v_subrev_u32 v{vP+2}, s{sT0}, v{vP}
    v_cmp_gt_u32 vcc, 16, v{vP}
    v_mul_u32_u24 v{vT1}, 10240, v{vT0}
    v_mul_u32_u24 v{vT0}, 320, v{vT0}
    v_cndmask_b32 v{vP+1}, v{vP+2}, v{vP+1}, vcc
    v_lshlrev_b32 v{vP+1}, 4, v{vP+1}
    v_add_u32 v{vVG}, v{vP+1}, v{vT1}
    v_add_u32 v{vVbase}, v{vP+1}, v{vT0}
    v_add_u32 v{vVbase}, 6144, v{vVbase}
    v_cmp_gt_u32 vcc, 20, v{vP}
    v_mov_b32 v{vP+1}, 0x100000
    v_mov_b32 v{vP+2}, {ONES[0]}
    v_cndmask_b32 v{vVflag}, 0, 1, vcc
    v_cndmask_b32 v{vVbase}, v{vP+1}, v{vVbase}, vcc
    v_cmp_eq_u32 vcc, 20, v{vP}
    v_cmp_eq_u32 s[{sT3}:{sT4}], 24, v{vP}
    s_or_b64 vcc, vcc, s[{sT3}:{sT4}]
    v_mov_b32 v{vP+1}, {ONES[1]}
    s_nop 0
    v_cndmask_b32 v{vVB2}, v{vVbase}, v{vP+1}, vcc
    v_cndmask_b32 v{vVbase}, v{vVbase}, v{vP+2}, vcc
    """)
    a.c("DMA source offsets: even waves load K pieces, odd waves V pieces")
    a(f"""
    s_and_b32 s{sT0}, s{sJ}, 1
    s_cbranch_scc1 LA_dv
    v_add_u32 v{vD}, s{sExt}, v{vE16}
    v_add_u32 v{vD+1}, {2 * TILE}, v{vD}
    v_add_u32 v{vD+2}, s{sOm}, v{vL16}
    v_add_u32 v{vD+3}, {TILE}, v{vD+2}
    v_add_u32 v{vD+4}, {TILE}, v{vD+3}
    v_add_u32 v{vD+5}, {TILE}, v{vD+4}
    s_branch LA_dd
    LA_dv:
    s_mul_i32 s{sT0}, s{sHead}, 320
    s_add_u32 s{sT0}, s{sT0}, {IMG}
    """)
    for p in range(5):
        a(f"""
        v_add_u32 v{vP}, {64 * p}, v0
        v_mul_u32_u24 v{vP+1}, 3277, v{vP}
        v_lshrrev_b32 v{vP+1}, 16, v{vP+1}
        v_mul_u32_u24 v{vP+2}, 20, v{vP+1}
        v_sub_u32 v{vP+2}, v{vP}, v{vP+2}
        v_mul_u32_u24 v{vP+1}, 10240, v{vP+1}
        v_lshl_add_u32 v{vP+1}, v{vP+2}, 4, v{vP+1}
        v_add_u32 v{vD+p}, s{sT0}, v{vP+1}
        """)
    a(f"""
    v_mov_b32 v{vD+5}, v{vD+4}
    LA_dd:
    v_lshlrev_b32 v{vP+3}, 7, v0
    v_mov_b32 v{vP+4}, 0
    """)


def vectors_put(a):
    a(f"""
    s_and_b32 s{sT0}, s{sJ}, 1
    s_lshl_b32 s{sT0}, s{sT0}, 12
    s_add_u32 s{sT0}, s{sT0}, {XFER}
    v_add_u32 v{vT0}, s{sT0}, v{vL16}
    v_mov_b32 v20, v{vVB2}
    v_mov_b32 v21, v{vVflag}
    v_mov_b32 v22, v{vE16}
    v_mov_b32 v23, v{vVG}
    ds_write_b128 v{vT0}, v[20:23]
    ds_write_b128 v{vT0}, {vr(vD,4)} offset:1024
    ds_write_b64 v{vT0}, {vr(vD+4,2)} offset:2048
    """)


def vectors_get(a):
    lane_id(a, 0)
    a(f"""
    s_and_b32 s{sT0}, s{sJ}, 1
    s_lshl_b32 s{sT0}, s{sT0}, 12
    s_add_u32 s{sT0}, s{sT0}, {XFER}
    v_lshlrev_b32 v{vL16}, 4, v0
    v_add_u32 v{vT0}, s{sT0}, v{vL16}
    ds_read_b128 {vr(vVbase,4)}, v{vT0}
    ds_read_b128 {vr(vD,4)}, v{vT0} offset:1024
    ds_read_b64 {vr(vD+4,2)}, v{vT0} offset:2048
    v_lshlrev_b32 v{vP+3}, 7, v0
    """)
    attn_scalars(a)
    a("s_waitcnt lgkmcnt(0)")


def dma_sub(a):
    a(f"""
    LA_dma:
    s_add_u32 s{sT2}, s{sT1}, s{sQB if 'kvrot' in OPT else sHead}
    s_and_b32 s{sT2}, s{sT2}, 7
    s_lshl_b32 s{sT2}, s{sT2}, 1
    s_lshr_b32 s{sT3}, s{sJ}, 1
    s_add_u32 s{sT2}, s{sT2}, s{sT3}
    s_mul_i32 s{sT2}, s{sT2}, {4 * TILE}
    s_lshl_b32 s{sT4}, s{sJ}, 1
    s_and_b32 s{sT4}, s{sT4}, 2
    s_lshr_b32 s{sT4}, 20480, s{sT4}
    s_mul_i32 s{sT4}, s{sT4}, s{sT0}
    s_add_u32 s{sT2}, s{sT2}, s{sT4}
    s_add_u32 s{sT2}, s{sT2}, s{sImg}
    s_add_u32 s{sT2}, s{sT2}, {IMG}
    s_sub_u32 s{sT1}, s{sT1}, s{sT0}
    s_add_u32 s{sT1}, s{sT1}, 1
    s_mul_i32 s{sT4}, s{sT1}, 43
    s_lshr_b32 s{sT4}, s{sT4}, 7
    s_mul_i32 s{sT4}, s{sT4}, 3
    s_sub_u32 s{sT1}, s{sT1}, s{sT4}
    s_lshl_b32 s{sT1}, s{sT1}, 1
    s_add_u32 s{sT1}, s{sT1}, s{sT3}
    s_mul_i32 s{sT1}, s{sT1}, {CH}
    s_mul_i32 s{sT4}, s{sT0}, {RA - RB}
    s_sub_u32 s{sT1}, s{sT1}, s{sT4}
    s_add_u32 s{sT1}, s{sT1}, {RA}
    s_and_b32 s{sT3}, s{sJ}, 1
    s_mul_i32 s{sT4}, s{sT3}, 6144
    s_add_u32 m0, s{sT1}, s{sT4}
    s_nop 0
    """)
    for p in range(5):
        a(f"buffer_load_dwordx4 v{vD+p}, {WSR()}, s{sT2} offen sc1 lds")
        a("s_add_u32 m0, m0, 1024")
        a("s_nop 0" if p < 4 else f"s_cmp_eq_u32 s{sT3}, 1")
    a(f"""
    s_cbranch_scc1 LA_dma_ret
    buffer_load_dwordx4 v{vD+5}, {WSR()}, s{sT2} offen sc1 lds
    LA_dma_ret:
    s_setpc_b64 s[{sLnk}:{sLnk+1}]
    """)


def call_dma(a, b, blk):
    a(f"s_mov_b32 s{sT0}, {b}\ns_mov_b32 s{sT1}, {blk}\ns_call_b64 s[{sLnk}:{sLnk+1}], LA_dma")


def poll_f1(a):
    a(f"""
    s_lshl_b32 s{sT0}, s{sBr}, 5
    s_add_u32 s{sT0}, s{sT0}, s{sHead}
    s_lshl_b32 s{sT0}, s{sT0}, 9
    s_add_u32 s{sT0}, s{sT0}, {WS_C1}
    """)
    poll_counter(a, vP + 3, f"s{sT0}", f"s{sExp}", 7)


def load_q(a):
    a(f"""
    s_lshl_b32 s{sT0}, s{sQB}, 2
    s_add_u32 s{sT0}, s{sT0}, s{sJ}
    s_mul_i32 s{sT0}, s{sT0}, {2 * TILE}
    s_add_u32 s{sT0}, s{sT0}, s{sImg}
    s_add_u32 s{sT1}, s{sT0}, s{sOm}
    s_add_u32 s{sT2}, s{sT1}, {TILE}
    s_add_u32 s{sT0}, s{sT0}, s{sExt}
    buffer_load_dwordx4 {vr(Qm[0],4)}, v{vL16}, {WSR()}, s{sT1} offen sc1
    buffer_load_dwordx4 {vr(Qm[1],4)}, v{vL16}, {WSR()}, s{sT2} offen sc1
    buffer_load_dwordx2 {vr(Qe,2)}, v{vE16}, {WSR()}, s{sT0} offen sc1
    """)


def scale_q(a, nyounger):
    a(f"s_mov_b32 s4, {hex(f32bits(QSCALE))}\ns_mov_b32 s5, s4\ns_waitcnt vmcnt({nyounger})")
    for r in range(Qm[0], Qe + 2):
        a(f"""
        v_lshlrev_b32 v{vPS+2}, 16, v{r}
        v_and_b32 v{vPS+3}, 0xffff0000, v{r}
        v_pk_mul_f32 {vr(vPS+2,2)}, {vr(vPS+2,2)}, s[4:5]
        v_cvt_pk_bf16_f32 v{r}, v{vPS+2}, v{vPS+3}
        """)


def attn_zero(a):
    Z = Vb[1][1]
    for r in (Z, Z + 2, SB[1] + 24, SB[1] + 26):
        a(f"v_pk_mov_b32 {vr(r,2)}, 0, 0")
    a(f"v_mov_b32 v{vP}, 0xbf800000\nv_mov_b32 v{vP+1}, 0\nv_mov_b32 v{vPS+1}, 0")
    a(f"v_mfma_f32_32x32x4_2b_bf16 {vr(OA[0],32)}, {vr(Z,2)}, {vr(Z,2)}, 0")
    a(f"""
    s_add_u32 s{sRe}, s{sRb}, {RING}
    s_mov_b32 s{sRem}, 7
    v_add_u32 v{vKA}, s{sNext}, v{vL16}
    v_mad_u32_u24 v{vVA}, v{vVflag}, s{sNext}, v{vVbase}
    """)


DELAY_AT, DELAY = 0, 0


def delay(a, at):
    if DELAY_AT == at and DELAY:
        a(f"s_memrealtime s[4:5]\ns_waitcnt lgkmcnt(0)\ns_add_u32 s6, s4, {DELAY}\nLD_{at}:\ns_sleep 1\ns_memrealtime s[4:5]\ns_waitcnt lgkmcnt(0)\ns_cmp_lt_u32 s4, s6\ns_cbranch_scc1 LD_{at}")


def attention(a):
    X = SB[0]
    delay(a, 1)
    a("LA_start:")
    stamp_cyc(a, 24)
    a(f"""
    ds_read_b128 {vr(Km[0],4)}, v{vKA} offset:2048
    ds_read2st64_b64 {vr(Ke,4)}, v{vKA} offset0:0 offset1:2
    ds_read_b128 {vr(Km[1],4)}, v{vKA} offset:3072
    ds_read_b128 {vr(Vb[0][0],4)}, v{vVA}
    ds_read_b128 {vr(Vb[0][1],4)}, v{vVA} offset:640
    s_waitcnt lgkmcnt(4)
    """)
    a(mfma32(X, Km[0], Qm[0], 0))
    a(mfma32(X + 16, Km[0], Qm[1], 0))
    a("s_nop 8\ns_waitcnt lgkmcnt(3)")
    a(mfma2b(X, 0, vr(X, 32)))
    a("s_nop 15\ns_nop 3")
    a.c("softmax shift: row max over the first key tile, cut to bf16; the epilogue checks that it was safe.")
    a.c("A rank-1 MFMA (-1 x shift) subtracts it from the scores and spreads it over the C operand of the loop")
    rowmax(a, X, vT0, vT1)
    a(f"""
    s_nop 1
    v_permlane32_swap_b32 v{vT0}, v{vT1}
    s_nop 1
    v_max_f32 v{vT0}, v{vT0}, v{vT1}
    v_and_b32 v{vPS}, {0 if 'c0' in OPT else '0xffff0000'}, v{vT0}
    s_nop 1
    v_mfma_f32_32x32x4_2b_bf16 {vr(X,32)}, {vr(vP,2)}, {vr(vPS,2)}, {vr(X,32)}
    v_mfma_f32_32x32x4_2b_bf16 {vr(NM,32)}, {vr(vP,2)}, {vr(vPS,2)}, 0
    s_nop 15
    s_nop 1
    s_waitcnt lgkmcnt(0)
    v_exp_f32 v{X}, v{X}
    .p2align 6
    LA_loop:
    """)
    for half in range(2):
        for ii in range(4):
            tile_iter(a, ii, half)
    a("s_cbranch_scc0 LA_loop\ns_nop 0")
    a(mfma32(OA[1], Vb[1][1], SB[1] + 24, vr(OA[1], 16)))
    if 'alow' in OPT:
        a("s_setprio 0")
    a(f"s_cmp_eq_u32 s{sRole}, 0\ns_cbranch_scc1 LA_fin2\ns_setprio 2")
    a.c("announce that the results are about to be stored; readers then wait for the markers to disappear")
    count_in(a, sOc, vP, vP + 1)
    a("LA_fin2:")
    stamp(a, 4)
    stamp_cyc(a, 31)
    N = SB[0]
    rc = SB[1]
    tm = rc + 4

    def norm(u):
        O, P = OA[u], N + 12 * u
        for r in range(0, 12, 2):
            a(f"v_pk_mul_f32 {vr(P+r,2)}, {vr(O+r,2)}, {vr(rc+2*u,2)} op_sel_hi:[1,0]")
        for j in range(6):
            a(f"v_cvt_pk_bf16_f32 v{P+j}, v{P+2*j}, v{P+2*j+1}")
    a(f"""
    s_mov_b32 s{sRem}, 0
    LA_epi:
    v_cmp_lt_u32 vcc, 31, v0
    s_add_u32 s{sT0}, s{sOb}, s{sOm}
    s_add_u32 s{sT1}, s{sT0}, {TILE}
    v_cndmask_b32 v{vT0}, v{OA[0]+12}, v{OA[0]+8}, vcc
    v_rcp_f32 v{rc}, v{vT0}
    v_pk_add_f32 {vr(tm,2)}, {vr(OA[0],2)}, {vr(OA[0]+2,2)}
    """)
    a.c("safety check of the shift before anything is stored: row sums inside [2^-30, 2^30], finite accumulators")
    for r in range(4, 12, 2):
        a(f"v_pk_add_f32 {vr(tm,2)}, {vr(tm,2)}, {vr(OA[0]+r,2)}")
    norm(0)
    a(f"v_cndmask_b32 v{vT1}, v{OA[1]+12}, v{OA[1]+8}, vcc\nv_rcp_f32 v{rc+2}, v{vT1}")
    for r in range(0, 12, 2):
        a(f"v_pk_add_f32 {vr(tm,2)}, {vr(tm,2)}, {vr(OA[1]+r,2)}")
    a(f"""
    v_add_f32 v{tm}, v{tm}, v{tm+1}
    v_add_f32 v{tm+1}, v{vT0}, v{vT1}
    v_fma_f32 v{tm}, 0, v{tm}, v{tm+1}
    v_min_f32 v{tm+1}, v{vT0}, v{vT1}
    v_cmp_gt_f32 vcc, {hex(f32bits(2.0**30))}, v{tm}
    s_mov_b64 s[4:5], vcc
    v_cmp_lt_f32 vcc, {hex(f32bits(2.0**-30))}, v{tm+1}
    """)
    for j in range(4):
        a(f"v_min_u32 v{N+j}, -2, v{N+j}")
    a(f"""
    s_and_b64 s[4:5], s[4:5], vcc
    s_cmp_eq_u64 s[4:5], -1
    s_cselect_b32 s{sT3}, 1, s{sRem}
    s_cmp_eq_u32 s{sT3}, 0
    s_cbranch_scc1 LA_slow
    buffer_store_dwordx4 {vr(N,4)}, v{vL16}, {WSR()}, s{sT0} offen sc1
    """)
    norm(1)
    for j in range(4):
        a(f"v_min_u32 v{N+12+j}, -2, v{N+12+j}")
    a(f"""
    buffer_store_dwordx4 {vr(N+12,4)}, v{vL16}, {WSR()}, s{sT1} offen sc1
    v_permlane32_swap_b32 v{N+4}, v{N+16}
    v_permlane32_swap_b32 v{N+5}, v{N+17}
    s_add_u32 s{sT2}, s{sOb}, s{sExt}
    v_min_u32 v{N+4}, -2, v{N+4}
    v_min_u32 v{N+5}, -2, v{N+5}
    buffer_store_dwordx2 {vr(N+4,2)}, v{vE16}, {WSR()}, s{sT2} offen sc1
    """)


def o_base(a):
    a(f"""
    s_lshl_b32 s{sT0}, s{sQB}, 2
    s_add_u32 s{sT0}, s{sT0}, s{sJ}
    s_mul_i32 s{sOb}, s{sT0}, {2 * TILE}
    s_add_u32 s{sOb}, s{sOb}, s{sImg}
    s_add_u32 s{sOb}, s{sOb}, {3 * IMG}
    """)
    a(f"s_lshr_b32 s{sT1}, s{sHead}, 3\ns_max_u32 s{sT1}, s{sT1}, 1\ns_sub_u32 s{sT1}, s{sT1}, 1")
    c3_off(a, sOc, sT0, sT1)


def o_mark(a):
    o_base(a)
    a(f"""
    v_mov_b32 v16, -1
    v_mov_b32 v17, -1
    v_mov_b32 v18, -1
    v_mov_b32 v19, -1
    s_add_u32 s{sT0}, s{sOb}, s{sOm}
    s_add_u32 s{sT1}, s{sT0}, {TILE}
    s_add_u32 s{sT2}, s{sOb}, s{sExt}
    buffer_store_dwordx4 v[16:19], v{vL16}, {WSR()}, s{sT0} offen sc1
    buffer_store_dwordx4 v[16:19], v{vL16}, {WSR()}, s{sT1} offen sc1
    buffer_store_dwordx2 v[16:17], v{vE16}, {WSR()}, s{sT2} offen sc1
    """)


def refill(a):
    a.c("role-B waves refill both rings: after barrier m, A block m+2 and B block m-SK+2")
    a(f"""
    LA_refill:
    s_cmp_gt_u32 s{sM}, 5
    s_cbranch_scc1 LA_ev_b
    s_mov_b32 s{sT0}, 0
    s_add_u32 s{sT1}, s{sM}, 2
    s_call_b64 s[{sLnk}:{sLnk+1}], LA_dma
    LA_ev_b:
    s_sub_u32 s{sT1}, s{sM}, {SK - 2}
    s_cmp_lt_u32 s{sT1}, 3
    s_cbranch_scc1 LA_back
    s_mov_b32 s{sT0}, 1
    s_call_b64 s[{sLnk}:{sLnk+1}], LA_dma
    s_branch LA_back
    """)


def slow_path(a):
    X = SB[0]
    m0, m1, t0, t1 = SB[1], SB[1] + 1, SB[1] + 2, SB[1] + 3

    def kloads(t):
        a(f"buffer_load_dwordx4 {vr(Km[0],4)}, v{vL16}, {WSR()}, s{sT1} offen sc1")
        if t == 0:
            a(f"buffer_load_dwordx2 {vr(Ke,2)}, v{vE16}, {WSR()}, s{sT2} offen sc1")
            a(f"s_add_u32 s{sT2}, s{sT2}, {2 * TILE}")
        a(f"s_add_u32 s{sT1}, s{sT1}, {TILE}")

    def kbase():
        a(f"""
        s_add_u32 s{sT0}, s{sImg}, {IMG}
        s_add_u32 s{sT1}, s{sT0}, s{sOm}
        s_add_u32 s{sT2}, s{sT0}, s{sExt}
        s_mov_b32 s{sRem}, 0
        """)
    a(f"LA_slow:\nv_mov_b32 v{m0}, 0xff800000\nv_mov_b32 v{m1}, 0xff800000")
    kbase()
    a("LA_slow_max:")
    for t in range(2):
        kloads(t)
        a("s_waitcnt vmcnt(0)")
        a(mfma32(X, Km[0], Qm[0], 0))
        a(mfma32(X + 16, Km[0], Qm[1], 0))
        a("s_nop 9")
        a(mfma2b(X, t, vr(X, 32)))
        a("s_nop 15\ns_nop 3")
        rowmax(a, X, t0, t1)
        a(f"v_max_f32 v{m0}, v{m0}, v{t0}\nv_max_f32 v{m1}, v{m1}, v{t1}")
    a(f"s_add_u32 s{sRem}, s{sRem}, 1\ns_cmp_lt_u32 s{sRem}, 32\ns_cbranch_scc1 LA_slow_max")
    cross_half_max(a, m0, t0)
    cross_half_max(a, m1, t0)
    fill_nm(a, m0, m1)
    for r in range(32):
        a(f"v_mov_b32 v{OA[0]+r}, 0")
    for r in range(8):
        a(f"v_mov_b32 v{Vb[0][0]+r}, 0x3f803f80")
    kbase()
    a(f"""
    s_mul_i32 s{sT3}, s{sHead}, 320
    s_add_u32 s{sT3}, s{sT3}, s{sT0}
    s_add_u32 s{sT3}, s{sT3}, {IMG}
    LA_slow_pv:
    """)
    for t in range(2):
        kloads(t)
        a(f"""
        s_add_u32 s{sT4}, s{sT3}, 20480
        s_mov_b32 exec_lo, 0xfffff
        s_mov_b32 exec_hi, 0xfffff
        buffer_load_dwordx4 {vr(Vb[0][0],4)}, v{vVG}, {WSR()}, s{sT3} offen sc1
        buffer_load_dwordx4 {vr(Vb[0][1],4)}, v{vVG}, {WSR()}, s{sT4} offen sc1
        s_mov_b64 exec, -1
        s_add_u32 s{sT3}, s{sT3}, {TILE}
        s_waitcnt vmcnt(2)
        """)
        a(mfma32(X, Km[0], Qm[0], vr(NM, 16)))
        a(mfma32(X + 16, Km[0], Qm[1], vr(NM + 16, 16)))
        a("s_nop 9")
        a(mfma2b(X, t, vr(X, 32)))
        a("s_nop 15\ns_nop 3")
        for r in range(32):
            a(f"v_exp_f32 v{X+r}, v{X+r}")
        a("s_nop 0")
        for j in range(16):
            a(f"v_cvt_pk_bf16_f32 v{X + 8*(j//4) + j%4}, v{X+2*j}, v{X+2*j+1}")
        a("s_waitcnt vmcnt(0)\ns_nop 1")
        a(mfma32(OA[0], Vb[0][0], X, vr(OA[0], 16)))
        a(mfma32(OA[0], Vb[0][1], X + 8, vr(OA[0], 16)))
        a(mfma32(OA[1], Vb[0][0], X + 16, vr(OA[1], 16)))
        a(mfma32(OA[1], Vb[0][1], X + 24, vr(OA[1], 16)))
    a(f"""
    s_add_u32 s{sRem}, s{sRem}, 1
    s_cmp_lt_u32 s{sRem}, 32
    s_cbranch_scc1 LA_slow_pv
    s_nop 15
    s_mov_b32 s{sRem}, 1
    s_branch LA_epi
    """)


pWF = [16, 56]
pACC = 96
pACL = 196
pOF = 136
pWA, pOA = 2, 3


def c3_off(a, dst, t64, part):
    a(f"""
    s_lshl_b32 s{dst}, s{sBr}, 5
    s_add_u32 s{dst}, s{dst}, s{t64}
    s_mul_i32 s{dst}, s{dst}, 3
    s_add_u32 s{dst}, s{dst}, s{part}
    s_lshl_b32 s{dst}, s{dst}, 7
    s_add_u32 s{dst}, s{dst}, {WS_C3}
    """)


def wo_dma(a, k0, k1, lds0):
    _lbl[0] += 1
    L = f"LP_wd{_lbl[0]}"
    a(f"""
    s_and_b32 s{sT0}, s{sHead}, 3
    s_lshl_b32 s{sT1}, s{sBr}, 2
    s_add_u32 s{sT0}, s{sT0}, s{sT1}
    s_mul_i32 s{sT0}, s{sT0}, {WO_SLAB}
    s_lshl_b32 s{sT1}, s{sJ}, 10
    s_add_u32 s{sT0}, s{sT0}, s{sT1}
    s_add_u32 s{sT0}, s{sT0}, {WS_WO + 10240 * k0}
    s_add_u32 s{sT1}, s{sT1}, {lds0}
    {L}:
    s_mov_b32 m0, s{sT1}
    s_add_u32 s{sT1}, s{sT1}, 4096
    buffer_load_dwordx4 v{vL16}, {WSR()}, s{sT0} offen sc1 lds
    s_add_u32 s{sT0}, s{sT0}, 4096
    s_cmp_lt_u32 s{sT1}, {lds0 + 10240 * (k1 - k0)}
    s_cbranch_scc1 {L}
    """)


def o_addr(a):
    a(f"""
    s_lshl_b32 s{sT1}, s{sQB}, 2
    s_lshr_b32 s{sT2}, s{sHead}, 2
    s_add_u32 s{sT1}, s{sT1}, s{sT2}
    """)
    c3_off(a, sFc, sT1, sRole)
    a(f"""
    v_and_b32 v{vP+3}, 15, v0
    s_lshl_b32 s{sT1}, s{sT1}, 1
    s_lshr_b32 s{sT2}, s{sJ}, 1
    s_add_u32 s{sT1}, s{sT1}, s{sT2}
    s_mul_i32 s{sT1}, s{sT1}, {TILE}
    s_add_u32 s{sT1}, s{sT1}, s{sImg}
    s_and_b32 s{sT2}, s{sJ}, 1
    s_lshl_b32 s{sT2}, s{sT2}, 8
    s_add_u32 s{sT1}, s{sT1}, s{sT2}
    s_add_u32 s{sFo}, s{sT1}, {3 * IMG}
    v_lshrrev_b32 v{pOA}, 4, v0
    v_lshlrev_b32 v{pOA}, 9, v{pOA}
    v_lshl_add_u32 v{pOA}, v{vP+3}, 4, v{pOA}
    v_lshlrev_b32 v{vP+5}, 7, v0
    s_mov_b32 s{sF[0]}, s{sFo}
    s_add_u32 s{sF[1]}, s{sFo}, 10240
    """)


sF = [54, 55]


def o_load_sub(a, label, p0):
    a(f"{label}:\ns_mov_b32 s{sT1}, s{sF[p0 // 5]}")
    for i in range(5):
        a(f"buffer_load_dwordx4 {vr(pOF + 4*(p0 + i), 4)}, v{pOA}, {WSR()}, s{sT1} offen offset:{(i & 1) * 2048} sc1")
        if i & 1:
            a(f"s_add_u32 s{sT1}, s{sT1}, 4096")
    a(f"s_setpc_b64 s[{sLnk}:{sLnk+1}]")


def o_checked(a, label, p0, counted):
    a(f"s_mov_b32 s{sSpin}, {SPIN}\n{label}_chk:\nv_mov_b32 v{vPS}, 0\nv_mov_b32 v{vPS+1}, 0")
    for i in range(5):
        r = pOF + 4 * (p0 + i)
        if counted:
            a(f"s_waitcnt vmcnt({4 - i})")
        a(f"v_max3_u32 v{vPS}, v{vPS}, v{r}, v{r+1}\nv_max3_u32 v{vPS+1}, v{vPS+1}, v{r+2}, v{r+3}")
    a(f"""
    v_max_u32 v{vPS}, v{vPS}, v{vPS+1}
    v_cmp_eq_u32 vcc, -1, v{vPS}
    s_cbranch_vccz {label}_ok
    s_call_b64 s[{sLnk}:{sLnk+1}], {label}
    s_waitcnt vmcnt(0)
    s_sub_u32 s{sSpin}, s{sSpin}, 1
    s_cbranch_scc0 {label}_chk
    {label}_ok:
    """)


def peek(a, mask):
    a(f"""
    v_mov_b32 v{vPS+2}, 0
    s_mov_b64 exec, {mask}
    buffer_atomic_add v{vPS+2}, v{vP+5}, {WSR()}, s{sFc} offen sc0 sc1
    s_mov_b64 exec, -1
    """)


def ready_mask(a):
    a(f"v_cmp_le_u32 vcc, 8, v{vPS+2}\ns_and_b32 s{sPh}, vcc_lo, 3")


def order_sub(a):
    a(f"""
    LP_order:
    s_and_b32 s{sDone}, s{sPh}, 1
    s_xor_b32 s{sDone}, s{sDone}, 1
    s_mul_i32 s{sT0}, s{sDone}, 10240
    s_add_u32 s{sF[0]}, s{sFo}, s{sT0}
    s_sub_u32 s{sF[1]}, s{sFo}, s{sT0}
    s_add_u32 s{sF[1]}, s{sF[1]}, 10240
    """)


TAB = [8, 9, 10, 11, 12, 13, 14, 15, 52, 53]


def oproj_subs(a):
    def wreads(p):
        return [f"ds_read_b128 {vr(pWF[p & 1] + 4*c, 4)}, v{pWA} offset:{c * 1024}" for c in range(10)]
    a(f"LP_pro:\nv_add_u32 v{pWA}, s{TAB[0]}, v{vL16}")
    for r in wreads(0):
        a(r)
    a(f"s_setpc_b64 s[{sLnk}:{sLnk+1}]")
    for p in range(10):
        if p % 5 == 0:
            a("LP_lo:" if p else "LP_hi:")
        rd = wreads(p + 1) if p < 9 else []
        if rd:
            a(f"v_add_u32 v{pWA}, s{TAB[p + 1]}, v{vL16}")
        for c in range(10):
            A = (pACL if p >= 5 else pACC) + 4 * c
            a(f"s_waitcnt lgkmcnt({9 if rd else 9 - c})")
            a(f"v_mfma_f32_16x16x32_bf16 {vr(A,4)}, {vr(pOF + 4*p, 4)}, {vr(pWF[p & 1] + 4*c, 4)}, {vr(A,4)}")
            if rd:
                a(rd[c])
        if p % 5 == 4:
            a(f"s_setpc_b64 s[{sLnk}:{sLnk+1}]")


def set_tab(a, addrs):
    for r, x in zip(TAB, addrs):
        a(f"s_mov_b32 s{r}, {x}")


def out_addr(a):
    a.c("lane n = l & 15 holds columns 8n..8n+7 of a 128-column piece and 2n, 2n+1 of a 32-column piece (tokens 4*(l >> 4) + r);")
    a.c("odd column groups start with the narrow piece, so that the wide one covers whole 128-B lines")
    a(f"""
    s_lshl_b32 s{sT0}, s{sQB}, 2
    s_lshr_b32 s{sT1}, s{sHead}, 2
    s_add_u32 s{sT0}, s{sT0}, s{sT1}
    s_lshl_b32 s{sT0}, s{sT0}, 2
    s_add_u32 s{sT0}, s{sT0}, s{sJ}
    s_mul_i32 s{sT0}, s{sT0}, {16 * 2560}
    s_mul_i32 s{sT1}, s{sBr}, 1280
    s_add_u32 s{sT0}, s{sT0}, s{sT1}
    s_and_b32 s{sT1}, s{sHead}, 3
    s_mul_i32 s{sT1}, s{sT1}, 320
    s_add_u32 s{sXo}, s{sT0}, s{sT1}
    s_add_u32 s{sWo}, s{sXo}, {2 * 2560}
    v_lshrrev_b32 v4, 4, v0
    v_mul_u32_u24 v4, {4 * 2560}, v4
    v_and_b32 v6, 15, v0
    s_and_b32 s{sT0}, s{sHead}, 1
    s_cselect_b32 s{sT0}, 64, 0
    s_cselect_b32 s{sT1}, 0, 256
    v_lshl_add_u32 v5, v6, 2, v4
    v_lshl_add_u32 v4, v6, 4, v4
    v_add_u32 v4, s{sT0}, v4
    v_add_u32 v5, s{sT1}, v5
    """)


def out_store(a):
    OUTMOD = " nt" if 'outnt' in OPT else " sc1"
    for r in range(4):
        if r % 2 == 0:
            for c in range(10):
                a(f"v_pk_add_f32 {vr(pACC + 4*c + r, 2)}, {vr(pACC + 4*c + r, 2)}, {vr(pACL + 4*c + r, 2)}")
        P = 16 + 6 * r
        for j in range(5):
            a(f"v_cvt_pk_bf16_f32 v{P+j}, v{pACC + 8*j + r}, v{pACC + 8*j + 4 + r}")
        so = sXo if r < 2 else sWo
        a(f"buffer_store_dwordx4 {vr(P,4)}, v4, s[{sOut}:{sOut+3}], s{so} offen offset:{(r & 1) * 2560}{OUTMOD}")
        a(f"buffer_store_dword v{P+4}, v5, s[{sOut}:{sOut+3}], s{so} offen offset:{(r & 1) * 2560}{OUTMOD}")


rL, rT, rD, rX, rData = 194, 199, 201, 205, 208


def repack_setup(a):
    x = rX
    for i in range(5):
        a(f"""
        v_add_u32 v{x}, {64 * i}, v0
        v_mul_u32_u24 v{x+1}, 3277, v{x}
        v_lshrrev_b32 v{x+1}, 16, v{x+1}
        v_mul_u32_u24 v{x+2}, 20, v{x+1}
        v_sub_u32 v{x+2}, v{x}, v{x+2}
        v_mul_u32_u24 v{x+1}, 1280, v{x+1}
        v_lshl_add_u32 v{rL+i}, v{x+2}, 4, v{x+1}
        """)
    a(f"""
    v_and_b32 v{x}, 48, v0
    v_lshlrev_b32 v{x}, 4, v{x}
    v_add_u32 v{x}, {RPK}, v{x}
    v_and_b32 v{x+1}, 7, v0
    v_mul_u32_u24 v{x+1}, 1040, v{x+1}
    v_and_b32 v{x+2}, 8, v0
    v_lshl_add_u32 v{x+1}, v{x+2}, 1, v{x+1}
    v_add_u32 v{rD}, v{x}, v{x+1}
    v_and_b32 v{x+1}, 1, v0
    v_mul_u32_u24 v{x+1}, 1040, v{x+1}
    v_and_b32 v{x+2}, 14, v0
    v_lshl_add_u32 v{x+1}, v{x+2}, 3, v{x+1}
    v_add3_u32 v{rD+1}, v{x}, v{x+1}, 0
    v_lshrrev_b32 v{x}, 4, v0
    v_lshlrev_b32 v{x}, 3, v{x}
    v_lshrrev_b32 v{x+1}, 2, v0
    v_and_b32 v{x+1}, 3, v{x+1}
    v_add_u32 v{x}, v{x}, v{x+1}
    v_mul_u32_u24 v{x}, 320, v{x}
    v_and_b32 v{x+1}, 3, v0
    v_lshl_add_u32 v{x}, v{x+1}, 3, v{x}
    v_add_u32 v{x}, {RPK}, v{x}
    s_and_b32 s{sT0}, s2, 1
    s_cselect_b32 s{sT0}, 64, 0
    s_cselect_b32 s{sT1}, 0, 256
    v_add_u32 v{rT}, s{sT0}, v{x}
    v_add_u32 v{rT+1}, s{sT1}, v{x}
    v_add_u32 v{rX}, {RPK}, v{vL16}
    """)


def repack_steps(a):
    a(f"""
    LR_step:
    s_add_u32 s{sRp}, s{sRp}, 1
    s_lshr_b32 s{sT2}, s2, 3
    s_cmp_eq_u32 s{sM}, {RP_AT}
    s_cbranch_scc0 LR_s1
    s_mov_b32 s{sWt}, s{sPtr+2}
    s_and_b32 s{sWt+1}, s{sPtr+3}, 0xffff
    s_mov_b32 s{sWt+2}, {D * D * 2}
    s_mov_b32 s{sWt+3}, 0x00020000
    s_mul_i32 s{sT0}, s{sT2}, {32 * 1280}
    s_and_b32 s{sT1}, s2, 3
    s_mul_i32 s{sT1}, s{sT1}, 320
    s_add_u32 s{sT0}, s{sT0}, s{sT1}
    s_mov_b32 m0, {RPK}
    s_add_u32 s{sT1}, s{sT0}, {16 * 1280}
    """)
    for i in range(10):
        a(f"buffer_load_dwordx4 v{rL + i % 5}, s[{sWt}:{sWt+3}], s{sT1 if i >= 5 else sT0} offen lds")
        a("s_add_u32 m0, m0, 1024\ns_nop 0")
    a(f"""
    s_branch LA_bar
    LR_s1:
    s_cmp_eq_u32 s{sM}, {RP_AT + 1}
    s_cbranch_scc0 LR_s2
    s_and_b32 s{sT0}, s2, 7
    s_mul_i32 s{sT0}, s{sT0}, {WO_SLAB}
    s_mul_i32 s{sT2}, s{sT2}, 10240
    s_add_u32 s{sT0}, s{sT0}, s{sT2}
    s_add_u32 s{sT0}, s{sT0}, {WS_WO}
    """)
    for ct in range(10):
        for u in range(2):
            a(f"ds_read_b64_tr_b16 {vr(rData + 4*ct + 2*u, 2)}, v{rT + ct // 8} offset:{u*4*320 + (ct % 8)*32}")
        if ct == 4:
            a("s_waitcnt lgkmcnt(0)")
    a("s_waitcnt lgkmcnt(0)")
    for ct in range(10):
        a(f"ds_write_b128 v{rD + ct // 8}, {vr(rData + 4*ct, 4)} offset:{32 * ct if ct < 8 else 8 * 1040 + 128 * (ct - 8)}")
    a("s_waitcnt lgkmcnt(0)")
    for c in range(10):
        a(f"ds_read_b128 {vr(rData + 4*c, 4)}, v{rX} offset:{1040 * c}")
    for c in range(10):
        a(f"s_waitcnt lgkmcnt({9 - c})")
        a(f"buffer_store_dwordx4 {vr(rData + 4*c, 4)}, v{vL16}, {WSR()}, s{sT0} offen offset:{1024 * (c & 3)} sc1")
        if c & 3 == 3:
            a(f"s_add_u32 s{sT0}, s{sT0}, 4096")
    a(f"""
    s_branch LA_bar
    LR_s2:
    s_mov_b32 s{sRp}, -1
    s_and_b32 s{sT0}, s2, 7
    s_lshl_b32 s{sT0}, s{sT0}, 7
    s_add_u32 s{sT0}, s{sT0}, {WS_C4}
    """)
    count_in(a, sT0, vP, vP + 1)
    a("s_branch LA_bar")


def write_ones(a, role):
    a(f"""
    v_and_b32 v{vT0}, 7, v0
    v_mul_u32_u24 v{vT0}, 640, v{vT0}
    v_add_u32 v{vT0}, {ONES[role]}, v{vT0}
    v_mov_b32 v16, 0x3f803f80
    v_mov_b32 v17, 0x3f803f80
    v_mov_b32 v18, 0x3f803f80
    v_mov_b32 v19, 0x3f803f80
    ds_write_b128 v{vT0}, v[16:19]
    """)


sL = 8


def lead_prepare(a):
    a(f"""
    s_cmp_lt_u32 s2, 160
    s_cselect_b32 s{sT0}, s{sJ}, 0
    s_cmp_eq_u32 s{sT0}, 1
    s_cselect_b32 s{sRp}, {RP_AT}, -1
    s_mov_b32 s{sM}, 0
    s_mov_b32 s{sMend}, 0
    s_mov_b32 s{sRb}, {RA}
    s_mov_b32 s{sNext}, {RA + BLK}
    """)
    attn_zero(a)
    o_base(a)
    a(f"""
    s_sub_u32 s{sT0}, s{sOb}, {3 * IMG}
    s_add_u32 s{sL},  s{sT0}, s{sOm}
    s_add_u32 s{sL+1}, s{sL},  {TILE}
    s_add_u32 s{sL+2}, s{sT0}, s{sExt}
    s_lshr_b32 s{sT3}, s{sJ}, 1
    s_mul_i32 s{sT1}, s{sT3}, {4 * TILE}
    s_add_u32 s{sT1}, s{sT1}, s{sImg}
    s_add_u32 s{sT1}, s{sT1}, {IMG}
    s_and_b32 s{sL+4}, s{sQB if 'kvrot' in OPT else sHead}, 7
    s_mul_i32 s{sL+3}, s{sL+4}, {8 * TILE}
    s_add_u32 s{sL+3}, s{sL+3}, s{sT1}
    s_add_u32 s{sL+4}, s{sL+4}, 1
    s_and_b32 s{sL+4}, s{sL+4}, 7
    s_mul_i32 s{sL+4}, s{sL+4}, {8 * TILE}
    s_add_u32 s{sL+4}, s{sL+4}, s{sT1}
    s_mul_i32 s{sL+5}, s{sT3}, {CH}
    s_and_b32 s{sL+6}, s{sJ}, 1
    s_mul_i32 s{sT4}, s{sL+6}, 6144
    s_add_u32 s{sL+5}, s{sL+5}, s{sT4}
    s_add_u32 m0, s{sL+5}, {RA + BLK}
    """)
    a(f"""
    s_lshl_b32 s{sL+7}, s{sBr}, 5
    s_add_u32 s{sL+7}, s{sL+7}, s{sHead}
    s_lshl_b32 s{sL+7}, s{sL+7}, 9
    s_add_u32 s{sL+7}, s{sL+7}, {WS_C1}
    """)


def common_setup(a):
    a(f"""
    s_and_b32 s{sT0}, s2, 1
    s_lshl_b32 s{sT0}, s{sT0}, 3
    s_and_b32 s{sT1}, s2, 2
    s_lshl_b32 s{sT1}, s{sT1}, 1
    s_add_u32 s{sT0}, s{sT0}, s{sT1}
    s_lshr_b32 s{sT2}, s2, 6
    s_add_u32 s{sHead}, s{sT0}, s{sT2}
    s_lshr_b32 s{sQB}, s2, 3
    s_and_b32 s{sQB}, s{sQB}, 7
    s_lshl_b32 s{sT2}, s{sRole}, 4
    s_add_u32 s{sHead}, s{sHead}, s{sT2}
    s_mul_i32 s{sImg}, s{sBr}, {4 * IMG}
    s_mov_b32 s{sPh}, 0
    s_mov_b32 s{sWS+2}, {WS_STAMP + 2048 * 128 if common.STAMP else WS_END}
    s_mov_b32 s{sWS+3}, 0x00020000
    s_mov_b32 s{sOut+2}, {S * 2 * D * 2}
    s_mov_b32 s{sOut+3}, 0x00020000
    s_mov_b32 s{sDbg+2}, 256
    s_mov_b32 s{sDbg+3}, 0x00020000
    s_waitcnt lgkmcnt(0)
    s_mov_b32 s{sOut}, s{sPtr+4}
    s_and_b32 s{sOut+1}, s{sPtr+5}, 0xffff
    s_mov_b32 s{sDbg}, s{sPtr+6}
    s_and_b32 s{sDbg+1}, s{sPtr+7}, 0xffff
    s_and_b32 s{sWS+1}, s{sWS+1}, 0xffff
    """)


def gen(a, label):
    kernel_head(a, label)
    a("s_cmp_ge_u32 s2, 256\ns_cbranch_scc1 LF_end")
    stamp(a, 0)
    a(f"""
    s_bfe_u32 s{sBr}, s2, 0x10002
    s_mul_i32 s{sT0}, s{sBr}, 24
    s_load_dwordx2 s[{sX}:{sX+1}], s[0:1], s{sT0}
    s_add_u32 s{sT1}, s{sT0}, 8
    s_load_dwordx4 s[{sPtr}:{sPtr+3}], s[0:1], s{sT1}
    s_load_dwordx4 s[{sPtr+4}:{sPtr+7}], s[0:1], 48
    s_load_dwordx2 s[{sWS}:{sWS+1}], s[0:1], 64
    v_lshrrev_b32 v1, 6, v0
    v_and_b32 v0, 63, v0
    v_readfirstlane_b32 s{sW}, v1
    s_and_b32 s{sT0}, s2, 3
    s_lshl_b32 s{sT0}, s{sT0}, 2
    s_bfe_u32 s{sT2}, s2, 0x20003
    s_add_u32 s{sTB}, s{sT0}, s{sT2}
    s_lshr_b32 s{sTI}, s2, 5
    """)
    if 'nocw' not in OPT:
        a.c("wave 7 pulls a quarter of the code into the L2, so that later instruction fetches find it there")
        a(f"""
        s_cmp_eq_u32 s{sW}, 7
        s_cbranch_scc0 LG_nocw
        s_getpc_b64 s[4:5]
        LG_pc:
        s_sub_u32 s4, s4, LG_pc-{label}
        s_subb_u32 s5, s5, 0
        s_lshl_b32 s{sT0}, s{sT2}, 13
        v_lshl_add_u32 v8, v0, 7, s{sT0}
        v_min_u32 v8, LF_codeend-{label}-4, v8
        global_load_dword v{gT+1}, v8, s[4:5]
        LG_nocw:
        """)
    a.c("phase-a units of tile ti: n = 2 ti + e, unit = n + 5 (n >= 5) + 5 (n >= 10)")
    a(f"""
    s_lshl_b32 s{sU0}, s{sTI}, 1
    s_cmp_ge_u32 s{sTI}, 5
    s_cselect_b32 s{sT0}, 10, 5
    s_cmp_ge_u32 s{sTI}, 3
    s_cselect_b32 s{sT0}, s{sT0}, 0
    s_add_u32 s{sU0}, s{sU0}, s{sT0}
    s_cmp_eq_u32 s{sTI}, 2
    s_cselect_b32 s{sT0}, 6, 1
    s_add_u32 s{sU1}, s{sU0}, s{sT0}
    s_and_b32 s{sJ}, s{sW}, 3
    s_lshr_b32 s{sRole}, s{sW}, 2
    s_cbranch_scc1 LG_start
    """)
    gemm_loader(a)
    a("LG_start:")
    common_setup(a)
    a.c("wave 4 clears counter lines id and id + 256")
    a(f"""
    s_cmp_eq_u32 s{sJ}, 0
    s_cbranch_scc0 LG_cleared
    s_lshl_b32 s{sT0}, s2, 7
    s_add_u32 s{sT0}, s{sT0}, {WS_C1}
    v_lshlrev_b32 v8, 15, v0
    v_mov_b32 v9, 0
    s_mov_b64 exec, 3
    buffer_store_dword v9, v8, {WSR()}, s{sT0} offen sc1
    s_mov_b64 exec, -1
    LG_cleared:
    """)
    gemm_compute(a)
    a("LG_done:")
    if PAIR_Q >= 160:
        a("s_barrier")
    stamp(a, 3)
    vectors_get(a)
    a.c("the last wave whose stores have drained publishes the tile")
    a(f"""
    v_mov_b32 v{vP}, {LCNT}
    v_mov_b32 v{vP+1}, 1
    s_waitcnt vmcnt(0)
    s_mov_b64 exec, 1
    ds_add_rtn_u32 v{vP+2}, v{vP}, v{vP+1}
    s_mov_b64 exec, -1
    s_waitcnt lgkmcnt(0)
    v_readfirstlane_b32 s{sT0}, v{vP+2}
    s_cmp_eq_u32 s{sT0}, 3
    s_cbranch_scc0 LG_nopub
    s_call_b64 s[{sLnk}:{sLnk+1}], LG_publish
    LG_nopub:
    """)
    stamp(a, 27)
    a("s_branch LB_lead")
    a("LG_idle:\ns_waitcnt lgkmcnt(0)\ns_barrier")
    drained(a)
    a("s_barrier\ns_barrier")
    vectors_get(a)
    stamp(a, 3)
    a("LB_lead:")
    if 'oldlead' not in OPT:
        a("s_setprio 0")
    call_dma(a, 0, 2)
    a("s_barrier")
    o_mark(a)
    a("s_nop 0")
    write_ones(a, 1)
    a(f"s_mov_b32 s{sM}, {SK}\ns_mov_b32 s{sMend}, {(1 << (SK + 5)) - 1}\ns_mov_b32 s{sRb}, {RB}\ns_mov_b32 s{sNext}, {RB}\ns_mov_b32 s{sRp}, -1")
    attn_zero(a)
    a("s_setprio 2\ns_waitcnt vmcnt(0)\ns_barrier")
    poll_f1(a)
    stamp(a, 26)
    load_q(a)
    call_dma(a, 1, 0)
    call_dma(a, 0, 3)
    if 'oldlead' in OPT:
        scale_q(a, 10)
    a("s_waitcnt vmcnt(0) lgkmcnt(0)\ns_barrier")
    call_dma(a, 1, 1)
    call_dma(a, 0, 4)
    call_dma(a, 1, 2)
    a("s_setprio 0" if 'noprio' in OPT else "s_setprio 1")
    if 'oldlead' not in OPT:
        scale_q(a, 63)
    stamp(a, 5)
    a("s_branch LA_start")
    a("LA_lead:")
    a("s_setprio 3")
    def small_writes():
        a(f"s_cmp_lt_u32 s{sJ}, 2\ns_cbranch_scc0 LA_sw1")
        vectors_put(a)
        a(f"s_branch LA_sw2\nLA_sw1:\nv_mov_b32 v{vP+2}, {LCNT}\ns_mov_b64 exec, 0xff\nds_write_b32 v{vP+2}, v{vP+1}")
        write_ones(a, 0)
        a("LA_sw2:")
    poll_counter(a, vP + 3, f"s{sL+7}", f"s{sExp}", 7, small_writes)
    stamp(a, 1)
    a(f"""
    buffer_load_dwordx4 {vr(Qm[0],4)}, v{vL16}, {WSR()}, s8 offen sc1
    buffer_load_dwordx4 {vr(Qm[1],4)}, v{vL16}, {WSR()}, s9 offen sc1
    buffer_load_dwordx2 {vr(Qe,2)}, v{vE16}, {WSR()}, s10 offen sc1
    """)
    for blk in range(2):
        for p in range(5):
            a(f"buffer_load_dwordx4 v{vD+p}, {WSR()}, s{11 + blk} offen sc1 lds")
            a("s_add_u32 m0, m0, 1024")
            a("s_nop 0" if p < 4 else "s_cmp_eq_u32 s14, 1")
        a(f"s_cbranch_scc1 LA_ld{blk}\nbuffer_load_dwordx4 v{vD+5}, {WSR()}, s{11 + blk} offen sc1 lds\nLA_ld{blk}:")
        if blk == 0:
            a(f"s_add_u32 m0, s13, {RA + 2 * BLK}\ns_nop 0")
    scale_q(a, 10)
    a("s_waitcnt vmcnt(5) lgkmcnt(0)\ns_barrier\ns_setprio 1")
    stamp(a, 3)
    attention(a)
    a(f"s_cmp_eq_u32 s{sRole}, 0\ns_cbranch_scc1 LP_a\ns_barrier")
    stamp(a, 6)
    a(f"s_branch {'LF_end' if 'astamp' in OPT else 'LP_end'}\nLP_a:\ns_waitcnt vmcnt(0)")
    count_in(a, sOc, vP, vP + 1)
    stamp(a, 6)
    a.c("role-A waves: first half of K while role B finishes, second half once it is published")
    a(f"""
    s_and_b32 s{sT0}, s{sHead}, 3
    s_lshl_b32 s{sT1}, s{sBr}, 2
    s_add_u32 s{sT0}, s{sT0}, s{sT1}
    s_lshl_b32 s{sT0}, s{sT0}, 7
    s_add_u32 s{sT0}, s{sT0}, {WS_C4}
    """)
    poll_counter(a, vP + 4, f"s{sT0}", 20, 1)
    a(f"v_pk_mov_b32 {vr(pACC + 32, 2)}, 0, 0")
    for r in range(34, 40, 2):
        a(f"v_pk_mov_b32 {vr(pACC + r, 2)}, 0, 0")
    for r in range(32, 40, 2):
        a(f"v_pk_mov_b32 {vr(pACL + r, 2)}, 0, 0")
    for A in (pACC, pACL):
        a(f"v_mfma_f32_32x32x4_2b_bf16 {vr(A,32)}, {vr(pACC + 32, 2)}, {vr(pACC + 32, 2)}, 0")
    G = lambda i: LDS_BYTES - (11 - i) * 10240
    Lo = lambda i: RB + i * 10240
    assert SK == 3 and G(0) >= RB + 2 * BLK and G(3) >= RB + RING and Lo(3) <= RB + BLK + CH
    call = lambda l: a(f"s_call_b64 s[{sLnk}:{sLnk+1}], {l}")
    o_addr(a)
    out_addr(a)
    a("s_setprio 0")
    stamp(a, 20)
    a("s_barrier")
    stamp(a, 21)
    call_dma(a, 1, 7)
    wo_dma(a, 0, 3, G(3))
    peek(a, 1)
    wo_dma(a, 3, 6, G(6))
    stamp(a, 22)
    a(f"s_waitcnt vmcnt(0)\nv_readfirstlane_b32 s{sT0}, v{vPS+2}\ns_cmp_ge_u32 s{sT0}, 16\ns_cbranch_scc1 LP_seen")
    poll_counter(a, vP + 4, f"s{sFc}", 16, 1)
    a("LP_seen:")
    call("LP_ldhi")
    call("LP_ldlo")
    a(f"s_add_u32 s{sFo}, s{sFo}, 20480\ns_add_u32 s{sFc}, s{sFc}, 128")
    stamp(a, 25)
    a("s_barrier")
    stamp(a, 5)
    set_tab(a, [G(3), G(4), G(5), G(6), G(7), G(8), G(9), G(10), G(0), G(1)])
    call("LP_pro")
    a("s_waitcnt vmcnt(0)")
    wo_dma(a, 6, 8, G(9))
    wo_dma(a, 8, 11, G(0))
    call("LP_hi")
    a("s_waitcnt vmcnt(0) lgkmcnt(0)")
    stamp(a, 26)
    a("s_barrier")
    stamp(a, 28)
    wo_dma(a, 11, 17, G(3))
    peek(a, 3)
    wo_dma(a, 17, 20, Lo(0))
    a("s_waitcnt vmcnt(7)")
    ready_mask(a)
    a("s_cbranch_scc0 LP_n1")
    call("LP_order")
    a("LP_n1:")
    stamp(a, 29)
    call("LP_lo")
    stamp(a, 10)
    a(f"s_waitcnt vmcnt(0)\ns_barrier\ns_cmp_lg_u32 s{sPh}, 0\ns_cbranch_scc1 LP_n2\ns_mov_b32 s{sSpin}, {SPIN}\nLP_any:")
    peek(a, 3)
    a("s_waitcnt vmcnt(0)")
    ready_mask(a)
    a(f"s_cbranch_scc1 LP_got\ns_sleep {SLEEP}\ns_sub_u32 s{sSpin}, s{sSpin}, 1\ns_cbranch_scc0 LP_any\nLP_got:")
    call("LP_order")
    a("LP_n2:")
    stamp(a, 30)
    T = [G(2), G(3), G(4), G(5), G(6), G(7), G(8), Lo(0), Lo(1), Lo(2)]
    a(f"s_cmp_eq_u32 s{sPh}, 3\ns_cbranch_scc0 LP_n3")
    call("LP_ldlo")
    a(f"LP_n3:\ns_cmp_eq_u32 s{sDone}, 1")
    for r, x, y in zip(TAB, T, T[5:] + T[:5]):
        a(f"s_mov_b32 s{r}, {x}\ns_cmov_b32 s{r}, {y}")
    call("LP_pro")
    a.c("each group keeps its own accumulators, so the result does not depend on the order of arrival")
    a("s_cbranch_scc0 LP_n4")
    for r in range(40):
        a(f"v_swap_b32 v{pACC + r}, v{pACL + r}")
    a("LP_n4:")
    a(f"s_waitcnt vmcnt(5)\ns_cmp_eq_u32 s{sPh}, 3\ns_cbranch_scc1 LP_n5\ns_waitcnt vmcnt(0)")
    peek(a, 3)
    a("LP_n5:")
    o_checked(a, "LP_ldhi", 0, False)
    stamp(a, 11)
    call("LP_hi")
    stamp(a, 12)
    a(f"s_cmp_eq_u32 s{sPh}, 3\ns_cbranch_scc1 LP_n6\ns_waitcnt vmcnt(0)")
    ready_mask(a)
    a(f"s_cmp_eq_u32 s{sPh}, 3\ns_cbranch_scc1 LP_n7")
    poll_counter(a, vP + 5, f"s{sFc}", 8, 3)
    a("LP_n7:")
    call("LP_ldlo")
    a("LP_n6:")
    o_checked(a, "LP_ldlo", 5, True)
    stamp(a, 2)
    if common.STAMP: a(f"s_mov_b32 s{STAMP_S+17}, s{sSpin}")
    call("LP_lo")
    stamp(a, 16)
    out_store(a)
    a("LP_end:")
    if common.STAMP:
        a("s_waitcnt vmcnt(0)")
        stamp(a, 7)
        stamp_flush(a, 4)
    a("LF_end:\ns_endpgm")
    dma_sub(a)
    refill(a)
    publish_sub(a)
    order_sub(a)
    o_load_sub(a, "LP_ldhi", 0)
    o_load_sub(a, "LP_ldlo", 5)
    oproj_subs(a)
    repack_steps(a)
    slow_path(a)
    a("LF_codeend:")


def build():
    a = Asm()
    label = NAME + "_kernel"
    a('.amdgcn_target "amdgcn-amd-amdhsa--gfx950"\n.text')
    gen(a, label)
    return (HEADER + f"; @launch grid=(256,1,1) block=(512,1,1) lds={LDS_BYTES}\n" + a.text()
            + '.section .rodata,"a"\n.p2align 6\n' + kernel_desc(label, NVGPR, NVGPR, 100))


if __name__ == "__main__":
    import sys
    for x in sys.argv[2:]:
        if '=' in x:
            k, v = x.split('='); globals()[k] = int(v)
        else:
            OPT.add(x)
    if 'dbgstamp' in OPT:
        common.STAMP = True
    out = sys.argv[1] if len(sys.argv) > 1 else f"cdna_kernels/{NAME}.s"
    open(out, "w").write(build())
```

```python
from common import Asm, vr, sr, f32bits, kernel_head, kernel_desc, QSCALE, S, D, HEADER, NAME
import common

OPT = set()
SK = 3

TILE = 40960
IMG = 64 * TILE
WS_WO = 8 * IMG
WO_SLAB = 204800
WO_HALF = WO_SLAB // 2
WS_C1 = WS_WO + 8 * WO_SLAB
WS_C3 = WS_C1 + 256 * 128
WS_C4 = WS_C3 + 192 * 128
WS_END = WS_C1 + 512 * 128
WS_STAMP = WS_END + 65536

LDS_BYTES = 163840
GSL = 16384
CH = 11264
BLK = 2 * CH
RING = 3 * BLK
ONES = [90112, 0]
RB = 5120
RA = LDS_BYTES - RING
RPK = RB + RING
XFER = 81920
LCNT = 95232

sX, sWt, sWS, sOut, sDbg = 8, 12, 16, 20, 24
sPtr = 28
sW, sJ, sRole = 40, 41, 42
sHead, sQB, sTI, sTB = 43, 44, 45, 46
sT0, sT1, sT2, sT3, sT4 = 47, 48, 49, 50, 51
sIt, sSlot, sKB, sInc = 52, 53, 54, 55
sXo, sWo = 56, 57
sNext, sRb, sRe, sRem = 52, 53, 54, 55
sM, sMend = 56, 57
sOm, sExt = 58, 59
sSpin = 60
sBr = 61
sU0, sU1, sImg, sPh = 96, 97, 98, 99
sExp = 3
sDone = 36
sOb = 37
sOc = 97
sFo, sFc = 38, 39
sRp = 96
sE = 56
sLnk = 62
STAMP_S = 64

RP_AT = 4
TLB_AT = 2
SKIPMASK = 1
LOFF = -1
SPIN = 1 << 15
SLEEP = 2


NST = 32


def stamp(a, i):
    if common.STAMP and not ('cyc' in OPT and 8 <= i <= 19):
        a(f"s_memrealtime s[4:5]\ns_waitcnt lgkmcnt(0)\ns_mov_b32 s{STAMP_S+i}, s4")


def stamp_cyc(a, i):
    if common.STAMP:
        a(f"s_memtime s[4:5]\ns_waitcnt lgkmcnt(0)\ns_mov_b32 s{STAMP_S+i}, s4")


def stamp_idx(a, base, sreg):
    if common.STAMP and 'cyc' in OPT:
        a(f"s_memtime s[4:5]\ns_mov_b32 m0, s{sreg}\ns_waitcnt lgkmcnt(0)\ns_movreld_b32 s{STAMP_S+base}, s4")


def stamp_flush(a, vt):
    if not common.STAMP:
        return
    a(f"""
    s_mov_b64 exec, 1
    s_lshl_b32 s{sT0}, s2, 3
    s_add_u32 s{sT0}, s{sT0}, s{sW}
    s_lshl_b32 s{sT0}, s{sT0}, 7
    s_add_u32 s{sT0}, s{sT0}, {WS_STAMP}
    v_mov_b32 v{vt+2}, 0
    """)
    for i in range(NST):
        a(f"v_mov_b32 v{vt}, s{STAMP_S+i}")
        a(f"buffer_store_dword v{vt}, v{vt+2}, s[{sWS}:{sWS+3}], s{sT0} offen offset:{4*i}")
    if 'dbgstamp' in OPT:
        a(f"s_cmp_eq_u32 s2, 100\ns_cbranch_scc0 LF_nodbg\ns_cmp_eq_u32 s{sJ}, 0\ns_cbranch_scc0 LF_nodbg\ns_lshl_b32 s{sT0}, s{sRole}, 5")
        for i in range(8):
            a(f"s_sub_u32 s{sT1}, s{STAMP_S+i}, s{STAMP_S}")
            a(f"v_mov_b32 v{vt}, s{sT1}")
            a(f"buffer_store_dword v{vt}, v{vt+2}, s[{sDbg}:{sDbg+3}], s{sT0} offen offset:{4*i}")
        a("LF_nodbg:")


def WSR():
    return f"s[{sWS}:{sWS+3}]"


_lbl = [0]


def poll(a, loads, expect, vtmp):
    _lbl[0] += 1
    L = f"LF_poll{_lbl[0]}"
    a(f"s_mov_b32 s{sSpin}, {SPIN}\n{L}:")
    for i, (vo, srd, so) in enumerate(loads):
        a(f"buffer_load_dword v{vtmp+i}, v{vo}, {srd}, {so} offen sc1")
    a("s_waitcnt vmcnt(0)")
    for i in range(1, len(loads)):
        a(f"v_min_u32 v{vtmp}, v{vtmp}, v{vtmp+i}")
    a(f"""
    v_cmp_gt_u32 vcc, {expect}, v{vtmp}
    s_cbranch_vccz {L}_ok
    s_sleep {SLEEP}
    s_sub_u32 s{sSpin}, s{sSpin}, 1
    s_cbranch_scc0 {L}
    {L}_ok:
    """)


def poll_counter(a, vo, so, expect, mask, meanwhile=None):
    _lbl[0] += 1
    L = f"LF_pc{_lbl[0]}"
    rd = (f"v_mov_b32 v{vPS}, 0\nbuffer_atomic_add v{vPS}, v{vo}, {WSR()}, {so} offen sc0 sc1" if 'ldpoll' not in OPT else
          f"buffer_load_dword v{vPS}, v{vo}, {WSR()}, {so} offen sc1")
    a(f"s_mov_b32 s{sSpin}, {SPIN}\ns_mov_b64 exec, {mask}")
    if meanwhile:
        a(f"{rd}\ns_mov_b64 exec, -1")
        meanwhile()
        a(f"s_mov_b64 exec, {mask}\ns_branch {L}_w")
    a(f"""
    {L}:
    {rd}
    {L}_w:
    s_waitcnt vmcnt(0)
    v_cmp_gt_u32 vcc, {expect}, v{vPS}
    s_cbranch_vccz {L}_ok
    s_sleep {SLEEP}
    s_sub_u32 s{sSpin}, s{sSpin}, 1
    s_cbranch_scc0 {L}
    {L}_ok:
    s_mov_b64 exec, -1
    """)


def count_in(a, soff, vz, vd):
    a(f"""
    v_mov_b32 v{vz}, 0
    v_mov_b32 v{vd}, 1
    s_mov_b64 exec, 1
    buffer_atomic_add v{vd}, v{vz}, {WSR()}, s{soff} offen sc1
    s_mov_b64 exec, -1
    """)


gXF = 0
gWF = 160
gWA = [184, 185, 186, 187]
gXA = 188
gT = 189
gACC = 192


PUB_BAR = 12
LAST_BAR = 16
PAIR_Q = 155
HIGH_Q = 144
CLR_AT = 0
CNT_AT = 3
NFIRST = 5
MAXISS = 3
FAST_BAR = 7
PF_BAR = 3
ROT = 4


def stage_barriers():
    return list(range(0, 12)) + [LAST_BAR]


def gemm_schedule():
    items = [x for n in range(10) for x in (("X", n), ("W", n))] + [("W", n) for n in range(10, 20)]
    rel = lambda it: it[1] + (1 if it[0] == "X" else 2)
    free = list(range(10))
    slot, when, freed = {}, {}, set()
    k = 0
    for bar in range(-1, 12):
        for it in items:
            if it in slot and it not in freed and rel(it) <= bar:
                free.append(slot[it])
                freed.add(it)
        n = 0
        while k < len(items) and free and n < (NFIRST if bar == -1 else 10 if bar == 11 else MAXISS if bar >= FAST_BAR else 2) and bar != 10:
            slot[items[k]] = free.pop(0)
            when[items[k]] = bar
            k += 1
            n += 1
    assert k == len(items) and when[("W", LAST_BAR - 1)] <= 9 and when[("W", 17)] == 11
    assert max(rel(it) for it in items[:-3] if slot[it] == slot[("W", 17)]) <= 10
    order = [slot[("W", n)] for n in (15, 16, 17, 18, 19, 13, 14, 10, 11, 12)]
    assert sorted(order) == list(range(10)), order
    slot = {it: order.index(v) for it, v in slot.items()}
    return items, slot, when


LCNT0 = 2 * GSL


def lane_id(a, v):
    a(f"v_mbcnt_lo_u32_b32 v{v}, -1, 0\nv_mbcnt_hi_u32_b32 v{v}, -1, v{v}")


def drained(a):
    a(f"s_waitcnt vmcnt(0)\ns_mov_b64 exec, 1\nds_add_u32 v{gT+1}, v{gT+2}\ns_mov_b64 exec, -1\ns_mov_b32 s{sDone}, 1")


def clear_counters(a, L):
    a.c("wave 4 clears counter lines id and id + 256")
    a(f"""
    s_cmp_eq_u32 s{sJ}, 0
    s_cbranch_scc0 {L}_cleared
    s_lshl_b32 s{sT0}, s2, 7
    s_add_u32 s{sT0}, s{sT0}, {WS_C1}
    v_mbcnt_lo_u32_b32 v{gT+1}, -1, 0
    v_lshlrev_b32 v{gT+1}, 15, v{gT+1}
    v_mov_b32 v{gT+2}, 0
    s_mov_b64 exec, 3
    buffer_store_dword v{gT+2}, v{gT+1}, {WSR()}, s{sT0} offen sc1
    s_mov_b64 exec, -1
    {L}_cleared:
    """)


def gemm_body(a, vtype):
    L = "LG_v" if vtype else "LG_q"
    items, slot, when = gemm_schedule()

    def kc(q):
        return ((q & 3, (q >> 2) & 3) if q >= 144 else ((q >> 2) & 3, q & 3))

    def wreads(q):
        ks, c = kc(q)
        d = gWF + 4 * (q % 6)
        return [f"ds_read_b64_tr_b16 {vr(d + 2*u, 2)}, v{gWA[c]} offset:{ks*4096 + u*1024}" for u in range(2)]

    def xreads(n, between=""):
        for ks in range(4):
            d = gXF + 4 * (4 * n + ks)
            a(f"v_xor_b32 v{d}, {32 * ks}, v{gXA}")
        a(between)
        for ks in range(4):
            d = gXF + 4 * (4 * n + ks)
            a(f"ds_read_b128 {vr(d,4)}, v{d}")

    def pack(c):
        out = []
        A = gACC + 16 * c
        out += [f"v_cvt_pk_bf16_f32 v{gACC + 8*c + j}, v{A+2*j}, v{A+2*j+1}" for j in range(8)]
        return out

    def stores(c):
        out = []
        for i in range(2):
            d = vr(gACC + 8*c + 4*i, 4)
            if vtype:
                out.append(f"buffer_store_dwordx4 {d}, v{gT}, {WSR()}, s{sE + i} offen offset:{c * 512} sc1")
            else:
                out.append(f"buffer_store_dwordx4 {d}, v{gT}, {WSR()}, s{sE + (c >> 1)} offen offset:{(c & 1) * 2048 + i * 1024} sc1")
        return out

    a("s_barrier")
    a(f"s_mov_b32 s{sDone}, 1")
    stamp(a, 1)
    xreads(0)
    for q in range(6):
        for r in wreads(q):
            a(r)
    a(f"{L}_body:")
    for q in range(160):
        n = q >> 4
        ks, c = kc(q)
        if q <= 154:
            a(f"s_waitcnt lgkmcnt({2 * (min(q + 5, 159) - q)})")
        elif q == 155:
            a("s_waitcnt lgkmcnt(0)")
        x, w = vr(gXF + 4 * (4 * n + ks), 4), vr(gWF + 4 * (q % 6), 4)
        A, B = (x, w) if vtype else (w, x)
        d = vr(gACC + 16 * c, 16)
        a(f"v_mfma_f32_32x32x16_bf16 {d}, {A}, {B}, {'0' if q < 4 else d}")
        r16 = q & 15
        if r16 == 10:
            if n + 11 in stage_barriers():
                a("s_barrier")
            a(f"s_cbranch_scc0 {L}_xa{n}\n{L}_xb{n}:")
        if q + 6 < 160:
            for r in wreads(q + 6):
                a(r)
        if PUB_BAR <= n + 11 <= LAST_BAR:
            if r16 == 0:
                a.c("phase b: report once that this wave's stores have drained")
                a(f"s_getreg_b32 s{sT0}, hwreg(HW_REG_IB_STS, 0, 4)" if n + 11 < LAST_BAR else f"s_mov_b32 s{sT0}, 0")
            if r16 == 1:
                a(f"s_or_b32 s{sT0}, s{sT0}, s{sDone}")
            if r16 == 2:
                a(f"s_cbranch_scc0 {L}_da{n}\n{L}_db{n}:")
        if r16 == 3:
            a(f"s_cmp_eq_u32 s{sPh}, 1")
        if r16 == 4:
            a(f"s_mov_b32 s{sInc}, {((slot[('W', n + 1)] - slot[('W', n)]) * GSL) & 0xffffffff}")
        if r16 == 5 and n < 9:
            a(f"s_cmov_b32 s{sInc}, {((slot[('W', n + 11)] - slot[('W', n + 10)]) * GSL) & 0xffffffff}")
        if 6 <= r16 <= 9:
            a(f"v_add_u32 v{gWA[r16 - 6]}, s{sInc}, v{gWA[r16 - 6]}")
        if q == HIGH_Q:
            a("s_setprio 2")
        if q == PAIR_Q:
            low = "s_setprio 0\n" if PAIR_Q < HIGH_Q else ""
            a(f"s_cbranch_scc0 {L}_np\ns_barrier\n{low}{L}_np:")
        if q in (150, 154):
            for x in pack((q - 150) // 4):
                a(x)
        if q in (151, 155):
            for x in stores((q - 151) // 4):
                a(x)
        if q == 156:
            a("s_nop 7")
        if q == 158:
            for x in pack(2):
                a(x)
    for x in stores(2):
        a(x)
    a(f"s_cbranch_scc1 {L}_nopre")
    for q in range(6):
        for r in wreads(q):
            a(r)
    a(f"{L}_nopre:\ns_nop 9")
    for x in pack(3) + stores(3):
        a(x)
    a(f"s_cbranch_scc1 LG_done")
    stamp(a, 2)
    next_units(a)
    step = 6 * 1024 if vtype else 5 * 4096
    a(f"s_add_u32 s{sE}, s{sE}, {step}\ns_add_u32 s{sE+1}, s{sE+1}, {step}\ns_mov_b32 s{sDone}, 0")
    if vtype:
        a(f"s_cmp_eq_u32 s{sTI}, 7\ns_cbranch_scc1 LG_idle")
    a(f"s_branch {L}_body")
    for n in range(10):
        a(f"{L}_xa{n}:")
        if n == CLR_AT:
            clear_counters(a, L)
            a(f"s_cmp_eq_u32 s{sPh}, 1")
        if n == CNT_AT:
            a.c("this workgroup has cleared its share of the counters: count it in")
            a(f"""
            s_waitcnt vmcnt(0)
            s_cmp_eq_u32 s{sW}, 4
            s_cbranch_scc0 {L}_nocount
            s_and_b32 s{sT0}, s2, 31
            s_lshl_b32 s{sT0}, s{sT0}, 2
            s_add_u32 s{sT0}, s{sT0}, 128
            v_mov_b32 v{gT+1}, 0
            v_mov_b32 v{gT+2}, 1
            s_mov_b64 exec, 1
            buffer_atomic_add v{gT+2}, v{gT+1}, s[{sDbg}:{sDbg+3}], s{sT0} offen sc1
            s_mov_b64 exec, -1
            {L}_nocount:
            v_mov_b32 v{gT+1}, {LCNT0}
            v_mov_b32 v{gT+2}, 1
            s_cmp_eq_u32 s{sPh}, 1
            """)
        if n + 1 < 10:
            dx = (slot[("X", n + 1)] - slot[("X", n)]) * GSL
            a(f"v_add_u32 v{gXA}, {dx & 0xffffffff}, v{gXA}")
            xreads(n + 1, "" if n + 11 in stage_barriers() else "s_barrier")
        else:
            a("s_barrier")
        a(f"s_branch {L}_xb{n}")
    for n in range(PUB_BAR - 11, LAST_BAR - 10):
        a(f"{L}_da{n}:")
        drained(a)
        a(f"s_branch {L}_db{n}")


def next_units(a):
    a(f"""
    s_mov_b32 s{sPh}, 1
    s_cmp_ge_u32 s{sTI}, 5
    s_cselect_b32 s{sT0}, 6, 5
    s_add_u32 s{sU0}, s{sU0}, s{sT0}
    s_add_u32 s{sU1}, s{sU1}, s{sT0}
    """)


def publish_sub(a):
    t = vPS
    a(f"""
    LG_publish:
    v_cmp_lt_u32 vcc, 31, v0
    v_mov_b32 v{t+3}, s{sU0}
    v_mov_b32 v{t+4}, s{sU1}
    v_cndmask_b32 v{t+3}, v{t+3}, v{t+4}, vcc
    v_mul_u32_u24 v{t+4}, 205, v{t+3}
    v_lshrrev_b32 v{t+4}, 11, v{t+4}
    v_mul_u32_u24 v{t+5}, 10, v{t+4}
    v_sub_u32 v{t+3}, v{t+3}, v{t+5}
    v_lshlrev_b32 v{t+3}, 3, v{t+3}
    v_and_b32 v{t+5}, 31, v0
    v_lshl_add_u32 v{t+4}, v{t+5}, 2, v{t+4}
    v_lshlrev_b32 v{t+4}, 7, v{t+4}
    v_mul_u32_u24 v{t+5}, 5, v{t+5}
    v_lshrrev_b32 v{t+5}, 1, v{t+5}
    v_add_u32 v{t+5}, 2, v{t+5}
    v_sub_u32 v{t+5}, v{t+5}, v{t+3}
    v_cmp_gt_u32 vcc, 10, v{t+5}
    v_mov_b32 v{t+1}, 1
    s_lshl_b32 s{sT1}, s{sBr}, 14
    s_add_u32 s{sT1}, s{sT1}, {WS_C1}
    s_mov_b64 exec, vcc
    buffer_atomic_add v{t+1}, v{t+4}, {WSR()}, s{sT1} offen sc1
    s_mov_b64 exec, -1
    s_setpc_b64 s[{sLnk}:{sLnk+1}]
    """)


def gemm_compute(a):
    items, slot, when = gemm_schedule()
    t0, t1, t2 = 8, 9, 10
    a(f"""
    v_and_b32 v{t0}, 31, v0
    v_lshrrev_b32 v{t1}, 5, v0
    v_lshrrev_b32 v{t2}, 1, v{t0}
    v_and_b32 v{t2}, 7, v{t2}
    v_xor_b32 v{t2}, v{t2}, v{t1}
    v_lshlrev_b32 v{t2}, 4, v{t2}
    v_lshlrev_b32 v{t0}, 7, v{t0}
    v_add_u32 v{t2}, v{t2}, v{t0}
    s_lshl_b32 s{sT0}, s{sJ}, 12
    s_add_u32 s{sT0}, s{sT0}, {slot[("X", 0)] * GSL}
    v_add_u32 v{gXA}, s{sT0}, v{t2}
    v_lshrrev_b32 v{t0}, 2, v0
    v_and_b32 v{t0}, 3, v{t0}
    v_lshlrev_b32 v{t2}, 3, v{t1}
    v_add_u32 v{t2}, v{t2}, v{t0}
    v_lshlrev_b32 v{t2}, 8, v{t2}
    v_lshlrev_b32 v{t0}, 6, v{t0}
    v_add_u32 v{t2}, v{t2}, v{t0}
    v_and_b32 v{t0}, 16, v0
    v_lshlrev_b32 v{t0}, 1, v{t0}
    v_add_u32 v{t2}, v{t2}, v{t0}
    v_add_u32 v{t2}, {slot[("W", 0)] * GSL}, v{t2}
    v_and_b32 v{t0}, 1, v0
    v_and_b32 v{t1}, 2, v0
    s_cmp_ge_u32 s{sTI}, 5
    s_cselect_b32 s{sT0}, 3, 4
    s_cselect_b32 s{sT1}, 3, 2
    v_lshlrev_b32 v{t0}, s{sT0}, v{t0}
    v_lshlrev_b32 v{t1}, s{sT1}, v{t1}
    v_add3_u32 v{gWA[0]}, v{t2}, v{t0}, v{t1}
    v_xor_b32 v{gWA[1]}, 64, v{gWA[0]}
    v_xor_b32 v{gWA[2]}, 128, v{gWA[0]}
    v_xor_b32 v{gWA[3]}, 192, v{gWA[0]}
    s_lshl_b32 s{sT0}, s{sTB}, 2
    s_add_u32 s{sT0}, s{sT0}, s{sJ}
    s_mul_i32 s{sT0}, s{sT0}, {TILE}
    s_add_u32 s{sT0}, s{sT0}, s{sImg}
    v_lshlrev_b32 v{gT}, 4, v0
    s_cmp_ge_u32 s{sTI}, 5
    s_cbranch_scc1 LG_vtype
    s_lshl_b32 s{sE}, s{sU0}, 12
    s_lshl_b32 s{sE+1}, s{sU1}, 12
    s_cmp_ge_u32 s{sU0}, 10
    s_cselect_b32 s{sT3}, {IMG - 40960}, 0
    s_add_u32 s{sE}, s{sE}, s{sT3}
    s_cmp_ge_u32 s{sU1}, 10
    s_cselect_b32 s{sT3}, {IMG - 40960}, 0
    s_add_u32 s{sE+1}, s{sE+1}, s{sT3}
    s_add_u32 s{sE}, s{sE}, s{sT0}
    s_add_u32 s{sE+1}, s{sE+1}, s{sT0}
    """)
    gemm_body(a, False)
    a(f"""
    LG_vtype:
    s_lshl_b32 s{sE}, s{sU0}, 10
    s_add_u32 s{sE}, s{sE}, {2 * IMG - 20480}
    s_add_u32 s{sE}, s{sE}, s{sT0}
    s_add_u32 s{sE+1}, s{sE}, 20480
    v_lshrrev_b32 v8, 5, v0
    v_mul_u32_u24 v8, 10240 - 512, v8
    v_add_u32 v{gT}, v{gT}, v8
    """)
    gemm_body(a, True)


def touch_pages(a):
    a.c("every MiB that is first used later is touched once per group of workgroups, so that its translation is at hand")
    a(f"""
    s_lshr_b32 s{sT0}, s2, 3
    s_lshl_b32 s{sT0}, s{sT0}, 20
    s_cmp_eq_u32 s{sJ}, 1
    s_cbranch_scc0 LL_t1
    s_min_u32 s{sT1}, s{sT0}, {WS_END - 4}
    s_load_dword s6, s[{sWS}:{sWS+1}], s{sT1}
    LL_t1:
    s_cmp_eq_u32 s{sJ}, 2
    s_cbranch_scc0 LL_t2
    s_min_u32 s{sT1}, s{sT0}, {S * 2 * D * 2 - 4}
    s_load_dword s7, s[{sPtr+4}:{sPtr+5}], s{sT1}
    s_min_u32 s{sT1}, s{sT0}, {D * D * 2 - 4}
    s_load_dword s7, s[{sPtr+2}:{sPtr+3}], s{sT1}
    s_load_dword s6, s[{sPtr+6}:{sPtr+7}], 0
    LL_t2:
    """)


def gemm_loader(a):
    items, slot, when = gemm_schedule()
    vE, vO, vWs, vCnt = 230, 231, 232, 233
    sKX, sKW = sKB, sSlot
    a(f"""
    v_lshrrev_b32 v5, 3, v0
    v_mul_u32_u24 v5, 1280, v5
    v_and_b32 v6, 7, v0
    v_lshrrev_b32 v7, 4, v0
    v_xor_b32 v6, v6, v7
    v_lshlrev_b32 v6, 4, v6
    v_add_u32 v{vE}, v5, v6
    v_xor_b32 v6, 64, v6
    v_add_u32 v{vO}, v5, v6
    v_add_u32 v{vO}, {8 * 1280 - 1024}, v{vO}
    v_lshrrev_b32 v5, 2, v0
    v_and_b32 v5, 3, v5
    v_xor_b32 v5, v5, v7
    v_lshrrev_b32 v6, 1, v5
    s_sub_u32 s{sT0}, s{sU1}, s{sU0}
    s_lshl_b32 s{sT0}, s{sT0}, 7
    v_mul_u32_u24 v6, s{sT0}, v6
    v_and_b32 v5, 1, v5
    v_lshl_add_u32 v5, v5, 6, v6
    v_and_b32 v6, 3, v0
    v_lshl_add_u32 v5, v6, 4, v5
    v_mul_u32_u24 v6, 3840, v7
    v_add_u32 v{vWs}, v5, v6
    s_lshl_b32 s{sXo}, s{sTB}, 2
    s_add_u32 s{sXo}, s{sXo}, s{sJ}
    s_mul_i32 s{sXo}, s{sXo}, {32 * 1280}
    s_mul_i32 s{sWo}, s{sJ}, {16 * 3840}
    s_lshl_b32 s{sT0}, s{sU0}, 7
    s_add_u32 s{sWo}, s{sWo}, s{sT0}
    s_lshl_b32 s{sInc}, s{sJ}, 12
    """)
    a.c("workgroups that share a tile start at different k-blocks, so that they fill the L2 together")
    if ROT == 2:
        a(f"s_xor_b32 s{sKX}, s{sTB}, s{sTI}\ns_and_b32 s{sKX}, s{sKX}, 1\ns_mul_i32 s{sKX}, s{sKX}, 5")
    elif ROT == 3:
        a(f"""
        s_and_b32 s{sKX}, s{sTB}, 3
        s_add_u32 s{sKX}, s{sKX}, s{sTI}
        s_mul_i32 s{sT0}, s{sKX}, 43
        s_lshr_b32 s{sT0}, s{sT0}, 7
        s_mul_i32 s{sT0}, s{sT0}, 3
        s_sub_u32 s{sKX}, s{sKX}, s{sT0}
        s_mul_i32 s{sKX}, s{sKX}, 7
        s_lshr_b32 s{sKX}, s{sKX}, 1
        """)
    elif ROT == 4:
        a(f"""
        s_add_u32 s{sKX}, s{sTB}, s{sTI}
        s_and_b32 s{sKX}, s{sKX}, 3
        s_mul_i32 s{sKX}, s{sKX}, 5
        s_add_u32 s{sKX}, s{sKX}, 1
        s_lshr_b32 s{sKX}, s{sKX}, 1
        """)
    elif ROT:
        a(f"""
        s_and_b32 s{sKX}, s{sTB}, 3
        s_mul_i32 s{sKX}, s{sKX}, 5
        s_add_u32 s{sKX}, s{sKX}, 1
        s_lshr_b32 s{sKX}, s{sKX}, 1
        s_add_u32 s{sKX}, s{sKX}, s{sTI}
        s_cmp_ge_u32 s{sKX}, 10
        s_cselect_b32 s{sT0}, 10, 0
        s_sub_u32 s{sKX}, s{sKX}, s{sT0}
        """)
    else:
        a(f"s_and_b32 s{sKX}, s{sTI}, 1")
    a(f"s_mov_b32 s{sKW}, s{sKX}\ns_mov_b32 s{sIt}, 0")
    a(f"""
    s_mov_b32 s{sX+2}, {S * D * 2}
    s_mov_b32 s{sX+3}, 0x00020000
    s_mov_b32 s{sWt+2}, {D * 3 * D * 2}
    s_mov_b32 s{sWt+3}, 0x00020000
    s_waitcnt lgkmcnt(0)
    s_and_b32 s{sX+1}, s{sX+1}, 0xffff
    s_mov_b32 s{sWt}, s{sPtr}
    s_and_b32 s{sWt+1}, s{sPtr+1}, 0xffff
    """)
    if 'tlb2' in OPT:
        a.c("start the address translations of the pages of W (and the other end of X) together with the first X loads")
        a(f"""
        s_mul_i32 s{sT0}, s{sJ}, {(D * 3 * D * 2 - 4) // 3 // 4 * 4}
        s_buffer_load_dword s6, s[{sWt}:{sWt+3}], s{sT0}
        """)
    a(f"""
    s_branch LL_go
    """)
    a(f"""
    LL_X:
    s_lshl_b32 s{sT0}, s{sKX}, 7
    s_add_u32 s{sT0}, s{sT0}, s{sXo}
    s_add_u32 s{sKX}, s{sKX}, 1
    buffer_load_dwordx4 v{vE}, s[{sX}:{sX+3}], s{sT0} offen lds
    buffer_load_dwordx4 v{vO}, s[{sX}:{sX+3}], s{sT0} offen offset:1024 lds
    s_add_u32 m0, m0, 2048
    s_add_u32 s{sT0}, s{sT0}, {16 * 1280}
    buffer_load_dwordx4 v{vE}, s[{sX}:{sX+3}], s{sT0} offen lds
    buffer_load_dwordx4 v{vO}, s[{sX}:{sX+3}], s{sT0} offen offset:1024 lds
    s_cmp_eq_u32 s{sKX}, 10
    s_cselect_b32 s{sKX}, 0, s{sKX}
    s_setpc_b64 s[{sLnk}:{sLnk+1}]
    LL_Wskip:
    s_waitcnt vmcnt(0)
    s_setpc_b64 s[{sLnk}:{sLnk+1}]
    LL_W:
    s_cmp_eq_u32 s{sIt}, 1
    s_cbranch_scc1 LL_Wskip
    s_mul_i32 s{sT1}, s{sKW}, {64 * 3840}
    s_add_u32 s{sT1}, s{sT1}, s{sWo}
    s_add_u32 s{sKW}, s{sKW}, 1
    """)
    for p in range(4):
        a(f"buffer_load_dwordx4 v{vWs}, s[{sWt}:{sWt+3}], s{sT1} offen lds")
        if p < 3:
            a(f"s_add_u32 m0, m0, 1024")
            a(f"s_add_u32 s{sT1}, s{sT1}, {4 * 3840}")
    a(f"""
    s_cmp_eq_u32 s{sKW}, 10
    s_cselect_b32 s{sKW}, 0, s{sKW}
    s_setpc_b64 s[{sLnk}:{sLnk+1}]
    """)
    a("LL_go:")
    delay(a, 2)
    stamp(a, 13)
    q = []

    def issue(it):
        if it == ("W", 10):
            a(f"s_cmp_ge_u32 s{sTI}, 5\ns_cselect_b32 s{sT0}, {6 * 128}, s{sC640}\ns_add_u32 s{sWo}, s{sWo}, s{sT0}")
            a(f"s_cmp_eq_u32 s{sTI}, 7\ns_cselect_b32 s{sIt}, 1, 0")
        a(f"s_add_u32 m0, s{sInc}, {slot[it] * GSL}\ns_call_b64 s[{sLnk}:{sLnk+1}], LL_{it[0]}")
        q.extend([it] * 4)

    def wait_for(names):
        last = max(i for i, x in enumerate(q) if x in names)
        a(f"s_waitcnt vmcnt({min(63, len(q) - 1 - last)})")

    sC640 = sT4
    first = [it for it in items if when[it] == -1]
    for i, it in enumerate(first):
        if i == TLB_AT:
            touch_pages(a)
        issue(it)
    stamp(a, 14)
    vPf = 234
    bars = stage_barriers()
    stamp(a, 15)
    for bi, bar in enumerate(bars):
        upto = bars[bi + 1] - 1 if bi + 1 < len(bars) else 19
        wait_for([("X", bar), ("W", upto)] + (["cnt"] if bar == 11 else []))
        if bar == 11:
            a.c("all counters must have been cleared before the first one is used")
            a(f"v_cmp_gt_u32 vcc, 8, v{vCnt}\ns_cbranch_vccz LL_cnt_ok")
            poll(a, [(vP + 5, f"s[{sDbg}:{sDbg+3}]", "0")], 8, vPS)
            a("LL_cnt_ok:")
        a("s_barrier")
        if bar not in (2, 3, 4, 5, 6, 7, 8, 9): stamp(a, 8 + min(bar, 15))
        if bar == 11:
            attn_scalars(a)
            attn_vectors(a)
            repack_setup(a)
            a.c("wave 0 publishes the phase-a tile once its four storing waves have reported")
            a(f"""
            v_mov_b32 v{vP+2}, {LCNT0}
            s_cmp_lg_u32 s{sJ}, 0
            s_cbranch_scc1 LL_pub
            s_mov_b32 s{sSpin}, {SPIN * 8}
            LL_try:
            ds_read_b32 v{vP}, v{vP+2}
            s_waitcnt lgkmcnt(0)
            v_readfirstlane_b32 s{sT0}, v{vP}
            s_cmp_eq_u32 s{sT0}, 4
            s_cbranch_scc1 LL_try_go
            s_sub_u32 s{sSpin}, s{sSpin}, 1
            s_cbranch_scc0 LL_try
            LL_try_go:
            s_call_b64 s[{sLnk}:{sLnk+1}], LG_publish
            """)
            stamp(a, 27)
            a("LL_pub:")
        a(f"s_mov_b32 s{sC640}, 640")
        for it in items:
            if when[it] == bar:
                issue(it)
        if bar == 11:
            lead_prepare(a)
        if bar == 10:
            a(f"v_mov_b32 v{vP}, 0\nv_mov_b32 v{vP+2}, {LCNT0}\nds_write_b32 v{vP+2}, v{vP}\ns_waitcnt lgkmcnt(0)")
        if bar + 10 == TLB_AT:
            touch_pages(a)
        if bar == PF_BAR:
            a.c("one load per 128-B line of the phase-b columns of five weight rows brings them on chip ahead of use")
            a(f"""
            s_lshr_b32 s{sT0}, s2, 3
            s_lshl_b32 s{sT0}, s{sT0}, 2
            s_and_b32 s{sT1}, s2, 3
            s_add_u32 s{sT0}, s{sT0}, s{sT1}
            s_mul_i32 s{sT0}, s{sT0}, {5 * 3840}
            s_mul_i32 s{sT1}, s{sJ}, 19
            v_add_u32 v8, s{sT1}, v0
            v_min_u32 v8, 74, v8
            v_mul_u32_u24 v9, 205, v8
            v_lshrrev_b32 v9, 10, v9
            v_mul_u32_u24 v9, 5, v9
            v_add3_u32 v9, v9, v8, 5
            v_lshlrev_b32 v{vPf}, 7, v9
            s_mov_b64 exec, 0x7ffff
            buffer_load_dword v{vPS}, v{vPf}, s[{sWt}:{sWt+3}], s{sT0} offen
            s_mov_b64 exec, -1
            """)
            q.append("pf")
        if bar == 8:
            common_setup(a)
            a(f"v_lshlrev_b32 v{vP+5}, 2, v0\nv_or_b32 v{vP+5}, 128, v{vP+5}")
            a(f"buffer_load_dword v{vCnt}, v{vP+5}, s[{sDbg}:{sDbg+3}], 0 offen sc1")
            q.append("cnt")
    a("s_branch LA_lead")


vKA, vVA, vT0, vT1 = 1, 2, 3, 14
Qm = [4, 8]
Qe = 12
vL16 = 15
Km = [16, 20]
Ke = 24
Vb = [[28, 32], [36, 40]]
vVbase, vVflag, vE16, vVG = 44, 45, 46, 47
NM = 48
SB = [80, 112]
OA = [144, 160]
vD = 176
vP = 182
vPS = 188
vVB2 = 248
vIdx, vK16 = 192, 193
NVGPR = 256


def mfma32(d, a_, b, c):
    return f"v_mfma_f32_32x32x16_bf16 {vr(d,16)}, {vr(a_,4)}, {vr(b,4)}, {c}"


def mfma2b(d, ke_tile, c):
    return (f"v_mfma_f32_32x32x4_2b_bf16 {vr(d,32)}, {vr(Ke + 2 * (ke_tile >> 1), 2)}, {vr(Qe,2)}, {c}"
            f" cbsz:1 abid:{ke_tile & 1}")


def pv(o, v, p):
    return f"v_smfmac_f32_32x32x32_bf16 {vr(o,16)}, {vr(v,4)}, {vr(p,8)}, v{vIdx}"


POS = [2, 6, 14, 18, 22, 26, 30]


def tile_iter(a, ii, half=1):
    par = ii & 1
    X, Y = SB[par], SB[par ^ 1]
    Vc, Vn = Vb[par], Vb[par ^ 1]
    Kc, Kn = Km[par ^ 1], Km[par]
    t1 = (ii + 1) % 4
    t2 = (ii + 2) % 4
    kch = CH if (half == 0) == (ii >= 2) else 0
    rv0 = f"ds_read_b128 {vr(Vn[0],4)}, v{vVA} offset:{t1 * 1280}"
    rv1 = f"ds_read_b128 {vr(Vn[1],4)}, v{vVA} offset:{t1 * 1280 + 640}"
    rk = f"ds_read_b128 {vr(Kn,4)}, v{vKA} offset:{kch + 2048 + t2 * 1024}"
    rke = f"ds_read2st64_b64 {vr(Ke,4)}, v{vKA} offset0:{kch // 512} offset1:{kch // 512 + 2}"
    g = [[pv(OA[1], Vn[1], Y + 24), rv0],
         [mfma2b(Y, t1, 0 if 'c0' in OPT else vr(NM, 32))],
         [pv(OA[0], Vc[0], X), rv1],
         [pv(OA[0], Vc[1], X + 8), rk],
         [mfma32(Y, Kc, Qm[0], vr(Y, 16))],
         [mfma32(Y + 16, Kc, Qm[1], vr(Y + 16, 16))],
         [pv(OA[1], Vc[0], X + 16), "s_waitcnt lgkmcnt(0)"]]
    late = []
    if ii == 0:
        g[4].append(f"s_add_u32 s{sNext}, s{sNext}, {CH}")
    if ii == 2:
        g[4].append(rke)
        late = [f"v_mad_u32_u24 v{vVA}, v{vVflag}, s{sNext}, v{vVbase}"]
    if half == 0:
        if ii == 1:
            g[4].append(f"s_cmp_eq_u32 s{sM}, s{sRp}")
            g[5] += ["s_cbranch_scc1 LR_step", "LA_bar:"]
        if ii == 2 and 'noprio' not in OPT:
            g[5].append("s_setprio 0")
        if ii == 3:
            g[4].append(f"s_bitcmp1_b32 s{sMend}, s{sM}")
            g[6][1] = "s_waitcnt vmcnt(0) lgkmcnt(0)"
            g[6].append("s_barrier")
            if common.STAMP and 'cyc' in OPT:
                g[6] += [f"s_memtime s[{STAMP_S+28}:{STAMP_S+29}]"]
            if 'noprio' not in OPT:
                g[6].append("s_setprio 1")
            g[6] += ["s_cbranch_scc1 LA_refill", "LA_back:"]
    else:
        if ii == 0:
            g[5].append(f"s_cmp_eq_u32 s{sNext}, s{sRe}")
            if common.STAMP and 'cyc' in OPT:
                g[6] += [f"s_mov_b32 m0, s{sM}", "s_nop 0", f"s_movreld_b32 s{STAMP_S+8}, s{STAMP_S+28}"]
        if ii == 1:
            g[4].append(f"s_cselect_b32 s{sNext}, s{sRb}, s{sNext}")
            g[5].append(f"s_add_u32 s{sM}, s{sM}, 1")
            late = [f"v_add_u32 v{vKA}, s{sNext}, v{vK16}"]
        if ii == 3:
            g[5].append(f"s_sub_u32 s{sRem}, s{sRem}, 1")
    assert POS[2] >= 10 and POS[3] >= 18 and POS[6] >= 26 and POS[0] >= 2
    assert (POS[4] - POS[1]) + 4 >= 18 and (32 - POS[4]) + 3 >= 12
    ins = dict(zip(POS, g))
    for p in range(32):
        for x in ins.get(p, []):
            a(x)
        a(f"v_exp_f32 v{X+p}, v{X+p}")
        if p == 30:
            for x in late:
                a(x)


def rowmax(a, X, out0, out1):
    for base, o in ((X, out0), (X + 16, out1)):
        a(f"v_max3_f32 v{o}, v{base}, v{base+1}, v{base+2}")
        for r in range(3, 15, 2):
            a(f"v_max3_f32 v{o}, v{o}, v{base+r}, v{base+r+1}")
        a(f"v_max_f32 v{o}, v{o}, v{base+15}")


def cross_half_max(a, r, tmp):
    a(f"v_mov_b32 v{tmp}, v{r}\ns_nop 1\nv_permlane32_swap_b32 v{tmp}, v{r}\ns_nop 1\nv_max_f32 v{r}, v{r}, v{tmp}")


def fill_nm(a, m0, m1):
    for r in range(16):
        a(f"v_sub_f32 v{NM+r}, 0, v{m0}")
    for r in range(16):
        a(f"v_sub_f32 v{NM+16+r}, 0, v{m1}")


def attn_scalars(a):
    a.c("head offsets: main octs start at (5g+1)>>1; the ext quad shares an oct with the neighbouring head;")
    a.c("arrivals expected per kind: 16 token blocks x number of 64-column units that hold the head")
    a(f"""
    s_mul_i32 s{sOm}, s{sHead}, 5
    s_add_u32 s{sOm}, s{sOm}, 1
    s_lshr_b32 s{sOm}, s{sOm}, 1
    s_lshl_b32 s{sOm}, s{sOm}, 9
    s_and_b32 s{sT0}, s{sHead}, 1
    s_mov_b32 s{sT1}, 1024
    s_cselect_b32 s{sT1}, {(-512 + 8) & 0xffffffff}, s{sT1}
    s_add_u32 s{sExt}, s{sOm}, s{sT1}
    s_min_u32 s{sT0}, s{sOm}, s{sExt}
    s_add_u32 s{sT2}, s{sOm}, 512
    s_max_u32 s{sT1}, s{sExt}, s{sT2}
    s_lshr_b32 s{sT0}, s{sT0}, 12
    s_lshr_b32 s{sT1}, s{sT1}, 12
    s_cmp_eq_u32 s{sT0}, s{sT1}
    s_cselect_b32 s{sExp}, 16, 32
    """)


def attn_vectors(a):
    a(f"""
    s_and_b32 s{sT0}, s{sHead}, 1
    v_lshlrev_b32 v{vL16}, 4, v0
    v_lshrrev_b32 v{vT0}, 5, v0
    v_mul_u32_u24 v{vT1}, {TILE}, v{vT0}
    v_and_b32 v{vP}, 31, v0
    v_lshl_add_u32 v{vE16}, v{vP}, 4, v{vT1}
    """)
    a.c("V rows: 0..15 main dims, 16..19 ext dims, 20 and 24 ones, the others zero (address past the allocation)")
    a(f"""
    s_lshl_b32 s{sT0}, s{sT0}, 2
    v_and_b32 v{vP+1}, 3, v0
    v_and_b32 v{vP+2}, 4, v0
    v_lshl_add_u32 v{vP+1}, v{vP+2}, 1, v{vP+1}
    v_and_b32 v{vP+2}, 8, v0
    v_lshrrev_b32 v{vP+2}, 1, v{vP+2}
    v_add3_u32 v{vP+1}, v{vP+1}, v{vP+2}, s{sT0}
    s_lshl_b32 s{sT0}, s{sT0}, 2
    v_subrev_u32 v{vP+2}, s{sT0}, v{vP}
    v_cmp_gt_u32 vcc, 16, v{vP}
    v_mul_u32_u24 v{vT1}, 10240, v{vT0}
    v_mul_u32_u24 v{vT0}, 320, v{vT0}
    v_cndmask_b32 v{vP+1}, v{vP+2}, v{vP+1}, vcc
    v_lshlrev_b32 v{vP+1}, 4, v{vP+1}
    v_add_u32 v{vVG}, v{vP+1}, v{vT1}
    v_add_u32 v{vVbase}, v{vP+1}, v{vT0}
    v_add_u32 v{vVbase}, 6144, v{vVbase}
    v_cmp_gt_u32 vcc, 20, v{vP}
    v_mov_b32 v{vP+1}, 0x100000
    v_mov_b32 v{vP+2}, {ONES[0]}
    v_cndmask_b32 v{vVflag}, 0, 1, vcc
    v_cndmask_b32 v{vVbase}, v{vP+1}, v{vVbase}, vcc
    v_cmp_eq_u32 vcc, 20, v{vP}
    v_cmp_eq_u32 s[{sT3}:{sT4}], 24, v{vP}
    s_or_b64 vcc, vcc, s[{sT3}:{sT4}]
    v_mov_b32 v{vP+1}, {ONES[1]}
    s_nop 0
    v_cndmask_b32 v{vVB2}, v{vVbase}, v{vP+1}, vcc
    v_cndmask_b32 v{vVbase}, v{vVbase}, v{vP+2}, vcc
    """)
    a.c("DMA source offsets: even waves load K pieces, odd waves V pieces")
    a(f"""
    s_and_b32 s{sT0}, s{sJ}, 1
    s_cbranch_scc1 LA_dv
    v_add_u32 v{vD}, s{sExt}, v{vE16}
    v_add_u32 v{vD+1}, {2 * TILE}, v{vD}
    v_add_u32 v{vD+2}, s{sOm}, v{vL16}
    v_add_u32 v{vD+3}, {TILE}, v{vD+2}
    v_add_u32 v{vD+4}, {TILE}, v{vD+3}
    v_add_u32 v{vD+5}, {TILE}, v{vD+4}
    s_branch LA_dd
    LA_dv:
    s_mul_i32 s{sT0}, s{sHead}, 320
    s_add_u32 s{sT0}, s{sT0}, {IMG}
    """)
    for p in range(5):
        a(f"""
        v_add_u32 v{vP}, {64 * p}, v0
        v_mul_u32_u24 v{vP+1}, 3277, v{vP}
        v_lshrrev_b32 v{vP+1}, 16, v{vP+1}
        v_mul_u32_u24 v{vP+2}, 20, v{vP+1}
        v_sub_u32 v{vP+2}, v{vP}, v{vP+2}
        v_mul_u32_u24 v{vP+1}, 10240, v{vP+1}
        v_lshl_add_u32 v{vP+1}, v{vP+2}, 4, v{vP+1}
        v_add_u32 v{vD+p}, s{sT0}, v{vP+1}
        """)
    a(f"""
    v_mov_b32 v{vD+5}, v{vD+4}
    LA_dd:
    v_lshlrev_b32 v{vP+3}, 7, v0
    v_mov_b32 v{vP+4}, 0
    """)


def vectors_put(a):
    a(f"""
    s_and_b32 s{sT0}, s{sJ}, 1
    s_lshl_b32 s{sT0}, s{sT0}, 12
    s_add_u32 s{sT0}, s{sT0}, {XFER}
    v_add_u32 v{vT0}, s{sT0}, v{vL16}
    v_mov_b32 v20, v{vVB2}
    v_mov_b32 v21, v{vVflag}
    v_mov_b32 v22, v{vE16}
    v_mov_b32 v23, v{vVG}
    ds_write_b128 v{vT0}, v[20:23]
    ds_write_b128 v{vT0}, {vr(vD,4)} offset:1024
    ds_write_b64 v{vT0}, {vr(vD+4,2)} offset:2048
    """)


def vectors_get(a):
    lane_id(a, 0)
    a(f"""
    s_and_b32 s{sT0}, s{sJ}, 1
    s_lshl_b32 s{sT0}, s{sT0}, 12
    s_add_u32 s{sT0}, s{sT0}, {XFER}
    v_lshlrev_b32 v{vL16}, 4, v0
    v_add_u32 v{vT0}, s{sT0}, v{vL16}
    ds_read_b128 {vr(vVbase,4)}, v{vT0}
    ds_read_b128 {vr(vD,4)}, v{vT0} offset:1024
    ds_read_b64 {vr(vD+4,2)}, v{vT0} offset:2048
    v_lshlrev_b32 v{vP+3}, 7, v0
    """)
    attn_scalars(a)
    a("s_waitcnt lgkmcnt(0)")


def dma_sub(a):
    a(f"""
    LA_dma:
    s_add_u32 s{sT2}, s{sT1}, s{sQB if 'kvrot' in OPT else sHead}
    s_and_b32 s{sT2}, s{sT2}, 7
    s_lshl_b32 s{sT2}, s{sT2}, 1
    s_lshr_b32 s{sT3}, s{sJ}, 1
    s_add_u32 s{sT2}, s{sT2}, s{sT3}
    s_mul_i32 s{sT2}, s{sT2}, {4 * TILE}
    s_lshl_b32 s{sT4}, s{sJ}, 1
    s_and_b32 s{sT4}, s{sT4}, 2
    s_lshr_b32 s{sT4}, 20480, s{sT4}
    s_mul_i32 s{sT4}, s{sT4}, s{sT0}
    s_add_u32 s{sT2}, s{sT2}, s{sT4}
    s_add_u32 s{sT2}, s{sT2}, s{sImg}
    s_add_u32 s{sT2}, s{sT2}, {IMG}
    s_sub_u32 s{sT1}, s{sT1}, s{sT0}
    s_add_u32 s{sT1}, s{sT1}, 1
    s_mul_i32 s{sT4}, s{sT1}, 43
    s_lshr_b32 s{sT4}, s{sT4}, 7
    s_mul_i32 s{sT4}, s{sT4}, 3
    s_sub_u32 s{sT1}, s{sT1}, s{sT4}
    s_lshl_b32 s{sT1}, s{sT1}, 1
    s_add_u32 s{sT1}, s{sT1}, s{sT3}
    s_mul_i32 s{sT1}, s{sT1}, {CH}
    s_mul_i32 s{sT4}, s{sT0}, {RA - RB}
    s_sub_u32 s{sT1}, s{sT1}, s{sT4}
    s_add_u32 s{sT1}, s{sT1}, {RA}
    s_and_b32 s{sT3}, s{sJ}, 1
    s_mul_i32 s{sT4}, s{sT3}, 6144
    s_add_u32 m0, s{sT1}, s{sT4}
    s_nop 0
    """)
    for p in range(5):
        a(f"buffer_load_dwordx4 v{vD+p}, {WSR()}, s{sT2} offen sc1 lds")
        a("s_add_u32 m0, m0, 1024")
        a("s_nop 0" if p < 4 else f"s_cmp_eq_u32 s{sT3}, 1")
    a(f"""
    s_cbranch_scc1 LA_dma_ret
    buffer_load_dwordx4 v{vD+5}, {WSR()}, s{sT2} offen sc1 lds
    LA_dma_ret:
    s_setpc_b64 s[{sLnk}:{sLnk+1}]
    """)


def call_dma(a, b, blk):
    a(f"s_mov_b32 s{sT0}, {b}\ns_mov_b32 s{sT1}, {blk}\ns_call_b64 s[{sLnk}:{sLnk+1}], LA_dma")


def poll_f1(a):
    a(f"""
    s_lshl_b32 s{sT0}, s{sBr}, 5
    s_add_u32 s{sT0}, s{sT0}, s{sHead}
    s_lshl_b32 s{sT0}, s{sT0}, 9
    s_add_u32 s{sT0}, s{sT0}, {WS_C1}
    """)
    poll_counter(a, vP + 3, f"s{sT0}", f"s{sExp}", 7)


def load_q(a):
    a(f"""
    s_lshl_b32 s{sT0}, s{sQB}, 2
    s_add_u32 s{sT0}, s{sT0}, s{sJ}
    s_mul_i32 s{sT0}, s{sT0}, {2 * TILE}
    s_add_u32 s{sT0}, s{sT0}, s{sImg}
    s_add_u32 s{sT1}, s{sT0}, s{sOm}
    s_add_u32 s{sT2}, s{sT1}, {TILE}
    s_add_u32 s{sT0}, s{sT0}, s{sExt}
    buffer_load_dwordx4 {vr(Qm[0],4)}, v{vL16}, {WSR()}, s{sT1} offen sc1
    buffer_load_dwordx4 {vr(Qm[1],4)}, v{vL16}, {WSR()}, s{sT2} offen sc1
    buffer_load_dwordx2 {vr(Qe,2)}, v{vE16}, {WSR()}, s{sT0} offen sc1
    """)


def scale_q(a, nyounger):
    a(f"s_mov_b32 s4, {hex(f32bits(QSCALE))}\ns_mov_b32 s5, s4\ns_waitcnt vmcnt({nyounger})")
    for r in range(Qm[0], Qe + 2):
        a(f"""
        v_lshlrev_b32 v{vPS+2}, 16, v{r}
        v_and_b32 v{vPS+3}, 0xffff0000, v{r}
        v_pk_mul_f32 {vr(vPS+2,2)}, {vr(vPS+2,2)}, s[4:5]
        v_cvt_pk_bf16_f32 v{r}, v{vPS+2}, v{vPS+3}
        """)


def attn_zero(a):
    Z = Vb[1][1]
    for r in (Z, Z + 2, SB[1] + 24, SB[1] + 26, SB[1] + 28, SB[1] + 30):
        a(f"v_pk_mov_b32 {vr(r,2)}, 0, 0")
    a(f"v_mov_b32 v{vP}, 0xbf800000\nv_mov_b32 v{vP+1}, 0\nv_mov_b32 v{vPS+1}, 0")
    a(f"v_mfma_f32_32x32x4_2b_bf16 {vr(OA[0],32)}, {vr(Z,2)}, {vr(Z,2)}, 0")
    a(f"""
    s_add_u32 s{sRe}, s{sRb}, {RING}
    s_mov_b32 s{sRem}, 7
    v_mov_b32 v{vIdx}, 0xdddddddd
    v_lshrrev_b32 v{vK16}, 1, v{vL16}
    v_xor_b32 v{vK16}, v{vK16}, v{vL16}
    v_and_b32 v{vK16}, 64, v{vK16}
    v_mul_u32_u24 v{vK16}, 3, v{vK16}
    v_xor_b32 v{vK16}, v{vK16}, v{vL16}
    v_add_u32 v{vKA}, s{sNext}, v{vK16}
    v_mad_u32_u24 v{vVA}, v{vVflag}, s{sNext}, v{vVbase}
    """)


DELAY_AT, DELAY = 0, 0


def delay(a, at):
    if DELAY_AT == at and DELAY:
        a(f"s_memrealtime s[4:5]\ns_waitcnt lgkmcnt(0)\ns_add_u32 s6, s4, {DELAY}\nLD_{at}:\ns_sleep 1\ns_memrealtime s[4:5]\ns_waitcnt lgkmcnt(0)\ns_cmp_lt_u32 s4, s6\ns_cbranch_scc1 LD_{at}")


def attention(a):
    X = SB[0]
    delay(a, 1)
    a("LA_start:")
    stamp_cyc(a, 24)
    a(f"""
    ds_read_b128 {vr(Km[0],4)}, v{vKA} offset:2048
    ds_read2st64_b64 {vr(Ke,4)}, v{vKA} offset0:0 offset1:2
    ds_read_b128 {vr(Km[1],4)}, v{vKA} offset:3072
    ds_read_b128 {vr(Vb[0][0],4)}, v{vVA}
    ds_read_b128 {vr(Vb[0][1],4)}, v{vVA} offset:640
    s_waitcnt lgkmcnt(4)
    """)
    a(mfma32(X, Km[0], Qm[0], 0))
    a(mfma32(X + 16, Km[0], Qm[1], 0))
    a("s_nop 8\ns_waitcnt lgkmcnt(3)")
    a(mfma2b(X, 0, vr(X, 32)))
    a("s_nop 15\ns_nop 3")
    a.c("softmax shift: row max over the first key tile, cut to bf16; the epilogue checks that it was safe.")
    a.c("A rank-1 MFMA (-1 x shift) subtracts it from the scores and spreads it over the C operand of the loop")
    rowmax(a, X, vT0, vT1)
    a(f"""
    s_nop 1
    v_permlane32_swap_b32 v{vT0}, v{vT1}
    s_nop 1
    v_max_f32 v{vT0}, v{vT0}, v{vT1}
    v_and_b32 v{vPS}, {0 if 'c0' in OPT else '0xffff0000'}, v{vT0}
    s_nop 1
    v_mfma_f32_32x32x4_2b_bf16 {vr(X,32)}, {vr(vP,2)}, {vr(vPS,2)}, {vr(X,32)}
    v_mfma_f32_32x32x4_2b_bf16 {vr(NM,32)}, {vr(vP,2)}, {vr(vPS,2)}, 0
    s_nop 15
    s_nop 1
    s_waitcnt lgkmcnt(0)
    """)
    if LOFF >= 0:
        a(f"s_branch LA_loop\n.p2align 8\n.fill {LOFF // 4}, 4, 0xbf800000\nLA_loop:")
    else:
        a(".p2align 6\nLA_loop:")
    for half in range(2):
        for ii in range(4):
            tile_iter(a, ii, half)
    a("s_cbranch_scc0 LA_loop\nLA_skip:\ns_nop 0")
    a(pv(OA[1], Vb[1][1], SB[1] + 24))
    if 'alow' in OPT:
        a("s_setprio 0")
    a(f"s_cmp_eq_u32 s{sRole}, 0\ns_cbranch_scc1 LA_fin2\ns_setprio 2")
    a.c("announce that the results are about to be stored; readers then wait for the markers to disappear")
    count_in(a, sOc, vP, vP + 1)
    a("LA_fin2:")
    stamp(a, 4)
    stamp_cyc(a, 31)
    N = SB[0]
    rc = SB[1]
    tm = rc + 4

    def norm(u):
        O, P = OA[u], N + 12 * u
        for r in range(0, 12, 2):
            a(f"v_pk_mul_f32 {vr(P+r,2)}, {vr(O+r,2)}, {vr(rc+2*u,2)} op_sel_hi:[1,0]")
        for j in range(6):
            a(f"v_cvt_pk_bf16_f32 v{P+j}, v{P+2*j}, v{P+2*j+1}")
    a(f"""
    s_mov_b32 s{sRem}, 0
    LA_epi:
    v_cmp_lt_u32 vcc, 31, v0
    s_add_u32 s{sT0}, s{sOb}, s{sOm}
    s_add_u32 s{sT1}, s{sT0}, {TILE}
    v_cndmask_b32 v{vT0}, v{OA[0]+12}, v{OA[0]+8}, vcc
    v_rcp_f32 v{rc}, v{vT0}
    v_pk_add_f32 {vr(tm,2)}, {vr(OA[0],2)}, {vr(OA[0]+2,2)}
    """)
    a.c("safety check of the shift before anything is stored: row sums inside [2^-30, 2^30], finite accumulators")
    for r in range(4, 12, 2):
        a(f"v_pk_add_f32 {vr(tm,2)}, {vr(tm,2)}, {vr(OA[0]+r,2)}")
    norm(0)
    a(f"v_cndmask_b32 v{vT1}, v{OA[1]+12}, v{OA[1]+8}, vcc\nv_rcp_f32 v{rc+2}, v{vT1}")
    for r in range(0, 12, 2):
        a(f"v_pk_add_f32 {vr(tm,2)}, {vr(tm,2)}, {vr(OA[1]+r,2)}")
    a(f"""
    v_add_f32 v{tm}, v{tm}, v{tm+1}
    v_add_f32 v{tm+1}, v{vT0}, v{vT1}
    v_fma_f32 v{tm}, 0, v{tm}, v{tm+1}
    v_min_f32 v{tm+1}, v{vT0}, v{vT1}
    v_cmp_gt_f32 vcc, {hex(f32bits(2.0**30))}, v{tm}
    s_mov_b64 s[4:5], vcc
    v_cmp_lt_f32 vcc, {hex(f32bits(2.0**-30))}, v{tm+1}
    """)
    for j in range(4):
        a(f"v_min_u32 v{N+j}, -2, v{N+j}")
    a(f"""
    s_and_b64 s[4:5], s[4:5], vcc
    s_cmp_eq_u64 s[4:5], -1
    s_cselect_b32 s{sT3}, 1, s{sRem}
    s_cmp_eq_u32 s{sT3}, 0
    {'s_nop 0' if 'skipodd' in OPT else 's_cbranch_scc1 LA_slow'}
    buffer_store_dwordx4 {vr(N,4)}, v{vL16}, {WSR()}, s{sT0} offen sc1
    """)
    norm(1)
    for j in range(4):
        a(f"v_min_u32 v{N+12+j}, -2, v{N+12+j}")
    a(f"""
    buffer_store_dwordx4 {vr(N+12,4)}, v{vL16}, {WSR()}, s{sT1} offen sc1
    v_permlane32_swap_b32 v{N+4}, v{N+16}
    v_permlane32_swap_b32 v{N+5}, v{N+17}
    s_add_u32 s{sT2}, s{sOb}, s{sExt}
    v_min_u32 v{N+4}, -2, v{N+4}
    v_min_u32 v{N+5}, -2, v{N+5}
    buffer_store_dwordx2 {vr(N+4,2)}, v{vE16}, {WSR()}, s{sT2} offen sc1
    """)


def o_base(a):
    a(f"""
    s_lshl_b32 s{sT0}, s{sQB}, 2
    s_add_u32 s{sT0}, s{sT0}, s{sJ}
    s_mul_i32 s{sOb}, s{sT0}, {2 * TILE}
    s_add_u32 s{sOb}, s{sOb}, s{sImg}
    s_add_u32 s{sOb}, s{sOb}, {3 * IMG}
    """)
    a(f"s_lshr_b32 s{sT1}, s{sHead}, 3\ns_max_u32 s{sT1}, s{sT1}, 1\ns_sub_u32 s{sT1}, s{sT1}, 1")
    c3_off(a, sOc, sT0, sT1)


def o_mark(a):
    o_base(a)
    a(f"""
    v_mov_b32 v16, -1
    v_mov_b32 v17, -1
    v_mov_b32 v18, -1
    v_mov_b32 v19, -1
    s_add_u32 s{sT0}, s{sOb}, s{sOm}
    s_add_u32 s{sT1}, s{sT0}, {TILE}
    s_add_u32 s{sT2}, s{sOb}, s{sExt}
    buffer_store_dwordx4 v[16:19], v{vL16}, {WSR()}, s{sT0} offen sc1
    buffer_store_dwordx4 v[16:19], v{vL16}, {WSR()}, s{sT1} offen sc1
    buffer_store_dwordx2 v[16:17], v{vE16}, {WSR()}, s{sT2} offen sc1
    """)


def refill(a):
    a.c("role-B waves refill both rings: after barrier m, A block m+2 and B block m-SK+2")
    a(f"""
    LA_refill:
    {f's_cmp_eq_u32 s{sM}, {SK + 7}' if 'skipodd' in OPT else ''}
    {'s_cbranch_scc1 LA_skip' if 'skipodd' in OPT else ''}
    s_cmp_gt_u32 s{sM}, 5
    s_cbranch_scc1 LA_ev_b
    s_mov_b32 s{sT0}, 0
    s_add_u32 s{sT1}, s{sM}, 2
    s_call_b64 s[{sLnk}:{sLnk+1}], LA_dma
    LA_ev_b:
    s_sub_u32 s{sT1}, s{sM}, {SK - 2}
    s_cmp_lt_u32 s{sT1}, 3
    s_cbranch_scc1 LA_back
    s_mov_b32 s{sT0}, 1
    s_call_b64 s[{sLnk}:{sLnk+1}], LA_dma
    s_branch LA_back
    """)


def slow_path(a):
    X = SB[0]
    m0, m1, t0, t1 = SB[1], SB[1] + 1, SB[1] + 2, SB[1] + 3

    def kloads(t):
        a(f"buffer_load_dwordx4 {vr(Km[0],4)}, v{vL16}, {WSR()}, s{sT1} offen sc1")
        if t == 0:
            a(f"buffer_load_dwordx2 {vr(Ke,2)}, v{vE16}, {WSR()}, s{sT2} offen sc1")
            a(f"s_add_u32 s{sT2}, s{sT2}, {2 * TILE}")
        a(f"s_add_u32 s{sT1}, s{sT1}, {TILE}")

    def kbase():
        a(f"""
        s_add_u32 s{sT0}, s{sImg}, {IMG}
        s_add_u32 s{sT1}, s{sT0}, s{sOm}
        s_add_u32 s{sT2}, s{sT0}, s{sExt}
        s_mov_b32 s{sRem}, 0
        """)
    a(f"LA_slow:\nv_mov_b32 v{m0}, 0xff800000\nv_mov_b32 v{m1}, 0xff800000")
    kbase()
    a("LA_slow_max:")
    for t in range(2):
        kloads(t)
        a("s_waitcnt vmcnt(0)")
        a(mfma32(X, Km[0], Qm[0], 0))
        a(mfma32(X + 16, Km[0], Qm[1], 0))
        a("s_nop 9")
        a(mfma2b(X, t, vr(X, 32)))
        a("s_nop 15\ns_nop 3")
        rowmax(a, X, t0, t1)
        a(f"v_max_f32 v{m0}, v{m0}, v{t0}\nv_max_f32 v{m1}, v{m1}, v{t1}")
    a(f"s_add_u32 s{sRem}, s{sRem}, 1\ns_cmp_lt_u32 s{sRem}, 32\ns_cbranch_scc1 LA_slow_max")
    cross_half_max(a, m0, t0)
    cross_half_max(a, m1, t0)
    fill_nm(a, m0, m1)
    for r in range(32):
        a(f"v_mov_b32 v{OA[0]+r}, 0")
    for r in range(8):
        a(f"v_mov_b32 v{Vb[0][0]+r}, 0x3f803f80")
    kbase()
    a(f"""
    s_mul_i32 s{sT3}, s{sHead}, 320
    s_add_u32 s{sT3}, s{sT3}, s{sT0}
    s_add_u32 s{sT3}, s{sT3}, {IMG}
    LA_slow_pv:
    """)
    for t in range(2):
        kloads(t)
        a(f"""
        s_add_u32 s{sT4}, s{sT3}, 20480
        s_mov_b32 exec_lo, 0xfffff
        s_mov_b32 exec_hi, 0xfffff
        buffer_load_dwordx4 {vr(Vb[0][0],4)}, v{vVG}, {WSR()}, s{sT3} offen sc1
        buffer_load_dwordx4 {vr(Vb[0][1],4)}, v{vVG}, {WSR()}, s{sT4} offen sc1
        s_mov_b64 exec, -1
        s_add_u32 s{sT3}, s{sT3}, {TILE}
        s_waitcnt vmcnt(2)
        """)
        a(mfma32(X, Km[0], Qm[0], vr(NM, 16)))
        a(mfma32(X + 16, Km[0], Qm[1], vr(NM + 16, 16)))
        a("s_nop 9")
        a(mfma2b(X, t, vr(X, 32)))
        a("s_nop 15\ns_nop 3")
        for r in range(32):
            a(f"v_exp_f32 v{X+r}, v{X+r}")
        a("s_nop 0")
        for j in range(16):
            a(f"v_cvt_pk_bf16_f32 v{X + 8*(j//4) + j%4}, v{X+2*j}, v{X+2*j+1}")
        a("s_waitcnt vmcnt(0)\ns_nop 1")
        a(mfma32(OA[0], Vb[0][0], X, vr(OA[0], 16)))
        a(mfma32(OA[0], Vb[0][1], X + 8, vr(OA[0], 16)))
        a(mfma32(OA[1], Vb[0][0], X + 16, vr(OA[1], 16)))
        a(mfma32(OA[1], Vb[0][1], X + 24, vr(OA[1], 16)))
    a(f"""
    s_add_u32 s{sRem}, s{sRem}, 1
    s_cmp_lt_u32 s{sRem}, 32
    s_cbranch_scc1 LA_slow_pv
    s_nop 15
    s_mov_b32 s{sRem}, 1
    s_branch LA_epi
    """)


pWF = [16, 56]
pACC = 96
pACL = 196
pOF = 136
pWA, pOA = 2, 3


def c3_off(a, dst, t64, part):
    a(f"""
    s_lshl_b32 s{dst}, s{sBr}, 5
    s_add_u32 s{dst}, s{dst}, s{t64}
    s_mul_i32 s{dst}, s{dst}, 3
    s_add_u32 s{dst}, s{dst}, s{part}
    s_lshl_b32 s{dst}, s{dst}, 7
    s_add_u32 s{dst}, s{dst}, {WS_C3}
    """)


def wo_dma(a, k0, k1, lds0):
    _lbl[0] += 1
    L = f"LP_wd{_lbl[0]}"
    a(f"""
    s_and_b32 s{sT0}, s{sHead}, 3
    s_lshl_b32 s{sT1}, s{sBr}, 2
    s_add_u32 s{sT0}, s{sT0}, s{sT1}
    s_mul_i32 s{sT0}, s{sT0}, {WO_SLAB}
    s_lshl_b32 s{sT1}, s{sJ}, 10
    s_add_u32 s{sT0}, s{sT0}, s{sT1}
    s_add_u32 s{sT0}, s{sT0}, {WS_WO + 10240 * k0}
    s_add_u32 s{sT1}, s{sT1}, {lds0}
    {L}:
    s_mov_b32 m0, s{sT1}
    s_add_u32 s{sT1}, s{sT1}, 4096
    buffer_load_dwordx4 v{vL16}, {WSR()}, s{sT0} offen sc1 lds
    s_add_u32 s{sT0}, s{sT0}, 4096
    s_cmp_lt_u32 s{sT1}, {lds0 + 10240 * (k1 - k0)}
    s_cbranch_scc1 {L}
    """)


def o_addr(a):
    a(f"""
    s_lshl_b32 s{sT1}, s{sQB}, 2
    s_lshr_b32 s{sT2}, s{sHead}, 2
    s_add_u32 s{sT1}, s{sT1}, s{sT2}
    """)
    c3_off(a, sFc, sT1, sRole)
    a(f"""
    v_and_b32 v{vP+3}, 15, v0
    s_lshl_b32 s{sT1}, s{sT1}, 1
    s_lshr_b32 s{sT2}, s{sJ}, 1
    s_add_u32 s{sT1}, s{sT1}, s{sT2}
    s_mul_i32 s{sT1}, s{sT1}, {TILE}
    s_add_u32 s{sT1}, s{sT1}, s{sImg}
    s_and_b32 s{sT2}, s{sJ}, 1
    s_lshl_b32 s{sT2}, s{sT2}, 8
    s_add_u32 s{sT1}, s{sT1}, s{sT2}
    s_add_u32 s{sFo}, s{sT1}, {3 * IMG}
    v_lshrrev_b32 v{pOA}, 4, v0
    v_lshlrev_b32 v{pOA}, 9, v{pOA}
    v_lshl_add_u32 v{pOA}, v{vP+3}, 4, v{pOA}
    v_lshlrev_b32 v{vP+5}, 7, v0
    s_mov_b32 s{sF[0]}, s{sFo}
    s_add_u32 s{sF[1]}, s{sFo}, 10240
    """)


sF = [54, 55]


def o_load_sub(a, label, p0):
    a(f"{label}:\ns_mov_b32 s{sT1}, s{sF[p0 // 5]}")
    for i in range(5):
        a(f"buffer_load_dwordx4 {vr(pOF + 4*(p0 + i), 4)}, v{pOA}, {WSR()}, s{sT1} offen offset:{(i & 1) * 2048} sc1")
        if i & 1:
            a(f"s_add_u32 s{sT1}, s{sT1}, 4096")
    a(f"s_setpc_b64 s[{sLnk}:{sLnk+1}]")


def o_checked(a, label, p0, counted):
    a(f"s_mov_b32 s{sSpin}, {SPIN}\n{label}_chk:\nv_mov_b32 v{vPS}, 0\nv_mov_b32 v{vPS+1}, 0")
    for i in range(5):
        r = pOF + 4 * (p0 + i)
        if counted:
            a(f"s_waitcnt vmcnt({4 - i})")
        a(f"v_max3_u32 v{vPS}, v{vPS}, v{r}, v{r+1}\nv_max3_u32 v{vPS+1}, v{vPS+1}, v{r+2}, v{r+3}")
    a(f"""
    v_max_u32 v{vPS}, v{vPS}, v{vPS+1}
    v_cmp_eq_u32 vcc, -1, v{vPS}
    s_cbranch_vccz {label}_ok
    s_call_b64 s[{sLnk}:{sLnk+1}], {label}
    s_waitcnt vmcnt(0)
    s_sub_u32 s{sSpin}, s{sSpin}, 1
    s_cbranch_scc0 {label}_chk
    {label}_ok:
    """)


def peek(a, mask):
    a(f"""
    v_mov_b32 v{vPS+2}, 0
    s_mov_b64 exec, {mask}
    buffer_atomic_add v{vPS+2}, v{vP+5}, {WSR()}, s{sFc} offen sc0 sc1
    s_mov_b64 exec, -1
    """)


def ready_mask(a):
    a(f"v_cmp_le_u32 vcc, 8, v{vPS+2}\ns_and_b32 s{sPh}, vcc_lo, 3")


def order_sub(a):
    a(f"""
    LP_order:
    s_and_b32 s{sDone}, s{sPh}, 1
    s_xor_b32 s{sDone}, s{sDone}, 1
    s_mul_i32 s{sT0}, s{sDone}, 10240
    s_add_u32 s{sF[0]}, s{sFo}, s{sT0}
    s_sub_u32 s{sF[1]}, s{sFo}, s{sT0}
    s_add_u32 s{sF[1]}, s{sF[1]}, 10240
    """)


TAB = [8, 9, 10, 11, 12, 13, 14, 15, 52, 53]


sLnkM = 6


def oproj_subs(a, G3, Lo0):
    def wreads(p):
        return [f"ds_read_b128 {vr(pWF[p & 1] + 4*c, 4)}, v{pWA} offset:{c * 1024}" for c in range(10)]
    a(f"LP_pro:\nv_add_u32 v{pWA}, s{TAB[0]}, v{vL16}")
    for r in wreads(0):
        a(r)
    a(f"s_setpc_b64 s[{sLnkM}:{sLnkM+1}]")
    for p in range(10):
        if p % 5 == 0:
            a("LP_lo:" if p else "LP_hi:")
        rd = wreads(p + 1) if p < 9 else []
        if rd:
            a(f"v_add_u32 v{pWA}, s{TAB[p + 1]}, v{vL16}")
        for c in range(10):
            A = (pACL if p >= 5 else pACC) + 4 * c
            a(f"s_waitcnt lgkmcnt({9 if rd else 9 - c})")
            a(f"v_mfma_f32_16x16x32_bf16 {vr(A,4)}, {vr(pOF + 4*p, 4)}, {vr(pWF[p & 1] + 4*c, 4)}, {vr(A,4)}")
            if rd:
                a(rd[c])
            site = 2 * (p - 5) + c // 5
            if p >= 5 and c % 5 == 0 and site < 9:
                a(f"s_cbranch_scc1 LW_{site}\nLW_b{site}:")
            if p == MID_P and c == 9:
                a("s_cbranch_scc1 LP_mid\nLP_midb:")
        if p % 5 == 4:
            a(f"s_setpc_b64 s[{sLnkM}:{sLnkM+1}]")
    for site in range(9):
        a(f"LW_{site}:")
        n = 3 if site < 5 else 2
        if site == 0:
            a(f"s_mul_i32 s{sT1}, s{sJ}, {15 * 1024}\ns_add_u32 s{sT2}, s{sT0}, s{sT1}\ns_add_u32 m0, s{sT1}, {G3}")
        elif site == 5:
            a(f"s_lshl_b32 s{sT1}, s{sJ}, 13\ns_add_u32 s{sT2}, s{sT0}, s{sT1}\ns_add_u32 s{sT2}, s{sT2}, {6 * 10240}\ns_add_u32 m0, s{sT1}, {Lo0}")
        else:
            a(f"s_add_u32 m0, m0, {n * 1024}\ns_add_u32 s{sT2}, s{sT2}, {n * 1024}")
        a("s_cmp_eq_u32 0, 0")
        if site == 7:
            peek(a, 3)
        for i in range(n):
            a(f"buffer_load_dwordx4 v{vL16}, {WSR()}, s{sT2} offen offset:{i * 1024} sc1 lds")
        a(f"s_branch LW_b{site}")
    a("LP_mid:\ns_waitcnt vmcnt(0)")
    ready_mask(a)
    a(f"s_cmp_eq_u32 s{sPh}, 3\ns_cbranch_scc0 LP_midb\ns_call_b64 s[{sLnk}:{sLnk+1}], LP_ldlo\ns_branch LP_midb")


MID_P = 4
WOVEN_PRIO = 1


def set_tab(a, addrs):
    for r, x in zip(TAB, addrs):
        a(f"s_mov_b32 s{r}, {x}")


def out_addr(a):
    a.c("lane n = l & 15 holds columns 8n..8n+7 of a 128-column piece and 2n, 2n+1 of a 32-column piece (tokens 4*(l >> 4) + r);")
    a.c("odd column groups start with the narrow piece, so that the wide one covers whole 128-B lines")
    a(f"""
    s_lshl_b32 s{sT0}, s{sQB}, 2
    s_lshr_b32 s{sT1}, s{sHead}, 2
    s_add_u32 s{sT0}, s{sT0}, s{sT1}
    s_lshl_b32 s{sT0}, s{sT0}, 2
    s_add_u32 s{sT0}, s{sT0}, s{sJ}
    s_mul_i32 s{sT0}, s{sT0}, {16 * 2560}
    s_mul_i32 s{sT1}, s{sBr}, 1280
    s_add_u32 s{sT0}, s{sT0}, s{sT1}
    s_and_b32 s{sT1}, s{sHead}, 3
    s_mul_i32 s{sT1}, s{sT1}, 320
    s_add_u32 s{sXo}, s{sT0}, s{sT1}
    s_add_u32 s{sWo}, s{sXo}, {2 * 2560}
    v_lshrrev_b32 v4, 4, v0
    v_mul_u32_u24 v4, {4 * 2560}, v4
    v_and_b32 v6, 15, v0
    s_and_b32 s{sT0}, s{sHead}, 1
    s_cselect_b32 s{sT0}, 64, 0
    s_cselect_b32 s{sT1}, 0, 256
    v_lshl_add_u32 v5, v6, 2, v4
    v_lshl_add_u32 v4, v6, 4, v4
    v_add_u32 v4, s{sT0}, v4
    v_add_u32 v5, s{sT1}, v5
    """)


def out_store(a):
    OUTMOD = " nt" if 'outnt' in OPT else " sc1"
    for r in range(4):
        if r % 2 == 0:
            for c in range(10):
                a(f"v_pk_add_f32 {vr(pACC + 4*c + r, 2)}, {vr(pACC + 4*c + r, 2)}, {vr(pACL + 4*c + r, 2)}")
        P = 16 + 6 * r
        for j in range(5):
            a(f"v_cvt_pk_bf16_f32 v{P+j}, v{pACC + 8*j + r}, v{pACC + 8*j + 4 + r}")
        so = sXo if r < 2 else sWo
        a(f"buffer_store_dwordx4 {vr(P,4)}, v4, s[{sOut}:{sOut+3}], s{so} offen offset:{(r & 1) * 2560}{OUTMOD}")
        a(f"buffer_store_dword v{P+4}, v5, s[{sOut}:{sOut+3}], s{so} offen offset:{(r & 1) * 2560}{OUTMOD}")


rL, rT, rD, rX, rData = 194, 199, 201, 205, 208


def repack_setup(a):
    x = rX
    for i in range(5):
        a(f"""
        v_add_u32 v{x}, {64 * i}, v0
        v_mul_u32_u24 v{x+1}, 3277, v{x}
        v_lshrrev_b32 v{x+1}, 16, v{x+1}
        v_mul_u32_u24 v{x+2}, 20, v{x+1}
        v_sub_u32 v{x+2}, v{x}, v{x+2}
        v_mul_u32_u24 v{x+1}, 1280, v{x+1}
        v_lshl_add_u32 v{rL+i}, v{x+2}, 4, v{x+1}
        """)
    a(f"""
    v_and_b32 v{x}, 48, v0
    v_lshlrev_b32 v{x}, 4, v{x}
    v_add_u32 v{x}, {RPK}, v{x}
    v_and_b32 v{x+1}, 7, v0
    v_mul_u32_u24 v{x+1}, 1040, v{x+1}
    v_and_b32 v{x+2}, 8, v0
    v_lshl_add_u32 v{x+1}, v{x+2}, 1, v{x+1}
    v_add_u32 v{rD}, v{x}, v{x+1}
    v_and_b32 v{x+1}, 1, v0
    v_mul_u32_u24 v{x+1}, 1040, v{x+1}
    v_and_b32 v{x+2}, 14, v0
    v_lshl_add_u32 v{x+1}, v{x+2}, 3, v{x+1}
    v_add3_u32 v{rD+1}, v{x}, v{x+1}, 0
    v_lshrrev_b32 v{x}, 4, v0
    v_lshlrev_b32 v{x}, 3, v{x}
    v_lshrrev_b32 v{x+1}, 2, v0
    v_and_b32 v{x+1}, 3, v{x+1}
    v_add_u32 v{x}, v{x}, v{x+1}
    v_mul_u32_u24 v{x}, 320, v{x}
    v_and_b32 v{x+1}, 3, v0
    v_lshl_add_u32 v{x}, v{x+1}, 3, v{x}
    v_add_u32 v{x}, {RPK}, v{x}
    s_and_b32 s{sT0}, s2, 1
    s_cselect_b32 s{sT0}, 64, 0
    s_cselect_b32 s{sT1}, 0, 256
    v_add_u32 v{rT}, s{sT0}, v{x}
    v_add_u32 v{rT+1}, s{sT1}, v{x}
    v_add_u32 v{rX}, {RPK}, v{vL16}
    """)


def repack_steps(a):
    a(f"""
    LR_step:
    s_add_u32 s{sRp}, s{sRp}, 1
    s_lshr_b32 s{sT2}, s2, 3
    s_cmp_eq_u32 s{sM}, {RP_AT}
    s_cbranch_scc0 LR_s1
    s_mov_b32 s{sWt}, s{sPtr+2}
    s_and_b32 s{sWt+1}, s{sPtr+3}, 0xffff
    s_mov_b32 s{sWt+2}, {D * D * 2}
    s_mov_b32 s{sWt+3}, 0x00020000
    s_mul_i32 s{sT0}, s{sT2}, {32 * 1280}
    s_and_b32 s{sT1}, s2, 3
    s_mul_i32 s{sT1}, s{sT1}, 320
    s_add_u32 s{sT0}, s{sT0}, s{sT1}
    s_mov_b32 m0, {RPK}
    s_add_u32 s{sT1}, s{sT0}, {16 * 1280}
    """)
    for i in range(10):
        a(f"buffer_load_dwordx4 v{rL + i % 5}, s[{sWt}:{sWt+3}], s{sT1 if i >= 5 else sT0} offen lds")
        a("s_add_u32 m0, m0, 1024\ns_nop 0")
    a(f"""
    s_branch LA_bar
    LR_s1:
    s_cmp_eq_u32 s{sM}, {RP_AT + 1}
    s_cbranch_scc0 LR_s2
    s_and_b32 s{sT0}, s2, 7
    s_mul_i32 s{sT0}, s{sT0}, {WO_SLAB}
    s_mul_i32 s{sT2}, s{sT2}, 10240
    s_add_u32 s{sT0}, s{sT0}, s{sT2}
    s_add_u32 s{sT0}, s{sT0}, {WS_WO}
    """)
    for ct in range(10):
        for u in range(2):
            a(f"ds_read_b64_tr_b16 {vr(rData + 4*ct + 2*u, 2)}, v{rT + ct // 8} offset:{u*4*320 + (ct % 8)*32}")
        if ct == 4:
            a("s_waitcnt lgkmcnt(0)")
    a("s_waitcnt lgkmcnt(0)")
    for ct in range(10):
        a(f"ds_write_b128 v{rD + ct // 8}, {vr(rData + 4*ct, 4)} offset:{32 * ct if ct < 8 else 8 * 1040 + 128 * (ct - 8)}")
    a("s_waitcnt lgkmcnt(0)")
    for c in range(10):
        a(f"ds_read_b128 {vr(rData + 4*c, 4)}, v{rX} offset:{1040 * c}")
    for c in range(10):
        a(f"s_waitcnt lgkmcnt({9 - c})")
        a(f"buffer_store_dwordx4 {vr(rData + 4*c, 4)}, v{vL16}, {WSR()}, s{sT0} offen offset:{1024 * (c & 3)} sc1")
        if c & 3 == 3:
            a(f"s_add_u32 s{sT0}, s{sT0}, 4096")
    a(f"""
    s_branch LA_bar
    LR_s2:
    s_mov_b32 s{sRp}, -1
    s_and_b32 s{sT0}, s2, 7
    s_lshl_b32 s{sT0}, s{sT0}, 7
    s_add_u32 s{sT0}, s{sT0}, {WS_C4}
    """)
    count_in(a, sT0, vP, vP + 1)
    a("s_branch LA_bar")


def write_ones(a, role):
    a(f"""
    v_and_b32 v{vT0}, 7, v0
    v_mul_u32_u24 v{vT0}, 640, v{vT0}
    v_add_u32 v{vT0}, {ONES[role]}, v{vT0}
    v_mov_b32 v16, 0x3f803f80
    v_mov_b32 v17, 0x3f803f80
    v_mov_b32 v18, 0x3f803f80
    v_mov_b32 v19, 0x3f803f80
    ds_write_b128 v{vT0}, v[16:19]
    """)


sL = 8


def lead_prepare(a):
    a(f"""
    s_cmp_lt_u32 s2, 160
    s_cselect_b32 s{sT0}, s{sJ}, 0
    s_cmp_eq_u32 s{sT0}, 1
    s_cselect_b32 s{sRp}, {RP_AT}, -1
    s_mov_b32 s{sM}, 0
    s_mov_b32 s{sMend}, 0
    s_mov_b32 s{sRb}, {RA}
    s_mov_b32 s{sNext}, {RA + BLK}
    """)
    attn_zero(a)
    o_base(a)
    a(f"""
    s_sub_u32 s{sT0}, s{sOb}, {3 * IMG}
    s_add_u32 s{sL},  s{sT0}, s{sOm}
    s_add_u32 s{sL+1}, s{sL},  {TILE}
    s_add_u32 s{sL+2}, s{sT0}, s{sExt}
    s_lshr_b32 s{sT3}, s{sJ}, 1
    s_mul_i32 s{sT1}, s{sT3}, {4 * TILE}
    s_add_u32 s{sT1}, s{sT1}, s{sImg}
    s_add_u32 s{sT1}, s{sT1}, {IMG}
    s_and_b32 s{sL+4}, s{sQB if 'kvrot' in OPT else sHead}, 7
    s_mul_i32 s{sL+3}, s{sL+4}, {8 * TILE}
    s_add_u32 s{sL+3}, s{sL+3}, s{sT1}
    s_add_u32 s{sL+4}, s{sL+4}, 1
    s_and_b32 s{sL+4}, s{sL+4}, 7
    s_mul_i32 s{sL+4}, s{sL+4}, {8 * TILE}
    s_add_u32 s{sL+4}, s{sL+4}, s{sT1}
    s_mul_i32 s{sL+5}, s{sT3}, {CH}
    s_and_b32 s{sL+6}, s{sJ}, 1
    s_mul_i32 s{sT4}, s{sL+6}, 6144
    s_add_u32 s{sL+5}, s{sL+5}, s{sT4}
    s_add_u32 m0, s{sL+5}, {RA + BLK}
    """)
    a(f"""
    s_lshl_b32 s{sL+7}, s{sBr}, 5
    s_add_u32 s{sL+7}, s{sL+7}, s{sHead}
    s_lshl_b32 s{sL+7}, s{sL+7}, 9
    s_add_u32 s{sL+7}, s{sL+7}, {WS_C1}
    """)


def common_setup(a):
    a(f"""
    s_and_b32 s{sT0}, s2, 1
    s_lshl_b32 s{sT0}, s{sT0}, 3
    s_and_b32 s{sT1}, s2, 2
    s_lshl_b32 s{sT1}, s{sT1}, 1
    s_add_u32 s{sT0}, s{sT0}, s{sT1}
    s_lshr_b32 s{sT2}, s2, 6
    s_add_u32 s{sHead}, s{sT0}, s{sT2}
    s_lshr_b32 s{sQB}, s2, 3
    s_and_b32 s{sQB}, s{sQB}, 7
    s_lshl_b32 s{sT2}, s{sRole}, 4
    s_add_u32 s{sHead}, s{sHead}, s{sT2}
    s_mul_i32 s{sImg}, s{sBr}, {4 * IMG}
    s_mov_b32 s{sPh}, 0
    s_mov_b32 s{sWS+2}, {WS_STAMP + 2048 * 128 if common.STAMP else WS_END}
    s_mov_b32 s{sWS+3}, 0x00020000
    s_mov_b32 s{sOut+2}, {S * 2 * D * 2}
    s_mov_b32 s{sOut+3}, 0x00020000
    s_mov_b32 s{sDbg+2}, 256
    s_mov_b32 s{sDbg+3}, 0x00020000
    s_waitcnt lgkmcnt(0)
    s_mov_b32 s{sOut}, s{sPtr+4}
    s_and_b32 s{sOut+1}, s{sPtr+5}, 0xffff
    s_mov_b32 s{sDbg}, s{sPtr+6}
    s_and_b32 s{sDbg+1}, s{sPtr+7}, 0xffff
    s_and_b32 s{sWS+1}, s{sWS+1}, 0xffff
    """)


def gen(a, label):
    kernel_head(a, label)
    a("s_cmp_ge_u32 s2, 256\ns_cbranch_scc1 LF_end")
    stamp(a, 0)
    a(f"""
    s_bfe_u32 s{sBr}, s2, 0x10002
    s_mul_i32 s{sT0}, s{sBr}, 24
    s_load_dwordx2 s[{sX}:{sX+1}], s[0:1], s{sT0}
    s_add_u32 s{sT1}, s{sT0}, 8
    s_load_dwordx4 s[{sPtr}:{sPtr+3}], s[0:1], s{sT1}
    s_load_dwordx4 s[{sPtr+4}:{sPtr+7}], s[0:1], 48
    s_load_dwordx2 s[{sWS}:{sWS+1}], s[0:1], 64
    v_lshrrev_b32 v1, 6, v0
    v_and_b32 v0, 63, v0
    v_readfirstlane_b32 s{sW}, v1
    s_and_b32 s{sT0}, s2, 3
    s_lshl_b32 s{sT0}, s{sT0}, 2
    s_bfe_u32 s{sT2}, s2, 0x20003
    s_add_u32 s{sTB}, s{sT0}, s{sT2}
    s_lshr_b32 s{sTI}, s2, 5
    """)
    if 'nocw' not in OPT:
        a.c("wave 7 pulls a quarter of the code into the L2, so that later instruction fetches find it there")
        a(f"""
        s_cmp_eq_u32 s{sW}, 7
        s_cbranch_scc0 LG_nocw
        s_getpc_b64 s[4:5]
        LG_pc:
        s_sub_u32 s4, s4, LG_pc-{label}
        s_subb_u32 s5, s5, 0
        s_lshl_b32 s{sT0}, s{sT2}, 13
        v_lshl_add_u32 v8, v0, 7, s{sT0}
        v_min_u32 v8, LF_codeend-{label}-4, v8
        global_load_dword v{gT+1}, v8, s[4:5]
        LG_nocw:
        """)
    a.c("phase-a units of tile ti: n = 2 ti + e, unit = n + 5 (n >= 5) + 5 (n >= 10)")
    a(f"""
    s_lshl_b32 s{sU0}, s{sTI}, 1
    s_cmp_ge_u32 s{sTI}, 5
    s_cselect_b32 s{sT0}, 10, 5
    s_cmp_ge_u32 s{sTI}, 3
    s_cselect_b32 s{sT0}, s{sT0}, 0
    s_add_u32 s{sU0}, s{sU0}, s{sT0}
    s_cmp_eq_u32 s{sTI}, 2
    s_cselect_b32 s{sT0}, 6, 1
    s_add_u32 s{sU1}, s{sU0}, s{sT0}
    s_and_b32 s{sJ}, s{sW}, 3
    s_lshr_b32 s{sRole}, s{sW}, 2
    s_cbranch_scc1 LG_start
    """)
    gemm_loader(a)
    a("LG_start:")
    common_setup(a)
    if CLR_AT < 0:
        clear_counters(a, "LG")
    gemm_compute(a)
    a("LG_done:")
    if PAIR_Q >= 160:
        a("s_barrier")
    stamp(a, 3)
    vectors_get(a)
    a.c("the last wave whose stores have drained publishes the tile")
    a(f"""
    v_mov_b32 v{vP}, {LCNT}
    v_mov_b32 v{vP+1}, 1
    s_waitcnt vmcnt(0)
    s_mov_b64 exec, 1
    ds_add_rtn_u32 v{vP+2}, v{vP}, v{vP+1}
    s_mov_b64 exec, -1
    s_waitcnt lgkmcnt(0)
    v_readfirstlane_b32 s{sT0}, v{vP+2}
    s_cmp_eq_u32 s{sT0}, 3
    s_cbranch_scc0 LG_nopub
    s_call_b64 s[{sLnk}:{sLnk+1}], LG_publish
    LG_nopub:
    """)
    stamp(a, 27)
    a("s_branch LB_lead")
    a("LG_idle:\ns_waitcnt lgkmcnt(0)\ns_barrier")
    drained(a)
    a("s_barrier\ns_barrier")
    vectors_get(a)
    stamp(a, 3)
    a("LB_lead:")
    if 'oldlead' not in OPT:
        a("s_setprio 0")
    call_dma(a, 0, 2)
    a("s_barrier")
    o_mark(a)
    a("s_nop 0")
    write_ones(a, 1)
    a(f"s_mov_b32 s{sM}, {SK}\ns_mov_b32 s{sMend}, {(1 << (SK + 5)) - 1}\ns_mov_b32 s{sRb}, {RB}\ns_mov_b32 s{sNext}, {RB}\ns_mov_b32 s{sRp}, -1")
    if 'skipodd' in OPT:
        a(f"s_and_b32 s{sT0}, s2, {SKIPMASK}\ns_cselect_b32 s{sT0}, {1 << (SK + 7)}, 0\ns_or_b32 s{sMend}, s{sMend}, s{sT0}")
    attn_zero(a)
    if 'bearly' in OPT:
        a("s_setprio 2")
        poll_f1(a)
        stamp(a, 26)
        a("s_barrier")
    else:
        a("s_setprio 2\ns_waitcnt vmcnt(0)\ns_barrier")
        poll_f1(a)
        stamp(a, 26)
    load_q(a)
    call_dma(a, 1, 0)
    call_dma(a, 0, 3)
    if 'oldlead' in OPT:
        scale_q(a, 10)
    a("s_waitcnt vmcnt(0) lgkmcnt(0)\ns_barrier")
    call_dma(a, 1, 1)
    call_dma(a, 0, 4)
    call_dma(a, 1, 2)
    a("s_setprio 0" if 'noprio' in OPT else "s_setprio 1")
    if 'oldlead' not in OPT:
        scale_q(a, 63)
    stamp(a, 5)
    a("s_branch LA_start")
    a("LA_lead:")
    a("s_setprio 3")
    def small_writes():
        a(f"s_cmp_lt_u32 s{sJ}, 2\ns_cbranch_scc0 LA_sw1")
        vectors_put(a)
        a(f"s_branch LA_sw2\nLA_sw1:\nv_mov_b32 v{vP+2}, {LCNT}\ns_mov_b64 exec, 0xff\nds_write_b32 v{vP+2}, v{vP+1}")
        write_ones(a, 0)
        a("LA_sw2:")
    poll_counter(a, vP + 3, f"s{sL+7}", f"s{sExp}", 7, small_writes)
    stamp(a, 1)
    a(f"""
    buffer_load_dwordx4 {vr(Qm[0],4)}, v{vL16}, {WSR()}, s8 offen sc1
    buffer_load_dwordx4 {vr(Qm[1],4)}, v{vL16}, {WSR()}, s9 offen sc1
    buffer_load_dwordx2 {vr(Qe,2)}, v{vE16}, {WSR()}, s10 offen sc1
    """)
    for blk in range(2):
        for p in range(5):
            a(f"buffer_load_dwordx4 v{vD+p}, {WSR()}, s{11 + blk} offen sc1 lds")
            a("s_add_u32 m0, m0, 1024")
            a("s_nop 0" if p < 4 else "s_cmp_eq_u32 s14, 1")
        a(f"s_cbranch_scc1 LA_ld{blk}\nbuffer_load_dwordx4 v{vD+5}, {WSR()}, s{11 + blk} offen sc1 lds\nLA_ld{blk}:")
        if blk == 0:
            a(f"s_add_u32 m0, s13, {RA + 2 * BLK}\ns_nop 0")
    scale_q(a, 10)
    a("s_waitcnt vmcnt(5) lgkmcnt(0)\ns_barrier\ns_setprio 1")
    stamp(a, 3)
    attention(a)
    a(f"s_cmp_eq_u32 s{sRole}, 0\ns_cbranch_scc1 LP_a\ns_barrier")
    stamp(a, 6)
    a(f"s_branch {'LF_end' if 'astamp' in OPT else 'LP_end'}\nLP_a:\ns_waitcnt vmcnt(0)")
    count_in(a, sOc, vP, vP + 1)
    stamp(a, 6)
    a.c("role-A waves: first half of K while role B finishes, second half once it is published")
    a(f"""
    s_and_b32 s{sT0}, s{sHead}, 3
    s_lshl_b32 s{sT1}, s{sBr}, 2
    s_add_u32 s{sT0}, s{sT0}, s{sT1}
    s_lshl_b32 s{sT0}, s{sT0}, 7
    s_add_u32 s{sT0}, s{sT0}, {WS_C4}
    """)
    poll_counter(a, vP + 4, f"s{sT0}", 20, 1)
    a(f"v_pk_mov_b32 {vr(pACC + 32, 2)}, 0, 0")
    for r in range(34, 40, 2):
        a(f"v_pk_mov_b32 {vr(pACC + r, 2)}, 0, 0")
    for r in range(32, 40, 2):
        a(f"v_pk_mov_b32 {vr(pACL + r, 2)}, 0, 0")
    for A in (pACC, pACL):
        a(f"v_mfma_f32_32x32x4_2b_bf16 {vr(A,32)}, {vr(pACC + 32, 2)}, {vr(pACC + 32, 2)}, 0")
    G = lambda i: LDS_BYTES - (11 - i) * 10240
    Lo = lambda i: RB + i * 10240
    assert SK == 3 and G(0) >= RB + 2 * BLK and G(3) >= RB + RING and Lo(3) <= RB + BLK + CH
    call = lambda l: a(f"s_call_b64 s[{sLnk}:{sLnk+1}], {l}")
    o_addr(a)
    out_addr(a)
    a("s_setprio 0")
    stamp(a, 20)
    a("s_barrier")
    stamp(a, 21)
    call_dma(a, 1, 7)
    wo_dma(a, 0, 3, G(3))
    peek(a, 1)
    wo_dma(a, 3, 6, G(6))
    stamp(a, 22)
    a(f"s_waitcnt vmcnt(0)\nv_readfirstlane_b32 s{sT0}, v{vPS+2}\ns_cmp_ge_u32 s{sT0}, 16\ns_cbranch_scc1 LP_seen")
    poll_counter(a, vP + 4, f"s{sFc}", 16, 1)
    a("LP_seen:")
    call("LP_ldhi")
    call("LP_ldlo")
    a(f"s_add_u32 s{sFo}, s{sFo}, 20480\ns_add_u32 s{sFc}, s{sFc}, 128")
    stamp(a, 25)
    a("s_barrier")
    stamp(a, 5)
    mm = lambda l: a(f"s_call_b64 s[{sLnkM}:{sLnkM+1}], {l}")
    set_tab(a, [G(3), G(4), G(5), G(6), G(7), G(8), G(9), G(10), G(0), G(1)])
    mm("LP_pro")
    a("s_waitcnt vmcnt(0)")
    wo_dma(a, 6, 8, G(9))
    wo_dma(a, 8, 11, G(0))
    a("s_cmp_eq_u32 0, 1")
    mm("LP_hi")
    a(f"""
    s_and_b32 s{sT0}, s{sHead}, 3
    s_lshl_b32 s{sT1}, s{sBr}, 2
    s_add_u32 s{sT0}, s{sT0}, s{sT1}
    s_mul_i32 s{sT0}, s{sT0}, {WO_SLAB}
    s_add_u32 s{sT0}, s{sT0}, {WS_WO + 10240 * 11}
    s_waitcnt vmcnt(0) lgkmcnt(0)
    """)
    assert Lo(0) + 32768 <= RB + BLK + CH
    stamp(a, 26)
    a("s_barrier")
    stamp(a, 28)
    a(f"s_setprio {WOVEN_PRIO}\ns_cmp_eq_u32 0, 0")
    mm("LP_lo")
    stamp(a, 10)
    a("s_waitcnt vmcnt(4)")
    ready_mask(a)
    a("s_cbranch_scc0 LP_n1")
    call("LP_order")
    a(f"s_waitcnt vmcnt(5)\ns_barrier\ns_branch LP_n2\nLP_n1:\ns_waitcnt vmcnt(0)\ns_barrier\ns_mov_b32 s{sSpin}, {SPIN}\nLP_any:")
    peek(a, 3)
    a("s_waitcnt vmcnt(0)")
    ready_mask(a)
    a(f"s_cbranch_scc1 LP_got\ns_sleep {SLEEP}\ns_sub_u32 s{sSpin}, s{sSpin}, 1\ns_cbranch_scc0 LP_any\nLP_got:")
    call("LP_order")
    a("LP_n2:")
    stamp(a, 30)
    T = [G(2), G(3), G(4), G(5), G(6), G(7), G(8), Lo(0), Lo(1), Lo(2)]
    a(f"s_cmp_eq_u32 s{sPh}, 3\ns_cbranch_scc0 LP_n3")
    call("LP_ldlo")
    a(f"LP_n3:\ns_cmp_eq_u32 s{sDone}, 1")
    for r, x, y in zip(TAB, T, T[5:] + T[:5]):
        a(f"s_mov_b32 s{r}, {x}\ns_cmov_b32 s{r}, {y}")
    mm("LP_pro")
    a.c("each group keeps its own accumulators, so the result does not depend on the order of arrival")
    a("s_cbranch_scc0 LP_n4")
    for r in range(40):
        a(f"v_swap_b32 v{pACC + r}, v{pACL + r}")
    a("LP_n4:")
    a(f"s_waitcnt vmcnt(5)\ns_cmp_eq_u32 s{sPh}, 3\ns_cbranch_scc1 LP_n5\ns_waitcnt vmcnt(0)")
    peek(a, 3)
    a("LP_n5:")
    o_checked(a, "LP_ldhi", 0, False)
    stamp(a, 11)
    a(f"s_cmp_lg_u32 s{sPh}, 3")
    mm("LP_hi")
    stamp(a, 12)
    a(f"s_cmp_eq_u32 s{sPh}, 3\ns_cbranch_scc1 LP_n6")
    poll_counter(a, vP + 5, f"s{sFc}", 8, 3)
    call("LP_ldlo")
    a("LP_n6:")
    o_checked(a, "LP_ldlo", 5, True)
    stamp(a, 2)
    if common.STAMP and 'cyc' not in OPT: a(f"s_mov_b32 s{STAMP_S+17}, s{sSpin}")
    a("s_cmp_eq_u32 0, 1")
    mm("LP_lo")
    stamp(a, 16)
    out_store(a)
    a("LP_end:")
    if common.STAMP:
        a("s_waitcnt vmcnt(0)")
        stamp(a, 7)
        stamp_flush(a, 4)
    a("LF_end:\ns_endpgm")
    dma_sub(a)
    refill(a)
    publish_sub(a)
    order_sub(a)
    o_load_sub(a, "LP_ldhi", 0)
    o_load_sub(a, "LP_ldlo", 5)
    oproj_subs(a, G(3), Lo(0))
    repack_steps(a)
    slow_path(a)
    a("LF_codeend:")


def build():
    a = Asm()
    label = NAME + "_kernel"
    a('.amdgcn_target "amdgcn-amd-amdhsa--gfx950"\n.text')
    gen(a, label)
    return (HEADER + f"; @launch grid=(256,1,1) block=(512,1,1) lds={LDS_BYTES}\n" + a.text()
            + '.section .rodata,"a"\n.p2align 6\n' + kernel_desc(label, NVGPR, NVGPR, 100))


if __name__ == "__main__":
    import sys
    for x in sys.argv[2:]:
        if '=' in x:
            k, v = x.split('='); globals()[k] = int(v)
        else:
            OPT.add(x)
    if 'dbgstamp' in OPT:
        common.STAMP = True
    out = sys.argv[1] if len(sys.argv) > 1 else f"cdna_kernels/{NAME}.s"
    open(out, "w").write(build())
```

```python
import sys, os
sys.path.insert(0, "gen")
args = sys.argv[1:]
sys.argv = sys.argv[:1]
from test_fk import *
common.STAMP = True
modes = [int(x[1:]) for x in args if x.startswith('@')] or [2]
verbose = '-v' in args
variants = [x for x in args if not x.startswith('@') and x != '-v']
import importlib
cos = []; bl = []
for v in variants:
    importlib.reload(fk)
    for x in v.split('+'):
        if '=' in x:
            k, val = x.split('='); setattr(fk, k, [int(z) for z in val.split(',')] if ',' in val else int(val))
        elif x != 'base': fk.OPT.add(x)
    bl.append(list(range(12)) + [15])
    cos.append(assemble1(fk.build(), "fk_" + v.replace('=', '').replace('+', '_').replace(',', '')))
if not os.path.exists('/dev/kfd'): print("assembled"); raise SystemExit
d = make_inputs(0)
qkv, o, out = exact(d)
R = Runner(d); R.poison()
def summary():
    rt = R.ws_read(fk.WS_STAMP, 2048 * 64).view(np.uint32).reshape(256, 8, 32).astype(np.int64)
    t0 = rt[:, :, 0].min()
    f = lambda role, i, fn: fn((rt[:224, 4*role:4*role+4, i] - t0) / 100.0)
    return [f(1, 1, np.median), f(1, 2, np.median), f(0, 3, np.median), f(1, 5, np.median), f(0, 4, np.median), f(1, 4, np.median), f(1, 4, np.max), f(0, 2, np.max), (rt[:, :, 7].max() - t0) / 100.0]
print("cols: first data | gemmA done | A attn start | B attn start | A attn end | B attn end med | B attn end max | O(b) seen max | end | events")
for rep in range(2):
    for v, (co, launches), bars in zip(variants, cos, bl):
        R.load(co, launches)
        for m in modes:
            rows = []; ev = []
            for it in range(15):
                ev.append(R.time(1, cold=m)[0]); rows.append(summary())
            err = np.abs(R.get_out() - out).max()
            print(f"{v:28s} cold={m} " + " ".join(f"{x:6.2f}" for x in np.median(np.array(rows), 0)) + f"  ev {np.median(ev):6.2f} err {err:.4f}", flush=True)
            if verbose and rep == 1:
                rt = R.ws_read(fk.WS_STAMP, 2048 * 64).view(np.uint32).reshape(256, 8, 32).astype(np.int64)
                t0 = rt[:, :, 0].min()
                r = (rt[:224, 0][:, [8 + b for b in bars] + [27, 1]] - t0) / 100.0
                print("    bars", bars, "flag, F1 seen")
                print("    med:", " ".join(f"{x:.2f}" for x in np.median(r, 0)))
                print("    max:", " ".join(f"{x:.2f}" for x in r.max(0)))
                lst = (("start", 0, 0), ("kernarg in", 0, 13), ("first issued", 0, 14), ("setup done", 0, 15), ("#0", 0, 8), ("#1", 0, 9), ("#10", 0, 18), ("gemmA done", 4, 2), ("flag", 0, 27), ("F1 seen", 0, 1), ("A start", 0, 3), ("B gemm done", 4, 3), ("B flag", 4, 27), ("B F1 seen", 4, 26), ("B start", 4, 5), ("A attn end", 0, 4), ("A O flag", 0, 6),
                       ("A at M8", 0, 20), ("M8", 0, 21), ("wo issued", 0, 22), ("A at M9", 0, 25), ("M9", 0, 5), ("A at M10", 0, 26), ("M10", 0, 28), ("A at E1", 0, 29), ("MM(a) done", 0, 30),
                       ("B end", 4, 4), ("B O flag", 4, 6), ("A O(b) seen", 0, 2), ("A end", 0, 7))
                for nm, w, i in lst:
                    g = (rt[:224, w, i] - t0) / 100.0; h = (rt[224:, w, i] - t0) / 100.0
                    print(f"    {nm:14s} min {g.min():.2f} med {np.median(g):.2f} max {g.max():.2f} | ti7: min {h.min():.2f} med {np.median(h):.2f} max {h.max():.2f}")
                for nm, w, i in (("#0", 0, 8), ("#10", 0, 18), ("#15", 0, 23), ("A start", 0, 3), ("A attn end", 0, 4), ("B end", 4, 4)):
                    g = (rt[:, w, i] - t0) / 100.0
                    print(f"    by xcd {nm:11s}", " ".join(f"{np.median(g[x::8]):.2f}/{g[x::8].max():.2f}" for x in range(8)))
                g = (rt[:, 4, 4] - rt[:, 0, 3]) / 100.0
                print(f"    by xcd attn dur   ", " ".join(f"{np.median(g[x::8]):.2f}/{g[x::8].max():.2f}" for x in range(8)))
                c0 = rt[:, 0, 24]
                d = lambda w, i: int(np.median((rt[:, w, i] - c0) & 0xffffffff))
                print("    cycles from A start: B start", d(4, 24), "A end", d(0, 31), "B end", d(4, 31))
                if 'cyc' in v:
                    print("    M barriers (cycles):", [d(0, 8 + m) for m in range(8)], [d(4, 8 + m) for m in range(8, 11)])
                ids = np.arange(256); y = ids >> 3
                for nm, i in (("#0", 8), ("#1", 9), ("#10", 18)):
                    g = (rt[:, 0, i] - t0) / 100.0
                    print(f"    {nm} by ti  ", " ".join(f"{np.median(g[(y >> 2) == k]):.2f}/{g[(y >> 2) == k].max():.2f}" for k in range(8)))
                    print(f"    {nm} by tb&3", " ".join(f"{np.median(g[(y & 3) == k]):.2f}/{g[(y & 3) == k].max():.2f}" for k in range(4)))
                    kb = ((y & 3) * 5 + 1) // 2 + (y >> 2); kb = kb % 10
                    print(f"    {nm} by kb0 ", " ".join(f"{np.median(g[kb == k]):.2f}" for k in range(10)))
```

```python
from common import Asm, vr, sr, f32bits, kernel_head, kernel_desc, QSCALE, S, D, HEADER, NAME
import common

OPT = set()
SK = 3

TILE = 40960
IMG = 64 * TILE
WS_WO = 8 * IMG
WO_SLAB = 204800
WO_HALF = WO_SLAB // 2
WS_C1 = WS_WO + 8 * WO_SLAB
WS_C3 = WS_C1 + 256 * 128
WS_C4 = WS_C3 + 192 * 128
WS_END = WS_C1 + 512 * 128
WS_STAMP = WS_END + 65536

LDS_BYTES = 163840
GSL = 16384
CH = 11264
BLK = 2 * CH
RING = 3 * BLK
ONES = [90112, 0]
RB = 5120
RA = LDS_BYTES - RING
RPK = RB + RING
XFER = 81920
LCNT = 95232

sX, sWt, sWS, sOut, sDbg = 8, 12, 16, 20, 24
sPtr = 28
sW, sJ, sRole = 40, 41, 42
sHead, sQB, sTI, sTB = 43, 44, 45, 46
sT0, sT1, sT2, sT3, sT4 = 47, 48, 49, 50, 51
sIt, sSlot, sKB, sInc = 52, 53, 54, 55
sXo, sWo = 56, 57
sNext, sRb, sRe, sRem = 52, 53, 54, 55
sM, sMend = 56, 57
sOm, sExt = 58, 59
sSpin = 60
sBr = 61
sU0, sU1, sImg, sPh = 96, 97, 98, 99
sExp = 3
sDone = 36
sOb = 37
sOc = 97
sFo, sFc = 38, 39
sRp = 96
sE = 56
sLnk = 62
STAMP_S = 64

RP_AT = 3
TLB_AT = 2
BLEAD_PRIO = 0
LOFF = -1
SPIN = 1 << 15
SLEEP = 2


NST = 32


def stamp(a, i):
    if common.STAMP and not ('cyc' in OPT and 8 <= i <= 19):
        a(f"s_memrealtime s[4:5]\ns_waitcnt lgkmcnt(0)\ns_mov_b32 s{STAMP_S+i}, s4")


def stamp_cyc(a, i):
    if common.STAMP:
        a(f"s_memtime s[4:5]\ns_waitcnt lgkmcnt(0)\ns_mov_b32 s{STAMP_S+i}, s4")


def stamp_idx(a, base, sreg):
    if common.STAMP and 'cyc' in OPT:
        a(f"s_memtime s[4:5]\ns_mov_b32 m0, s{sreg}\ns_waitcnt lgkmcnt(0)\ns_movreld_b32 s{STAMP_S+base}, s4")


def stamp_flush(a, vt):
    if not common.STAMP:
        return
    a(f"""
    s_mov_b64 exec, 1
    s_lshl_b32 s{sT0}, s2, 3
    s_add_u32 s{sT0}, s{sT0}, s{sW}
    s_lshl_b32 s{sT0}, s{sT0}, 7
    s_add_u32 s{sT0}, s{sT0}, {WS_STAMP}
    v_mov_b32 v{vt+2}, 0
    """)
    for i in range(NST):
        a(f"v_mov_b32 v{vt}, s{STAMP_S+i}")
        a(f"buffer_store_dword v{vt}, v{vt+2}, s[{sWS}:{sWS+3}], s{sT0} offen offset:{4*i}")
    if 'dbgstamp' in OPT:
        a(f"s_cmp_eq_u32 s2, 100\ns_cbranch_scc0 LF_nodbg\ns_cmp_eq_u32 s{sJ}, 0\ns_cbranch_scc0 LF_nodbg\ns_lshl_b32 s{sT0}, s{sRole}, 5")
        for i in range(8):
            a(f"s_sub_u32 s{sT1}, s{STAMP_S+i}, s{STAMP_S}")
            a(f"v_mov_b32 v{vt}, s{sT1}")
            a(f"buffer_store_dword v{vt}, v{vt+2}, s[{sDbg}:{sDbg+3}], s{sT0} offen offset:{4*i}")
        a("LF_nodbg:")


def WSR():
    return f"s[{sWS}:{sWS+3}]"


_lbl = [0]


def poll(a, loads, expect, vtmp):
    _lbl[0] += 1
    L = f"LF_poll{_lbl[0]}"
    a(f"s_mov_b32 s{sSpin}, {SPIN}\n{L}:")
    for i, (vo, srd, so) in enumerate(loads):
        a(f"buffer_load_dword v{vtmp+i}, v{vo}, {srd}, {so} offen sc1")
    a("s_waitcnt vmcnt(0)")
    for i in range(1, len(loads)):
        a(f"v_min_u32 v{vtmp}, v{vtmp}, v{vtmp+i}")
    a(f"""
    v_cmp_gt_u32 vcc, {expect}, v{vtmp}
    s_cbranch_vccz {L}_ok
    s_sleep {SLEEP}
    s_sub_u32 s{sSpin}, s{sSpin}, 1
    s_cbranch_scc0 {L}
    {L}_ok:
    """)


def poll_counter(a, vo, so, expect, mask, meanwhile=None):
    _lbl[0] += 1
    L = f"LF_pc{_lbl[0]}"
    rd = (f"v_mov_b32 v{vPS}, 0\nbuffer_atomic_add v{vPS}, v{vo}, {WSR()}, {so} offen sc0 sc1" if 'ldpoll' not in OPT else
          f"buffer_load_dword v{vPS}, v{vo}, {WSR()}, {so} offen sc1")
    a(f"s_mov_b32 s{sSpin}, {SPIN}\ns_mov_b64 exec, {mask}")
    if meanwhile:
        a(f"{rd}\ns_mov_b64 exec, -1")
        meanwhile()
        a(f"s_mov_b64 exec, {mask}\ns_branch {L}_w")
    a(f"""
    {L}:
    {rd}
    {L}_w:
    s_waitcnt vmcnt(0)
    v_cmp_gt_u32 vcc, {expect}, v{vPS}
    s_cbranch_vccz {L}_ok
    s_sleep {SLEEP}
    s_sub_u32 s{sSpin}, s{sSpin}, 1
    s_cbranch_scc0 {L}
    {L}_ok:
    s_mov_b64 exec, -1
    """)


def count_in(a, soff, vz, vd):
    a(f"""
    v_mov_b32 v{vz}, 0
    v_mov_b32 v{vd}, 1
    s_mov_b64 exec, 1
    buffer_atomic_add v{vd}, v{vz}, {WSR()}, s{soff} offen sc1
    s_mov_b64 exec, -1
    """)


gXF = 0
gWF = 160
gWA = [184, 185, 186, 187]
gXA = 188
gT = 189
gACC = 192


PUB_BAR = 12
LAST_BAR = 16
PAIR_Q = 155
HIGH_Q = 144
CLR_AT = 0
CNT_AT = 3
NFIRST = 5
MAXISS = 3
FAST_BAR = 7
PF_BAR = 3
ROT = 4


def stage_barriers():
    return list(range(0, 12)) + [LAST_BAR]


def gemm_schedule():
    items = [x for n in range(10) for x in (("X", n), ("W", n))] + [("W", n) for n in range(10, 20)]
    rel = lambda it: it[1] + (1 if it[0] == "X" else 2)
    free = list(range(10))
    slot, when, freed = {}, {}, set()
    k = 0
    for bar in range(-1, 12):
        for it in items:
            if it in slot and it not in freed and rel(it) <= bar:
                free.append(slot[it])
                freed.add(it)
        n = 0
        while k < len(items) and free and n < (NFIRST if bar == -1 else 10 if bar == 11 else MAXISS if bar >= FAST_BAR else 2) and bar != 10:
            slot[items[k]] = free.pop(0)
            when[items[k]] = bar
            k += 1
            n += 1
    assert k == len(items) and when[("W", LAST_BAR - 1)] <= 9 and when[("W", 17)] == 11
    assert max(rel(it) for it in items[:-3] if slot[it] == slot[("W", 17)]) <= 10
    order = [slot[("W", n)] for n in (15, 16, 17, 18, 19, 13, 14, 10, 11, 12)]
    assert sorted(order) == list(range(10)), order
    slot = {it: order.index(v) for it, v in slot.items()}
    return items, slot, when


LCNT0 = 2 * GSL


def lane_id(a, v):
    a(f"v_mbcnt_lo_u32_b32 v{v}, -1, 0\nv_mbcnt_hi_u32_b32 v{v}, -1, v{v}")


def drained(a):
    a(f"s_waitcnt vmcnt(0)\ns_mov_b64 exec, 1\nds_add_u32 v{gT+1}, v{gT+1} offset:{LCNT0 - 4}\ns_mov_b64 exec, -1\ns_mov_b32 s{sDone}, 1")


def clear_counters(a, L):
    a.c("wave 4 clears counter lines id and id + 256")
    a(f"""
    s_cmp_eq_u32 s{sJ}, 0
    s_cbranch_scc0 {L}_cleared
    s_lshl_b32 s{sT0}, s2, 7
    s_add_u32 s{sT0}, s{sT0}, {WS_C1}
    v_mbcnt_lo_u32_b32 v{gT+1}, -1, 0
    v_lshlrev_b32 v{gT+1}, 15, v{gT+1}
    v_mov_b32 v{gT+2}, 0
    s_mov_b64 exec, 3
    buffer_store_dword v{gT+2}, v{gT+1}, {WSR()}, s{sT0} offen sc1
    s_mov_b64 exec, -1
    {L}_cleared:
    """)


def gemm_body(a, vtype):
    L = "LG_v" if vtype else "LG_q"
    items, slot, when = gemm_schedule()
    tmp = gT + 2

    def kc(f):
        return ((f & 1, (f >> 1) & 7) if f >= 144 else ((f >> 3) & 1, f & 7))

    def rd(f, u):
        ks, c = kc(f)
        return f"ds_read_b64_tr_b16 {vr(gWF + 4 * (f % 6) + 2 * u, 2)}, v{tmp if c & 1 else gWA[c >> 1]} offset:{ks * 8192 + u * 1024}"

    def xor(f):
        ks, c = kc(f)
        return [f"v_xor_b32 v{tmp}, 32, v{gWA[c >> 1]}"] if c & 1 and not (f >= 144 and ks) else []

    def acc(c, t):
        return gACC + 8 * c + 4 * t if vtype else gACC + 16 * (c >> 1) + 8 * t + 4 * (c & 1)

    def mfma(f, t):
        ks, c = kc(f)
        x, w, d = vr(gXF + 16 * (f >> 4) + 8 * ks + 4 * t, 4), vr(gWF + 4 * (f % 6), 4), vr(acc(c, t), 4)
        A, B = (x, w) if vtype else (w, x)
        return f"v_mfma_f32_16x16x32_bf16 {d}, {A}, {B}, {'0' if f < 8 else d}"

    def xreads(n, between=""):
        d = gXF + 16 * n
        a(f"v_xor_b32 v{d + 8}, 64, v{gXA}")
        a(between)
        for ks, t in ((0, 0), (0, 1), (1, 1), (1, 0)):
            flip = ks ^ (t if vtype else 0)
            a(f"ds_read_b128 {vr(d + 8 * ks + 4 * t, 4)}, v{d + 8 if flip else gXA} offset:{t * (1024 if vtype else 2048)}")

    def first_reads():
        for f in range(6):
            for x in xor(f) + [rd(f, 1)] + ([rd(f, 0)] if f < 5 else []):
                a(x)

    def pack(C):
        A = gACC + 16 * C
        for j in range(8):
            a(f"v_cvt_pk_bf16_f32 v{gACC + 8*C + j}, v{A+2*j}, v{A+2*j+1}")
        if not vtype:
            for t in range(2):
                for r in range(2):
                    P = gACC + 8 * C + 4 * t + r
                    a(f"v_permlane16_swap_b32 v{P}, v{P+2}")

    def stores(C):
        for i in range(2):
            d = vr(gACC + 8*C + 4*i, 4)
            if vtype:
                a(f"buffer_store_dwordx4 {d}, v{gT}, {WSR()}, s{sE} offen offset:{(2 * C + i) * 256} sc1")
            else:
                a(f"buffer_store_dwordx4 {d}, v{gT}, {WSR()}, s{sE + (C >> 1)} offen offset:{(C & 1) * 2048 + i * 256} sc1")

    a("s_barrier")
    a(f"s_mov_b32 s{sDone}, 1")
    stamp(a, 1)
    xreads(0)
    first_reads()
    a(f"{L}_body:\ns_waitcnt lgkmcnt(9)")
    for f in range(160):
        n, r16 = f >> 4, f & 15
        if f + 6 < 160:
            for x in xor(f + 6):
                a(x)
        adds = {4: 0, 6: 1, 8: 2, 10: 3} if n < 9 else {7: 0, 9: 1, 10: 2, 11: 3}
        if r16 in adds:
            a(f"v_add_u32 v{gWA[adds[r16]]}, s{sInc}, v{gWA[adds[r16]]}")
        a(mfma(f, 0))
        hook = PUB_BAR <= n + 12 <= LAST_BAR
        if hook and r16 == 12:
            a.c("phase b: report once that this wave's stores have drained")
            a(f"s_getreg_b32 s{sT0}, hwreg(HW_REG_IB_STS, 0, 4)" if n + 12 < LAST_BAR else f"s_mov_b32 s{sT0}, 0")
        if hook and r16 == 13:
            a(f"s_or_b32 s{sT0}, s{sT0}, s{sDone}")
        if hook and r16 == 14:
            a(f"s_cbranch_scc0 {L}_da{n}\n{L}_db{n}:")
        if r16 == 0:
            a(f"s_cmp_eq_u32 s{sPh}, 1")
        if r16 == 1:
            a(f"s_mov_b32 s{sInc}, {((slot[('W', n + 1)] - slot[('W', n)]) * GSL) & 0xffffffff}")
        if r16 == 2 and n < 9:
            a(f"s_cmov_b32 s{sInc}, {((slot[('W', n + 11)] - slot[('W', n + 10)]) * GSL) & 0xffffffff}")
        if f == HIGH_Q:
            a("s_setprio 2")
        if f + 5 < 160:
            a(rd(f + 5, 0))
        a(mfma(f, 1))
        if f < 159:
            a(f"s_waitcnt lgkmcnt({2 * max(0, min(f + 5, 159) - (f + 1))})")
        if r16 == 10:
            if n + 11 in stage_barriers():
                a("s_barrier")
            a(f"s_cbranch_scc0 {L}_xa{n}\n{L}_xb{n}:")
        if f + 6 < 160:
            a(rd(f + 6, 1))
        if f == PAIR_Q:
            a(f"s_cbranch_scc0 {L}_np\ns_barrier\n{L}_np:")
        if f in (149, 153, 157):
            if f == 157:
                a("s_nop 1")
            pack((f - 149) // 4)
        if f in (150, 154, 158):
            stores((f - 150) // 4)
    a(f"s_cbranch_scc1 {L}_nopre")
    first_reads()
    a(f"{L}_nopre:\ns_nop 6")
    pack(3)
    stores(3)
    a(f"s_cbranch_scc1 LG_done")
    stamp(a, 2)
    next_units(a)
    step = 6 * 1024 if vtype else 5 * 4096
    a(f"s_add_u32 s{sE}, s{sE}, {step}\ns_add_u32 s{sE+1}, s{sE+1}, {step}\ns_mov_b32 s{sDone}, 0")
    if vtype:
        a(f"s_cmp_eq_u32 s{sTI}, 7\ns_cbranch_scc1 LG_idle")
    a(f"s_branch {L}_body")
    for n in range(10):
        a(f"{L}_xa{n}:")
        if n == CLR_AT:
            clear_counters(a, L)
        if n == CNT_AT:
            a.c("this workgroup has cleared its share of the counters: count it in")
            a(f"""
            s_waitcnt vmcnt(0)
            s_cmp_eq_u32 s{sW}, 4
            s_cbranch_scc0 {L}_nocount
            s_and_b32 s{sT0}, s2, 31
            s_lshl_b32 s{sT0}, s{sT0}, 2
            s_add_u32 s{sT0}, s{sT0}, 128
            v_mov_b32 v{gT+1}, 0
            v_mov_b32 v{gT+2}, 1
            s_mov_b64 exec, 1
            buffer_atomic_add v{gT+2}, v{gT+1}, s[{sDbg}:{sDbg+3}], s{sT0} offen sc1
            s_mov_b64 exec, -1
            {L}_nocount:
            v_mov_b32 v{gT+1}, 4
            """)
        if n + 1 < 10:
            dx = (slot[("X", n + 1)] - slot[("X", n)]) * GSL
            a(f"v_add_u32 v{gXA}, {dx & 0xffffffff}, v{gXA}")
            xreads(n + 1, "" if n + 11 in stage_barriers() else "s_barrier")
        else:
            a("s_barrier")
        a(f"s_branch {L}_xb{n}")
    for n in range(PUB_BAR - 12, LAST_BAR - 11):
        a(f"{L}_da{n}:")
        drained(a)
        a(f"s_branch {L}_db{n}")


def next_units(a):
    a(f"""
    s_mov_b32 s{sPh}, 1
    s_cmp_ge_u32 s{sTI}, 5
    s_cselect_b32 s{sT0}, 6, 5
    s_add_u32 s{sU0}, s{sU0}, s{sT0}
    s_add_u32 s{sU1}, s{sU1}, s{sT0}
    """)


def publish_sub(a):
    t = 240
    a(f"""
    LG_publish:
    v_cmp_lt_u32 vcc, 31, v0
    v_mov_b32 v{t+3}, s{sU0}
    v_mov_b32 v{t+4}, s{sU1}
    v_cndmask_b32 v{t+3}, v{t+3}, v{t+4}, vcc
    v_mul_u32_u24 v{t+4}, 205, v{t+3}
    v_lshrrev_b32 v{t+4}, 11, v{t+4}
    v_mul_u32_u24 v{t+5}, 10, v{t+4}
    v_sub_u32 v{t+3}, v{t+3}, v{t+5}
    v_lshlrev_b32 v{t+3}, 3, v{t+3}
    v_and_b32 v{t+5}, 31, v0
    v_lshl_add_u32 v{t+4}, v{t+5}, 2, v{t+4}
    v_lshlrev_b32 v{t+4}, 7, v{t+4}
    v_mul_u32_u24 v{t+5}, 5, v{t+5}
    v_lshrrev_b32 v{t+5}, 1, v{t+5}
    v_add_u32 v{t+5}, 2, v{t+5}
    v_sub_u32 v{t+5}, v{t+5}, v{t+3}
    v_cmp_gt_u32 vcc, 10, v{t+5}
    v_mov_b32 v{t+1}, 1
    s_lshl_b32 s{sT1}, s{sBr}, 14
    s_add_u32 s{sT1}, s{sT1}, {WS_C1}
    s_mov_b64 exec, vcc
    buffer_atomic_add v{t+1}, v{t+4}, {WSR()}, s{sT1} offen sc1
    s_mov_b64 exec, -1
    s_setpc_b64 s[{sLnk}:{sLnk+1}]
    """)


def gemm_compute(a):
    items, slot, when = gemm_schedule()
    i, g, t0, t1 = 8, 9, 10, 11
    a(f"""
    v_and_b32 v{i}, 15, v0
    v_lshrrev_b32 v{g}, 4, v0
    v_lshrrev_b32 v{t0}, 2, v0
    v_and_b32 v{t0}, 3, v{t0}
    v_lshl_add_u32 v{t1}, v{g}, 3, v{t0}
    v_lshlrev_b32 v{t1}, 8, v{t1}
    v_lshl_add_u32 v{t1}, v{t0}, 6, v{t1}
    v_and_b32 v{t0}, 16, v0
    v_lshl_add_u32 v{t1}, v{t0}, 1, v{t1}
    v_and_b32 v{t0}, 3, v0
    v_lshl_add_u32 v{t1}, v{t0}, 3, v{t1}
    v_add_u32 v{gWA[0]}, {slot[("W", 0)] * GSL}, v{t1}
    v_xor_b32 v{gWA[1]}, 64, v{gWA[0]}
    v_xor_b32 v{gWA[2]}, 128, v{gWA[0]}
    v_xor_b32 v{gWA[3]}, 192, v{gWA[0]}
    s_lshl_b32 s{sT1}, s{sJ}, 12
    s_add_u32 s{sT1}, s{sT1}, {slot[("X", 0)] * GSL}
    s_lshl_b32 s{sT0}, s{sTB}, 2
    s_add_u32 s{sT0}, s{sT0}, s{sJ}
    s_mul_i32 s{sT0}, s{sT0}, {TILE}
    s_add_u32 s{sT0}, s{sT0}, s{sImg}
    s_cmp_ge_u32 s{sTI}, 5
    s_cbranch_scc1 LG_vtype
    v_lshrrev_b32 v{t0}, 1, v{i}
    v_xor_b32 v{t0}, v{t0}, v{g}
    v_lshlrev_b32 v{t0}, 4, v{t0}
    v_lshl_add_u32 v{t0}, v{i}, 7, v{t0}
    v_add_u32 v{gXA}, s{sT1}, v{t0}
    v_and_b32 v{t0}, 1, v{g}
    v_lshlrev_b32 v{t0}, 10, v{t0}
    v_lshrrev_b32 v{t1}, 1, v{g}
    v_lshl_add_u32 v{t0}, v{t1}, 9, v{t0}
    v_lshl_add_u32 v{gT}, v{i}, 4, v{t0}
    s_lshl_b32 s{sE}, s{sU0}, 12
    s_lshl_b32 s{sE+1}, s{sU1}, 12
    s_cmp_ge_u32 s{sU0}, 10
    s_cselect_b32 s{sT3}, {IMG - 40960}, 0
    s_add_u32 s{sE}, s{sE}, s{sT3}
    s_cmp_ge_u32 s{sU1}, 10
    s_cselect_b32 s{sT3}, {IMG - 40960}, 0
    s_add_u32 s{sE+1}, s{sE+1}, s{sT3}
    s_add_u32 s{sE}, s{sE}, s{sT0}
    s_add_u32 s{sE+1}, s{sE+1}, s{sT0}
    """)
    gemm_body(a, False)
    a.c("V tiles: MFMA row i of token tile t is token 16 (i >> 3) + 8 t + (i & 7)")
    a(f"""
    LG_vtype:
    v_and_b32 v{t1}, 7, v{i}
    v_lshrrev_b32 v{t0}, 1, v{t1}
    v_xor_b32 v{t0}, v{t0}, v{g}
    v_lshlrev_b32 v{t0}, 4, v{t0}
    v_lshl_add_u32 v{t0}, v{t1}, 7, v{t0}
    v_and_b32 v{t1}, 8, v{i}
    v_lshl_add_u32 v{t0}, v{t1}, 8, v{t0}
    v_add_u32 v{gXA}, s{sT1}, v{t0}
    v_mul_u32_u24 v{t0}, 10240, v{g}
    v_lshl_add_u32 v{gT}, v{i}, 4, v{t0}
    s_lshl_b32 s{sE}, s{sU0}, 10
    s_add_u32 s{sE}, s{sE}, {2 * IMG - 20480}
    s_add_u32 s{sE}, s{sE}, s{sT0}
    """)
    gemm_body(a, True)


def touch_pages(a):
    a.c("every MiB that is first used later is touched once per group of workgroups, so that its translation is at hand")
    a(f"""
    s_lshr_b32 s{sT0}, s2, 3
    s_lshl_b32 s{sT0}, s{sT0}, 20
    s_cmp_eq_u32 s{sJ}, 1
    s_cbranch_scc0 LL_t1
    s_min_u32 s{sT1}, s{sT0}, {WS_END - 4}
    s_load_dword s6, s[{sWS}:{sWS+1}], s{sT1}
    LL_t1:
    s_cmp_eq_u32 s{sJ}, 2
    s_cbranch_scc0 LL_t2
    s_min_u32 s{sT1}, s{sT0}, {S * 2 * D * 2 - 4}
    s_load_dword s7, s[{sPtr+4}:{sPtr+5}], s{sT1}
    s_min_u32 s{sT1}, s{sT0}, {D * D * 2 - 4}
    s_load_dword s7, s[{sPtr+2}:{sPtr+3}], s{sT1}
    s_load_dword s6, s[{sPtr+6}:{sPtr+7}], 0
    LL_t2:
    """)


def gemm_loader(a):
    items, slot, when = gemm_schedule()
    vE, vO, vWs, vCnt, vWs2 = 230, 231, 232, 233, 235
    sKX, sKW = sKB, sSlot
    a(f"""
    v_lshrrev_b32 v5, 3, v0
    v_mul_u32_u24 v5, 1280, v5
    v_and_b32 v6, 7, v0
    v_lshrrev_b32 v7, 4, v0
    v_xor_b32 v6, v6, v7
    v_lshlrev_b32 v6, 4, v6
    v_add_u32 v{vE}, v5, v6
    v_xor_b32 v6, 64, v6
    v_add_u32 v{vO}, v5, v6
    v_add_u32 v{vO}, {8 * 1280 - 1024}, v{vO}
    v_lshrrev_b32 v5, 2, v0
    v_and_b32 v5, 3, v5
    v_xor_b32 v5, v5, v7
    v_lshrrev_b32 v6, 1, v5
    s_sub_u32 s{sT0}, s{sU1}, s{sU0}
    s_lshl_b32 s{sT0}, s{sT0}, 7
    v_mul_u32_u24 v6, s{sT0}, v6
    v_and_b32 v5, 1, v5
    v_lshl_add_u32 v5, v5, 6, v6
    v_and_b32 v6, 3, v0
    v_lshl_add_u32 v5, v6, 4, v5
    v_mul_u32_u24 v6, 3840, v7
    v_add_u32 v{vWs}, v5, v6
    v_xor_b32 v{vWs2}, 32, v{vWs}
    s_lshl_b32 s{sXo}, s{sTB}, 2
    s_add_u32 s{sXo}, s{sXo}, s{sJ}
    s_mul_i32 s{sXo}, s{sXo}, {32 * 1280}
    s_mul_i32 s{sWo}, s{sJ}, {16 * 3840}
    s_lshl_b32 s{sT0}, s{sU0}, 7
    s_add_u32 s{sWo}, s{sWo}, s{sT0}
    s_lshl_b32 s{sInc}, s{sJ}, 12
    """)
    a.c("workgroups that share a tile start at different k-blocks, so that they fill the L2 together")
    if ROT == 2:
        a(f"s_xor_b32 s{sKX}, s{sTB}, s{sTI}\ns_and_b32 s{sKX}, s{sKX}, 1\ns_mul_i32 s{sKX}, s{sKX}, 5")
    elif ROT == 3:
        a(f"""
        s_and_b32 s{sKX}, s{sTB}, 3
        s_add_u32 s{sKX}, s{sKX}, s{sTI}
        s_mul_i32 s{sT0}, s{sKX}, 43
        s_lshr_b32 s{sT0}, s{sT0}, 7
        s_mul_i32 s{sT0}, s{sT0}, 3
        s_sub_u32 s{sKX}, s{sKX}, s{sT0}
        s_mul_i32 s{sKX}, s{sKX}, 7
        s_lshr_b32 s{sKX}, s{sKX}, 1
        """)
    elif ROT == 4:
        a(f"""
        s_add_u32 s{sKX}, s{sTB}, s{sTI}
        s_and_b32 s{sKX}, s{sKX}, 3
        s_mul_i32 s{sKX}, s{sKX}, 5
        s_add_u32 s{sKX}, s{sKX}, 1
        s_lshr_b32 s{sKX}, s{sKX}, 1
        """)
    elif ROT:
        a(f"""
        s_and_b32 s{sKX}, s{sTB}, 3
        s_mul_i32 s{sKX}, s{sKX}, 5
        s_add_u32 s{sKX}, s{sKX}, 1
        s_lshr_b32 s{sKX}, s{sKX}, 1
        s_add_u32 s{sKX}, s{sKX}, s{sTI}
        s_cmp_ge_u32 s{sKX}, 10
        s_cselect_b32 s{sT0}, 10, 0
        s_sub_u32 s{sKX}, s{sKX}, s{sT0}
        """)
    else:
        a(f"s_and_b32 s{sKX}, s{sTI}, 1")
    a(f"s_mov_b32 s{sKW}, s{sKX}\ns_mov_b32 s{sIt}, 0")
    a(f"""
    s_mov_b32 s{sX+2}, {S * D * 2}
    s_mov_b32 s{sX+3}, 0x00020000
    s_mov_b32 s{sWt+2}, {D * 3 * D * 2}
    s_mov_b32 s{sWt+3}, 0x00020000
    s_waitcnt lgkmcnt(0)
    s_and_b32 s{sX+1}, s{sX+1}, 0xffff
    s_mov_b32 s{sWt}, s{sPtr}
    s_and_b32 s{sWt+1}, s{sPtr+1}, 0xffff
    """)
    if 'tlb2' in OPT:
        a.c("start the address translations of the pages of W (and the other end of X) together with the first X loads")
        a(f"""
        s_mul_i32 s{sT0}, s{sJ}, {(D * 3 * D * 2 - 4) // 3 // 4 * 4}
        s_buffer_load_dword s6, s[{sWt}:{sWt+3}], s{sT0}
        """)
    a(f"""
    s_branch LL_go
    """)
    a(f"""
    LL_X:
    s_lshl_b32 s{sT0}, s{sKX}, 7
    s_add_u32 s{sT0}, s{sT0}, s{sXo}
    s_add_u32 s{sKX}, s{sKX}, 1
    buffer_load_dwordx4 v{vE}, s[{sX}:{sX+3}], s{sT0} offen lds
    buffer_load_dwordx4 v{vO}, s[{sX}:{sX+3}], s{sT0} offen offset:1024 lds
    s_add_u32 m0, m0, 2048
    s_add_u32 s{sT0}, s{sT0}, {16 * 1280}
    buffer_load_dwordx4 v{vE}, s[{sX}:{sX+3}], s{sT0} offen lds
    buffer_load_dwordx4 v{vO}, s[{sX}:{sX+3}], s{sT0} offen offset:1024 lds
    s_cmp_eq_u32 s{sKX}, 10
    s_cselect_b32 s{sKX}, 0, s{sKX}
    s_setpc_b64 s[{sLnk}:{sLnk+1}]
    LL_Wskip:
    s_waitcnt vmcnt(0)
    s_setpc_b64 s[{sLnk}:{sLnk+1}]
    LL_W:
    s_cmp_eq_u32 s{sIt}, 1
    s_cbranch_scc1 LL_Wskip
    s_mul_i32 s{sT1}, s{sKW}, {64 * 3840}
    s_add_u32 s{sT1}, s{sT1}, s{sWo}
    s_add_u32 s{sKW}, s{sKW}, 1
    """)
    for p in range(4):
        a(f"buffer_load_dwordx4 v{vWs2 if p >= 2 else vWs}, s[{sWt}:{sWt+3}], s{sT1} offen lds")
        if p < 3:
            a(f"s_add_u32 m0, m0, 1024")
            a(f"s_add_u32 s{sT1}, s{sT1}, {4 * 3840}")
    a(f"""
    s_cmp_eq_u32 s{sKW}, 10
    s_cselect_b32 s{sKW}, 0, s{sKW}
    s_setpc_b64 s[{sLnk}:{sLnk+1}]
    """)
    a("LL_go:")
    delay(a, 2)
    stamp(a, 13)
    q = []

    def issue(it):
        if it == ("W", 10):
            a(f"s_cmp_ge_u32 s{sTI}, 5\ns_cselect_b32 s{sT0}, {6 * 128}, s{sC640}\ns_add_u32 s{sWo}, s{sWo}, s{sT0}")
            a(f"s_cmp_eq_u32 s{sTI}, 7\ns_cselect_b32 s{sIt}, 1, 0")
        a(f"s_add_u32 m0, s{sInc}, {slot[it] * GSL}\ns_call_b64 s[{sLnk}:{sLnk+1}], LL_{it[0]}")
        q.extend([it] * 4)

    def wait_for(names):
        last = max(i for i, x in enumerate(q) if x in names)
        a(f"s_waitcnt vmcnt({min(63, len(q) - 1 - last)})")

    sC640 = sT4
    first = [it for it in items if when[it] == -1]
    for i, it in enumerate(first):
        if i == TLB_AT:
            touch_pages(a)
        issue(it)
    stamp(a, 14)
    vPf = 234
    bars = stage_barriers()
    stamp(a, 15)
    for bi, bar in enumerate(bars):
        upto = bars[bi + 1] - 1 if bi + 1 < len(bars) else 19
        wait_for([("X", bar), ("W", upto)] + (["cnt"] if bar == 11 else []))
        if bar == 11:
            a.c("all counters must have been cleared before the first one is used")
            a(f"v_cmp_gt_u32 vcc, 8, v{vCnt}\ns_cbranch_vccz LL_cnt_ok")
            poll(a, [(vP + 5, f"s[{sDbg}:{sDbg+3}]", "0")], 8, vPS)
            a("LL_cnt_ok:")
        a("s_barrier")
        if bar not in (2, 3, 4, 5, 6, 7, 8, 9): stamp(a, 8 + min(bar, 15))
        if bar == 11:
            attn_scalars(a)
            attn_vectors(a)
            repack_setup(a)
            a.c("wave 0 publishes the phase-a tile once its four storing waves have reported")
            a(f"""
            v_mov_b32 v{vP+2}, {LCNT0}
            s_cmp_lg_u32 s{sJ}, 0
            s_cbranch_scc1 LL_pub
            s_mov_b32 s{sSpin}, {SPIN * 8}
            LL_try:
            ds_read_b32 v{vP}, v{vP+2}
            s_waitcnt lgkmcnt(0)
            v_readfirstlane_b32 s{sT0}, v{vP}
            s_cmp_eq_u32 s{sT0}, 16
            s_cbranch_scc1 LL_try_go
            s_sub_u32 s{sSpin}, s{sSpin}, 1
            s_cbranch_scc0 LL_try
            LL_try_go:
            s_call_b64 s[{sLnk}:{sLnk+1}], LG_publish
            """)
            stamp(a, 27)
            a("LL_pub:")
        a(f"s_mov_b32 s{sC640}, 640")
        for it in items:
            if when[it] == bar:
                issue(it)
        if bar == 11:
            lead_prepare(a)
        if bar == 10:
            a(f"v_mov_b32 v{vP}, 0\nv_mov_b32 v{vP+2}, {LCNT0}\nds_write_b32 v{vP+2}, v{vP}\ns_waitcnt lgkmcnt(0)")
        if bar + 10 == TLB_AT:
            touch_pages(a)
        if bar == PF_BAR:
            a.c("one load per 128-B line of the phase-b columns of five weight rows brings them on chip ahead of use")
            a(f"""
            s_lshr_b32 s{sT0}, s2, 3
            s_lshl_b32 s{sT0}, s{sT0}, 2
            s_and_b32 s{sT1}, s2, 3
            s_add_u32 s{sT0}, s{sT0}, s{sT1}
            s_mul_i32 s{sT0}, s{sT0}, {5 * 3840}
            s_mul_i32 s{sT1}, s{sJ}, 19
            v_add_u32 v8, s{sT1}, v0
            v_min_u32 v8, 74, v8
            v_mul_u32_u24 v9, 205, v8
            v_lshrrev_b32 v9, 10, v9
            v_mul_u32_u24 v9, 5, v9
            v_add3_u32 v9, v9, v8, 5
            v_lshlrev_b32 v{vPf}, 7, v9
            s_mov_b64 exec, 0x7ffff
            buffer_load_dword v{vPS}, v{vPf}, s[{sWt}:{sWt+3}], s{sT0} offen
            s_mov_b64 exec, -1
            """)
            q.append("pf")
        if bar == 8:
            common_setup(a)
            a(f"v_lshlrev_b32 v{vP+5}, 2, v0\nv_or_b32 v{vP+5}, 128, v{vP+5}")
            a(f"buffer_load_dword v{vCnt}, v{vP+5}, s[{sDbg}:{sDbg+3}], 0 offen sc1")
            q.append("cnt")
    a("s_branch LA_lead")


vKA, vVA, vT0, vT1 = 1, 2, 3, 14
Qm = [4, 8]
Qe = 12
vL16 = 15
Km = [16, 20]
Ke = 24
Vb = [[28, 32], [36, 40]]
vVbase, vVflag, vE16, vVG = 44, 45, 46, 47
NM = 48
SB = [80, 112]
OA = [144, 160]
vD = 176
vP = 182
vPS = 188
vVB2 = 248
vIdx, vK16 = 192, 193
NVGPR = 256


def mfma32(d, a_, b, c):
    return f"v_mfma_f32_32x32x16_bf16 {vr(d,16)}, {vr(a_,4)}, {vr(b,4)}, {c}"


def mfma2b(d, ke_tile, c):
    return (f"v_mfma_f32_32x32x4_2b_bf16 {vr(d,32)}, {vr(Ke + 2 * (ke_tile >> 1), 2)}, {vr(Qe,2)}, {c}"
            f" cbsz:1 abid:{ke_tile & 1}")


def pv(o, v, p):
    return f"v_smfmac_f32_32x32x32_bf16 {vr(o,16)}, {vr(v,4)}, {vr(p,8)}, v{vIdx}"


POS = [2, 6, 14, 18, 22, 26, 30]


def tile_iter(a, ii, half=1):
    par = ii & 1
    X, Y = SB[par], SB[par ^ 1]
    Vc, Vn = Vb[par], Vb[par ^ 1]
    Kc, Kn = Km[par ^ 1], Km[par]
    t1 = (ii + 1) % 4
    t2 = (ii + 2) % 4
    kch = CH if (half == 0) == (ii >= 2) else 0
    rv0 = f"ds_read_b128 {vr(Vn[0],4)}, v{vVA} offset:{t1 * 1280}"
    rv1 = f"ds_read_b128 {vr(Vn[1],4)}, v{vVA} offset:{t1 * 1280 + 640}"
    rk = f"ds_read_b128 {vr(Kn,4)}, v{vKA} offset:{kch + 2048 + t2 * 1024}"
    rke = f"ds_read2st64_b64 {vr(Ke,4)}, v{vKA} offset0:{kch // 512} offset1:{kch // 512 + 2}"
    g = [[pv(OA[1], Vn[1], Y + 24), rv0],
         [mfma2b(Y, t1, 0 if 'c0' in OPT else vr(NM, 32))],
         [pv(OA[0], Vc[0], X), rv1],
         [pv(OA[0], Vc[1], X + 8), rk],
         [mfma32(Y, Kc, Qm[0], vr(Y, 16))],
         [mfma32(Y + 16, Kc, Qm[1], vr(Y + 16, 16))],
         [pv(OA[1], Vc[0], X + 16), "s_waitcnt lgkmcnt(0)"]]
    late = []
    if ii == 0:
        g[4].append(f"s_add_u32 s{sNext}, s{sNext}, {CH}")
    if ii == 2:
        g[4].append(rke)
        late = [f"v_mad_u32_u24 v{vVA}, v{vVflag}, s{sNext}, v{vVbase}"]
    if half == 0:
        if ii == 1:
            g[4].append(f"s_cmp_eq_u32 s{sM}, s{sRp}")
            g[5] += ["s_cbranch_scc1 LR_step", "LA_bar:"]
        if ii == 2 and 'noprio' not in OPT:
            g[5].append("s_setprio 0")
        if ii == 3:
            g[4].append(f"s_bitcmp1_b32 s{sMend}, s{sM}")
            g[6][1] = "s_waitcnt vmcnt(0) lgkmcnt(0)"
            g[6].append("s_barrier")
            if common.STAMP and 'cyc' in OPT:
                g[6] += [f"s_memtime s[{STAMP_S+28}:{STAMP_S+29}]"]
            if 'noprio' not in OPT:
                g[6].append("s_setprio 1")
            g[6] += ["s_cbranch_scc1 LA_refill", "LA_back:"]
    else:
        if ii == 0:
            g[5].append(f"s_cmp_eq_u32 s{sNext}, s{sRe}")
            if common.STAMP and 'cyc' in OPT:
                g[6] += [f"s_mov_b32 m0, s{sM}", "s_nop 0", f"s_movreld_b32 s{STAMP_S+8}, s{STAMP_S+28}"]
        if ii == 1:
            g[4].append(f"s_cselect_b32 s{sNext}, s{sRb}, s{sNext}")
            g[5].append(f"s_add_u32 s{sM}, s{sM}, 1")
            late = [f"v_add_u32 v{vKA}, s{sNext}, v{vK16}"]
        if ii == 3:
            g[5].append(f"s_sub_u32 s{sRem}, s{sRem}, 1")
    assert POS[2] >= 10 and POS[3] >= 18 and POS[6] >= 26 and POS[0] >= 2
    assert (POS[4] - POS[1]) + 4 >= 18 and (32 - POS[4]) + 3 >= 12
    ins = dict(zip(POS, g))
    for p in range(32):
        for x in ins.get(p, []):
            a(x)
        a(f"v_exp_f32 v{X+p}, v{X+p}")
        if p == 30:
            for x in late:
                a(x)


def rowmax(a, X, out0, out1):
    for base, o in ((X, out0), (X + 16, out1)):
        a(f"v_max3_f32 v{o}, v{base}, v{base+1}, v{base+2}")
        for r in range(3, 15, 2):
            a(f"v_max3_f32 v{o}, v{o}, v{base+r}, v{base+r+1}")
        a(f"v_max_f32 v{o}, v{o}, v{base+15}")


def cross_half_max(a, r, tmp):
    a(f"v_mov_b32 v{tmp}, v{r}\ns_nop 1\nv_permlane32_swap_b32 v{tmp}, v{r}\ns_nop 1\nv_max_f32 v{r}, v{r}, v{tmp}")


def fill_nm(a, m0, m1):
    for r in range(16):
        a(f"v_sub_f32 v{NM+r}, 0, v{m0}")
    for r in range(16):
        a(f"v_sub_f32 v{NM+16+r}, 0, v{m1}")


def attn_scalars(a):
    a.c("head offsets: main octs start at (5g+1)>>1; the ext quad shares an oct with the neighbouring head;")
    a.c("arrivals expected per kind: 16 token blocks x number of 64-column units that hold the head")
    a(f"""
    s_mul_i32 s{sOm}, s{sHead}, 5
    s_add_u32 s{sOm}, s{sOm}, 1
    s_lshr_b32 s{sOm}, s{sOm}, 1
    s_lshl_b32 s{sOm}, s{sOm}, 9
    s_and_b32 s{sT0}, s{sHead}, 1
    s_mov_b32 s{sT1}, 1024
    s_cselect_b32 s{sT1}, {(-512 + 8) & 0xffffffff}, s{sT1}
    s_add_u32 s{sExt}, s{sOm}, s{sT1}
    s_min_u32 s{sT0}, s{sOm}, s{sExt}
    s_add_u32 s{sT2}, s{sOm}, 512
    s_max_u32 s{sT1}, s{sExt}, s{sT2}
    s_lshr_b32 s{sT0}, s{sT0}, 12
    s_lshr_b32 s{sT1}, s{sT1}, 12
    s_cmp_eq_u32 s{sT0}, s{sT1}
    s_cselect_b32 s{sExp}, 16, 32
    """)


def attn_vectors(a):
    a(f"""
    s_and_b32 s{sT0}, s{sHead}, 1
    v_lshlrev_b32 v{vL16}, 4, v0
    v_lshrrev_b32 v{vT0}, 5, v0
    v_mul_u32_u24 v{vT1}, {TILE}, v{vT0}
    v_and_b32 v{vP}, 31, v0
    v_lshl_add_u32 v{vE16}, v{vP}, 4, v{vT1}
    """)
    a.c("V rows: 0..15 main dims, 16..19 ext dims, 20 and 24 ones, the others zero (address past the allocation)")
    a(f"""
    s_lshl_b32 s{sT0}, s{sT0}, 2
    v_and_b32 v{vP+1}, 3, v0
    v_and_b32 v{vP+2}, 4, v0
    v_lshl_add_u32 v{vP+1}, v{vP+2}, 1, v{vP+1}
    v_and_b32 v{vP+2}, 8, v0
    v_lshrrev_b32 v{vP+2}, 1, v{vP+2}
    v_add3_u32 v{vP+1}, v{vP+1}, v{vP+2}, s{sT0}
    s_lshl_b32 s{sT0}, s{sT0}, 2
    v_subrev_u32 v{vP+2}, s{sT0}, v{vP}
    v_cmp_gt_u32 vcc, 16, v{vP}
    v_mul_u32_u24 v{vT1}, 10240, v{vT0}
    v_mul_u32_u24 v{vT0}, 320, v{vT0}
    v_cndmask_b32 v{vP+1}, v{vP+2}, v{vP+1}, vcc
    v_lshlrev_b32 v{vP+1}, 4, v{vP+1}
    v_add_u32 v{vVG}, v{vP+1}, v{vT1}
    v_add_u32 v{vVbase}, v{vP+1}, v{vT0}
    v_add_u32 v{vVbase}, 6144, v{vVbase}
    v_cmp_gt_u32 vcc, 20, v{vP}
    v_mov_b32 v{vP+1}, 0x100000
    v_mov_b32 v{vP+2}, {ONES[0]}
    v_cndmask_b32 v{vVflag}, 0, 1, vcc
    v_cndmask_b32 v{vVbase}, v{vP+1}, v{vVbase}, vcc
    v_cmp_eq_u32 vcc, 20, v{vP}
    v_cmp_eq_u32 s[{sT3}:{sT4}], 24, v{vP}
    s_or_b64 vcc, vcc, s[{sT3}:{sT4}]
    v_mov_b32 v{vP+1}, {ONES[1]}
    s_nop 0
    v_cndmask_b32 v{vVB2}, v{vVbase}, v{vP+1}, vcc
    v_cndmask_b32 v{vVbase}, v{vVbase}, v{vP+2}, vcc
    """)
    a.c("DMA source offsets: even waves load K pieces, odd waves V pieces")
    a(f"""
    s_and_b32 s{sT0}, s{sJ}, 1
    s_cbranch_scc1 LA_dv
    v_add_u32 v{vD}, s{sExt}, v{vE16}
    v_add_u32 v{vD+1}, {2 * TILE}, v{vD}
    v_add_u32 v{vD+2}, s{sOm}, v{vL16}
    v_add_u32 v{vD+3}, {TILE}, v{vD+2}
    v_add_u32 v{vD+4}, {TILE}, v{vD+3}
    v_add_u32 v{vD+5}, {TILE}, v{vD+4}
    s_branch LA_dd
    LA_dv:
    s_mul_i32 s{sT0}, s{sHead}, 320
    s_add_u32 s{sT0}, s{sT0}, {IMG}
    """)
    for p in range(5):
        a(f"""
        v_add_u32 v{vP}, {64 * p}, v0
        v_mul_u32_u24 v{vP+1}, 3277, v{vP}
        v_lshrrev_b32 v{vP+1}, 16, v{vP+1}
        v_mul_u32_u24 v{vP+2}, 20, v{vP+1}
        v_sub_u32 v{vP+2}, v{vP}, v{vP+2}
        v_mul_u32_u24 v{vP+1}, 10240, v{vP+1}
        v_lshl_add_u32 v{vP+1}, v{vP+2}, 4, v{vP+1}
        v_add_u32 v{vD+p}, s{sT0}, v{vP+1}
        """)
    a(f"""
    v_mov_b32 v{vD+5}, v{vD+4}
    LA_dd:
    v_lshlrev_b32 v{vP+3}, 7, v0
    v_mov_b32 v{vP+4}, 0
    """)


def vectors_put(a):
    a(f"""
    s_and_b32 s{sT0}, s{sJ}, 1
    s_lshl_b32 s{sT0}, s{sT0}, 12
    s_add_u32 s{sT0}, s{sT0}, {XFER}
    v_add_u32 v{vT0}, s{sT0}, v{vL16}
    v_mov_b32 v20, v{vVB2}
    v_mov_b32 v21, v{vVflag}
    v_mov_b32 v22, v{vE16}
    v_mov_b32 v23, v{vVG}
    ds_write_b128 v{vT0}, v[20:23]
    ds_write_b128 v{vT0}, {vr(vD,4)} offset:1024
    ds_write_b64 v{vT0}, {vr(vD+4,2)} offset:2048
    """)


def vectors_get(a):
    lane_id(a, 0)
    a(f"""
    s_and_b32 s{sT0}, s{sJ}, 1
    s_lshl_b32 s{sT0}, s{sT0}, 12
    s_add_u32 s{sT0}, s{sT0}, {XFER}
    v_lshlrev_b32 v{vL16}, 4, v0
    v_add_u32 v{vT0}, s{sT0}, v{vL16}
    ds_read_b128 {vr(vVbase,4)}, v{vT0}
    ds_read_b128 {vr(vD,4)}, v{vT0} offset:1024
    ds_read_b64 {vr(vD+4,2)}, v{vT0} offset:2048
    v_lshlrev_b32 v{vP+3}, 7, v0
    """)
    attn_scalars(a)
    a("s_waitcnt lgkmcnt(0)")


def dma_sub(a):
    a(f"""
    LA_dma:
    s_add_u32 s{sT2}, s{sT1}, s{sQB if 'kvrot' in OPT else sHead}
    s_and_b32 s{sT2}, s{sT2}, 7
    s_lshl_b32 s{sT2}, s{sT2}, 1
    s_lshr_b32 s{sT3}, s{sJ}, 1
    s_add_u32 s{sT2}, s{sT2}, s{sT3}
    s_mul_i32 s{sT2}, s{sT2}, {4 * TILE}
    s_lshl_b32 s{sT4}, s{sJ}, 1
    s_and_b32 s{sT4}, s{sT4}, 2
    s_lshr_b32 s{sT4}, 20480, s{sT4}
    s_mul_i32 s{sT4}, s{sT4}, s{sT0}
    s_add_u32 s{sT2}, s{sT2}, s{sT4}
    s_add_u32 s{sT2}, s{sT2}, s{sImg}
    s_add_u32 s{sT2}, s{sT2}, {IMG}
    s_sub_u32 s{sT1}, s{sT1}, s{sT0}
    s_add_u32 s{sT1}, s{sT1}, 1
    s_mul_i32 s{sT4}, s{sT1}, 43
    s_lshr_b32 s{sT4}, s{sT4}, 7
    s_mul_i32 s{sT4}, s{sT4}, 3
    s_sub_u32 s{sT1}, s{sT1}, s{sT4}
    s_lshl_b32 s{sT1}, s{sT1}, 1
    s_add_u32 s{sT1}, s{sT1}, s{sT3}
    s_mul_i32 s{sT1}, s{sT1}, {CH}
    s_mul_i32 s{sT4}, s{sT0}, {RA - RB}
    s_sub_u32 s{sT1}, s{sT1}, s{sT4}
    s_add_u32 s{sT1}, s{sT1}, {RA}
    s_and_b32 s{sT3}, s{sJ}, 1
    s_mul_i32 s{sT4}, s{sT3}, 6144
    s_add_u32 m0, s{sT1}, s{sT4}
    s_nop 0
    """)
    for p in range(5):
        a(f"buffer_load_dwordx4 v{vD+p}, {WSR()}, s{sT2} offen sc1 lds")
        a("s_add_u32 m0, m0, 1024")
        a("s_nop 0" if p < 4 else f"s_cmp_eq_u32 s{sT3}, 1")
    a(f"""
    s_cbranch_scc1 LA_dma_ret
    buffer_load_dwordx4 v{vD+5}, {WSR()}, s{sT2} offen sc1 lds
    LA_dma_ret:
    s_setpc_b64 s[{sLnk}:{sLnk+1}]
    """)


def call_dma(a, b, blk):
    a(f"s_mov_b32 s{sT0}, {b}\ns_mov_b32 s{sT1}, {blk}\ns_call_b64 s[{sLnk}:{sLnk+1}], LA_dma")


def poll_f1(a):
    a(f"""
    s_lshl_b32 s{sT0}, s{sBr}, 5
    s_add_u32 s{sT0}, s{sT0}, s{sHead}
    s_lshl_b32 s{sT0}, s{sT0}, 9
    s_add_u32 s{sT0}, s{sT0}, {WS_C1}
    """)
    poll_counter(a, vP + 3, f"s{sT0}", f"s{sExp}", 7)


def load_q(a):
    a(f"""
    s_lshl_b32 s{sT0}, s{sQB}, 2
    s_add_u32 s{sT0}, s{sT0}, s{sJ}
    s_mul_i32 s{sT0}, s{sT0}, {2 * TILE}
    s_add_u32 s{sT0}, s{sT0}, s{sImg}
    s_add_u32 s{sT1}, s{sT0}, s{sOm}
    s_add_u32 s{sT2}, s{sT1}, {TILE}
    s_add_u32 s{sT0}, s{sT0}, s{sExt}
    buffer_load_dwordx4 {vr(Qm[0],4)}, v{vL16}, {WSR()}, s{sT1} offen sc1
    buffer_load_dwordx4 {vr(Qm[1],4)}, v{vL16}, {WSR()}, s{sT2} offen sc1
    buffer_load_dwordx2 {vr(Qe,2)}, v{vE16}, {WSR()}, s{sT0} offen sc1
    """)


def scale_q(a, nyounger):
    a(f"s_mov_b32 s4, {hex(f32bits(QSCALE))}\ns_mov_b32 s5, s4\ns_waitcnt vmcnt({nyounger})")
    for r in range(Qm[0], Qe + 2):
        a(f"""
        v_lshlrev_b32 v{vPS+2}, 16, v{r}
        v_and_b32 v{vPS+3}, 0xffff0000, v{r}
        v_pk_mul_f32 {vr(vPS+2,2)}, {vr(vPS+2,2)}, s[4:5]
        v_cvt_pk_bf16_f32 v{r}, v{vPS+2}, v{vPS+3}
        """)


def attn_zero(a):
    Z = Vb[1][1]
    for r in (Z, Z + 2, SB[1] + 24, SB[1] + 26, SB[1] + 28, SB[1] + 30):
        a(f"v_pk_mov_b32 {vr(r,2)}, 0, 0")
    a(f"v_mov_b32 v{vP}, 0xbf800000\nv_mov_b32 v{vP+1}, 0\nv_mov_b32 v{vPS+1}, 0")
    a(f"v_mfma_f32_32x32x4_2b_bf16 {vr(OA[0],32)}, {vr(Z,2)}, {vr(Z,2)}, 0")
    a(f"""
    s_add_u32 s{sRe}, s{sRb}, {RING}
    s_mov_b32 s{sRem}, 7
    v_mov_b32 v{vIdx}, 0xdddddddd
    v_lshrrev_b32 v{vK16}, 1, v{vL16}
    v_xor_b32 v{vK16}, v{vK16}, v{vL16}
    v_and_b32 v{vK16}, 64, v{vK16}
    v_mul_u32_u24 v{vK16}, 3, v{vK16}
    v_xor_b32 v{vK16}, v{vK16}, v{vL16}
    v_add_u32 v{vKA}, s{sNext}, v{vK16}
    v_mad_u32_u24 v{vVA}, v{vVflag}, s{sNext}, v{vVbase}
    """)


DELAY_AT, DELAY = 0, 0


def delay(a, at):
    if DELAY_AT == at and DELAY:
        a(f"s_memrealtime s[4:5]\ns_waitcnt lgkmcnt(0)\ns_add_u32 s6, s4, {DELAY}\nLD_{at}:\ns_sleep 1\ns_memrealtime s[4:5]\ns_waitcnt lgkmcnt(0)\ns_cmp_lt_u32 s4, s6\ns_cbranch_scc1 LD_{at}")


def attention(a):
    X = SB[0]
    delay(a, 1)
    a("LA_start:")
    stamp_cyc(a, 24)
    a(f"""
    ds_read_b128 {vr(Km[0],4)}, v{vKA} offset:2048
    ds_read2st64_b64 {vr(Ke,4)}, v{vKA} offset0:0 offset1:2
    ds_read_b128 {vr(Km[1],4)}, v{vKA} offset:3072
    ds_read_b128 {vr(Vb[0][0],4)}, v{vVA}
    ds_read_b128 {vr(Vb[0][1],4)}, v{vVA} offset:640
    s_waitcnt lgkmcnt(4)
    """)
    a(mfma32(X, Km[0], Qm[0], 0))
    a(mfma32(X + 16, Km[0], Qm[1], 0))
    a("s_nop 8\ns_waitcnt lgkmcnt(3)")
    a(mfma2b(X, 0, vr(X, 32)))
    a("s_nop 15\ns_nop 3")
    a.c("softmax shift: row max over the first key tile, cut to bf16; the epilogue checks that it was safe.")
    a.c("A rank-1 MFMA (-1 x shift) subtracts it from the scores and spreads it over the C operand of the loop")
    rowmax(a, X, vT0, vT1)
    a(f"""
    s_nop 1
    v_permlane32_swap_b32 v{vT0}, v{vT1}
    s_nop 1
    v_max_f32 v{vT0}, v{vT0}, v{vT1}
    v_and_b32 v{vPS}, {0 if 'c0' in OPT else '0xffff0000'}, v{vT0}
    s_nop 1
    v_mfma_f32_32x32x4_2b_bf16 {vr(X,32)}, {vr(vP,2)}, {vr(vPS,2)}, {vr(X,32)}
    v_mfma_f32_32x32x4_2b_bf16 {vr(NM,32)}, {vr(vP,2)}, {vr(vPS,2)}, 0
    s_nop 15
    s_nop 0
    s_setprio {0 if 'noprio' in OPT else 1}
    s_waitcnt lgkmcnt(0)
    """)
    if LOFF >= 0:
        a(f"s_branch LA_loop\n.p2align 8\n.fill {LOFF // 4}, 4, 0xbf800000\nLA_loop:")
    else:
        a(".p2align 6\nLA_loop:")
    for half in range(2):
        for ii in range(4):
            tile_iter(a, ii, half)
    a("s_cbranch_scc0 LA_loop\ns_nop 0")
    a(pv(OA[1], Vb[1][1], SB[1] + 24))
    if 'alow' in OPT:
        a("s_setprio 0")
    a(f"s_cmp_eq_u32 s{sRole}, 0\ns_cbranch_scc1 LA_fin2\ns_setprio 2")
    a.c("announce that the results are about to be stored; readers then wait for the markers to disappear")
    count_in(a, sOc, vP, vP + 1)
    a("LA_fin2:")
    stamp(a, 4)
    stamp_cyc(a, 31)
    N = SB[0]
    rc = SB[1]
    tm = rc + 4

    def norm(u):
        O, P = OA[u], N + 12 * u
        for r in range(0, 12, 2):
            a(f"v_pk_mul_f32 {vr(P+r,2)}, {vr(O+r,2)}, {vr(rc+2*u,2)} op_sel_hi:[1,0]")
        for j in range(6):
            a(f"v_cvt_pk_bf16_f32 v{P+j}, v{P+2*j}, v{P+2*j+1}")
    a(f"""
    s_mov_b32 s{sRem}, 0
    LA_epi:
    v_cmp_lt_u32 vcc, 31, v0
    s_add_u32 s{sT0}, s{sOb}, s{sOm}
    s_add_u32 s{sT1}, s{sT0}, {TILE}
    v_cndmask_b32 v{vT0}, v{OA[0]+12}, v{OA[0]+8}, vcc
    v_rcp_f32 v{rc}, v{vT0}
    v_pk_add_f32 {vr(tm,2)}, {vr(OA[0],2)}, {vr(OA[0]+2,2)}
    """)
    a.c("safety check of the shift before anything is stored: row sums inside [2^-30, 2^30], finite accumulators")
    for r in range(4, 12, 2):
        a(f"v_pk_add_f32 {vr(tm,2)}, {vr(tm,2)}, {vr(OA[0]+r,2)}")
    norm(0)
    a(f"v_cndmask_b32 v{vT1}, v{OA[1]+12}, v{OA[1]+8}, vcc\nv_rcp_f32 v{rc+2}, v{vT1}")
    for r in range(0, 12, 2):
        a(f"v_pk_add_f32 {vr(tm,2)}, {vr(tm,2)}, {vr(OA[1]+r,2)}")
    a(f"""
    v_add_f32 v{tm}, v{tm}, v{tm+1}
    v_add_f32 v{tm+1}, v{vT0}, v{vT1}
    v_fma_f32 v{tm}, 0, v{tm}, v{tm+1}
    v_min_f32 v{tm+1}, v{vT0}, v{vT1}
    v_cmp_gt_f32 vcc, {hex(f32bits(2.0**30))}, v{tm}
    s_mov_b64 s[4:5], vcc
    v_cmp_lt_f32 vcc, {hex(f32bits(2.0**-30))}, v{tm+1}
    """)
    for j in range(4):
        a(f"v_min_u32 v{N+j}, -2, v{N+j}")
    a(f"""
    s_and_b64 s[4:5], s[4:5], vcc
    s_cmp_eq_u64 s[4:5], -1
    s_cselect_b32 s{sT3}, 1, s{sRem}
    s_cmp_eq_u32 s{sT3}, 0
    s_cbranch_scc1 LA_slow
    buffer_store_dwordx4 {vr(N,4)}, v{vL16}, {WSR()}, s{sT0} offen sc1
    """)
    norm(1)
    for j in range(4):
        a(f"v_min_u32 v{N+12+j}, -2, v{N+12+j}")
    a(f"""
    buffer_store_dwordx4 {vr(N+12,4)}, v{vL16}, {WSR()}, s{sT1} offen sc1
    v_permlane32_swap_b32 v{N+4}, v{N+16}
    v_permlane32_swap_b32 v{N+5}, v{N+17}
    s_add_u32 s{sT2}, s{sOb}, s{sExt}
    v_min_u32 v{N+4}, -2, v{N+4}
    v_min_u32 v{N+5}, -2, v{N+5}
    buffer_store_dwordx2 {vr(N+4,2)}, v{vE16}, {WSR()}, s{sT2} offen sc1
    """)


def o_base(a):
    a(f"""
    s_lshl_b32 s{sT0}, s{sQB}, 2
    s_add_u32 s{sT0}, s{sT0}, s{sJ}
    s_mul_i32 s{sOb}, s{sT0}, {2 * TILE}
    s_add_u32 s{sOb}, s{sOb}, s{sImg}
    s_add_u32 s{sOb}, s{sOb}, {3 * IMG}
    """)
    a(f"s_lshr_b32 s{sT1}, s{sHead}, 3\ns_max_u32 s{sT1}, s{sT1}, 1\ns_sub_u32 s{sT1}, s{sT1}, 1")
    c3_off(a, sOc, sT0, sT1)


def o_mark(a):
    o_base(a)
    a(f"""
    s_add_u32 s{sT0}, s{sOb}, s{sOm}
    s_add_u32 s{sT1}, s{sT0}, {TILE}
    s_add_u32 s{sT2}, s{sOb}, s{sExt}
    buffer_store_dwordx4 v[20:23], v{vL16}, {WSR()}, s{sT0} offen sc1
    buffer_store_dwordx4 v[20:23], v{vL16}, {WSR()}, s{sT1} offen sc1
    buffer_store_dwordx2 v[20:21], v{vE16}, {WSR()}, s{sT2} offen sc1
    """)


def refill(a):
    a.c("role-B waves refill both rings: after barrier m, A block m+2 and B block m-SK+2")
    a(f"""
    LA_refill:
    s_cmp_gt_u32 s{sM}, 5
    s_cbranch_scc1 LA_ev_b
    s_mov_b32 s{sT0}, 0
    s_add_u32 s{sT1}, s{sM}, 2
    s_call_b64 s[{sLnk}:{sLnk+1}], LA_dma
    LA_ev_b:
    s_sub_u32 s{sT1}, s{sM}, {SK - 2}
    s_cmp_lt_u32 s{sT1}, 3
    s_cbranch_scc1 LA_back
    s_mov_b32 s{sT0}, 1
    s_call_b64 s[{sLnk}:{sLnk+1}], LA_dma
    s_branch LA_back
    """)


def slow_path(a):
    X = SB[0]
    m0, m1, t0, t1 = SB[1], SB[1] + 1, SB[1] + 2, SB[1] + 3

    def kloads(t):
        a(f"buffer_load_dwordx4 {vr(Km[0],4)}, v{vL16}, {WSR()}, s{sT1} offen sc1")
        if t == 0:
            a(f"buffer_load_dwordx2 {vr(Ke,2)}, v{vE16}, {WSR()}, s{sT2} offen sc1")
            a(f"s_add_u32 s{sT2}, s{sT2}, {2 * TILE}")
        a(f"s_add_u32 s{sT1}, s{sT1}, {TILE}")

    def kbase():
        a(f"""
        s_add_u32 s{sT0}, s{sImg}, {IMG}
        s_add_u32 s{sT1}, s{sT0}, s{sOm}
        s_add_u32 s{sT2}, s{sT0}, s{sExt}
        s_mov_b32 s{sRem}, 0
        """)
    a(f"LA_slow:\nv_mov_b32 v{m0}, 0xff800000\nv_mov_b32 v{m1}, 0xff800000")
    kbase()
    a("LA_slow_max:")
    for t in range(2):
        kloads(t)
        a("s_waitcnt vmcnt(0)")
        a(mfma32(X, Km[0], Qm[0], 0))
        a(mfma32(X + 16, Km[0], Qm[1], 0))
        a("s_nop 9")
        a(mfma2b(X, t, vr(X, 32)))
        a("s_nop 15\ns_nop 3")
        rowmax(a, X, t0, t1)
        a(f"v_max_f32 v{m0}, v{m0}, v{t0}\nv_max_f32 v{m1}, v{m1}, v{t1}")
    a(f"s_add_u32 s{sRem}, s{sRem}, 1\ns_cmp_lt_u32 s{sRem}, 32\ns_cbranch_scc1 LA_slow_max")
    cross_half_max(a, m0, t0)
    cross_half_max(a, m1, t0)
    fill_nm(a, m0, m1)
    for r in range(32):
        a(f"v_mov_b32 v{OA[0]+r}, 0")
    for r in range(8):
        a(f"v_mov_b32 v{Vb[0][0]+r}, 0x3f803f80")
    kbase()
    a(f"""
    s_mul_i32 s{sT3}, s{sHead}, 320
    s_add_u32 s{sT3}, s{sT3}, s{sT0}
    s_add_u32 s{sT3}, s{sT3}, {IMG}
    LA_slow_pv:
    """)
    for t in range(2):
        kloads(t)
        a(f"""
        s_add_u32 s{sT4}, s{sT3}, 20480
        s_mov_b32 exec_lo, 0xfffff
        s_mov_b32 exec_hi, 0xfffff
        buffer_load_dwordx4 {vr(Vb[0][0],4)}, v{vVG}, {WSR()}, s{sT3} offen sc1
        buffer_load_dwordx4 {vr(Vb[0][1],4)}, v{vVG}, {WSR()}, s{sT4} offen sc1
        s_mov_b64 exec, -1
        s_add_u32 s{sT3}, s{sT3}, {TILE}
        s_waitcnt vmcnt(2)
        """)
        a(mfma32(X, Km[0], Qm[0], vr(NM, 16)))
        a(mfma32(X + 16, Km[0], Qm[1], vr(NM + 16, 16)))
        a("s_nop 9")
        a(mfma2b(X, t, vr(X, 32)))
        a("s_nop 15\ns_nop 3")
        for r in range(32):
            a(f"v_exp_f32 v{X+r}, v{X+r}")
        a("s_nop 0")
        for j in range(16):
            a(f"v_cvt_pk_bf16_f32 v{X + 8*(j//4) + j%4}, v{X+2*j}, v{X+2*j+1}")
        a("s_waitcnt vmcnt(0)\ns_nop 1")
        a(mfma32(OA[0], Vb[0][0], X, vr(OA[0], 16)))
        a(mfma32(OA[0], Vb[0][1], X + 8, vr(OA[0], 16)))
        a(mfma32(OA[1], Vb[0][0], X + 16, vr(OA[1], 16)))
        a(mfma32(OA[1], Vb[0][1], X + 24, vr(OA[1], 16)))
    a(f"""
    s_add_u32 s{sRem}, s{sRem}, 1
    s_cmp_lt_u32 s{sRem}, 32
    s_cbranch_scc1 LA_slow_pv
    s_nop 15
    s_mov_b32 s{sRem}, 1
    s_branch LA_epi
    """)


pWF = [16, 56]
pACC = 96
pACL = 196
pOF = 136
pWA, pOA = 2, 3


def c3_off(a, dst, t64, part):
    a(f"""
    s_lshl_b32 s{dst}, s{sBr}, 5
    s_add_u32 s{dst}, s{dst}, s{t64}
    s_mul_i32 s{dst}, s{dst}, 3
    s_add_u32 s{dst}, s{dst}, s{part}
    s_lshl_b32 s{dst}, s{dst}, 7
    s_add_u32 s{dst}, s{dst}, {WS_C3}
    """)


def wo_dma(a, k0, k1, lds0):
    _lbl[0] += 1
    L = f"LP_wd{_lbl[0]}"
    a(f"""
    s_and_b32 s{sT0}, s{sHead}, 3
    s_lshl_b32 s{sT1}, s{sBr}, 2
    s_add_u32 s{sT0}, s{sT0}, s{sT1}
    s_mul_i32 s{sT0}, s{sT0}, {WO_SLAB}
    s_lshl_b32 s{sT1}, s{sJ}, 10
    s_add_u32 s{sT0}, s{sT0}, s{sT1}
    s_add_u32 s{sT0}, s{sT0}, {WS_WO + 10240 * k0}
    s_add_u32 s{sT1}, s{sT1}, {lds0}
    {L}:
    s_mov_b32 m0, s{sT1}
    s_add_u32 s{sT1}, s{sT1}, 4096
    buffer_load_dwordx4 v{vL16}, {WSR()}, s{sT0} offen sc1 lds
    s_add_u32 s{sT0}, s{sT0}, 4096
    s_cmp_lt_u32 s{sT1}, {lds0 + 10240 * (k1 - k0)}
    s_cbranch_scc1 {L}
    """)


def o_addr(a):
    a(f"""
    s_lshl_b32 s{sT1}, s{sQB}, 2
    s_lshr_b32 s{sT2}, s{sHead}, 2
    s_add_u32 s{sT1}, s{sT1}, s{sT2}
    """)
    c3_off(a, sFc, sT1, sRole)
    a(f"""
    v_and_b32 v{vP+3}, 15, v0
    s_lshl_b32 s{sT1}, s{sT1}, 1
    s_lshr_b32 s{sT2}, s{sJ}, 1
    s_add_u32 s{sT1}, s{sT1}, s{sT2}
    s_mul_i32 s{sT1}, s{sT1}, {TILE}
    s_add_u32 s{sT1}, s{sT1}, s{sImg}
    s_and_b32 s{sT2}, s{sJ}, 1
    s_lshl_b32 s{sT2}, s{sT2}, 8
    s_add_u32 s{sT1}, s{sT1}, s{sT2}
    s_add_u32 s{sFo}, s{sT1}, {3 * IMG}
    v_lshrrev_b32 v{pOA}, 4, v0
    v_lshlrev_b32 v{pOA}, 9, v{pOA}
    v_lshl_add_u32 v{pOA}, v{vP+3}, 4, v{pOA}
    v_lshlrev_b32 v{vP+5}, 7, v0
    s_mov_b32 s{sF[0]}, s{sFo}
    s_add_u32 s{sF[1]}, s{sFo}, 10240
    """)


sF = [54, 55]


def o_load_sub(a, label, p0):
    a(f"{label}:\ns_mov_b32 s{sT1}, s{sF[p0 // 5]}")
    for i in range(5):
        a(f"buffer_load_dwordx4 {vr(pOF + 4*(p0 + i), 4)}, v{pOA}, {WSR()}, s{sT1} offen offset:{(i & 1) * 2048} sc1")
        if i & 1:
            a(f"s_add_u32 s{sT1}, s{sT1}, 4096")
    a(f"s_setpc_b64 s[{sLnk}:{sLnk+1}]")


def o_checked(a, label, p0, counted):
    a(f"s_mov_b32 s{sSpin}, {SPIN}\n{label}_chk:\nv_mov_b32 v{vPS}, 0\nv_mov_b32 v{vPS+1}, 0")
    for i in range(5):
        r = pOF + 4 * (p0 + i)
        if counted:
            a(f"s_waitcnt vmcnt({4 - i})")
        a(f"v_max3_u32 v{vPS}, v{vPS}, v{r}, v{r+1}\nv_max3_u32 v{vPS+1}, v{vPS+1}, v{r+2}, v{r+3}")
    a(f"""
    v_max_u32 v{vPS}, v{vPS}, v{vPS+1}
    v_cmp_eq_u32 vcc, -1, v{vPS}
    s_cbranch_vccz {label}_ok
    s_call_b64 s[{sLnk}:{sLnk+1}], {label}
    s_waitcnt vmcnt(0)
    s_sub_u32 s{sSpin}, s{sSpin}, 1
    s_cbranch_scc0 {label}_chk
    {label}_ok:
    """)


def peek(a, mask):
    a(f"""
    v_mov_b32 v{vPS+2}, 0
    s_mov_b64 exec, {mask}
    buffer_atomic_add v{vPS+2}, v{vP+5}, {WSR()}, s{sFc} offen sc0 sc1
    s_mov_b64 exec, -1
    """)


def ready_mask(a):
    a(f"v_cmp_le_u32 vcc, 8, v{vPS+2}\ns_and_b32 s{sPh}, vcc_lo, 3")


def order_sub(a):
    a(f"""
    LP_order:
    s_and_b32 s{sDone}, s{sPh}, 1
    s_xor_b32 s{sDone}, s{sDone}, 1
    s_mul_i32 s{sT0}, s{sDone}, 10240
    s_add_u32 s{sF[0]}, s{sFo}, s{sT0}
    s_sub_u32 s{sF[1]}, s{sFo}, s{sT0}
    s_add_u32 s{sF[1]}, s{sF[1]}, 10240
    """)


TAB = [8, 9, 10, 11, 12, 13, 14, 15, 52, 53]


sLnkM = 6


def oproj_subs(a, G3, Lo0):
    def wreads(p):
        return [f"ds_read_b128 {vr(pWF[p & 1] + 4*c, 4)}, v{pWA} offset:{c * 1024}" for c in range(10)]
    a(f"LP_pro:\nv_add_u32 v{pWA}, s{TAB[0]}, v{vL16}")
    for r in wreads(0):
        a(r)
    a(f"s_setpc_b64 s[{sLnkM}:{sLnkM+1}]")
    for p in range(10):
        if p % 5 == 0:
            a("LP_lo:" if p else "LP_hi:")
        rd = wreads(p + 1) if p < 9 else []
        if rd:
            a(f"v_add_u32 v{pWA}, s{TAB[p + 1]}, v{vL16}")
        for c in range(10):
            A = (pACL if p >= 5 else pACC) + 4 * c
            a(f"s_waitcnt lgkmcnt({9 if rd else 9 - c})")
            a(f"v_mfma_f32_16x16x32_bf16 {vr(A,4)}, {vr(pOF + 4*p, 4)}, {vr(pWF[p & 1] + 4*c, 4)}, {vr(A,4)}")
            if rd:
                a(rd[c])
            site = 2 * (p - 5) + c // 5
            if p >= 5 and c % 5 == 0 and site < 9:
                a(f"s_cbranch_scc1 LW_{site}\nLW_b{site}:")
            if p == MID_P and c == 9:
                a("s_cbranch_scc1 LP_mid\nLP_midb:")
        if p % 5 == 4:
            a(f"s_setpc_b64 s[{sLnkM}:{sLnkM+1}]")
    for site in range(9):
        a(f"LW_{site}:")
        n = 3 if site < 5 else 2
        if site == 0:
            a(f"s_mul_i32 s{sT1}, s{sJ}, {15 * 1024}\ns_add_u32 s{sT2}, s{sT0}, s{sT1}\ns_add_u32 m0, s{sT1}, {G3}")
        elif site == 5:
            a(f"s_lshl_b32 s{sT1}, s{sJ}, 13\ns_add_u32 s{sT2}, s{sT0}, s{sT1}\ns_add_u32 s{sT2}, s{sT2}, {6 * 10240}\ns_add_u32 m0, s{sT1}, {Lo0}")
        else:
            a(f"s_add_u32 m0, m0, {n * 1024}\ns_add_u32 s{sT2}, s{sT2}, {n * 1024}")
        a("s_cmp_eq_u32 0, 0")
        if site == 7:
            peek(a, 3)
        for i in range(n):
            a(f"buffer_load_dwordx4 v{vL16}, {WSR()}, s{sT2} offen offset:{i * 1024} sc1 lds")
        a(f"s_branch LW_b{site}")
    a("LP_mid:\ns_waitcnt vmcnt(0)")
    ready_mask(a)
    a(f"s_cmp_eq_u32 s{sPh}, 3\ns_cbranch_scc0 LP_midb\ns_call_b64 s[{sLnk}:{sLnk+1}], LP_ldlo\ns_branch LP_midb")


MID_P = 4
WOVEN_PRIO = 0


def set_tab(a, addrs):
    for r, x in zip(TAB, addrs):
        a(f"s_mov_b32 s{r}, {x}")


def out_addr(a):
    a.c("lane n = l & 15 holds columns 8n..8n+7 of a 128-column piece and 2n, 2n+1 of a 32-column piece (tokens 4*(l >> 4) + r);")
    a.c("odd column groups start with the narrow piece, so that the wide one covers whole 128-B lines")
    a(f"""
    s_lshl_b32 s{sT0}, s{sQB}, 2
    s_lshr_b32 s{sT1}, s{sHead}, 2
    s_add_u32 s{sT0}, s{sT0}, s{sT1}
    s_lshl_b32 s{sT0}, s{sT0}, 2
    s_add_u32 s{sT0}, s{sT0}, s{sJ}
    s_mul_i32 s{sT0}, s{sT0}, {16 * 2560}
    s_mul_i32 s{sT1}, s{sBr}, 1280
    s_add_u32 s{sT0}, s{sT0}, s{sT1}
    s_and_b32 s{sT1}, s{sHead}, 3
    s_mul_i32 s{sT1}, s{sT1}, 320
    s_add_u32 s{sXo}, s{sT0}, s{sT1}
    s_add_u32 s{sWo}, s{sXo}, {2 * 2560}
    v_lshrrev_b32 v4, 4, v0
    v_mul_u32_u24 v4, {4 * 2560}, v4
    v_and_b32 v6, 15, v0
    s_and_b32 s{sT0}, s{sHead}, 1
    s_cselect_b32 s{sT0}, 64, 0
    s_cselect_b32 s{sT1}, 0, 256
    v_lshl_add_u32 v5, v6, 2, v4
    v_lshl_add_u32 v4, v6, 4, v4
    v_add_u32 v4, s{sT0}, v4
    v_add_u32 v5, s{sT1}, v5
    """)


def out_store(a):
    OUTMOD = " nt" if 'outnt' in OPT else " sc1"
    for r in range(4):
        if r % 2 == 0:
            for c in range(10):
                a(f"v_pk_add_f32 {vr(pACC + 4*c + r, 2)}, {vr(pACC + 4*c + r, 2)}, {vr(pACL + 4*c + r, 2)}")
        P = 16 + 6 * r
        for j in range(5):
            a(f"v_cvt_pk_bf16_f32 v{P+j}, v{pACC + 8*j + r}, v{pACC + 8*j + 4 + r}")
        so = sXo if r < 2 else sWo
        a(f"buffer_store_dwordx4 {vr(P,4)}, v4, s[{sOut}:{sOut+3}], s{so} offen offset:{(r & 1) * 2560}{OUTMOD}")
        a(f"buffer_store_dword v{P+4}, v5, s[{sOut}:{sOut+3}], s{so} offen offset:{(r & 1) * 2560}{OUTMOD}")


rL, rT, rD, rX, rData = 194, 199, 201, 205, 208


def repack_setup(a):
    x = rX
    for i in range(5):
        a(f"""
        v_add_u32 v{x}, {64 * i}, v0
        v_mul_u32_u24 v{x+1}, 3277, v{x}
        v_lshrrev_b32 v{x+1}, 16, v{x+1}
        v_mul_u32_u24 v{x+2}, 20, v{x+1}
        v_sub_u32 v{x+2}, v{x}, v{x+2}
        v_mul_u32_u24 v{x+1}, 1280, v{x+1}
        v_lshl_add_u32 v{rL+i}, v{x+2}, 4, v{x+1}
        """)
    a(f"""
    v_and_b32 v{x}, 48, v0
    v_lshlrev_b32 v{x}, 4, v{x}
    v_add_u32 v{x}, {RPK}, v{x}
    v_and_b32 v{x+1}, 7, v0
    v_mul_u32_u24 v{x+1}, 1040, v{x+1}
    v_and_b32 v{x+2}, 8, v0
    v_lshl_add_u32 v{x+1}, v{x+2}, 1, v{x+1}
    v_add_u32 v{rD}, v{x}, v{x+1}
    v_and_b32 v{x+1}, 1, v0
    v_mul_u32_u24 v{x+1}, 1040, v{x+1}
    v_and_b32 v{x+2}, 14, v0
    v_lshl_add_u32 v{x+1}, v{x+2}, 3, v{x+1}
    v_add3_u32 v{rD+1}, v{x}, v{x+1}, 0
    v_lshrrev_b32 v{x}, 4, v0
    v_lshlrev_b32 v{x}, 3, v{x}
    v_lshrrev_b32 v{x+1}, 2, v0
    v_and_b32 v{x+1}, 3, v{x+1}
    v_add_u32 v{x}, v{x}, v{x+1}
    v_mul_u32_u24 v{x}, 320, v{x}
    v_and_b32 v{x+1}, 3, v0
    v_lshl_add_u32 v{x}, v{x+1}, 3, v{x}
    v_add_u32 v{x}, {RPK}, v{x}
    s_and_b32 s{sT0}, s2, 2
    s_cselect_b32 s{sT0}, 64, 0
    s_cselect_b32 s{sT1}, 0, 256
    v_add_u32 v{rT}, s{sT0}, v{x}
    v_add_u32 v{rT+1}, s{sT1}, v{x}
    v_add_u32 v{rX}, {RPK}, v{vL16}
    """)


sRu, sRs = 38, 39


def repack_steps(a):
    a(f"""
    LR_step:
    s_add_u32 s{sRp}, s{sRp}, 1
    s_and_b32 s{sT3}, s{sRu}, 3
    s_lshl_b32 s{sT4}, s{sBr}, 2
    s_add_u32 s{sT4}, s{sT4}, s{sT3}
    s_cmp_eq_u32 s{sRs}, 0
    s_cbranch_scc1 LR_load
    s_cmp_eq_u32 s{sRs}, 1
    s_cbranch_scc0 LR_s2
    s_lshr_b32 s{sT2}, s{sRu}, 2
    s_mul_i32 s{sT0}, s{sT4}, {WO_SLAB}
    s_mul_i32 s{sT2}, s{sT2}, 10240
    s_add_u32 s{sT0}, s{sT0}, s{sT2}
    s_add_u32 s{sT0}, s{sT0}, {WS_WO}
    """)
    for ct in range(10):
        for u in range(2):
            a(f"ds_read_b64_tr_b16 {vr(rData + 4*ct + 2*u, 2)}, v{rT + ct // 8} offset:{u*4*320 + (ct % 8)*32}")
        if ct == 4:
            a("s_waitcnt lgkmcnt(0)")
    a("s_waitcnt lgkmcnt(0)")
    for ct in range(10):
        a(f"ds_write_b128 v{rD + ct // 8}, {vr(rData + 4*ct, 4)} offset:{32 * ct if ct < 8 else 8 * 1040 + 128 * (ct - 8)}")
    a("s_waitcnt lgkmcnt(0)")
    for c in range(10):
        a(f"ds_read_b128 {vr(rData + 4*c, 4)}, v{rX} offset:{1040 * c}")
    for c in range(10):
        a(f"s_waitcnt lgkmcnt({9 - c})")
        a(f"buffer_store_dwordx4 {vr(rData + 4*c, 4)}, v{vL16}, {WSR()}, s{sT0} offen offset:{1024 * (c & 3)} sc1")
        if c & 3 == 3:
            a(f"s_add_u32 s{sT0}, s{sT0}, 4096")
    a(f"""
    s_mov_b32 s{sRs}, 2
    s_cmp_lt_u32 s{sRu}, 16
    s_cbranch_scc0 LA_bar
    s_add_u32 s{sRu}, s{sRu}, 64
    LR_load:
    s_mov_b32 s{sRs}, 1
    s_mov_b32 s{sWt}, s{sPtr+2}
    s_and_b32 s{sWt+1}, s{sPtr+3}, 0xffff
    s_mov_b32 s{sWt+2}, {D * D * 2}
    s_mov_b32 s{sWt+3}, 0x00020000
    s_lshr_b32 s{sT2}, s{sRu}, 2
    s_mul_i32 s{sT0}, s{sT2}, {32 * 1280}
    s_mul_i32 s{sT1}, s{sT3}, 320
    s_add_u32 s{sT0}, s{sT0}, s{sT1}
    s_mov_b32 m0, {RPK}
    s_add_u32 s{sT1}, s{sT0}, {16 * 1280}
    """)
    for i in range(10):
        a(f"buffer_load_dwordx4 v{rL + i % 5}, s[{sWt}:{sWt+3}], s{sT1 if i >= 5 else sT0} offen lds")
        a("s_add_u32 m0, m0, 1024\ns_nop 0")
    a(f"""
    s_branch LA_bar
    LR_s2:
    s_mov_b32 s{sRp}, -1
    s_lshl_b32 s{sT0}, s{sT4}, 7
    s_add_u32 s{sT0}, s{sT0}, {WS_C4}
    """)
    count_in(a, sT0, vP, vP + 1)
    a("s_branch LA_bar")


def write_ones(a, role):
    a(f"""
    v_and_b32 v{vT0}, 7, v0
    v_mul_u32_u24 v{vT0}, 640, v{vT0}
    v_add_u32 v{vT0}, {ONES[role]}, v{vT0}
    v_mov_b32 v16, 0x3f803f80
    v_mov_b32 v17, 0x3f803f80
    v_mov_b32 v18, 0x3f803f80
    v_mov_b32 v19, 0x3f803f80
    ds_write_b128 v{vT0}, v[16:19]
    """)


sL = 8


def lead_prepare(a):
    a(f"""
    s_lshr_b32 s{sRu}, s2, 3
    s_lshl_b32 s{sRu}, s{sRu}, 1
    s_bfe_u32 s{sT0}, s2, 0x10001
    s_add_u32 s{sRu}, s{sRu}, s{sT0}
    s_mov_b32 s{sRs}, 0
    s_and_b32 s{sT0}, s2, 1
    s_cselect_b32 s{sT0}, 0, s{sJ}
    s_cmp_eq_u32 s{sT0}, 1
    s_cselect_b32 s{sRp}, {RP_AT}, -1
    s_mov_b32 s{sM}, 0
    s_mov_b32 s{sMend}, 0
    s_mov_b32 s{sRb}, {RA}
    s_mov_b32 s{sNext}, {RA + BLK}
    """)
    attn_zero(a)
    o_base(a)
    a(f"""
    s_sub_u32 s{sT0}, s{sOb}, {3 * IMG}
    s_add_u32 s{sL},  s{sT0}, s{sOm}
    s_add_u32 s{sL+1}, s{sL},  {TILE}
    s_add_u32 s{sL+2}, s{sT0}, s{sExt}
    s_lshr_b32 s{sT3}, s{sJ}, 1
    s_mul_i32 s{sT1}, s{sT3}, {4 * TILE}
    s_add_u32 s{sT1}, s{sT1}, s{sImg}
    s_add_u32 s{sT1}, s{sT1}, {IMG}
    s_and_b32 s{sL+4}, s{sQB if 'kvrot' in OPT else sHead}, 7
    s_mul_i32 s{sL+3}, s{sL+4}, {8 * TILE}
    s_add_u32 s{sL+3}, s{sL+3}, s{sT1}
    s_add_u32 s{sL+4}, s{sL+4}, 1
    s_and_b32 s{sL+4}, s{sL+4}, 7
    s_mul_i32 s{sL+4}, s{sL+4}, {8 * TILE}
    s_add_u32 s{sL+4}, s{sL+4}, s{sT1}
    s_mul_i32 s{sL+5}, s{sT3}, {CH}
    s_and_b32 s{sL+6}, s{sJ}, 1
    s_mul_i32 s{sT4}, s{sL+6}, 6144
    s_add_u32 s{sL+5}, s{sL+5}, s{sT4}
    s_add_u32 m0, s{sL+5}, {RA + BLK}
    """)
    a(f"""
    s_lshl_b32 s{sL+7}, s{sBr}, 5
    s_add_u32 s{sL+7}, s{sL+7}, s{sHead}
    s_lshl_b32 s{sL+7}, s{sL+7}, 9
    s_add_u32 s{sL+7}, s{sL+7}, {WS_C1}
    """)


def common_setup(a):
    a(f"""
    s_and_b32 s{sT0}, s2, 1
    s_lshl_b32 s{sT0}, s{sT0}, 3
    s_and_b32 s{sT1}, s2, 2
    s_lshl_b32 s{sT1}, s{sT1}, 1
    s_add_u32 s{sT0}, s{sT0}, s{sT1}
    s_lshr_b32 s{sT2}, s2, 6
    s_add_u32 s{sHead}, s{sT0}, s{sT2}
    s_lshr_b32 s{sQB}, s2, 3
    s_and_b32 s{sQB}, s{sQB}, 7
    s_lshl_b32 s{sT2}, s{sRole}, 4
    s_add_u32 s{sHead}, s{sHead}, s{sT2}
    s_mul_i32 s{sImg}, s{sBr}, {4 * IMG}
    s_mov_b32 s{sPh}, 0
    s_mov_b32 s{sWS+2}, {WS_STAMP + 2048 * 128 if common.STAMP else WS_END}
    s_mov_b32 s{sWS+3}, 0x00020000
    s_mov_b32 s{sOut+2}, {S * 2 * D * 2}
    s_mov_b32 s{sOut+3}, 0x00020000
    s_mov_b32 s{sDbg+2}, 256
    s_mov_b32 s{sDbg+3}, 0x00020000
    s_waitcnt lgkmcnt(0)
    s_mov_b32 s{sOut}, s{sPtr+4}
    s_and_b32 s{sOut+1}, s{sPtr+5}, 0xffff
    s_mov_b32 s{sDbg}, s{sPtr+6}
    s_and_b32 s{sDbg+1}, s{sPtr+7}, 0xffff
    s_and_b32 s{sWS+1}, s{sWS+1}, 0xffff
    """)


def gen(a, label):
    kernel_head(a, label)
    a("s_cmp_ge_u32 s2, 256\ns_cbranch_scc1 LF_end")
    stamp(a, 0)
    a(f"""
    s_bfe_u32 s{sBr}, s2, 0x10002
    s_mul_i32 s{sT0}, s{sBr}, 24
    s_load_dwordx2 s[{sX}:{sX+1}], s[0:1], s{sT0}
    s_add_u32 s{sT1}, s{sT0}, 8
    s_load_dwordx4 s[{sPtr}:{sPtr+3}], s[0:1], s{sT1}
    s_load_dwordx4 s[{sPtr+4}:{sPtr+7}], s[0:1], 48
    s_load_dwordx2 s[{sWS}:{sWS+1}], s[0:1], 64
    v_lshrrev_b32 v1, 6, v0
    v_and_b32 v0, 63, v0
    v_readfirstlane_b32 s{sW}, v1
    s_and_b32 s{sT0}, s2, 3
    s_lshl_b32 s{sT0}, s{sT0}, 2
    s_bfe_u32 s{sT2}, s2, 0x20003
    s_add_u32 s{sTB}, s{sT0}, s{sT2}
    s_lshr_b32 s{sTI}, s2, 5
    """)
    if 'nocw' not in OPT:
        a.c("wave 7 pulls a quarter of the code into the L2, so that later instruction fetches find it there")
        a(f"""
        s_cmp_eq_u32 s{sW}, 7
        s_cbranch_scc0 LG_nocw
        s_getpc_b64 s[4:5]
        LG_pc:
        s_sub_u32 s4, s4, LG_pc-{label}
        s_subb_u32 s5, s5, 0
        s_lshl_b32 s{sT0}, s{sT2}, 13
        v_lshl_add_u32 v8, v0, 7, s{sT0}
        v_min_u32 v8, LF_codeend-{label}-4, v8
        global_load_dword v{gT+1}, v8, s[4:5]
        LG_nocw:
        """)
    a.c("phase-a units of tile ti: n = 2 ti + e, unit = n + 5 (n >= 5) + 5 (n >= 10)")
    a(f"""
    s_lshl_b32 s{sU0}, s{sTI}, 1
    s_cmp_ge_u32 s{sTI}, 5
    s_cselect_b32 s{sT0}, 10, 5
    s_cmp_ge_u32 s{sTI}, 3
    s_cselect_b32 s{sT0}, s{sT0}, 0
    s_add_u32 s{sU0}, s{sU0}, s{sT0}
    s_cmp_eq_u32 s{sTI}, 2
    s_cselect_b32 s{sT0}, 6, 1
    s_add_u32 s{sU1}, s{sU0}, s{sT0}
    s_and_b32 s{sJ}, s{sW}, 3
    s_lshr_b32 s{sRole}, s{sW}, 2
    s_cbranch_scc1 LG_start
    """)
    gemm_loader(a)
    a("LG_start:")
    common_setup(a)
    if CLR_AT < 0:
        clear_counters(a, "LG")
    gemm_compute(a)
    a("LG_idle:\ns_waitcnt lgkmcnt(0)\ns_barrier")
    drained(a)
    a("s_barrier")
    if PAIR_Q < 160:
        a("s_barrier")
    a("LG_done:")
    if PAIR_Q >= 160:
        a("s_barrier")
    stamp(a, 3)
    a(f"s_setprio {BLEAD_PRIO}")
    vectors_get(a)
    write_ones(a, 1)
    a(f"s_mov_b32 s{sM}, {SK}\ns_mov_b32 s{sMend}, {(1 << (SK + 5)) - 1}\ns_mov_b32 s{sRb}, {RB}\ns_mov_b32 s{sNext}, {RB}")
    attn_zero(a)
    a.c("the last wave whose stores have drained publishes the tile")
    a(f"""
    v_mov_b32 v246, {LCNT}
    v_mov_b32 v247, 1
    v_mov_b32 v20, -1
    v_mov_b32 v21, -1
    v_mov_b32 v22, -1
    v_mov_b32 v23, -1
    s_setprio 2
    s_barrier
    s_waitcnt vmcnt(0)
    s_mov_b64 exec, 1
    ds_add_rtn_u32 v249, v246, v247
    s_mov_b64 exec, -1
    s_waitcnt lgkmcnt(0)
    v_readfirstlane_b32 s{sT0}, v249
    s_cmp_eq_u32 s{sT0}, 3
    s_cbranch_scc0 LG_nopub
    s_cmp_eq_u32 s{sTI}, 7
    s_cbranch_scc1 LG_nopub
    s_call_b64 s[{sLnk}:{sLnk+1}], LG_publish
    LG_nopub:
    """)
    stamp(a, 27)
    call_dma(a, 0, 2)
    o_mark(a)
    a(f"s_mov_b32 s{sRp}, -1\ns_waitcnt vmcnt(0)\ns_barrier")
    poll_f1(a)
    stamp(a, 26)
    load_q(a)
    call_dma(a, 1, 0)
    call_dma(a, 0, 3)
    a("s_waitcnt vmcnt(0) lgkmcnt(0)\ns_barrier")
    call_dma(a, 1, 1)
    call_dma(a, 0, 4)
    call_dma(a, 1, 2)
    if 'blow' in OPT:
        a("s_setprio 1")
    scale_q(a, 63)
    stamp(a, 5)
    a("s_branch LA_start")
    a("LA_lead:")
    a("s_setprio 3")
    def small_writes():
        a(f"s_cmp_lt_u32 s{sJ}, 2\ns_cbranch_scc0 LA_sw1")
        vectors_put(a)
        a(f"s_branch LA_sw2\nLA_sw1:\nv_mov_b32 v{vP+2}, {LCNT}\ns_mov_b64 exec, 0xff\nds_write_b32 v{vP+2}, v{vP+1}")
        write_ones(a, 0)
        a("LA_sw2:")
    poll_counter(a, vP + 3, f"s{sL+7}", f"s{sExp}", 7, small_writes)
    stamp(a, 1)
    a(f"""
    buffer_load_dwordx4 {vr(Qm[0],4)}, v{vL16}, {WSR()}, s8 offen sc1
    buffer_load_dwordx4 {vr(Qm[1],4)}, v{vL16}, {WSR()}, s9 offen sc1
    buffer_load_dwordx2 {vr(Qe,2)}, v{vE16}, {WSR()}, s10 offen sc1
    """)
    for blk in range(2):
        for p in range(5):
            a(f"buffer_load_dwordx4 v{vD+p}, {WSR()}, s{11 + blk} offen sc1 lds")
            a("s_add_u32 m0, m0, 1024")
            a("s_nop 0" if p < 4 else "s_cmp_eq_u32 s14, 1")
        a(f"s_cbranch_scc1 LA_ld{blk}\nbuffer_load_dwordx4 v{vD+5}, {WSR()}, s{11 + blk} offen sc1 lds\nLA_ld{blk}:")
        if blk == 0:
            a(f"s_add_u32 m0, s13, {RA + 2 * BLK}\ns_nop 0")
    scale_q(a, 10)
    a("s_waitcnt vmcnt(5) lgkmcnt(0)\ns_barrier\ns_setprio 1")
    stamp(a, 3)
    attention(a)
    a(f"s_cmp_eq_u32 s{sRole}, 0\ns_cbranch_scc1 LP_a\ns_barrier")
    stamp(a, 6)
    a(f"s_branch {'LF_end' if 'astamp' in OPT else 'LP_end'}\nLP_a:")
    a.c("role-A waves: first half of K while role B finishes, second half once it is published")
    a(f"""
    s_and_b32 s{sT4}, s{sHead}, 3
    s_lshl_b32 s{sT1}, s{sBr}, 2
    s_add_u32 s{sT4}, s{sT4}, s{sT1}
    s_lshl_b32 s{sT4}, s{sT4}, 7
    s_add_u32 s{sT4}, s{sT4}, {WS_C4}
    """)
    G = lambda i: LDS_BYTES - (11 - i) * 10240
    Lo = lambda i: RB + i * 10240
    assert SK == 3 and G(0) >= RB + 2 * BLK and G(3) >= RB + RING and Lo(3) <= RB + BLK + CH
    call = lambda l: a(f"s_call_b64 s[{sLnk}:{sLnk+1}], {l}")

    def tail_setup():
        for r in range(32, 40, 2):
            a(f"v_pk_mov_b32 {vr(pACC + r, 2)}, 0, 0")
        for r in range(32, 40, 2):
            a(f"v_pk_mov_b32 {vr(pACL + r, 2)}, 0, 0")
        for A in (pACC, pACL):
            a(f"v_mfma_f32_32x32x4_2b_bf16 {vr(A,32)}, {vr(pACC + 32, 2)}, {vr(pACC + 32, 2)}, 0")
        o_addr(a)
        out_addr(a)
        a("s_waitcnt vmcnt(0)")
        count_in(a, sOc, vP, vP + 1)
        stamp(a, 6)
        a(f"v_readfirstlane_b32 s{sT0}, v{vPS}\ns_cmp_ge_u32 s{sT0}, 16\ns_cbranch_scc1 LP_wo")
    poll_counter(a, vP + 4, f"s{sT4}", 16, 1, tail_setup)
    a("LP_wo:")
    a("s_setprio 0")
    stamp(a, 20)
    a("s_barrier")
    stamp(a, 21)
    call_dma(a, 1, 7)
    wo_dma(a, 0, 3, G(3))
    peek(a, 1)
    wo_dma(a, 3, 6, G(6))
    stamp(a, 22)
    a(f"s_waitcnt vmcnt(0)\nv_readfirstlane_b32 s{sT0}, v{vPS+2}\ns_cmp_ge_u32 s{sT0}, 16\ns_cbranch_scc1 LP_seen")
    poll_counter(a, vP + 4, f"s{sFc}", 16, 1)
    a("LP_seen:")
    call("LP_ldhi")
    call("LP_ldlo")
    a(f"s_add_u32 s{sFo}, s{sFo}, 20480\ns_add_u32 s{sFc}, s{sFc}, 128")
    stamp(a, 25)
    a("s_barrier")
    stamp(a, 5)
    mm = lambda l: a(f"s_call_b64 s[{sLnkM}:{sLnkM+1}], {l}")
    set_tab(a, [G(3), G(4), G(5), G(6), G(7), G(8), G(9), G(10), G(0), G(1)])
    mm("LP_pro")
    a("s_waitcnt vmcnt(0)")
    wo_dma(a, 6, 8, G(9))
    wo_dma(a, 8, 11, G(0))
    a("s_cmp_eq_u32 0, 1")
    mm("LP_hi")
    a(f"""
    s_and_b32 s{sT0}, s{sHead}, 3
    s_lshl_b32 s{sT1}, s{sBr}, 2
    s_add_u32 s{sT0}, s{sT0}, s{sT1}
    s_mul_i32 s{sT0}, s{sT0}, {WO_SLAB}
    s_add_u32 s{sT0}, s{sT0}, {WS_WO + 10240 * 11}
    s_waitcnt vmcnt(0) lgkmcnt(0)
    """)
    assert Lo(0) + 32768 <= RB + BLK + CH
    stamp(a, 26)
    a("s_barrier")
    stamp(a, 28)
    a(f"s_setprio {WOVEN_PRIO}\ns_cmp_eq_u32 0, 0")
    mm("LP_lo")
    stamp(a, 10)
    a("s_waitcnt vmcnt(4)")
    ready_mask(a)
    a("s_cbranch_scc0 LP_n1")
    call("LP_order")
    a(f"s_waitcnt vmcnt(5)\ns_barrier\ns_branch LP_n2\nLP_n1:\ns_waitcnt vmcnt(0)\ns_barrier\ns_mov_b32 s{sSpin}, {SPIN}\nLP_any:")
    peek(a, 3)
    a("s_waitcnt vmcnt(0)")
    ready_mask(a)
    a(f"s_cbranch_scc1 LP_got\ns_sleep {SLEEP}\ns_sub_u32 s{sSpin}, s{sSpin}, 1\ns_cbranch_scc0 LP_any\nLP_got:")
    call("LP_order")
    a("LP_n2:")
    stamp(a, 30)
    T = [G(2), G(3), G(4), G(5), G(6), G(7), G(8), Lo(0), Lo(1), Lo(2)]
    a(f"s_cmp_eq_u32 s{sPh}, 3\ns_cbranch_scc0 LP_n3")
    call("LP_ldlo")
    a(f"LP_n3:\ns_cmp_eq_u32 s{sDone}, 1")
    for r, x, y in zip(TAB, T, T[5:] + T[:5]):
        a(f"s_mov_b32 s{r}, {x}\ns_cmov_b32 s{r}, {y}")
    mm("LP_pro")
    a.c("each group keeps its own accumulators, so the result does not depend on the order of arrival")
    a("s_cbranch_scc0 LP_n4")
    for r in range(40):
        a(f"v_swap_b32 v{pACC + r}, v{pACL + r}")
    a("LP_n4:")
    a(f"s_waitcnt vmcnt(5)\ns_cmp_eq_u32 s{sPh}, 3\ns_cbranch_scc1 LP_n5\ns_waitcnt vmcnt(0)")
    peek(a, 3)
    a("LP_n5:")
    o_checked(a, "LP_ldhi", 0, False)
    stamp(a, 11)
    a(f"s_cmp_lg_u32 s{sPh}, 3")
    mm("LP_hi")
    stamp(a, 12)
    a(f"s_cmp_eq_u32 s{sPh}, 3\ns_cbranch_scc1 LP_n6")
    poll_counter(a, vP + 5, f"s{sFc}", 8, 3)
    call("LP_ldlo")
    a("LP_n6:")
    o_checked(a, "LP_ldlo", 5, True)
    stamp(a, 2)
    if common.STAMP and 'cyc' not in OPT: a(f"s_mov_b32 s{STAMP_S+17}, s{sSpin}")
    a("s_cmp_eq_u32 0, 1")
    mm("LP_lo")
    stamp(a, 16)
    out_store(a)
    a("LP_end:")
    if common.STAMP:
        a("s_waitcnt vmcnt(0)")
        stamp(a, 7)
        stamp_flush(a, 4)
    a("LF_end:\ns_endpgm")
    dma_sub(a)
    refill(a)
    publish_sub(a)
    order_sub(a)
    o_load_sub(a, "LP_ldhi", 0)
    o_load_sub(a, "LP_ldlo", 5)
    oproj_subs(a, G(3), Lo(0))
    repack_steps(a)
    slow_path(a)
    a("LF_codeend:")


def build():
    a = Asm()
    label = NAME + "_kernel"
    a('.amdgcn_target "amdgcn-amd-amdhsa--gfx950"\n.text')
    gen(a, label)
    return (HEADER + f"; @launch grid=(256,1,1) block=(512,1,1) lds={LDS_BYTES}\n" + a.text()
            + '.section .rodata,"a"\n.p2align 6\n' + kernel_desc(label, NVGPR, NVGPR, 100))


if __name__ == "__main__":
    import sys
    for x in sys.argv[2:]:
        if '=' in x:
            k, v = x.split('='); globals()[k] = int(v)
        else:
            OPT.add(x)
    if 'dbgstamp' in OPT:
        common.STAMP = True
    out = sys.argv[1] if len(sys.argv) > 1 else f"cdna_kernels/{NAME}.s"
    open(out, "w").write(build())
```

```python
from common import Asm, vr, sr, f32bits, kernel_head, kernel_desc, QSCALE, S, D, HEADER, NAME
import common

OPT = set()
SK = 3

TILE = 40960
IMG = 64 * TILE
WS_WO = 8 * IMG
WO_SLAB = 204800
WO_HALF = WO_SLAB // 2
WS_C1 = WS_WO + 8 * WO_SLAB
WS_C3 = WS_C1 + 256 * 128
WS_C4 = WS_C3 + 192 * 128
WS_END = WS_C1 + 512 * 128
WS_STAMP = WS_END + 65536

LDS_BYTES = 163840
GSL = 16384
CH = 11264
BLK = 2 * CH
RING = 3 * BLK
ONES = [90112, 0]
RB = 5120
RA = LDS_BYTES - RING
RPK = RB + RING
XFER = 81920
LCNT = 95232

sX, sWt, sWS, sOut, sDbg = 8, 12, 16, 20, 24
sPtr = 28
sW, sJ, sRole = 40, 41, 42
sHead, sQB, sTI, sTB = 43, 44, 45, 46
sT0, sT1, sT2, sT3, sT4 = 47, 48, 49, 50, 51
sIt, sSlot, sKB, sInc = 52, 53, 54, 55
sXo, sWo = 56, 57
sNext, sRb, sRe, sRem = 52, 53, 54, 55
sM, sMend = 56, 57
sOm, sExt = 58, 59
sSpin = 60
sBr = 61
sU0, sU1, sImg, sPh = 96, 97, 98, 99
sExp = 3
sDone = 36
sOb = 37
sOc = 97
sFo, sFc = 38, 39
sRp = 96
sE = 56
sLnk = 62
STAMP_S = 64

RP_AT = 3
TLB_AT = 2
BLEAD_PRIO = 0
LOFF = -1
SPIN = 1 << 15
SLEEP = 2


NST = 32


def stamp(a, i):
    if common.STAMP and not ('cyc' in OPT and 8 <= i <= 19):
        a(f"s_memrealtime s[4:5]\ns_waitcnt lgkmcnt(0)\ns_mov_b32 s{STAMP_S+i}, s4")


def stamp_cyc(a, i):
    if common.STAMP:
        a(f"s_memtime s[4:5]\ns_waitcnt lgkmcnt(0)\ns_mov_b32 s{STAMP_S+i}, s4")


def stamp_idx(a, base, sreg):
    if common.STAMP and 'cyc' in OPT:
        a(f"s_memtime s[4:5]\ns_mov_b32 m0, s{sreg}\ns_waitcnt lgkmcnt(0)\ns_movreld_b32 s{STAMP_S+base}, s4")


def stamp_flush(a, vt):
    if not common.STAMP:
        return
    a(f"""
    s_mov_b64 exec, 1
    s_lshl_b32 s{sT0}, s2, 3
    s_add_u32 s{sT0}, s{sT0}, s{sW}
    s_lshl_b32 s{sT0}, s{sT0}, 7
    s_add_u32 s{sT0}, s{sT0}, {WS_STAMP}
    v_mov_b32 v{vt+2}, 0
    """)
    for i in range(NST):
        a(f"v_mov_b32 v{vt}, s{STAMP_S+i}")
        a(f"buffer_store_dword v{vt}, v{vt+2}, s[{sWS}:{sWS+3}], s{sT0} offen offset:{4*i}")
    if 'dbgstamp' in OPT:
        a(f"s_cmp_eq_u32 s2, 100\ns_cbranch_scc0 LF_nodbg\ns_cmp_eq_u32 s{sJ}, 0\ns_cbranch_scc0 LF_nodbg\ns_lshl_b32 s{sT0}, s{sRole}, 5")
        for i in range(8):
            a(f"s_sub_u32 s{sT1}, s{STAMP_S+i}, s{STAMP_S}")
            a(f"v_mov_b32 v{vt}, s{sT1}")
            a(f"buffer_store_dword v{vt}, v{vt+2}, s[{sDbg}:{sDbg+3}], s{sT0} offen offset:{4*i}")
        a("LF_nodbg:")


def WSR():
    return f"s[{sWS}:{sWS+3}]"


_lbl = [0]


def poll(a, loads, expect, vtmp):
    _lbl[0] += 1
    L = f"LF_poll{_lbl[0]}"
    a(f"s_mov_b32 s{sSpin}, {SPIN}\n{L}:")
    for i, (vo, srd, so) in enumerate(loads):
        a(f"buffer_load_dword v{vtmp+i}, v{vo}, {srd}, {so} offen sc1")
    a("s_waitcnt vmcnt(0)")
    for i in range(1, len(loads)):
        a(f"v_min_u32 v{vtmp}, v{vtmp}, v{vtmp+i}")
    a(f"""
    v_cmp_gt_u32 vcc, {expect}, v{vtmp}
    s_cbranch_vccz {L}_ok
    s_sleep {SLEEP}
    s_sub_u32 s{sSpin}, s{sSpin}, 1
    s_cbranch_scc0 {L}
    {L}_ok:
    """)


def poll_counter(a, vo, so, expect, mask, meanwhile=None):
    _lbl[0] += 1
    L = f"LF_pc{_lbl[0]}"
    rd = (f"v_mov_b32 v{vPS}, 0\nbuffer_atomic_add v{vPS}, v{vo}, {WSR()}, {so} offen sc0 sc1" if 'ldpoll' not in OPT else
          f"buffer_load_dword v{vPS}, v{vo}, {WSR()}, {so} offen sc1")
    a(f"s_mov_b32 s{sSpin}, {SPIN}\ns_mov_b64 exec, {mask}")
    if meanwhile:
        a(f"{rd}\ns_mov_b64 exec, -1")
        meanwhile()
        a(f"s_mov_b64 exec, {mask}\ns_branch {L}_w")
    a(f"""
    {L}:
    {rd}
    {L}_w:
    s_waitcnt vmcnt(0)
    v_cmp_gt_u32 vcc, {expect}, v{vPS}
    s_cbranch_vccz {L}_ok
    s_sleep {SLEEP}
    s_sub_u32 s{sSpin}, s{sSpin}, 1
    s_cbranch_scc0 {L}
    {L}_ok:
    s_mov_b64 exec, -1
    """)


def count_in(a, soff, vz, vd):
    a(f"""
    v_mov_b32 v{vz}, 0
    v_mov_b32 v{vd}, 1
    s_mov_b64 exec, 1
    buffer_atomic_add v{vd}, v{vz}, {WSR()}, s{soff} offen sc1
    s_mov_b64 exec, -1
    """)


gXF = 0
gWF = 160
gWA = [184, 185, 186, 187]
gXA = 188
gT = 189
gACC = 192


PUB_BAR = 12
LAST_BAR = 16
PAIR_Q = 155
HIGH_Q = 144
CLR_AT = 0
CNT_AT = 3
NFIRST = 5
MAXISS = 3
FAST_BAR = 7
PF_BAR = 3
ROT = 4


def stage_barriers():
    return list(range(0, 12)) + [LAST_BAR]


def gemm_schedule():
    items = [x for n in range(10) for x in (("X", n), ("W", n))] + [("W", n) for n in range(10, 20)]
    rel = lambda it: it[1] + (1 if it[0] == "X" else 2)
    free = list(range(10))
    slot, when, freed = {}, {}, set()
    k = 0
    for bar in range(-1, 12):
        for it in items:
            if it in slot and it not in freed and rel(it) <= bar:
                free.append(slot[it])
                freed.add(it)
        n = 0
        while k < len(items) and free and n < (NFIRST if bar == -1 else 10 if bar == 11 else MAXISS if bar >= FAST_BAR else 2) and bar != 10:
            slot[items[k]] = free.pop(0)
            when[items[k]] = bar
            k += 1
            n += 1
    assert k == len(items) and when[("W", LAST_BAR - 1)] <= 9 and when[("W", 17)] == 11
    assert max(rel(it) for it in items[:-3] if slot[it] == slot[("W", 17)]) <= 10
    order = [slot[("W", n)] for n in (15, 16, 17, 18, 19, 13, 14, 10, 11, 12)]
    assert sorted(order) == list(range(10)), order
    slot = {it: order.index(v) for it, v in slot.items()}
    return items, slot, when


LCNT0 = 2 * GSL


def lane_id(a, v):
    a(f"v_mbcnt_lo_u32_b32 v{v}, -1, 0\nv_mbcnt_hi_u32_b32 v{v}, -1, v{v}")


def drained(a):
    a(f"s_waitcnt vmcnt(0)\ns_mov_b64 exec, 1\nds_add_u32 v{gT+1}, v{gT+1} offset:{LCNT0 - 4}\ns_mov_b64 exec, -1\ns_mov_b32 s{sDone}, 1")


def clear_counters(a, L):
    a.c("wave 4 clears counter lines id and id + 256")
    a(f"""
    s_cmp_eq_u32 s{sJ}, 0
    s_cbranch_scc0 {L}_cleared
    s_lshl_b32 s{sT0}, s2, 7
    s_add_u32 s{sT0}, s{sT0}, {WS_C1}
    v_mbcnt_lo_u32_b32 v{gT+1}, -1, 0
    v_lshlrev_b32 v{gT+1}, 15, v{gT+1}
    v_mov_b32 v{gT+2}, 0
    s_mov_b64 exec, 3
    buffer_store_dword v{gT+2}, v{gT+1}, {WSR()}, s{sT0} offen sc1
    s_mov_b64 exec, -1
    {L}_cleared:
    """)


def gemm_body(a, vtype):
    L = "LG_v" if vtype else "LG_q"
    items, slot, when = gemm_schedule()
    tmp = gT + 2

    def kc(f):
        return ((f & 1, (f >> 1) & 7) if f >= 144 else ((f >> 3) & 1, f & 7))

    def rd(f, u):
        ks, c = kc(f)
        return f"ds_read_b64_tr_b16 {vr(gWF + 4 * (f % 6) + 2 * u, 2)}, v{tmp if c & 1 else gWA[c >> 1]} offset:{ks * 8192 + u * 1024}"

    def xor(f):
        ks, c = kc(f)
        return [f"v_xor_b32 v{tmp}, 32, v{gWA[c >> 1]}"] if c & 1 and not (f >= 144 and ks) else []

    def acc(c, t):
        return gACC + 8 * c + 4 * t if vtype else gACC + 16 * (c >> 1) + 8 * t + 4 * (c & 1)

    def mfma(f, t):
        ks, c = kc(f)
        x, w, d = vr(gXF + 16 * (f >> 4) + 8 * ks + 4 * t, 4), vr(gWF + 4 * (f % 6), 4), vr(acc(c, t), 4)
        A, B = (x, w) if vtype else (w, x)
        return f"v_mfma_f32_16x16x32_bf16 {d}, {A}, {B}, {'0' if f < 8 else d}"

    def xreads(n, between=""):
        d = gXF + 16 * n
        a(f"v_xor_b32 v{d + 8}, 64, v{gXA}")
        a(between)
        for ks, t in ((0, 0), (0, 1), (1, 1), (1, 0)):
            flip = ks ^ (t if vtype else 0)
            a(f"ds_read_b128 {vr(d + 8 * ks + 4 * t, 4)}, v{d + 8 if flip else gXA} offset:{t * (1024 if vtype else 2048)}")

    def first_reads():
        for f in range(6):
            for x in xor(f) + [rd(f, 1)] + ([rd(f, 0)] if f < 5 else []):
                a(x)

    def pack(C):
        A = gACC + 16 * C
        for j in range(8):
            a(f"v_cvt_pk_bf16_f32 v{gACC + 8*C + j}, v{A+2*j}, v{A+2*j+1}")
        if not vtype:
            for t in range(2):
                for r in range(2):
                    P = gACC + 8 * C + 4 * t + r
                    a(f"v_permlane16_swap_b32 v{P}, v{P+2}")

    def stores(C):
        for i in range(2):
            d = vr(gACC + 8*C + 4*i, 4)
            if vtype:
                a(f"buffer_store_dwordx4 {d}, v{gT}, {WSR()}, s{sE} offen offset:{(2 * C + i) * 256} sc1")
            else:
                a(f"buffer_store_dwordx4 {d}, v{gT}, {WSR()}, s{sE + (C >> 1)} offen offset:{(C & 1) * 2048 + i * 256} sc1")

    a("s_barrier")
    a(f"s_mov_b32 s{sDone}, 1")
    stamp(a, 1)
    xreads(0)
    first_reads()
    a(f"{L}_body:\ns_waitcnt lgkmcnt(9)")
    for f in range(160):
        n, r16 = f >> 4, f & 15
        if f + 6 < 160:
            for x in xor(f + 6):
                a(x)
        adds = {4: 0, 6: 1, 8: 2, 10: 3} if n < 9 else {7: 0, 9: 1, 10: 2, 11: 3}
        if r16 in adds:
            a(f"v_add_u32 v{gWA[adds[r16]]}, s{sInc}, v{gWA[adds[r16]]}")
        a(mfma(f, 0))
        hook = PUB_BAR <= n + 12 <= LAST_BAR
        if hook and r16 == 12:
            a.c("phase b: report once that this wave's stores have drained")
            a(f"s_getreg_b32 s{sT0}, hwreg(HW_REG_IB_STS, 0, 4)" if n + 12 < LAST_BAR else f"s_mov_b32 s{sT0}, 0")
        if hook and r16 == 13:
            a(f"s_or_b32 s{sT0}, s{sT0}, s{sDone}")
        if hook and r16 == 14:
            a(f"s_cbranch_scc0 {L}_da{n}\n{L}_db{n}:")
        if r16 == 0:
            a(f"s_cmp_eq_u32 s{sPh}, 1")
        if r16 == 1:
            a(f"s_mov_b32 s{sInc}, {((slot[('W', n + 1)] - slot[('W', n)]) * GSL) & 0xffffffff}")
        if r16 == 2 and n < 9:
            a(f"s_cmov_b32 s{sInc}, {((slot[('W', n + 11)] - slot[('W', n + 10)]) * GSL) & 0xffffffff}")
        if f == HIGH_Q:
            a("s_setprio 2")
        if f + 5 < 160:
            a(rd(f + 5, 0))
        a(mfma(f, 1))
        if f < 159:
            a(f"s_waitcnt lgkmcnt({2 * max(0, min(f + 5, 159) - (f + 1))})")
        if r16 == 10:
            if n + 11 in stage_barriers():
                a("s_barrier")
            a(f"s_cbranch_scc0 {L}_xa{n}\n{L}_xb{n}:")
        if f + 6 < 160:
            a(rd(f + 6, 1))
        if f == PAIR_Q:
            a(f"s_cbranch_scc0 {L}_np\ns_barrier\n{L}_np:")
        if f in (149, 153, 157):
            if f == 157:
                a("s_nop 1")
            pack((f - 149) // 4)
        if f in (150, 154, 158):
            stores((f - 150) // 4)
    a(f"s_cbranch_scc1 {L}_nopre")
    first_reads()
    a(f"{L}_nopre:\ns_nop 6")
    pack(3)
    stores(3)
    a(f"s_cbranch_scc1 LG_done")
    stamp(a, 2)
    next_units(a)
    step = 6 * 1024 if vtype else 5 * 4096
    a(f"s_add_u32 s{sE}, s{sE}, {step}\ns_add_u32 s{sE+1}, s{sE+1}, {step}\ns_mov_b32 s{sDone}, 0")
    if vtype:
        a(f"s_cmp_eq_u32 s{sTI}, 7\ns_cbranch_scc1 LG_idle")
    a(f"s_branch {L}_body")
    for n in range(10):
        a(f"{L}_xa{n}:")
        if n == CLR_AT:
            clear_counters(a, L)
        if n == CNT_AT:
            a.c("this workgroup has cleared its share of the counters: count it in")
            a(f"""
            s_waitcnt vmcnt(0)
            s_cmp_eq_u32 s{sW}, 4
            s_cbranch_scc0 {L}_nocount
            s_and_b32 s{sT0}, s2, 31
            s_lshl_b32 s{sT0}, s{sT0}, 2
            s_add_u32 s{sT0}, s{sT0}, 128
            v_mov_b32 v{gT+1}, 0
            v_mov_b32 v{gT+2}, 1
            s_mov_b64 exec, 1
            buffer_atomic_add v{gT+2}, v{gT+1}, s[{sDbg}:{sDbg+3}], s{sT0} offen sc1
            s_mov_b64 exec, -1
            {L}_nocount:
            v_mov_b32 v{gT+1}, 4
            """)
        if n + 1 < 10:
            dx = (slot[("X", n + 1)] - slot[("X", n)]) * GSL
            a(f"v_add_u32 v{gXA}, {dx & 0xffffffff}, v{gXA}")
            xreads(n + 1, "" if n + 11 in stage_barriers() else "s_barrier")
        else:
            a("s_barrier")
        a(f"s_branch {L}_xb{n}")
    for n in range(PUB_BAR - 12, LAST_BAR - 11):
        a(f"{L}_da{n}:")
        drained(a)
        a(f"s_branch {L}_db{n}")


def next_units(a):
    a(f"""
    s_mov_b32 s{sPh}, 1
    s_cmp_ge_u32 s{sTI}, 5
    s_cselect_b32 s{sT0}, 6, 5
    s_add_u32 s{sU0}, s{sU0}, s{sT0}
    s_add_u32 s{sU1}, s{sU1}, s{sT0}
    """)


def publish_sub(a):
    t = 240
    a(f"""
    LG_publish:
    v_cmp_lt_u32 vcc, 31, v0
    v_mov_b32 v{t+3}, s{sU0}
    v_mov_b32 v{t+4}, s{sU1}
    v_cndmask_b32 v{t+3}, v{t+3}, v{t+4}, vcc
    v_mul_u32_u24 v{t+4}, 205, v{t+3}
    v_lshrrev_b32 v{t+4}, 11, v{t+4}
    v_mul_u32_u24 v{t+5}, 10, v{t+4}
    v_sub_u32 v{t+3}, v{t+3}, v{t+5}
    v_lshlrev_b32 v{t+3}, 3, v{t+3}
    v_and_b32 v{t+5}, 31, v0
    v_lshl_add_u32 v{t+4}, v{t+5}, 2, v{t+4}
    v_lshlrev_b32 v{t+4}, 7, v{t+4}
    v_mul_u32_u24 v{t+5}, 5, v{t+5}
    v_lshrrev_b32 v{t+5}, 1, v{t+5}
    v_add_u32 v{t+5}, 2, v{t+5}
    v_sub_u32 v{t+5}, v{t+5}, v{t+3}
    v_cmp_gt_u32 vcc, 10, v{t+5}
    v_mov_b32 v{t+1}, 1
    s_lshl_b32 s{sT1}, s{sBr}, 14
    s_add_u32 s{sT1}, s{sT1}, {WS_C1}
    s_mov_b64 exec, vcc
    buffer_atomic_add v{t+1}, v{t+4}, {WSR()}, s{sT1} offen sc1
    s_mov_b64 exec, -1
    s_setpc_b64 s[{sLnk}:{sLnk+1}]
    """)


def gemm_compute(a):
    items, slot, when = gemm_schedule()
    i, g, t0, t1 = 8, 9, 10, 11
    a(f"""
    v_and_b32 v{i}, 15, v0
    v_lshrrev_b32 v{g}, 4, v0
    v_lshrrev_b32 v{t0}, 2, v0
    v_and_b32 v{t0}, 3, v{t0}
    v_lshl_add_u32 v{t1}, v{g}, 3, v{t0}
    v_lshlrev_b32 v{t1}, 8, v{t1}
    v_lshl_add_u32 v{t1}, v{t0}, 6, v{t1}
    v_and_b32 v{t0}, 16, v0
    v_lshl_add_u32 v{t1}, v{t0}, 1, v{t1}
    v_and_b32 v{t0}, 3, v0
    v_lshl_add_u32 v{t1}, v{t0}, 3, v{t1}
    v_add_u32 v{gWA[0]}, {slot[("W", 0)] * GSL}, v{t1}
    v_xor_b32 v{gWA[1]}, 64, v{gWA[0]}
    v_xor_b32 v{gWA[2]}, 128, v{gWA[0]}
    v_xor_b32 v{gWA[3]}, 192, v{gWA[0]}
    s_lshl_b32 s{sT1}, s{sJ}, 12
    s_add_u32 s{sT1}, s{sT1}, {slot[("X", 0)] * GSL}
    s_lshl_b32 s{sT0}, s{sTB}, 2
    s_add_u32 s{sT0}, s{sT0}, s{sJ}
    s_mul_i32 s{sT0}, s{sT0}, {TILE}
    s_add_u32 s{sT0}, s{sT0}, s{sImg}
    s_cmp_ge_u32 s{sTI}, 5
    s_cbranch_scc1 LG_vtype
    v_lshrrev_b32 v{t0}, 1, v{i}
    v_xor_b32 v{t0}, v{t0}, v{g}
    v_lshlrev_b32 v{t0}, 4, v{t0}
    v_lshl_add_u32 v{t0}, v{i}, 7, v{t0}
    v_add_u32 v{gXA}, s{sT1}, v{t0}
    v_and_b32 v{t0}, 1, v{g}
    v_lshlrev_b32 v{t0}, 10, v{t0}
    v_lshrrev_b32 v{t1}, 1, v{g}
    v_lshl_add_u32 v{t0}, v{t1}, 9, v{t0}
    v_lshl_add_u32 v{gT}, v{i}, 4, v{t0}
    s_lshl_b32 s{sE}, s{sU0}, 12
    s_lshl_b32 s{sE+1}, s{sU1}, 12
    s_cmp_ge_u32 s{sU0}, 10
    s_cselect_b32 s{sT3}, {IMG - 40960}, 0
    s_add_u32 s{sE}, s{sE}, s{sT3}
    s_cmp_ge_u32 s{sU1}, 10
    s_cselect_b32 s{sT3}, {IMG - 40960}, 0
    s_add_u32 s{sE+1}, s{sE+1}, s{sT3}
    s_add_u32 s{sE}, s{sE}, s{sT0}
    s_add_u32 s{sE+1}, s{sE+1}, s{sT0}
    """)
    gemm_body(a, False)
    a.c("V tiles: MFMA row i of token tile t is token 16 (i >> 3) + 8 t + (i & 7)")
    a(f"""
    LG_vtype:
    v_and_b32 v{t1}, 7, v{i}
    v_lshrrev_b32 v{t0}, 1, v{t1}
    v_xor_b32 v{t0}, v{t0}, v{g}
    v_lshlrev_b32 v{t0}, 4, v{t0}
    v_lshl_add_u32 v{t0}, v{t1}, 7, v{t0}
    v_and_b32 v{t1}, 8, v{i}
    v_lshl_add_u32 v{t0}, v{t1}, 8, v{t0}
    v_add_u32 v{gXA}, s{sT1}, v{t0}
    v_mul_u32_u24 v{t0}, 10240, v{g}
    v_lshl_add_u32 v{gT}, v{i}, 4, v{t0}
    s_lshl_b32 s{sE}, s{sU0}, 10
    s_add_u32 s{sE}, s{sE}, {2 * IMG - 20480}
    s_add_u32 s{sE}, s{sE}, s{sT0}
    """)
    gemm_body(a, True)


def touch_pages(a):
    a.c("every MiB that is first used later is touched once per group of workgroups, so that its translation is at hand")
    a(f"""
    s_lshr_b32 s{sT0}, s2, 3
    s_lshl_b32 s{sT0}, s{sT0}, 20
    s_cmp_eq_u32 s{sJ}, 1
    s_cbranch_scc0 LL_t1
    s_min_u32 s{sT1}, s{sT0}, {WS_END - 4}
    s_load_dword s6, s[{sWS}:{sWS+1}], s{sT1}
    LL_t1:
    s_cmp_eq_u32 s{sJ}, 2
    s_cbranch_scc0 LL_t2
    s_min_u32 s{sT1}, s{sT0}, {S * 2 * D * 2 - 4}
    s_load_dword s7, s[{sPtr+4}:{sPtr+5}], s{sT1}
    s_min_u32 s{sT1}, s{sT0}, {D * D * 2 - 4}
    s_load_dword s7, s[{sPtr+2}:{sPtr+3}], s{sT1}
    s_load_dword s6, s[{sPtr+6}:{sPtr+7}], 0
    LL_t2:
    """)


def gemm_loader(a):
    items, slot, when = gemm_schedule()
    vE, vO, vWs, vCnt, vWs2 = 230, 231, 232, 233, 235
    sKX, sKW = sKB, sSlot
    a(f"""
    v_lshrrev_b32 v5, 3, v0
    v_mul_u32_u24 v5, 1280, v5
    v_and_b32 v6, 7, v0
    v_lshrrev_b32 v7, 4, v0
    v_xor_b32 v6, v6, v7
    v_lshlrev_b32 v6, 4, v6
    v_add_u32 v{vE}, v5, v6
    v_xor_b32 v6, 64, v6
    v_add_u32 v{vO}, v5, v6
    v_add_u32 v{vO}, {8 * 1280 - 1024}, v{vO}
    v_lshrrev_b32 v5, 2, v0
    v_and_b32 v5, 3, v5
    v_xor_b32 v5, v5, v7
    v_lshrrev_b32 v6, 1, v5
    s_sub_u32 s{sT0}, s{sU1}, s{sU0}
    s_lshl_b32 s{sT0}, s{sT0}, 7
    v_mul_u32_u24 v6, s{sT0}, v6
    v_and_b32 v5, 1, v5
    v_lshl_add_u32 v5, v5, 6, v6
    v_and_b32 v6, 3, v0
    v_lshl_add_u32 v5, v6, 4, v5
    v_mul_u32_u24 v6, 3840, v7
    v_add_u32 v{vWs}, v5, v6
    v_xor_b32 v{vWs2}, 32, v{vWs}
    s_lshl_b32 s{sXo}, s{sTB}, 2
    s_add_u32 s{sXo}, s{sXo}, s{sJ}
    s_mul_i32 s{sXo}, s{sXo}, {32 * 1280}
    s_mul_i32 s{sWo}, s{sJ}, {16 * 3840}
    s_lshl_b32 s{sT0}, s{sU0}, 7
    s_add_u32 s{sWo}, s{sWo}, s{sT0}
    s_lshl_b32 s{sInc}, s{sJ}, 12
    """)
    a.c("workgroups that share a tile start at different k-blocks, so that they fill the L2 together")
    if ROT == 2:
        a(f"s_xor_b32 s{sKX}, s{sTB}, s{sTI}\ns_and_b32 s{sKX}, s{sKX}, 1\ns_mul_i32 s{sKX}, s{sKX}, 5")
    elif ROT == 3:
        a(f"""
        s_and_b32 s{sKX}, s{sTB}, 3
        s_add_u32 s{sKX}, s{sKX}, s{sTI}
        s_mul_i32 s{sT0}, s{sKX}, 43
        s_lshr_b32 s{sT0}, s{sT0}, 7
        s_mul_i32 s{sT0}, s{sT0}, 3
        s_sub_u32 s{sKX}, s{sKX}, s{sT0}
        s_mul_i32 s{sKX}, s{sKX}, 7
        s_lshr_b32 s{sKX}, s{sKX}, 1
        """)
    elif ROT == 4:
        a(f"""
        s_add_u32 s{sKX}, s{sTB}, s{sTI}
        s_and_b32 s{sKX}, s{sKX}, 3
        s_mul_i32 s{sKX}, s{sKX}, 5
        s_add_u32 s{sKX}, s{sKX}, 1
        s_lshr_b32 s{sKX}, s{sKX}, 1
        """)
    elif ROT:
        a(f"""
        s_and_b32 s{sKX}, s{sTB}, 3
        s_mul_i32 s{sKX}, s{sKX}, 5
        s_add_u32 s{sKX}, s{sKX}, 1
        s_lshr_b32 s{sKX}, s{sKX}, 1
        s_add_u32 s{sKX}, s{sKX}, s{sTI}
        s_cmp_ge_u32 s{sKX}, 10
        s_cselect_b32 s{sT0}, 10, 0
        s_sub_u32 s{sKX}, s{sKX}, s{sT0}
        """)
    else:
        a(f"s_and_b32 s{sKX}, s{sTI}, 1")
    a(f"s_mov_b32 s{sKW}, s{sKX}\ns_mov_b32 s{sIt}, 0")
    a(f"""
    s_mov_b32 s{sX+2}, {S * D * 2}
    s_mov_b32 s{sX+3}, 0x00020000
    s_mov_b32 s{sWt+2}, {D * 3 * D * 2}
    s_mov_b32 s{sWt+3}, 0x00020000
    s_waitcnt lgkmcnt(0)
    s_and_b32 s{sX+1}, s{sX+1}, 0xffff
    s_mov_b32 s{sWt}, s{sPtr}
    s_and_b32 s{sWt+1}, s{sPtr+1}, 0xffff
    """)
    if 'tlb2' in OPT:
        a.c("start the address translations of the pages of W (and the other end of X) together with the first X loads")
        a(f"""
        s_mul_i32 s{sT0}, s{sJ}, {(D * 3 * D * 2 - 4) // 3 // 4 * 4}
        s_buffer_load_dword s6, s[{sWt}:{sWt+3}], s{sT0}
        """)
    a(f"""
    s_branch LL_go
    """)
    a(f"""
    LL_X:
    s_lshl_b32 s{sT0}, s{sKX}, 7
    s_add_u32 s{sT0}, s{sT0}, s{sXo}
    s_add_u32 s{sKX}, s{sKX}, 1
    buffer_load_dwordx4 v{vE}, s[{sX}:{sX+3}], s{sT0} offen lds
    buffer_load_dwordx4 v{vO}, s[{sX}:{sX+3}], s{sT0} offen offset:1024 lds
    s_add_u32 m0, m0, 2048
    s_add_u32 s{sT0}, s{sT0}, {16 * 1280}
    buffer_load_dwordx4 v{vE}, s[{sX}:{sX+3}], s{sT0} offen lds
    buffer_load_dwordx4 v{vO}, s[{sX}:{sX+3}], s{sT0} offen offset:1024 lds
    s_cmp_eq_u32 s{sKX}, 10
    s_cselect_b32 s{sKX}, 0, s{sKX}
    s_setpc_b64 s[{sLnk}:{sLnk+1}]
    LL_Wskip:
    s_waitcnt vmcnt(0)
    s_setpc_b64 s[{sLnk}:{sLnk+1}]
    LL_W:
    s_cmp_eq_u32 s{sIt}, 1
    s_cbranch_scc1 LL_Wskip
    s_mul_i32 s{sT1}, s{sKW}, {64 * 3840}
    s_add_u32 s{sT1}, s{sT1}, s{sWo}
    s_add_u32 s{sKW}, s{sKW}, 1
    """)
    for p in range(4):
        a(f"buffer_load_dwordx4 v{vWs2 if p >= 2 else vWs}, s[{sWt}:{sWt+3}], s{sT1} offen lds")
        if p < 3:
            a(f"s_add_u32 m0, m0, 1024")
            a(f"s_add_u32 s{sT1}, s{sT1}, {4 * 3840}")
    a(f"""
    s_cmp_eq_u32 s{sKW}, 10
    s_cselect_b32 s{sKW}, 0, s{sKW}
    s_setpc_b64 s[{sLnk}:{sLnk+1}]
    """)
    a("LL_go:")
    delay(a, 2)
    stamp(a, 13)
    q = []

    def issue(it):
        if it == ("W", 10):
            a(f"s_cmp_ge_u32 s{sTI}, 5\ns_cselect_b32 s{sT0}, {6 * 128}, s{sC640}\ns_add_u32 s{sWo}, s{sWo}, s{sT0}")
            a(f"s_cmp_eq_u32 s{sTI}, 7\ns_cselect_b32 s{sIt}, 1, 0")
        a(f"s_add_u32 m0, s{sInc}, {slot[it] * GSL}\ns_call_b64 s[{sLnk}:{sLnk+1}], LL_{it[0]}")
        q.extend([it] * 4)

    def wait_for(names):
        last = max(i for i, x in enumerate(q) if x in names)
        a(f"s_waitcnt vmcnt({min(63, len(q) - 1 - last)})")

    sC640 = sT4
    first = [it for it in items if when[it] == -1]
    for i, it in enumerate(first):
        if i == TLB_AT:
            touch_pages(a)
        issue(it)
    stamp(a, 14)
    vPf = 234
    bars = stage_barriers()
    stamp(a, 15)
    for bi, bar in enumerate(bars):
        upto = bars[bi + 1] - 1 if bi + 1 < len(bars) else 19
        wait_for([("X", bar), ("W", upto)] + (["cnt"] if bar == 11 else []))
        if bar == 11:
            a.c("all counters must have been cleared before the first one is used")
            a(f"v_cmp_gt_u32 vcc, 8, v{vCnt}\ns_cbranch_vccz LL_cnt_ok")
            poll(a, [(vP + 5, f"s[{sDbg}:{sDbg+3}]", "0")], 8, vPS)
            a("LL_cnt_ok:")
        a("s_barrier")
        if bar not in (2, 3, 4, 5, 6, 7, 8, 9): stamp(a, 8 + min(bar, 15))
        if bar == 11:
            attn_scalars(a)
            attn_vectors(a)
            repack_setup(a)
            a.c("wave 0 publishes the phase-a tile once its four storing waves have reported")
            a(f"""
            v_mov_b32 v{vP+2}, {LCNT0}
            s_cmp_lg_u32 s{sJ}, 0
            s_cbranch_scc1 LL_pub
            s_mov_b32 s{sSpin}, {SPIN * 8}
            LL_try:
            ds_read_b32 v{vP}, v{vP+2}
            s_waitcnt lgkmcnt(0)
            v_readfirstlane_b32 s{sT0}, v{vP}
            s_cmp_eq_u32 s{sT0}, 16
            s_cbranch_scc1 LL_try_go
            s_sub_u32 s{sSpin}, s{sSpin}, 1
            s_cbranch_scc0 LL_try
            LL_try_go:
            s_call_b64 s[{sLnk}:{sLnk+1}], LG_publish
            """)
            stamp(a, 27)
            a("LL_pub:")
        a(f"s_mov_b32 s{sC640}, 640")
        for it in items:
            if when[it] == bar:
                issue(it)
        if bar == 11:
            lead_prepare(a)
        if bar == 10:
            a(f"v_mov_b32 v{vP}, 0\nv_mov_b32 v{vP+2}, {LCNT0}\nds_write_b32 v{vP+2}, v{vP}\ns_waitcnt lgkmcnt(0)")
        if bar + 10 == TLB_AT:
            touch_pages(a)
        if bar == PF_BAR:
            a.c("one load per 128-B line of the phase-b columns of five weight rows brings them on chip ahead of use")
            a(f"""
            s_lshr_b32 s{sT0}, s2, 3
            s_lshl_b32 s{sT0}, s{sT0}, 2
            s_and_b32 s{sT1}, s2, 3
            s_add_u32 s{sT0}, s{sT0}, s{sT1}
            s_mul_i32 s{sT0}, s{sT0}, {5 * 3840}
            s_mul_i32 s{sT1}, s{sJ}, 19
            v_add_u32 v8, s{sT1}, v0
            v_min_u32 v8, 74, v8
            v_mul_u32_u24 v9, 205, v8
            v_lshrrev_b32 v9, 10, v9
            v_mul_u32_u24 v9, 5, v9
            v_add3_u32 v9, v9, v8, 5
            v_lshlrev_b32 v{vPf}, 7, v9
            s_mov_b64 exec, 0x7ffff
            buffer_load_dword v{vPS}, v{vPf}, s[{sWt}:{sWt+3}], s{sT0} offen
            s_mov_b64 exec, -1
            """)
            q.append("pf")
        if bar == 8:
            common_setup(a)
            a(f"v_lshlrev_b32 v{vP+5}, 2, v0\nv_or_b32 v{vP+5}, 128, v{vP+5}")
            a(f"buffer_load_dword v{vCnt}, v{vP+5}, s[{sDbg}:{sDbg+3}], 0 offen sc1")
            q.append("cnt")
    a("s_branch LA_lead")


vKA, vVA, vT0, vT1 = 1, 2, 3, 14
Qm = [4, 8]
Qe = 12
vL16 = 15
Km = [16, 20]
Ke = 24
Vb = [[28, 32], [36, 40]]
vVbase, vVflag, vE16, vVG = 44, 45, 46, 47
NM = 48
SB = [80, 112]
OA = [144, 160]
vD = 176
vP = 182
vPS = 188
vVB2 = 248
vIdx, vK16 = 192, 193
NVGPR = 256


def mfma32(d, a_, b, c):
    return f"v_mfma_f32_32x32x16_bf16 {vr(d,16)}, {vr(a_,4)}, {vr(b,4)}, {c}"


def mfma2b(d, ke_tile, c):
    return (f"v_mfma_f32_32x32x4_2b_bf16 {vr(d,32)}, {vr(Ke + 2 * (ke_tile >> 1), 2)}, {vr(Qe,2)}, {c}"
            f" cbsz:1 abid:{ke_tile & 1}")


def pv(o, v, p):
    return f"v_smfmac_f32_32x32x32_bf16 {vr(o,16)}, {vr(v,4)}, {vr(p,8)}, v{vIdx}"


POS = [2, 6, 14, 18, 22, 26, 30]


def tile_iter(a, ii, half=1):
    par = ii & 1
    X, Y = SB[par], SB[par ^ 1]
    Vc, Vn = Vb[par], Vb[par ^ 1]
    Kc, Kn = Km[par ^ 1], Km[par]
    t1 = (ii + 1) % 4
    t2 = (ii + 2) % 4
    kch = CH if (half == 0) == (ii >= 2) else 0
    rv0 = f"ds_read_b128 {vr(Vn[0],4)}, v{vVA} offset:{t1 * 1280}"
    rv1 = f"ds_read_b128 {vr(Vn[1],4)}, v{vVA} offset:{t1 * 1280 + 640}"
    rk = f"ds_read_b128 {vr(Kn,4)}, v{vKA} offset:{kch + 2048 + t2 * 1024}"
    rke = f"ds_read2st64_b64 {vr(Ke,4)}, v{vKA} offset0:{kch // 512} offset1:{kch // 512 + 2}"
    g = [[pv(OA[1], Vn[1], Y + 24), rv0],
         [mfma2b(Y, t1, vr(NM, 32))],
         [pv(OA[0], Vc[0], X), rv1],
         [pv(OA[0], Vc[1], X + 8), rk],
         [mfma32(Y, Kc, Qm[0], vr(Y, 16))],
         [mfma32(Y + 16, Kc, Qm[1], vr(Y + 16, 16))],
         [pv(OA[1], Vc[0], X + 16), "s_waitcnt lgkmcnt(0)"]]
    late = []
    if ii == 0:
        g[4].append(f"s_add_u32 s{sNext}, s{sNext}, {CH}")
    if ii == 2:
        g[4].append(rke)
        late = [f"v_mad_u32_u24 v{vVA}, v{vVflag}, s{sNext}, v{vVbase}"]
    if half == 0:
        if ii == 1:
            g[4].append(f"s_cmp_eq_u32 s{sM}, s{sRp}")
            g[5] += ["s_cbranch_scc1 LR_step", "LA_bar:"]
        if ii == 2 and 'noprio' not in OPT:
            g[5].append("s_setprio 0")
        if ii == 3:
            g[4].append(f"s_bitcmp1_b32 s{sMend}, s{sM}")
            g[6][1] = "s_waitcnt vmcnt(0) lgkmcnt(0)"
            g[6].append("s_barrier")
            if common.STAMP and 'cyc' in OPT:
                g[6] += [f"s_memtime s[{STAMP_S+28}:{STAMP_S+29}]"]
            if 'noprio' not in OPT:
                g[6].append("s_setprio 1")
            g[6] += ["s_cbranch_scc1 LA_refill", "LA_back:"]
    else:
        if ii == 0:
            g[5].append(f"s_cmp_eq_u32 s{sNext}, s{sRe}")
            if common.STAMP and 'cyc' in OPT:
                g[6] += [f"s_mov_b32 m0, s{sM}", "s_nop 0", f"s_movreld_b32 s{STAMP_S+8}, s{STAMP_S+28}"]
        if ii == 1:
            g[4].append(f"s_cselect_b32 s{sNext}, s{sRb}, s{sNext}")
            g[5].append(f"s_add_u32 s{sM}, s{sM}, 1")
            late = [f"v_add_u32 v{vKA}, s{sNext}, v{vK16}"]
        if ii == 3:
            g[5].append(f"s_sub_u32 s{sRem}, s{sRem}, 1")
    assert POS[2] >= 10 and POS[3] >= 18 and POS[6] >= 26 and POS[0] >= 2
    assert (POS[4] - POS[1]) + 4 >= 18 and (32 - POS[4]) + 3 >= 12
    ins = dict(zip(POS, g))
    for p in range(32):
        for x in ins.get(p, []):
            a(x)
        a(f"v_exp_f32 v{X+p}, v{X+p}")
        if p == 30:
            for x in late:
                a(x)


def rowmax(a, X, out0, out1):
    for base, o in ((X, out0), (X + 16, out1)):
        a(f"v_max3_f32 v{o}, v{base}, v{base+1}, v{base+2}")
        for r in range(3, 15, 2):
            a(f"v_max3_f32 v{o}, v{o}, v{base+r}, v{base+r+1}")
        a(f"v_max_f32 v{o}, v{o}, v{base+15}")


def cross_half_max(a, r, tmp):
    a(f"v_mov_b32 v{tmp}, v{r}\ns_nop 1\nv_permlane32_swap_b32 v{tmp}, v{r}\ns_nop 1\nv_max_f32 v{r}, v{r}, v{tmp}")


def fill_nm(a, m0, m1):
    for r in range(16):
        a(f"v_sub_f32 v{NM+r}, 0, v{m0}")
    for r in range(16):
        a(f"v_sub_f32 v{NM+16+r}, 0, v{m1}")


def attn_scalars(a):
    a.c("head offsets: main octs start at (5g+1)>>1; the ext quad shares an oct with the neighbouring head;")
    a.c("arrivals expected per kind: 16 token blocks x number of 64-column units that hold the head")
    a(f"""
    s_mul_i32 s{sOm}, s{sHead}, 5
    s_add_u32 s{sOm}, s{sOm}, 1
    s_lshr_b32 s{sOm}, s{sOm}, 1
    s_lshl_b32 s{sOm}, s{sOm}, 9
    s_and_b32 s{sT0}, s{sHead}, 1
    s_mov_b32 s{sT1}, 1024
    s_cselect_b32 s{sT1}, {(-512 + 8) & 0xffffffff}, s{sT1}
    s_add_u32 s{sExt}, s{sOm}, s{sT1}
    s_min_u32 s{sT0}, s{sOm}, s{sExt}
    s_add_u32 s{sT2}, s{sOm}, 512
    s_max_u32 s{sT1}, s{sExt}, s{sT2}
    s_lshr_b32 s{sT0}, s{sT0}, 12
    s_lshr_b32 s{sT1}, s{sT1}, 12
    s_cmp_eq_u32 s{sT0}, s{sT1}
    s_cselect_b32 s{sExp}, 16, 32
    """)


def attn_vectors(a):
    a(f"""
    s_and_b32 s{sT0}, s{sHead}, 1
    v_lshlrev_b32 v{vL16}, 4, v0
    v_lshrrev_b32 v{vT0}, 5, v0
    v_mul_u32_u24 v{vT1}, {TILE}, v{vT0}
    v_and_b32 v{vP}, 31, v0
    v_lshl_add_u32 v{vE16}, v{vP}, 4, v{vT1}
    """)
    a.c("V rows: 0..15 main dims, 16..19 ext dims, 20 and 24 ones, the others zero (address past the allocation)")
    a(f"""
    s_lshl_b32 s{sT0}, s{sT0}, 2
    v_and_b32 v{vP+1}, 3, v0
    v_and_b32 v{vP+2}, 4, v0
    v_lshl_add_u32 v{vP+1}, v{vP+2}, 1, v{vP+1}
    v_and_b32 v{vP+2}, 8, v0
    v_lshrrev_b32 v{vP+2}, 1, v{vP+2}
    v_add3_u32 v{vP+1}, v{vP+1}, v{vP+2}, s{sT0}
    s_lshl_b32 s{sT0}, s{sT0}, 2
    v_subrev_u32 v{vP+2}, s{sT0}, v{vP}
    v_cmp_gt_u32 vcc, 16, v{vP}
    v_mul_u32_u24 v{vT1}, 10240, v{vT0}
    v_mul_u32_u24 v{vT0}, 320, v{vT0}
    v_cndmask_b32 v{vP+1}, v{vP+2}, v{vP+1}, vcc
    v_lshlrev_b32 v{vP+1}, 4, v{vP+1}
    v_add_u32 v{vVG}, v{vP+1}, v{vT1}
    v_add_u32 v{vVbase}, v{vP+1}, v{vT0}
    v_add_u32 v{vVbase}, 6144, v{vVbase}
    v_cmp_gt_u32 vcc, 20, v{vP}
    v_mov_b32 v{vP+1}, 0x100000
    v_mov_b32 v{vP+2}, {ONES[0]}
    v_cndmask_b32 v{vVflag}, 0, 1, vcc
    v_cndmask_b32 v{vVbase}, v{vP+1}, v{vVbase}, vcc
    v_cmp_eq_u32 vcc, 20, v{vP}
    v_cmp_eq_u32 s[{sT3}:{sT4}], 24, v{vP}
    s_or_b64 vcc, vcc, s[{sT3}:{sT4}]
    v_mov_b32 v{vP+1}, {ONES[1]}
    s_nop 0
    v_cndmask_b32 v{vVB2}, v{vVbase}, v{vP+1}, vcc
    v_cndmask_b32 v{vVbase}, v{vVbase}, v{vP+2}, vcc
    """)
    a.c("DMA source offsets: even waves load K pieces, odd waves V pieces")
    a(f"""
    s_and_b32 s{sT0}, s{sJ}, 1
    s_cbranch_scc1 LA_dv
    v_add_u32 v{vD}, s{sExt}, v{vE16}
    v_add_u32 v{vD+1}, {2 * TILE}, v{vD}
    v_add_u32 v{vD+2}, s{sOm}, v{vL16}
    v_add_u32 v{vD+3}, {TILE}, v{vD+2}
    v_add_u32 v{vD+4}, {TILE}, v{vD+3}
    v_add_u32 v{vD+5}, {TILE}, v{vD+4}
    s_branch LA_dd
    LA_dv:
    s_mul_i32 s{sT0}, s{sHead}, 320
    s_add_u32 s{sT0}, s{sT0}, {IMG}
    """)
    for p in range(5):
        a(f"""
        v_add_u32 v{vP}, {64 * p}, v0
        v_mul_u32_u24 v{vP+1}, 3277, v{vP}
        v_lshrrev_b32 v{vP+1}, 16, v{vP+1}
        v_mul_u32_u24 v{vP+2}, 20, v{vP+1}
        v_sub_u32 v{vP+2}, v{vP}, v{vP+2}
        v_mul_u32_u24 v{vP+1}, 10240, v{vP+1}
        v_lshl_add_u32 v{vP+1}, v{vP+2}, 4, v{vP+1}
        v_add_u32 v{vD+p}, s{sT0}, v{vP+1}
        """)
    a(f"""
    v_mov_b32 v{vD+5}, v{vD+4}
    LA_dd:
    v_lshlrev_b32 v{vP+3}, 7, v0
    v_mov_b32 v{vP+4}, 0
    """)


def vectors_put(a):
    a(f"""
    s_and_b32 s{sT0}, s{sJ}, 1
    s_lshl_b32 s{sT0}, s{sT0}, 12
    s_add_u32 s{sT0}, s{sT0}, {XFER}
    v_add_u32 v{vT0}, s{sT0}, v{vL16}
    v_mov_b32 v20, v{vVB2}
    v_mov_b32 v21, v{vVflag}
    v_mov_b32 v22, v{vE16}
    v_mov_b32 v23, v{vVG}
    ds_write_b128 v{vT0}, v[20:23]
    ds_write_b128 v{vT0}, {vr(vD,4)} offset:1024
    ds_write_b64 v{vT0}, {vr(vD+4,2)} offset:2048
    """)


def vectors_get(a):
    lane_id(a, 0)
    a(f"""
    s_and_b32 s{sT0}, s{sJ}, 1
    s_lshl_b32 s{sT0}, s{sT0}, 12
    s_add_u32 s{sT0}, s{sT0}, {XFER}
    v_lshlrev_b32 v{vL16}, 4, v0
    v_add_u32 v{vT0}, s{sT0}, v{vL16}
    ds_read_b128 {vr(vVbase,4)}, v{vT0}
    ds_read_b128 {vr(vD,4)}, v{vT0} offset:1024
    ds_read_b64 {vr(vD+4,2)}, v{vT0} offset:2048
    v_lshlrev_b32 v{vP+3}, 7, v0
    """)
    attn_scalars(a)
    a("s_waitcnt lgkmcnt(0)")


def dma_sub(a):
    a(f"""
    LA_dma:
    s_add_u32 s{sT2}, s{sT1}, s{sQB if 'kvrot' in OPT else sHead}
    s_and_b32 s{sT2}, s{sT2}, 7
    s_lshl_b32 s{sT2}, s{sT2}, 1
    s_lshr_b32 s{sT3}, s{sJ}, 1
    s_add_u32 s{sT2}, s{sT2}, s{sT3}
    s_mul_i32 s{sT2}, s{sT2}, {4 * TILE}
    s_lshl_b32 s{sT4}, s{sJ}, 1
    s_and_b32 s{sT4}, s{sT4}, 2
    s_lshr_b32 s{sT4}, 20480, s{sT4}
    s_mul_i32 s{sT4}, s{sT4}, s{sT0}
    s_add_u32 s{sT2}, s{sT2}, s{sT4}
    s_add_u32 s{sT2}, s{sT2}, s{sImg}
    s_add_u32 s{sT2}, s{sT2}, {IMG}
    s_sub_u32 s{sT1}, s{sT1}, s{sT0}
    s_add_u32 s{sT1}, s{sT1}, 1
    s_mul_i32 s{sT4}, s{sT1}, 43
    s_lshr_b32 s{sT4}, s{sT4}, 7
    s_mul_i32 s{sT4}, s{sT4}, 3
    s_sub_u32 s{sT1}, s{sT1}, s{sT4}
    s_lshl_b32 s{sT1}, s{sT1}, 1
    s_add_u32 s{sT1}, s{sT1}, s{sT3}
    s_mul_i32 s{sT1}, s{sT1}, {CH}
    s_mul_i32 s{sT4}, s{sT0}, {RA - RB}
    s_sub_u32 s{sT1}, s{sT1}, s{sT4}
    s_add_u32 s{sT1}, s{sT1}, {RA}
    s_and_b32 s{sT3}, s{sJ}, 1
    s_mul_i32 s{sT4}, s{sT3}, 6144
    s_add_u32 m0, s{sT1}, s{sT4}
    s_nop 0
    """)
    for p in range(5):
        a(f"buffer_load_dwordx4 v{vD+p}, {WSR()}, s{sT2} offen sc1 lds")
        a("s_add_u32 m0, m0, 1024")
        a("s_nop 0" if p < 4 else f"s_cmp_eq_u32 s{sT3}, 1")
    a(f"""
    s_cbranch_scc1 LA_dma_ret
    buffer_load_dwordx4 v{vD+5}, {WSR()}, s{sT2} offen sc1 lds
    LA_dma_ret:
    s_setpc_b64 s[{sLnk}:{sLnk+1}]
    """)


def call_dma(a, b, blk):
    a(f"s_mov_b32 s{sT0}, {b}\ns_mov_b32 s{sT1}, {blk}\ns_call_b64 s[{sLnk}:{sLnk+1}], LA_dma")


def poll_f1(a):
    a(f"""
    s_lshl_b32 s{sT0}, s{sBr}, 5
    s_add_u32 s{sT0}, s{sT0}, s{sHead}
    s_lshl_b32 s{sT0}, s{sT0}, 9
    s_add_u32 s{sT0}, s{sT0}, {WS_C1}
    """)
    poll_counter(a, vP + 3, f"s{sT0}", f"s{sExp}", 7)


def load_q(a):
    a(f"""
    s_lshl_b32 s{sT0}, s{sQB}, 2
    s_add_u32 s{sT0}, s{sT0}, s{sJ}
    s_mul_i32 s{sT0}, s{sT0}, {2 * TILE}
    s_add_u32 s{sT0}, s{sT0}, s{sImg}
    s_add_u32 s{sT1}, s{sT0}, s{sOm}
    s_add_u32 s{sT2}, s{sT1}, {TILE}
    s_add_u32 s{sT0}, s{sT0}, s{sExt}
    buffer_load_dwordx4 {vr(Qm[0],4)}, v{vL16}, {WSR()}, s{sT1} offen sc1
    buffer_load_dwordx4 {vr(Qm[1],4)}, v{vL16}, {WSR()}, s{sT2} offen sc1
    buffer_load_dwordx2 {vr(Qe,2)}, v{vE16}, {WSR()}, s{sT0} offen sc1
    """)


def scale_q(a, nyounger):
    a(f"s_mov_b32 s4, {hex(f32bits(QSCALE))}\ns_mov_b32 s5, s4\ns_waitcnt vmcnt({nyounger})")
    for r in range(Qm[0], Qe + 2):
        a(f"""
        v_lshlrev_b32 v{vPS+2}, 16, v{r}
        v_and_b32 v{vPS+3}, 0xffff0000, v{r}
        v_pk_mul_f32 {vr(vPS+2,2)}, {vr(vPS+2,2)}, s[4:5]
        v_cvt_pk_bf16_f32 v{r}, v{vPS+2}, v{vPS+3}
        """)


def attn_zero(a):
    Z = Vb[1][1]
    for r in (Z, Z + 2, SB[1] + 24, SB[1] + 26, SB[1] + 28, SB[1] + 30):
        a(f"v_pk_mov_b32 {vr(r,2)}, 0, 0")
    a(f"v_mov_b32 v{vP}, 0xbf803f80\nv_mov_b32 v{vP+1}, 0\nv_mov_b32 v{vPS+1}, 0")
    a(f"v_mfma_f32_32x32x4_2b_bf16 {vr(OA[0],32)}, {vr(Z,2)}, {vr(Z,2)}, 0")
    a(f"""
    s_add_u32 s{sRe}, s{sRb}, {RING}
    s_mov_b32 s{sRem}, 7
    v_mov_b32 v{vIdx}, 0xdddddddd
    v_lshrrev_b32 v{vK16}, 1, v{vL16}
    v_xor_b32 v{vK16}, v{vK16}, v{vL16}
    v_and_b32 v{vK16}, 64, v{vK16}
    v_mul_u32_u24 v{vK16}, 3, v{vK16}
    v_xor_b32 v{vK16}, v{vK16}, v{vL16}
    v_add_u32 v{vKA}, s{sNext}, v{vK16}
    v_mad_u32_u24 v{vVA}, v{vVflag}, s{sNext}, v{vVbase}
    """)


DELAY_AT, DELAY = 0, 0


def delay(a, at):
    if DELAY_AT == at and DELAY:
        a(f"s_memrealtime s[4:5]\ns_waitcnt lgkmcnt(0)\ns_add_u32 s6, s4, {DELAY}\nLD_{at}:\ns_sleep 1\ns_memrealtime s[4:5]\ns_waitcnt lgkmcnt(0)\ns_cmp_lt_u32 s4, s6\ns_cbranch_scc1 LD_{at}")


def attention(a):
    X = SB[0]
    delay(a, 1)
    a("LA_start:")
    stamp_cyc(a, 24)
    a(f"""
    ds_read_b128 {vr(Km[0],4)}, v{vKA} offset:2048
    ds_read2st64_b64 {vr(Ke,4)}, v{vKA} offset0:0 offset1:2
    ds_read_b128 {vr(Km[1],4)}, v{vKA} offset:3072
    ds_read_b128 {vr(Vb[0][0],4)}, v{vVA}
    ds_read_b128 {vr(Vb[0][1],4)}, v{vVA} offset:640
    s_waitcnt lgkmcnt(4)
    """)
    a(mfma32(X, Km[0], Qm[0], 0))
    a(mfma32(X + 16, Km[0], Qm[1], 0))
    a("s_nop 8\ns_waitcnt lgkmcnt(3)")
    a(mfma2b(X, 0, vr(X, 32)))
    a("s_nop 15\ns_nop 3")
    a.c("softmax shift: row max over the first key tile, cut to bf16; the epilogue checks that it was safe.")
    a.c("An MFMA (-1 x shift + 1 x half a bf16 step, which centres the cut to bf16 at the row max) applies it to the scores")
    a.c("and spreads it over the C operand of the loop")
    rowmax(a, X, vT0, vT1)
    a(f"""
    s_nop 1
    v_permlane32_swap_b32 v{vT0}, v{vT1}
    s_nop 1
    v_max_f32 v{vT0}, v{vT0}, v{vT1}
    v_and_b32 v{vPS}, 0xffff0000, v{vT0}
    v_or_b32 v{vPS}, 0x3bb8, v{vPS}
    s_nop 1
    v_mfma_f32_32x32x4_2b_bf16 {vr(X,32)}, {vr(vP,2)}, {vr(vPS,2)}, {vr(X,32)}
    v_mfma_f32_32x32x4_2b_bf16 {vr(NM,32)}, {vr(vP,2)}, {vr(vPS,2)}, 0
    s_nop 15
    s_nop 0
    s_setprio {0 if 'noprio' in OPT else 1}
    s_waitcnt lgkmcnt(0)
    """)
    if LOFF >= 0:
        a(f"s_branch LA_loop\n.p2align 8\n.fill {LOFF // 4}, 4, 0xbf800000\nLA_loop:")
    else:
        a(".p2align 6\nLA_loop:")
    for half in range(2):
        for ii in range(4):
            tile_iter(a, ii, half)
    a("s_cbranch_scc0 LA_loop\ns_nop 0")
    a(pv(OA[1], Vb[1][1], SB[1] + 24))
    if 'alow' in OPT:
        a("s_setprio 0")
    a(f"s_cmp_eq_u32 s{sRole}, 0\ns_cbranch_scc1 LA_fin2\ns_setprio 2")
    a.c("announce that the results are about to be stored; readers then wait for the markers to disappear")
    count_in(a, sOc, vP, vP + 1)
    a("LA_fin2:")
    stamp(a, 4)
    stamp_cyc(a, 31)
    N = SB[0]
    rc = SB[1]
    tm = rc + 4

    def norm(u):
        O, P = OA[u], N + 12 * u
        for r in range(0, 12, 2):
            a(f"v_pk_mul_f32 {vr(P+r,2)}, {vr(O+r,2)}, {vr(rc+2*u,2)} op_sel_hi:[1,0]")
        for j in range(6):
            a(f"v_cvt_pk_bf16_f32 v{P+j}, v{P+2*j}, v{P+2*j+1}")
    a(f"""
    s_mov_b32 s{sRem}, 0
    LA_epi:
    v_cmp_lt_u32 vcc, 31, v0
    s_add_u32 s{sT0}, s{sOb}, s{sOm}
    s_add_u32 s{sT1}, s{sT0}, {TILE}
    v_cndmask_b32 v{vT0}, v{OA[0]+12}, v{OA[0]+8}, vcc
    v_rcp_f32 v{rc}, v{vT0}
    v_pk_add_f32 {vr(tm,2)}, {vr(OA[0],2)}, {vr(OA[0]+2,2)}
    """)
    a.c("safety check of the shift before anything is stored: row sums inside [2^-30, 2^30], finite accumulators")
    for r in range(4, 12, 2):
        a(f"v_pk_add_f32 {vr(tm,2)}, {vr(tm,2)}, {vr(OA[0]+r,2)}")
    norm(0)
    a(f"v_cndmask_b32 v{vT1}, v{OA[1]+12}, v{OA[1]+8}, vcc\nv_rcp_f32 v{rc+2}, v{vT1}")
    for r in range(0, 12, 2):
        a(f"v_pk_add_f32 {vr(tm,2)}, {vr(tm,2)}, {vr(OA[1]+r,2)}")
    a(f"""
    v_add_f32 v{tm}, v{tm}, v{tm+1}
    v_add_f32 v{tm+1}, v{vT0}, v{vT1}
    v_fma_f32 v{tm}, 0, v{tm}, v{tm+1}
    v_min_f32 v{tm+1}, v{vT0}, v{vT1}
    v_cmp_gt_f32 vcc, {hex(f32bits(2.0**30))}, v{tm}
    s_mov_b64 s[4:5], vcc
    v_cmp_lt_f32 vcc, {hex(f32bits(2.0**-30))}, v{tm+1}
    """)
    for j in range(4):
        a(f"v_min_u32 v{N+j}, -2, v{N+j}")
    a(f"""
    s_and_b64 s[4:5], s[4:5], vcc
    s_cmp_eq_u64 s[4:5], -1
    s_cselect_b32 s{sT3}, 1, s{sRem}
    s_cmp_eq_u32 s{sT3}, 0
    s_cbranch_scc1 LA_slow
    buffer_store_dwordx4 {vr(N,4)}, v{vL16}, {WSR()}, s{sT0} offen sc1
    """)
    norm(1)
    for j in range(4):
        a(f"v_min_u32 v{N+12+j}, -2, v{N+12+j}")
    a(f"""
    buffer_store_dwordx4 {vr(N+12,4)}, v{vL16}, {WSR()}, s{sT1} offen sc1
    v_permlane32_swap_b32 v{N+4}, v{N+16}
    v_permlane32_swap_b32 v{N+5}, v{N+17}
    s_add_u32 s{sT2}, s{sOb}, s{sExt}
    v_min_u32 v{N+4}, -2, v{N+4}
    v_min_u32 v{N+5}, -2, v{N+5}
    buffer_store_dwordx2 {vr(N+4,2)}, v{vE16}, {WSR()}, s{sT2} offen sc1
    """)


def o_base(a):
    a(f"""
    s_lshl_b32 s{sT0}, s{sQB}, 2
    s_add_u32 s{sT0}, s{sT0}, s{sJ}
    s_mul_i32 s{sOb}, s{sT0}, {2 * TILE}
    s_add_u32 s{sOb}, s{sOb}, s{sImg}
    s_add_u32 s{sOb}, s{sOb}, {3 * IMG}
    """)
    a(f"s_lshr_b32 s{sT1}, s{sHead}, 3\ns_max_u32 s{sT1}, s{sT1}, 1\ns_sub_u32 s{sT1}, s{sT1}, 1")
    c3_off(a, sOc, sT0, sT1)


def o_mark(a):
    o_base(a)
    a(f"""
    s_add_u32 s{sT0}, s{sOb}, s{sOm}
    s_add_u32 s{sT1}, s{sT0}, {TILE}
    s_add_u32 s{sT2}, s{sOb}, s{sExt}
    buffer_store_dwordx4 v[20:23], v{vL16}, {WSR()}, s{sT0} offen sc1
    buffer_store_dwordx4 v[20:23], v{vL16}, {WSR()}, s{sT1} offen sc1
    buffer_store_dwordx2 v[20:21], v{vE16}, {WSR()}, s{sT2} offen sc1
    """)


def refill(a):
    a.c("role-B waves refill both rings: after barrier m, A block m+2 and B block m-SK+2")
    a(f"""
    LA_refill:
    s_cmp_gt_u32 s{sM}, 5
    s_cbranch_scc1 LA_ev_b
    s_mov_b32 s{sT0}, 0
    s_add_u32 s{sT1}, s{sM}, 2
    s_call_b64 s[{sLnk}:{sLnk+1}], LA_dma
    LA_ev_b:
    s_sub_u32 s{sT1}, s{sM}, {SK - 2}
    s_cmp_lt_u32 s{sT1}, 3
    s_cbranch_scc1 LA_back
    s_mov_b32 s{sT0}, 1
    s_call_b64 s[{sLnk}:{sLnk+1}], LA_dma
    s_branch LA_back
    """)


def slow_path(a):
    X = SB[0]
    m0, m1, t0, t1 = SB[1], SB[1] + 1, SB[1] + 2, SB[1] + 3

    def kloads(t):
        a(f"buffer_load_dwordx4 {vr(Km[0],4)}, v{vL16}, {WSR()}, s{sT1} offen sc1")
        if t == 0:
            a(f"buffer_load_dwordx2 {vr(Ke,2)}, v{vE16}, {WSR()}, s{sT2} offen sc1")
            a(f"s_add_u32 s{sT2}, s{sT2}, {2 * TILE}")
        a(f"s_add_u32 s{sT1}, s{sT1}, {TILE}")

    def kbase():
        a(f"""
        s_add_u32 s{sT0}, s{sImg}, {IMG}
        s_add_u32 s{sT1}, s{sT0}, s{sOm}
        s_add_u32 s{sT2}, s{sT0}, s{sExt}
        s_mov_b32 s{sRem}, 0
        """)
    a(f"LA_slow:\nv_mov_b32 v{m0}, 0xff800000\nv_mov_b32 v{m1}, 0xff800000")
    kbase()
    a("LA_slow_max:")
    for t in range(2):
        kloads(t)
        a("s_waitcnt vmcnt(0)")
        a(mfma32(X, Km[0], Qm[0], 0))
        a(mfma32(X + 16, Km[0], Qm[1], 0))
        a("s_nop 9")
        a(mfma2b(X, t, vr(X, 32)))
        a("s_nop 15\ns_nop 3")
        rowmax(a, X, t0, t1)
        a(f"v_max_f32 v{m0}, v{m0}, v{t0}\nv_max_f32 v{m1}, v{m1}, v{t1}")
    a(f"s_add_u32 s{sRem}, s{sRem}, 1\ns_cmp_lt_u32 s{sRem}, 32\ns_cbranch_scc1 LA_slow_max")
    cross_half_max(a, m0, t0)
    cross_half_max(a, m1, t0)
    fill_nm(a, m0, m1)
    for r in range(32):
        a(f"v_mov_b32 v{OA[0]+r}, 0")
    for r in range(8):
        a(f"v_mov_b32 v{Vb[0][0]+r}, 0x3f803f80")
    kbase()
    a(f"""
    s_mul_i32 s{sT3}, s{sHead}, 320
    s_add_u32 s{sT3}, s{sT3}, s{sT0}
    s_add_u32 s{sT3}, s{sT3}, {IMG}
    LA_slow_pv:
    """)
    for t in range(2):
        kloads(t)
        a(f"""
        s_add_u32 s{sT4}, s{sT3}, 20480
        s_mov_b32 exec_lo, 0xfffff
        s_mov_b32 exec_hi, 0xfffff
        buffer_load_dwordx4 {vr(Vb[0][0],4)}, v{vVG}, {WSR()}, s{sT3} offen sc1
        buffer_load_dwordx4 {vr(Vb[0][1],4)}, v{vVG}, {WSR()}, s{sT4} offen sc1
        s_mov_b64 exec, -1
        s_add_u32 s{sT3}, s{sT3}, {TILE}
        s_waitcnt vmcnt(2)
        """)
        a(mfma32(X, Km[0], Qm[0], vr(NM, 16)))
        a(mfma32(X + 16, Km[0], Qm[1], vr(NM + 16, 16)))
        a("s_nop 9")
        a(mfma2b(X, t, vr(X, 32)))
        a("s_nop 15\ns_nop 3")
        for r in range(32):
            a(f"v_exp_f32 v{X+r}, v{X+r}")
        a("s_nop 0")
        for j in range(16):
            a(f"v_cvt_pk_bf16_f32 v{X + 8*(j//4) + j%4}, v{X+2*j}, v{X+2*j+1}")
        a("s_waitcnt vmcnt(0)\ns_nop 1")
        a(mfma32(OA[0], Vb[0][0], X, vr(OA[0], 16)))
        a(mfma32(OA[0], Vb[0][1], X + 8, vr(OA[0], 16)))
        a(mfma32(OA[1], Vb[0][0], X + 16, vr(OA[1], 16)))
        a(mfma32(OA[1], Vb[0][1], X + 24, vr(OA[1], 16)))
    a(f"""
    s_add_u32 s{sRem}, s{sRem}, 1
    s_cmp_lt_u32 s{sRem}, 32
    s_cbranch_scc1 LA_slow_pv
    s_nop 15
    s_mov_b32 s{sRem}, 1
    s_branch LA_epi
    """)


pWF = [16, 56]
pACC = 96
pACL = 196
pOF = 136
pWA, pOA = 2, 3


def c3_off(a, dst, t64, part):
    a(f"""
    s_lshl_b32 s{dst}, s{sBr}, 5
    s_add_u32 s{dst}, s{dst}, s{t64}
    s_mul_i32 s{dst}, s{dst}, 3
    s_add_u32 s{dst}, s{dst}, s{part}
    s_lshl_b32 s{dst}, s{dst}, 7
    s_add_u32 s{dst}, s{dst}, {WS_C3}
    """)


def wo_dma(a, k0, k1, lds0):
    _lbl[0] += 1
    L = f"LP_wd{_lbl[0]}"
    a(f"""
    s_and_b32 s{sT0}, s{sHead}, 3
    s_lshl_b32 s{sT1}, s{sBr}, 2
    s_add_u32 s{sT0}, s{sT0}, s{sT1}
    s_mul_i32 s{sT0}, s{sT0}, {WO_SLAB}
    s_lshl_b32 s{sT1}, s{sJ}, 10
    s_add_u32 s{sT0}, s{sT0}, s{sT1}
    s_add_u32 s{sT0}, s{sT0}, {WS_WO + 10240 * k0}
    s_add_u32 s{sT1}, s{sT1}, {lds0}
    {L}:
    s_mov_b32 m0, s{sT1}
    s_add_u32 s{sT1}, s{sT1}, 4096
    buffer_load_dwordx4 v{vL16}, {WSR()}, s{sT0} offen sc1 lds
    s_add_u32 s{sT0}, s{sT0}, 4096
    s_cmp_lt_u32 s{sT1}, {lds0 + 10240 * (k1 - k0)}
    s_cbranch_scc1 {L}
    """)


def o_addr(a):
    a(f"""
    s_lshl_b32 s{sT1}, s{sQB}, 2
    s_lshr_b32 s{sT2}, s{sHead}, 2
    s_add_u32 s{sT1}, s{sT1}, s{sT2}
    """)
    c3_off(a, sFc, sT1, sRole)
    a(f"""
    v_and_b32 v{vP+3}, 15, v0
    s_lshl_b32 s{sT1}, s{sT1}, 1
    s_lshr_b32 s{sT2}, s{sJ}, 1
    s_add_u32 s{sT1}, s{sT1}, s{sT2}
    s_mul_i32 s{sT1}, s{sT1}, {TILE}
    s_add_u32 s{sT1}, s{sT1}, s{sImg}
    s_and_b32 s{sT2}, s{sJ}, 1
    s_lshl_b32 s{sT2}, s{sT2}, 8
    s_add_u32 s{sT1}, s{sT1}, s{sT2}
    s_add_u32 s{sFo}, s{sT1}, {3 * IMG}
    v_lshrrev_b32 v{pOA}, 4, v0
    v_lshlrev_b32 v{pOA}, 9, v{pOA}
    v_lshl_add_u32 v{pOA}, v{vP+3}, 4, v{pOA}
    v_lshlrev_b32 v{vP+5}, 7, v0
    s_mov_b32 s{sF[0]}, s{sFo}
    s_add_u32 s{sF[1]}, s{sFo}, 10240
    """)


sF = [54, 55]


def o_load_sub(a, label, p0):
    a(f"{label}:\ns_mov_b32 s{sT1}, s{sF[p0 // 5]}")
    for i in range(5):
        a(f"buffer_load_dwordx4 {vr(pOF + 4*(p0 + i), 4)}, v{pOA}, {WSR()}, s{sT1} offen offset:{(i & 1) * 2048} sc1")
        if i & 1:
            a(f"s_add_u32 s{sT1}, s{sT1}, 4096")
    a(f"s_setpc_b64 s[{sLnk}:{sLnk+1}]")


def o_checked(a, label, p0, counted):
    a(f"s_mov_b32 s{sSpin}, {SPIN}\n{label}_chk:\nv_mov_b32 v{vPS}, 0\nv_mov_b32 v{vPS+1}, 0")
    for i in range(5):
        r = pOF + 4 * (p0 + i)
        if counted:
            a(f"s_waitcnt vmcnt({4 - i})")
        a(f"v_max3_u32 v{vPS}, v{vPS}, v{r}, v{r+1}\nv_max3_u32 v{vPS+1}, v{vPS+1}, v{r+2}, v{r+3}")
    a(f"""
    v_max_u32 v{vPS}, v{vPS}, v{vPS+1}
    v_cmp_eq_u32 vcc, -1, v{vPS}
    s_cbranch_vccz {label}_ok
    s_call_b64 s[{sLnk}:{sLnk+1}], {label}
    s_waitcnt vmcnt(0)
    s_sub_u32 s{sSpin}, s{sSpin}, 1
    s_cbranch_scc0 {label}_chk
    {label}_ok:
    """)


def peek(a, mask):
    a(f"""
    v_mov_b32 v{vPS+2}, 0
    s_mov_b64 exec, {mask}
    buffer_atomic_add v{vPS+2}, v{vP+5}, {WSR()}, s{sFc} offen sc0 sc1
    s_mov_b64 exec, -1
    """)


def ready_mask(a):
    a(f"v_cmp_le_u32 vcc, 8, v{vPS+2}\ns_and_b32 s{sPh}, vcc_lo, 3")


def order_sub(a):
    a(f"""
    LP_order:
    s_and_b32 s{sDone}, s{sPh}, 1
    s_xor_b32 s{sDone}, s{sDone}, 1
    s_mul_i32 s{sT0}, s{sDone}, 10240
    s_add_u32 s{sF[0]}, s{sFo}, s{sT0}
    s_sub_u32 s{sF[1]}, s{sFo}, s{sT0}
    s_add_u32 s{sF[1]}, s{sF[1]}, 10240
    """)


TAB = [8, 9, 10, 11, 12, 13, 14, 15, 52, 53]


sLnkM = 6


def oproj_subs(a, G3, Lo0):
    def wreads(p):
        return [f"ds_read_b128 {vr(pWF[p & 1] + 4*c, 4)}, v{pWA} offset:{c * 1024}" for c in range(10)]
    a(f"LP_pro:\nv_add_u32 v{pWA}, s{TAB[0]}, v{vL16}")
    for r in wreads(0):
        a(r)
    a(f"s_setpc_b64 s[{sLnkM}:{sLnkM+1}]")
    for p in range(10):
        if p % 5 == 0:
            a("LP_lo:" if p else "LP_hi:")
        rd = wreads(p + 1) if p < 9 else []
        if rd:
            a(f"v_add_u32 v{pWA}, s{TAB[p + 1]}, v{vL16}")
        for c in range(10):
            A = (pACL if p >= 5 else pACC) + 4 * c
            a(f"s_waitcnt lgkmcnt({9 if rd else 9 - c})")
            a(f"v_mfma_f32_16x16x32_bf16 {vr(A,4)}, {vr(pOF + 4*p, 4)}, {vr(pWF[p & 1] + 4*c, 4)}, {vr(A,4)}")
            if rd:
                a(rd[c])
            site = 2 * (p - 5) + c // 5
            if p >= 5 and c % 5 == 0 and site < 9:
                a(f"s_cbranch_scc1 LW_{site}\nLW_b{site}:")
            if p == MID_P and c == 9:
                a("s_cbranch_scc1 LP_mid\nLP_midb:")
        if p % 5 == 4:
            a(f"s_setpc_b64 s[{sLnkM}:{sLnkM+1}]")
    for site in range(9):
        a(f"LW_{site}:")
        n = 3 if site < 5 else 2
        if site == 0:
            a(f"s_mul_i32 s{sT1}, s{sJ}, {15 * 1024}\ns_add_u32 s{sT2}, s{sT0}, s{sT1}\ns_add_u32 m0, s{sT1}, {G3}")
        elif site == 5:
            a(f"s_lshl_b32 s{sT1}, s{sJ}, 13\ns_add_u32 s{sT2}, s{sT0}, s{sT1}\ns_add_u32 s{sT2}, s{sT2}, {6 * 10240}\ns_add_u32 m0, s{sT1}, {Lo0}")
        else:
            a(f"s_add_u32 m0, m0, {n * 1024}\ns_add_u32 s{sT2}, s{sT2}, {n * 1024}")
        a("s_cmp_eq_u32 0, 0")
        if site == 7:
            peek(a, 3)
        for i in range(n):
            a(f"buffer_load_dwordx4 v{vL16}, {WSR()}, s{sT2} offen offset:{i * 1024} sc1 lds")
        a(f"s_branch LW_b{site}")
    a("LP_mid:\ns_waitcnt vmcnt(0)")
    ready_mask(a)
    a(f"s_cmp_eq_u32 s{sPh}, 3\ns_cbranch_scc0 LP_midb\ns_call_b64 s[{sLnk}:{sLnk+1}], LP_ldlo\ns_branch LP_midb")


MID_P = 4
WOVEN_PRIO = 1


def set_tab(a, addrs):
    for r, x in zip(TAB, addrs):
        a(f"s_mov_b32 s{r}, {x}")


def out_addr(a):
    a.c("lane n = l & 15 holds columns 8n..8n+7 of a 128-column piece and 2n, 2n+1 of a 32-column piece (tokens 4*(l >> 4) + r);")
    a.c("odd column groups start with the narrow piece, so that the wide one covers whole 128-B lines")
    a(f"""
    s_lshl_b32 s{sT0}, s{sQB}, 2
    s_lshr_b32 s{sT1}, s{sHead}, 2
    s_add_u32 s{sT0}, s{sT0}, s{sT1}
    s_lshl_b32 s{sT0}, s{sT0}, 2
    s_add_u32 s{sT0}, s{sT0}, s{sJ}
    s_mul_i32 s{sT0}, s{sT0}, {16 * 2560}
    s_mul_i32 s{sT1}, s{sBr}, 1280
    s_add_u32 s{sT0}, s{sT0}, s{sT1}
    s_and_b32 s{sT1}, s{sHead}, 3
    s_mul_i32 s{sT1}, s{sT1}, 320
    s_add_u32 s{sXo}, s{sT0}, s{sT1}
    s_add_u32 s{sWo}, s{sXo}, {2 * 2560}
    v_lshrrev_b32 v4, 4, v0
    v_mul_u32_u24 v4, {4 * 2560}, v4
    v_and_b32 v6, 15, v0
    s_and_b32 s{sT0}, s{sHead}, 1
    s_cselect_b32 s{sT0}, 64, 0
    s_cselect_b32 s{sT1}, 0, 256
    v_lshl_add_u32 v5, v6, 2, v4
    v_lshl_add_u32 v4, v6, 4, v4
    v_add_u32 v4, s{sT0}, v4
    v_add_u32 v5, s{sT1}, v5
    """)


def out_store(a):
    OUTMOD = " nt" if 'outnt' in OPT else " sc1"
    for r in range(4):
        if r % 2 == 0:
            for c in range(10):
                a(f"v_pk_add_f32 {vr(pACC + 4*c + r, 2)}, {vr(pACC + 4*c + r, 2)}, {vr(pACL + 4*c + r, 2)}")
        P = 16 + 6 * r
        for j in range(5):
            a(f"v_cvt_pk_bf16_f32 v{P+j}, v{pACC + 8*j + r}, v{pACC + 8*j + 4 + r}")
        so = sXo if r < 2 else sWo
        a(f"buffer_store_dwordx4 {vr(P,4)}, v4, s[{sOut}:{sOut+3}], s{so} offen offset:{(r & 1) * 2560}{OUTMOD}")
        a(f"buffer_store_dword v{P+4}, v5, s[{sOut}:{sOut+3}], s{so} offen offset:{(r & 1) * 2560}{OUTMOD}")


rL, rT, rD, rX, rData = 194, 199, 201, 205, 208


def repack_setup(a):
    x = rX
    for i in range(5):
        a(f"""
        v_add_u32 v{x}, {64 * i}, v0
        v_mul_u32_u24 v{x+1}, 3277, v{x}
        v_lshrrev_b32 v{x+1}, 16, v{x+1}
        v_mul_u32_u24 v{x+2}, 20, v{x+1}
        v_sub_u32 v{x+2}, v{x}, v{x+2}
        v_mul_u32_u24 v{x+1}, 1280, v{x+1}
        v_lshl_add_u32 v{rL+i}, v{x+2}, 4, v{x+1}
        """)
    a(f"""
    v_and_b32 v{x}, 48, v0
    v_lshlrev_b32 v{x}, 4, v{x}
    v_add_u32 v{x}, {RPK}, v{x}
    v_and_b32 v{x+1}, 7, v0
    v_mul_u32_u24 v{x+1}, 1040, v{x+1}
    v_and_b32 v{x+2}, 8, v0
    v_lshl_add_u32 v{x+1}, v{x+2}, 1, v{x+1}
    v_add_u32 v{rD}, v{x}, v{x+1}
    v_and_b32 v{x+1}, 1, v0
    v_mul_u32_u24 v{x+1}, 1040, v{x+1}
    v_and_b32 v{x+2}, 14, v0
    v_lshl_add_u32 v{x+1}, v{x+2}, 3, v{x+1}
    v_add3_u32 v{rD+1}, v{x}, v{x+1}, 0
    v_lshrrev_b32 v{x}, 4, v0
    v_lshlrev_b32 v{x}, 3, v{x}
    v_lshrrev_b32 v{x+1}, 2, v0
    v_and_b32 v{x+1}, 3, v{x+1}
    v_add_u32 v{x}, v{x}, v{x+1}
    v_mul_u32_u24 v{x}, 320, v{x}
    v_and_b32 v{x+1}, 3, v0
    v_lshl_add_u32 v{x}, v{x+1}, 3, v{x}
    v_add_u32 v{x}, {RPK}, v{x}
    s_and_b32 s{sT0}, s2, 2
    s_cselect_b32 s{sT0}, 64, 0
    s_cselect_b32 s{sT1}, 0, 256
    v_add_u32 v{rT}, s{sT0}, v{x}
    v_add_u32 v{rT+1}, s{sT1}, v{x}
    v_add_u32 v{rX}, {RPK}, v{vL16}
    """)


sRu, sRs = 38, 39


def repack_steps(a):
    a(f"""
    LR_step:
    s_add_u32 s{sRp}, s{sRp}, 1
    s_and_b32 s{sT3}, s{sRu}, 3
    s_lshl_b32 s{sT4}, s{sBr}, 2
    s_add_u32 s{sT4}, s{sT4}, s{sT3}
    s_cmp_eq_u32 s{sRs}, 0
    s_cbranch_scc1 LR_load
    s_cmp_eq_u32 s{sRs}, 1
    s_cbranch_scc0 LR_s2
    s_lshr_b32 s{sT2}, s{sRu}, 2
    s_mul_i32 s{sT0}, s{sT4}, {WO_SLAB}
    s_mul_i32 s{sT2}, s{sT2}, 10240
    s_add_u32 s{sT0}, s{sT0}, s{sT2}
    s_add_u32 s{sT0}, s{sT0}, {WS_WO}
    """)
    for ct in range(10):
        for u in range(2):
            a(f"ds_read_b64_tr_b16 {vr(rData + 4*ct + 2*u, 2)}, v{rT + ct // 8} offset:{u*4*320 + (ct % 8)*32}")
        if ct == 4:
            a("s_waitcnt lgkmcnt(0)")
    a("s_waitcnt lgkmcnt(0)")
    for ct in range(10):
        a(f"ds_write_b128 v{rD + ct // 8}, {vr(rData + 4*ct, 4)} offset:{32 * ct if ct < 8 else 8 * 1040 + 128 * (ct - 8)}")
    a("s_waitcnt lgkmcnt(0)")
    for c in range(10):
        a(f"ds_read_b128 {vr(rData + 4*c, 4)}, v{rX} offset:{1040 * c}")
    for c in range(10):
        a(f"s_waitcnt lgkmcnt({9 - c})")
        a(f"buffer_store_dwordx4 {vr(rData + 4*c, 4)}, v{vL16}, {WSR()}, s{sT0} offen offset:{1024 * (c & 3)} sc1")
        if c & 3 == 3:
            a(f"s_add_u32 s{sT0}, s{sT0}, 4096")
    a(f"""
    s_mov_b32 s{sRs}, 2
    s_cmp_lt_u32 s{sRu}, 16
    s_cbranch_scc0 LA_bar
    s_add_u32 s{sRu}, s{sRu}, 64
    LR_load:
    s_mov_b32 s{sRs}, 1
    s_mov_b32 s{sWt}, s{sPtr+2}
    s_and_b32 s{sWt+1}, s{sPtr+3}, 0xffff
    s_mov_b32 s{sWt+2}, {D * D * 2}
    s_mov_b32 s{sWt+3}, 0x00020000
    s_lshr_b32 s{sT2}, s{sRu}, 2
    s_mul_i32 s{sT0}, s{sT2}, {32 * 1280}
    s_mul_i32 s{sT1}, s{sT3}, 320
    s_add_u32 s{sT0}, s{sT0}, s{sT1}
    s_mov_b32 m0, {RPK}
    s_add_u32 s{sT1}, s{sT0}, {16 * 1280}
    """)
    for i in range(10):
        a(f"buffer_load_dwordx4 v{rL + i % 5}, s[{sWt}:{sWt+3}], s{sT1 if i >= 5 else sT0} offen lds")
        a("s_add_u32 m0, m0, 1024\ns_nop 0")
    a(f"""
    s_branch LA_bar
    LR_s2:
    s_mov_b32 s{sRp}, -1
    s_lshl_b32 s{sT0}, s{sT4}, 7
    s_add_u32 s{sT0}, s{sT0}, {WS_C4}
    """)
    count_in(a, sT0, vP, vP + 1)
    a("s_branch LA_bar")


def write_ones(a, role):
    a(f"""
    v_and_b32 v{vT0}, 7, v0
    v_mul_u32_u24 v{vT0}, 640, v{vT0}
    v_add_u32 v{vT0}, {ONES[role]}, v{vT0}
    v_mov_b32 v16, 0x3f803f80
    v_mov_b32 v17, 0x3f803f80
    v_mov_b32 v18, 0x3f803f80
    v_mov_b32 v19, 0x3f803f80
    ds_write_b128 v{vT0}, v[16:19]
    """)


sL = 8


def lead_prepare(a):
    a(f"""
    s_lshr_b32 s{sRu}, s2, 3
    s_lshl_b32 s{sRu}, s{sRu}, 1
    s_bfe_u32 s{sT0}, s2, 0x10001
    s_add_u32 s{sRu}, s{sRu}, s{sT0}
    s_mov_b32 s{sRs}, 0
    s_and_b32 s{sT0}, s2, 1
    s_cselect_b32 s{sT0}, 0, s{sJ}
    s_cmp_eq_u32 s{sT0}, 1
    s_cselect_b32 s{sRp}, {RP_AT}, -1
    s_mov_b32 s{sM}, 0
    s_mov_b32 s{sMend}, 0
    s_mov_b32 s{sRb}, {RA}
    s_mov_b32 s{sNext}, {RA + BLK}
    """)
    attn_zero(a)
    o_base(a)
    a(f"""
    s_sub_u32 s{sT0}, s{sOb}, {3 * IMG}
    s_add_u32 s{sL},  s{sT0}, s{sOm}
    s_add_u32 s{sL+1}, s{sL},  {TILE}
    s_add_u32 s{sL+2}, s{sT0}, s{sExt}
    s_lshr_b32 s{sT3}, s{sJ}, 1
    s_mul_i32 s{sT1}, s{sT3}, {4 * TILE}
    s_add_u32 s{sT1}, s{sT1}, s{sImg}
    s_add_u32 s{sT1}, s{sT1}, {IMG}
    s_and_b32 s{sL+4}, s{sQB if 'kvrot' in OPT else sHead}, 7
    s_mul_i32 s{sL+3}, s{sL+4}, {8 * TILE}
    s_add_u32 s{sL+3}, s{sL+3}, s{sT1}
    s_add_u32 s{sL+4}, s{sL+4}, 1
    s_and_b32 s{sL+4}, s{sL+4}, 7
    s_mul_i32 s{sL+4}, s{sL+4}, {8 * TILE}
    s_add_u32 s{sL+4}, s{sL+4}, s{sT1}
    s_mul_i32 s{sL+5}, s{sT3}, {CH}
    s_and_b32 s{sL+6}, s{sJ}, 1
    s_mul_i32 s{sT4}, s{sL+6}, 6144
    s_add_u32 s{sL+5}, s{sL+5}, s{sT4}
    s_add_u32 m0, s{sL+5}, {RA + BLK}
    """)
    a(f"""
    s_lshl_b32 s{sL+7}, s{sBr}, 5
    s_add_u32 s{sL+7}, s{sL+7}, s{sHead}
    s_lshl_b32 s{sL+7}, s{sL+7}, 9
    s_add_u32 s{sL+7}, s{sL+7}, {WS_C1}
    """)


def common_setup(a):
    a(f"""
    s_and_b32 s{sT0}, s2, 1
    s_lshl_b32 s{sT0}, s{sT0}, 3
    s_and_b32 s{sT1}, s2, 2
    s_lshl_b32 s{sT1}, s{sT1}, 1
    s_add_u32 s{sT0}, s{sT0}, s{sT1}
    s_lshr_b32 s{sT2}, s2, 6
    s_add_u32 s{sHead}, s{sT0}, s{sT2}
    s_lshr_b32 s{sQB}, s2, 3
    s_and_b32 s{sQB}, s{sQB}, 7
    s_lshl_b32 s{sT2}, s{sRole}, 4
    s_add_u32 s{sHead}, s{sHead}, s{sT2}
    s_mul_i32 s{sImg}, s{sBr}, {4 * IMG}
    s_mov_b32 s{sPh}, 0
    s_mov_b32 s{sWS+2}, {WS_STAMP + 2048 * 128 if common.STAMP else WS_END}
    s_mov_b32 s{sWS+3}, 0x00020000
    s_mov_b32 s{sOut+2}, {S * 2 * D * 2}
    s_mov_b32 s{sOut+3}, 0x00020000
    s_mov_b32 s{sDbg+2}, 256
    s_mov_b32 s{sDbg+3}, 0x00020000
    s_waitcnt lgkmcnt(0)
    s_mov_b32 s{sOut}, s{sPtr+4}
    s_and_b32 s{sOut+1}, s{sPtr+5}, 0xffff
    s_mov_b32 s{sDbg}, s{sPtr+6}
    s_and_b32 s{sDbg+1}, s{sPtr+7}, 0xffff
    s_and_b32 s{sWS+1}, s{sWS+1}, 0xffff
    """)


def gen(a, label):
    kernel_head(a, label)
    a("s_cmp_ge_u32 s2, 256\ns_cbranch_scc1 LF_end")
    stamp(a, 0)
    a(f"""
    s_bfe_u32 s{sBr}, s2, 0x10002
    s_mul_i32 s{sT0}, s{sBr}, 24
    s_load_dwordx2 s[{sX}:{sX+1}], s[0:1], s{sT0}
    s_add_u32 s{sT1}, s{sT0}, 8
    s_load_dwordx4 s[{sPtr}:{sPtr+3}], s[0:1], s{sT1}
    s_load_dwordx4 s[{sPtr+4}:{sPtr+7}], s[0:1], 48
    s_load_dwordx2 s[{sWS}:{sWS+1}], s[0:1], 64
    v_lshrrev_b32 v1, 6, v0
    v_and_b32 v0, 63, v0
    v_readfirstlane_b32 s{sW}, v1
    """)
    if 'noearly' not in OPT:
        a.c("waves 4-6 start the address translations of X and W as soon as the pointers are there")
        a(f"""
        s_sub_u32 s{sT1}, s{sW}, 4
        s_cmp_lt_u32 s{sT1}, 3
        s_cbranch_scc0 LF_nt
        s_lshl_b32 s{sT1}, s{sT1}, 20
        s_waitcnt lgkmcnt(0)
        s_load_dword s6, s[{sX}:{sX+1}], s{sT1}
        s_load_dword s7, s[{sPtr}:{sPtr+1}], s{sT1}
        LF_nt:
        """)
    a(f"""
    s_and_b32 s{sT0}, s2, 3
    s_lshl_b32 s{sT0}, s{sT0}, 2
    s_bfe_u32 s{sT2}, s2, 0x20003
    s_add_u32 s{sTB}, s{sT0}, s{sT2}
    s_lshr_b32 s{sTI}, s2, 5
    """)
    if 'nocw' not in OPT:
        a.c("wave 7 pulls a quarter of the code into the L2, so that later instruction fetches find it there")
        a(f"""
        s_cmp_eq_u32 s{sW}, 7
        s_cbranch_scc0 LG_nocw
        s_getpc_b64 s[4:5]
        LG_pc:
        s_sub_u32 s4, s4, LG_pc-{label}
        s_subb_u32 s5, s5, 0
        s_lshl_b32 s{sT0}, s{sT2}, 13
        v_lshl_add_u32 v8, v0, 7, s{sT0}
        v_min_u32 v8, LF_codeend-{label}-4, v8
        global_load_dword v{gT+1}, v8, s[4:5]
        LG_nocw:
        """)
    a.c("phase-a units of tile ti: n = 2 ti + e, unit = n + 5 (n >= 5) + 5 (n >= 10)")
    a(f"""
    s_lshl_b32 s{sU0}, s{sTI}, 1
    s_cmp_ge_u32 s{sTI}, 5
    s_cselect_b32 s{sT0}, 10, 5
    s_cmp_ge_u32 s{sTI}, 3
    s_cselect_b32 s{sT0}, s{sT0}, 0
    s_add_u32 s{sU0}, s{sU0}, s{sT0}
    s_cmp_eq_u32 s{sTI}, 2
    s_cselect_b32 s{sT0}, 6, 1
    s_add_u32 s{sU1}, s{sU0}, s{sT0}
    s_and_b32 s{sJ}, s{sW}, 3
    s_lshr_b32 s{sRole}, s{sW}, 2
    s_cbranch_scc1 LG_start
    """)
    gemm_loader(a)
    a("LG_start:")
    common_setup(a)
    if CLR_AT < 0:
        clear_counters(a, "LG")
    gemm_compute(a)
    a("LG_idle:\ns_waitcnt lgkmcnt(0)\ns_barrier")
    drained(a)
    a("s_barrier")
    if PAIR_Q < 160:
        a("s_barrier")
    a("LG_done:")
    if PAIR_Q >= 160:
        a("s_barrier")
    stamp(a, 3)
    a(f"s_setprio {BLEAD_PRIO}")
    vectors_get(a)
    write_ones(a, 1)
    a(f"s_mov_b32 s{sM}, {SK}\ns_mov_b32 s{sMend}, {(1 << (SK + 5)) - 1}\ns_mov_b32 s{sRb}, {RB}\ns_mov_b32 s{sNext}, {RB}")
    attn_zero(a)
    a.c("the last wave whose stores have drained publishes the tile")
    a(f"""
    v_mov_b32 v246, {LCNT}
    v_mov_b32 v247, 1
    v_mov_b32 v20, -1
    v_mov_b32 v21, -1
    v_mov_b32 v22, -1
    v_mov_b32 v23, -1
    s_setprio 2
    s_barrier
    s_waitcnt vmcnt(0)
    s_mov_b64 exec, 1
    ds_add_rtn_u32 v249, v246, v247
    s_mov_b64 exec, -1
    s_waitcnt lgkmcnt(0)
    v_readfirstlane_b32 s{sT0}, v249
    s_cmp_eq_u32 s{sT0}, 3
    s_cbranch_scc0 LG_nopub
    s_cmp_eq_u32 s{sTI}, 7
    s_cbranch_scc1 LG_nopub
    s_call_b64 s[{sLnk}:{sLnk+1}], LG_publish
    LG_nopub:
    """)
    stamp(a, 27)
    call_dma(a, 0, 2)
    o_mark(a)
    a(f"s_mov_b32 s{sRp}, -1\ns_waitcnt vmcnt(0)\ns_barrier")
    poll_f1(a)
    stamp(a, 26)
    load_q(a)
    call_dma(a, 1, 0)
    call_dma(a, 0, 3)
    a("s_waitcnt vmcnt(0) lgkmcnt(0)\ns_barrier")
    call_dma(a, 1, 1)
    call_dma(a, 0, 4)
    call_dma(a, 1, 2)
    if 'blow' in OPT:
        a("s_setprio 1")
    scale_q(a, 63)
    stamp(a, 5)
    a("s_branch LA_start")
    a("LA_lead:")
    a("s_setprio 3")
    def small_writes():
        a(f"s_cmp_lt_u32 s{sJ}, 2\ns_cbranch_scc0 LA_sw1")
        vectors_put(a)
        a(f"s_branch LA_sw2\nLA_sw1:\nv_mov_b32 v{vP+2}, {LCNT}\ns_mov_b64 exec, 0xff\nds_write_b32 v{vP+2}, v{vP+1}")
        write_ones(a, 0)
        a("LA_sw2:")
    poll_counter(a, vP + 3, f"s{sL+7}", f"s{sExp}", 7, small_writes)
    stamp(a, 1)
    a(f"""
    buffer_load_dwordx4 {vr(Qm[0],4)}, v{vL16}, {WSR()}, s8 offen sc1
    buffer_load_dwordx4 {vr(Qm[1],4)}, v{vL16}, {WSR()}, s9 offen sc1
    buffer_load_dwordx2 {vr(Qe,2)}, v{vE16}, {WSR()}, s10 offen sc1
    """)
    for blk in range(2):
        for p in range(5):
            a(f"buffer_load_dwordx4 v{vD+p}, {WSR()}, s{11 + blk} offen sc1 lds")
            a("s_add_u32 m0, m0, 1024")
            a("s_nop 0" if p < 4 else "s_cmp_eq_u32 s14, 1")
        a(f"s_cbranch_scc1 LA_ld{blk}\nbuffer_load_dwordx4 v{vD+5}, {WSR()}, s{11 + blk} offen sc1 lds\nLA_ld{blk}:")
        if blk == 0:
            a(f"s_add_u32 m0, s13, {RA + 2 * BLK}\ns_nop 0")
    scale_q(a, 10)
    a("s_waitcnt vmcnt(5) lgkmcnt(0)\ns_barrier\ns_setprio 1")
    stamp(a, 3)
    attention(a)
    a(f"s_cmp_eq_u32 s{sRole}, 0\ns_cbranch_scc1 LP_a\ns_barrier")
    stamp(a, 6)
    a(f"s_branch {'LF_end' if 'astamp' in OPT else 'LP_end'}\nLP_a:")
    a.c("role-A waves: first half of K while role B finishes, second half once it is published")
    a(f"""
    s_and_b32 s{sT4}, s{sHead}, 3
    s_lshl_b32 s{sT1}, s{sBr}, 2
    s_add_u32 s{sT4}, s{sT4}, s{sT1}
    s_lshl_b32 s{sT4}, s{sT4}, 7
    s_add_u32 s{sT4}, s{sT4}, {WS_C4}
    """)
    G = lambda i: LDS_BYTES - (11 - i) * 10240
    Lo = lambda i: RB + i * 10240
    assert SK == 3 and G(0) >= RB + 2 * BLK and G(3) >= RB + RING and Lo(3) <= RB + BLK + CH
    call = lambda l: a(f"s_call_b64 s[{sLnk}:{sLnk+1}], {l}")

    def tail_setup():
        for r in range(32, 40, 2):
            a(f"v_pk_mov_b32 {vr(pACC + r, 2)}, 0, 0")
        for r in range(32, 40, 2):
            a(f"v_pk_mov_b32 {vr(pACL + r, 2)}, 0, 0")
        for A in (pACC, pACL):
            a(f"v_mfma_f32_32x32x4_2b_bf16 {vr(A,32)}, {vr(pACC + 32, 2)}, {vr(pACC + 32, 2)}, 0")
        o_addr(a)
        out_addr(a)
        a("s_waitcnt vmcnt(0)")
        count_in(a, sOc, vP, vP + 1)
        stamp(a, 6)
        a(f"v_readfirstlane_b32 s{sT0}, v{vPS}\ns_cmp_ge_u32 s{sT0}, 16\ns_cbranch_scc1 LP_wo")
    poll_counter(a, vP + 4, f"s{sT4}", 16, 1, tail_setup)
    a("LP_wo:")
    a("s_setprio 0")
    stamp(a, 20)
    a("s_barrier")
    stamp(a, 21)
    call_dma(a, 1, 7)
    wo_dma(a, 0, 3, G(3))
    peek(a, 1)
    wo_dma(a, 3, 6, G(6))
    stamp(a, 22)
    a(f"s_waitcnt vmcnt(0)\nv_readfirstlane_b32 s{sT0}, v{vPS+2}\ns_cmp_ge_u32 s{sT0}, 16\ns_cbranch_scc1 LP_seen")
    poll_counter(a, vP + 4, f"s{sFc}", 16, 1)
    a("LP_seen:")
    call("LP_ldhi")
    call("LP_ldlo")
    a(f"s_add_u32 s{sFo}, s{sFo}, 20480\ns_add_u32 s{sFc}, s{sFc}, 128")
    stamp(a, 25)
    a("s_barrier")
    stamp(a, 5)
    mm = lambda l: a(f"s_call_b64 s[{sLnkM}:{sLnkM+1}], {l}")
    set_tab(a, [G(3), G(4), G(5), G(6), G(7), G(8), G(9), G(10), G(0), G(1)])
    mm("LP_pro")
    a("s_waitcnt vmcnt(0)")
    wo_dma(a, 6, 8, G(9))
    wo_dma(a, 8, 11, G(0))
    a("s_cmp_eq_u32 0, 1")
    mm("LP_hi")
    a(f"""
    s_and_b32 s{sT0}, s{sHead}, 3
    s_lshl_b32 s{sT1}, s{sBr}, 2
    s_add_u32 s{sT0}, s{sT0}, s{sT1}
    s_mul_i32 s{sT0}, s{sT0}, {WO_SLAB}
    s_add_u32 s{sT0}, s{sT0}, {WS_WO + 10240 * 11}
    s_waitcnt vmcnt(0) lgkmcnt(0)
    """)
    assert Lo(0) + 32768 <= RB + BLK + CH
    stamp(a, 26)
    a("s_barrier")
    stamp(a, 28)
    a(f"s_setprio {WOVEN_PRIO}\ns_cmp_eq_u32 0, 0")
    mm("LP_lo")
    stamp(a, 10)
    a("s_waitcnt vmcnt(4)")
    ready_mask(a)
    a("s_cbranch_scc0 LP_n1")
    call("LP_order")
    a(f"s_waitcnt vmcnt(5)\ns_barrier\ns_branch LP_n2\nLP_n1:\ns_waitcnt vmcnt(0)\ns_barrier\ns_mov_b32 s{sSpin}, {SPIN}\nLP_any:")
    peek(a, 3)
    a("s_waitcnt vmcnt(0)")
    ready_mask(a)
    a(f"s_cbranch_scc1 LP_got\ns_sleep {SLEEP}\ns_sub_u32 s{sSpin}, s{sSpin}, 1\ns_cbranch_scc0 LP_any\nLP_got:")
    call("LP_order")
    a("LP_n2:")
    stamp(a, 30)
    T = [G(2), G(3), G(4), G(5), G(6), G(7), G(8), Lo(0), Lo(1), Lo(2)]
    a(f"s_cmp_eq_u32 s{sPh}, 3\ns_cbranch_scc0 LP_n3")
    call("LP_ldlo")
    a(f"LP_n3:\ns_cmp_eq_u32 s{sDone}, 1")
    for r, x, y in zip(TAB, T, T[5:] + T[:5]):
        a(f"s_mov_b32 s{r}, {x}\ns_cmov_b32 s{r}, {y}")
    mm("LP_pro")
    a.c("each group keeps its own accumulators, so the result does not depend on the order of arrival")
    a("s_cbranch_scc0 LP_n4")
    for r in range(40):
        a(f"v_swap_b32 v{pACC + r}, v{pACL + r}")
    a("LP_n4:")
    a(f"s_waitcnt vmcnt(5)\ns_cmp_eq_u32 s{sPh}, 3\ns_cbranch_scc1 LP_n5\ns_waitcnt vmcnt(0)")
    peek(a, 3)
    a("LP_n5:")
    o_checked(a, "LP_ldhi", 0, False)
    stamp(a, 11)
    a(f"s_cmp_lg_u32 s{sPh}, 3")
    mm("LP_hi")
    stamp(a, 12)
    a(f"s_cmp_eq_u32 s{sPh}, 3\ns_cbranch_scc1 LP_n6")
    poll_counter(a, vP + 5, f"s{sFc}", 8, 3)
    call("LP_ldlo")
    a("LP_n6:")
    o_checked(a, "LP_ldlo", 5, True)
    stamp(a, 2)
    if common.STAMP and 'cyc' not in OPT: a(f"s_mov_b32 s{STAMP_S+17}, s{sSpin}")
    a("s_cmp_eq_u32 0, 1")
    mm("LP_lo")
    stamp(a, 16)
    out_store(a)
    a("LP_end:")
    if common.STAMP:
        a("s_waitcnt vmcnt(0)")
        stamp(a, 7)
        stamp_flush(a, 4)
    a("LF_end:\ns_endpgm")
    dma_sub(a)
    refill(a)
    publish_sub(a)
    order_sub(a)
    o_load_sub(a, "LP_ldhi", 0)
    o_load_sub(a, "LP_ldlo", 5)
    oproj_subs(a, G(3), Lo(0))
    repack_steps(a)
    slow_path(a)
    a("LF_codeend:")


def build():
    a = Asm()
    label = NAME + "_kernel"
    a('.amdgcn_target "amdgcn-amd-amdhsa--gfx950"\n.text')
    gen(a, label)
    return (HEADER + f"; @launch grid=(256,1,1) block=(512,1,1) lds={LDS_BYTES}\n" + a.text()
            + '.section .rodata,"a"\n.p2align 6\n' + kernel_desc(label, NVGPR, NVGPR, 100))


if __name__ == "__main__":
    import sys
    for x in sys.argv[2:]:
        if '=' in x:
            k, v = x.split('='); globals()[k] = int(v)
        else:
            OPT.add(x)
    if 'dbgstamp' in OPT:
        common.STAMP = True
    out = sys.argv[1] if len(sys.argv) > 1 else f"cdna_kernels/{NAME}.s"
    open(out, "w").write(build())
```

```python
from common import Asm, vr, sr, f32bits, kernel_head, kernel_desc, QSCALE, S, D, HEADER, NAME
import common

OPT = set()
SK = 3

TILE = 40960
IMG = 64 * TILE
WS_WO = 8 * IMG
WO_SLAB = 204800
WO_HALF = WO_SLAB // 2
WS_C1 = WS_WO + 8 * WO_SLAB
WS_C3 = WS_C1 + 256 * 128
WS_C4 = WS_C3 + 192 * 128
WS_END = WS_C1 + 512 * 128
WS_STAMP = WS_END + 65536

LDS_BYTES = 163840
GSL = 16384
CH = 11264
BLK = 2 * CH
RING = 3 * BLK
ONES = [90112, 0]
RB = 5120
RA = LDS_BYTES - RING
RPK = RB + RING
XFER = 81920
LCNT = 95232

sX, sWt, sWS, sOut, sDbg = 8, 12, 16, 20, 24
sPtr = 28
sW, sJ, sRole = 40, 41, 42
sHead, sQB, sTI, sTB = 43, 44, 45, 46
sT0, sT1, sT2, sT3, sT4 = 47, 48, 49, 50, 51
sIt, sSlot, sKB, sInc = 52, 53, 54, 55
sXo, sWo = 56, 57
sNext, sRb, sRe, sRem = 52, 53, 54, 55
sM, sMend = 56, 57
sOm, sExt = 58, 59
sSpin = 60
sBr = 61
sU0, sU1, sImg, sPh = 96, 97, 98, 99
sExp = 3
sDone = 36
sOb = 37
sOc = 97
sFo, sFc = 38, 39
sRp = 96
sE = 56
sLnk = 62
STAMP_S = 64

RP_AT = 3
TLB_AT = 2
BLEAD_PRIO = 0
LOFF = -1
SPIN = 1 << 15
SLEEP = 2


NST = 32


def stamp(a, i):
    if common.STAMP and not ('cyc' in OPT and 8 <= i <= 19):
        a(f"s_memrealtime s[4:5]\ns_waitcnt lgkmcnt(0)\ns_mov_b32 s{STAMP_S+i}, s4")


def stamp_cyc(a, i):
    if common.STAMP:
        a(f"s_memtime s[4:5]\ns_waitcnt lgkmcnt(0)\ns_mov_b32 s{STAMP_S+i}, s4")


def stamp_idx(a, base, sreg):
    if common.STAMP and 'cyc' in OPT:
        a(f"s_memtime s[4:5]\ns_mov_b32 m0, s{sreg}\ns_waitcnt lgkmcnt(0)\ns_movreld_b32 s{STAMP_S+base}, s4")


def stamp_flush(a, vt):
    if not common.STAMP:
        return
    a(f"""
    s_mov_b64 exec, 1
    s_lshl_b32 s{sT0}, s2, 3
    s_add_u32 s{sT0}, s{sT0}, s{sW}
    s_lshl_b32 s{sT0}, s{sT0}, 7
    s_add_u32 s{sT0}, s{sT0}, {WS_STAMP}
    v_mov_b32 v{vt+2}, 0
    """)
    for i in range(NST):
        a(f"v_mov_b32 v{vt}, s{STAMP_S+i}")
        a(f"buffer_store_dword v{vt}, v{vt+2}, s[{sWS}:{sWS+3}], s{sT0} offen offset:{4*i}")
    if 'dbgstamp' in OPT:
        a(f"s_cmp_eq_u32 s2, 100\ns_cbranch_scc0 LF_nodbg\ns_cmp_eq_u32 s{sJ}, 0\ns_cbranch_scc0 LF_nodbg\ns_lshl_b32 s{sT0}, s{sRole}, 5")
        for i in range(8):
            a(f"s_sub_u32 s{sT1}, s{STAMP_S+i}, s{STAMP_S}")
            a(f"v_mov_b32 v{vt}, s{sT1}")
            a(f"buffer_store_dword v{vt}, v{vt+2}, s[{sDbg}:{sDbg+3}], s{sT0} offen offset:{4*i}")
        a("LF_nodbg:")


def WSR():
    return f"s[{sWS}:{sWS+3}]"


_lbl = [0]


def poll(a, loads, expect, vtmp):
    _lbl[0] += 1
    L = f"LF_poll{_lbl[0]}"
    a(f"s_mov_b32 s{sSpin}, {SPIN}\n{L}:")
    for i, (vo, srd, so) in enumerate(loads):
        a(f"buffer_load_dword v{vtmp+i}, v{vo}, {srd}, {so} offen sc1")
    a("s_waitcnt vmcnt(0)")
    for i in range(1, len(loads)):
        a(f"v_min_u32 v{vtmp}, v{vtmp}, v{vtmp+i}")
    a(f"""
    v_cmp_gt_u32 vcc, {expect}, v{vtmp}
    s_cbranch_vccz {L}_ok
    s_sleep {SLEEP}
    s_sub_u32 s{sSpin}, s{sSpin}, 1
    s_cbranch_scc0 {L}
    {L}_ok:
    """)


def poll_counter(a, vo, so, expect, mask, meanwhile=None):
    _lbl[0] += 1
    L = f"LF_pc{_lbl[0]}"
    rd = (f"v_mov_b32 v{vPS}, 0\nbuffer_atomic_add v{vPS}, v{vo}, {WSR()}, {so} offen sc0 sc1" if 'ldpoll' not in OPT else
          f"buffer_load_dword v{vPS}, v{vo}, {WSR()}, {so} offen sc1")
    a(f"s_mov_b32 s{sSpin}, {SPIN}\ns_mov_b64 exec, {mask}")
    if meanwhile:
        a(f"{rd}\ns_mov_b64 exec, -1")
        meanwhile()
        a(f"s_mov_b64 exec, {mask}\ns_branch {L}_w")
    a(f"""
    {L}:
    {rd}
    {L}_w:
    s_waitcnt vmcnt(0)
    v_cmp_gt_u32 vcc, {expect}, v{vPS}
    s_cbranch_vccz {L}_ok
    s_sleep {SLEEP}
    s_sub_u32 s{sSpin}, s{sSpin}, 1
    s_cbranch_scc0 {L}
    {L}_ok:
    s_mov_b64 exec, -1
    """)


def count_in(a, soff, vz, vd):
    a(f"""
    v_mov_b32 v{vz}, 0
    v_mov_b32 v{vd}, 1
    s_mov_b64 exec, 1
    buffer_atomic_add v{vd}, v{vz}, {WSR()}, s{soff} offen sc1
    s_mov_b64 exec, -1
    """)


gXF = 0
gWF = 160
gWA = [184, 185, 186, 187]
gXA = 188
gT = 189
gACC = 192


PUB_BAR = 12
LAST_BAR = 16
PAIR_Q = 155
HIGH_Q = 144
CLR_AT = 0
CHK_BAR = 8
CNT_AT = 3
NB = 0
NFIRST = 5
MAXISS = 3
FAST_BAR = 7
PF_BAR = 3
ROT = 4


def stage_barriers():
    return list(range(0, 12)) + [LAST_BAR]


def gemm_schedule():
    items = [x for n in range(10) for x in (("X", n), ("W", n))] + [("W", n) for n in range(10, 20)]
    rel = lambda it: it[1] + (1 if it[0] == "X" else 2)
    free = list(range(10))
    slot, when, freed = {}, {}, set()
    k = 0
    for bar in range(-1, 12):
        for it in items:
            if it in slot and it not in freed and rel(it) <= bar:
                free.append(slot[it])
                freed.add(it)
        n = 0
        while k < len(items) and free and n < (NFIRST if bar == -1 else 10 if bar == 11 else MAXISS if bar >= FAST_BAR else 2) and bar != 10:
            slot[items[k]] = free.pop(0)
            when[items[k]] = bar
            k += 1
            n += 1
    assert k == len(items) and when[("W", LAST_BAR - 1)] <= 9 and when[("W", 17)] == 11
    assert max(rel(it) for it in items[:-3] if slot[it] == slot[("W", 17)]) <= 10
    order = [slot[("W", n)] for n in (15, 16, 17, 18, 19, 13, 14, 10, 11, 12)]
    assert sorted(order) == list(range(10)), order
    slot = {it: order.index(v) for it, v in slot.items()}
    return items, slot, when


LCNT0 = 2 * GSL


def lane_id(a, v):
    a(f"v_mbcnt_lo_u32_b32 v{v}, -1, 0\nv_mbcnt_hi_u32_b32 v{v}, -1, v{v}")


def drained(a):
    a(f"s_waitcnt vmcnt(0)\ns_mov_b64 exec, 1\nds_add_u32 v{gT+1}, v{gT+1} offset:{LCNT0 - 4}\ns_mov_b64 exec, -1\ns_mov_b32 s{sDone}, 1")


def clear_counters(a, L):
    a.c("wave 4 clears counter lines id and id + 256")
    a(f"""
    s_cmp_eq_u32 s{sJ}, 0
    s_cbranch_scc0 {L}_cleared
    s_lshl_b32 s{sT0}, s2, 7
    s_add_u32 s{sT0}, s{sT0}, {WS_C1}
    v_mbcnt_lo_u32_b32 v{gT+1}, -1, 0
    v_lshlrev_b32 v{gT+1}, 15, v{gT+1}
    v_mov_b32 v{gT+2}, 0
    s_mov_b64 exec, 3
    buffer_store_dword v{gT+2}, v{gT+1}, {WSR()}, s{sT0} offen sc1
    s_mov_b64 exec, -1
    {L}_cleared:
    """)


def gemm_body(a, vtype):
    L = "LG_v" if vtype else "LG_q"
    items, slot, when = gemm_schedule()
    tmp = gT + 2

    def kc(f):
        return ((f & 1, (f >> 1) & 7) if f >= 144 else ((f >> 3) & 1, f & 7))

    def rd(f, u):
        ks, c = kc(f)
        return f"ds_read_b64_tr_b16 {vr(gWF + 4 * (f % 6) + 2 * u, 2)}, v{tmp if c & 1 else gWA[c >> 1]} offset:{ks * 8192 + u * 1024}"

    def xor(f):
        ks, c = kc(f)
        return [f"v_xor_b32 v{tmp}, 32, v{gWA[c >> 1]}"] if c & 1 and not (f >= 144 and ks) else []

    def acc(c, t):
        return gACC + 8 * c + 4 * t if vtype else gACC + 16 * (c >> 1) + 8 * t + 4 * (c & 1)

    def mfma(f, t):
        ks, c = kc(f)
        x, w, d = vr(gXF + 16 * (f >> 4) + 8 * ks + 4 * t, 4), vr(gWF + 4 * (f % 6), 4), vr(acc(c, t), 4)
        A, B = (x, w) if vtype else (w, x)
        return f"v_mfma_f32_16x16x32_bf16 {d}, {A}, {B}, {'0' if f < 8 else d}"

    def xreads(n, between=""):
        d = gXF + 16 * n
        a(f"v_xor_b32 v{d + 8}, 64, v{gXA}")
        a(between)
        for ks, t in ((0, 0), (0, 1), (1, 1), (1, 0)):
            flip = ks ^ (t if vtype else 0)
            a(f"ds_read_b128 {vr(d + 8 * ks + 4 * t, 4)}, v{d + 8 if flip else gXA} offset:{t * (1024 if vtype else 2048)}")

    def first_reads():
        for f in range(6):
            for x in xor(f) + [rd(f, 1)] + ([rd(f, 0)] if f < 5 else []):
                a(x)

    def pack(C):
        A = gACC + 16 * C
        for j in range(8):
            a(f"v_cvt_pk_bf16_f32 v{gACC + 8*C + j}, v{A+2*j}, v{A+2*j+1}")
        if not vtype:
            for t in range(2):
                for r in range(2):
                    P = gACC + 8 * C + 4 * t + r
                    a(f"v_permlane16_swap_b32 v{P}, v{P+2}")

    def stores(C):
        for i in range(2):
            d = vr(gACC + 8*C + 4*i, 4)
            if vtype:
                a(f"buffer_store_dwordx4 {d}, v{gT}, {WSR()}, s{sE} offen offset:{(2 * C + i) * 256} sc1")
            else:
                a(f"buffer_store_dwordx4 {d}, v{gT}, {WSR()}, s{sE + (C >> 1)} offen offset:{(C & 1) * 2048 + i * 256} sc1")

    shadow = lambda p, n: p.strip().startswith("v_mfma") and n.strip().startswith("ds_read")
    cuts = [f"{L}_body", f"{L}_xb1", f"{L}_xb4", f"{L}_xb7", f"{L}_np"]
    for j in range(4):
        a(f"s_cmp_eq_u32 s{sJ}, {j}\ns_cbranch_scc0 {L}_w{j}")
        warm(a, f"HG{j}{L[-1]}", [(cuts[j], cuts[j + 1])], shadow)
        if j == 0:
            warm(a, f"HG8{L[-1]}", [(f"{L}_xa0", f"{L}_da0")])
        if j == 3:
            warm(a, f"HG9{L[-1]}", [(f"{L}_np", f"{L}_xa0")])
        a(f"{L}_w{j}:")
    a("s_barrier")
    a(f"s_mov_b32 s{sDone}, 1")
    stamp(a, 1)
    xreads(0)
    first_reads()
    a(f"{L}_body:\ns_waitcnt lgkmcnt(9)")
    for f in range(160):
        n, r16 = f >> 4, f & 15
        if f + 6 < 160:
            for x in xor(f + 6):
                a(x)
        adds = {4: 0, 6: 1, 8: 2, 10: 3} if n < 9 else {7: 0, 9: 1, 10: 2, 11: 3}
        if r16 in adds:
            a(f"v_add_u32 v{gWA[adds[r16]]}, s{sInc}, v{gWA[adds[r16]]}")
        a(mfma(f, 0))
        hook = PUB_BAR <= n + 12 <= LAST_BAR
        if hook and r16 == 12:
            a.c("phase b: report once that this wave's stores have drained")
            a(f"s_getreg_b32 s{sT0}, hwreg(HW_REG_IB_STS, 0, 4)" if n + 12 < LAST_BAR else f"s_mov_b32 s{sT0}, 0")
        if hook and r16 == 13:
            a(f"s_or_b32 s{sT0}, s{sT0}, s{sDone}")
        if hook and r16 == 14:
            a(f"s_cbranch_scc0 {L}_da{n}\n{L}_db{n}:")
        if r16 == 0:
            a(f"s_cmp_eq_u32 s{sPh}, 1")
        if r16 == 1:
            a(f"s_mov_b32 s{sInc}, {((slot[('W', n + 1)] - slot[('W', n)]) * GSL) & 0xffffffff}")
        if r16 == 2 and n < 9:
            a(f"s_cmov_b32 s{sInc}, {((slot[('W', n + 11)] - slot[('W', n + 10)]) * GSL) & 0xffffffff}")
        if f == HIGH_Q:
            a("s_setprio 2")
        if f + 5 < 160:
            a(rd(f + 5, 0))
        a(mfma(f, 1))
        if f < 159:
            a(f"s_waitcnt lgkmcnt({2 * max(0, min(f + 5, 159) - (f + 1))})")
        if r16 == 10:
            if n + 11 in stage_barriers():
                a("s_barrier")
            a(f"s_cbranch_scc0 {L}_xa{n}\n{L}_xb{n}:")
        if f + 6 < 160:
            a(rd(f + 6, 1))
        if f == PAIR_Q:
            a(f"s_cbranch_scc0 {L}_np\ns_barrier\n{L}_np:")
        if f in (149, 153, 157):
            if f == 157:
                a("s_nop 1")
            pack((f - 149) // 4)
        if f in (150, 154, 158):
            stores((f - 150) // 4)
    a(f"s_cbranch_scc1 {L}_nopre")
    first_reads()
    a(f"{L}_nopre:\ns_nop 6")
    pack(3)
    stores(3)
    a(f"s_cbranch_scc1 LG_done")
    stamp(a, 2)
    next_units(a)
    step = 6 * 1024 if vtype else 5 * 4096
    a(f"s_add_u32 s{sE}, s{sE}, {step}\ns_add_u32 s{sE+1}, s{sE+1}, {step}\ns_mov_b32 s{sDone}, 0")
    if vtype:
        a(f"s_cmp_eq_u32 s{sTI}, 7\ns_cbranch_scc1 LG_idle")
    a(f"s_branch {L}_body")
    for n in range(10):
        a(f"{L}_xa{n}:")
        if n == 1 and NB == 2:
            a("s_waitcnt vmcnt(0)")
        if n == CLR_AT:
            clear_counters(a, L)
        if n == CNT_AT:
            a.c("this workgroup has cleared its share of the counters: count it in")
            a(f"""
            s_waitcnt vmcnt(0)
            s_cmp_eq_u32 s{sW}, 4
            s_cbranch_scc0 {L}_nocount
            s_and_b32 s{sT0}, s2, 31
            s_lshl_b32 s{sT0}, s{sT0}, 2
            s_add_u32 s{sT0}, s{sT0}, 128
            v_mov_b32 v{gT+1}, 0
            v_mov_b32 v{gT+2}, 1
            s_mov_b64 exec, 1
            buffer_atomic_add v{gT+2}, v{gT+1}, s[{sDbg}:{sDbg+3}], s{sT0} offen sc1
            s_mov_b64 exec, -1
            {L}_nocount:
            v_mov_b32 v{gT+1}, 4
            """)
        if n + 1 < 10:
            dx = (slot[("X", n + 1)] - slot[("X", n)]) * GSL
            a(f"v_add_u32 v{gXA}, {dx & 0xffffffff}, v{gXA}")
            xreads(n + 1, "" if n + 11 in stage_barriers() else "s_barrier")
        else:
            a("s_barrier")
        a(f"s_branch {L}_xb{n}")
    for n in range(PUB_BAR - 12, LAST_BAR - 11):
        a(f"{L}_da{n}:")
        drained(a)
        a(f"s_branch {L}_db{n}")


def next_units(a):
    a(f"""
    s_mov_b32 s{sPh}, 1
    s_cmp_ge_u32 s{sTI}, 5
    s_cselect_b32 s{sT0}, 6, 5
    s_add_u32 s{sU0}, s{sU0}, s{sT0}
    s_add_u32 s{sU1}, s{sU1}, s{sT0}
    """)


def publish_sub(a):
    t = 240
    a(f"""
    LG_publish:
    v_cmp_lt_u32 vcc, 31, v0
    v_mov_b32 v{t+3}, s{sU0}
    v_mov_b32 v{t+4}, s{sU1}
    v_cndmask_b32 v{t+3}, v{t+3}, v{t+4}, vcc
    v_mul_u32_u24 v{t+4}, 205, v{t+3}
    v_lshrrev_b32 v{t+4}, 11, v{t+4}
    v_mul_u32_u24 v{t+5}, 10, v{t+4}
    v_sub_u32 v{t+3}, v{t+3}, v{t+5}
    v_lshlrev_b32 v{t+3}, 3, v{t+3}
    v_and_b32 v{t+5}, 31, v0
    v_lshl_add_u32 v{t+4}, v{t+5}, 2, v{t+4}
    v_lshlrev_b32 v{t+4}, 7, v{t+4}
    v_mul_u32_u24 v{t+5}, 5, v{t+5}
    v_lshrrev_b32 v{t+5}, 1, v{t+5}
    v_add_u32 v{t+5}, 2, v{t+5}
    v_sub_u32 v{t+5}, v{t+5}, v{t+3}
    v_cmp_gt_u32 vcc, 10, v{t+5}
    v_mov_b32 v{t+1}, 1
    s_lshl_b32 s{sT1}, s{sBr}, 14
    s_add_u32 s{sT1}, s{sT1}, {WS_C1}
    s_mov_b64 exec, vcc
    buffer_atomic_add v{t+1}, v{t+4}, {WSR()}, s{sT1} offen sc1
    s_mov_b64 exec, -1
    s_setpc_b64 s[{sLnk}:{sLnk+1}]
    """)


def gemm_compute(a):
    items, slot, when = gemm_schedule()
    i, g, t0, t1 = 8, 9, 10, 11
    a(f"""
    v_and_b32 v{i}, 15, v0
    v_lshrrev_b32 v{g}, 4, v0
    v_lshrrev_b32 v{t0}, 2, v0
    v_and_b32 v{t0}, 3, v{t0}
    v_lshl_add_u32 v{t1}, v{g}, 3, v{t0}
    v_lshlrev_b32 v{t1}, 8, v{t1}
    v_lshl_add_u32 v{t1}, v{t0}, 6, v{t1}
    v_and_b32 v{t0}, 16, v0
    v_lshl_add_u32 v{t1}, v{t0}, 1, v{t1}
    v_and_b32 v{t0}, 3, v0
    v_lshl_add_u32 v{t1}, v{t0}, 3, v{t1}
    v_add_u32 v{gWA[0]}, {slot[("W", 0)] * GSL}, v{t1}
    v_xor_b32 v{gWA[1]}, 64, v{gWA[0]}
    v_xor_b32 v{gWA[2]}, 128, v{gWA[0]}
    v_xor_b32 v{gWA[3]}, 192, v{gWA[0]}
    s_lshl_b32 s{sT1}, s{sJ}, 12
    s_add_u32 s{sT1}, s{sT1}, {slot[("X", 0)] * GSL}
    s_lshl_b32 s{sT0}, s{sTB}, 2
    s_add_u32 s{sT0}, s{sT0}, s{sJ}
    s_mul_i32 s{sT0}, s{sT0}, {TILE}
    s_add_u32 s{sT0}, s{sT0}, s{sImg}
    s_cmp_ge_u32 s{sTI}, 5
    s_cbranch_scc1 LG_vtype
    v_lshrrev_b32 v{t0}, 1, v{i}
    v_xor_b32 v{t0}, v{t0}, v{g}
    v_lshlrev_b32 v{t0}, 4, v{t0}
    v_lshl_add_u32 v{t0}, v{i}, 7, v{t0}
    v_add_u32 v{gXA}, s{sT1}, v{t0}
    v_and_b32 v{t0}, 1, v{g}
    v_lshlrev_b32 v{t0}, 10, v{t0}
    v_lshrrev_b32 v{t1}, 1, v{g}
    v_lshl_add_u32 v{t0}, v{t1}, 9, v{t0}
    v_lshl_add_u32 v{gT}, v{i}, 4, v{t0}
    s_lshl_b32 s{sE}, s{sU0}, 12
    s_lshl_b32 s{sE+1}, s{sU1}, 12
    s_cmp_ge_u32 s{sU0}, 10
    s_cselect_b32 s{sT3}, {IMG - 40960}, 0
    s_add_u32 s{sE}, s{sE}, s{sT3}
    s_cmp_ge_u32 s{sU1}, 10
    s_cselect_b32 s{sT3}, {IMG - 40960}, 0
    s_add_u32 s{sE+1}, s{sE+1}, s{sT3}
    s_add_u32 s{sE}, s{sE}, s{sT0}
    s_add_u32 s{sE+1}, s{sE+1}, s{sT0}
    """)
    gemm_body(a, False)
    a.c("V tiles: MFMA row i of token tile t is token 16 (i >> 3) + 8 t + (i & 7)")
    a(f"""
    LG_vtype:
    v_and_b32 v{t1}, 7, v{i}
    v_lshrrev_b32 v{t0}, 1, v{t1}
    v_xor_b32 v{t0}, v{t0}, v{g}
    v_lshlrev_b32 v{t0}, 4, v{t0}
    v_lshl_add_u32 v{t0}, v{t1}, 7, v{t0}
    v_and_b32 v{t1}, 8, v{i}
    v_lshl_add_u32 v{t0}, v{t1}, 8, v{t0}
    v_add_u32 v{gXA}, s{sT1}, v{t0}
    v_mul_u32_u24 v{t0}, 10240, v{g}
    v_lshl_add_u32 v{gT}, v{i}, 4, v{t0}
    s_lshl_b32 s{sE}, s{sU0}, 10
    s_add_u32 s{sE}, s{sE}, {2 * IMG - 20480}
    s_add_u32 s{sE}, s{sE}, s{sT0}
    """)
    gemm_body(a, True)


def touch_pages(a):
    a.c("every MiB that is first used later is touched once per group of workgroups, so that its translation is at hand")
    a(f"""
    s_lshr_b32 s{sT0}, s2, 3
    s_lshl_b32 s{sT0}, s{sT0}, 20
    s_cmp_eq_u32 s{sJ}, 1
    s_cbranch_scc0 LL_t1
    s_min_u32 s{sT1}, s{sT0}, {WS_END - 4}
    s_load_dword s6, s[{sWS}:{sWS+1}], s{sT1}
    LL_t1:
    s_cmp_eq_u32 s{sJ}, 2
    s_cbranch_scc0 LL_t2
    s_min_u32 s{sT1}, s{sT0}, {S * 2 * D * 2 - 4}
    s_load_dword s7, s[{sPtr+4}:{sPtr+5}], s{sT1}
    s_min_u32 s{sT1}, s{sT0}, {D * D * 2 - 4}
    s_load_dword s7, s[{sPtr+2}:{sPtr+3}], s{sT1}
    s_load_dword s6, s[{sPtr+6}:{sPtr+7}], 0
    LL_t2:
    """)


def gemm_loader(a):
    items, slot, when = gemm_schedule()
    vE, vO, vWs, vCnt, vWs2 = 230, 231, 232, 233, 235
    sKX, sKW = sKB, sSlot
    a(f"""
    v_lshrrev_b32 v5, 3, v0
    v_mul_u32_u24 v5, 1280, v5
    v_and_b32 v6, 7, v0
    v_lshrrev_b32 v7, 4, v0
    v_xor_b32 v6, v6, v7
    v_lshlrev_b32 v6, 4, v6
    v_add_u32 v{vE}, v5, v6
    v_xor_b32 v6, 64, v6
    v_add_u32 v{vO}, v5, v6
    v_add_u32 v{vO}, {8 * 1280 - 1024}, v{vO}
    v_lshrrev_b32 v5, 2, v0
    v_and_b32 v5, 3, v5
    v_xor_b32 v5, v5, v7
    v_lshrrev_b32 v6, 1, v5
    s_sub_u32 s{sT0}, s{sU1}, s{sU0}
    s_lshl_b32 s{sT0}, s{sT0}, 7
    v_mul_u32_u24 v6, s{sT0}, v6
    v_and_b32 v5, 1, v5
    v_lshl_add_u32 v5, v5, 6, v6
    v_and_b32 v6, 3, v0
    v_lshl_add_u32 v5, v6, 4, v5
    v_mul_u32_u24 v6, 3840, v7
    v_add_u32 v{vWs}, v5, v6
    v_xor_b32 v{vWs2}, 32, v{vWs}
    s_lshl_b32 s{sXo}, s{sTB}, 2
    s_add_u32 s{sXo}, s{sXo}, s{sJ}
    s_mul_i32 s{sXo}, s{sXo}, {32 * 1280}
    s_mul_i32 s{sWo}, s{sJ}, {16 * 3840}
    s_lshl_b32 s{sT0}, s{sU0}, 7
    s_add_u32 s{sWo}, s{sWo}, s{sT0}
    s_lshl_b32 s{sInc}, s{sJ}, 12
    """)
    a.c("workgroups that share a tile start at different k-blocks, so that they fill the L2 together")
    if ROT == 2:
        a(f"s_xor_b32 s{sKX}, s{sTB}, s{sTI}\ns_and_b32 s{sKX}, s{sKX}, 1\ns_mul_i32 s{sKX}, s{sKX}, 5")
    elif ROT == 3:
        a(f"""
        s_and_b32 s{sKX}, s{sTB}, 3
        s_add_u32 s{sKX}, s{sKX}, s{sTI}
        s_mul_i32 s{sT0}, s{sKX}, 43
        s_lshr_b32 s{sT0}, s{sT0}, 7
        s_mul_i32 s{sT0}, s{sT0}, 3
        s_sub_u32 s{sKX}, s{sKX}, s{sT0}
        s_mul_i32 s{sKX}, s{sKX}, 7
        s_lshr_b32 s{sKX}, s{sKX}, 1
        """)
    elif ROT == 4:
        a(f"""
        s_add_u32 s{sKX}, s{sTB}, s{sTI}
        s_and_b32 s{sKX}, s{sKX}, 3
        s_mul_i32 s{sKX}, s{sKX}, 5
        s_add_u32 s{sKX}, s{sKX}, 1
        s_lshr_b32 s{sKX}, s{sKX}, 1
        """)
    elif ROT:
        a(f"""
        s_and_b32 s{sKX}, s{sTB}, 3
        s_mul_i32 s{sKX}, s{sKX}, 5
        s_add_u32 s{sKX}, s{sKX}, 1
        s_lshr_b32 s{sKX}, s{sKX}, 1
        s_add_u32 s{sKX}, s{sKX}, s{sTI}
        s_cmp_ge_u32 s{sKX}, 10
        s_cselect_b32 s{sT0}, 10, 0
        s_sub_u32 s{sKX}, s{sKX}, s{sT0}
        """)
    else:
        a(f"s_and_b32 s{sKX}, s{sTI}, 1")
    a(f"s_mov_b32 s{sKW}, s{sKX}\ns_mov_b32 s{sIt}, 0")
    a(f"""
    s_mov_b32 s{sX+2}, {S * D * 2}
    s_mov_b32 s{sX+3}, 0x00020000
    s_mov_b32 s{sWt+2}, {D * 3 * D * 2}
    s_mov_b32 s{sWt+3}, 0x00020000
    s_waitcnt lgkmcnt(0)
    s_and_b32 s{sX+1}, s{sX+1}, 0xffff
    s_mov_b32 s{sWt}, s{sPtr}
    s_and_b32 s{sWt+1}, s{sPtr+1}, 0xffff
    """)
    if 'tlb2' in OPT:
        a.c("start the address translations of the pages of W (and the other end of X) together with the first X loads")
        a(f"""
        s_mul_i32 s{sT0}, s{sJ}, {(D * 3 * D * 2 - 4) // 3 // 4 * 4}
        s_buffer_load_dword s6, s[{sWt}:{sWt+3}], s{sT0}
        """)
    a(f"""
    s_branch LL_go
    """)
    a(f"""
    LL_X:
    s_lshl_b32 s{sT0}, s{sKX}, 7
    s_add_u32 s{sT0}, s{sT0}, s{sXo}
    s_add_u32 s{sKX}, s{sKX}, 1
    buffer_load_dwordx4 v{vE}, s[{sX}:{sX+3}], s{sT0} offen lds
    buffer_load_dwordx4 v{vO}, s[{sX}:{sX+3}], s{sT0} offen offset:1024 lds
    s_add_u32 m0, m0, 2048
    s_add_u32 s{sT0}, s{sT0}, {16 * 1280}
    buffer_load_dwordx4 v{vE}, s[{sX}:{sX+3}], s{sT0} offen lds
    buffer_load_dwordx4 v{vO}, s[{sX}:{sX+3}], s{sT0} offen offset:1024 lds
    s_cmp_eq_u32 s{sKX}, 10
    s_cselect_b32 s{sKX}, 0, s{sKX}
    s_setpc_b64 s[{sLnk}:{sLnk+1}]
    LL_Wskip:
    s_waitcnt vmcnt(0)
    s_setpc_b64 s[{sLnk}:{sLnk+1}]
    LL_W:
    s_cmp_eq_u32 s{sIt}, 1
    s_cbranch_scc1 LL_Wskip
    s_mul_i32 s{sT1}, s{sKW}, {64 * 3840}
    s_add_u32 s{sT1}, s{sT1}, s{sWo}
    s_add_u32 s{sKW}, s{sKW}, 1
    """)
    for p in range(4):
        a(f"buffer_load_dwordx4 v{vWs2 if p >= 2 else vWs}, s[{sWt}:{sWt+3}], s{sT1} offen lds")
        if p < 3:
            a(f"s_add_u32 m0, m0, 1024")
            a(f"s_add_u32 s{sT1}, s{sT1}, {4 * 3840}")
    a(f"""
    s_cmp_eq_u32 s{sKW}, 10
    s_cselect_b32 s{sKW}, 0, s{sKW}
    s_setpc_b64 s[{sLnk}:{sLnk+1}]
    """)
    a("LL_go:")
    delay(a, 2)
    stamp(a, 13)
    q = []

    def issue(it):
        if it == ("W", 10):
            a(f"s_cmp_ge_u32 s{sTI}, 5\ns_cselect_b32 s{sT0}, {6 * 128}, s{sC640}\ns_add_u32 s{sWo}, s{sWo}, s{sT0}")
            a(f"s_cmp_eq_u32 s{sTI}, 7\ns_cselect_b32 s{sIt}, 1, 0")
        a(f"s_add_u32 m0, s{sInc}, {slot[it] * GSL}\ns_call_b64 s[{sLnk}:{sLnk+1}], LL_{it[0]}")
        q.extend([it] * 4)

    def wait_for(names):
        last = max(i for i, x in enumerate(q) if x in names)
        a(f"s_waitcnt vmcnt({min(63, len(q) - 1 - last)})")

    sC640 = sT4
    first = [it for it in items if when[it] == -1]
    bit = [("W", 0), ("W", 2)][:NB]
    skip = f"s_add_u32 s{sKW}, s{sKW}, 1\ns_cmp_eq_u32 s{sKW}, 10\ns_cselect_b32 s{sKW}, 0, s{sKW}"
    if NB:
        a(f"s_cmp_eq_u32 s{sRole}, 0\ns_cbranch_scc1 LL_a")
        for it in bit:
            a(f"s_add_u32 m0, s{sInc}, {slot[it] * GSL}\ns_call_b64 s[{sLnk}:{sLnk+1}], LL_W\n" + skip)
        a("s_branch LG_start\nLL_a:")
    for i, it in enumerate(first):
        if i == TLB_AT:
            touch_pages(a)
        if it in bit:
            a(skip)
        else:
            issue(it)
    stamp(a, 14)
    vPf = 234
    bars = stage_barriers()
    stamp(a, 15)
    for bi, bar in enumerate(bars):
        upto = bars[bi + 1] - 1 if bi + 1 < len(bars) else 19
        wait_for([("X", bar), ("W", upto)] + (["cnt"] if bar == 11 else []))
        if bar == 11:
            if common.STAMP: a(f"s_mov_b32 s{STAMP_S+22}, 0")
            a.c("all counters must have been cleared before the first one is used")
            a(f"v_cmp_gt_u32 vcc, 8, v{vCnt}\ns_cbranch_vccz LL_cnt_ok")
            if common.STAMP: a(f"s_mov_b32 s{STAMP_S+22}, 1")
            poll(a, [(vP + 5, f"s[{sDbg}:{sDbg+3}]", "0")], 8, vPS)
            a("LL_cnt_ok:")
        a("s_barrier")
        if bar not in (2, 3, 4, 5, 6, 7, 8, 9): stamp(a, 8 + min(bar, 15))
        if bar == 11:
            attn_scalars(a)
            attn_vectors(a)
            repack_setup(a)
            a.c("wave 0 publishes the phase-a tile once its four storing waves have reported")
            a(f"""
            v_mov_b32 v{vP+2}, {LCNT0}
            s_cmp_lg_u32 s{sJ}, 0
            s_cbranch_scc1 LL_pub
            s_mov_b32 s{sSpin}, {SPIN * 8}
            LL_try:
            ds_read_b32 v{vP}, v{vP+2}
            s_waitcnt lgkmcnt(0)
            v_readfirstlane_b32 s{sT0}, v{vP}
            s_cmp_eq_u32 s{sT0}, 16
            s_cbranch_scc1 LL_try_go
            s_sub_u32 s{sSpin}, s{sSpin}, 1
            s_cbranch_scc0 LL_try
            LL_try_go:
            s_call_b64 s[{sLnk}:{sLnk+1}], LG_publish
            """)
            stamp(a, 27)
            a("LL_pub:")
        a(f"s_mov_b32 s{sC640}, 640")
        for it in items:
            if when[it] == bar:
                issue(it)
        if bar == 11:
            lead_prepare(a)
            warm(a, "HL", [("LA_lead", "LA_w1")])
        if bar == 10:
            a(f"v_mov_b32 v{vP}, 0\nv_mov_b32 v{vP+2}, {LCNT0}\nds_write_b32 v{vP+2}, v{vP}\ns_waitcnt lgkmcnt(0)")
        if bar + 10 == TLB_AT:
            touch_pages(a)
        if bar == PF_BAR:
            a.c("one load per 128-B line of the phase-b columns of five weight rows brings them on chip ahead of use")
            a(f"""
            s_lshr_b32 s{sT0}, s2, 3
            s_lshl_b32 s{sT0}, s{sT0}, 2
            s_and_b32 s{sT1}, s2, 3
            s_add_u32 s{sT0}, s{sT0}, s{sT1}
            s_mul_i32 s{sT0}, s{sT0}, {5 * 3840}
            s_mul_i32 s{sT1}, s{sJ}, 19
            v_add_u32 v8, s{sT1}, v0
            v_min_u32 v8, 74, v8
            v_mul_u32_u24 v9, 205, v8
            v_lshrrev_b32 v9, 10, v9
            v_mul_u32_u24 v9, 5, v9
            v_add3_u32 v9, v9, v8, 5
            v_lshlrev_b32 v{vPf}, 7, v9
            s_mov_b64 exec, 0x7ffff
            buffer_load_dword v{vPS}, v{vPf}, s[{sWt}:{sWt+3}], s{sT0} offen
            s_mov_b64 exec, -1
            """)
            q.append("pf")
        if bar == CHK_BAR:
            common_setup(a)
            a(f"v_lshlrev_b32 v{vP+5}, 2, v0\nv_or_b32 v{vP+5}, 128, v{vP+5}")
            a(f"buffer_load_dword v{vCnt}, v{vP+5}, s[{sDbg}:{sDbg+3}], 0 offen sc1")
            q.append("cnt")
    a("s_branch LA_lead")


vKA, vVA, vT0, vT1 = 1, 2, 3, 14
Qm = [4, 8]
Qe = 12
vL16 = 15
Km = [16, 20]
Ke = 24
Vb = [[28, 32], [36, 40]]
vVbase, vVflag, vE16, vVG = 44, 45, 46, 47
NM = 48
SB = [80, 112]
OA = [144, 160]
vD = 176
vP = 182
vPS = 188
vVB2 = 248
vIdx, vK16 = 192, 193
NVGPR = 256


def mfma32(d, a_, b, c):
    return f"v_mfma_f32_32x32x16_bf16 {vr(d,16)}, {vr(a_,4)}, {vr(b,4)}, {c}"


def mfma2b(d, ke_tile, c):
    return (f"v_mfma_f32_32x32x4_2b_bf16 {vr(d,32)}, {vr(Ke + 2 * (ke_tile >> 1), 2)}, {vr(Qe,2)}, {c}"
            f" cbsz:1 abid:{ke_tile & 1}")


def pv(o, v, p):
    return f"v_smfmac_f32_32x32x32_bf16 {vr(o,16)}, {vr(v,4)}, {vr(p,8)}, v{vIdx}"


POS = [2, 6, 14, 18, 22, 26, 30]


def tile_iter(a, ii, half=1):
    par = ii & 1
    X, Y = SB[par], SB[par ^ 1]
    Vc, Vn = Vb[par], Vb[par ^ 1]
    Kc, Kn = Km[par ^ 1], Km[par]
    t1 = (ii + 1) % 4
    t2 = (ii + 2) % 4
    kch = CH if (half == 0) == (ii >= 2) else 0
    rv0 = f"ds_read_b128 {vr(Vn[0],4)}, v{vVA} offset:{t1 * 1280}"
    rv1 = f"ds_read_b128 {vr(Vn[1],4)}, v{vVA} offset:{t1 * 1280 + 640}"
    rk = f"ds_read_b128 {vr(Kn,4)}, v{vKA} offset:{kch + 2048 + t2 * 1024}"
    rke = f"ds_read2st64_b64 {vr(Ke,4)}, v{vKA} offset0:{kch // 512} offset1:{kch // 512 + 2}"
    g = [[pv(OA[1], Vn[1], Y + 24), rv0],
         [mfma2b(Y, t1, vr(NM, 32))],
         [pv(OA[0], Vc[0], X), rv1],
         [pv(OA[0], Vc[1], X + 8), rk],
         [mfma32(Y, Kc, Qm[0], vr(Y, 16))],
         [mfma32(Y + 16, Kc, Qm[1], vr(Y + 16, 16))],
         [pv(OA[1], Vc[0], X + 16), "s_waitcnt lgkmcnt(0)"]]
    late = []
    if ii == 0:
        g[4].append(f"s_add_u32 s{sNext}, s{sNext}, {CH}")
    if ii == 2:
        g[4].append(rke)
        late = [f"v_mad_u32_u24 v{vVA}, v{vVflag}, s{sNext}, v{vVbase}"]
    if half == 0:
        if ii == 1:
            g[4].append(f"s_cmp_eq_u32 s{sM}, s{sRp}")
            g[5] += ["s_cbranch_scc1 LR_step", "LA_bar:"]
        if ii == 2 and 'noprio' not in OPT:
            g[5].append("s_setprio 0")
        if ii == 3:
            g[4].append(f"s_bitcmp1_b32 s{sMend}, s{sM}")
            g[6][1] = "s_waitcnt vmcnt(0) lgkmcnt(0)"
            g[6].append("s_barrier")
            if common.STAMP and 'cyc' in OPT:
                g[6] += [f"s_memtime s[{STAMP_S+28}:{STAMP_S+29}]"]
            if 'noprio' not in OPT:
                g[6].append("s_setprio 1")
            g[6] += ["s_cbranch_scc1 LA_refill", "LA_back:"]
    else:
        if ii == 0:
            g[5].append(f"s_cmp_eq_u32 s{sNext}, s{sRe}")
            if common.STAMP and 'cyc' in OPT:
                g[6] += [f"s_mov_b32 m0, s{sM}", "s_nop 0", f"s_movreld_b32 s{STAMP_S+8}, s{STAMP_S+28}"]
        if ii == 1:
            g[4].append(f"s_cselect_b32 s{sNext}, s{sRb}, s{sNext}")
            g[5].append(f"s_add_u32 s{sM}, s{sM}, 1")
            late = [f"v_add_u32 v{vKA}, s{sNext}, v{vK16}"]
        if ii == 3:
            g[5].append(f"s_sub_u32 s{sRem}, s{sRem}, 1")
    assert POS[2] >= 10 and POS[3] >= 18 and POS[6] >= 26 and POS[0] >= 2
    assert (POS[4] - POS[1]) + 4 >= 18 and (32 - POS[4]) + 3 >= 12
    ins = dict(zip(POS, g))
    for p in range(32):
        for x in ins.get(p, []):
            a(x)
        a(f"v_exp_f32 v{X+p}, v{X+p}")
        if p == 30:
            for x in late:
                a(x)


def rowmax(a, X, out0, out1):
    for base, o in ((X, out0), (X + 16, out1)):
        a(f"v_max3_f32 v{o}, v{base}, v{base+1}, v{base+2}")
        for r in range(3, 15, 2):
            a(f"v_max3_f32 v{o}, v{o}, v{base+r}, v{base+r+1}")
        a(f"v_max_f32 v{o}, v{o}, v{base+15}")


def cross_half_max(a, r, tmp):
    a(f"v_mov_b32 v{tmp}, v{r}\ns_nop 1\nv_permlane32_swap_b32 v{tmp}, v{r}\ns_nop 1\nv_max_f32 v{r}, v{r}, v{tmp}")


def fill_nm(a, m0, m1):
    for r in range(16):
        a(f"v_sub_f32 v{NM+r}, 0, v{m0}")
    for r in range(16):
        a(f"v_sub_f32 v{NM+16+r}, 0, v{m1}")


def attn_scalars(a):
    a.c("head offsets: main octs start at (5g+1)>>1; the ext quad shares an oct with the neighbouring head;")
    a.c("arrivals expected per kind: 16 token blocks x number of 64-column units that hold the head")
    a(f"""
    s_mul_i32 s{sOm}, s{sHead}, 5
    s_add_u32 s{sOm}, s{sOm}, 1
    s_lshr_b32 s{sOm}, s{sOm}, 1
    s_lshl_b32 s{sOm}, s{sOm}, 9
    s_and_b32 s{sT0}, s{sHead}, 1
    s_mov_b32 s{sT1}, 1024
    s_cselect_b32 s{sT1}, {(-512 + 8) & 0xffffffff}, s{sT1}
    s_add_u32 s{sExt}, s{sOm}, s{sT1}
    s_min_u32 s{sT0}, s{sOm}, s{sExt}
    s_add_u32 s{sT2}, s{sOm}, 512
    s_max_u32 s{sT1}, s{sExt}, s{sT2}
    s_lshr_b32 s{sT0}, s{sT0}, 12
    s_lshr_b32 s{sT1}, s{sT1}, 12
    s_cmp_eq_u32 s{sT0}, s{sT1}
    s_cselect_b32 s{sExp}, 16, 32
    """)


def attn_vectors(a):
    a(f"""
    s_and_b32 s{sT0}, s{sHead}, 1
    v_lshlrev_b32 v{vL16}, 4, v0
    v_lshrrev_b32 v{vT0}, 5, v0
    v_mul_u32_u24 v{vT1}, {TILE}, v{vT0}
    v_and_b32 v{vP}, 31, v0
    v_lshl_add_u32 v{vE16}, v{vP}, 4, v{vT1}
    """)
    a.c("V rows: 0..15 main dims, 16..19 ext dims, 20 and 24 ones, the others zero (address past the allocation)")
    a(f"""
    s_lshl_b32 s{sT0}, s{sT0}, 2
    v_and_b32 v{vP+1}, 3, v0
    v_and_b32 v{vP+2}, 4, v0
    v_lshl_add_u32 v{vP+1}, v{vP+2}, 1, v{vP+1}
    v_and_b32 v{vP+2}, 8, v0
    v_lshrrev_b32 v{vP+2}, 1, v{vP+2}
    v_add3_u32 v{vP+1}, v{vP+1}, v{vP+2}, s{sT0}
    s_lshl_b32 s{sT0}, s{sT0}, 2
    v_subrev_u32 v{vP+2}, s{sT0}, v{vP}
    v_cmp_gt_u32 vcc, 16, v{vP}
    v_mul_u32_u24 v{vT1}, 10240, v{vT0}
    v_mul_u32_u24 v{vT0}, 320, v{vT0}
    v_cndmask_b32 v{vP+1}, v{vP+2}, v{vP+1}, vcc
    v_lshlrev_b32 v{vP+1}, 4, v{vP+1}
    v_add_u32 v{vVG}, v{vP+1}, v{vT1}
    v_add_u32 v{vVbase}, v{vP+1}, v{vT0}
    v_add_u32 v{vVbase}, 6144, v{vVbase}
    v_cmp_gt_u32 vcc, 20, v{vP}
    v_mov_b32 v{vP+1}, 0x100000
    v_mov_b32 v{vP+2}, {ONES[0]}
    v_cndmask_b32 v{vVflag}, 0, 1, vcc
    v_cndmask_b32 v{vVbase}, v{vP+1}, v{vVbase}, vcc
    v_cmp_eq_u32 vcc, 20, v{vP}
    v_cmp_eq_u32 s[{sT3}:{sT4}], {20 if 'one1' in OPT else 24}, v{vP}
    s_or_b64 vcc, vcc, s[{sT3}:{sT4}]
    v_mov_b32 v{vP+1}, {ONES[1]}
    s_nop 0
    v_cndmask_b32 v{vVB2}, v{vVbase}, v{vP+1}, vcc
    v_cndmask_b32 v{vVbase}, v{vVbase}, v{vP+2}, vcc
    """)
    a.c("DMA source offsets: even waves load K pieces, odd waves V pieces")
    a(f"""
    s_and_b32 s{sT0}, s{sJ}, 1
    s_cbranch_scc1 LA_dv
    v_add_u32 v{vD}, s{sExt}, v{vE16}
    v_add_u32 v{vD+1}, {2 * TILE}, v{vD}
    v_add_u32 v{vD+2}, s{sOm}, v{vL16}
    v_add_u32 v{vD+3}, {TILE}, v{vD+2}
    v_add_u32 v{vD+4}, {TILE}, v{vD+3}
    v_add_u32 v{vD+5}, {TILE}, v{vD+4}
    s_branch LA_dd
    LA_dv:
    s_mul_i32 s{sT0}, s{sHead}, 320
    s_add_u32 s{sT0}, s{sT0}, {IMG}
    """)
    for p in range(5):
        a(f"""
        v_add_u32 v{vP}, {64 * p}, v0
        v_mul_u32_u24 v{vP+1}, 3277, v{vP}
        v_lshrrev_b32 v{vP+1}, 16, v{vP+1}
        v_mul_u32_u24 v{vP+2}, 20, v{vP+1}
        v_sub_u32 v{vP+2}, v{vP}, v{vP+2}
        v_mul_u32_u24 v{vP+1}, 10240, v{vP+1}
        v_lshl_add_u32 v{vP+1}, v{vP+2}, 4, v{vP+1}
        v_add_u32 v{vD+p}, s{sT0}, v{vP+1}
        """)
    a(f"""
    v_mov_b32 v{vD+5}, v{vD+4}
    LA_dd:
    v_lshlrev_b32 v{vP+3}, 7, v0
    v_mov_b32 v{vP+4}, 0
    """)


def vectors_put(a):
    a(f"""
    s_and_b32 s{sT0}, s{sJ}, 1
    s_lshl_b32 s{sT0}, s{sT0}, 12
    s_add_u32 s{sT0}, s{sT0}, {XFER}
    v_add_u32 v{vT0}, s{sT0}, v{vL16}
    v_mov_b32 v20, v{vVB2}
    v_mov_b32 v21, v{vVflag}
    v_mov_b32 v22, v{vE16}
    v_mov_b32 v23, v{vVG}
    ds_write_b128 v{vT0}, v[20:23]
    ds_write_b128 v{vT0}, {vr(vD,4)} offset:1024
    ds_write_b64 v{vT0}, {vr(vD+4,2)} offset:2048
    """)


def vectors_get(a):
    lane_id(a, 0)
    a(f"""
    s_and_b32 s{sT0}, s{sJ}, 1
    s_lshl_b32 s{sT0}, s{sT0}, 12
    s_add_u32 s{sT0}, s{sT0}, {XFER}
    v_lshlrev_b32 v{vL16}, 4, v0
    v_add_u32 v{vT0}, s{sT0}, v{vL16}
    ds_read_b128 {vr(vVbase,4)}, v{vT0}
    ds_read_b128 {vr(vD,4)}, v{vT0} offset:1024
    ds_read_b64 {vr(vD+4,2)}, v{vT0} offset:2048
    v_lshlrev_b32 v{vP+3}, 7, v0
    """)
    attn_scalars(a)
    a("s_waitcnt lgkmcnt(0)")


def dma_sub(a):
    a(f"""
    LA_dma:
    s_add_u32 s{sT2}, s{sT1}, s{sQB if 'kvrot' in OPT else sHead}
    s_and_b32 s{sT2}, s{sT2}, 7
    s_lshl_b32 s{sT2}, s{sT2}, 1
    s_lshr_b32 s{sT3}, s{sJ}, 1
    s_add_u32 s{sT2}, s{sT2}, s{sT3}
    s_mul_i32 s{sT2}, s{sT2}, {4 * TILE}
    s_lshl_b32 s{sT4}, s{sJ}, 1
    s_and_b32 s{sT4}, s{sT4}, 2
    s_lshr_b32 s{sT4}, 20480, s{sT4}
    s_mul_i32 s{sT4}, s{sT4}, s{sT0}
    s_add_u32 s{sT2}, s{sT2}, s{sT4}
    s_add_u32 s{sT2}, s{sT2}, s{sImg}
    s_add_u32 s{sT2}, s{sT2}, {IMG}
    s_sub_u32 s{sT1}, s{sT1}, s{sT0}
    s_add_u32 s{sT1}, s{sT1}, 1
    s_mul_i32 s{sT4}, s{sT1}, 43
    s_lshr_b32 s{sT4}, s{sT4}, 7
    s_mul_i32 s{sT4}, s{sT4}, 3
    s_sub_u32 s{sT1}, s{sT1}, s{sT4}
    s_lshl_b32 s{sT1}, s{sT1}, 1
    s_add_u32 s{sT1}, s{sT1}, s{sT3}
    s_mul_i32 s{sT1}, s{sT1}, {CH}
    s_mul_i32 s{sT4}, s{sT0}, {RA - RB}
    s_sub_u32 s{sT1}, s{sT1}, s{sT4}
    s_add_u32 s{sT1}, s{sT1}, {RA}
    s_and_b32 s{sT3}, s{sJ}, 1
    s_mul_i32 s{sT4}, s{sT3}, 6144
    s_add_u32 m0, s{sT1}, s{sT4}
    s_nop 0
    """)
    for p in range(5):
        a(f"buffer_load_dwordx4 v{vD+p}, {WSR()}, s{sT2} offen sc1 lds")
        a("s_add_u32 m0, m0, 1024")
        a("s_nop 0" if p < 4 else f"s_cmp_eq_u32 s{sT3}, 1")
    a(f"""
    s_cbranch_scc1 LA_dma_ret
    buffer_load_dwordx4 v{vD+5}, {WSR()}, s{sT2} offen sc1 lds
    LA_dma_ret:
    s_setpc_b64 s[{sLnk}:{sLnk+1}]
    """)


def call_dma(a, b, blk):
    a(f"s_mov_b32 s{sT0}, {b}\ns_mov_b32 s{sT1}, {blk}\ns_call_b64 s[{sLnk}:{sLnk+1}], LA_dma")


def poll_f1(a):
    a(f"""
    s_lshl_b32 s{sT0}, s{sBr}, 5
    s_add_u32 s{sT0}, s{sT0}, s{sHead}
    s_lshl_b32 s{sT0}, s{sT0}, 9
    s_add_u32 s{sT0}, s{sT0}, {WS_C1}
    """)
    poll_counter(a, vP + 3, f"s{sT0}", f"s{sExp}", 7)


def load_q(a):
    a(f"""
    s_lshl_b32 s{sT0}, s{sQB}, 2
    s_add_u32 s{sT0}, s{sT0}, s{sJ}
    s_mul_i32 s{sT0}, s{sT0}, {2 * TILE}
    s_add_u32 s{sT0}, s{sT0}, s{sImg}
    s_add_u32 s{sT1}, s{sT0}, s{sOm}
    s_add_u32 s{sT2}, s{sT1}, {TILE}
    s_add_u32 s{sT0}, s{sT0}, s{sExt}
    buffer_load_dwordx4 {vr(Qm[0],4)}, v{vL16}, {WSR()}, s{sT1} offen sc1
    buffer_load_dwordx4 {vr(Qm[1],4)}, v{vL16}, {WSR()}, s{sT2} offen sc1
    buffer_load_dwordx2 {vr(Qe,2)}, v{vE16}, {WSR()}, s{sT0} offen sc1
    """)


def scale_q(a, nyounger):
    a(f"s_mov_b32 s4, {hex(f32bits(QSCALE))}\ns_mov_b32 s5, s4\ns_waitcnt vmcnt({nyounger})")
    for r in range(Qm[0], Qe + 2):
        a(f"""
        v_lshlrev_b32 v{vPS+2}, 16, v{r}
        v_and_b32 v{vPS+3}, 0xffff0000, v{r}
        v_pk_mul_f32 {vr(vPS+2,2)}, {vr(vPS+2,2)}, s[4:5]
        v_cvt_pk_bf16_f32 v{r}, v{vPS+2}, v{vPS+3}
        """)


def attn_zero(a):
    Z = Vb[1][1]
    for r in (Z, Z + 2, SB[1] + 24, SB[1] + 26, SB[1] + 28, SB[1] + 30):
        a(f"v_pk_mov_b32 {vr(r,2)}, 0, 0")
    a(f"v_mov_b32 v{vP}, 0xbf803f80\nv_mov_b32 v{vP+1}, 0\nv_mov_b32 v{vPS+1}, 0")
    a(f"v_mfma_f32_32x32x4_2b_bf16 {vr(OA[0],32)}, {vr(Z,2)}, {vr(Z,2)}, 0")
    a(f"""
    s_add_u32 s{sRe}, s{sRb}, {RING}
    s_mov_b32 s{sRem}, 7
    v_mov_b32 v{vIdx}, 0xdddddddd
    v_lshrrev_b32 v{vK16}, 1, v{vL16}
    v_xor_b32 v{vK16}, v{vK16}, v{vL16}
    v_and_b32 v{vK16}, 64, v{vK16}
    v_mul_u32_u24 v{vK16}, 3, v{vK16}
    v_xor_b32 v{vK16}, v{vK16}, v{vL16}
    v_add_u32 v{vKA}, s{sNext}, v{vK16}
    v_mad_u32_u24 v{vVA}, v{vVflag}, s{sNext}, v{vVbase}
    """)


DELAY_AT, DELAY = 0, 0


def delay(a, at):
    if DELAY_AT == at and DELAY:
        a(f"s_memrealtime s[4:5]\ns_waitcnt lgkmcnt(0)\ns_add_u32 s6, s4, {DELAY}\nLD_{at}:\ns_sleep 1\ns_memrealtime s[4:5]\ns_waitcnt lgkmcnt(0)\ns_cmp_lt_u32 s4, s6\ns_cbranch_scc1 LD_{at}")


def attention(a):
    X = SB[0]
    delay(a, 1)
    a("LA_start:")
    stamp_cyc(a, 24)
    a(f"""
    ds_read_b128 {vr(Km[0],4)}, v{vKA} offset:2048
    ds_read2st64_b64 {vr(Ke,4)}, v{vKA} offset0:0 offset1:2
    ds_read_b128 {vr(Km[1],4)}, v{vKA} offset:3072
    ds_read_b128 {vr(Vb[0][0],4)}, v{vVA}
    ds_read_b128 {vr(Vb[0][1],4)}, v{vVA} offset:640
    s_waitcnt lgkmcnt(4)
    """)
    a(mfma32(X, Km[0], Qm[0], 0))
    a(mfma32(X + 16, Km[0], Qm[1], 0))
    a("s_nop 8\ns_waitcnt lgkmcnt(3)")
    a(mfma2b(X, 0, vr(X, 32)))
    a("s_nop 15\ns_nop 3")
    a.c("softmax shift: row max over the first key tile, cut to bf16; the epilogue checks that it was safe.")
    a.c("An MFMA (-1 x shift + 1 x half a bf16 step, which centres the cut to bf16 at the row max) applies it to the scores")
    a.c("and spreads it over the C operand of the loop")
    rowmax(a, X, vT0, vT1)
    a(f"""
    s_nop 1
    v_permlane32_swap_b32 v{vT0}, v{vT1}
    s_nop 1
    v_max_f32 v{vT0}, v{vT0}, v{vT1}
    v_and_b32 v{vPS}, 0xffff0000, v{vT0}
    v_or_b32 v{vPS}, 0x3bb8, v{vPS}
    s_nop 1
    v_mfma_f32_32x32x4_2b_bf16 {vr(X,32)}, {vr(vP,2)}, {vr(vPS,2)}, {vr(X,32)}
    v_mfma_f32_32x32x4_2b_bf16 {vr(NM,32)}, {vr(vP,2)}, {vr(vPS,2)}, 0
    s_nop 15
    s_nop 0
    LA_w1:
    s_setprio {0 if 'noprio' in OPT else 1}
    s_waitcnt lgkmcnt(0)
    """)
    if LOFF >= 0:
        a(f"s_branch LA_loop\n.p2align 8\n.fill {LOFF // 4}, 4, 0xbf800000\nLA_loop:")
    else:
        a(".p2align 6\nLA_loop:")
    for half in range(2):
        for ii in range(4):
            tile_iter(a, ii, half)
    a("s_cbranch_scc0 LA_loop\ns_nop 0")
    a(pv(OA[1], Vb[1][1], SB[1] + 24))
    if 'alow' in OPT:
        a("s_setprio 0")
    a(f"s_cmp_eq_u32 s{sRole}, 0\ns_cbranch_scc1 LA_fin2\ns_setprio 2")
    a.c("announce that the results are about to be stored; readers then wait for the markers to disappear")
    count_in(a, sOc, vP, vP + 1)
    a("LA_fin2:")
    stamp(a, 4)
    stamp_cyc(a, 31)
    N = SB[0]
    rc = SB[1]
    tm = rc + 4

    def rowsum(u, d):
        if 'one1' in OPT:
            return f"v_mov_b32 v{d}, v{OA[u]+8}\nv_mov_b32 v{OA[u]+12}, v{OA[u]+8}\ns_nop 1\nv_permlane32_swap_b32 v{OA[u]+12}, v{d}"
        return f"v_cndmask_b32 v{d}, v{OA[u]+12}, v{OA[u]+8}, vcc"

    def norm(u):
        O, P = OA[u], N + 12 * u
        for r in range(0, 12, 2):
            a(f"v_pk_mul_f32 {vr(P+r,2)}, {vr(O+r,2)}, {vr(rc+2*u,2)} op_sel_hi:[1,0]")
        for j in range(6):
            a(f"v_cvt_pk_bf16_f32 v{P+j}, v{P+2*j}, v{P+2*j+1}")
    a(f"""
    s_mov_b32 s{sRem}, 0
    LA_epi:
    v_cmp_lt_u32 vcc, 31, v0
    s_add_u32 s{sT0}, s{sOb}, s{sOm}
    s_add_u32 s{sT1}, s{sT0}, {TILE}
    {rowsum(0, vT0)}
    v_rcp_f32 v{rc}, v{vT0}
    v_pk_add_f32 {vr(tm,2)}, {vr(OA[0],2)}, {vr(OA[0]+2,2)}
    """)
    a.c("safety check of the shift before anything is stored: row sums inside [2^-30, 2^30], finite accumulators")
    for r in range(4, 12, 2):
        a(f"v_pk_add_f32 {vr(tm,2)}, {vr(tm,2)}, {vr(OA[0]+r,2)}")
    norm(0)
    a(f"{rowsum(1, vT1)}\nv_rcp_f32 v{rc+2}, v{vT1}")
    for r in range(0, 12, 2):
        a(f"v_pk_add_f32 {vr(tm,2)}, {vr(tm,2)}, {vr(OA[1]+r,2)}")
    a(f"""
    v_add_f32 v{tm}, v{tm}, v{tm+1}
    v_add_f32 v{tm+1}, v{vT0}, v{vT1}
    v_fma_f32 v{tm}, 0, v{tm}, v{tm+1}
    v_min_f32 v{tm+1}, v{vT0}, v{vT1}
    v_cmp_gt_f32 vcc, {hex(f32bits(2.0**30))}, v{tm}
    s_mov_b64 s[4:5], vcc
    v_cmp_lt_f32 vcc, {hex(f32bits(2.0**-30))}, v{tm+1}
    """)
    for j in range(4):
        a(f"v_min_u32 v{N+j}, -2, v{N+j}")
    a(f"""
    s_and_b64 s[4:5], s[4:5], vcc
    s_cmp_eq_u64 s[4:5], -1
    s_cselect_b32 s{sT3}, 1, s{sRem}
    s_cmp_eq_u32 s{sT3}, 0
    s_cbranch_scc1 LA_slow
    buffer_store_dwordx4 {vr(N,4)}, v{vL16}, {WSR()}, s{sT0} offen sc1
    """)
    norm(1)
    for j in range(4):
        a(f"v_min_u32 v{N+12+j}, -2, v{N+12+j}")
    a(f"""
    buffer_store_dwordx4 {vr(N+12,4)}, v{vL16}, {WSR()}, s{sT1} offen sc1
    v_permlane32_swap_b32 v{N+4}, v{N+16}
    v_permlane32_swap_b32 v{N+5}, v{N+17}
    s_add_u32 s{sT2}, s{sOb}, s{sExt}
    v_min_u32 v{N+4}, -2, v{N+4}
    v_min_u32 v{N+5}, -2, v{N+5}
    buffer_store_dwordx2 {vr(N+4,2)}, v{vE16}, {WSR()}, s{sT2} offen sc1
    """)


def o_base(a):
    a(f"""
    s_lshl_b32 s{sT0}, s{sQB}, 2
    s_add_u32 s{sT0}, s{sT0}, s{sJ}
    s_mul_i32 s{sOb}, s{sT0}, {2 * TILE}
    s_add_u32 s{sOb}, s{sOb}, s{sImg}
    s_add_u32 s{sOb}, s{sOb}, {3 * IMG}
    """)
    a(f"s_lshr_b32 s{sT1}, s{sHead}, 3\ns_max_u32 s{sT1}, s{sT1}, 1\ns_sub_u32 s{sT1}, s{sT1}, 1")
    c3_off(a, sOc, sT0, sT1)


def o_mark(a):
    o_base(a)
    a(f"""
    s_add_u32 s{sT0}, s{sOb}, s{sOm}
    s_add_u32 s{sT1}, s{sT0}, {TILE}
    s_add_u32 s{sT2}, s{sOb}, s{sExt}
    buffer_store_dwordx4 v[20:23], v{vL16}, {WSR()}, s{sT0} offen sc1
    buffer_store_dwordx4 v[20:23], v{vL16}, {WSR()}, s{sT1} offen sc1
    buffer_store_dwordx2 v[20:21], v{vE16}, {WSR()}, s{sT2} offen sc1
    """)


def refill(a):
    a.c("role-B waves refill both rings: after barrier m, A block m+2 and B block m-SK+2")
    a(f"""
    LA_refill:
    s_cmp_gt_u32 s{sM}, 5
    s_cbranch_scc1 LA_ev_b
    s_mov_b32 s{sT0}, 0
    s_add_u32 s{sT1}, s{sM}, 2
    s_call_b64 s[{sLnk}:{sLnk+1}], LA_dma
    LA_ev_b:
    s_sub_u32 s{sT1}, s{sM}, {SK - 2}
    s_cmp_lt_u32 s{sT1}, 3
    s_cbranch_scc1 LA_back
    s_mov_b32 s{sT0}, 1
    s_call_b64 s[{sLnk}:{sLnk+1}], LA_dma
    s_branch LA_back
    """)


def slow_path(a):
    X = SB[0]
    m0, m1, t0, t1 = SB[1], SB[1] + 1, SB[1] + 2, SB[1] + 3

    def kloads(t):
        a(f"buffer_load_dwordx4 {vr(Km[0],4)}, v{vL16}, {WSR()}, s{sT1} offen sc1")
        if t == 0:
            a(f"buffer_load_dwordx2 {vr(Ke,2)}, v{vE16}, {WSR()}, s{sT2} offen sc1")
            a(f"s_add_u32 s{sT2}, s{sT2}, {2 * TILE}")
        a(f"s_add_u32 s{sT1}, s{sT1}, {TILE}")

    def kbase():
        a(f"""
        s_add_u32 s{sT0}, s{sImg}, {IMG}
        s_add_u32 s{sT1}, s{sT0}, s{sOm}
        s_add_u32 s{sT2}, s{sT0}, s{sExt}
        s_mov_b32 s{sRem}, 0
        """)
    a(f"LA_slow:\nv_mov_b32 v{m0}, 0xff800000\nv_mov_b32 v{m1}, 0xff800000")
    kbase()
    a("LA_slow_max:")
    for t in range(2):
        kloads(t)
        a("s_waitcnt vmcnt(0)")
        a(mfma32(X, Km[0], Qm[0], 0))
        a(mfma32(X + 16, Km[0], Qm[1], 0))
        a("s_nop 9")
        a(mfma2b(X, t, vr(X, 32)))
        a("s_nop 15\ns_nop 3")
        rowmax(a, X, t0, t1)
        a(f"v_max_f32 v{m0}, v{m0}, v{t0}\nv_max_f32 v{m1}, v{m1}, v{t1}")
    a(f"s_add_u32 s{sRem}, s{sRem}, 1\ns_cmp_lt_u32 s{sRem}, 32\ns_cbranch_scc1 LA_slow_max")
    cross_half_max(a, m0, t0)
    cross_half_max(a, m1, t0)
    fill_nm(a, m0, m1)
    for r in range(32):
        a(f"v_mov_b32 v{OA[0]+r}, 0")
    for r in range(8):
        a(f"v_mov_b32 v{Vb[0][0]+r}, 0x3f803f80")
    kbase()
    a(f"""
    s_mul_i32 s{sT3}, s{sHead}, 320
    s_add_u32 s{sT3}, s{sT3}, s{sT0}
    s_add_u32 s{sT3}, s{sT3}, {IMG}
    LA_slow_pv:
    """)
    for t in range(2):
        kloads(t)
        a(f"""
        s_add_u32 s{sT4}, s{sT3}, 20480
        s_mov_b32 exec_lo, 0xfffff
        s_mov_b32 exec_hi, 0xfffff
        buffer_load_dwordx4 {vr(Vb[0][0],4)}, v{vVG}, {WSR()}, s{sT3} offen sc1
        buffer_load_dwordx4 {vr(Vb[0][1],4)}, v{vVG}, {WSR()}, s{sT4} offen sc1
        s_mov_b64 exec, -1
        s_add_u32 s{sT3}, s{sT3}, {TILE}
        s_waitcnt vmcnt(2)
        """)
        a(mfma32(X, Km[0], Qm[0], vr(NM, 16)))
        a(mfma32(X + 16, Km[0], Qm[1], vr(NM + 16, 16)))
        a("s_nop 9")
        a(mfma2b(X, t, vr(X, 32)))
        a("s_nop 15\ns_nop 3")
        for r in range(32):
            a(f"v_exp_f32 v{X+r}, v{X+r}")
        a("s_nop 0")
        for j in range(16):
            a(f"v_cvt_pk_bf16_f32 v{X + 8*(j//4) + j%4}, v{X+2*j}, v{X+2*j+1}")
        a("s_waitcnt vmcnt(0)\ns_nop 1")
        a(mfma32(OA[0], Vb[0][0], X, vr(OA[0], 16)))
        a(mfma32(OA[0], Vb[0][1], X + 8, vr(OA[0], 16)))
        a(mfma32(OA[1], Vb[0][0], X + 16, vr(OA[1], 16)))
        a(mfma32(OA[1], Vb[0][1], X + 24, vr(OA[1], 16)))
    a(f"""
    s_add_u32 s{sRem}, s{sRem}, 1
    s_cmp_lt_u32 s{sRem}, 32
    s_cbranch_scc1 LA_slow_pv
    s_nop 15
    s_mov_b32 s{sRem}, 1
    s_branch LA_epi
    """)


pWF = [16, 56]
pACC = 96
pACL = 196
pOF = 136
pWA, pOA = 2, 3


def c3_off(a, dst, t64, part):
    a(f"""
    s_lshl_b32 s{dst}, s{sBr}, 5
    s_add_u32 s{dst}, s{dst}, s{t64}
    s_mul_i32 s{dst}, s{dst}, 3
    s_add_u32 s{dst}, s{dst}, s{part}
    s_lshl_b32 s{dst}, s{dst}, 7
    s_add_u32 s{dst}, s{dst}, {WS_C3}
    """)


def wo_dma(a, k0, k1, lds0):
    _lbl[0] += 1
    L = f"LP_wd{_lbl[0]}"
    a(f"""
    s_and_b32 s{sT0}, s{sHead}, 3
    s_lshl_b32 s{sT1}, s{sBr}, 2
    s_add_u32 s{sT0}, s{sT0}, s{sT1}
    s_mul_i32 s{sT0}, s{sT0}, {WO_SLAB}
    s_lshl_b32 s{sT1}, s{sJ}, 10
    s_add_u32 s{sT0}, s{sT0}, s{sT1}
    s_add_u32 s{sT0}, s{sT0}, {WS_WO + 10240 * k0}
    s_add_u32 s{sT1}, s{sT1}, {lds0}
    {L}:
    s_mov_b32 m0, s{sT1}
    s_add_u32 s{sT1}, s{sT1}, 4096
    buffer_load_dwordx4 v{vL16}, {WSR()}, s{sT0} offen sc1 lds
    s_add_u32 s{sT0}, s{sT0}, 4096
    s_cmp_lt_u32 s{sT1}, {lds0 + 10240 * (k1 - k0)}
    s_cbranch_scc1 {L}
    """)


def o_addr(a):
    a(f"""
    s_lshl_b32 s{sT1}, s{sQB}, 2
    s_lshr_b32 s{sT2}, s{sHead}, 2
    s_add_u32 s{sT1}, s{sT1}, s{sT2}
    """)
    c3_off(a, sFc, sT1, sRole)
    a(f"""
    v_and_b32 v{vP+3}, 15, v0
    s_lshl_b32 s{sT1}, s{sT1}, 1
    s_lshr_b32 s{sT2}, s{sJ}, 1
    s_add_u32 s{sT1}, s{sT1}, s{sT2}
    s_mul_i32 s{sT1}, s{sT1}, {TILE}
    s_add_u32 s{sT1}, s{sT1}, s{sImg}
    s_and_b32 s{sT2}, s{sJ}, 1
    s_lshl_b32 s{sT2}, s{sT2}, 8
    s_add_u32 s{sT1}, s{sT1}, s{sT2}
    s_add_u32 s{sFo}, s{sT1}, {3 * IMG}
    v_lshrrev_b32 v{pOA}, 4, v0
    v_lshlrev_b32 v{pOA}, 9, v{pOA}
    v_lshl_add_u32 v{pOA}, v{vP+3}, 4, v{pOA}
    v_lshlrev_b32 v{vP+5}, 7, v0
    s_mov_b32 s{sF[0]}, s{sFo}
    s_add_u32 s{sF[1]}, s{sFo}, 10240
    """)


sF = [54, 55]


def o_load_sub(a, label, p0):
    a(f"{label}:\ns_mov_b32 s{sT1}, s{sF[p0 // 5]}")
    for i in range(5):
        a(f"buffer_load_dwordx4 {vr(pOF + 4*(p0 + i), 4)}, v{pOA}, {WSR()}, s{sT1} offen offset:{(i & 1) * 2048} sc1")
        if i & 1:
            a(f"s_add_u32 s{sT1}, s{sT1}, 4096")
    a(f"s_setpc_b64 s[{sLnk}:{sLnk+1}]")


def o_checked(a, label, p0, counted):
    a(f"s_mov_b32 s{sSpin}, {SPIN}\n{label}_chk:\nv_mov_b32 v{vPS}, 0\nv_mov_b32 v{vPS+1}, 0")
    for i in range(5):
        r = pOF + 4 * (p0 + i)
        if counted:
            a(f"s_waitcnt vmcnt({4 - i})")
        a(f"v_max3_u32 v{vPS}, v{vPS}, v{r}, v{r+1}\nv_max3_u32 v{vPS+1}, v{vPS+1}, v{r+2}, v{r+3}")
    a(f"""
    v_max_u32 v{vPS}, v{vPS}, v{vPS+1}
    v_cmp_eq_u32 vcc, -1, v{vPS}
    s_cbranch_vccz {label}_ok
    s_call_b64 s[{sLnk}:{sLnk+1}], {label}
    s_waitcnt vmcnt(0)
    s_sub_u32 s{sSpin}, s{sSpin}, 1
    s_cbranch_scc0 {label}_chk
    {label}_ok:
    """)


def peek(a, mask):
    a(f"""
    v_mov_b32 v{vPS+2}, 0
    s_mov_b64 exec, {mask}
    buffer_atomic_add v{vPS+2}, v{vP+5}, {WSR()}, s{sFc} offen sc0 sc1
    s_mov_b64 exec, -1
    """)


def ready_mask(a):
    a(f"v_cmp_le_u32 vcc, 8, v{vPS+2}\ns_and_b32 s{sPh}, vcc_lo, 3")


def order_sub(a):
    a(f"""
    LP_order:
    s_and_b32 s{sDone}, s{sPh}, 1
    s_xor_b32 s{sDone}, s{sDone}, 1
    s_mul_i32 s{sT0}, s{sDone}, 10240
    s_add_u32 s{sF[0]}, s{sFo}, s{sT0}
    s_sub_u32 s{sF[1]}, s{sFo}, s{sT0}
    s_add_u32 s{sF[1]}, s{sF[1]}, 10240
    """)


TAB = [8, 9, 10, 11, 12, 13, 14, 15, 52, 53]


sLnkM = 6


def oproj_subs(a, G3, Lo0):
    def wreads(p):
        return [f"ds_read_b128 {vr(pWF[p & 1] + 4*c, 4)}, v{pWA} offset:{c * 1024}" for c in range(10)]
    a(f"LP_pro:\nv_add_u32 v{pWA}, s{TAB[0]}, v{vL16}")
    for r in wreads(0):
        a(r)
    a(f"s_setpc_b64 s[{sLnkM}:{sLnkM+1}]")
    for p in range(10):
        if p % 5 == 0:
            a("LP_lo:" if p else "LP_hi:")
        rd = wreads(p + 1) if p < 9 else []
        if rd:
            a(f"v_add_u32 v{pWA}, s{TAB[p + 1]}, v{vL16}")
        for c in range(10):
            A = (pACL if p >= 5 else pACC) + 4 * c
            a(f"s_waitcnt lgkmcnt({9 if rd else 9 - c})")
            a(f"v_mfma_f32_16x16x32_bf16 {vr(A,4)}, {vr(pOF + 4*p, 4)}, {vr(pWF[p & 1] + 4*c, 4)}, {vr(A,4)}")
            if rd:
                a(rd[c])
            site = 2 * (p - 5) + c // 5
            if p >= 5 and c % 5 == 0 and site < 9:
                a(f"s_cbranch_scc1 LW_{site}\nLW_b{site}:")
            if p == MID_P and c == 9:
                a("s_cbranch_scc1 LP_mid\nLP_midb:")
        if p % 5 == 4:
            a(f"s_setpc_b64 s[{sLnkM}:{sLnkM+1}]")
    for site in range(9):
        a(f"LW_{site}:")
        n = 3 if site < 5 else 2
        if site == 0:
            a(f"s_mul_i32 s{sT1}, s{sJ}, {15 * 1024}\ns_add_u32 s{sT2}, s{sT0}, s{sT1}\ns_add_u32 m0, s{sT1}, {G3}")
        elif site == 5:
            a(f"s_lshl_b32 s{sT1}, s{sJ}, 13\ns_add_u32 s{sT2}, s{sT0}, s{sT1}\ns_add_u32 s{sT2}, s{sT2}, {6 * 10240}\ns_add_u32 m0, s{sT1}, {Lo0}")
        else:
            a(f"s_add_u32 m0, m0, {n * 1024}\ns_add_u32 s{sT2}, s{sT2}, {n * 1024}")
        a("s_cmp_eq_u32 0, 0")
        if site == 7:
            peek(a, 3)
        for i in range(n):
            a(f"buffer_load_dwordx4 v{vL16}, {WSR()}, s{sT2} offen offset:{i * 1024} sc1 lds")
        a(f"s_branch LW_b{site}")
    a("LP_mid:\ns_waitcnt vmcnt(0)")
    ready_mask(a)
    a(f"s_cmp_eq_u32 s{sPh}, 3\ns_cbranch_scc0 LP_midb\ns_call_b64 s[{sLnk}:{sLnk+1}], LP_ldlo\ns_branch LP_midb")


MID_P = 4
WOVEN_PRIO = 1


def set_tab(a, addrs):
    for r, x in zip(TAB, addrs):
        a(f"s_mov_b32 s{r}, {x}")


def out_addr(a):
    a.c("lane n = l & 15 holds columns 8n..8n+7 of a 128-column piece and 2n, 2n+1 of a 32-column piece (tokens 4*(l >> 4) + r);")
    a.c("odd column groups start with the narrow piece, so that the wide one covers whole 128-B lines")
    a(f"""
    s_lshl_b32 s{sT0}, s{sQB}, 2
    s_lshr_b32 s{sT1}, s{sHead}, 2
    s_add_u32 s{sT0}, s{sT0}, s{sT1}
    s_lshl_b32 s{sT0}, s{sT0}, 2
    s_add_u32 s{sT0}, s{sT0}, s{sJ}
    s_mul_i32 s{sT0}, s{sT0}, {16 * 2560}
    s_mul_i32 s{sT1}, s{sBr}, 1280
    s_add_u32 s{sT0}, s{sT0}, s{sT1}
    s_and_b32 s{sT1}, s{sHead}, 3
    s_mul_i32 s{sT1}, s{sT1}, 320
    s_add_u32 s{sXo}, s{sT0}, s{sT1}
    s_add_u32 s{sWo}, s{sXo}, {2 * 2560}
    v_lshrrev_b32 v4, 4, v0
    v_mul_u32_u24 v4, {4 * 2560}, v4
    v_and_b32 v6, 15, v0
    s_and_b32 s{sT0}, s{sHead}, 1
    s_cselect_b32 s{sT0}, 64, 0
    s_cselect_b32 s{sT1}, 0, 256
    v_lshl_add_u32 v5, v6, 2, v4
    v_lshl_add_u32 v4, v6, 4, v4
    v_add_u32 v4, s{sT0}, v4
    v_add_u32 v5, s{sT1}, v5
    """)


def out_store(a):
    OUTMOD = " nt" if 'outnt' in OPT else " sc1"
    for r in range(4):
        if r % 2 == 0:
            for c in range(10):
                a(f"v_pk_add_f32 {vr(pACC + 4*c + r, 2)}, {vr(pACC + 4*c + r, 2)}, {vr(pACL + 4*c + r, 2)}")
        P = 16 + 6 * r
        for j in range(5):
            a(f"v_cvt_pk_bf16_f32 v{P+j}, v{pACC + 8*j + r}, v{pACC + 8*j + 4 + r}")
        so = sXo if r < 2 else sWo
        a(f"buffer_store_dwordx4 {vr(P,4)}, v4, s[{sOut}:{sOut+3}], s{so} offen offset:{(r & 1) * 2560}{OUTMOD}")
        a(f"buffer_store_dword v{P+4}, v5, s[{sOut}:{sOut+3}], s{so} offen offset:{(r & 1) * 2560}{OUTMOD}")


rL, rT, rD, rX, rData = 194, 199, 201, 205, 208


def repack_setup(a):
    x = rX
    for i in range(5):
        a(f"""
        v_add_u32 v{x}, {64 * i}, v0
        v_mul_u32_u24 v{x+1}, 3277, v{x}
        v_lshrrev_b32 v{x+1}, 16, v{x+1}
        v_mul_u32_u24 v{x+2}, 20, v{x+1}
        v_sub_u32 v{x+2}, v{x}, v{x+2}
        v_mul_u32_u24 v{x+1}, 1280, v{x+1}
        v_lshl_add_u32 v{rL+i}, v{x+2}, 4, v{x+1}
        """)
    a(f"""
    v_and_b32 v{x}, 48, v0
    v_lshlrev_b32 v{x}, 4, v{x}
    v_add_u32 v{x}, {RPK}, v{x}
    v_and_b32 v{x+1}, 7, v0
    v_mul_u32_u24 v{x+1}, 1040, v{x+1}
    v_and_b32 v{x+2}, 8, v0
    v_lshl_add_u32 v{x+1}, v{x+2}, 1, v{x+1}
    v_add_u32 v{rD}, v{x}, v{x+1}
    v_and_b32 v{x+1}, 1, v0
    v_mul_u32_u24 v{x+1}, 1040, v{x+1}
    v_and_b32 v{x+2}, 14, v0
    v_lshl_add_u32 v{x+1}, v{x+2}, 3, v{x+1}
    v_add3_u32 v{rD+1}, v{x}, v{x+1}, 0
    v_lshrrev_b32 v{x}, 4, v0
    v_lshlrev_b32 v{x}, 3, v{x}
    v_lshrrev_b32 v{x+1}, 2, v0
    v_and_b32 v{x+1}, 3, v{x+1}
    v_add_u32 v{x}, v{x}, v{x+1}
    v_mul_u32_u24 v{x}, 320, v{x}
    v_and_b32 v{x+1}, 3, v0
    v_lshl_add_u32 v{x}, v{x+1}, 3, v{x}
    v_add_u32 v{x}, {RPK}, v{x}
    s_and_b32 s{sT0}, s2, 2
    s_cselect_b32 s{sT0}, 64, 0
    s_cselect_b32 s{sT1}, 0, 256
    v_add_u32 v{rT}, s{sT0}, v{x}
    v_add_u32 v{rT+1}, s{sT1}, v{x}
    v_add_u32 v{rX}, {RPK}, v{vL16}
    """)


sRu, sRs = 38, 39


def repack_steps(a):
    a(f"""
    LR_step:
    s_add_u32 s{sRp}, s{sRp}, 1
    s_and_b32 s{sT3}, s{sRu}, 3
    s_lshl_b32 s{sT4}, s{sBr}, 2
    s_add_u32 s{sT4}, s{sT4}, s{sT3}
    s_cmp_eq_u32 s{sRs}, 0
    s_cbranch_scc1 LR_load
    s_cmp_eq_u32 s{sRs}, 1
    s_cbranch_scc0 LR_s2
    s_lshr_b32 s{sT2}, s{sRu}, 2
    s_mul_i32 s{sT0}, s{sT4}, {WO_SLAB}
    s_mul_i32 s{sT2}, s{sT2}, 10240
    s_add_u32 s{sT0}, s{sT0}, s{sT2}
    s_add_u32 s{sT0}, s{sT0}, {WS_WO}
    """)
    for ct in range(10):
        for u in range(2):
            a(f"ds_read_b64_tr_b16 {vr(rData + 4*ct + 2*u, 2)}, v{rT + ct // 8} offset:{u*4*320 + (ct % 8)*32}")
        if ct == 4:
            a("s_waitcnt lgkmcnt(0)")
    a("s_waitcnt lgkmcnt(0)")
    for ct in range(10):
        a(f"ds_write_b128 v{rD + ct // 8}, {vr(rData + 4*ct, 4)} offset:{32 * ct if ct < 8 else 8 * 1040 + 128 * (ct - 8)}")
    a("s_waitcnt lgkmcnt(0)")
    for c in range(10):
        a(f"ds_read_b128 {vr(rData + 4*c, 4)}, v{rX} offset:{1040 * c}")
    for c in range(10):
        a(f"s_waitcnt lgkmcnt({9 - c})")
        a(f"buffer_store_dwordx4 {vr(rData + 4*c, 4)}, v{vL16}, {WSR()}, s{sT0} offen offset:{1024 * (c & 3)} sc1")
        if c & 3 == 3:
            a(f"s_add_u32 s{sT0}, s{sT0}, 4096")
    a(f"""
    s_mov_b32 s{sRs}, 2
    s_cmp_lt_u32 s{sRu}, 16
    s_cbranch_scc0 LA_bar
    s_add_u32 s{sRu}, s{sRu}, 64
    LR_load:
    s_mov_b32 s{sRs}, 1
    s_mov_b32 s{sWt}, s{sPtr+2}
    s_and_b32 s{sWt+1}, s{sPtr+3}, 0xffff
    s_mov_b32 s{sWt+2}, {D * D * 2}
    s_mov_b32 s{sWt+3}, 0x00020000
    s_lshr_b32 s{sT2}, s{sRu}, 2
    s_mul_i32 s{sT0}, s{sT2}, {32 * 1280}
    s_mul_i32 s{sT1}, s{sT3}, 320
    s_add_u32 s{sT0}, s{sT0}, s{sT1}
    s_mov_b32 m0, {RPK}
    s_add_u32 s{sT1}, s{sT0}, {16 * 1280}
    """)
    for i in range(10):
        a(f"buffer_load_dwordx4 v{rL + i % 5}, s[{sWt}:{sWt+3}], s{sT1 if i >= 5 else sT0} offen lds")
        a("s_add_u32 m0, m0, 1024\ns_nop 0")
    a(f"""
    s_branch LA_bar
    LR_s2:
    s_mov_b32 s{sRp}, -1
    s_lshl_b32 s{sT0}, s{sT4}, 7
    s_add_u32 s{sT0}, s{sT0}, {WS_C4}
    """)
    count_in(a, sT0, vP, vP + 1)
    a("s_branch LA_bar")


def write_ones(a, role):
    a(f"""
    v_and_b32 v{vT0}, 7, v0
    v_mul_u32_u24 v{vT0}, 640, v{vT0}
    v_add_u32 v{vT0}, {ONES[role]}, v{vT0}
    v_mov_b32 v16, 0x3f803f80
    v_mov_b32 v17, 0x3f803f80
    v_mov_b32 v18, 0x3f803f80
    v_mov_b32 v19, 0x3f803f80
    ds_write_b128 v{vT0}, v[16:19]
    """)


sL = 8


def lead_prepare(a):
    a(f"""
    s_lshr_b32 s{sRu}, s2, 3
    s_lshl_b32 s{sRu}, s{sRu}, 1
    s_bfe_u32 s{sT0}, s2, 0x10001
    s_add_u32 s{sRu}, s{sRu}, s{sT0}
    s_mov_b32 s{sRs}, 0
    s_and_b32 s{sT0}, s2, 1
    s_cselect_b32 s{sT0}, 0, s{sJ}
    s_cmp_eq_u32 s{sT0}, 1
    s_cselect_b32 s{sRp}, {RP_AT}, -1
    s_mov_b32 s{sM}, 0
    s_mov_b32 s{sMend}, 0
    s_mov_b32 s{sRb}, {RA}
    s_mov_b32 s{sNext}, {RA + BLK}
    """)
    attn_zero(a)
    o_base(a)
    a(f"""
    s_sub_u32 s{sT0}, s{sOb}, {3 * IMG}
    s_add_u32 s{sL},  s{sT0}, s{sOm}
    s_add_u32 s{sL+1}, s{sL},  {TILE}
    s_add_u32 s{sL+2}, s{sT0}, s{sExt}
    s_lshr_b32 s{sT3}, s{sJ}, 1
    s_mul_i32 s{sT1}, s{sT3}, {4 * TILE}
    s_add_u32 s{sT1}, s{sT1}, s{sImg}
    s_add_u32 s{sT1}, s{sT1}, {IMG}
    s_and_b32 s{sL+4}, s{sQB if 'kvrot' in OPT else sHead}, 7
    s_mul_i32 s{sL+3}, s{sL+4}, {8 * TILE}
    s_add_u32 s{sL+3}, s{sL+3}, s{sT1}
    s_add_u32 s{sL+4}, s{sL+4}, 1
    s_and_b32 s{sL+4}, s{sL+4}, 7
    s_mul_i32 s{sL+4}, s{sL+4}, {8 * TILE}
    s_add_u32 s{sL+4}, s{sL+4}, s{sT1}
    s_mul_i32 s{sL+5}, s{sT3}, {CH}
    s_and_b32 s{sL+6}, s{sJ}, 1
    s_mul_i32 s{sT4}, s{sL+6}, 6144
    s_add_u32 s{sL+5}, s{sL+5}, s{sT4}
    s_add_u32 m0, s{sL+5}, {RA + BLK}
    """)
    a(f"""
    s_lshl_b32 s{sL+7}, s{sBr}, 5
    s_add_u32 s{sL+7}, s{sL+7}, s{sHead}
    s_lshl_b32 s{sL+7}, s{sL+7}, 9
    s_add_u32 s{sL+7}, s{sL+7}, {WS_C1}
    """)


def common_setup(a):
    a(f"""
    s_and_b32 s{sT0}, s2, 1
    s_lshl_b32 s{sT0}, s{sT0}, 3
    s_and_b32 s{sT1}, s2, 2
    s_lshl_b32 s{sT1}, s{sT1}, 1
    s_add_u32 s{sT0}, s{sT0}, s{sT1}
    s_lshr_b32 s{sT2}, s2, 6
    s_add_u32 s{sHead}, s{sT0}, s{sT2}
    s_lshr_b32 s{sQB}, s2, 3
    s_and_b32 s{sQB}, s{sQB}, 7
    s_lshl_b32 s{sT2}, s{sRole}, 4
    s_add_u32 s{sHead}, s{sHead}, s{sT2}
    s_mul_i32 s{sImg}, s{sBr}, {4 * IMG}
    s_mov_b32 s{sPh}, 0
    s_mov_b32 s{sWS+2}, {WS_STAMP + 2048 * 128 if common.STAMP else WS_END}
    s_mov_b32 s{sWS+3}, 0x00020000
    s_mov_b32 s{sOut+2}, {S * 2 * D * 2}
    s_mov_b32 s{sOut+3}, 0x00020000
    s_mov_b32 s{sDbg+2}, 256
    s_mov_b32 s{sDbg+3}, 0x00020000
    s_waitcnt lgkmcnt(0)
    s_mov_b32 s{sOut}, s{sPtr+4}
    s_and_b32 s{sOut+1}, s{sPtr+5}, 0xffff
    s_mov_b32 s{sDbg}, s{sPtr+6}
    s_and_b32 s{sDbg+1}, s{sPtr+7}, 0xffff
    s_and_b32 s{sWS+1}, s{sWS+1}, 0xffff
    """)


def gen(a, label):
    kernel_head(a, label)
    a("s_cmp_ge_u32 s2, 256\ns_cbranch_scc1 LF_end")
    stamp(a, 0)
    a(f"""
    s_bfe_u32 s{sBr}, s2, 0x10002
    s_mul_i32 s{sT0}, s{sBr}, 24
    s_load_dwordx2 s[{sX}:{sX+1}], s[0:1], s{sT0}
    s_add_u32 s{sT1}, s{sT0}, 8
    s_load_dwordx4 s[{sPtr}:{sPtr+3}], s[0:1], s{sT1}
    s_load_dwordx4 s[{sPtr+4}:{sPtr+7}], s[0:1], 48
    s_load_dwordx2 s[{sWS}:{sWS+1}], s[0:1], 64
    v_lshrrev_b32 v1, 6, v0
    v_and_b32 v0, 63, v0
    v_readfirstlane_b32 s{sW}, v1
    """)
    if 'noearly' not in OPT:
        a.c("waves 4-6 start the address translations of X and W as soon as the pointers are there")
        a(f"""
        s_sub_u32 s{sT1}, s{sW}, 4
        s_cmp_lt_u32 s{sT1}, 3
        s_cbranch_scc0 LF_nt
        s_lshl_b32 s{sT1}, s{sT1}, 20
        s_waitcnt lgkmcnt(0)
        s_load_dword s6, s[{sX}:{sX+1}], s{sT1}
        s_load_dword s7, s[{sPtr}:{sPtr+1}], s{sT1}
        LF_nt:
        """)
    a(f"""
    s_and_b32 s{sT0}, s2, 3
    s_lshl_b32 s{sT0}, s{sT0}, 2
    s_bfe_u32 s{sT2}, s2, 0x20003
    s_add_u32 s{sTB}, s{sT0}, s{sT2}
    s_lshr_b32 s{sTI}, s2, 5
    """)
    if 'nocw' not in OPT:
        a.c("wave 7 pulls a quarter of the code into the L2, so that later instruction fetches find it there")
        a(f"""
        s_cmp_eq_u32 s{sW}, 7
        s_cbranch_scc0 LG_nocw
        s_getpc_b64 s[4:5]
        LG_pc:
        s_sub_u32 s4, s4, LG_pc-{label}
        s_subb_u32 s5, s5, 0
        s_lshl_b32 s{sT0}, s{sT2}, 13
        v_lshl_add_u32 v8, v0, 7, s{sT0}
        v_min_u32 v8, LF_codeend-{label}-4, v8
        global_load_dword v{gT+1}, v8, s[4:5]
        LG_nocw:
        """)
    a.c("phase-a units of tile ti: n = 2 ti + e, unit = n + 5 (n >= 5) + 5 (n >= 10)")
    a(f"""
    s_lshl_b32 s{sU0}, s{sTI}, 1
    s_cmp_ge_u32 s{sTI}, 5
    s_cselect_b32 s{sT0}, 10, 5
    s_cmp_ge_u32 s{sTI}, 3
    s_cselect_b32 s{sT0}, s{sT0}, 0
    s_add_u32 s{sU0}, s{sU0}, s{sT0}
    s_cmp_eq_u32 s{sTI}, 2
    s_cselect_b32 s{sT0}, 6, 1
    s_add_u32 s{sU1}, s{sU0}, s{sT0}
    s_and_b32 s{sJ}, s{sW}, 3
    s_lshr_b32 s{sRole}, s{sW}, 2
    {'' if NB else 's_cbranch_scc1 LG_start'}
    """)
    gemm_loader(a)
    a("LG_start:")
    common_setup(a)
    if CLR_AT < 0:
        clear_counters(a, "LG")
    gemm_compute(a)
    a("LG_idle:\ns_waitcnt lgkmcnt(0)\ns_barrier")
    drained(a)
    a("s_barrier")
    if PAIR_Q < 160:
        a("s_barrier")
    a("LG_done:")
    if PAIR_Q >= 160:
        a("s_barrier")
    stamp(a, 3)
    a(f"s_setprio {BLEAD_PRIO}")
    vectors_get(a)
    write_ones(a, 1)
    a(f"s_mov_b32 s{sM}, {SK}\ns_mov_b32 s{sMend}, {(1 << (SK + 5)) - 1}\ns_mov_b32 s{sRb}, {RB}\ns_mov_b32 s{sNext}, {RB}")
    attn_zero(a)
    a.c("the last wave whose stores have drained publishes the tile")
    a(f"""
    v_mov_b32 v246, {LCNT}
    v_mov_b32 v247, 1
    v_mov_b32 v20, -1
    v_mov_b32 v21, -1
    v_mov_b32 v22, -1
    v_mov_b32 v23, -1
    s_setprio 2
    s_barrier
    s_waitcnt vmcnt(0)
    s_mov_b64 exec, 1
    ds_add_rtn_u32 v249, v246, v247
    s_mov_b64 exec, -1
    s_waitcnt lgkmcnt(0)
    v_readfirstlane_b32 s{sT0}, v249
    s_cmp_eq_u32 s{sT0}, 3
    s_cbranch_scc0 LG_nopub
    s_cmp_eq_u32 s{sTI}, 7
    s_cbranch_scc1 LG_nopub
    s_call_b64 s[{sLnk}:{sLnk+1}], LG_publish
    LG_nopub:
    """)
    stamp(a, 27)
    call_dma(a, 0, 2)
    if 'markearly' in OPT:
        o_mark(a)
    a(f"s_mov_b32 s{sRp}, -1\ns_waitcnt vmcnt(0)\ns_barrier")
    poll_f1(a)
    stamp(a, 26)
    load_q(a)
    call_dma(a, 1, 0)
    call_dma(a, 0, 3)
    a("s_waitcnt vmcnt(0) lgkmcnt(0)\ns_barrier")
    call_dma(a, 1, 1)
    call_dma(a, 0, 4)
    call_dma(a, 1, 2)
    if 'markearly' not in OPT:
        o_mark(a)
    if 'blow' in OPT:
        a("s_setprio 1")
    scale_q(a, 63)
    stamp(a, 5)
    a("s_branch LA_start")
    a("LA_lead:")
    a("s_setprio 3")
    def small_writes():
        a(f"s_cmp_lt_u32 s{sJ}, 2\ns_cbranch_scc0 LA_sw1")
        vectors_put(a)
        a(f"s_branch LA_sw2\nLA_sw1:\nv_mov_b32 v{vP+2}, {LCNT}\ns_mov_b64 exec, 0xff\nds_write_b32 v{vP+2}, v{vP+1}")
        write_ones(a, 0)
        a("LA_sw2:")
    poll_counter(a, vP + 3, f"s{sL+7}", f"s{sExp}", 7, small_writes)
    stamp(a, 1)
    a(f"""
    buffer_load_dwordx4 {vr(Qm[0],4)}, v{vL16}, {WSR()}, s8 offen sc1
    buffer_load_dwordx4 {vr(Qm[1],4)}, v{vL16}, {WSR()}, s9 offen sc1
    buffer_load_dwordx2 {vr(Qe,2)}, v{vE16}, {WSR()}, s10 offen sc1
    """)
    for blk in range(2):
        for p in range(5):
            a(f"buffer_load_dwordx4 v{vD+p}, {WSR()}, s{11 + blk} offen sc1 lds")
            a("s_add_u32 m0, m0, 1024")
            a("s_nop 0" if p < 4 else "s_cmp_eq_u32 s14, 1")
        a(f"s_cbranch_scc1 LA_ld{blk}\nbuffer_load_dwordx4 v{vD+5}, {WSR()}, s{11 + blk} offen sc1 lds\nLA_ld{blk}:")
        if blk == 0:
            a(f"s_add_u32 m0, s13, {RA + 2 * BLK}\ns_nop 0")
    scale_q(a, 10)
    a("s_waitcnt vmcnt(5) lgkmcnt(0)\ns_barrier\ns_setprio 1")
    stamp(a, 3)
    attention(a)
    a(f"s_cmp_eq_u32 s{sRole}, 0\ns_cbranch_scc1 LP_a\ns_barrier")
    stamp(a, 6)
    a(f"s_branch {'LF_end' if 'astamp' in OPT else 'LP_end'}\nLP_a:")
    a.c("role-A waves: first half of K while role B finishes, second half once it is published")
    a(f"""
    s_and_b32 s{sT4}, s{sHead}, 3
    s_lshl_b32 s{sT1}, s{sBr}, 2
    s_add_u32 s{sT4}, s{sT4}, s{sT1}
    s_lshl_b32 s{sT4}, s{sT4}, 7
    s_add_u32 s{sT4}, s{sT4}, {WS_C4}
    """)
    G = lambda i: LDS_BYTES - (11 - i) * 10240
    Lo = lambda i: RB + i * 10240
    assert SK == 3 and G(0) >= RB + 2 * BLK and G(3) >= RB + RING and Lo(3) <= RB + BLK + CH
    call = lambda l: a(f"s_call_b64 s[{sLnk}:{sLnk+1}], {l}")

    def tail_setup():
        for r in range(32, 40, 2):
            a(f"v_pk_mov_b32 {vr(pACC + r, 2)}, 0, 0")
        for r in range(32, 40, 2):
            a(f"v_pk_mov_b32 {vr(pACL + r, 2)}, 0, 0")
        for A in (pACC, pACL):
            a(f"v_mfma_f32_32x32x4_2b_bf16 {vr(A,32)}, {vr(pACC + 32, 2)}, {vr(pACC + 32, 2)}, 0")
        o_addr(a)
        out_addr(a)
        warm(a, "HT", [("LP_w0", "LP_end"), ("LP_order", "LP_ldhi"), ("LP_mid", "LR_step")])
        a("s_waitcnt vmcnt(0)")
        count_in(a, sOc, vP, vP + 1)
        stamp(a, 6)
        a(f"v_readfirstlane_b32 s{sT0}, v{vPS}\ns_cmp_ge_u32 s{sT0}, 16\ns_cbranch_scc1 LP_wo")
    poll_counter(a, vP + 4, f"s{sT4}", 16, 1, tail_setup)
    a("LP_wo:")
    a("s_setprio 0")
    stamp(a, 20)
    a("s_barrier")
    stamp(a, 21)
    call_dma(a, 1, 7)
    wo_dma(a, 0, 3, G(3))
    peek(a, 1)
    wo_dma(a, 3, 6, G(6))
    a(f"s_waitcnt vmcnt(0)\nv_readfirstlane_b32 s{sT0}, v{vPS+2}\ns_cmp_ge_u32 s{sT0}, 16\ns_cbranch_scc1 LP_seen")
    poll_counter(a, vP + 4, f"s{sFc}", 16, 1)
    a("LP_seen:")
    call("LP_ldhi")
    call("LP_ldlo")
    a(f"s_add_u32 s{sFo}, s{sFo}, 20480\ns_add_u32 s{sFc}, s{sFc}, 128")
    stamp(a, 25)
    a("s_barrier")
    stamp(a, 5)
    mm = lambda l: a(f"s_call_b64 s[{sLnkM}:{sLnkM+1}], {l}")
    set_tab(a, [G(3), G(4), G(5), G(6), G(7), G(8), G(9), G(10), G(0), G(1)])
    mm("LP_pro")
    a("s_waitcnt vmcnt(0)")
    wo_dma(a, 6, 8, G(9))
    wo_dma(a, 8, 11, G(0))
    a("s_cmp_eq_u32 0, 1")
    mm("LP_hi")
    a(f"""
    s_and_b32 s{sT0}, s{sHead}, 3
    s_lshl_b32 s{sT1}, s{sBr}, 2
    s_add_u32 s{sT0}, s{sT0}, s{sT1}
    s_mul_i32 s{sT0}, s{sT0}, {WO_SLAB}
    s_add_u32 s{sT0}, s{sT0}, {WS_WO + 10240 * 11}
    s_waitcnt vmcnt(0) lgkmcnt(0)
    """)
    assert Lo(0) + 32768 <= RB + BLK + CH
    stamp(a, 26)
    a("s_barrier")
    stamp(a, 28)
    a(f"s_setprio {WOVEN_PRIO}\ns_cmp_eq_u32 0, 0")
    mm("LP_lo")
    stamp(a, 10)
    a("LP_w0:\ns_waitcnt vmcnt(4)")
    ready_mask(a)
    a("s_cbranch_scc0 LP_n1")
    call("LP_order")
    a(f"s_waitcnt vmcnt(5)\ns_barrier\ns_branch LP_n2\nLP_n1:\ns_waitcnt vmcnt(0)\ns_barrier\ns_mov_b32 s{sSpin}, {SPIN}\nLP_any:")
    peek(a, 3)
    a("s_waitcnt vmcnt(0)")
    ready_mask(a)
    a(f"s_cbranch_scc1 LP_got\ns_sleep {SLEEP}\ns_sub_u32 s{sSpin}, s{sSpin}, 1\ns_cbranch_scc0 LP_any\nLP_got:")
    call("LP_order")
    a("LP_n2:")
    stamp(a, 30)
    T = [G(2), G(3), G(4), G(5), G(6), G(7), G(8), Lo(0), Lo(1), Lo(2)]
    a(f"s_cmp_eq_u32 s{sPh}, 3\ns_cbranch_scc0 LP_n3")
    call("LP_ldlo")
    a(f"LP_n3:\ns_cmp_eq_u32 s{sDone}, 1")
    for r, x, y in zip(TAB, T, T[5:] + T[:5]):
        a(f"s_mov_b32 s{r}, {x}\ns_cmov_b32 s{r}, {y}")
    mm("LP_pro")
    a.c("each group keeps its own accumulators, so the result does not depend on the order of arrival")
    a("s_cbranch_scc0 LP_n4")
    for r in range(40):
        a(f"v_swap_b32 v{pACC + r}, v{pACL + r}")
    a("LP_n4:")
    a(f"s_waitcnt vmcnt(5)\ns_cmp_eq_u32 s{sPh}, 3\ns_cbranch_scc1 LP_n5\ns_waitcnt vmcnt(0)")
    peek(a, 3)
    a("LP_n5:")
    o_checked(a, "LP_ldhi", 0, False)
    stamp(a, 11)
    a(f"s_cmp_lg_u32 s{sPh}, 3")
    mm("LP_hi")
    stamp(a, 12)
    a(f"s_cmp_eq_u32 s{sPh}, 3\ns_cbranch_scc1 LP_n6")
    poll_counter(a, vP + 5, f"s{sFc}", 8, 3)
    call("LP_ldlo")
    a("LP_n6:")
    o_checked(a, "LP_ldlo", 5, True)
    stamp(a, 2)
    if common.STAMP and 'cyc' not in OPT: a(f"s_mov_b32 s{STAMP_S+17}, s{sSpin}")
    a("s_cmp_eq_u32 0, 1")
    mm("LP_lo")
    stamp(a, 16)
    out_store(a)
    a("LP_end:")
    if common.STAMP:
        a("s_waitcnt vmcnt(0)")
        stamp(a, 7)
        stamp_flush(a, 4)
    a("LF_end:\ns_endpgm")
    dma_sub(a)
    refill(a)
    publish_sub(a)
    order_sub(a)
    o_load_sub(a, "LP_ldhi", 0)
    o_load_sub(a, "LP_ldlo", 5)
    oproj_subs(a, G(3), Lo(0))
    repack_steps(a)
    slow_path(a)
    a("LF_codeend:")


HOP = 112
CHAINS = []


def warm(a, name, ranges, rule=None):
    if 'nohop' in OPT or name.rstrip("0123456789qv") in OPT:
        return
    CHAINS.append((name, ranges, rule))
    a(f"s_mov_b64 exec, 0\ns_branch {name}_0\n{name}_ret:\ns_mov_b64 exec, -1")


def isize(l):
    import re
    t = l.strip()
    if not t or t[0] in ";." or t.endswith(":"):
        return 0
    op = t.split()[0]
    if op.startswith(("v_mfma", "v_smfmac", "ds_", "buffer_", "global_", "v_pk_", "v_cvt_pk", "v_max3", "v_lshl_add", "v_add3", "v_mad", "v_fma", "s_load", "s_mem")):
        return 8
    nums = re.findall(r"[ ,](0x[0-9a-f]+|\d+)(?=,|$)", t)
    big = any(int(x, 0) > 64 for x in nums) and not op.startswith(("s_nop", "s_sleep", "s_setprio"))
    return 8 if big else 4


def add_hops(lines):
    for name, ranges, rule in CHAINS:
        k = 0
        for first, last in ranges:
            i = lines.index(first + ":") + 1
            acc = HOP
            while lines[i] != last + ":":
                if acc >= HOP and (rule is None or rule(lines[i - 1], lines[i])):
                    lines[i:i] = [f"{name}_{k}:", f"    s_cbranch_execz {name}_{k + 1}"]
                    k += 1
                    i += 2
                    acc = 4
                acc += isize(lines[i])
                i += 1
        j = lines.index(f"    s_cbranch_execz {name}_{k}")
        lines[j] = f"    s_cbranch_execz {name}_ret"


def unpack_pk(text):
    import re
    out = []
    for l in text.split("\n"):
        m = re.match(r"\s*v_pk_(add|mul)_f32 v\[(\d+):\d+\], v\[(\d+):\d+\], ([vs])\[(\d+):\d+\](.*)", l)
        z = re.match(r"\s*v_pk_mov_b32 v\[(\d+):\d+\], 0, 0", l)
        if m:
            op, d, x, k, y, mod = m.group(1), int(m.group(2)), int(m.group(3)), m.group(4), int(m.group(5)), m.group(6)
            for i in range(2):
                out.append(f"    v_{op}_f32 v{d+i}, {k}{y + (0 if 'op_sel_hi' in mod else i)}, v{x+i}")
        elif z:
            out += [f"    v_mov_b32 v{int(z.group(1)) + i}, 0" for i in range(2)]
        else:
            out.append(l)
    return "\n".join(out)


def build():
    a = Asm()
    label = NAME + "_kernel"
    a('.amdgcn_target "amdgcn-amd-amdhsa--gfx950"\n.text')
    CHAINS.clear()
    gen(a, label)
    add_hops(a.l)
    return (HEADER + f"; @launch grid=(256,1,1) block=(512,1,1) lds={LDS_BYTES}\n" + (unpack_pk(a.text()) if 'nopk' in OPT else a.text())
            + '.section .rodata,"a"\n.p2align 6\n' + kernel_desc(label, NVGPR, NVGPR, 100))


if __name__ == "__main__":
    import sys
    for x in sys.argv[2:]:
        if '=' in x:
            k, v = x.split('='); globals()[k] = int(v)
        else:
            OPT.add(x)
    if 'dbgstamp' in OPT:
        common.STAMP = True
    out = sys.argv[1] if len(sys.argv) > 1 else f"cdna_kernels/{NAME}.s"
    open(out, "w").write(build())
```

```python
from common import Asm, vr, sr, f32bits, kernel_head, kernel_desc, QSCALE, S, D, HEADER, NAME
import common

OPT = set()
SK = 3

TILE = 40960
IMG = 64 * TILE
WS_WO = 8 * IMG
WO_SLAB = 204800
WO_HALF = WO_SLAB // 2
WS_C1 = WS_WO + 8 * WO_SLAB
WS_C3 = WS_C1 + 256 * 128
WS_C4 = WS_C3 + 192 * 128
WS_END = WS_C1 + 512 * 128
WS_STAMP = WS_END + 65536

LDS_BYTES = 163840
GSL = 16384
CH = 11264
BLK = 2 * CH
RING = 3 * BLK
ONES = [90112, 0]
RB = 5120
RA = LDS_BYTES - RING
RPK = RB + RING
XFER = 81920
LCNT = 95232

sX, sWt, sWS, sOut, sDbg = 8, 12, 16, 20, 24
sPtr = 28
sW, sJ, sRole = 40, 41, 42
sHead, sQB, sTI, sTB = 43, 44, 45, 46
sT0, sT1, sT2, sT3, sT4 = 47, 48, 49, 50, 51
sIt, sSlot, sKB, sInc = 52, 53, 54, 55
sXo, sWo = 56, 57
sNext, sRb, sRe, sRem = 52, 53, 54, 55
sM, sMend = 56, 57
sOm, sExt = 58, 59
sSpin = 60
sBr = 61
sU0, sU1, sImg, sPh = 96, 97, 98, 99
sExp = 3
sDone = 36
sOb = 37
sOc = 97
sFo, sFc = 38, 39
sRp = 96
sE = 56
sLnk = 62
STAMP_S = 64

RP_AT = 3
TLB_AT = 2
BLEAD_PRIO = 0
LOFF = -1
SPIN = 1 << 15
SLEEP = 2


NST = 32


def stamp(a, i):
    if common.STAMP and not ('cyc' in OPT and 8 <= i <= 19):
        a(f"s_memrealtime s[4:5]\ns_waitcnt lgkmcnt(0)\ns_mov_b32 s{STAMP_S+i}, s4")


def stamp_cyc(a, i):
    if common.STAMP:
        a(f"s_memtime s[4:5]\ns_waitcnt lgkmcnt(0)\ns_mov_b32 s{STAMP_S+i}, s4")


def stamp_idx(a, base, sreg):
    if common.STAMP and 'cyc' in OPT:
        a(f"s_memtime s[4:5]\ns_mov_b32 m0, s{sreg}\ns_waitcnt lgkmcnt(0)\ns_movreld_b32 s{STAMP_S+base}, s4")


def stamp_flush(a, vt):
    if not common.STAMP:
        return
    a(f"""
    s_mov_b64 exec, 1
    s_lshl_b32 s{sT0}, s2, 3
    s_add_u32 s{sT0}, s{sT0}, s{sW}
    s_lshl_b32 s{sT0}, s{sT0}, 7
    s_add_u32 s{sT0}, s{sT0}, {WS_STAMP}
    v_mov_b32 v{vt+2}, 0
    """)
    for i in range(NST):
        a(f"v_mov_b32 v{vt}, s{STAMP_S+i}")
        a(f"buffer_store_dword v{vt}, v{vt+2}, s[{sWS}:{sWS+3}], s{sT0} offen offset:{4*i}")
    if 'dbgstamp' in OPT:
        a(f"s_cmp_eq_u32 s2, 100\ns_cbranch_scc0 LF_nodbg\ns_cmp_eq_u32 s{sJ}, 0\ns_cbranch_scc0 LF_nodbg\ns_lshl_b32 s{sT0}, s{sRole}, 5")
        for i in range(8):
            a(f"s_sub_u32 s{sT1}, s{STAMP_S+i}, s{STAMP_S}")
            a(f"v_mov_b32 v{vt}, s{sT1}")
            a(f"buffer_store_dword v{vt}, v{vt+2}, s[{sDbg}:{sDbg+3}], s{sT0} offen offset:{4*i}")
        a("LF_nodbg:")


def WSR():
    return f"s[{sWS}:{sWS+3}]"


_lbl = [0]


def poll(a, loads, expect, vtmp):
    _lbl[0] += 1
    L = f"LF_poll{_lbl[0]}"
    a(f"s_mov_b32 s{sSpin}, {SPIN}\n{L}:")
    for i, (vo, srd, so) in enumerate(loads):
        a(f"buffer_load_dword v{vtmp+i}, v{vo}, {srd}, {so} offen sc1")
    a("s_waitcnt vmcnt(0)")
    for i in range(1, len(loads)):
        a(f"v_min_u32 v{vtmp}, v{vtmp}, v{vtmp+i}")
    a(f"""
    v_cmp_gt_u32 vcc, {expect}, v{vtmp}
    s_cbranch_vccz {L}_ok
    s_sleep {SLEEP}
    s_sub_u32 s{sSpin}, s{sSpin}, 1
    s_cbranch_scc0 {L}
    {L}_ok:
    """)


def poll_counter(a, vo, so, expect, mask, meanwhile=None):
    _lbl[0] += 1
    L = f"LF_pc{_lbl[0]}"
    rd = (f"v_mov_b32 v{vPS}, 0\nbuffer_atomic_add v{vPS}, v{vo}, {WSR()}, {so} offen sc0 sc1" if 'ldpoll' not in OPT else
          f"buffer_load_dword v{vPS}, v{vo}, {WSR()}, {so} offen sc1")
    a(f"s_mov_b32 s{sSpin}, {SPIN}\ns_mov_b64 exec, {mask}")
    if meanwhile:
        a(f"{rd}\ns_mov_b64 exec, -1")
        meanwhile()
        a(f"s_mov_b64 exec, {mask}\ns_branch {L}_w")
    a(f"""
    {L}:
    {rd}
    {L}_w:
    s_waitcnt vmcnt(0)
    v_cmp_gt_u32 vcc, {expect}, v{vPS}
    s_cbranch_vccz {L}_ok
    s_sleep {SLEEP}
    s_sub_u32 s{sSpin}, s{sSpin}, 1
    s_cbranch_scc0 {L}
    {L}_ok:
    s_mov_b64 exec, -1
    """)


def count_in(a, soff, vz, vd):
    a(f"""
    v_mov_b32 v{vz}, 0
    v_mov_b32 v{vd}, 1
    s_mov_b64 exec, 1
    buffer_atomic_add v{vd}, v{vz}, {WSR()}, s{soff} offen sc1
    s_mov_b64 exec, -1
    """)


gXF = 0
gWF = 160
gWA = [184, 185, 186, 187]
gXA = 188
gT = 189
gACC = 192


PUB_BAR = 12
LAST_BAR = 16
PAIR_Q = 155
HIGH_Q = 144
CLR_AT = 0
CNT_AT = 3
NFIRST = 5
MAXISS = 3
FAST_BAR = 7
PF_BAR = 3
ROT = 4


def stage_barriers():
    return list(range(0, 12)) + [LAST_BAR]


def gemm_schedule():
    items = [x for n in range(10) for x in (("X", n), ("W", n))] + [("W", n) for n in range(10, 20)]
    rel = lambda it: it[1] + (1 if it[0] == "X" else 2)
    free = list(range(10))
    slot, when, freed = {}, {}, set()
    k = 0
    for bar in range(-1, 12):
        for it in items:
            if it in slot and it not in freed and rel(it) <= bar:
                free.append(slot[it])
                freed.add(it)
        n = 0
        while k < len(items) and free and n < (NFIRST if bar == -1 else 10 if bar == 11 else MAXISS if bar >= FAST_BAR else 2) and bar != 10:
            slot[items[k]] = free.pop(0)
            when[items[k]] = bar
            k += 1
            n += 1
    assert k == len(items) and when[("W", LAST_BAR - 1)] <= 9 and when[("W", 17)] == 11
    assert max(rel(it) for it in items[:-3] if slot[it] == slot[("W", 17)]) <= 10
    order = [slot[("W", n)] for n in (15, 16, 17, 18, 19, 13, 14, 10, 11, 12)]
    assert sorted(order) == list(range(10)), order
    slot = {it: order.index(v) for it, v in slot.items()}
    return items, slot, when


LCNT0 = 2 * GSL


def lane_id(a, v):
    a(f"v_mbcnt_lo_u32_b32 v{v}, -1, 0\nv_mbcnt_hi_u32_b32 v{v}, -1, v{v}")


def drained(a):
    a(f"s_waitcnt vmcnt(0)\ns_mov_b64 exec, 1\nds_add_u32 v{gT+1}, v{gT+1} offset:{LCNT0 - 4}\ns_mov_b64 exec, -1\ns_mov_b32 s{sDone}, 1")


def clear_counters(a, L):
    a.c("wave 4 clears counter lines id and id + 256")
    a(f"""
    s_cmp_eq_u32 s{sJ}, 0
    s_cbranch_scc0 {L}_cleared
    s_lshl_b32 s{sT0}, s2, 7
    s_add_u32 s{sT0}, s{sT0}, {WS_C1}
    v_mbcnt_lo_u32_b32 v{gT+1}, -1, 0
    v_lshlrev_b32 v{gT+1}, 15, v{gT+1}
    v_mov_b32 v{gT+2}, 0
    s_mov_b64 exec, 3
    buffer_store_dword v{gT+2}, v{gT+1}, {WSR()}, s{sT0} offen sc1
    s_mov_b64 exec, -1
    {L}_cleared:
    """)


def gemm_body(a, vtype):
    L = "LG_v" if vtype else "LG_q"
    items, slot, when = gemm_schedule()
    tmp = gT + 2

    def kc(f):
        return ((f & 1, (f >> 1) & 7) if f >= 144 else ((f >> 3) & 1, f & 7))

    def rd(f, u):
        ks, c = kc(f)
        return f"ds_read_b64_tr_b16 {vr(gWF + 4 * (f % 6) + 2 * u, 2)}, v{tmp if c & 1 else gWA[c >> 1]} offset:{ks * 8192 + u * 1024}"

    def xor(f):
        ks, c = kc(f)
        return [f"v_xor_b32 v{tmp}, 32, v{gWA[c >> 1]}"] if c & 1 and not (f >= 144 and ks) else []

    def acc(c, t):
        return gACC + 8 * c + 4 * t if vtype else gACC + 16 * (c >> 1) + 8 * t + 4 * (c & 1)

    def mfma(f, t):
        ks, c = kc(f)
        x, w, d = vr(gXF + 16 * (f >> 4) + 8 * ks + 4 * t, 4), vr(gWF + 4 * (f % 6), 4), vr(acc(c, t), 4)
        A, B = (x, w) if vtype else (w, x)
        return f"v_mfma_f32_16x16x32_bf16 {d}, {A}, {B}, {'0' if f < 8 else d}"

    def xreads(n, between=""):
        d = gXF + 16 * n
        a(f"v_xor_b32 v{d + 8}, 64, v{gXA}")
        a(between)
        for ks, t in ((0, 0), (0, 1), (1, 1), (1, 0)):
            flip = ks ^ (t if vtype else 0)
            a(f"ds_read_b128 {vr(d + 8 * ks + 4 * t, 4)}, v{d + 8 if flip else gXA} offset:{t * (1024 if vtype else 2048)}")

    def first_reads():
        for f in range(6):
            for x in xor(f) + [rd(f, 1)] + ([rd(f, 0)] if f < 5 else []):
                a(x)

    def pack(C):
        A = gACC + 16 * C
        for j in range(8):
            a(f"v_cvt_pk_bf16_f32 v{gACC + 8*C + j}, v{A+2*j}, v{A+2*j+1}")
        if not vtype:
            for t in range(2):
                for r in range(2):
                    P = gACC + 8 * C + 4 * t + r
                    a(f"v_permlane16_swap_b32 v{P}, v{P+2}")

    def stores(C):
        for i in range(2):
            d = vr(gACC + 8*C + 4*i, 4)
            if vtype:
                a(f"buffer_store_dwordx4 {d}, v{gT}, {WSR()}, s{sE} offen offset:{(2 * C + i) * 256} sc1")
            else:
                a(f"buffer_store_dwordx4 {d}, v{gT}, {WSR()}, s{sE + (C >> 1)} offen offset:{(C & 1) * 2048 + i * 256} sc1")

    a("s_barrier")
    a(f"s_mov_b32 s{sDone}, 1")
    stamp(a, 1)
    xreads(0)
    first_reads()
    a(f"{L}_body:\ns_waitcnt lgkmcnt(9)")
    for f in range(160):
        n, r16 = f >> 4, f & 15
        if f + 6 < 160:
            for x in xor(f + 6):
                a(x)
        adds = {4: 0, 6: 1, 8: 2, 10: 3} if n < 9 else {7: 0, 9: 1, 10: 2, 11: 3}
        if r16 in adds:
            a(f"v_add_u32 v{gWA[adds[r16]]}, s{sInc}, v{gWA[adds[r16]]}")
        a(mfma(f, 0))
        hook = PUB_BAR <= n + 12 <= LAST_BAR
        if hook and r16 == 12:
            a.c("phase b: report once that this wave's stores have drained")
            a(f"s_getreg_b32 s{sT0}, hwreg(HW_REG_IB_STS, 0, 4)" if n + 12 < LAST_BAR else f"s_mov_b32 s{sT0}, 0")
        if hook and r16 == 13:
            a(f"s_or_b32 s{sT0}, s{sT0}, s{sDone}")
        if hook and r16 == 14:
            a(f"s_cbranch_scc0 {L}_da{n}\n{L}_db{n}:")
        if r16 == 0:
            a(f"s_cmp_eq_u32 s{sPh}, 1")
        if r16 == 1:
            a(f"s_mov_b32 s{sInc}, {((slot[('W', n + 1)] - slot[('W', n)]) * GSL) & 0xffffffff}")
        if r16 == 2 and n < 9:
            a(f"s_cmov_b32 s{sInc}, {((slot[('W', n + 11)] - slot[('W', n + 10)]) * GSL) & 0xffffffff}")
        if f == HIGH_Q:
            a("s_setprio 2")
        if f + 5 < 160:
            a(rd(f + 5, 0))
        a(mfma(f, 1))
        if f < 159:
            a(f"s_waitcnt lgkmcnt({2 * max(0, min(f + 5, 159) - (f + 1))})")
        if r16 == 10:
            if n + 11 in stage_barriers():
                a("s_barrier")
            a(f"s_cbranch_scc0 {L}_xa{n}\n{L}_xb{n}:")
        if f + 6 < 160:
            a(rd(f + 6, 1))
        if f == PAIR_Q:
            a(f"s_cbranch_scc0 {L}_np\ns_barrier\n{L}_np:")
        if f in (149, 153, 157):
            if f == 157:
                a("s_nop 1")
            pack((f - 149) // 4)
        if f in (150, 154, 158):
            stores((f - 150) // 4)
    a(f"s_cbranch_scc1 {L}_nopre")
    first_reads()
    a(f"{L}_nopre:\ns_nop 6")
    pack(3)
    stores(3)
    a(f"s_cbranch_scc1 LG_done")
    stamp(a, 2)
    next_units(a)
    step = 6 * 1024 if vtype else 5 * 4096
    a(f"s_add_u32 s{sE}, s{sE}, {step}\ns_add_u32 s{sE+1}, s{sE+1}, {step}\ns_mov_b32 s{sDone}, 0")
    if vtype:
        a(f"s_cmp_eq_u32 s{sTI}, 7\ns_cbranch_scc1 LG_idle")
    a(f"s_branch {L}_body")
    for n in range(10):
        a(f"{L}_xa{n}:")
        if n == CLR_AT:
            clear_counters(a, L)
        if n == CNT_AT:
            a.c("this workgroup has cleared its share of the counters: count it in")
            a(f"""
            s_waitcnt vmcnt(0)
            s_cmp_eq_u32 s{sW}, 4
            s_cbranch_scc0 {L}_nocount
            s_and_b32 s{sT0}, s2, 31
            s_lshl_b32 s{sT0}, s{sT0}, 2
            s_add_u32 s{sT0}, s{sT0}, 128
            v_mov_b32 v{gT+1}, 0
            v_mov_b32 v{gT+2}, 1
            s_mov_b64 exec, 1
            buffer_atomic_add v{gT+2}, v{gT+1}, s[{sDbg}:{sDbg+3}], s{sT0} offen sc1
            s_mov_b64 exec, -1
            {L}_nocount:
            v_mov_b32 v{gT+1}, 4
            """)
        if n + 1 < 10:
            dx = (slot[("X", n + 1)] - slot[("X", n)]) * GSL
            a(f"v_add_u32 v{gXA}, {dx & 0xffffffff}, v{gXA}")
            xreads(n + 1, "" if n + 11 in stage_barriers() else "s_barrier")
        else:
            a("s_barrier")
        a(f"s_branch {L}_xb{n}")
    for n in range(PUB_BAR - 12, LAST_BAR - 11):
        a(f"{L}_da{n}:")
        drained(a)
        a(f"s_branch {L}_db{n}")


def next_units(a):
    a(f"""
    s_mov_b32 s{sPh}, 1
    s_cmp_ge_u32 s{sTI}, 5
    s_cselect_b32 s{sT0}, 6, 5
    s_add_u32 s{sU0}, s{sU0}, s{sT0}
    s_add_u32 s{sU1}, s{sU1}, s{sT0}
    """)


def publish_sub(a):
    t = 240
    a(f"""
    LG_publish:
    v_cmp_lt_u32 vcc, 31, v0
    v_mov_b32 v{t+3}, s{sU0}
    v_mov_b32 v{t+4}, s{sU1}
    v_cndmask_b32 v{t+3}, v{t+3}, v{t+4}, vcc
    v_mul_u32_u24 v{t+4}, 205, v{t+3}
    v_lshrrev_b32 v{t+4}, 11, v{t+4}
    v_mul_u32_u24 v{t+5}, 10, v{t+4}
    v_sub_u32 v{t+3}, v{t+3}, v{t+5}
    v_lshlrev_b32 v{t+3}, 3, v{t+3}
    v_and_b32 v{t+5}, 31, v0
    v_lshl_add_u32 v{t+4}, v{t+5}, 2, v{t+4}
    v_lshlrev_b32 v{t+4}, 7, v{t+4}
    v_mul_u32_u24 v{t+5}, 5, v{t+5}
    v_lshrrev_b32 v{t+5}, 1, v{t+5}
    v_add_u32 v{t+5}, 2, v{t+5}
    v_sub_u32 v{t+5}, v{t+5}, v{t+3}
    v_cmp_gt_u32 vcc, 10, v{t+5}
    v_mov_b32 v{t+1}, 1
    s_lshl_b32 s{sT1}, s{sBr}, 14
    s_add_u32 s{sT1}, s{sT1}, {WS_C1}
    s_mov_b64 exec, vcc
    buffer_atomic_add v{t+1}, v{t+4}, {WSR()}, s{sT1} offen sc1
    s_mov_b64 exec, -1
    s_setpc_b64 s[{sLnk}:{sLnk+1}]
    """)


def gemm_compute(a):
    items, slot, when = gemm_schedule()
    i, g, t0, t1 = 8, 9, 10, 11
    a(f"""
    v_and_b32 v{i}, 15, v0
    v_lshrrev_b32 v{g}, 4, v0
    v_lshrrev_b32 v{t0}, 2, v0
    v_and_b32 v{t0}, 3, v{t0}
    v_lshl_add_u32 v{t1}, v{g}, 3, v{t0}
    v_lshlrev_b32 v{t1}, 8, v{t1}
    v_lshl_add_u32 v{t1}, v{t0}, 6, v{t1}
    v_and_b32 v{t0}, 16, v0
    v_lshl_add_u32 v{t1}, v{t0}, 1, v{t1}
    v_and_b32 v{t0}, 3, v0
    v_lshl_add_u32 v{t1}, v{t0}, 3, v{t1}
    v_add_u32 v{gWA[0]}, {slot[("W", 0)] * GSL}, v{t1}
    v_xor_b32 v{gWA[1]}, 64, v{gWA[0]}
    v_xor_b32 v{gWA[2]}, 128, v{gWA[0]}
    v_xor_b32 v{gWA[3]}, 192, v{gWA[0]}
    s_lshl_b32 s{sT1}, s{sJ}, 12
    s_add_u32 s{sT1}, s{sT1}, {slot[("X", 0)] * GSL}
    s_lshl_b32 s{sT0}, s{sTB}, 2
    s_add_u32 s{sT0}, s{sT0}, s{sJ}
    s_mul_i32 s{sT0}, s{sT0}, {TILE}
    s_add_u32 s{sT0}, s{sT0}, s{sImg}
    s_cmp_ge_u32 s{sTI}, 5
    s_cbranch_scc1 LG_vtype
    v_lshrrev_b32 v{t0}, 1, v{i}
    v_xor_b32 v{t0}, v{t0}, v{g}
    v_lshlrev_b32 v{t0}, 4, v{t0}
    v_lshl_add_u32 v{t0}, v{i}, 7, v{t0}
    v_add_u32 v{gXA}, s{sT1}, v{t0}
    v_and_b32 v{t0}, 1, v{g}
    v_lshlrev_b32 v{t0}, 10, v{t0}
    v_lshrrev_b32 v{t1}, 1, v{g}
    v_lshl_add_u32 v{t0}, v{t1}, 9, v{t0}
    v_lshl_add_u32 v{gT}, v{i}, 4, v{t0}
    s_lshl_b32 s{sE}, s{sU0}, 12
    s_lshl_b32 s{sE+1}, s{sU1}, 12
    s_cmp_ge_u32 s{sU0}, 10
    s_cselect_b32 s{sT3}, {IMG - 40960}, 0
    s_add_u32 s{sE}, s{sE}, s{sT3}
    s_cmp_ge_u32 s{sU1}, 10
    s_cselect_b32 s{sT3}, {IMG - 40960}, 0
    s_add_u32 s{sE+1}, s{sE+1}, s{sT3}
    s_add_u32 s{sE}, s{sE}, s{sT0}
    s_add_u32 s{sE+1}, s{sE+1}, s{sT0}
    """)
    gemm_body(a, False)
    a.c("V tiles: MFMA row i of token tile t is token 16 (i >> 3) + 8 t + (i & 7)")
    a(f"""
    LG_vtype:
    v_and_b32 v{t1}, 7, v{i}
    v_lshrrev_b32 v{t0}, 1, v{t1}
    v_xor_b32 v{t0}, v{t0}, v{g}
    v_lshlrev_b32 v{t0}, 4, v{t0}
    v_lshl_add_u32 v{t0}, v{t1}, 7, v{t0}
    v_and_b32 v{t1}, 8, v{i}
    v_lshl_add_u32 v{t0}, v{t1}, 8, v{t0}
    v_add_u32 v{gXA}, s{sT1}, v{t0}
    v_mul_u32_u24 v{t0}, 10240, v{g}
    v_lshl_add_u32 v{gT}, v{i}, 4, v{t0}
    s_lshl_b32 s{sE}, s{sU0}, 10
    s_add_u32 s{sE}, s{sE}, {2 * IMG - 20480}
    s_add_u32 s{sE}, s{sE}, s{sT0}
    """)
    gemm_body(a, True)


def touch_pages(a):
    a.c("every MiB that is first used later is touched once per group of workgroups, so that its translation is at hand")
    a(f"""
    s_lshr_b32 s{sT0}, s2, 3
    s_lshl_b32 s{sT0}, s{sT0}, 20
    s_cmp_eq_u32 s{sJ}, 1
    s_cbranch_scc0 LL_t1
    s_min_u32 s{sT1}, s{sT0}, {WS_END - 4}
    s_load_dword s6, s[{sWS}:{sWS+1}], s{sT1}
    LL_t1:
    s_cmp_eq_u32 s{sJ}, 2
    s_cbranch_scc0 LL_t2
    s_min_u32 s{sT1}, s{sT0}, {S * 2 * D * 2 - 4}
    s_load_dword s7, s[{sPtr+4}:{sPtr+5}], s{sT1}
    s_min_u32 s{sT1}, s{sT0}, {D * D * 2 - 4}
    s_load_dword s7, s[{sPtr+2}:{sPtr+3}], s{sT1}
    s_load_dword s6, s[{sPtr+6}:{sPtr+7}], 0
    LL_t2:
    """)


def gemm_loader(a):
    items, slot, when = gemm_schedule()
    vE, vO, vWs, vCnt, vWs2 = 230, 231, 232, 233, 235
    sKX, sKW = sKB, sSlot
    a(f"""
    v_lshrrev_b32 v5, 3, v0
    v_mul_u32_u24 v5, 1280, v5
    v_and_b32 v6, 7, v0
    v_lshrrev_b32 v7, 4, v0
    v_xor_b32 v6, v6, v7
    v_lshlrev_b32 v6, 4, v6
    v_add_u32 v{vE}, v5, v6
    v_xor_b32 v6, 64, v6
    v_add_u32 v{vO}, v5, v6
    v_add_u32 v{vO}, {8 * 1280 - 1024}, v{vO}
    v_lshrrev_b32 v5, 2, v0
    v_and_b32 v5, 3, v5
    v_xor_b32 v5, v5, v7
    v_lshrrev_b32 v6, 1, v5
    s_sub_u32 s{sT0}, s{sU1}, s{sU0}
    s_lshl_b32 s{sT0}, s{sT0}, 7
    v_mul_u32_u24 v6, s{sT0}, v6
    v_and_b32 v5, 1, v5
    v_lshl_add_u32 v5, v5, 6, v6
    v_and_b32 v6, 3, v0
    v_lshl_add_u32 v5, v6, 4, v5
    v_mul_u32_u24 v6, 3840, v7
    v_add_u32 v{vWs}, v5, v6
    v_xor_b32 v{vWs2}, 32, v{vWs}
    s_lshl_b32 s{sXo}, s{sTB}, 2
    s_add_u32 s{sXo}, s{sXo}, s{sJ}
    s_mul_i32 s{sXo}, s{sXo}, {32 * 1280}
    s_mul_i32 s{sWo}, s{sJ}, {16 * 3840}
    s_lshl_b32 s{sT0}, s{sU0}, 7
    s_add_u32 s{sWo}, s{sWo}, s{sT0}
    s_lshl_b32 s{sInc}, s{sJ}, 12
    """)
    a.c("workgroups that share a tile start at different k-blocks, so that they fill the L2 together")
    if ROT == 2:
        a(f"s_xor_b32 s{sKX}, s{sTB}, s{sTI}\ns_and_b32 s{sKX}, s{sKX}, 1\ns_mul_i32 s{sKX}, s{sKX}, 5")
    elif ROT == 3:
        a(f"""
        s_and_b32 s{sKX}, s{sTB}, 3
        s_add_u32 s{sKX}, s{sKX}, s{sTI}
        s_mul_i32 s{sT0}, s{sKX}, 43
        s_lshr_b32 s{sT0}, s{sT0}, 7
        s_mul_i32 s{sT0}, s{sT0}, 3
        s_sub_u32 s{sKX}, s{sKX}, s{sT0}
        s_mul_i32 s{sKX}, s{sKX}, 7
        s_lshr_b32 s{sKX}, s{sKX}, 1
        """)
    elif ROT == 4:
        a(f"""
        s_add_u32 s{sKX}, s{sTB}, s{sTI}
        s_and_b32 s{sKX}, s{sKX}, 3
        s_mul_i32 s{sKX}, s{sKX}, 5
        s_add_u32 s{sKX}, s{sKX}, 1
        s_lshr_b32 s{sKX}, s{sKX}, 1
        """)
    elif ROT:
        a(f"""
        s_and_b32 s{sKX}, s{sTB}, 3
        s_mul_i32 s{sKX}, s{sKX}, 5
        s_add_u32 s{sKX}, s{sKX}, 1
        s_lshr_b32 s{sKX}, s{sKX}, 1
        s_add_u32 s{sKX}, s{sKX}, s{sTI}
        s_cmp_ge_u32 s{sKX}, 10
        s_cselect_b32 s{sT0}, 10, 0
        s_sub_u32 s{sKX}, s{sKX}, s{sT0}
        """)
    else:
        a(f"s_and_b32 s{sKX}, s{sTI}, 1")
    a(f"s_mov_b32 s{sKW}, s{sKX}\ns_mov_b32 s{sIt}, 0")
    a(f"""
    s_mov_b32 s{sX+2}, {S * D * 2}
    s_mov_b32 s{sX+3}, 0x00020000
    s_mov_b32 s{sWt+2}, {D * 3 * D * 2}
    s_mov_b32 s{sWt+3}, 0x00020000
    s_waitcnt lgkmcnt(0)
    s_and_b32 s{sX+1}, s{sX+1}, 0xffff
    s_mov_b32 s{sWt}, s{sPtr}
    s_and_b32 s{sWt+1}, s{sPtr+1}, 0xffff
    """)
    if 'tlb2' in OPT:
        a.c("start the address translations of the pages of W (and the other end of X) together with the first X loads")
        a(f"""
        s_mul_i32 s{sT0}, s{sJ}, {(D * 3 * D * 2 - 4) // 3 // 4 * 4}
        s_buffer_load_dword s6, s[{sWt}:{sWt+3}], s{sT0}
        """)
    a(f"""
    s_branch LL_go
    """)
    a(f"""
    LL_X:
    s_lshl_b32 s{sT0}, s{sKX}, 7
    s_add_u32 s{sT0}, s{sT0}, s{sXo}
    s_add_u32 s{sKX}, s{sKX}, 1
    buffer_load_dwordx4 v{vE}, s[{sX}:{sX+3}], s{sT0} offen lds
    buffer_load_dwordx4 v{vO}, s[{sX}:{sX+3}], s{sT0} offen offset:1024 lds
    s_add_u32 m0, m0, 2048
    s_add_u32 s{sT0}, s{sT0}, {16 * 1280}
    buffer_load_dwordx4 v{vE}, s[{sX}:{sX+3}], s{sT0} offen lds
    buffer_load_dwordx4 v{vO}, s[{sX}:{sX+3}], s{sT0} offen offset:1024 lds
    s_cmp_eq_u32 s{sKX}, 10
    s_cselect_b32 s{sKX}, 0, s{sKX}
    s_setpc_b64 s[{sLnk}:{sLnk+1}]
    LL_Wskip:
    s_waitcnt vmcnt(0)
    s_setpc_b64 s[{sLnk}:{sLnk+1}]
    LL_W:
    s_cmp_eq_u32 s{sIt}, 1
    s_cbranch_scc1 LL_Wskip
    s_mul_i32 s{sT1}, s{sKW}, {64 * 3840}
    s_add_u32 s{sT1}, s{sT1}, s{sWo}
    s_add_u32 s{sKW}, s{sKW}, 1
    """)
    for p in range(4):
        a(f"buffer_load_dwordx4 v{vWs2 if p >= 2 else vWs}, s[{sWt}:{sWt+3}], s{sT1} offen lds")
        if p < 3:
            a(f"s_add_u32 m0, m0, 1024")
            a(f"s_add_u32 s{sT1}, s{sT1}, {4 * 3840}")
    a(f"""
    s_cmp_eq_u32 s{sKW}, 10
    s_cselect_b32 s{sKW}, 0, s{sKW}
    s_setpc_b64 s[{sLnk}:{sLnk+1}]
    """)
    a("LL_go:")
    delay(a, 2)
    stamp(a, 13)
    q = []

    def issue(it):
        if it == ("W", 10):
            a(f"s_cmp_ge_u32 s{sTI}, 5\ns_cselect_b32 s{sT0}, {6 * 128}, s{sC640}\ns_add_u32 s{sWo}, s{sWo}, s{sT0}")
            a(f"s_cmp_eq_u32 s{sTI}, 7\ns_cselect_b32 s{sIt}, 1, 0")
        a(f"s_add_u32 m0, s{sInc}, {slot[it] * GSL}\ns_call_b64 s[{sLnk}:{sLnk+1}], LL_{it[0]}")
        q.extend([it] * 4)

    def wait_for(names):
        last = max(i for i, x in enumerate(q) if x in names)
        a(f"s_waitcnt vmcnt({min(63, len(q) - 1 - last)})")

    sC640 = sT4
    first = [it for it in items if when[it] == -1]
    for i, it in enumerate(first):
        if i == TLB_AT:
            touch_pages(a)
        issue(it)
    stamp(a, 14)
    vPf = 234
    bars = stage_barriers()
    stamp(a, 15)
    for bi, bar in enumerate(bars):
        upto = bars[bi + 1] - 1 if bi + 1 < len(bars) else 19
        wait_for([("X", bar), ("W", upto)] + (["cnt"] if bar == 11 else []))
        if bar == 11:
            a.c("all counters must have been cleared before the first one is used")
            a(f"v_cmp_gt_u32 vcc, 8, v{vCnt}\ns_cbranch_vccz LL_cnt_ok")
            poll(a, [(vP + 5, f"s[{sDbg}:{sDbg+3}]", "0")], 8, vPS)
            a("LL_cnt_ok:")
        a("s_barrier")
        if bar not in (2, 3, 4, 5, 6, 7, 8, 9): stamp(a, 8 + min(bar, 15))
        if bar == 11:
            attn_scalars(a)
            attn_vectors(a)
            repack_setup(a)
            a.c("wave 0 publishes the phase-a tile once its four storing waves have reported")
            a(f"""
            v_mov_b32 v{vP+2}, {LCNT0}
            s_cmp_lg_u32 s{sJ}, 0
            s_cbranch_scc1 LL_pub
            s_mov_b32 s{sSpin}, {SPIN * 8}
            LL_try:
            ds_read_b32 v{vP}, v{vP+2}
            s_waitcnt lgkmcnt(0)
            v_readfirstlane_b32 s{sT0}, v{vP}
            s_cmp_eq_u32 s{sT0}, 16
            s_cbranch_scc1 LL_try_go
            s_sub_u32 s{sSpin}, s{sSpin}, 1
            s_cbranch_scc0 LL_try
            LL_try_go:
            s_call_b64 s[{sLnk}:{sLnk+1}], LG_publish
            """)
            stamp(a, 27)
            a("LL_pub:")
        a(f"s_mov_b32 s{sC640}, 640")
        for it in items:
            if when[it] == bar:
                issue(it)
        if bar == 11:
            lead_prepare(a)
        if bar == 10:
            a(f"v_mov_b32 v{vP}, 0\nv_mov_b32 v{vP+2}, {LCNT0}\nds_write_b32 v{vP+2}, v{vP}\ns_waitcnt lgkmcnt(0)")
        if bar + 10 == TLB_AT:
            touch_pages(a)
        if bar == PF_BAR:
            a.c("one load per 128-B line of the phase-b columns of five weight rows brings them on chip ahead of use")
            a(f"""
            s_lshr_b32 s{sT0}, s2, 3
            s_lshl_b32 s{sT0}, s{sT0}, 2
            s_and_b32 s{sT1}, s2, 3
            s_add_u32 s{sT0}, s{sT0}, s{sT1}
            s_mul_i32 s{sT0}, s{sT0}, {5 * 3840}
            s_mul_i32 s{sT1}, s{sJ}, 19
            v_add_u32 v8, s{sT1}, v0
            v_min_u32 v8, 74, v8
            v_mul_u32_u24 v9, 205, v8
            v_lshrrev_b32 v9, 10, v9
            v_mul_u32_u24 v9, 5, v9
            v_add3_u32 v9, v9, v8, 5
            v_lshlrev_b32 v{vPf}, 7, v9
            s_mov_b64 exec, 0x7ffff
            buffer_load_dword v{vPS}, v{vPf}, s[{sWt}:{sWt+3}], s{sT0} offen
            s_mov_b64 exec, -1
            """)
            q.append("pf")
        if bar == 8:
            common_setup(a)
            a(f"v_lshlrev_b32 v{vP+5}, 2, v0\nv_or_b32 v{vP+5}, 128, v{vP+5}")
            a(f"buffer_load_dword v{vCnt}, v{vP+5}, s[{sDbg}:{sDbg+3}], 0 offen sc1")
            q.append("cnt")
    a("s_branch LA_lead")


vKA, vVA, vT0, vT1 = 1, 2, 3, 14
Qm = [4, 8]
Qe = 12
vL16 = 15
Km = [16, 20]
Ke = 24
Vb = [[28, 32], [36, 40]]
vVbase, vVflag, vE16, vVG = 44, 45, 46, 47
NM = 48
SB = [80, 112]
OA = [144, 160]
vD = 176
vP = 182
vPS = 188
vVB2 = 248
vIdx, vK16 = 192, 193
NVGPR = 256


def mfma32(d, a_, b, c):
    return f"v_mfma_f32_32x32x16_bf16 {vr(d,16)}, {vr(a_,4)}, {vr(b,4)}, {c}"


def mfma2b(d, ke_tile, c):
    return (f"v_mfma_f32_32x32x4_2b_bf16 {vr(d,32)}, {vr(Ke + 2 * (ke_tile >> 1), 2)}, {vr(Qe,2)}, {c}"
            f" cbsz:1 abid:{ke_tile & 1}")


def pv(o, v, p):
    return f"v_smfmac_f32_32x32x32_bf16 {vr(o,16)}, {vr(v,4)}, {vr(p,8)}, v{vIdx}"


POS = [2, 6, 14, 18, 22, 26, 30]


def tile_iter(a, ii, half=1):
    par = ii & 1
    X, Y = SB[par], SB[par ^ 1]
    Vc, Vn = Vb[par], Vb[par ^ 1]
    Kc, Kn = Km[par ^ 1], Km[par]
    t1 = (ii + 1) % 4
    t2 = (ii + 2) % 4
    kch = CH if (half == 0) == (ii >= 2) else 0
    rv0 = f"ds_read_b128 {vr(Vn[0],4)}, v{vVA} offset:{t1 * 1280}"
    rv1 = f"ds_read_b128 {vr(Vn[1],4)}, v{vVA} offset:{t1 * 1280 + 640}"
    rk = f"ds_read_b128 {vr(Kn,4)}, v{vKA} offset:{kch + 2048 + t2 * 1024}"
    rke = f"ds_read2st64_b64 {vr(Ke,4)}, v{vKA} offset0:{kch // 512} offset1:{kch // 512 + 2}"
    g = [[pv(OA[1], Vn[1], Y + 24), rv0],
         [mfma2b(Y, t1, 0 if 'c0' in OPT else vr(NM, 32))],
         [pv(OA[0], Vc[0], X), rv1],
         [pv(OA[0], Vc[1], X + 8), rk],
         [mfma32(Y, Kc, Qm[0], vr(Y, 16))],
         [mfma32(Y + 16, Kc, Qm[1], vr(Y + 16, 16))],
         [pv(OA[1], Vc[0], X + 16), "s_waitcnt lgkmcnt(0)"]]
    late = []
    if ii == 0:
        g[4].append(f"s_add_u32 s{sNext}, s{sNext}, {CH}")
    if ii == 2:
        g[4].append(rke)
        late = [f"v_mad_u32_u24 v{vVA}, v{vVflag}, s{sNext}, v{vVbase}"]
    if half == 0:
        if ii == 1:
            g[4].append(f"s_cmp_eq_u32 s{sM}, s{sRp}")
            g[5] += ["s_cbranch_scc1 LR_step", "LA_bar:"]
        if ii == 2 and 'noprio' not in OPT:
            g[5].append("s_setprio 0")
        if ii == 3:
            g[4].append(f"s_bitcmp1_b32 s{sMend}, s{sM}")
            g[6][1] = "s_waitcnt vmcnt(0) lgkmcnt(0)"
            g[6].append("s_barrier")
            if common.STAMP and 'cyc' in OPT:
                g[6] += [f"s_memtime s[{STAMP_S+28}:{STAMP_S+29}]"]
            if 'noprio' not in OPT:
                g[6].append("s_setprio 1")
            g[6] += ["s_cbranch_scc1 LA_refill", "LA_back:"]
    else:
        if ii == 0:
            g[5].append(f"s_cmp_eq_u32 s{sNext}, s{sRe}")
            if common.STAMP and 'cyc' in OPT:
                g[6] += [f"s_mov_b32 m0, s{sM}", "s_nop 0", f"s_movreld_b32 s{STAMP_S+8}, s{STAMP_S+28}"]
        if ii == 1:
            g[4].append(f"s_cselect_b32 s{sNext}, s{sRb}, s{sNext}")
            g[5].append(f"s_add_u32 s{sM}, s{sM}, 1")
            late = [f"v_add_u32 v{vKA}, s{sNext}, v{vK16}"]
        if ii == 3:
            g[5].append(f"s_sub_u32 s{sRem}, s{sRem}, 1")
    assert POS[2] >= 10 and POS[3] >= 18 and POS[6] >= 26 and POS[0] >= 2
    assert (POS[4] - POS[1]) + 4 >= 18 and (32 - POS[4]) + 3 >= 12
    ins = dict(zip(POS, g))
    for p in range(32):
        for x in ins.get(p, []):
            a(x)
        a(f"v_exp_f32 v{X+p}, v{X+p}")
        if p == 30:
            for x in late:
                a(x)


def rowmax(a, X, out0, out1):
    for base, o in ((X, out0), (X + 16, out1)):
        a(f"v_max3_f32 v{o}, v{base}, v{base+1}, v{base+2}")
        for r in range(3, 15, 2):
            a(f"v_max3_f32 v{o}, v{o}, v{base+r}, v{base+r+1}")
        a(f"v_max_f32 v{o}, v{o}, v{base+15}")


def cross_half_max(a, r, tmp):
    a(f"v_mov_b32 v{tmp}, v{r}\ns_nop 1\nv_permlane32_swap_b32 v{tmp}, v{r}\ns_nop 1\nv_max_f32 v{r}, v{r}, v{tmp}")


def fill_nm(a, m0, m1):
    for r in range(16):
        a(f"v_sub_f32 v{NM+r}, 0, v{m0}")
    for r in range(16):
        a(f"v_sub_f32 v{NM+16+r}, 0, v{m1}")


def attn_scalars(a):
    a.c("head offsets: main octs start at (5g+1)>>1; the ext quad shares an oct with the neighbouring head;")
    a.c("arrivals expected per kind: 16 token blocks x number of 64-column units that hold the head")
    a(f"""
    s_mul_i32 s{sOm}, s{sHead}, 5
    s_add_u32 s{sOm}, s{sOm}, 1
    s_lshr_b32 s{sOm}, s{sOm}, 1
    s_lshl_b32 s{sOm}, s{sOm}, 9
    s_and_b32 s{sT0}, s{sHead}, 1
    s_mov_b32 s{sT1}, 1024
    s_cselect_b32 s{sT1}, {(-512 + 8) & 0xffffffff}, s{sT1}
    s_add_u32 s{sExt}, s{sOm}, s{sT1}
    s_min_u32 s{sT0}, s{sOm}, s{sExt}
    s_add_u32 s{sT2}, s{sOm}, 512
    s_max_u32 s{sT1}, s{sExt}, s{sT2}
    s_lshr_b32 s{sT0}, s{sT0}, 12
    s_lshr_b32 s{sT1}, s{sT1}, 12
    s_cmp_eq_u32 s{sT0}, s{sT1}
    s_cselect_b32 s{sExp}, 16, 32
    """)


def attn_vectors(a):
    a(f"""
    s_and_b32 s{sT0}, s{sHead}, 1
    v_lshlrev_b32 v{vL16}, 4, v0
    v_lshrrev_b32 v{vT0}, 5, v0
    v_mul_u32_u24 v{vT1}, {TILE}, v{vT0}
    v_and_b32 v{vP}, 31, v0
    v_lshl_add_u32 v{vE16}, v{vP}, 4, v{vT1}
    """)
    a.c("V rows: 0..15 main dims, 16..19 ext dims, 20 and 24 ones, the others zero (address past the allocation)")
    a(f"""
    s_lshl_b32 s{sT0}, s{sT0}, 2
    v_and_b32 v{vP+1}, 3, v0
    v_and_b32 v{vP+2}, 4, v0
    v_lshl_add_u32 v{vP+1}, v{vP+2}, 1, v{vP+1}
    v_and_b32 v{vP+2}, 8, v0
    v_lshrrev_b32 v{vP+2}, 1, v{vP+2}
    v_add3_u32 v{vP+1}, v{vP+1}, v{vP+2}, s{sT0}
    s_lshl_b32 s{sT0}, s{sT0}, 2
    v_subrev_u32 v{vP+2}, s{sT0}, v{vP}
    v_cmp_gt_u32 vcc, 16, v{vP}
    v_mul_u32_u24 v{vT1}, 10240, v{vT0}
    v_mul_u32_u24 v{vT0}, 320, v{vT0}
    v_cndmask_b32 v{vP+1}, v{vP+2}, v{vP+1}, vcc
    v_lshlrev_b32 v{vP+1}, 4, v{vP+1}
    v_add_u32 v{vVG}, v{vP+1}, v{vT1}
    v_add_u32 v{vVbase}, v{vP+1}, v{vT0}
    v_add_u32 v{vVbase}, 6144, v{vVbase}
    v_cmp_gt_u32 vcc, 20, v{vP}
    v_mov_b32 v{vP+1}, 0x100000
    v_mov_b32 v{vP+2}, {ONES[0]}
    v_cndmask_b32 v{vVflag}, 0, 1, vcc
    v_cndmask_b32 v{vVbase}, v{vP+1}, v{vVbase}, vcc
    v_cmp_eq_u32 vcc, 20, v{vP}
    v_cmp_eq_u32 s[{sT3}:{sT4}], 24, v{vP}
    s_or_b64 vcc, vcc, s[{sT3}:{sT4}]
    v_mov_b32 v{vP+1}, {ONES[1]}
    s_nop 0
    v_cndmask_b32 v{vVB2}, v{vVbase}, v{vP+1}, vcc
    v_cndmask_b32 v{vVbase}, v{vVbase}, v{vP+2}, vcc
    """)
    a.c("DMA source offsets: even waves load K pieces, odd waves V pieces")
    a(f"""
    s_and_b32 s{sT0}, s{sJ}, 1
    s_cbranch_scc1 LA_dv
    v_add_u32 v{vD}, s{sExt}, v{vE16}
    v_add_u32 v{vD+1}, {2 * TILE}, v{vD}
    v_add_u32 v{vD+2}, s{sOm}, v{vL16}
    v_add_u32 v{vD+3}, {TILE}, v{vD+2}
    v_add_u32 v{vD+4}, {TILE}, v{vD+3}
    v_add_u32 v{vD+5}, {TILE}, v{vD+4}
    s_branch LA_dd
    LA_dv:
    s_mul_i32 s{sT0}, s{sHead}, 320
    s_add_u32 s{sT0}, s{sT0}, {IMG}
    """)
    for p in range(5):
        a(f"""
        v_add_u32 v{vP}, {64 * p}, v0
        v_mul_u32_u24 v{vP+1}, 3277, v{vP}
        v_lshrrev_b32 v{vP+1}, 16, v{vP+1}
        v_mul_u32_u24 v{vP+2}, 20, v{vP+1}
        v_sub_u32 v{vP+2}, v{vP}, v{vP+2}
        v_mul_u32_u24 v{vP+1}, 10240, v{vP+1}
        v_lshl_add_u32 v{vP+1}, v{vP+2}, 4, v{vP+1}
        v_add_u32 v{vD+p}, s{sT0}, v{vP+1}
        """)
    a(f"""
    v_mov_b32 v{vD+5}, v{vD+4}
    LA_dd:
    v_lshlrev_b32 v{vP+3}, 7, v0
    v_mov_b32 v{vP+4}, 0
    """)


def vectors_put(a):
    a(f"""
    s_and_b32 s{sT0}, s{sJ}, 1
    s_lshl_b32 s{sT0}, s{sT0}, 12
    s_add_u32 s{sT0}, s{sT0}, {XFER}
    v_add_u32 v{vT0}, s{sT0}, v{vL16}
    v_mov_b32 v20, v{vVB2}
    v_mov_b32 v21, v{vVflag}
    v_mov_b32 v22, v{vE16}
    v_mov_b32 v23, v{vVG}
    ds_write_b128 v{vT0}, v[20:23]
    ds_write_b128 v{vT0}, {vr(vD,4)} offset:1024
    ds_write_b64 v{vT0}, {vr(vD+4,2)} offset:2048
    """)


def vectors_get(a):
    lane_id(a, 0)
    a(f"""
    s_and_b32 s{sT0}, s{sJ}, 1
    s_lshl_b32 s{sT0}, s{sT0}, 12
    s_add_u32 s{sT0}, s{sT0}, {XFER}
    v_lshlrev_b32 v{vL16}, 4, v0
    v_add_u32 v{vT0}, s{sT0}, v{vL16}
    ds_read_b128 {vr(vVbase,4)}, v{vT0}
    ds_read_b128 {vr(vD,4)}, v{vT0} offset:1024
    ds_read_b64 {vr(vD+4,2)}, v{vT0} offset:2048
    v_lshlrev_b32 v{vP+3}, 7, v0
    """)
    attn_scalars(a)
    a("s_waitcnt lgkmcnt(0)")


def dma_sub(a):
    a(f"""
    LA_dma:
    s_add_u32 s{sT2}, s{sT1}, s{sQB if 'kvrot' in OPT else sHead}
    s_and_b32 s{sT2}, s{sT2}, 7
    s_lshl_b32 s{sT2}, s{sT2}, 1
    s_lshr_b32 s{sT3}, s{sJ}, 1
    s_add_u32 s{sT2}, s{sT2}, s{sT3}
    s_mul_i32 s{sT2}, s{sT2}, {4 * TILE}
    s_lshl_b32 s{sT4}, s{sJ}, 1
    s_and_b32 s{sT4}, s{sT4}, 2
    s_lshr_b32 s{sT4}, 20480, s{sT4}
    s_mul_i32 s{sT4}, s{sT4}, s{sT0}
    s_add_u32 s{sT2}, s{sT2}, s{sT4}
    s_add_u32 s{sT2}, s{sT2}, s{sImg}
    s_add_u32 s{sT2}, s{sT2}, {IMG}
    s_sub_u32 s{sT1}, s{sT1}, s{sT0}
    s_add_u32 s{sT1}, s{sT1}, 1
    s_mul_i32 s{sT4}, s{sT1}, 43
    s_lshr_b32 s{sT4}, s{sT4}, 7
    s_mul_i32 s{sT4}, s{sT4}, 3
    s_sub_u32 s{sT1}, s{sT1}, s{sT4}
    s_lshl_b32 s{sT1}, s{sT1}, 1
    s_add_u32 s{sT1}, s{sT1}, s{sT3}
    s_mul_i32 s{sT1}, s{sT1}, {CH}
    s_mul_i32 s{sT4}, s{sT0}, {RA - RB}
    s_sub_u32 s{sT1}, s{sT1}, s{sT4}
    s_add_u32 s{sT1}, s{sT1}, {RA}
    s_and_b32 s{sT3}, s{sJ}, 1
    s_mul_i32 s{sT4}, s{sT3}, 6144
    s_add_u32 m0, s{sT1}, s{sT4}
    s_nop 0
    """)
    for p in range(5):
        a(f"buffer_load_dwordx4 v{vD+p}, {WSR()}, s{sT2} offen sc1 lds")
        a("s_add_u32 m0, m0, 1024")
        a("s_nop 0" if p < 4 else f"s_cmp_eq_u32 s{sT3}, 1")
    a(f"""
    s_cbranch_scc1 LA_dma_ret
    buffer_load_dwordx4 v{vD+5}, {WSR()}, s{sT2} offen sc1 lds
    LA_dma_ret:
    s_setpc_b64 s[{sLnk}:{sLnk+1}]
    """)


def call_dma(a, b, blk):
    a(f"s_mov_b32 s{sT0}, {b}\ns_mov_b32 s{sT1}, {blk}\ns_call_b64 s[{sLnk}:{sLnk+1}], LA_dma")


def poll_f1(a):
    a(f"""
    s_lshl_b32 s{sT0}, s{sBr}, 5
    s_add_u32 s{sT0}, s{sT0}, s{sHead}
    s_lshl_b32 s{sT0}, s{sT0}, 9
    s_add_u32 s{sT0}, s{sT0}, {WS_C1}
    """)
    poll_counter(a, vP + 3, f"s{sT0}", f"s{sExp}", 7)


def load_q(a):
    a(f"""
    s_lshl_b32 s{sT0}, s{sQB}, 2
    s_add_u32 s{sT0}, s{sT0}, s{sJ}
    s_mul_i32 s{sT0}, s{sT0}, {2 * TILE}
    s_add_u32 s{sT0}, s{sT0}, s{sImg}
    s_add_u32 s{sT1}, s{sT0}, s{sOm}
    s_add_u32 s{sT2}, s{sT1}, {TILE}
    s_add_u32 s{sT0}, s{sT0}, s{sExt}
    buffer_load_dwordx4 {vr(Qm[0],4)}, v{vL16}, {WSR()}, s{sT1} offen sc1
    buffer_load_dwordx4 {vr(Qm[1],4)}, v{vL16}, {WSR()}, s{sT2} offen sc1
    buffer_load_dwordx2 {vr(Qe,2)}, v{vE16}, {WSR()}, s{sT0} offen sc1
    """)


def scale_q(a, nyounger):
    a(f"s_mov_b32 s4, {hex(f32bits(QSCALE))}\ns_mov_b32 s5, s4\ns_waitcnt vmcnt({nyounger})")
    for r in range(Qm[0], Qe + 2):
        a(f"""
        v_lshlrev_b32 v{vPS+2}, 16, v{r}
        v_and_b32 v{vPS+3}, 0xffff0000, v{r}
        v_pk_mul_f32 {vr(vPS+2,2)}, {vr(vPS+2,2)}, s[4:5]
        v_cvt_pk_bf16_f32 v{r}, v{vPS+2}, v{vPS+3}
        """)


def attn_zero(a):
    Z = Vb[1][1]
    for r in (Z, Z + 2, SB[1] + 24, SB[1] + 26, SB[1] + 28, SB[1] + 30):
        a(f"v_pk_mov_b32 {vr(r,2)}, 0, 0")
    a(f"v_mov_b32 v{vP}, 0xbf800000\nv_mov_b32 v{vP+1}, 0\nv_mov_b32 v{vPS+1}, 0")
    a(f"v_mfma_f32_32x32x4_2b_bf16 {vr(OA[0],32)}, {vr(Z,2)}, {vr(Z,2)}, 0")
    a(f"""
    s_add_u32 s{sRe}, s{sRb}, {RING}
    s_mov_b32 s{sRem}, 7
    v_mov_b32 v{vIdx}, 0xdddddddd
    v_lshrrev_b32 v{vK16}, 1, v{vL16}
    v_xor_b32 v{vK16}, v{vK16}, v{vL16}
    v_and_b32 v{vK16}, 64, v{vK16}
    v_mul_u32_u24 v{vK16}, 3, v{vK16}
    v_xor_b32 v{vK16}, v{vK16}, v{vL16}
    v_add_u32 v{vKA}, s{sNext}, v{vK16}
    v_mad_u32_u24 v{vVA}, v{vVflag}, s{sNext}, v{vVbase}
    """)


DELAY_AT, DELAY = 0, 0


def delay(a, at):
    if DELAY_AT == at and DELAY:
        a(f"s_memrealtime s[4:5]\ns_waitcnt lgkmcnt(0)\ns_add_u32 s6, s4, {DELAY}\nLD_{at}:\ns_sleep 1\ns_memrealtime s[4:5]\ns_waitcnt lgkmcnt(0)\ns_cmp_lt_u32 s4, s6\ns_cbranch_scc1 LD_{at}")


def attention(a):
    X = SB[0]
    delay(a, 1)
    a("LA_start:")
    stamp_cyc(a, 24)
    a(f"""
    ds_read_b128 {vr(Km[0],4)}, v{vKA} offset:2048
    ds_read2st64_b64 {vr(Ke,4)}, v{vKA} offset0:0 offset1:2
    ds_read_b128 {vr(Km[1],4)}, v{vKA} offset:3072
    ds_read_b128 {vr(Vb[0][0],4)}, v{vVA}
    ds_read_b128 {vr(Vb[0][1],4)}, v{vVA} offset:640
    s_waitcnt lgkmcnt(4)
    """)
    a(mfma32(X, Km[0], Qm[0], 0))
    a(mfma32(X + 16, Km[0], Qm[1], 0))
    a("s_nop 8\ns_waitcnt lgkmcnt(3)")
    a(mfma2b(X, 0, vr(X, 32)))
    a("s_nop 15\ns_nop 3")
    a.c("softmax shift: row max over the first key tile, cut to bf16; the epilogue checks that it was safe.")
    a.c("A rank-1 MFMA (-1 x shift) subtracts it from the scores and spreads it over the C operand of the loop")
    rowmax(a, X, vT0, vT1)
    a(f"""
    s_nop 1
    v_permlane32_swap_b32 v{vT0}, v{vT1}
    s_nop 1
    v_max_f32 v{vT0}, v{vT0}, v{vT1}
    v_and_b32 v{vPS}, {0 if 'c0' in OPT else '0xffff0000'}, v{vT0}
    s_nop 1
    v_mfma_f32_32x32x4_2b_bf16 {vr(X,32)}, {vr(vP,2)}, {vr(vPS,2)}, {vr(X,32)}
    v_mfma_f32_32x32x4_2b_bf16 {vr(NM,32)}, {vr(vP,2)}, {vr(vPS,2)}, 0
    s_nop 15
    s_nop 0
    s_setprio {0 if 'noprio' in OPT else 1}
    s_waitcnt lgkmcnt(0)
    """)
    if LOFF >= 0:
        a(f"s_branch LA_loop\n.p2align 8\n.fill {LOFF // 4}, 4, 0xbf800000\nLA_loop:")
    else:
        a(".p2align 6\nLA_loop:")
    for half in range(2):
        for ii in range(4):
            tile_iter(a, ii, half)
    a("s_cbranch_scc0 LA_loop\ns_nop 0")
    a(pv(OA[1], Vb[1][1], SB[1] + 24))
    if 'alow' in OPT:
        a("s_setprio 0")
    a(f"s_cmp_eq_u32 s{sRole}, 0\ns_cbranch_scc1 LA_fin2\ns_setprio 2")
    a.c("announce that the results are about to be stored; readers then wait for the markers to disappear")
    count_in(a, sOc, vP, vP + 1)
    a("LA_fin2:")
    stamp(a, 4)
    stamp_cyc(a, 31)
    N = SB[0]
    rc = SB[1]
    tm = rc + 4

    def norm(u):
        O, P = OA[u], N + 12 * u
        for r in range(0, 12, 2):
            a(f"v_pk_mul_f32 {vr(P+r,2)}, {vr(O+r,2)}, {vr(rc+2*u,2)} op_sel_hi:[1,0]")
        for j in range(6):
            a(f"v_cvt_pk_bf16_f32 v{P+j}, v{P+2*j}, v{P+2*j+1}")
    a(f"""
    s_mov_b32 s{sRem}, 0
    LA_epi:
    v_cmp_lt_u32 vcc, 31, v0
    s_add_u32 s{sT0}, s{sOb}, s{sOm}
    s_add_u32 s{sT1}, s{sT0}, {TILE}
    v_cndmask_b32 v{vT0}, v{OA[0]+12}, v{OA[0]+8}, vcc
    v_rcp_f32 v{rc}, v{vT0}
    v_pk_add_f32 {vr(tm,2)}, {vr(OA[0],2)}, {vr(OA[0]+2,2)}
    """)
    a.c("safety check of the shift before anything is stored: row sums inside [2^-30, 2^30], finite accumulators")
    for r in range(4, 12, 2):
        a(f"v_pk_add_f32 {vr(tm,2)}, {vr(tm,2)}, {vr(OA[0]+r,2)}")
    norm(0)
    a(f"v_cndmask_b32 v{vT1}, v{OA[1]+12}, v{OA[1]+8}, vcc\nv_rcp_f32 v{rc+2}, v{vT1}")
    for r in range(0, 12, 2):
        a(f"v_pk_add_f32 {vr(tm,2)}, {vr(tm,2)}, {vr(OA[1]+r,2)}")
    a(f"""
    v_add_f32 v{tm}, v{tm}, v{tm+1}
    v_add_f32 v{tm+1}, v{vT0}, v{vT1}
    v_fma_f32 v{tm}, 0, v{tm}, v{tm+1}
    v_min_f32 v{tm+1}, v{vT0}, v{vT1}
    v_cmp_gt_f32 vcc, {hex(f32bits(2.0**30))}, v{tm}
    s_mov_b64 s[4:5], vcc
    v_cmp_lt_f32 vcc, {hex(f32bits(2.0**-30))}, v{tm+1}
    """)
    for j in range(4):
        a(f"v_min_u32 v{N+j}, -2, v{N+j}")
    a(f"""
    s_and_b64 s[4:5], s[4:5], vcc
    s_cmp_eq_u64 s[4:5], -1
    s_cselect_b32 s{sT3}, 1, s{sRem}
    s_cmp_eq_u32 s{sT3}, 0
    s_cbranch_scc1 LA_slow
    buffer_store_dwordx4 {vr(N,4)}, v{vL16}, {WSR()}, s{sT0} offen sc1
    """)
    norm(1)
    for j in range(4):
        a(f"v_min_u32 v{N+12+j}, -2, v{N+12+j}")
    a(f"""
    buffer_store_dwordx4 {vr(N+12,4)}, v{vL16}, {WSR()}, s{sT1} offen sc1
    v_permlane32_swap_b32 v{N+4}, v{N+16}
    v_permlane32_swap_b32 v{N+5}, v{N+17}
    s_add_u32 s{sT2}, s{sOb}, s{sExt}
    v_min_u32 v{N+4}, -2, v{N+4}
    v_min_u32 v{N+5}, -2, v{N+5}
    buffer_store_dwordx2 {vr(N+4,2)}, v{vE16}, {WSR()}, s{sT2} offen sc1
    """)


def o_base(a):
    a(f"""
    s_lshl_b32 s{sT0}, s{sQB}, 2
    s_add_u32 s{sT0}, s{sT0}, s{sJ}
    s_mul_i32 s{sOb}, s{sT0}, {2 * TILE}
    s_add_u32 s{sOb}, s{sOb}, s{sImg}
    s_add_u32 s{sOb}, s{sOb}, {3 * IMG}
    """)
    a(f"s_lshr_b32 s{sT1}, s{sHead}, 3\ns_max_u32 s{sT1}, s{sT1}, 1\ns_sub_u32 s{sT1}, s{sT1}, 1")
    c3_off(a, sOc, sT0, sT1)


def o_mark(a):
    o_base(a)
    a(f"""
    s_add_u32 s{sT0}, s{sOb}, s{sOm}
    s_add_u32 s{sT1}, s{sT0}, {TILE}
    s_add_u32 s{sT2}, s{sOb}, s{sExt}
    buffer_store_dwordx4 v[20:23], v{vL16}, {WSR()}, s{sT0} offen sc1
    buffer_store_dwordx4 v[20:23], v{vL16}, {WSR()}, s{sT1} offen sc1
    buffer_store_dwordx2 v[20:21], v{vE16}, {WSR()}, s{sT2} offen sc1
    """)


def refill(a):
    a.c("role-B waves refill both rings: after barrier m, A block m+2 and B block m-SK+2")
    a(f"""
    LA_refill:
    s_cmp_gt_u32 s{sM}, 5
    s_cbranch_scc1 LA_ev_b
    s_mov_b32 s{sT0}, 0
    s_add_u32 s{sT1}, s{sM}, 2
    s_call_b64 s[{sLnk}:{sLnk+1}], LA_dma
    LA_ev_b:
    s_sub_u32 s{sT1}, s{sM}, {SK - 2}
    s_cmp_lt_u32 s{sT1}, 3
    s_cbranch_scc1 LA_back
    s_mov_b32 s{sT0}, 1
    s_call_b64 s[{sLnk}:{sLnk+1}], LA_dma
    s_branch LA_back
    """)


def slow_path(a):
    X = SB[0]
    m0, m1, t0, t1 = SB[1], SB[1] + 1, SB[1] + 2, SB[1] + 3

    def kloads(t):
        a(f"buffer_load_dwordx4 {vr(Km[0],4)}, v{vL16}, {WSR()}, s{sT1} offen sc1")
        if t == 0:
            a(f"buffer_load_dwordx2 {vr(Ke,2)}, v{vE16}, {WSR()}, s{sT2} offen sc1")
            a(f"s_add_u32 s{sT2}, s{sT2}, {2 * TILE}")
        a(f"s_add_u32 s{sT1}, s{sT1}, {TILE}")

    def kbase():
        a(f"""
        s_add_u32 s{sT0}, s{sImg}, {IMG}
        s_add_u32 s{sT1}, s{sT0}, s{sOm}
        s_add_u32 s{sT2}, s{sT0}, s{sExt}
        s_mov_b32 s{sRem}, 0
        """)
    a(f"LA_slow:\nv_mov_b32 v{m0}, 0xff800000\nv_mov_b32 v{m1}, 0xff800000")
    kbase()
    a("LA_slow_max:")
    for t in range(2):
        kloads(t)
        a("s_waitcnt vmcnt(0)")
        a(mfma32(X, Km[0], Qm[0], 0))
        a(mfma32(X + 16, Km[0], Qm[1], 0))
        a("s_nop 9")
        a(mfma2b(X, t, vr(X, 32)))
        a("s_nop 15\ns_nop 3")
        rowmax(a, X, t0, t1)
        a(f"v_max_f32 v{m0}, v{m0}, v{t0}\nv_max_f32 v{m1}, v{m1}, v{t1}")
    a(f"s_add_u32 s{sRem}, s{sRem}, 1\ns_cmp_lt_u32 s{sRem}, 32\ns_cbranch_scc1 LA_slow_max")
    cross_half_max(a, m0, t0)
    cross_half_max(a, m1, t0)
    fill_nm(a, m0, m1)
    for r in range(32):
        a(f"v_mov_b32 v{OA[0]+r}, 0")
    for r in range(8):
        a(f"v_mov_b32 v{Vb[0][0]+r}, 0x3f803f80")
    kbase()
    a(f"""
    s_mul_i32 s{sT3}, s{sHead}, 320
    s_add_u32 s{sT3}, s{sT3}, s{sT0}
    s_add_u32 s{sT3}, s{sT3}, {IMG}
    LA_slow_pv:
    """)
    for t in range(2):
        kloads(t)
        a(f"""
        s_add_u32 s{sT4}, s{sT3}, 20480
        s_mov_b32 exec_lo, 0xfffff
        s_mov_b32 exec_hi, 0xfffff
        buffer_load_dwordx4 {vr(Vb[0][0],4)}, v{vVG}, {WSR()}, s{sT3} offen sc1
        buffer_load_dwordx4 {vr(Vb[0][1],4)}, v{vVG}, {WSR()}, s{sT4} offen sc1
        s_mov_b64 exec, -1
        s_add_u32 s{sT3}, s{sT3}, {TILE}
        s_waitcnt vmcnt(2)
        """)
        a(mfma32(X, Km[0], Qm[0], vr(NM, 16)))
        a(mfma32(X + 16, Km[0], Qm[1], vr(NM + 16, 16)))
        a("s_nop 9")
        a(mfma2b(X, t, vr(X, 32)))
        a("s_nop 15\ns_nop 3")
        for r in range(32):
            a(f"v_exp_f32 v{X+r}, v{X+r}")
        a("s_nop 0")
        for j in range(16):
            a(f"v_cvt_pk_bf16_f32 v{X + 8*(j//4) + j%4}, v{X+2*j}, v{X+2*j+1}")
        a("s_waitcnt vmcnt(0)\ns_nop 1")
        a(mfma32(OA[0], Vb[0][0], X, vr(OA[0], 16)))
        a(mfma32(OA[0], Vb[0][1], X + 8, vr(OA[0], 16)))
        a(mfma32(OA[1], Vb[0][0], X + 16, vr(OA[1], 16)))
        a(mfma32(OA[1], Vb[0][1], X + 24, vr(OA[1], 16)))
    a(f"""
    s_add_u32 s{sRem}, s{sRem}, 1
    s_cmp_lt_u32 s{sRem}, 32
    s_cbranch_scc1 LA_slow_pv
    s_nop 15
    s_mov_b32 s{sRem}, 1
    s_branch LA_epi
    """)


pWF = [16, 56]
pACC = 96
pACL = 196
pOF = 136
pWA, pOA = 2, 3


def c3_off(a, dst, t64, part):
    a(f"""
    s_lshl_b32 s{dst}, s{sBr}, 5
    s_add_u32 s{dst}, s{dst}, s{t64}
    s_mul_i32 s{dst}, s{dst}, 3
    s_add_u32 s{dst}, s{dst}, s{part}
    s_lshl_b32 s{dst}, s{dst}, 7
    s_add_u32 s{dst}, s{dst}, {WS_C3}
    """)


def wo_dma(a, k0, k1, lds0):
    _lbl[0] += 1
    L = f"LP_wd{_lbl[0]}"
    a(f"""
    s_and_b32 s{sT0}, s{sHead}, 3
    s_lshl_b32 s{sT1}, s{sBr}, 2
    s_add_u32 s{sT0}, s{sT0}, s{sT1}
    s_mul_i32 s{sT0}, s{sT0}, {WO_SLAB}
    s_lshl_b32 s{sT1}, s{sJ}, 10
    s_add_u32 s{sT0}, s{sT0}, s{sT1}
    s_add_u32 s{sT0}, s{sT0}, {WS_WO + 10240 * k0}
    s_add_u32 s{sT1}, s{sT1}, {lds0}
    {L}:
    s_mov_b32 m0, s{sT1}
    s_add_u32 s{sT1}, s{sT1}, 4096
    buffer_load_dwordx4 v{vL16}, {WSR()}, s{sT0} offen sc1 lds
    s_add_u32 s{sT0}, s{sT0}, 4096
    s_cmp_lt_u32 s{sT1}, {lds0 + 10240 * (k1 - k0)}
    s_cbranch_scc1 {L}
    """)


def o_addr(a):
    a(f"""
    s_lshl_b32 s{sT1}, s{sQB}, 2
    s_lshr_b32 s{sT2}, s{sHead}, 2
    s_add_u32 s{sT1}, s{sT1}, s{sT2}
    """)
    c3_off(a, sFc, sT1, sRole)
    a(f"""
    v_and_b32 v{vP+3}, 15, v0
    s_lshl_b32 s{sT1}, s{sT1}, 1
    s_lshr_b32 s{sT2}, s{sJ}, 1
    s_add_u32 s{sT1}, s{sT1}, s{sT2}
    s_mul_i32 s{sT1}, s{sT1}, {TILE}
    s_add_u32 s{sT1}, s{sT1}, s{sImg}
    s_and_b32 s{sT2}, s{sJ}, 1
    s_lshl_b32 s{sT2}, s{sT2}, 8
    s_add_u32 s{sT1}, s{sT1}, s{sT2}
    s_add_u32 s{sFo}, s{sT1}, {3 * IMG}
    v_lshrrev_b32 v{pOA}, 4, v0
    v_lshlrev_b32 v{pOA}, 9, v{pOA}
    v_lshl_add_u32 v{pOA}, v{vP+3}, 4, v{pOA}
    v_lshlrev_b32 v{vP+5}, 7, v0
    s_mov_b32 s{sF[0]}, s{sFo}
    s_add_u32 s{sF[1]}, s{sFo}, 10240
    """)


sF = [54, 55]


def o_load_sub(a, label, p0):
    a(f"{label}:\ns_mov_b32 s{sT1}, s{sF[p0 // 5]}")
    for i in range(5):
        a(f"buffer_load_dwordx4 {vr(pOF + 4*(p0 + i), 4)}, v{pOA}, {WSR()}, s{sT1} offen offset:{(i & 1) * 2048} sc1")
        if i & 1:
            a(f"s_add_u32 s{sT1}, s{sT1}, 4096")
    a(f"s_setpc_b64 s[{sLnk}:{sLnk+1}]")


def o_checked(a, label, p0, counted):
    a(f"s_mov_b32 s{sSpin}, {SPIN}\n{label}_chk:\nv_mov_b32 v{vPS}, 0\nv_mov_b32 v{vPS+1}, 0")
    for i in range(5):
        r = pOF + 4 * (p0 + i)
        if counted:
            a(f"s_waitcnt vmcnt({4 - i})")
        a(f"v_max3_u32 v{vPS}, v{vPS}, v{r}, v{r+1}\nv_max3_u32 v{vPS+1}, v{vPS+1}, v{r+2}, v{r+3}")
    a(f"""
    v_max_u32 v{vPS}, v{vPS}, v{vPS+1}
    v_cmp_eq_u32 vcc, -1, v{vPS}
    s_cbranch_vccz {label}_ok
    s_call_b64 s[{sLnk}:{sLnk+1}], {label}
    s_waitcnt vmcnt(0)
    s_sub_u32 s{sSpin}, s{sSpin}, 1
    s_cbranch_scc0 {label}_chk
    {label}_ok:
    """)


def peek(a, mask):
    a(f"""
    v_mov_b32 v{vPS+2}, 0
    s_mov_b64 exec, {mask}
    buffer_atomic_add v{vPS+2}, v{vP+5}, {WSR()}, s{sFc} offen sc0 sc1
    s_mov_b64 exec, -1
    """)


def ready_mask(a):
    a(f"v_cmp_le_u32 vcc, 8, v{vPS+2}\ns_and_b32 s{sPh}, vcc_lo, 3")


def order_sub(a):
    a(f"""
    LP_order:
    s_and_b32 s{sDone}, s{sPh}, 1
    s_xor_b32 s{sDone}, s{sDone}, 1
    s_mul_i32 s{sT0}, s{sDone}, 10240
    s_add_u32 s{sF[0]}, s{sFo}, s{sT0}
    s_sub_u32 s{sF[1]}, s{sFo}, s{sT0}
    s_add_u32 s{sF[1]}, s{sF[1]}, 10240
    """)


TAB = [8, 9, 10, 11, 12, 13, 14, 15, 52, 53]


sLnkM = 6


def oproj_subs(a, G3, Lo0):
    def wreads(p):
        return [f"ds_read_b128 {vr(pWF[p & 1] + 4*c, 4)}, v{pWA} offset:{c * 1024}" for c in range(10)]
    a(f"LP_pro:\nv_add_u32 v{pWA}, s{TAB[0]}, v{vL16}")
    for r in wreads(0):
        a(r)
    a(f"s_setpc_b64 s[{sLnkM}:{sLnkM+1}]")
    for p in range(10):
        if p % 5 == 0:
            a("LP_lo:" if p else "LP_hi:")
        rd = wreads(p + 1) if p < 9 else []
        if rd:
            a(f"v_add_u32 v{pWA}, s{TAB[p + 1]}, v{vL16}")
        for c in range(10):
            A = (pACL if p >= 5 else pACC) + 4 * c
            a(f"s_waitcnt lgkmcnt({9 if rd else 9 - c})")
            a(f"v_mfma_f32_16x16x32_bf16 {vr(A,4)}, {vr(pOF + 4*p, 4)}, {vr(pWF[p & 1] + 4*c, 4)}, {vr(A,4)}")
            if rd:
                a(rd[c])
            site = 2 * (p - 5) + c // 5
            if p >= 5 and c % 5 == 0 and site < 9:
                a(f"s_cbranch_scc1 LW_{site}\nLW_b{site}:")
            if p == MID_P and c == 9:
                a("s_cbranch_scc1 LP_mid\nLP_midb:")
        if p % 5 == 4:
            a(f"s_setpc_b64 s[{sLnkM}:{sLnkM+1}]")
    for site in range(9):
        a(f"LW_{site}:")
        n = 3 if site < 5 else 2
        if site == 0:
            a(f"s_mul_i32 s{sT1}, s{sJ}, {15 * 1024}\ns_add_u32 s{sT2}, s{sT0}, s{sT1}\ns_add_u32 m0, s{sT1}, {G3}")
        elif site == 5:
            a(f"s_lshl_b32 s{sT1}, s{sJ}, 13\ns_add_u32 s{sT2}, s{sT0}, s{sT1}\ns_add_u32 s{sT2}, s{sT2}, {6 * 10240}\ns_add_u32 m0, s{sT1}, {Lo0}")
        else:
            a(f"s_add_u32 m0, m0, {n * 1024}\ns_add_u32 s{sT2}, s{sT2}, {n * 1024}")
        a("s_cmp_eq_u32 0, 0")
        if site == 7:
            peek(a, 3)
        for i in range(n):
            a(f"buffer_load_dwordx4 v{vL16}, {WSR()}, s{sT2} offen offset:{i * 1024} sc1 lds")
        a(f"s_branch LW_b{site}")
    a("LP_mid:\ns_waitcnt vmcnt(0)")
    ready_mask(a)
    a(f"s_cmp_eq_u32 s{sPh}, 3\ns_cbranch_scc0 LP_midb\ns_call_b64 s[{sLnk}:{sLnk+1}], LP_ldlo\ns_branch LP_midb")


MID_P = 4
WOVEN_PRIO = 0


def set_tab(a, addrs):
    for r, x in zip(TAB, addrs):
        a(f"s_mov_b32 s{r}, {x}")


def out_addr(a):
    a.c("lane n = l & 15 holds columns 8n..8n+7 of a 128-column piece and 2n, 2n+1 of a 32-column piece (tokens 4*(l >> 4) + r);")
    a.c("odd column groups start with the narrow piece, so that the wide one covers whole 128-B lines")
    a(f"""
    s_lshl_b32 s{sT0}, s{sQB}, 2
    s_lshr_b32 s{sT1}, s{sHead}, 2
    s_add_u32 s{sT0}, s{sT0}, s{sT1}
    s_lshl_b32 s{sT0}, s{sT0}, 2
    s_add_u32 s{sT0}, s{sT0}, s{sJ}
    s_mul_i32 s{sT0}, s{sT0}, {16 * 2560}
    s_mul_i32 s{sT1}, s{sBr}, 1280
    s_add_u32 s{sT0}, s{sT0}, s{sT1}
    s_and_b32 s{sT1}, s{sHead}, 3
    s_mul_i32 s{sT1}, s{sT1}, 320
    s_add_u32 s{sXo}, s{sT0}, s{sT1}
    s_add_u32 s{sWo}, s{sXo}, {2 * 2560}
    v_lshrrev_b32 v4, 4, v0
    v_mul_u32_u24 v4, {4 * 2560}, v4
    v_and_b32 v6, 15, v0
    s_and_b32 s{sT0}, s{sHead}, 1
    s_cselect_b32 s{sT0}, 64, 0
    s_cselect_b32 s{sT1}, 0, 256
    v_lshl_add_u32 v5, v6, 2, v4
    v_lshl_add_u32 v4, v6, 4, v4
    v_add_u32 v4, s{sT0}, v4
    v_add_u32 v5, s{sT1}, v5
    """)


def out_store(a):
    OUTMOD = " nt" if 'outnt' in OPT else " sc1"
    for r in range(4):
        if r % 2 == 0:
            for c in range(10):
                a(f"v_pk_add_f32 {vr(pACC + 4*c + r, 2)}, {vr(pACC + 4*c + r, 2)}, {vr(pACL + 4*c + r, 2)}")
        P = 16 + 6 * r
        for j in range(5):
            a(f"v_cvt_pk_bf16_f32 v{P+j}, v{pACC + 8*j + r}, v{pACC + 8*j + 4 + r}")
        so = sXo if r < 2 else sWo
        a(f"buffer_store_dwordx4 {vr(P,4)}, v4, s[{sOut}:{sOut+3}], s{so} offen offset:{(r & 1) * 2560}{OUTMOD}")
        a(f"buffer_store_dword v{P+4}, v5, s[{sOut}:{sOut+3}], s{so} offen offset:{(r & 1) * 2560}{OUTMOD}")


rL, rT, rD, rX, rData = 194, 199, 201, 205, 208


def repack_setup(a):
    x = rX
    for i in range(5):
        a(f"""
        v_add_u32 v{x}, {64 * i}, v0
        v_mul_u32_u24 v{x+1}, 3277, v{x}
        v_lshrrev_b32 v{x+1}, 16, v{x+1}
        v_mul_u32_u24 v{x+2}, 20, v{x+1}
        v_sub_u32 v{x+2}, v{x}, v{x+2}
        v_mul_u32_u24 v{x+1}, 1280, v{x+1}
        v_lshl_add_u32 v{rL+i}, v{x+2}, 4, v{x+1}
        """)
    a(f"""
    v_and_b32 v{x}, 48, v0
    v_lshlrev_b32 v{x}, 4, v{x}
    v_add_u32 v{x}, {RPK}, v{x}
    v_and_b32 v{x+1}, 7, v0
    v_mul_u32_u24 v{x+1}, 1040, v{x+1}
    v_and_b32 v{x+2}, 8, v0
    v_lshl_add_u32 v{x+1}, v{x+2}, 1, v{x+1}
    v_add_u32 v{rD}, v{x}, v{x+1}
    v_and_b32 v{x+1}, 1, v0
    v_mul_u32_u24 v{x+1}, 1040, v{x+1}
    v_and_b32 v{x+2}, 14, v0
    v_lshl_add_u32 v{x+1}, v{x+2}, 3, v{x+1}
    v_add3_u32 v{rD+1}, v{x}, v{x+1}, 0
    v_lshrrev_b32 v{x}, 4, v0
    v_lshlrev_b32 v{x}, 3, v{x}
    v_lshrrev_b32 v{x+1}, 2, v0
    v_and_b32 v{x+1}, 3, v{x+1}
    v_add_u32 v{x}, v{x}, v{x+1}
    v_mul_u32_u24 v{x}, 320, v{x}
    v_and_b32 v{x+1}, 3, v0
    v_lshl_add_u32 v{x}, v{x+1}, 3, v{x}
    v_add_u32 v{x}, {RPK}, v{x}
    s_and_b32 s{sT0}, s2, 2
    s_cselect_b32 s{sT0}, 64, 0
    s_cselect_b32 s{sT1}, 0, 256
    v_add_u32 v{rT}, s{sT0}, v{x}
    v_add_u32 v{rT+1}, s{sT1}, v{x}
    v_add_u32 v{rX}, {RPK}, v{vL16}
    """)


sRu, sRs = 38, 39


def repack_steps(a):
    a(f"""
    LR_step:
    s_add_u32 s{sRp}, s{sRp}, 1
    s_and_b32 s{sT3}, s{sRu}, 3
    s_lshl_b32 s{sT4}, s{sBr}, 2
    s_add_u32 s{sT4}, s{sT4}, s{sT3}
    s_cmp_eq_u32 s{sRs}, 0
    s_cbranch_scc1 LR_load
    s_cmp_eq_u32 s{sRs}, 1
    s_cbranch_scc0 LR_s2
    s_lshr_b32 s{sT2}, s{sRu}, 2
    s_mul_i32 s{sT0}, s{sT4}, {WO_SLAB}
    s_mul_i32 s{sT2}, s{sT2}, 10240
    s_add_u32 s{sT0}, s{sT0}, s{sT2}
    s_add_u32 s{sT0}, s{sT0}, {WS_WO}
    """)
    for ct in range(10):
        for u in range(2):
            a(f"ds_read_b64_tr_b16 {vr(rData + 4*ct + 2*u, 2)}, v{rT + ct // 8} offset:{u*4*320 + (ct % 8)*32}")
        if ct == 4:
            a("s_waitcnt lgkmcnt(0)")
    a("s_waitcnt lgkmcnt(0)")
    for ct in range(10):
        a(f"ds_write_b128 v{rD + ct // 8}, {vr(rData + 4*ct, 4)} offset:{32 * ct if ct < 8 else 8 * 1040 + 128 * (ct - 8)}")
    a("s_waitcnt lgkmcnt(0)")
    for c in range(10):
        a(f"ds_read_b128 {vr(rData + 4*c, 4)}, v{rX} offset:{1040 * c}")
    for c in range(10):
        a(f"s_waitcnt lgkmcnt({9 - c})")
        a(f"buffer_store_dwordx4 {vr(rData + 4*c, 4)}, v{vL16}, {WSR()}, s{sT0} offen offset:{1024 * (c & 3)} sc1")
        if c & 3 == 3:
            a(f"s_add_u32 s{sT0}, s{sT0}, 4096")
    a(f"""
    s_mov_b32 s{sRs}, 2
    s_cmp_lt_u32 s{sRu}, 16
    s_cbranch_scc0 LA_bar
    s_add_u32 s{sRu}, s{sRu}, 64
    LR_load:
    s_mov_b32 s{sRs}, 1
    s_mov_b32 s{sWt}, s{sPtr+2}
    s_and_b32 s{sWt+1}, s{sPtr+3}, 0xffff
    s_mov_b32 s{sWt+2}, {D * D * 2}
    s_mov_b32 s{sWt+3}, 0x00020000
    s_lshr_b32 s{sT2}, s{sRu}, 2
    s_mul_i32 s{sT0}, s{sT2}, {32 * 1280}
    s_mul_i32 s{sT1}, s{sT3}, 320
    s_add_u32 s{sT0}, s{sT0}, s{sT1}
    s_mov_b32 m0, {RPK}
    s_add_u32 s{sT1}, s{sT0}, {16 * 1280}
    """)
    for i in range(10):
        a(f"buffer_load_dwordx4 v{rL + i % 5}, s[{sWt}:{sWt+3}], s{sT1 if i >= 5 else sT0} offen lds")
        a("s_add_u32 m0, m0, 1024\ns_nop 0")
    a(f"""
    s_branch LA_bar
    LR_s2:
    s_mov_b32 s{sRp}, -1
    s_lshl_b32 s{sT0}, s{sT4}, 7
    s_add_u32 s{sT0}, s{sT0}, {WS_C4}
    """)
    count_in(a, sT0, vP, vP + 1)
    a("s_branch LA_bar")


def write_ones(a, role):
    a(f"""
    v_and_b32 v{vT0}, 7, v0
    v_mul_u32_u24 v{vT0}, 640, v{vT0}
    v_add_u32 v{vT0}, {ONES[role]}, v{vT0}
    v_mov_b32 v16, 0x3f803f80
    v_mov_b32 v17, 0x3f803f80
    v_mov_b32 v18, 0x3f803f80
    v_mov_b32 v19, 0x3f803f80
    ds_write_b128 v{vT0}, v[16:19]
    """)


sL = 8


def lead_prepare(a):
    a(f"""
    s_lshr_b32 s{sRu}, s2, 3
    s_lshl_b32 s{sRu}, s{sRu}, 1
    s_bfe_u32 s{sT0}, s2, 0x10001
    s_add_u32 s{sRu}, s{sRu}, s{sT0}
    s_mov_b32 s{sRs}, 0
    s_and_b32 s{sT0}, s2, 1
    s_cselect_b32 s{sT0}, 0, s{sJ}
    s_cmp_eq_u32 s{sT0}, 1
    s_cselect_b32 s{sRp}, {RP_AT}, -1
    s_mov_b32 s{sM}, 0
    s_mov_b32 s{sMend}, 0
    s_mov_b32 s{sRb}, {RA}
    s_mov_b32 s{sNext}, {RA + BLK}
    """)
    attn_zero(a)
    o_base(a)
    a(f"""
    s_sub_u32 s{sT0}, s{sOb}, {3 * IMG}
    s_add_u32 s{sL},  s{sT0}, s{sOm}
    s_add_u32 s{sL+1}, s{sL},  {TILE}
    s_add_u32 s{sL+2}, s{sT0}, s{sExt}
    s_lshr_b32 s{sT3}, s{sJ}, 1
    s_mul_i32 s{sT1}, s{sT3}, {4 * TILE}
    s_add_u32 s{sT1}, s{sT1}, s{sImg}
    s_add_u32 s{sT1}, s{sT1}, {IMG}
    s_and_b32 s{sL+4}, s{sQB if 'kvrot' in OPT else sHead}, 7
    s_mul_i32 s{sL+3}, s{sL+4}, {8 * TILE}
    s_add_u32 s{sL+3}, s{sL+3}, s{sT1}
    s_add_u32 s{sL+4}, s{sL+4}, 1
    s_and_b32 s{sL+4}, s{sL+4}, 7
    s_mul_i32 s{sL+4}, s{sL+4}, {8 * TILE}
    s_add_u32 s{sL+4}, s{sL+4}, s{sT1}
    s_mul_i32 s{sL+5}, s{sT3}, {CH}
    s_and_b32 s{sL+6}, s{sJ}, 1
    s_mul_i32 s{sT4}, s{sL+6}, 6144
    s_add_u32 s{sL+5}, s{sL+5}, s{sT4}
    s_add_u32 m0, s{sL+5}, {RA + BLK}
    """)
    a(f"""
    s_lshl_b32 s{sL+7}, s{sBr}, 5
    s_add_u32 s{sL+7}, s{sL+7}, s{sHead}
    s_lshl_b32 s{sL+7}, s{sL+7}, 9
    s_add_u32 s{sL+7}, s{sL+7}, {WS_C1}
    """)


def common_setup(a):
    a(f"""
    s_and_b32 s{sT0}, s2, 1
    s_lshl_b32 s{sT0}, s{sT0}, 3
    s_and_b32 s{sT1}, s2, 2
    s_lshl_b32 s{sT1}, s{sT1}, 1
    s_add_u32 s{sT0}, s{sT0}, s{sT1}
    s_lshr_b32 s{sT2}, s2, 6
    s_add_u32 s{sHead}, s{sT0}, s{sT2}
    s_lshr_b32 s{sQB}, s2, 3
    s_and_b32 s{sQB}, s{sQB}, 7
    s_lshl_b32 s{sT2}, s{sRole}, 4
    s_add_u32 s{sHead}, s{sHead}, s{sT2}
    s_mul_i32 s{sImg}, s{sBr}, {4 * IMG}
    s_mov_b32 s{sPh}, 0
    s_mov_b32 s{sWS+2}, {WS_STAMP + 2048 * 128 if common.STAMP else WS_END}
    s_mov_b32 s{sWS+3}, 0x00020000
    s_mov_b32 s{sOut+2}, {S * 2 * D * 2}
    s_mov_b32 s{sOut+3}, 0x00020000
    s_mov_b32 s{sDbg+2}, 256
    s_mov_b32 s{sDbg+3}, 0x00020000
    s_waitcnt lgkmcnt(0)
    s_mov_b32 s{sOut}, s{sPtr+4}
    s_and_b32 s{sOut+1}, s{sPtr+5}, 0xffff
    s_mov_b32 s{sDbg}, s{sPtr+6}
    s_and_b32 s{sDbg+1}, s{sPtr+7}, 0xffff
    s_and_b32 s{sWS+1}, s{sWS+1}, 0xffff
    """)


def gen(a, label):
    kernel_head(a, label)
    a("s_cmp_ge_u32 s2, 256\ns_cbranch_scc1 LF_end")
    stamp(a, 0)
    a(f"""
    s_bfe_u32 s{sBr}, s2, 0x10002
    s_mul_i32 s{sT0}, s{sBr}, 24
    s_load_dwordx2 s[{sX}:{sX+1}], s[0:1], s{sT0}
    s_add_u32 s{sT1}, s{sT0}, 8
    s_load_dwordx4 s[{sPtr}:{sPtr+3}], s[0:1], s{sT1}
    s_load_dwordx4 s[{sPtr+4}:{sPtr+7}], s[0:1], 48
    s_load_dwordx2 s[{sWS}:{sWS+1}], s[0:1], 64
    v_lshrrev_b32 v1, 6, v0
    v_and_b32 v0, 63, v0
    v_readfirstlane_b32 s{sW}, v1
    """)
    if 'noearly' not in OPT:
        a.c("waves 4-6 start the address translations of X and W as soon as the pointers are there")
        a(f"""
        s_sub_u32 s{sT1}, s{sW}, 4
        s_cmp_lt_u32 s{sT1}, 3
        s_cbranch_scc0 LF_nt
        s_lshl_b32 s{sT1}, s{sT1}, 20
        s_waitcnt lgkmcnt(0)
        s_load_dword s6, s[{sX}:{sX+1}], s{sT1}
        s_load_dword s7, s[{sPtr}:{sPtr+1}], s{sT1}
        LF_nt:
        """)
    a(f"""
    s_and_b32 s{sT0}, s2, 3
    s_lshl_b32 s{sT0}, s{sT0}, 2
    s_bfe_u32 s{sT2}, s2, 0x20003
    s_add_u32 s{sTB}, s{sT0}, s{sT2}
    s_lshr_b32 s{sTI}, s2, 5
    """)
    if 'nocw' not in OPT:
        a.c("wave 7 pulls a quarter of the code into the L2, so that later instruction fetches find it there")
        a(f"""
        s_cmp_eq_u32 s{sW}, 7
        s_cbranch_scc0 LG_nocw
        s_getpc_b64 s[4:5]
        LG_pc:
        s_sub_u32 s4, s4, LG_pc-{label}
        s_subb_u32 s5, s5, 0
        s_lshl_b32 s{sT0}, s{sT2}, 13
        v_lshl_add_u32 v8, v0, 7, s{sT0}
        v_min_u32 v8, LF_codeend-{label}-4, v8
        global_load_dword v{gT+1}, v8, s[4:5]
        LG_nocw:
        """)
    a.c("phase-a units of tile ti: n = 2 ti + e, unit = n + 5 (n >= 5) + 5 (n >= 10)")
    a(f"""
    s_lshl_b32 s{sU0}, s{sTI}, 1
    s_cmp_ge_u32 s{sTI}, 5
    s_cselect_b32 s{sT0}, 10, 5
    s_cmp_ge_u32 s{sTI}, 3
    s_cselect_b32 s{sT0}, s{sT0}, 0
    s_add_u32 s{sU0}, s{sU0}, s{sT0}
    s_cmp_eq_u32 s{sTI}, 2
    s_cselect_b32 s{sT0}, 6, 1
    s_add_u32 s{sU1}, s{sU0}, s{sT0}
    s_and_b32 s{sJ}, s{sW}, 3
    s_lshr_b32 s{sRole}, s{sW}, 2
    s_cbranch_scc1 LG_start
    """)
    gemm_loader(a)
    a("LG_start:")
    common_setup(a)
    if CLR_AT < 0:
        clear_counters(a, "LG")
    gemm_compute(a)
    a("LG_idle:\ns_waitcnt lgkmcnt(0)\ns_barrier")
    drained(a)
    a("s_barrier")
    if PAIR_Q < 160:
        a("s_barrier")
    a("LG_done:")
    if PAIR_Q >= 160:
        a("s_barrier")
    stamp(a, 3)
    a(f"s_setprio {BLEAD_PRIO}")
    vectors_get(a)
    write_ones(a, 1)
    a(f"s_mov_b32 s{sM}, {SK}\ns_mov_b32 s{sMend}, {(1 << (SK + 5)) - 1}\ns_mov_b32 s{sRb}, {RB}\ns_mov_b32 s{sNext}, {RB}")
    attn_zero(a)
    a.c("the last wave whose stores have drained publishes the tile")
    a(f"""
    v_mov_b32 v246, {LCNT}
    v_mov_b32 v247, 1
    v_mov_b32 v20, -1
    v_mov_b32 v21, -1
    v_mov_b32 v22, -1
    v_mov_b32 v23, -1
    s_setprio 2
    s_barrier
    s_waitcnt vmcnt(0)
    s_mov_b64 exec, 1
    ds_add_rtn_u32 v249, v246, v247
    s_mov_b64 exec, -1
    s_waitcnt lgkmcnt(0)
    v_readfirstlane_b32 s{sT0}, v249
    s_cmp_eq_u32 s{sT0}, 3
    s_cbranch_scc0 LG_nopub
    s_cmp_eq_u32 s{sTI}, 7
    s_cbranch_scc1 LG_nopub
    s_call_b64 s[{sLnk}:{sLnk+1}], LG_publish
    LG_nopub:
    """)
    stamp(a, 27)
    call_dma(a, 0, 2)
    o_mark(a)
    a(f"s_mov_b32 s{sRp}, -1\ns_waitcnt vmcnt(0)\ns_barrier")
    poll_f1(a)
    stamp(a, 26)
    load_q(a)
    call_dma(a, 1, 0)
    call_dma(a, 0, 3)
    a("s_waitcnt vmcnt(0) lgkmcnt(0)\ns_barrier")
    call_dma(a, 1, 1)
    call_dma(a, 0, 4)
    call_dma(a, 1, 2)
    if 'blow' in OPT:
        a("s_setprio 1")
    scale_q(a, 63)
    stamp(a, 5)
    a("s_branch LA_start")
    a("LA_lead:")
    a("s_setprio 3")
    def small_writes():
        a(f"s_cmp_lt_u32 s{sJ}, 2\ns_cbranch_scc0 LA_sw1")
        vectors_put(a)
        a(f"s_branch LA_sw2\nLA_sw1:\nv_mov_b32 v{vP+2}, {LCNT}\ns_mov_b64 exec, 0xff\nds_write_b32 v{vP+2}, v{vP+1}")
        write_ones(a, 0)
        a("LA_sw2:")
    poll_counter(a, vP + 3, f"s{sL+7}", f"s{sExp}", 7, small_writes)
    stamp(a, 1)
    a(f"""
    buffer_load_dwordx4 {vr(Qm[0],4)}, v{vL16}, {WSR()}, s8 offen sc1
    buffer_load_dwordx4 {vr(Qm[1],4)}, v{vL16}, {WSR()}, s9 offen sc1
    buffer_load_dwordx2 {vr(Qe,2)}, v{vE16}, {WSR()}, s10 offen sc1
    """)
    for blk in range(2):
        for p in range(5):
            a(f"buffer_load_dwordx4 v{vD+p}, {WSR()}, s{11 + blk} offen sc1 lds")
            a("s_add_u32 m0, m0, 1024")
            a("s_nop 0" if p < 4 else "s_cmp_eq_u32 s14, 1")
        a(f"s_cbranch_scc1 LA_ld{blk}\nbuffer_load_dwordx4 v{vD+5}, {WSR()}, s{11 + blk} offen sc1 lds\nLA_ld{blk}:")
        if blk == 0:
            a(f"s_add_u32 m0, s13, {RA + 2 * BLK}\ns_nop 0")
    scale_q(a, 10)
    a("s_waitcnt vmcnt(5) lgkmcnt(0)\ns_barrier\ns_setprio 1")
    stamp(a, 3)
    attention(a)
    a(f"s_cmp_eq_u32 s{sRole}, 0\ns_cbranch_scc1 LP_a\ns_barrier")
    stamp(a, 6)
    a(f"s_branch {'LF_end' if 'astamp' in OPT else 'LP_end'}\nLP_a:")
    a.c("role-A waves: first half of K while role B finishes, second half once it is published")
    a(f"""
    s_and_b32 s{sT4}, s{sHead}, 3
    s_lshl_b32 s{sT1}, s{sBr}, 2
    s_add_u32 s{sT4}, s{sT4}, s{sT1}
    s_lshl_b32 s{sT4}, s{sT4}, 7
    s_add_u32 s{sT4}, s{sT4}, {WS_C4}
    """)
    G = lambda i: LDS_BYTES - (11 - i) * 10240
    Lo = lambda i: RB + i * 10240
    assert SK == 3 and G(0) >= RB + 2 * BLK and G(3) >= RB + RING and Lo(3) <= RB + BLK + CH
    call = lambda l: a(f"s_call_b64 s[{sLnk}:{sLnk+1}], {l}")

    def tail_setup():
        for r in range(32, 40, 2):
            a(f"v_pk_mov_b32 {vr(pACC + r, 2)}, 0, 0")
        for r in range(32, 40, 2):
            a(f"v_pk_mov_b32 {vr(pACL + r, 2)}, 0, 0")
        for A in (pACC, pACL):
            a(f"v_mfma_f32_32x32x4_2b_bf16 {vr(A,32)}, {vr(pACC + 32, 2)}, {vr(pACC + 32, 2)}, 0")
        o_addr(a)
        out_addr(a)
        a("s_waitcnt vmcnt(0)")
        count_in(a, sOc, vP, vP + 1)
        stamp(a, 6)
        a(f"v_readfirstlane_b32 s{sT0}, v{vPS}\ns_cmp_ge_u32 s{sT0}, 16\ns_cbranch_scc1 LP_wo")
    poll_counter(a, vP + 4, f"s{sT4}", 16, 1, tail_setup)
    a("LP_wo:")
    a("s_setprio 0")
    stamp(a, 20)
    a("s_barrier")
    stamp(a, 21)
    call_dma(a, 1, 7)
    wo_dma(a, 0, 3, G(3))
    peek(a, 1)
    wo_dma(a, 3, 6, G(6))
    stamp(a, 22)
    a(f"s_waitcnt vmcnt(0)\nv_readfirstlane_b32 s{sT0}, v{vPS+2}\ns_cmp_ge_u32 s{sT0}, 16\ns_cbranch_scc1 LP_seen")
    poll_counter(a, vP + 4, f"s{sFc}", 16, 1)
    a("LP_seen:")
    call("LP_ldhi")
    call("LP_ldlo")
    a(f"s_add_u32 s{sFo}, s{sFo}, 20480\ns_add_u32 s{sFc}, s{sFc}, 128")
    stamp(a, 25)
    a("s_barrier")
    stamp(a, 5)
    mm = lambda l: a(f"s_call_b64 s[{sLnkM}:{sLnkM+1}], {l}")
    set_tab(a, [G(3), G(4), G(5), G(6), G(7), G(8), G(9), G(10), G(0), G(1)])
    mm("LP_pro")
    a("s_waitcnt vmcnt(0)")
    wo_dma(a, 6, 8, G(9))
    wo_dma(a, 8, 11, G(0))
    a("s_cmp_eq_u32 0, 1")
    mm("LP_hi")
    a(f"""
    s_and_b32 s{sT0}, s{sHead}, 3
    s_lshl_b32 s{sT1}, s{sBr}, 2
    s_add_u32 s{sT0}, s{sT0}, s{sT1}
    s_mul_i32 s{sT0}, s{sT0}, {WO_SLAB}
    s_add_u32 s{sT0}, s{sT0}, {WS_WO + 10240 * 11}
    s_waitcnt vmcnt(0) lgkmcnt(0)
    """)
    assert Lo(0) + 32768 <= RB + BLK + CH
    stamp(a, 26)
    a("s_barrier")
    stamp(a, 28)
    a(f"s_setprio {WOVEN_PRIO}\ns_cmp_eq_u32 0, 0")
    mm("LP_lo")
    stamp(a, 10)
    a("s_waitcnt vmcnt(4)")
    ready_mask(a)
    a("s_cbranch_scc0 LP_n1")
    call("LP_order")
    a(f"s_waitcnt vmcnt(5)\ns_barrier\ns_branch LP_n2\nLP_n1:\ns_waitcnt vmcnt(0)\ns_barrier\ns_mov_b32 s{sSpin}, {SPIN}\nLP_any:")
    peek(a, 3)
    a("s_waitcnt vmcnt(0)")
    ready_mask(a)
    a(f"s_cbranch_scc1 LP_got\ns_sleep {SLEEP}\ns_sub_u32 s{sSpin}, s{sSpin}, 1\ns_cbranch_scc0 LP_any\nLP_got:")
    call("LP_order")
    a("LP_n2:")
    stamp(a, 30)
    T = [G(2), G(3), G(4), G(5), G(6), G(7), G(8), Lo(0), Lo(1), Lo(2)]
    a(f"s_cmp_eq_u32 s{sPh}, 3\ns_cbranch_scc0 LP_n3")
    call("LP_ldlo")
    a(f"LP_n3:\ns_cmp_eq_u32 s{sDone}, 1")
    for r, x, y in zip(TAB, T, T[5:] + T[:5]):
        a(f"s_mov_b32 s{r}, {x}\ns_cmov_b32 s{r}, {y}")
    mm("LP_pro")
    a.c("each group keeps its own accumulators, so the result does not depend on the order of arrival")
    a("s_cbranch_scc0 LP_n4")
    for r in range(40):
        a(f"v_swap_b32 v{pACC + r}, v{pACL + r}")
    a("LP_n4:")
    a(f"s_waitcnt vmcnt(5)\ns_cmp_eq_u32 s{sPh}, 3\ns_cbranch_scc1 LP_n5\ns_waitcnt vmcnt(0)")
    peek(a, 3)
    a("LP_n5:")
    o_checked(a, "LP_ldhi", 0, False)
    stamp(a, 11)
    a(f"s_cmp_lg_u32 s{sPh}, 3")
    mm("LP_hi")
    stamp(a, 12)
    a(f"s_cmp_eq_u32 s{sPh}, 3\ns_cbranch_scc1 LP_n6")
    poll_counter(a, vP + 5, f"s{sFc}", 8, 3)
    call("LP_ldlo")
    a("LP_n6:")
    o_checked(a, "LP_ldlo", 5, True)
    stamp(a, 2)
    if common.STAMP and 'cyc' not in OPT: a(f"s_mov_b32 s{STAMP_S+17}, s{sSpin}")
    a("s_cmp_eq_u32 0, 1")
    mm("LP_lo")
    stamp(a, 16)
    out_store(a)
    a("LP_end:")
    if common.STAMP:
        a("s_waitcnt vmcnt(0)")
        stamp(a, 7)
        stamp_flush(a, 4)
    a("LF_end:\ns_endpgm")
    dma_sub(a)
    refill(a)
    publish_sub(a)
    order_sub(a)
    o_load_sub(a, "LP_ldhi", 0)
    o_load_sub(a, "LP_ldlo", 5)
    oproj_subs(a, G(3), Lo(0))
    repack_steps(a)
    slow_path(a)
    a("LF_codeend:")


def build():
    a = Asm()
    label = NAME + "_kernel"
    a('.amdgcn_target "amdgcn-amd-amdhsa--gfx950"\n.text')
    gen(a, label)
    return (HEADER + f"; @launch grid=(256,1,1) block=(512,1,1) lds={LDS_BYTES}\n" + a.text()
            + '.section .rodata,"a"\n.p2align 6\n' + kernel_desc(label, NVGPR, NVGPR, 100))


if __name__ == "__main__":
    import sys
    for x in sys.argv[2:]:
        if '=' in x:
            k, v = x.split('='); globals()[k] = int(v)
        else:
            OPT.add(x)
    if 'dbgstamp' in OPT:
        common.STAMP = True
    out = sys.argv[1] if len(sys.argv) > 1 else f"cdna_kernels/{NAME}.s"
    open(out, "w").write(build())
```

```python
from common import Asm, vr, sr, f32bits, kernel_head, kernel_desc, QSCALE, S, D, HEADER, NAME
import common

OPT = set()
SK = 3

TILE = 40960
IMG = 64 * TILE
WS_WO = 8 * IMG
WO_SLAB = 204800
WO_HALF = WO_SLAB // 2
WS_C1 = WS_WO + 8 * WO_SLAB
WS_C3 = WS_C1 + 256 * 128
WS_C4 = WS_C3 + 192 * 128
WS_END = WS_C1 + 512 * 128
WS_STAMP = WS_END + 65536

LDS_BYTES = 163840
GSL = 16384
CH = 11264
BLK = 2 * CH
RING = 3 * BLK
ONES = [90112, 0]
RB = 5120
RA = LDS_BYTES - RING
RPK = RB + RING
XFER = 81920
LCNT = 95232

sX, sWt, sWS, sOut, sDbg = 8, 12, 16, 20, 24
sPtr = 28
sW, sJ, sRole = 40, 41, 42
sHead, sQB, sTI, sTB = 43, 44, 45, 46
sT0, sT1, sT2, sT3, sT4 = 47, 48, 49, 50, 51
sIt, sSlot, sKB, sInc = 52, 53, 54, 55
sXo, sWo = 56, 57
sNext, sRb, sRe, sRem = 52, 53, 54, 55
sM, sMend = 56, 57
sOm, sExt = 58, 59
sSpin = 60
sBr = 61
sU0, sU1, sImg, sPh = 96, 97, 98, 99
sExp = 3
sDone = 36
sOb = 37
sOc = 97
sFo, sFc = 38, 39
sRp = 96
sE = 56
sLnk = 62
STAMP_S = 64

RP_AT = 3
TLB_AT = 2
BLEAD_PRIO = 0
LOFF = -1
SPIN = 1 << 15
SLEEP = 2


NST = 32


def stamp(a, i):
    if common.STAMP and not ('cyc' in OPT and 8 <= i <= 19):
        a(f"s_memrealtime s[4:5]\ns_waitcnt lgkmcnt(0)\ns_mov_b32 s{STAMP_S+i}, s4")


def stamp_cyc(a, i):
    if common.STAMP:
        a(f"s_memtime s[4:5]\ns_waitcnt lgkmcnt(0)\ns_mov_b32 s{STAMP_S+i}, s4")


def stamp_idx(a, base, sreg):
    if common.STAMP and 'cyc' in OPT:
        a(f"s_memtime s[4:5]\ns_mov_b32 m0, s{sreg}\ns_waitcnt lgkmcnt(0)\ns_movreld_b32 s{STAMP_S+base}, s4")


def stamp_flush(a, vt):
    if not common.STAMP:
        return
    a(f"""
    s_mov_b64 exec, 1
    s_lshl_b32 s{sT0}, s2, 3
    s_add_u32 s{sT0}, s{sT0}, s{sW}
    s_lshl_b32 s{sT0}, s{sT0}, 7
    s_add_u32 s{sT0}, s{sT0}, {WS_STAMP}
    v_mov_b32 v{vt+2}, 0
    """)
    for i in range(NST):
        a(f"v_mov_b32 v{vt}, s{STAMP_S+i}")
        a(f"buffer_store_dword v{vt}, v{vt+2}, s[{sWS}:{sWS+3}], s{sT0} offen offset:{4*i}")
    if 'dbgstamp' in OPT:
        a(f"s_cmp_eq_u32 s2, 100\ns_cbranch_scc0 LF_nodbg\ns_cmp_eq_u32 s{sJ}, 0\ns_cbranch_scc0 LF_nodbg\ns_lshl_b32 s{sT0}, s{sRole}, 5")
        for i in range(8):
            a(f"s_sub_u32 s{sT1}, s{STAMP_S+i}, s{STAMP_S}")
            a(f"v_mov_b32 v{vt}, s{sT1}")
            a(f"buffer_store_dword v{vt}, v{vt+2}, s[{sDbg}:{sDbg+3}], s{sT0} offen offset:{4*i}")
        a("LF_nodbg:")


def WSR():
    return f"s[{sWS}:{sWS+3}]"


_lbl = [0]


def poll(a, loads, expect, vtmp):
    _lbl[0] += 1
    L = f"LF_poll{_lbl[0]}"
    a(f"s_mov_b32 s{sSpin}, {SPIN}\n{L}:")
    for i, (vo, srd, so) in enumerate(loads):
        a(f"buffer_load_dword v{vtmp+i}, v{vo}, {srd}, {so} offen sc1")
    a("s_waitcnt vmcnt(0)")
    for i in range(1, len(loads)):
        a(f"v_min_u32 v{vtmp}, v{vtmp}, v{vtmp+i}")
    a(f"""
    v_cmp_gt_u32 vcc, {expect}, v{vtmp}
    s_cbranch_vccz {L}_ok
    s_sleep {SLEEP}
    s_sub_u32 s{sSpin}, s{sSpin}, 1
    s_cbranch_scc0 {L}
    {L}_ok:
    """)


def poll_counter(a, vo, so, expect, mask, meanwhile=None):
    _lbl[0] += 1
    L = f"LF_pc{_lbl[0]}"
    rd = (f"v_mov_b32 v{vPS}, 0\nbuffer_atomic_add v{vPS}, v{vo}, {WSR()}, {so} offen sc0 sc1" if 'ldpoll' not in OPT else
          f"buffer_load_dword v{vPS}, v{vo}, {WSR()}, {so} offen sc1")
    a(f"s_mov_b32 s{sSpin}, {SPIN}\ns_mov_b64 exec, {mask}")
    if meanwhile:
        a(f"{rd}\ns_mov_b64 exec, -1")
        meanwhile()
        a(f"s_mov_b64 exec, {mask}\ns_branch {L}_w")
    a(f"""
    {L}:
    {rd}
    {L}_w:
    s_waitcnt vmcnt(0)
    v_cmp_gt_u32 vcc, {expect}, v{vPS}
    s_cbranch_vccz {L}_ok
    s_sleep {SLEEP}
    s_sub_u32 s{sSpin}, s{sSpin}, 1
    s_cbranch_scc0 {L}
    {L}_ok:
    s_mov_b64 exec, -1
    """)


def count_in(a, soff, vz, vd):
    a(f"""
    v_mov_b32 v{vz}, 0
    v_mov_b32 v{vd}, 1
    s_mov_b64 exec, 1
    buffer_atomic_add v{vd}, v{vz}, {WSR()}, s{soff} offen sc1
    s_mov_b64 exec, -1
    """)


gXF = 0
gWF = 160
gWA = [184, 185, 186, 187]
gXA = 188
gT = 189
gACC = 192


PUB_BAR = 12
LAST_BAR = 16
PAIR_Q = 155
HIGH_Q = 144
CLR_AT = 0
CHK_BAR = 8
CNT_AT = 3
NFIRST = 5
MAXISS = 3
FAST_BAR = 7
PF_BAR = 3
ROT = 4


def stage_barriers():
    return list(range(0, 12)) + [LAST_BAR]


def gemm_schedule():
    items = [x for n in range(10) for x in (("X", n), ("W", n))] + [("W", n) for n in range(10, 20)]
    rel = lambda it: it[1] + (1 if it[0] == "X" else 2)
    free = list(range(10))
    slot, when, freed = {}, {}, set()
    k = 0
    for bar in range(-1, 12):
        for it in items:
            if it in slot and it not in freed and rel(it) <= bar:
                free.append(slot[it])
                freed.add(it)
        n = 0
        while k < len(items) and free and n < (NFIRST if bar == -1 else 10 if bar == 11 else MAXISS if bar >= FAST_BAR else 2) and bar != 10:
            slot[items[k]] = free.pop(0)
            when[items[k]] = bar
            k += 1
            n += 1
    assert k == len(items) and when[("W", LAST_BAR - 1)] <= 9 and when[("W", 17)] == 11
    assert max(rel(it) for it in items[:-3] if slot[it] == slot[("W", 17)]) <= 10
    order = [slot[("W", n)] for n in (15, 16, 17, 18, 19, 13, 14, 10, 11, 12)]
    assert sorted(order) == list(range(10)), order
    slot = {it: order.index(v) for it, v in slot.items()}
    return items, slot, when


LCNT0 = 2 * GSL


def lane_id(a, v):
    a(f"v_mbcnt_lo_u32_b32 v{v}, -1, 0\nv_mbcnt_hi_u32_b32 v{v}, -1, v{v}")


def drained(a):
    a(f"s_waitcnt vmcnt(0)\ns_mov_b64 exec, 1\nds_add_u32 v{gT+1}, v{gT+1} offset:{LCNT0 - 4}\ns_mov_b64 exec, -1\ns_mov_b32 s{sDone}, 1")


def clear_counters(a, L):
    a.c("wave 4 clears counter lines id and id + 256")
    a(f"""
    s_cmp_eq_u32 s{sJ}, 0
    s_cbranch_scc0 {L}_cleared
    s_lshl_b32 s{sT0}, s2, 7
    s_add_u32 s{sT0}, s{sT0}, {WS_C1}
    v_mbcnt_lo_u32_b32 v{gT+1}, -1, 0
    v_lshlrev_b32 v{gT+1}, 15, v{gT+1}
    v_mov_b32 v{gT+2}, 0
    s_mov_b64 exec, 3
    buffer_store_dword v{gT+2}, v{gT+1}, {WSR()}, s{sT0} offen sc1
    s_mov_b64 exec, -1
    {L}_cleared:
    """)


def gemm_body(a, vtype):
    L = "LG_v" if vtype else "LG_q"
    items, slot, when = gemm_schedule()
    tmp = gT + 2

    def kc(f):
        return ((f & 1, (f >> 1) & 7) if f >= 144 else ((f >> 3) & 1, f & 7))

    def rd(f, u):
        ks, c = kc(f)
        return f"ds_read_b64_tr_b16 {vr(gWF + 4 * (f % 6) + 2 * u, 2)}, v{tmp if c & 1 else gWA[c >> 1]} offset:{ks * 8192 + u * 1024}"

    def xor(f):
        ks, c = kc(f)
        return [f"v_xor_b32 v{tmp}, 32, v{gWA[c >> 1]}"] if c & 1 and not (f >= 144 and ks) else []

    def acc(c, t):
        return gACC + 8 * c + 4 * t if vtype else gACC + 16 * (c >> 1) + 8 * t + 4 * (c & 1)

    def mfma(f, t):
        ks, c = kc(f)
        x, w, d = vr(gXF + 16 * (f >> 4) + 8 * ks + 4 * t, 4), vr(gWF + 4 * (f % 6), 4), vr(acc(c, t), 4)
        A, B = (x, w) if vtype else (w, x)
        return f"v_mfma_f32_16x16x32_bf16 {d}, {A}, {B}, {'0' if f < 8 else d}"

    def xreads(n, between=""):
        d = gXF + 16 * n
        a(f"v_xor_b32 v{d + 8}, 64, v{gXA}")
        a(between)
        for ks, t in ((0, 0), (0, 1), (1, 1), (1, 0)):
            flip = ks ^ (t if vtype else 0)
            a(f"ds_read_b128 {vr(d + 8 * ks + 4 * t, 4)}, v{d + 8 if flip else gXA} offset:{t * (1024 if vtype else 2048)}")

    def first_reads():
        for f in range(6):
            for x in xor(f) + [rd(f, 1)] + ([rd(f, 0)] if f < 5 else []):
                a(x)

    def pack(C):
        A = gACC + 16 * C
        for j in range(8):
            a(f"v_cvt_pk_bf16_f32 v{gACC + 8*C + j}, v{A+2*j}, v{A+2*j+1}")
        if not vtype:
            for t in range(2):
                for r in range(2):
                    P = gACC + 8 * C + 4 * t + r
                    a(f"v_permlane16_swap_b32 v{P}, v{P+2}")

    def stores(C):
        for i in range(2):
            d = vr(gACC + 8*C + 4*i, 4)
            if vtype:
                a(f"buffer_store_dwordx4 {d}, v{gT}, {WSR()}, s{sE} offen offset:{(2 * C + i) * 256} sc1")
            else:
                a(f"buffer_store_dwordx4 {d}, v{gT}, {WSR()}, s{sE + (C >> 1)} offen offset:{(C & 1) * 2048 + i * 256} sc1")

    a("s_barrier")
    a(f"s_mov_b32 s{sDone}, 1")
    stamp(a, 1)
    xreads(0)
    first_reads()
    a(f"{L}_body:\ns_waitcnt lgkmcnt(9)")
    for f in range(160):
        n, r16 = f >> 4, f & 15
        if f + 6 < 160:
            for x in xor(f + 6):
                a(x)
        adds = {4: 0, 6: 1, 8: 2, 10: 3} if n < 9 else {7: 0, 9: 1, 10: 2, 11: 3}
        if r16 in adds:
            a(f"v_add_u32 v{gWA[adds[r16]]}, s{sInc}, v{gWA[adds[r16]]}")
        a(mfma(f, 0))
        hook = PUB_BAR <= n + 12 <= LAST_BAR
        if hook and r16 == 12:
            a.c("phase b: report once that this wave's stores have drained")
            a(f"s_getreg_b32 s{sT0}, hwreg(HW_REG_IB_STS, 0, 4)" if n + 12 < LAST_BAR else f"s_mov_b32 s{sT0}, 0")
        if hook and r16 == 13:
            a(f"s_or_b32 s{sT0}, s{sT0}, s{sDone}")
        if hook and r16 == 14:
            a(f"s_cbranch_scc0 {L}_da{n}\n{L}_db{n}:")
        if r16 == 0:
            a(f"s_cmp_eq_u32 s{sPh}, 1")
        if r16 == 1:
            a(f"s_mov_b32 s{sInc}, {((slot[('W', n + 1)] - slot[('W', n)]) * GSL) & 0xffffffff}")
        if r16 == 2 and n < 9:
            a(f"s_cmov_b32 s{sInc}, {((slot[('W', n + 11)] - slot[('W', n + 10)]) * GSL) & 0xffffffff}")
        if f == HIGH_Q:
            a("s_setprio 2")
        if f + 5 < 160:
            a(rd(f + 5, 0))
        a(mfma(f, 1))
        if f < 159:
            a(f"s_waitcnt lgkmcnt({2 * max(0, min(f + 5, 159) - (f + 1))})")
        if r16 == 10:
            if n + 11 in stage_barriers():
                a("s_barrier")
            a(f"s_cbranch_scc0 {L}_xa{n}\n{L}_xb{n}:")
        if f + 6 < 160:
            a(rd(f + 6, 1))
        if f == PAIR_Q:
            a(f"s_cbranch_scc0 {L}_np\ns_barrier\n{L}_np:")
        if f in (149, 153, 157):
            if f == 157:
                a("s_nop 1")
            pack((f - 149) // 4)
        if f in (150, 154, 158):
            stores((f - 150) // 4)
    a(f"s_cbranch_scc1 {L}_nopre")
    first_reads()
    a(f"{L}_nopre:\ns_nop 6")
    pack(3)
    stores(3)
    a(f"s_cbranch_scc1 LG_done")
    stamp(a, 2)
    next_units(a)
    step = 6 * 1024 if vtype else 5 * 4096
    a(f"s_add_u32 s{sE}, s{sE}, {step}\ns_add_u32 s{sE+1}, s{sE+1}, {step}\ns_mov_b32 s{sDone}, 0")
    if vtype:
        a(f"s_cmp_eq_u32 s{sTI}, 7\ns_cbranch_scc1 LG_idle")
    a(f"s_branch {L}_body")
    for n in range(10):
        a(f"{L}_xa{n}:")
        if n == CLR_AT:
            clear_counters(a, L)
        if n == CNT_AT:
            a.c("this workgroup has cleared its share of the counters: count it in")
            a(f"""
            s_waitcnt vmcnt(0)
            s_cmp_eq_u32 s{sW}, 4
            s_cbranch_scc0 {L}_nocount
            s_and_b32 s{sT0}, s2, 31
            s_lshl_b32 s{sT0}, s{sT0}, 2
            s_add_u32 s{sT0}, s{sT0}, 128
            v_mov_b32 v{gT+1}, 0
            v_mov_b32 v{gT+2}, 1
            s_mov_b64 exec, 1
            buffer_atomic_add v{gT+2}, v{gT+1}, s[{sDbg}:{sDbg+3}], s{sT0} offen sc1
            s_mov_b64 exec, -1
            {L}_nocount:
            v_mov_b32 v{gT+1}, 4
            """)
        if n + 1 < 10:
            dx = (slot[("X", n + 1)] - slot[("X", n)]) * GSL
            a(f"v_add_u32 v{gXA}, {dx & 0xffffffff}, v{gXA}")
            xreads(n + 1, "" if n + 11 in stage_barriers() else "s_barrier")
        else:
            a("s_barrier")
        a(f"s_branch {L}_xb{n}")
    for n in range(PUB_BAR - 12, LAST_BAR - 11):
        a(f"{L}_da{n}:")
        drained(a)
        a(f"s_branch {L}_db{n}")


def next_units(a):
    a(f"""
    s_mov_b32 s{sPh}, 1
    s_cmp_ge_u32 s{sTI}, 5
    s_cselect_b32 s{sT0}, 6, 5
    s_add_u32 s{sU0}, s{sU0}, s{sT0}
    s_add_u32 s{sU1}, s{sU1}, s{sT0}
    """)


def publish_sub(a):
    t = 240
    a(f"""
    LG_publish:
    v_cmp_lt_u32 vcc, 31, v0
    v_mov_b32 v{t+3}, s{sU0}
    v_mov_b32 v{t+4}, s{sU1}
    v_cndmask_b32 v{t+3}, v{t+3}, v{t+4}, vcc
    v_mul_u32_u24 v{t+4}, 205, v{t+3}
    v_lshrrev_b32 v{t+4}, 11, v{t+4}
    v_mul_u32_u24 v{t+5}, 10, v{t+4}
    v_sub_u32 v{t+3}, v{t+3}, v{t+5}
    v_lshlrev_b32 v{t+3}, 3, v{t+3}
    v_and_b32 v{t+5}, 31, v0
    v_lshl_add_u32 v{t+4}, v{t+5}, 2, v{t+4}
    v_lshlrev_b32 v{t+4}, 7, v{t+4}
    v_mul_u32_u24 v{t+5}, 5, v{t+5}
    v_lshrrev_b32 v{t+5}, 1, v{t+5}
    v_add_u32 v{t+5}, 2, v{t+5}
    v_sub_u32 v{t+5}, v{t+5}, v{t+3}
    v_cmp_gt_u32 vcc, 10, v{t+5}
    v_mov_b32 v{t+1}, 1
    s_lshl_b32 s{sT1}, s{sBr}, 14
    s_add_u32 s{sT1}, s{sT1}, {WS_C1}
    s_mov_b64 exec, vcc
    buffer_atomic_add v{t+1}, v{t+4}, {WSR()}, s{sT1} offen sc1
    s_mov_b64 exec, -1
    s_setpc_b64 s[{sLnk}:{sLnk+1}]
    """)


def gemm_compute(a):
    items, slot, when = gemm_schedule()
    i, g, t0, t1 = 8, 9, 10, 11
    a(f"""
    v_and_b32 v{i}, 15, v0
    v_lshrrev_b32 v{g}, 4, v0
    v_lshrrev_b32 v{t0}, 2, v0
    v_and_b32 v{t0}, 3, v{t0}
    v_lshl_add_u32 v{t1}, v{g}, 3, v{t0}
    v_lshlrev_b32 v{t1}, 8, v{t1}
    v_lshl_add_u32 v{t1}, v{t0}, 6, v{t1}
    v_and_b32 v{t0}, 16, v0
    v_lshl_add_u32 v{t1}, v{t0}, 1, v{t1}
    v_and_b32 v{t0}, 3, v0
    v_lshl_add_u32 v{t1}, v{t0}, 3, v{t1}
    v_add_u32 v{gWA[0]}, {slot[("W", 0)] * GSL}, v{t1}
    v_xor_b32 v{gWA[1]}, 64, v{gWA[0]}
    v_xor_b32 v{gWA[2]}, 128, v{gWA[0]}
    v_xor_b32 v{gWA[3]}, 192, v{gWA[0]}
    s_lshl_b32 s{sT1}, s{sJ}, 12
    s_add_u32 s{sT1}, s{sT1}, {slot[("X", 0)] * GSL}
    s_lshl_b32 s{sT0}, s{sTB}, 2
    s_add_u32 s{sT0}, s{sT0}, s{sJ}
    s_mul_i32 s{sT0}, s{sT0}, {TILE}
    s_add_u32 s{sT0}, s{sT0}, s{sImg}
    s_cmp_ge_u32 s{sTI}, 5
    s_cbranch_scc1 LG_vtype
    v_lshrrev_b32 v{t0}, 1, v{i}
    v_xor_b32 v{t0}, v{t0}, v{g}
    v_lshlrev_b32 v{t0}, 4, v{t0}
    v_lshl_add_u32 v{t0}, v{i}, 7, v{t0}
    v_add_u32 v{gXA}, s{sT1}, v{t0}
    v_and_b32 v{t0}, 1, v{g}
    v_lshlrev_b32 v{t0}, 10, v{t0}
    v_lshrrev_b32 v{t1}, 1, v{g}
    v_lshl_add_u32 v{t0}, v{t1}, 9, v{t0}
    v_lshl_add_u32 v{gT}, v{i}, 4, v{t0}
    s_lshl_b32 s{sE}, s{sU0}, 12
    s_lshl_b32 s{sE+1}, s{sU1}, 12
    s_cmp_ge_u32 s{sU0}, 10
    s_cselect_b32 s{sT3}, {IMG - 40960}, 0
    s_add_u32 s{sE}, s{sE}, s{sT3}
    s_cmp_ge_u32 s{sU1}, 10
    s_cselect_b32 s{sT3}, {IMG - 40960}, 0
    s_add_u32 s{sE+1}, s{sE+1}, s{sT3}
    s_add_u32 s{sE}, s{sE}, s{sT0}
    s_add_u32 s{sE+1}, s{sE+1}, s{sT0}
    """)
    gemm_body(a, False)
    a.c("V tiles: MFMA row i of token tile t is token 16 (i >> 3) + 8 t + (i & 7)")
    a(f"""
    LG_vtype:
    v_and_b32 v{t1}, 7, v{i}
    v_lshrrev_b32 v{t0}, 1, v{t1}
    v_xor_b32 v{t0}, v{t0}, v{g}
    v_lshlrev_b32 v{t0}, 4, v{t0}
    v_lshl_add_u32 v{t0}, v{t1}, 7, v{t0}
    v_and_b32 v{t1}, 8, v{i}
    v_lshl_add_u32 v{t0}, v{t1}, 8, v{t0}
    v_add_u32 v{gXA}, s{sT1}, v{t0}
    v_mul_u32_u24 v{t0}, 10240, v{g}
    v_lshl_add_u32 v{gT}, v{i}, 4, v{t0}
    s_lshl_b32 s{sE}, s{sU0}, 10
    s_add_u32 s{sE}, s{sE}, {2 * IMG - 20480}
    s_add_u32 s{sE}, s{sE}, s{sT0}
    """)
    gemm_body(a, True)


def touch_pages(a):
    a.c("every MiB that is first used later is touched once per group of workgroups, so that its translation is at hand")
    a(f"""
    s_lshr_b32 s{sT0}, s2, 3
    s_lshl_b32 s{sT0}, s{sT0}, 20
    s_cmp_eq_u32 s{sJ}, 1
    s_cbranch_scc0 LL_t1
    s_min_u32 s{sT1}, s{sT0}, {WS_END - 4}
    s_load_dword s6, s[{sWS}:{sWS+1}], s{sT1}
    LL_t1:
    s_cmp_eq_u32 s{sJ}, 2
    s_cbranch_scc0 LL_t2
    s_min_u32 s{sT1}, s{sT0}, {S * 2 * D * 2 - 4}
    s_load_dword s7, s[{sPtr+4}:{sPtr+5}], s{sT1}
    s_min_u32 s{sT1}, s{sT0}, {D * D * 2 - 4}
    s_load_dword s7, s[{sPtr+2}:{sPtr+3}], s{sT1}
    s_load_dword s6, s[{sPtr+6}:{sPtr+7}], 0
    LL_t2:
    """)


def gemm_loader(a):
    items, slot, when = gemm_schedule()
    vE, vO, vWs, vCnt, vWs2 = 230, 231, 232, 233, 235
    sKX, sKW = sKB, sSlot
    XM = '' if 'noxnt' in OPT else 'nt '
    WM = 'nt ' if 'wnt' in OPT else ''
    a(f"""
    v_lshrrev_b32 v5, 3, v0
    v_mul_u32_u24 v5, 1280, v5
    v_and_b32 v6, 7, v0
    v_lshrrev_b32 v7, 4, v0
    v_xor_b32 v6, v6, v7
    v_lshlrev_b32 v6, 4, v6
    v_add_u32 v{vE}, v5, v6
    v_xor_b32 v6, 64, v6
    v_add_u32 v{vO}, v5, v6
    v_add_u32 v{vO}, {8 * 1280 - 1024}, v{vO}
    v_lshrrev_b32 v5, 2, v0
    v_and_b32 v5, 3, v5
    v_xor_b32 v5, v5, v7
    v_lshrrev_b32 v6, 1, v5
    s_sub_u32 s{sT0}, s{sU1}, s{sU0}
    s_lshl_b32 s{sT0}, s{sT0}, 7
    v_mul_u32_u24 v6, s{sT0}, v6
    v_and_b32 v5, 1, v5
    v_lshl_add_u32 v5, v5, 6, v6
    v_and_b32 v6, 3, v0
    v_lshl_add_u32 v5, v6, 4, v5
    v_mul_u32_u24 v6, 3840, v7
    v_add_u32 v{vWs}, v5, v6
    v_xor_b32 v{vWs2}, 32, v{vWs}
    s_lshl_b32 s{sXo}, s{sTB}, 2
    s_add_u32 s{sXo}, s{sXo}, s{sJ}
    s_mul_i32 s{sXo}, s{sXo}, {32 * 1280}
    s_mul_i32 s{sWo}, s{sJ}, {16 * 3840}
    s_lshl_b32 s{sT0}, s{sU0}, 7
    s_add_u32 s{sWo}, s{sWo}, s{sT0}
    s_lshl_b32 s{sInc}, s{sJ}, 12
    """)
    a.c("workgroups that share a tile start at different k-blocks, so that they fill the L2 together")
    if ROT == 2:
        a(f"s_xor_b32 s{sKX}, s{sTB}, s{sTI}\ns_and_b32 s{sKX}, s{sKX}, 1\ns_mul_i32 s{sKX}, s{sKX}, 5")
    elif ROT == 3:
        a(f"""
        s_and_b32 s{sKX}, s{sTB}, 3
        s_add_u32 s{sKX}, s{sKX}, s{sTI}
        s_mul_i32 s{sT0}, s{sKX}, 43
        s_lshr_b32 s{sT0}, s{sT0}, 7
        s_mul_i32 s{sT0}, s{sT0}, 3
        s_sub_u32 s{sKX}, s{sKX}, s{sT0}
        s_mul_i32 s{sKX}, s{sKX}, 7
        s_lshr_b32 s{sKX}, s{sKX}, 1
        """)
    elif ROT == 4:
        a(f"""
        s_add_u32 s{sKX}, s{sTB}, s{sTI}
        s_and_b32 s{sKX}, s{sKX}, 3
        s_mul_i32 s{sKX}, s{sKX}, 5
        s_add_u32 s{sKX}, s{sKX}, 1
        s_lshr_b32 s{sKX}, s{sKX}, 1
        """)
    elif ROT:
        a(f"""
        s_and_b32 s{sKX}, s{sTB}, 3
        s_mul_i32 s{sKX}, s{sKX}, 5
        s_add_u32 s{sKX}, s{sKX}, 1
        s_lshr_b32 s{sKX}, s{sKX}, 1
        s_add_u32 s{sKX}, s{sKX}, s{sTI}
        s_cmp_ge_u32 s{sKX}, 10
        s_cselect_b32 s{sT0}, 10, 0
        s_sub_u32 s{sKX}, s{sKX}, s{sT0}
        """)
    else:
        a(f"s_and_b32 s{sKX}, s{sTI}, 1")
    a(f"s_mov_b32 s{sKW}, s{sKX}\ns_mov_b32 s{sIt}, 0")
    a(f"""
    s_mov_b32 s{sX+2}, {S * D * 2}
    s_mov_b32 s{sX+3}, 0x00020000
    s_mov_b32 s{sWt+2}, {D * 3 * D * 2}
    s_mov_b32 s{sWt+3}, 0x00020000
    s_waitcnt lgkmcnt(0)
    s_and_b32 s{sX+1}, s{sX+1}, 0xffff
    s_mov_b32 s{sWt}, s{sPtr}
    s_and_b32 s{sWt+1}, s{sPtr+1}, 0xffff
    """)
    if 'tlb2' in OPT:
        a.c("start the address translations of the pages of W (and the other end of X) together with the first X loads")
        a(f"""
        s_mul_i32 s{sT0}, s{sJ}, {(D * 3 * D * 2 - 4) // 3 // 4 * 4}
        s_buffer_load_dword s6, s[{sWt}:{sWt+3}], s{sT0}
        """)
    a(f"""
    s_branch LL_go
    """)
    a(f"""
    LL_X:
    s_lshl_b32 s{sT0}, s{sKX}, 7
    s_add_u32 s{sT0}, s{sT0}, s{sXo}
    s_add_u32 s{sKX}, s{sKX}, 1
    buffer_load_dwordx4 v{vE}, s[{sX}:{sX+3}], s{sT0} offen {XM}lds
    buffer_load_dwordx4 v{vO}, s[{sX}:{sX+3}], s{sT0} offen offset:1024 {XM}lds
    s_add_u32 m0, m0, 2048
    s_add_u32 s{sT0}, s{sT0}, {16 * 1280}
    buffer_load_dwordx4 v{vE}, s[{sX}:{sX+3}], s{sT0} offen {XM}lds
    buffer_load_dwordx4 v{vO}, s[{sX}:{sX+3}], s{sT0} offen offset:1024 {XM}lds
    s_cmp_eq_u32 s{sKX}, 10
    s_cselect_b32 s{sKX}, 0, s{sKX}
    s_setpc_b64 s[{sLnk}:{sLnk+1}]
    LL_Wskip:
    s_waitcnt vmcnt(0)
    s_setpc_b64 s[{sLnk}:{sLnk+1}]
    LL_W:
    s_cmp_eq_u32 s{sIt}, 1
    s_cbranch_scc1 LL_Wskip
    s_mul_i32 s{sT1}, s{sKW}, {64 * 3840}
    s_add_u32 s{sT1}, s{sT1}, s{sWo}
    s_add_u32 s{sKW}, s{sKW}, 1
    """)
    for p in range(4):
        a(f"buffer_load_dwordx4 v{vWs2 if p >= 2 else vWs}, s[{sWt}:{sWt+3}], s{sT1} offen {WM}lds")
        if p < 3:
            a(f"s_add_u32 m0, m0, 1024")
            a(f"s_add_u32 s{sT1}, s{sT1}, {4 * 3840}")
    a(f"""
    s_cmp_eq_u32 s{sKW}, 10
    s_cselect_b32 s{sKW}, 0, s{sKW}
    s_setpc_b64 s[{sLnk}:{sLnk+1}]
    """)
    a("LL_go:")
    delay(a, 2)
    stamp(a, 13)
    q = []

    def issue(it):
        if it == ("W", 10):
            a(f"s_cmp_ge_u32 s{sTI}, 5\ns_cselect_b32 s{sT0}, {6 * 128}, s{sC640}\ns_add_u32 s{sWo}, s{sWo}, s{sT0}")
            a(f"s_cmp_eq_u32 s{sTI}, 7\ns_cselect_b32 s{sIt}, 1, 0")
        a(f"s_add_u32 m0, s{sInc}, {slot[it] * GSL}\ns_call_b64 s[{sLnk}:{sLnk+1}], LL_{it[0]}")
        q.extend([it] * 4)

    def wait_for(names):
        last = max(i for i, x in enumerate(q) if x in names)
        a(f"s_waitcnt vmcnt({min(63, len(q) - 1 - last)})")

    sC640 = sT4
    first = [it for it in items if when[it] == -1]
    for i, it in enumerate(first):
        if i == TLB_AT:
            touch_pages(a)
        issue(it)
    stamp(a, 14)
    vPf = 234
    bars = stage_barriers()
    stamp(a, 15)
    for bi, bar in enumerate(bars):
        upto = bars[bi + 1] - 1 if bi + 1 < len(bars) else 19
        wait_for([("X", bar), ("W", upto)] + (["cnt"] if bar == 11 else []))
        if bar == 11:
            if common.STAMP: a(f"s_mov_b32 s{STAMP_S+22}, 0")
            a.c("all counters must have been cleared before the first one is used")
            a(f"v_cmp_gt_u32 vcc, 8, v{vCnt}\ns_cbranch_vccz LL_cnt_ok")
            if common.STAMP: a(f"s_mov_b32 s{STAMP_S+22}, 1")
            poll(a, [(vP + 5, f"s[{sDbg}:{sDbg+3}]", "0")], 8, vPS)
            a("LL_cnt_ok:")
        a("s_barrier")
        if bar not in (2, 3, 4, 5, 6, 7, 8, 9): stamp(a, 8 + min(bar, 15))
        if bar == 11:
            attn_scalars(a)
            attn_vectors(a)
            repack_setup(a)
            a.c("wave 0 publishes the phase-a tile once its four storing waves have reported")
            a(f"""
            v_mov_b32 v{vP+2}, {LCNT0}
            s_cmp_lg_u32 s{sJ}, 0
            s_cbranch_scc1 LL_pub
            s_mov_b32 s{sSpin}, {SPIN * 8}
            LL_try:
            ds_read_b32 v{vP}, v{vP+2}
            s_waitcnt lgkmcnt(0)
            v_readfirstlane_b32 s{sT0}, v{vP}
            s_cmp_eq_u32 s{sT0}, 16
            s_cbranch_scc1 LL_try_go
            s_sub_u32 s{sSpin}, s{sSpin}, 1
            s_cbranch_scc0 LL_try
            LL_try_go:
            s_call_b64 s[{sLnk}:{sLnk+1}], LG_publish
            """)
            stamp(a, 27)
            a("LL_pub:")
        a(f"s_mov_b32 s{sC640}, 640")
        for it in items:
            if when[it] == bar:
                issue(it)
        if bar == 11:
            lead_prepare(a)
        if bar == 10:
            a(f"v_mov_b32 v{vP}, 0\nv_mov_b32 v{vP+2}, {LCNT0}\nds_write_b32 v{vP+2}, v{vP}\ns_waitcnt lgkmcnt(0)")
        if bar + 10 == TLB_AT:
            touch_pages(a)
        if bar == PF_BAR:
            a.c("one load per 128-B line of the phase-b columns of five weight rows brings them on chip ahead of use")
            a(f"""
            s_lshr_b32 s{sT0}, s2, 3
            s_lshl_b32 s{sT0}, s{sT0}, 2
            s_and_b32 s{sT1}, s2, 3
            s_add_u32 s{sT0}, s{sT0}, s{sT1}
            s_mul_i32 s{sT0}, s{sT0}, {5 * 3840}
            s_mul_i32 s{sT1}, s{sJ}, 19
            v_add_u32 v8, s{sT1}, v0
            v_min_u32 v8, 74, v8
            v_mul_u32_u24 v9, 205, v8
            v_lshrrev_b32 v9, 10, v9
            v_mul_u32_u24 v9, 5, v9
            v_add3_u32 v9, v9, v8, 5
            v_lshlrev_b32 v{vPf}, 7, v9
            s_mov_b64 exec, 0x7ffff
            buffer_load_dword v{vPS}, v{vPf}, s[{sWt}:{sWt+3}], s{sT0} offen
            s_mov_b64 exec, -1
            """)
            q.append("pf")
        if bar == CHK_BAR:
            common_setup(a)
            a(f"v_lshlrev_b32 v{vP+5}, 2, v0\nv_or_b32 v{vP+5}, 128, v{vP+5}")
            a(f"buffer_load_dword v{vCnt}, v{vP+5}, s[{sDbg}:{sDbg+3}], 0 offen sc1")
            q.append("cnt")
    a("s_branch LA_lead")


vKA, vVA, vT0, vT1 = 1, 2, 3, 14
Qm = [4, 8]
Qe = 12
vL16 = 15
Km = [16, 20]
Ke = 24
Vb = [[28, 32], [36, 40]]
vVbase, vVflag, vE16, vVG = 44, 45, 46, 47
NM = 48
SB = [80, 112]
OA = [144, 160]
vD = 176
vP = 182
vPS = 188
vVB2 = 248
vIdx, vK16 = 192, 193
NVGPR = 256


def mfma32(d, a_, b, c):
    return f"v_mfma_f32_32x32x16_bf16 {vr(d,16)}, {vr(a_,4)}, {vr(b,4)}, {c}"


def mfma2b(d, ke_tile, c):
    return (f"v_mfma_f32_32x32x4_2b_bf16 {vr(d,32)}, {vr(Ke + 2 * (ke_tile >> 1), 2)}, {vr(Qe,2)}, {c}"
            f" cbsz:1 abid:{ke_tile & 1}")


def pv(o, v, p):
    return f"v_smfmac_f32_32x32x32_bf16 {vr(o,16)}, {vr(v,4)}, {vr(p,8)}, v{vIdx}"


POS = [2, 6, 14, 18, 22, 26, 30]


def tile_iter(a, ii, half=1):
    par = ii & 1
    X, Y = SB[par], SB[par ^ 1]
    Vc, Vn = Vb[par], Vb[par ^ 1]
    Kc, Kn = Km[par ^ 1], Km[par]
    t1 = (ii + 1) % 4
    t2 = (ii + 2) % 4
    kch = CH if (half == 0) == (ii >= 2) else 0
    rv0 = f"ds_read_b128 {vr(Vn[0],4)}, v{vVA} offset:{t1 * 1280}"
    rv1 = f"ds_read_b128 {vr(Vn[1],4)}, v{vVA} offset:{t1 * 1280 + 640}"
    rk = f"ds_read_b128 {vr(Kn,4)}, v{vKA} offset:{kch + 2048 + t2 * 1024}"
    rke = f"ds_read2st64_b64 {vr(Ke,4)}, v{vKA} offset0:{kch // 512} offset1:{kch // 512 + 2}"
    g = [[pv(OA[1], Vn[1], Y + 24), rv0],
         [mfma2b(Y, t1, vr(NM, 32))],
         [pv(OA[0], Vc[0], X), rv1],
         [pv(OA[0], Vc[1], X + 8), rk],
         [mfma32(Y, Kc, Qm[0], vr(Y, 16))],
         [mfma32(Y + 16, Kc, Qm[1], vr(Y + 16, 16))],
         [pv(OA[1], Vc[0], X + 16), "s_waitcnt lgkmcnt(0)"]]
    late = []
    if ii == 0:
        g[4].append(f"s_add_u32 s{sNext}, s{sNext}, {CH}")
    if ii == 2:
        g[4].append(rke)
        late = [f"v_mad_u32_u24 v{vVA}, v{vVflag}, s{sNext}, v{vVbase}"]
    if half == 0:
        if ii == 1:
            g[4].append(f"s_cmp_eq_u32 s{sM}, s{sRp}")
            g[5] += ["s_cbranch_scc1 LR_step", "LA_bar:"]
        if ii == 2 and 'noprio' not in OPT:
            g[5].append("s_setprio 0")
        if ii == 3:
            g[4].append(f"s_bitcmp1_b32 s{sMend}, s{sM}")
            g[6][1] = "s_waitcnt vmcnt(0) lgkmcnt(0)"
            g[6].append("s_barrier")
            if common.STAMP and 'cyc' in OPT:
                g[6] += [f"s_memtime s[{STAMP_S+28}:{STAMP_S+29}]"]
            if 'noprio' not in OPT:
                g[6].append("s_setprio 1")
            g[6] += ["s_cbranch_scc1 LA_refill", "LA_back:"]
    else:
        if ii == 0:
            g[5].append(f"s_cmp_eq_u32 s{sNext}, s{sRe}")
            if common.STAMP and 'cyc' in OPT:
                g[6] += [f"s_mov_b32 m0, s{sM}", "s_nop 0", f"s_movreld_b32 s{STAMP_S+8}, s{STAMP_S+28}"]
        if ii == 1:
            g[4].append(f"s_cselect_b32 s{sNext}, s{sRb}, s{sNext}")
            g[5].append(f"s_add_u32 s{sM}, s{sM}, 1")
            late = [f"v_add_u32 v{vKA}, s{sNext}, v{vK16}"]
        if ii == 3:
            g[5].append(f"s_sub_u32 s{sRem}, s{sRem}, 1")
    assert POS[2] >= 10 and POS[3] >= 18 and POS[6] >= 26 and POS[0] >= 2
    assert (POS[4] - POS[1]) + 4 >= 18 and (32 - POS[4]) + 3 >= 12
    ins = dict(zip(POS, g))
    for p in range(32):
        for x in ins.get(p, []):
            a(x)
        a(f"v_exp_f32 v{X+p}, v{X+p}")
        if p == 30:
            for x in late:
                a(x)


def rowmax(a, X, out0, out1):
    for base, o in ((X, out0), (X + 16, out1)):
        a(f"v_max3_f32 v{o}, v{base}, v{base+1}, v{base+2}")
        for r in range(3, 15, 2):
            a(f"v_max3_f32 v{o}, v{o}, v{base+r}, v{base+r+1}")
        a(f"v_max_f32 v{o}, v{o}, v{base+15}")


def cross_half_max(a, r, tmp):
    a(f"v_mov_b32 v{tmp}, v{r}\ns_nop 1\nv_permlane32_swap_b32 v{tmp}, v{r}\ns_nop 1\nv_max_f32 v{r}, v{r}, v{tmp}")


def fill_nm(a, m0, m1):
    for r in range(16):
        a(f"v_sub_f32 v{NM+r}, 0, v{m0}")
    for r in range(16):
        a(f"v_sub_f32 v{NM+16+r}, 0, v{m1}")


def attn_scalars(a):
    a.c("head offsets: main octs start at (5g+1)>>1; the ext quad shares an oct with the neighbouring head;")
    a.c("arrivals expected per kind: 16 token blocks x number of 64-column units that hold the head")
    a(f"""
    s_mul_i32 s{sOm}, s{sHead}, 5
    s_add_u32 s{sOm}, s{sOm}, 1
    s_lshr_b32 s{sOm}, s{sOm}, 1
    s_lshl_b32 s{sOm}, s{sOm}, 9
    s_and_b32 s{sT0}, s{sHead}, 1
    s_mov_b32 s{sT1}, 1024
    s_cselect_b32 s{sT1}, {(-512 + 8) & 0xffffffff}, s{sT1}
    s_add_u32 s{sExt}, s{sOm}, s{sT1}
    s_min_u32 s{sT0}, s{sOm}, s{sExt}
    s_add_u32 s{sT2}, s{sOm}, 512
    s_max_u32 s{sT1}, s{sExt}, s{sT2}
    s_lshr_b32 s{sT0}, s{sT0}, 12
    s_lshr_b32 s{sT1}, s{sT1}, 12
    s_cmp_eq_u32 s{sT0}, s{sT1}
    s_cselect_b32 s{sExp}, 16, 32
    """)


def attn_vectors(a):
    a(f"""
    s_and_b32 s{sT0}, s{sHead}, 1
    v_lshlrev_b32 v{vL16}, 4, v0
    v_lshrrev_b32 v{vT0}, 5, v0
    v_mul_u32_u24 v{vT1}, {TILE}, v{vT0}
    v_and_b32 v{vP}, 31, v0
    v_lshl_add_u32 v{vE16}, v{vP}, 4, v{vT1}
    """)
    a.c("V rows: 0..15 main dims, 16..19 ext dims, 20 and 24 ones, the others zero (address past the allocation)")
    a(f"""
    s_lshl_b32 s{sT0}, s{sT0}, 2
    v_and_b32 v{vP+1}, 3, v0
    v_and_b32 v{vP+2}, 4, v0
    v_lshl_add_u32 v{vP+1}, v{vP+2}, 1, v{vP+1}
    v_and_b32 v{vP+2}, 8, v0
    v_lshrrev_b32 v{vP+2}, 1, v{vP+2}
    v_add3_u32 v{vP+1}, v{vP+1}, v{vP+2}, s{sT0}
    s_lshl_b32 s{sT0}, s{sT0}, 2
    v_subrev_u32 v{vP+2}, s{sT0}, v{vP}
    v_cmp_gt_u32 vcc, 16, v{vP}
    v_mul_u32_u24 v{vT1}, 10240, v{vT0}
    v_mul_u32_u24 v{vT0}, 320, v{vT0}
    v_cndmask_b32 v{vP+1}, v{vP+2}, v{vP+1}, vcc
    v_lshlrev_b32 v{vP+1}, 4, v{vP+1}
    v_add_u32 v{vVG}, v{vP+1}, v{vT1}
    v_add_u32 v{vVbase}, v{vP+1}, v{vT0}
    v_add_u32 v{vVbase}, 6144, v{vVbase}
    v_cmp_gt_u32 vcc, 20, v{vP}
    v_mov_b32 v{vP+1}, 0x100000
    v_mov_b32 v{vP+2}, {ONES[0]}
    v_cndmask_b32 v{vVflag}, 0, 1, vcc
    v_cndmask_b32 v{vVbase}, v{vP+1}, v{vVbase}, vcc
    v_cmp_eq_u32 vcc, 20, v{vP}
    v_cmp_eq_u32 s[{sT3}:{sT4}], {20 if 'one1' in OPT else 24}, v{vP}
    s_or_b64 vcc, vcc, s[{sT3}:{sT4}]
    v_mov_b32 v{vP+1}, {ONES[1]}
    s_nop 0
    v_cndmask_b32 v{vVB2}, v{vVbase}, v{vP+1}, vcc
    v_cndmask_b32 v{vVbase}, v{vVbase}, v{vP+2}, vcc
    """)
    a.c("DMA source offsets: even waves load K pieces, odd waves V pieces")
    a(f"""
    s_and_b32 s{sT0}, s{sJ}, 1
    s_cbranch_scc1 LA_dv
    v_add_u32 v{vD}, s{sExt}, v{vE16}
    v_add_u32 v{vD+1}, {2 * TILE}, v{vD}
    v_add_u32 v{vD+2}, s{sOm}, v{vL16}
    v_add_u32 v{vD+3}, {TILE}, v{vD+2}
    v_add_u32 v{vD+4}, {TILE}, v{vD+3}
    v_add_u32 v{vD+5}, {TILE}, v{vD+4}
    s_branch LA_dd
    LA_dv:
    s_mul_i32 s{sT0}, s{sHead}, 320
    s_add_u32 s{sT0}, s{sT0}, {IMG}
    """)
    for p in range(5):
        a(f"""
        v_add_u32 v{vP}, {64 * p}, v0
        v_mul_u32_u24 v{vP+1}, 3277, v{vP}
        v_lshrrev_b32 v{vP+1}, 16, v{vP+1}
        v_mul_u32_u24 v{vP+2}, 20, v{vP+1}
        v_sub_u32 v{vP+2}, v{vP}, v{vP+2}
        v_mul_u32_u24 v{vP+1}, 10240, v{vP+1}
        v_lshl_add_u32 v{vP+1}, v{vP+2}, 4, v{vP+1}
        v_add_u32 v{vD+p}, s{sT0}, v{vP+1}
        """)
    a(f"""
    v_mov_b32 v{vD+5}, v{vD+4}
    LA_dd:
    v_lshlrev_b32 v{vP+3}, 7, v0
    v_mov_b32 v{vP+4}, 0
    """)


def vectors_put(a):
    a(f"""
    s_and_b32 s{sT0}, s{sJ}, 1
    s_lshl_b32 s{sT0}, s{sT0}, 12
    s_add_u32 s{sT0}, s{sT0}, {XFER}
    v_add_u32 v{vT0}, s{sT0}, v{vL16}
    v_mov_b32 v20, v{vVB2}
    v_mov_b32 v21, v{vVflag}
    v_mov_b32 v22, v{vE16}
    v_mov_b32 v23, v{vVG}
    ds_write_b128 v{vT0}, v[20:23]
    ds_write_b128 v{vT0}, {vr(vD,4)} offset:1024
    ds_write_b64 v{vT0}, {vr(vD+4,2)} offset:2048
    """)


def vectors_get(a):
    lane_id(a, 0)
    a(f"""
    s_and_b32 s{sT0}, s{sJ}, 1
    s_lshl_b32 s{sT0}, s{sT0}, 12
    s_add_u32 s{sT0}, s{sT0}, {XFER}
    v_lshlrev_b32 v{vL16}, 4, v0
    v_add_u32 v{vT0}, s{sT0}, v{vL16}
    ds_read_b128 {vr(vVbase,4)}, v{vT0}
    ds_read_b128 {vr(vD,4)}, v{vT0} offset:1024
    ds_read_b64 {vr(vD+4,2)}, v{vT0} offset:2048
    v_lshlrev_b32 v{vP+3}, 7, v0
    """)
    attn_scalars(a)
    a("s_waitcnt lgkmcnt(0)")


def dma_sub(a):
    a(f"""
    LA_dma:
    s_add_u32 s{sT2}, s{sT1}, s{sQB if 'kvrot' in OPT else sHead}
    s_and_b32 s{sT2}, s{sT2}, 7
    s_lshl_b32 s{sT2}, s{sT2}, 1
    s_lshr_b32 s{sT3}, s{sJ}, 1
    s_add_u32 s{sT2}, s{sT2}, s{sT3}
    s_mul_i32 s{sT2}, s{sT2}, {4 * TILE}
    s_lshl_b32 s{sT4}, s{sJ}, 1
    s_and_b32 s{sT4}, s{sT4}, 2
    s_lshr_b32 s{sT4}, 20480, s{sT4}
    s_mul_i32 s{sT4}, s{sT4}, s{sT0}
    s_add_u32 s{sT2}, s{sT2}, s{sT4}
    s_add_u32 s{sT2}, s{sT2}, s{sImg}
    s_add_u32 s{sT2}, s{sT2}, {IMG}
    s_sub_u32 s{sT1}, s{sT1}, s{sT0}
    s_add_u32 s{sT1}, s{sT1}, 1
    s_mul_i32 s{sT4}, s{sT1}, 43
    s_lshr_b32 s{sT4}, s{sT4}, 7
    s_mul_i32 s{sT4}, s{sT4}, 3
    s_sub_u32 s{sT1}, s{sT1}, s{sT4}
    s_lshl_b32 s{sT1}, s{sT1}, 1
    s_add_u32 s{sT1}, s{sT1}, s{sT3}
    s_mul_i32 s{sT1}, s{sT1}, {CH}
    s_mul_i32 s{sT4}, s{sT0}, {RA - RB}
    s_sub_u32 s{sT1}, s{sT1}, s{sT4}
    s_add_u32 s{sT1}, s{sT1}, {RA}
    s_and_b32 s{sT3}, s{sJ}, 1
    s_mul_i32 s{sT4}, s{sT3}, 6144
    s_add_u32 m0, s{sT1}, s{sT4}
    s_nop 0
    """)
    for p in range(5):
        a(f"buffer_load_dwordx4 v{vD+p}, {WSR()}, s{sT2} offen sc1 lds")
        a("s_add_u32 m0, m0, 1024")
        a("s_nop 0" if p < 4 else f"s_cmp_eq_u32 s{sT3}, 1")
    a(f"""
    s_cbranch_scc1 LA_dma_ret
    buffer_load_dwordx4 v{vD+5}, {WSR()}, s{sT2} offen sc1 lds
    LA_dma_ret:
    s_setpc_b64 s[{sLnk}:{sLnk+1}]
    """)


def call_dma(a, b, blk):
    a(f"s_mov_b32 s{sT0}, {b}\ns_mov_b32 s{sT1}, {blk}\ns_call_b64 s[{sLnk}:{sLnk+1}], LA_dma")


def poll_f1(a):
    a(f"""
    s_lshl_b32 s{sT0}, s{sBr}, 5
    s_add_u32 s{sT0}, s{sT0}, s{sHead}
    s_lshl_b32 s{sT0}, s{sT0}, 9
    s_add_u32 s{sT0}, s{sT0}, {WS_C1}
    """)
    poll_counter(a, vP + 3, f"s{sT0}", f"s{sExp}", 7)


def load_q(a):
    a(f"""
    s_lshl_b32 s{sT0}, s{sQB}, 2
    s_add_u32 s{sT0}, s{sT0}, s{sJ}
    s_mul_i32 s{sT0}, s{sT0}, {2 * TILE}
    s_add_u32 s{sT0}, s{sT0}, s{sImg}
    s_add_u32 s{sT1}, s{sT0}, s{sOm}
    s_add_u32 s{sT2}, s{sT1}, {TILE}
    s_add_u32 s{sT0}, s{sT0}, s{sExt}
    buffer_load_dwordx4 {vr(Qm[0],4)}, v{vL16}, {WSR()}, s{sT1} offen sc1
    buffer_load_dwordx4 {vr(Qm[1],4)}, v{vL16}, {WSR()}, s{sT2} offen sc1
    buffer_load_dwordx2 {vr(Qe,2)}, v{vE16}, {WSR()}, s{sT0} offen sc1
    """)


def scale_q(a, nyounger):
    a(f"s_mov_b32 s4, {hex(f32bits(QSCALE))}\ns_mov_b32 s5, s4\ns_waitcnt vmcnt({nyounger})")
    for r in range(Qm[0], Qe + 2):
        a(f"""
        v_lshlrev_b32 v{vPS+2}, 16, v{r}
        v_and_b32 v{vPS+3}, 0xffff0000, v{r}
        v_pk_mul_f32 {vr(vPS+2,2)}, {vr(vPS+2,2)}, s[4:5]
        v_cvt_pk_bf16_f32 v{r}, v{vPS+2}, v{vPS+3}
        """)


def attn_zero(a):
    Z = Vb[1][1]
    for r in (Z, Z + 2, SB[1] + 24, SB[1] + 26, SB[1] + 28, SB[1] + 30):
        a(f"v_pk_mov_b32 {vr(r,2)}, 0, 0")
    a(f"v_mov_b32 v{vP}, 0xbf803f80\nv_mov_b32 v{vP+1}, 0\nv_mov_b32 v{vPS+1}, 0")
    a(f"v_mfma_f32_32x32x4_2b_bf16 {vr(OA[0],32)}, {vr(Z,2)}, {vr(Z,2)}, 0")
    a(f"""
    s_add_u32 s{sRe}, s{sRb}, {RING}
    s_mov_b32 s{sRem}, 7
    v_mov_b32 v{vIdx}, 0xdddddddd
    v_lshrrev_b32 v{vK16}, 1, v{vL16}
    v_xor_b32 v{vK16}, v{vK16}, v{vL16}
    v_and_b32 v{vK16}, 64, v{vK16}
    v_mul_u32_u24 v{vK16}, 3, v{vK16}
    v_xor_b32 v{vK16}, v{vK16}, v{vL16}
    v_add_u32 v{vKA}, s{sNext}, v{vK16}
    v_mad_u32_u24 v{vVA}, v{vVflag}, s{sNext}, v{vVbase}
    """)


DELAY_AT, DELAY = 0, 0


def delay(a, at):
    if DELAY_AT == at and DELAY:
        a(f"s_memrealtime s[4:5]\ns_waitcnt lgkmcnt(0)\ns_add_u32 s6, s4, {DELAY}\nLD_{at}:\ns_sleep 1\ns_memrealtime s[4:5]\ns_waitcnt lgkmcnt(0)\ns_cmp_lt_u32 s4, s6\ns_cbranch_scc1 LD_{at}")


def attention(a):
    X = SB[0]
    delay(a, 1)
    a("LA_start:")
    stamp_cyc(a, 24)
    a(f"""
    ds_read_b128 {vr(Km[0],4)}, v{vKA} offset:2048
    ds_read2st64_b64 {vr(Ke,4)}, v{vKA} offset0:0 offset1:2
    ds_read_b128 {vr(Km[1],4)}, v{vKA} offset:3072
    ds_read_b128 {vr(Vb[0][0],4)}, v{vVA}
    ds_read_b128 {vr(Vb[0][1],4)}, v{vVA} offset:640
    s_waitcnt lgkmcnt(4)
    """)
    a(mfma32(X, Km[0], Qm[0], 0))
    a(mfma32(X + 16, Km[0], Qm[1], 0))
    a("s_nop 8\ns_waitcnt lgkmcnt(3)")
    a(mfma2b(X, 0, vr(X, 32)))
    a("s_nop 15\ns_nop 3")
    a.c("softmax shift: row max over the first key tile, cut to bf16; the epilogue checks that it was safe.")
    a.c("An MFMA (-1 x shift + 1 x half a bf16 step, which centres the cut to bf16 at the row max) applies it to the scores")
    a.c("and spreads it over the C operand of the loop")
    rowmax(a, X, vT0, vT1)
    a(f"""
    s_nop 1
    v_permlane32_swap_b32 v{vT0}, v{vT1}
    s_nop 1
    v_max_f32 v{vT0}, v{vT0}, v{vT1}
    v_and_b32 v{vPS}, 0xffff0000, v{vT0}
    v_or_b32 v{vPS}, 0x3bb8, v{vPS}
    s_nop 1
    v_mfma_f32_32x32x4_2b_bf16 {vr(X,32)}, {vr(vP,2)}, {vr(vPS,2)}, {vr(X,32)}
    v_mfma_f32_32x32x4_2b_bf16 {vr(NM,32)}, {vr(vP,2)}, {vr(vPS,2)}, 0
    s_nop 15
    s_nop 0
    s_setprio {0 if 'noprio' in OPT else 1}
    s_waitcnt lgkmcnt(0)
    """)
    if LOFF >= 0:
        a(f"s_branch LA_loop\n.p2align 8\n.fill {LOFF // 4}, 4, 0xbf800000\nLA_loop:")
    else:
        a(".p2align 6\nLA_loop:")
    for half in range(2):
        for ii in range(4):
            tile_iter(a, ii, half)
    a("s_cbranch_scc0 LA_loop\ns_nop 0")
    a(pv(OA[1], Vb[1][1], SB[1] + 24))
    if 'alow' in OPT:
        a("s_setprio 0")
    a(f"s_cmp_eq_u32 s{sRole}, 0\ns_cbranch_scc1 LA_fin2\ns_setprio 2")
    a.c("announce that the results are about to be stored; readers then wait for the markers to disappear")
    count_in(a, sOc, vP, vP + 1)
    a("LA_fin2:")
    stamp(a, 4)
    stamp_cyc(a, 31)
    N = SB[0]
    rc = SB[1]
    tm = rc + 4

    def rowsum(u, d):
        if 'one1' in OPT:
            return f"v_mov_b32 v{d}, v{OA[u]+8}\nv_mov_b32 v{OA[u]+12}, v{OA[u]+8}\ns_nop 1\nv_permlane32_swap_b32 v{OA[u]+12}, v{d}"
        return f"v_cndmask_b32 v{d}, v{OA[u]+12}, v{OA[u]+8}, vcc"

    def norm(u):
        O, P = OA[u], N + 12 * u
        for r in range(0, 12, 2):
            a(f"v_pk_mul_f32 {vr(P+r,2)}, {vr(O+r,2)}, {vr(rc+2*u,2)} op_sel_hi:[1,0]")
        for j in range(6):
            a(f"v_cvt_pk_bf16_f32 v{P+j}, v{P+2*j}, v{P+2*j+1}")
    a(f"""
    s_mov_b32 s{sRem}, 0
    LA_epi:
    v_cmp_lt_u32 vcc, 31, v0
    s_add_u32 s{sT0}, s{sOb}, s{sOm}
    s_add_u32 s{sT1}, s{sT0}, {TILE}
    {rowsum(0, vT0)}
    v_rcp_f32 v{rc}, v{vT0}
    v_pk_add_f32 {vr(tm,2)}, {vr(OA[0],2)}, {vr(OA[0]+2,2)}
    """)
    a.c("safety check of the shift before anything is stored: row sums inside [2^-30, 2^30], finite accumulators")
    for r in range(4, 12, 2):
        a(f"v_pk_add_f32 {vr(tm,2)}, {vr(tm,2)}, {vr(OA[0]+r,2)}")
    norm(0)
    a(f"{rowsum(1, vT1)}\nv_rcp_f32 v{rc+2}, v{vT1}")
    for r in range(0, 12, 2):
        a(f"v_pk_add_f32 {vr(tm,2)}, {vr(tm,2)}, {vr(OA[1]+r,2)}")
    a(f"""
    v_add_f32 v{tm}, v{tm}, v{tm+1}
    v_add_f32 v{tm+1}, v{vT0}, v{vT1}
    v_fma_f32 v{tm}, 0, v{tm}, v{tm+1}
    v_min_f32 v{tm+1}, v{vT0}, v{vT1}
    v_cmp_gt_f32 vcc, {hex(f32bits(2.0**30))}, v{tm}
    s_mov_b64 s[4:5], vcc
    v_cmp_lt_f32 vcc, {hex(f32bits(2.0**-30))}, v{tm+1}
    """)
    for j in range(4):
        a(f"v_min_u32 v{N+j}, -2, v{N+j}")
    a(f"""
    s_and_b64 s[4:5], s[4:5], vcc
    s_cmp_eq_u64 s[4:5], -1
    s_cselect_b32 s{sT3}, 1, s{sRem}
    s_cmp_eq_u32 s{sT3}, 0
    s_cbranch_scc1 LA_slow
    buffer_store_dwordx4 {vr(N,4)}, v{vL16}, {WSR()}, s{sT0} offen sc1
    """)
    norm(1)
    for j in range(4):
        a(f"v_min_u32 v{N+12+j}, -2, v{N+12+j}")
    a(f"""
    buffer_store_dwordx4 {vr(N+12,4)}, v{vL16}, {WSR()}, s{sT1} offen sc1
    v_permlane32_swap_b32 v{N+4}, v{N+16}
    v_permlane32_swap_b32 v{N+5}, v{N+17}
    s_add_u32 s{sT2}, s{sOb}, s{sExt}
    v_min_u32 v{N+4}, -2, v{N+4}
    v_min_u32 v{N+5}, -2, v{N+5}
    buffer_store_dwordx2 {vr(N+4,2)}, v{vE16}, {WSR()}, s{sT2} offen sc1
    """)


def o_base(a):
    a(f"""
    s_lshl_b32 s{sT0}, s{sQB}, 2
    s_add_u32 s{sT0}, s{sT0}, s{sJ}
    s_mul_i32 s{sOb}, s{sT0}, {2 * TILE}
    s_add_u32 s{sOb}, s{sOb}, s{sImg}
    s_add_u32 s{sOb}, s{sOb}, {3 * IMG}
    """)
    a(f"s_lshr_b32 s{sT1}, s{sHead}, 3\ns_max_u32 s{sT1}, s{sT1}, 1\ns_sub_u32 s{sT1}, s{sT1}, 1")
    c3_off(a, sOc, sT0, sT1)


def o_mark(a):
    o_base(a)
    a(f"""
    s_add_u32 s{sT0}, s{sOb}, s{sOm}
    s_add_u32 s{sT1}, s{sT0}, {TILE}
    s_add_u32 s{sT2}, s{sOb}, s{sExt}
    buffer_store_dwordx4 v[20:23], v{vL16}, {WSR()}, s{sT0} offen sc1
    buffer_store_dwordx4 v[20:23], v{vL16}, {WSR()}, s{sT1} offen sc1
    buffer_store_dwordx2 v[20:21], v{vE16}, {WSR()}, s{sT2} offen sc1
    """)


def refill(a):
    a.c("role-B waves refill both rings: after barrier m, A block m+2 and B block m-SK+2")
    a(f"""
    LA_refill:
    s_cmp_gt_u32 s{sM}, 5
    s_cbranch_scc1 LA_ev_b
    s_mov_b32 s{sT0}, 0
    s_add_u32 s{sT1}, s{sM}, 2
    s_call_b64 s[{sLnk}:{sLnk+1}], LA_dma
    LA_ev_b:
    s_sub_u32 s{sT1}, s{sM}, {SK - 2}
    s_cmp_lt_u32 s{sT1}, 3
    s_cbranch_scc1 LA_back
    s_mov_b32 s{sT0}, 1
    s_call_b64 s[{sLnk}:{sLnk+1}], LA_dma
    s_branch LA_back
    """)


def slow_path(a):
    X = SB[0]
    m0, m1, t0, t1 = SB[1], SB[1] + 1, SB[1] + 2, SB[1] + 3

    def kloads(t):
        a(f"buffer_load_dwordx4 {vr(Km[0],4)}, v{vL16}, {WSR()}, s{sT1} offen sc1")
        if t == 0:
            a(f"buffer_load_dwordx2 {vr(Ke,2)}, v{vE16}, {WSR()}, s{sT2} offen sc1")
            a(f"s_add_u32 s{sT2}, s{sT2}, {2 * TILE}")
        a(f"s_add_u32 s{sT1}, s{sT1}, {TILE}")

    def kbase():
        a(f"""
        s_add_u32 s{sT0}, s{sImg}, {IMG}
        s_add_u32 s{sT1}, s{sT0}, s{sOm}
        s_add_u32 s{sT2}, s{sT0}, s{sExt}
        s_mov_b32 s{sRem}, 0
        """)
    a(f"LA_slow:\nv_mov_b32 v{m0}, 0xff800000\nv_mov_b32 v{m1}, 0xff800000")
    kbase()
    a("LA_slow_max:")
    for t in range(2):
        kloads(t)
        a("s_waitcnt vmcnt(0)")
        a(mfma32(X, Km[0], Qm[0], 0))
        a(mfma32(X + 16, Km[0], Qm[1], 0))
        a("s_nop 9")
        a(mfma2b(X, t, vr(X, 32)))
        a("s_nop 15\ns_nop 3")
        rowmax(a, X, t0, t1)
        a(f"v_max_f32 v{m0}, v{m0}, v{t0}\nv_max_f32 v{m1}, v{m1}, v{t1}")
    a(f"s_add_u32 s{sRem}, s{sRem}, 1\ns_cmp_lt_u32 s{sRem}, 32\ns_cbranch_scc1 LA_slow_max")
    cross_half_max(a, m0, t0)
    cross_half_max(a, m1, t0)
    fill_nm(a, m0, m1)
    for r in range(32):
        a(f"v_mov_b32 v{OA[0]+r}, 0")
    for r in range(8):
        a(f"v_mov_b32 v{Vb[0][0]+r}, 0x3f803f80")
    kbase()
    a(f"""
    s_mul_i32 s{sT3}, s{sHead}, 320
    s_add_u32 s{sT3}, s{sT3}, s{sT0}
    s_add_u32 s{sT3}, s{sT3}, {IMG}
    LA_slow_pv:
    """)
    for t in range(2):
        kloads(t)
        a(f"""
        s_add_u32 s{sT4}, s{sT3}, 20480
        s_mov_b32 exec_lo, 0xfffff
        s_mov_b32 exec_hi, 0xfffff
        buffer_load_dwordx4 {vr(Vb[0][0],4)}, v{vVG}, {WSR()}, s{sT3} offen sc1
        buffer_load_dwordx4 {vr(Vb[0][1],4)}, v{vVG}, {WSR()}, s{sT4} offen sc1
        s_mov_b64 exec, -1
        s_add_u32 s{sT3}, s{sT3}, {TILE}
        s_waitcnt vmcnt(2)
        """)
        a(mfma32(X, Km[0], Qm[0], vr(NM, 16)))
        a(mfma32(X + 16, Km[0], Qm[1], vr(NM + 16, 16)))
        a("s_nop 9")
        a(mfma2b(X, t, vr(X, 32)))
        a("s_nop 15\ns_nop 3")
        for r in range(32):
            a(f"v_exp_f32 v{X+r}, v{X+r}")
        a("s_nop 0")
        for j in range(16):
            a(f"v_cvt_pk_bf16_f32 v{X + 8*(j//4) + j%4}, v{X+2*j}, v{X+2*j+1}")
        a("s_waitcnt vmcnt(0)\ns_nop 1")
        a(mfma32(OA[0], Vb[0][0], X, vr(OA[0], 16)))
        a(mfma32(OA[0], Vb[0][1], X + 8, vr(OA[0], 16)))
        a(mfma32(OA[1], Vb[0][0], X + 16, vr(OA[1], 16)))
        a(mfma32(OA[1], Vb[0][1], X + 24, vr(OA[1], 16)))
    a(f"""
    s_add_u32 s{sRem}, s{sRem}, 1
    s_cmp_lt_u32 s{sRem}, 32
    s_cbranch_scc1 LA_slow_pv
    s_nop 15
    s_mov_b32 s{sRem}, 1
    s_branch LA_epi
    """)


pWF = [16, 56]
pACC = 96
pACL = 196
pOF = 136
pWA, pOA = 2, 3


def c3_off(a, dst, t64, part):
    a(f"""
    s_lshl_b32 s{dst}, s{sBr}, 5
    s_add_u32 s{dst}, s{dst}, s{t64}
    s_mul_i32 s{dst}, s{dst}, 3
    s_add_u32 s{dst}, s{dst}, s{part}
    s_lshl_b32 s{dst}, s{dst}, 7
    s_add_u32 s{dst}, s{dst}, {WS_C3}
    """)


def wo_dma(a, k0, k1, lds0):
    _lbl[0] += 1
    L = f"LP_wd{_lbl[0]}"
    a(f"""
    s_and_b32 s{sT0}, s{sHead}, 3
    s_lshl_b32 s{sT1}, s{sBr}, 2
    s_add_u32 s{sT0}, s{sT0}, s{sT1}
    s_mul_i32 s{sT0}, s{sT0}, {WO_SLAB}
    s_lshl_b32 s{sT1}, s{sJ}, 10
    s_add_u32 s{sT0}, s{sT0}, s{sT1}
    s_add_u32 s{sT0}, s{sT0}, {WS_WO + 10240 * k0}
    s_add_u32 s{sT1}, s{sT1}, {lds0}
    {L}:
    s_mov_b32 m0, s{sT1}
    s_add_u32 s{sT1}, s{sT1}, 4096
    buffer_load_dwordx4 v{vL16}, {WSR()}, s{sT0} offen sc1 lds
    s_add_u32 s{sT0}, s{sT0}, 4096
    s_cmp_lt_u32 s{sT1}, {lds0 + 10240 * (k1 - k0)}
    s_cbranch_scc1 {L}
    """)


def o_addr(a):
    a(f"""
    s_lshl_b32 s{sT1}, s{sQB}, 2
    s_lshr_b32 s{sT2}, s{sHead}, 2
    s_add_u32 s{sT1}, s{sT1}, s{sT2}
    """)
    c3_off(a, sFc, sT1, sRole)
    a(f"""
    v_and_b32 v{vP+3}, 15, v0
    s_lshl_b32 s{sT1}, s{sT1}, 1
    s_lshr_b32 s{sT2}, s{sJ}, 1
    s_add_u32 s{sT1}, s{sT1}, s{sT2}
    s_mul_i32 s{sT1}, s{sT1}, {TILE}
    s_add_u32 s{sT1}, s{sT1}, s{sImg}
    s_and_b32 s{sT2}, s{sJ}, 1
    s_lshl_b32 s{sT2}, s{sT2}, 8
    s_add_u32 s{sT1}, s{sT1}, s{sT2}
    s_add_u32 s{sFo}, s{sT1}, {3 * IMG}
    v_lshrrev_b32 v{pOA}, 4, v0
    v_lshlrev_b32 v{pOA}, 9, v{pOA}
    v_lshl_add_u32 v{pOA}, v{vP+3}, 4, v{pOA}
    v_lshlrev_b32 v{vP+5}, 7, v0
    s_mov_b32 s{sF[0]}, s{sFo}
    s_add_u32 s{sF[1]}, s{sFo}, 10240
    """)


sF = [54, 55]


def o_load_sub(a, label, p0):
    a(f"{label}:\ns_mov_b32 s{sT1}, s{sF[p0 // 5]}")
    for i in range(5):
        a(f"buffer_load_dwordx4 {vr(pOF + 4*(p0 + i), 4)}, v{pOA}, {WSR()}, s{sT1} offen offset:{(i & 1) * 2048} sc1")
        if i & 1:
            a(f"s_add_u32 s{sT1}, s{sT1}, 4096")
    a(f"s_setpc_b64 s[{sLnk}:{sLnk+1}]")


def o_checked(a, label, p0, counted):
    a(f"s_mov_b32 s{sSpin}, {SPIN}\n{label}_chk:\nv_mov_b32 v{vPS}, 0\nv_mov_b32 v{vPS+1}, 0")
    for i in range(5):
        r = pOF + 4 * (p0 + i)
        if counted:
            a(f"s_waitcnt vmcnt({4 - i})")
        a(f"v_max3_u32 v{vPS}, v{vPS}, v{r}, v{r+1}\nv_max3_u32 v{vPS+1}, v{vPS+1}, v{r+2}, v{r+3}")
    a(f"""
    v_max_u32 v{vPS}, v{vPS}, v{vPS+1}
    v_cmp_eq_u32 vcc, -1, v{vPS}
    s_cbranch_vccz {label}_ok
    s_call_b64 s[{sLnk}:{sLnk+1}], {label}
    s_waitcnt vmcnt(0)
    s_sub_u32 s{sSpin}, s{sSpin}, 1
    s_cbranch_scc0 {label}_chk
    {label}_ok:
    """)


def peek(a, mask):
    a(f"""
    v_mov_b32 v{vPS+2}, 0
    s_mov_b64 exec, {mask}
    buffer_atomic_add v{vPS+2}, v{vP+5}, {WSR()}, s{sFc} offen sc0 sc1
    s_mov_b64 exec, -1
    """)


def ready_mask(a):
    a(f"v_cmp_le_u32 vcc, 8, v{vPS+2}\ns_and_b32 s{sPh}, vcc_lo, 3")


def order_sub(a):
    a(f"""
    LP_order:
    s_and_b32 s{sDone}, s{sPh}, 1
    s_xor_b32 s{sDone}, s{sDone}, 1
    s_mul_i32 s{sT0}, s{sDone}, 10240
    s_add_u32 s{sF[0]}, s{sFo}, s{sT0}
    s_sub_u32 s{sF[1]}, s{sFo}, s{sT0}
    s_add_u32 s{sF[1]}, s{sF[1]}, 10240
    """)


TAB = [8, 9, 10, 11, 12, 13, 14, 15, 52, 53]


sLnkM = 6


def oproj_subs(a, G3, Lo0):
    def wreads(p):
        return [f"ds_read_b128 {vr(pWF[p & 1] + 4*c, 4)}, v{pWA} offset:{c * 1024}" for c in range(10)]
    a(f"LP_pro:\nv_add_u32 v{pWA}, s{TAB[0]}, v{vL16}")
    for r in wreads(0):
        a(r)
    a(f"s_setpc_b64 s[{sLnkM}:{sLnkM+1}]")
    for p in range(10):
        if p % 5 == 0:
            a("LP_lo:" if p else "LP_hi:")
        rd = wreads(p + 1) if p < 9 else []
        if rd:
            a(f"v_add_u32 v{pWA}, s{TAB[p + 1]}, v{vL16}")
        for c in range(10):
            A = (pACL if p >= 5 else pACC) + 4 * c
            a(f"s_waitcnt lgkmcnt({9 if rd else 9 - c})")
            a(f"v_mfma_f32_16x16x32_bf16 {vr(A,4)}, {vr(pOF + 4*p, 4)}, {vr(pWF[p & 1] + 4*c, 4)}, {vr(A,4)}")
            if rd:
                a(rd[c])
            site = 2 * (p - 5) + c // 5
            if p >= 5 and c % 5 == 0 and site < 9:
                a(f"s_cbranch_scc1 LW_{site}\nLW_b{site}:")
            if p == MID_P and c == 9:
                a("s_cbranch_scc1 LP_mid\nLP_midb:")
        if p % 5 == 4:
            a(f"s_setpc_b64 s[{sLnkM}:{sLnkM+1}]")
    for site in range(9):
        a(f"LW_{site}:")
        n = 3 if site < 5 else 2
        if site == 0:
            a(f"s_mul_i32 s{sT1}, s{sJ}, {15 * 1024}\ns_add_u32 s{sT2}, s{sT0}, s{sT1}\ns_add_u32 m0, s{sT1}, {G3}")
        elif site == 5:
            a(f"s_lshl_b32 s{sT1}, s{sJ}, 13\ns_add_u32 s{sT2}, s{sT0}, s{sT1}\ns_add_u32 s{sT2}, s{sT2}, {6 * 10240}\ns_add_u32 m0, s{sT1}, {Lo0}")
        else:
            a(f"s_add_u32 m0, m0, {n * 1024}\ns_add_u32 s{sT2}, s{sT2}, {n * 1024}")
        a("s_cmp_eq_u32 0, 0")
        if site == 7:
            peek(a, 3)
        for i in range(n):
            a(f"buffer_load_dwordx4 v{vL16}, {WSR()}, s{sT2} offen offset:{i * 1024} sc1 lds")
        a(f"s_branch LW_b{site}")
    a("LP_mid:\ns_waitcnt vmcnt(0)")
    ready_mask(a)
    a(f"s_cmp_eq_u32 s{sPh}, 3\ns_cbranch_scc0 LP_midb\ns_call_b64 s[{sLnk}:{sLnk+1}], LP_ldlo\ns_branch LP_midb")


MID_P = 4
WOVEN_PRIO = 1


def set_tab(a, addrs):
    for r, x in zip(TAB, addrs):
        a(f"s_mov_b32 s{r}, {x}")


def out_addr(a):
    a.c("lane n = l & 15 holds columns 8n..8n+7 of a 128-column piece and 2n, 2n+1 of a 32-column piece (tokens 4*(l >> 4) + r);")
    a.c("odd column groups start with the narrow piece, so that the wide one covers whole 128-B lines")
    a(f"""
    s_lshl_b32 s{sT0}, s{sQB}, 2
    s_lshr_b32 s{sT1}, s{sHead}, 2
    s_add_u32 s{sT0}, s{sT0}, s{sT1}
    s_lshl_b32 s{sT0}, s{sT0}, 2
    s_add_u32 s{sT0}, s{sT0}, s{sJ}
    s_mul_i32 s{sT0}, s{sT0}, {16 * 2560}
    s_mul_i32 s{sT1}, s{sBr}, 1280
    s_add_u32 s{sT0}, s{sT0}, s{sT1}
    s_and_b32 s{sT1}, s{sHead}, 3
    s_mul_i32 s{sT1}, s{sT1}, 320
    s_add_u32 s{sXo}, s{sT0}, s{sT1}
    s_add_u32 s{sWo}, s{sXo}, {2 * 2560}
    v_lshrrev_b32 v4, 4, v0
    v_mul_u32_u24 v4, {4 * 2560}, v4
    v_and_b32 v6, 15, v0
    s_and_b32 s{sT0}, s{sHead}, 1
    s_cselect_b32 s{sT0}, 64, 0
    s_cselect_b32 s{sT1}, 0, 256
    v_lshl_add_u32 v5, v6, 2, v4
    v_lshl_add_u32 v4, v6, 4, v4
    v_add_u32 v4, s{sT0}, v4
    v_add_u32 v5, s{sT1}, v5
    """)


def out_store(a):
    OUTMOD = " nt" if 'outnt' in OPT else " sc1 nt" if 'outsnt' in OPT else " sc1"
    for r in range(4):
        if r % 2 == 0:
            for c in range(10):
                a(f"v_pk_add_f32 {vr(pACC + 4*c + r, 2)}, {vr(pACC + 4*c + r, 2)}, {vr(pACL + 4*c + r, 2)}")
        P = 16 + 6 * r
        for j in range(5):
            a(f"v_cvt_pk_bf16_f32 v{P+j}, v{pACC + 8*j + r}, v{pACC + 8*j + 4 + r}")
        so = sXo if r < 2 else sWo
        a(f"buffer_store_dwordx4 {vr(P,4)}, v4, s[{sOut}:{sOut+3}], s{so} offen offset:{(r & 1) * 2560}{OUTMOD}")
        a(f"buffer_store_dword v{P+4}, v5, s[{sOut}:{sOut+3}], s{so} offen offset:{(r & 1) * 2560}{OUTMOD}")


rL, rT, rD, rX, rData = 194, 199, 201, 205, 208


def repack_setup(a):
    x = rX
    for i in range(5):
        a(f"""
        v_add_u32 v{x}, {64 * i}, v0
        v_mul_u32_u24 v{x+1}, 3277, v{x}
        v_lshrrev_b32 v{x+1}, 16, v{x+1}
        v_mul_u32_u24 v{x+2}, 20, v{x+1}
        v_sub_u32 v{x+2}, v{x}, v{x+2}
        v_mul_u32_u24 v{x+1}, 1280, v{x+1}
        v_lshl_add_u32 v{rL+i}, v{x+2}, 4, v{x+1}
        """)
    a(f"""
    v_and_b32 v{x}, 48, v0
    v_lshlrev_b32 v{x}, 4, v{x}
    v_add_u32 v{x}, {RPK}, v{x}
    v_and_b32 v{x+1}, 7, v0
    v_mul_u32_u24 v{x+1}, 1040, v{x+1}
    v_and_b32 v{x+2}, 8, v0
    v_lshl_add_u32 v{x+1}, v{x+2}, 1, v{x+1}
    v_add_u32 v{rD}, v{x}, v{x+1}
    v_and_b32 v{x+1}, 1, v0
    v_mul_u32_u24 v{x+1}, 1040, v{x+1}
    v_and_b32 v{x+2}, 14, v0
    v_lshl_add_u32 v{x+1}, v{x+2}, 3, v{x+1}
    v_add3_u32 v{rD+1}, v{x}, v{x+1}, 0
    v_lshrrev_b32 v{x}, 4, v0
    v_lshlrev_b32 v{x}, 3, v{x}
    v_lshrrev_b32 v{x+1}, 2, v0
    v_and_b32 v{x+1}, 3, v{x+1}
    v_add_u32 v{x}, v{x}, v{x+1}
    v_mul_u32_u24 v{x}, 320, v{x}
    v_and_b32 v{x+1}, 3, v0
    v_lshl_add_u32 v{x}, v{x+1}, 3, v{x}
    v_add_u32 v{x}, {RPK}, v{x}
    s_and_b32 s{sT0}, s2, 2
    s_cselect_b32 s{sT0}, 64, 0
    s_cselect_b32 s{sT1}, 0, 256
    v_add_u32 v{rT}, s{sT0}, v{x}
    v_add_u32 v{rT+1}, s{sT1}, v{x}
    v_add_u32 v{rX}, {RPK}, v{vL16}
    """)


sRu, sRs = 38, 39


def repack_steps(a):
    a(f"""
    LR_step:
    s_add_u32 s{sRp}, s{sRp}, 1
    s_and_b32 s{sT3}, s{sRu}, 3
    s_lshl_b32 s{sT4}, s{sBr}, 2
    s_add_u32 s{sT4}, s{sT4}, s{sT3}
    s_cmp_eq_u32 s{sRs}, 0
    s_cbranch_scc1 LR_load
    s_cmp_eq_u32 s{sRs}, 1
    s_cbranch_scc0 LR_s2
    s_lshr_b32 s{sT2}, s{sRu}, 2
    s_mul_i32 s{sT0}, s{sT4}, {WO_SLAB}
    s_mul_i32 s{sT2}, s{sT2}, 10240
    s_add_u32 s{sT0}, s{sT0}, s{sT2}
    s_add_u32 s{sT0}, s{sT0}, {WS_WO}
    """)
    for ct in range(10):
        for u in range(2):
            a(f"ds_read_b64_tr_b16 {vr(rData + 4*ct + 2*u, 2)}, v{rT + ct // 8} offset:{u*4*320 + (ct % 8)*32}")
        if ct == 4:
            a("s_waitcnt lgkmcnt(0)")
    a("s_waitcnt lgkmcnt(0)")
    for ct in range(10):
        a(f"ds_write_b128 v{rD + ct // 8}, {vr(rData + 4*ct, 4)} offset:{32 * ct if ct < 8 else 8 * 1040 + 128 * (ct - 8)}")
    a("s_waitcnt lgkmcnt(0)")
    for c in range(10):
        a(f"ds_read_b128 {vr(rData + 4*c, 4)}, v{rX} offset:{1040 * c}")
    for c in range(10):
        a(f"s_waitcnt lgkmcnt({9 - c})")
        a(f"buffer_store_dwordx4 {vr(rData + 4*c, 4)}, v{vL16}, {WSR()}, s{sT0} offen offset:{1024 * (c & 3)} sc1")
        if c & 3 == 3:
            a(f"s_add_u32 s{sT0}, s{sT0}, 4096")
    a(f"""
    s_mov_b32 s{sRs}, 2
    s_cmp_lt_u32 s{sRu}, 16
    s_cbranch_scc0 LA_bar
    s_add_u32 s{sRu}, s{sRu}, 64
    LR_load:
    s_mov_b32 s{sRs}, 1
    s_mov_b32 s{sWt}, s{sPtr+2}
    s_and_b32 s{sWt+1}, s{sPtr+3}, 0xffff
    s_mov_b32 s{sWt+2}, {D * D * 2}
    s_mov_b32 s{sWt+3}, 0x00020000
    s_lshr_b32 s{sT2}, s{sRu}, 2
    s_mul_i32 s{sT0}, s{sT2}, {32 * 1280}
    s_mul_i32 s{sT1}, s{sT3}, 320
    s_add_u32 s{sT0}, s{sT0}, s{sT1}
    s_mov_b32 m0, {RPK}
    s_add_u32 s{sT1}, s{sT0}, {16 * 1280}
    """)
    for i in range(10):
        a(f"buffer_load_dwordx4 v{rL + i % 5}, s[{sWt}:{sWt+3}], s{sT1 if i >= 5 else sT0} offen lds")
        a("s_add_u32 m0, m0, 1024\ns_nop 0")
    a(f"""
    s_branch LA_bar
    LR_s2:
    s_mov_b32 s{sRp}, -1
    s_lshl_b32 s{sT0}, s{sT4}, 7
    s_add_u32 s{sT0}, s{sT0}, {WS_C4}
    """)
    count_in(a, sT0, vP, vP + 1)
    a("s_branch LA_bar")


def write_ones(a, role):
    a(f"""
    v_and_b32 v{vT0}, 7, v0
    v_mul_u32_u24 v{vT0}, 640, v{vT0}
    v_add_u32 v{vT0}, {ONES[role]}, v{vT0}
    v_mov_b32 v16, 0x3f803f80
    v_mov_b32 v17, 0x3f803f80
    v_mov_b32 v18, 0x3f803f80
    v_mov_b32 v19, 0x3f803f80
    ds_write_b128 v{vT0}, v[16:19]
    """)


sL = 8


def lead_prepare(a):
    a(f"""
    s_lshr_b32 s{sRu}, s2, 3
    s_lshl_b32 s{sRu}, s{sRu}, 1
    s_bfe_u32 s{sT0}, s2, 0x10001
    s_add_u32 s{sRu}, s{sRu}, s{sT0}
    s_mov_b32 s{sRs}, 0
    s_and_b32 s{sT0}, s2, 1
    s_cselect_b32 s{sT0}, 0, s{sJ}
    s_cmp_eq_u32 s{sT0}, 1
    s_cselect_b32 s{sRp}, {RP_AT}, -1
    s_mov_b32 s{sM}, 0
    s_mov_b32 s{sMend}, 0
    s_mov_b32 s{sRb}, {RA}
    s_mov_b32 s{sNext}, {RA + BLK}
    """)
    attn_zero(a)
    o_base(a)
    a(f"""
    s_sub_u32 s{sT0}, s{sOb}, {3 * IMG}
    s_add_u32 s{sL},  s{sT0}, s{sOm}
    s_add_u32 s{sL+1}, s{sL},  {TILE}
    s_add_u32 s{sL+2}, s{sT0}, s{sExt}
    s_lshr_b32 s{sT3}, s{sJ}, 1
    s_mul_i32 s{sT1}, s{sT3}, {4 * TILE}
    s_add_u32 s{sT1}, s{sT1}, s{sImg}
    s_add_u32 s{sT1}, s{sT1}, {IMG}
    s_and_b32 s{sL+4}, s{sQB if 'kvrot' in OPT else sHead}, 7
    s_mul_i32 s{sL+3}, s{sL+4}, {8 * TILE}
    s_add_u32 s{sL+3}, s{sL+3}, s{sT1}
    s_add_u32 s{sL+4}, s{sL+4}, 1
    s_and_b32 s{sL+4}, s{sL+4}, 7
    s_mul_i32 s{sL+4}, s{sL+4}, {8 * TILE}
    s_add_u32 s{sL+4}, s{sL+4}, s{sT1}
    s_mul_i32 s{sL+5}, s{sT3}, {CH}
    s_and_b32 s{sL+6}, s{sJ}, 1
    s_mul_i32 s{sT4}, s{sL+6}, 6144
    s_add_u32 s{sL+5}, s{sL+5}, s{sT4}
    s_add_u32 m0, s{sL+5}, {RA + BLK}
    """)
    a(f"""
    s_lshl_b32 s{sL+7}, s{sBr}, 5
    s_add_u32 s{sL+7}, s{sL+7}, s{sHead}
    s_lshl_b32 s{sL+7}, s{sL+7}, 9
    s_add_u32 s{sL+7}, s{sL+7}, {WS_C1}
    """)


def common_setup(a):
    a(f"""
    s_and_b32 s{sT0}, s2, 1
    s_lshl_b32 s{sT0}, s{sT0}, 3
    s_and_b32 s{sT1}, s2, 2
    s_lshl_b32 s{sT1}, s{sT1}, 1
    s_add_u32 s{sT0}, s{sT0}, s{sT1}
    s_lshr_b32 s{sT2}, s2, 6
    s_add_u32 s{sHead}, s{sT0}, s{sT2}
    s_lshr_b32 s{sQB}, s2, 3
    s_and_b32 s{sQB}, s{sQB}, 7
    s_lshl_b32 s{sT2}, s{sRole}, 4
    s_add_u32 s{sHead}, s{sHead}, s{sT2}
    s_mul_i32 s{sImg}, s{sBr}, {4 * IMG}
    s_mov_b32 s{sPh}, 0
    s_mov_b32 s{sWS+2}, {WS_STAMP + 2048 * 128 if common.STAMP else WS_END}
    s_mov_b32 s{sWS+3}, 0x00020000
    s_mov_b32 s{sOut+2}, {S * 2 * D * 2}
    s_mov_b32 s{sOut+3}, 0x00020000
    s_mov_b32 s{sDbg+2}, 256
    s_mov_b32 s{sDbg+3}, 0x00020000
    s_waitcnt lgkmcnt(0)
    s_mov_b32 s{sOut}, s{sPtr+4}
    s_and_b32 s{sOut+1}, s{sPtr+5}, 0xffff
    s_mov_b32 s{sDbg}, s{sPtr+6}
    s_and_b32 s{sDbg+1}, s{sPtr+7}, 0xffff
    s_and_b32 s{sWS+1}, s{sWS+1}, 0xffff
    """)


def gen(a, label):
    kernel_head(a, label)
    a("s_cmp_ge_u32 s2, 256\ns_cbranch_scc1 LF_end")
    stamp(a, 0)
    a(f"""
    s_bfe_u32 s{sBr}, s2, 0x10002
    s_mul_i32 s{sT0}, s{sBr}, 24
    s_load_dwordx2 s[{sX}:{sX+1}], s[0:1], s{sT0}
    s_add_u32 s{sT1}, s{sT0}, 8
    s_load_dwordx4 s[{sPtr}:{sPtr+3}], s[0:1], s{sT1}
    s_load_dwordx4 s[{sPtr+4}:{sPtr+7}], s[0:1], 48
    s_load_dwordx2 s[{sWS}:{sWS+1}], s[0:1], 64
    v_lshrrev_b32 v1, 6, v0
    v_and_b32 v0, 63, v0
    v_readfirstlane_b32 s{sW}, v1
    """)
    if 'noearly' not in OPT:
        a.c("waves 4-6 start the address translations of X and W as soon as the pointers are there")
        a(f"""
        s_sub_u32 s{sT1}, s{sW}, 4
        s_cmp_lt_u32 s{sT1}, 3
        s_cbranch_scc0 LF_nt
        s_lshl_b32 s{sT1}, s{sT1}, 20
        s_waitcnt lgkmcnt(0)
        s_load_dword s6, s[{sX}:{sX+1}], s{sT1}
        s_load_dword s7, s[{sPtr}:{sPtr+1}], s{sT1}
        LF_nt:
        """)
    a(f"""
    s_and_b32 s{sT0}, s2, 3
    s_lshl_b32 s{sT0}, s{sT0}, 2
    s_bfe_u32 s{sT2}, s2, 0x20003
    s_add_u32 s{sTB}, s{sT0}, s{sT2}
    s_lshr_b32 s{sTI}, s2, 5
    """)
    if 'nocw' not in OPT:
        a.c("wave 7 pulls a quarter of the code into the L2, so that later instruction fetches find it there")
        a(f"""
        s_cmp_eq_u32 s{sW}, 7
        s_cbranch_scc0 LG_nocw
        s_getpc_b64 s[4:5]
        LG_pc:
        s_sub_u32 s4, s4, LG_pc-{label}
        s_subb_u32 s5, s5, 0
        s_lshl_b32 s{sT0}, s{sT2}, 13
        v_lshl_add_u32 v8, v0, 7, s{sT0}
        v_min_u32 v8, LF_codeend-{label}-4, v8
        global_load_dword v{gT+1}, v8, s[4:5]
        LG_nocw:
        """)
    a.c("phase-a units of tile ti: n = 2 ti + e, unit = n + 5 (n >= 5) + 5 (n >= 10)")
    a(f"""
    s_lshl_b32 s{sU0}, s{sTI}, 1
    s_cmp_ge_u32 s{sTI}, 5
    s_cselect_b32 s{sT0}, 10, 5
    s_cmp_ge_u32 s{sTI}, 3
    s_cselect_b32 s{sT0}, s{sT0}, 0
    s_add_u32 s{sU0}, s{sU0}, s{sT0}
    s_cmp_eq_u32 s{sTI}, 2
    s_cselect_b32 s{sT0}, 6, 1
    s_add_u32 s{sU1}, s{sU0}, s{sT0}
    s_and_b32 s{sJ}, s{sW}, 3
    s_lshr_b32 s{sRole}, s{sW}, 2
    s_cbranch_scc1 LG_start
    """)
    gemm_loader(a)
    a("LG_start:")
    common_setup(a)
    if CLR_AT < 0:
        clear_counters(a, "LG")
    gemm_compute(a)
    a("LG_idle:\ns_waitcnt lgkmcnt(0)\ns_barrier")
    drained(a)
    a("s_barrier")
    if PAIR_Q < 160:
        a("s_barrier")
    a("LG_done:")
    if PAIR_Q >= 160:
        a("s_barrier")
    stamp(a, 3)
    a(f"s_setprio {BLEAD_PRIO}")
    vectors_get(a)
    write_ones(a, 1)
    a(f"s_mov_b32 s{sM}, {SK}\ns_mov_b32 s{sMend}, {(1 << (SK + 5)) - 1}\ns_mov_b32 s{sRb}, {RB}\ns_mov_b32 s{sNext}, {RB}")
    attn_zero(a)
    a.c("the last wave whose stores have drained publishes the tile")
    a(f"""
    v_mov_b32 v246, {LCNT}
    v_mov_b32 v247, 1
    v_mov_b32 v20, -1
    v_mov_b32 v21, -1
    v_mov_b32 v22, -1
    v_mov_b32 v23, -1
    s_setprio 2
    s_barrier
    s_waitcnt vmcnt(0)
    s_mov_b64 exec, 1
    ds_add_rtn_u32 v249, v246, v247
    s_mov_b64 exec, -1
    s_waitcnt lgkmcnt(0)
    v_readfirstlane_b32 s{sT0}, v249
    s_cmp_eq_u32 s{sT0}, 3
    s_cbranch_scc0 LG_nopub
    s_cmp_eq_u32 s{sTI}, 7
    s_cbranch_scc1 LG_nopub
    s_call_b64 s[{sLnk}:{sLnk+1}], LG_publish
    LG_nopub:
    """)
    stamp(a, 27)
    call_dma(a, 0, 2)
    if 'marklate' not in OPT:
        o_mark(a)
    a(f"s_mov_b32 s{sRp}, -1\ns_waitcnt vmcnt(0)\ns_barrier")
    poll_f1(a)
    stamp(a, 26)
    load_q(a)
    call_dma(a, 1, 0)
    call_dma(a, 0, 3)
    a("s_waitcnt vmcnt(0) lgkmcnt(0)\ns_barrier")
    call_dma(a, 1, 1)
    call_dma(a, 0, 4)
    call_dma(a, 1, 2)
    if 'marklate' in OPT:
        o_mark(a)
    if 'blow' in OPT:
        a("s_setprio 1")
    scale_q(a, 63)
    stamp(a, 5)
    a("s_branch LA_start")
    a("LA_lead:")
    a("s_setprio 3")
    def small_writes():
        a(f"s_cmp_lt_u32 s{sJ}, 2\ns_cbranch_scc0 LA_sw1")
        vectors_put(a)
        a(f"s_branch LA_sw2\nLA_sw1:\nv_mov_b32 v{vP+2}, {LCNT}\ns_mov_b64 exec, 0xff\nds_write_b32 v{vP+2}, v{vP+1}")
        write_ones(a, 0)
        a("LA_sw2:")
    poll_counter(a, vP + 3, f"s{sL+7}", f"s{sExp}", 7, small_writes)
    stamp(a, 1)
    a(f"""
    buffer_load_dwordx4 {vr(Qm[0],4)}, v{vL16}, {WSR()}, s8 offen sc1
    buffer_load_dwordx4 {vr(Qm[1],4)}, v{vL16}, {WSR()}, s9 offen sc1
    buffer_load_dwordx2 {vr(Qe,2)}, v{vE16}, {WSR()}, s10 offen sc1
    """)
    for blk in range(2):
        for p in range(5):
            a(f"buffer_load_dwordx4 v{vD+p}, {WSR()}, s{11 + blk} offen sc1 lds")
            a("s_add_u32 m0, m0, 1024")
            a("s_nop 0" if p < 4 else "s_cmp_eq_u32 s14, 1")
        a(f"s_cbranch_scc1 LA_ld{blk}\nbuffer_load_dwordx4 v{vD+5}, {WSR()}, s{11 + blk} offen sc1 lds\nLA_ld{blk}:")
        if blk == 0:
            a(f"s_add_u32 m0, s13, {RA + 2 * BLK}\ns_nop 0")
    scale_q(a, 10)
    a("s_waitcnt vmcnt(5) lgkmcnt(0)\ns_barrier\ns_setprio 1")
    stamp(a, 3)
    attention(a)
    a(f"s_cmp_eq_u32 s{sRole}, 0\ns_cbranch_scc1 LP_a\ns_barrier")
    stamp(a, 6)
    a(f"s_branch {'LF_end' if 'astamp' in OPT else 'LP_end'}\nLP_a:")
    a.c("role-A waves: first half of K while role B finishes, second half once it is published")
    a(f"""
    s_and_b32 s{sT4}, s{sHead}, 3
    s_lshl_b32 s{sT1}, s{sBr}, 2
    s_add_u32 s{sT4}, s{sT4}, s{sT1}
    s_lshl_b32 s{sT4}, s{sT4}, 7
    s_add_u32 s{sT4}, s{sT4}, {WS_C4}
    """)
    G = lambda i: LDS_BYTES - (11 - i) * 10240
    Lo = lambda i: RB + i * 10240
    assert SK == 3 and G(0) >= RB + 2 * BLK and G(3) >= RB + RING and Lo(3) <= RB + BLK + CH
    call = lambda l: a(f"s_call_b64 s[{sLnk}:{sLnk+1}], {l}")

    def tail_setup():
        for r in range(32, 40, 2):
            a(f"v_pk_mov_b32 {vr(pACC + r, 2)}, 0, 0")
        for r in range(32, 40, 2):
            a(f"v_pk_mov_b32 {vr(pACL + r, 2)}, 0, 0")
        for A in (pACC, pACL):
            a(f"v_mfma_f32_32x32x4_2b_bf16 {vr(A,32)}, {vr(pACC + 32, 2)}, {vr(pACC + 32, 2)}, 0")
        o_addr(a)
        out_addr(a)
        a("s_waitcnt vmcnt(0)")
        count_in(a, sOc, vP, vP + 1)
        stamp(a, 6)
        a(f"v_readfirstlane_b32 s{sT0}, v{vPS}\ns_cmp_ge_u32 s{sT0}, 16\ns_cbranch_scc1 LP_wo")
    poll_counter(a, vP + 4, f"s{sT4}", 16, 1, tail_setup)
    a("LP_wo:")
    a("s_setprio 0")
    stamp(a, 20)
    a("s_barrier")
    stamp(a, 21)
    call_dma(a, 1, 7)
    wo_dma(a, 0, 3, G(3))
    peek(a, 1)
    wo_dma(a, 3, 6, G(6))
    a(f"s_waitcnt vmcnt(0)\nv_readfirstlane_b32 s{sT0}, v{vPS+2}\ns_cmp_ge_u32 s{sT0}, 16\ns_cbranch_scc1 LP_seen")
    poll_counter(a, vP + 4, f"s{sFc}", 16, 1)
    a("LP_seen:")
    call("LP_ldhi")
    call("LP_ldlo")
    a(f"s_add_u32 s{sFo}, s{sFo}, 20480\ns_add_u32 s{sFc}, s{sFc}, 128")
    stamp(a, 25)
    a("s_barrier")
    stamp(a, 5)
    mm = lambda l: a(f"s_call_b64 s[{sLnkM}:{sLnkM+1}], {l}")
    set_tab(a, [G(3), G(4), G(5), G(6), G(7), G(8), G(9), G(10), G(0), G(1)])
    mm("LP_pro")
    a("s_waitcnt vmcnt(0)")
    wo_dma(a, 6, 8, G(9))
    wo_dma(a, 8, 11, G(0))
    a("s_cmp_eq_u32 0, 1")
    mm("LP_hi")
    a(f"""
    s_and_b32 s{sT0}, s{sHead}, 3
    s_lshl_b32 s{sT1}, s{sBr}, 2
    s_add_u32 s{sT0}, s{sT0}, s{sT1}
    s_mul_i32 s{sT0}, s{sT0}, {WO_SLAB}
    s_add_u32 s{sT0}, s{sT0}, {WS_WO + 10240 * 11}
    s_waitcnt vmcnt(0) lgkmcnt(0)
    """)
    assert Lo(0) + 32768 <= RB + BLK + CH
    stamp(a, 26)
    a("s_barrier")
    stamp(a, 28)
    a(f"s_setprio {WOVEN_PRIO}\ns_cmp_eq_u32 0, 0")
    mm("LP_lo")
    stamp(a, 10)
    a("s_waitcnt vmcnt(4)")
    ready_mask(a)
    a("s_cbranch_scc0 LP_n1")
    call("LP_order")
    a(f"s_waitcnt vmcnt(5)\ns_barrier\ns_branch LP_n2\nLP_n1:\ns_waitcnt vmcnt(0)\ns_barrier\ns_mov_b32 s{sSpin}, {SPIN}\nLP_any:")
    peek(a, 3)
    a("s_waitcnt vmcnt(0)")
    ready_mask(a)
    a(f"s_cbranch_scc1 LP_got\ns_sleep {SLEEP}\ns_sub_u32 s{sSpin}, s{sSpin}, 1\ns_cbranch_scc0 LP_any\nLP_got:")
    call("LP_order")
    a("LP_n2:")
    stamp(a, 30)
    T = [G(2), G(3), G(4), G(5), G(6), G(7), G(8), Lo(0), Lo(1), Lo(2)]
    a(f"s_cmp_eq_u32 s{sPh}, 3\ns_cbranch_scc0 LP_n3")
    call("LP_ldlo")
    a(f"LP_n3:\ns_cmp_eq_u32 s{sDone}, 1")
    for r, x, y in zip(TAB, T, T[5:] + T[:5]):
        a(f"s_mov_b32 s{r}, {x}\ns_cmov_b32 s{r}, {y}")
    mm("LP_pro")
    a.c("each group keeps its own accumulators, so the result does not depend on the order of arrival")
    a("s_cbranch_scc0 LP_n4")
    for r in range(40):
        a(f"v_swap_b32 v{pACC + r}, v{pACL + r}")
    a("LP_n4:")
    a(f"s_waitcnt vmcnt(5)\ns_cmp_eq_u32 s{sPh}, 3\ns_cbranch_scc1 LP_n5\ns_waitcnt vmcnt(0)")
    peek(a, 3)
    a("LP_n5:")
    o_checked(a, "LP_ldhi", 0, False)
    stamp(a, 11)
    a(f"s_cmp_lg_u32 s{sPh}, 3")
    mm("LP_hi")
    stamp(a, 12)
    a(f"s_cmp_eq_u32 s{sPh}, 3\ns_cbranch_scc1 LP_n6")
    poll_counter(a, vP + 5, f"s{sFc}", 8, 3)
    call("LP_ldlo")
    a("LP_n6:")
    o_checked(a, "LP_ldlo", 5, True)
    stamp(a, 2)
    if common.STAMP and 'cyc' not in OPT: a(f"s_mov_b32 s{STAMP_S+17}, s{sSpin}")
    a("s_cmp_eq_u32 0, 1")
    mm("LP_lo")
    stamp(a, 16)
    out_store(a)
    a("LP_end:")
    if common.STAMP:
        a("s_waitcnt vmcnt(0)")
        stamp(a, 7)
        stamp_flush(a, 4)
    a("LF_end:\ns_endpgm")
    dma_sub(a)
    refill(a)
    publish_sub(a)
    order_sub(a)
    o_load_sub(a, "LP_ldhi", 0)
    o_load_sub(a, "LP_ldlo", 5)
    oproj_subs(a, G(3), Lo(0))
    repack_steps(a)
    slow_path(a)
    a("LF_codeend:")


def unpack_pk(text):
    import re
    out = []
    for l in text.split("\n"):
        m = re.match(r"\s*v_pk_(add|mul)_f32 v\[(\d+):\d+\], v\[(\d+):\d+\], ([vs])\[(\d+):\d+\](.*)", l)
        z = re.match(r"\s*v_pk_mov_b32 v\[(\d+):\d+\], 0, 0", l)
        if m:
            op, d, x, k, y, mod = m.group(1), int(m.group(2)), int(m.group(3)), m.group(4), int(m.group(5)), m.group(6)
            for i in range(2):
                out.append(f"    v_{op}_f32 v{d+i}, {k}{y + (0 if 'op_sel_hi' in mod else i)}, v{x+i}")
        elif z:
            out += [f"    v_mov_b32 v{int(z.group(1)) + i}, 0" for i in range(2)]
        else:
            out.append(l)
    return "\n".join(out)


def tweak(text):
    out = []
    for l in text.split("\n"):
        if 'kvnt' in OPT and "sc1 lds" in l and any(f" v{vD+i}," in l for i in range(6)):
            l = l.replace("sc1 lds", "sc1 nt lds")
        if 'qnt' in OPT and l.strip().startswith(("buffer_load_dwordx4 v[4:7]", "buffer_load_dwordx4 v[8:11]", "buffer_load_dwordx2 v[12:13]")):
            l += " nt"
        if 'marknt' in OPT and ("v[20:23]" in l or "v[20:21]" in l) and "buffer_store" in l:
            l += " nt"
        out.append(l)
    return "\n".join(out)


def build():
    a = Asm()
    label = NAME + "_kernel"
    a('.amdgcn_target "amdgcn-amd-amdhsa--gfx950"\n.text')
    gen(a, label)
    return (HEADER + f"; @launch grid=(256,1,1) block=(512,1,1) lds={LDS_BYTES}\n" + tweak(a.text())
            + '.section .rodata,"a"\n.p2align 6\n' + kernel_desc(label, NVGPR, NVGPR, 100))


if __name__ == "__main__":
    import sys
    for x in sys.argv[2:]:
        if '=' in x:
            k, v = x.split('='); globals()[k] = int(v)
        else:
            OPT.add(x)
    if 'dbgstamp' in OPT:
        common.STAMP = True
    out = sys.argv[1] if len(sys.argv) > 1 else f"cdna_kernels/{NAME}.s"
    open(out, "w").write(build())
```

```python
from common import Asm, vr, sr, f32bits, kernel_head, kernel_desc, QSCALE, S, D, HEADER, NAME
import common

OPT = set()
SK = 3

TILE = 40960
IMG = 64 * TILE
WS_WO = 8 * IMG
WO_SLAB = 204800
WO_HALF = WO_SLAB // 2
WS_C1 = WS_WO + 8 * WO_SLAB
WS_C3 = WS_C1 + 256 * 128
WS_C4 = WS_C3 + 192 * 128
WS_END = WS_C1 + 512 * 128
WS_STAMP = WS_END + 65536

LDS_BYTES = 163840
GSL = 16384
CH = 11264
BLK = 2 * CH
RING = 3 * BLK
ONES = [90112, 0]
RB = 5120
RA = LDS_BYTES - RING
RPK = RB + RING
XFER = 81920
LCNT = 95232

sX, sWt, sWS, sOut, sDbg = 8, 12, 16, 20, 24
sPtr = 28
sW, sJ, sRole = 40, 41, 42
sHead, sQB, sTI, sTB = 43, 44, 45, 46
sT0, sT1, sT2, sT3, sT4 = 47, 48, 49, 50, 51
sIt, sSlot, sKB, sInc = 52, 53, 54, 55
sXo, sWo = 56, 57
sNext, sRb, sRe, sRem = 52, 53, 54, 55
sM, sMend = 56, 57
sOm, sExt = 58, 59
sSpin = 60
sBr = 61
sU0, sU1, sImg, sPh = 96, 97, 98, 99
sExp = 3
sDone = 36
sOb = 37
sOc = 97
sFo, sFc = 38, 39
sRp = 96
sE = 56
sLnk = 62
STAMP_S = 64

RP_AT = 3
TLB_AT = 2
BLEAD_PRIO = 0
LOFF = -1
SPIN = 1 << 15
SLEEP = 2


NST = 32


def stamp(a, i, stage=False):
    if common.STAMP and not ('cyc' in OPT and 8 <= i <= 19) and not ('front' in OPT and 8 <= i <= 19 and not stage):
        a(f"s_memrealtime s[4:5]\ns_waitcnt lgkmcnt(0)\ns_mov_b32 s{STAMP_S+i}, s4")


def stamp_cyc(a, i):
    if common.STAMP:
        a(f"s_memtime s[4:5]\ns_waitcnt lgkmcnt(0)\ns_mov_b32 s{STAMP_S+i}, s4")


def stamp_idx(a, base, sreg):
    if common.STAMP and 'cyc' in OPT:
        a(f"s_memtime s[4:5]\ns_mov_b32 m0, s{sreg}\ns_waitcnt lgkmcnt(0)\ns_movreld_b32 s{STAMP_S+base}, s4")


def stamp_flush(a, vt):
    if not common.STAMP:
        return
    a(f"""
    s_mov_b64 exec, 1
    s_lshl_b32 s{sT0}, s2, 3
    s_add_u32 s{sT0}, s{sT0}, s{sW}
    s_lshl_b32 s{sT0}, s{sT0}, 7
    s_add_u32 s{sT0}, s{sT0}, {WS_STAMP}
    v_mov_b32 v{vt+2}, 0
    """)
    for i in range(NST):
        a(f"v_mov_b32 v{vt}, s{STAMP_S+i}")
        a(f"buffer_store_dword v{vt}, v{vt+2}, s[{sWS}:{sWS+3}], s{sT0} offen offset:{4*i}")
    if 'dbgstamp' in OPT:
        a(f"s_cmp_eq_u32 s2, 100\ns_cbranch_scc0 LF_nodbg\ns_cmp_eq_u32 s{sJ}, 0\ns_cbranch_scc0 LF_nodbg\ns_lshl_b32 s{sT0}, s{sRole}, 5")
        for i in range(8):
            a(f"s_sub_u32 s{sT1}, s{STAMP_S+i}, s{STAMP_S}")
            a(f"v_mov_b32 v{vt}, s{sT1}")
            a(f"buffer_store_dword v{vt}, v{vt+2}, s[{sDbg}:{sDbg+3}], s{sT0} offen offset:{4*i}")
        a("LF_nodbg:")


def WSR():
    return f"s[{sWS}:{sWS+3}]"


_lbl = [0]


def poll(a, loads, expect, vtmp):
    _lbl[0] += 1
    L = f"LF_poll{_lbl[0]}"
    a(f"s_mov_b32 s{sSpin}, {SPIN}\n{L}:")
    for i, (vo, srd, so) in enumerate(loads):
        a(f"buffer_load_dword v{vtmp+i}, v{vo}, {srd}, {so} offen sc1")
    a("s_waitcnt vmcnt(0)")
    for i in range(1, len(loads)):
        a(f"v_min_u32 v{vtmp}, v{vtmp}, v{vtmp+i}")
    a(f"""
    v_cmp_gt_u32 vcc, {expect}, v{vtmp}
    s_cbranch_vccz {L}_ok
    s_sleep {SLEEP}
    s_sub_u32 s{sSpin}, s{sSpin}, 1
    s_cbranch_scc0 {L}
    {L}_ok:
    """)


def poll_counter(a, vo, so, expect, mask, meanwhile=None):
    _lbl[0] += 1
    L = f"LF_pc{_lbl[0]}"
    rd = (f"v_mov_b32 v{vPS}, 0\nbuffer_atomic_add v{vPS}, v{vo}, {WSR()}, {so} offen sc0 sc1" if 'ldpoll' not in OPT else
          f"buffer_load_dword v{vPS}, v{vo}, {WSR()}, {so} offen sc1")
    a(f"s_mov_b32 s{sSpin}, {SPIN}\ns_mov_b64 exec, {mask}")
    if meanwhile:
        a(f"{rd}\ns_mov_b64 exec, -1")
        meanwhile()
        a(f"s_mov_b64 exec, {mask}\ns_branch {L}_w")
    a(f"""
    {L}:
    {rd}
    {L}_w:
    s_waitcnt vmcnt(0)
    v_cmp_gt_u32 vcc, {expect}, v{vPS}
    s_cbranch_vccz {L}_ok
    s_sleep {SLEEP}
    s_sub_u32 s{sSpin}, s{sSpin}, 1
    s_cbranch_scc0 {L}
    {L}_ok:
    s_mov_b64 exec, -1
    """)


def count_in(a, soff, vz, vd):
    a(f"""
    v_mov_b32 v{vz}, 0
    v_mov_b32 v{vd}, 1
    s_mov_b64 exec, 1
    buffer_atomic_add v{vd}, v{vz}, {WSR()}, s{soff} offen sc1
    s_mov_b64 exec, -1
    """)


gXF = 0
gWF = 160
gWA = [184, 185, 186, 187]
gXA = 188
gT = 189
gACC = 192


PUB_BAR = 12
LAST_BAR = 16
PAIR_Q = 155
HIGH_Q = 144
CLR_AT = 0
CHK_BAR = 8
CNT_AT = 3
ORD = 0
MAP = 0
NFIRST = 5
MAXISS = 3
FAST_BAR = 7
PF_BAR = 3
ROT = 4


def stage_barriers():
    return list(range(0, 12)) + [LAST_BAR]


def gemm_schedule():
    items = [x for n in range(10) for x in (("X", n), ("W", n))] + [("W", n) for n in range(10, 20)]
    if ORD == 1:
        items[:6] = [("X", 0), ("W", 0), ("W", 1), ("W", 2), ("X", 1), ("X", 2)]
    if ORD == 2:
        items[:6] = [("X", 0), ("W", 0), ("W", 1), ("X", 1), ("W", 2), ("X", 2)]
    rel = lambda it: it[1] + (1 if it[0] == "X" else 2)
    free = list(range(10))
    slot, when, freed = {}, {}, set()
    k = 0
    for bar in range(-1, 12):
        for it in items:
            if it in slot and it not in freed and rel(it) <= bar:
                free.append(slot[it])
                freed.add(it)
        n = 0
        while k < len(items) and free and n < (NFIRST if bar == -1 else 10 if bar == 11 else MAXISS if bar >= FAST_BAR else 2) and bar != 10:
            slot[items[k]] = free.pop(0)
            when[items[k]] = bar
            k += 1
            n += 1
    assert k == len(items) and when[("W", LAST_BAR - 1)] <= 9 and when[("W", 17)] == 11
    assert max(rel(it) for it in items[:-3] if slot[it] == slot[("W", 17)]) <= 10
    order = [slot[("W", n)] for n in (15, 16, 17, 18, 19, 13, 14, 10, 11, 12)]
    assert sorted(order) == list(range(10)), order
    slot = {it: order.index(v) for it, v in slot.items()}
    return items, slot, when


LCNT0 = 2 * GSL


def lane_id(a, v):
    a(f"v_mbcnt_lo_u32_b32 v{v}, -1, 0\nv_mbcnt_hi_u32_b32 v{v}, -1, v{v}")


def drained(a):
    a(f"s_waitcnt vmcnt(0)\ns_mov_b64 exec, 1\nds_add_u32 v{gT+1}, v{gT+1} offset:{LCNT0 - 4}\ns_mov_b64 exec, -1\ns_mov_b32 s{sDone}, 1")


def is_clearer(a, skip):
    a(f"""
    s_lshl_b32 s{sT0}, s{sJ}, 8
    s_add_u32 s{sT0}, s{sT0}, s2
    s_sub_u32 s{sT0}, s{sT0}, 240
    s_cmp_lt_u32 s{sT0}, 16
    s_cbranch_scc0 {skip}
    """)


def clear_counters(a, L):
    a.c("sixteen waves clear 32 counter lines each")
    is_clearer(a, f"{L}_cleared")
    a(f"""
    s_lshl_b32 s{sT0}, s{sT0}, 12
    s_add_u32 s{sT0}, s{sT0}, {WS_C1}
    v_mbcnt_lo_u32_b32 v{gT+1}, -1, 0
    v_lshlrev_b32 v{gT+1}, 7, v{gT+1}
    v_mov_b32 v{gT+2}, 0
    s_mov_b32 exec_hi, 0
    buffer_store_dword v{gT+2}, v{gT+1}, {WSR()}, s{sT0} offen sc1
    s_mov_b64 exec, -1
    {L}_cleared:
    """)


def gemm_body(a, vtype):
    L = "LG_v" if vtype else "LG_q"
    items, slot, when = gemm_schedule()
    tmp = gT + 2

    def kc(f):
        return ((f & 1, (f >> 1) & 7) if f >= 144 else ((f >> 3) & 1, f & 7))

    def rd(f, u):
        ks, c = kc(f)
        return f"ds_read_b64_tr_b16 {vr(gWF + 4 * (f % 6) + 2 * u, 2)}, v{tmp if c & 1 else gWA[c >> 1]} offset:{ks * 8192 + u * 1024}"

    def xor(f):
        ks, c = kc(f)
        return [f"v_xor_b32 v{tmp}, 32, v{gWA[c >> 1]}"] if c & 1 and not (f >= 144 and ks) else []

    def acc(c, t):
        return gACC + 8 * c + 4 * t if vtype else gACC + 16 * (c >> 1) + 8 * t + 4 * (c & 1)

    def mfma(f, t):
        ks, c = kc(f)
        x, w, d = vr(gXF + 16 * (f >> 4) + 8 * ks + 4 * t, 4), vr(gWF + 4 * (f % 6), 4), vr(acc(c, t), 4)
        A, B = (x, w) if vtype else (w, x)
        return f"v_mfma_f32_16x16x32_bf16 {d}, {A}, {B}, {'0' if f < 8 else d}"

    def xreads(n, between=""):
        d = gXF + 16 * n
        a(f"v_xor_b32 v{d + 8}, 64, v{gXA}")
        a(between)
        for ks, t in ((0, 0), (0, 1), (1, 1), (1, 0)):
            flip = ks ^ (t if vtype else 0)
            a(f"ds_read_b128 {vr(d + 8 * ks + 4 * t, 4)}, v{d + 8 if flip else gXA} offset:{t * (1024 if vtype else 2048)}")

    def first_reads():
        for f in range(6):
            for x in xor(f) + [rd(f, 1)] + ([rd(f, 0)] if f < 5 else []):
                a(x)

    def pack(C):
        A = gACC + 16 * C
        for j in range(8):
            a(f"v_cvt_pk_bf16_f32 v{gACC + 8*C + j}, v{A+2*j}, v{A+2*j+1}")
        if not vtype:
            for t in range(2):
                for r in range(2):
                    P = gACC + 8 * C + 4 * t + r
                    a(f"v_permlane16_swap_b32 v{P}, v{P+2}")

    def stores(C):
        for i in range(2):
            d = vr(gACC + 8*C + 4*i, 4)
            if vtype:
                a(f"buffer_store_dwordx4 {d}, v{gT}, {WSR()}, s{sE} offen offset:{(2 * C + i) * 256} sc1")
            else:
                a(f"buffer_store_dwordx4 {d}, v{gT}, {WSR()}, s{sE + (C >> 1)} offen offset:{(C & 1) * 2048 + i * 256} sc1")

    a("s_barrier")
    a(f"s_mov_b32 s{sDone}, 1")
    stamp(a, 1)
    xreads(0)
    first_reads()
    a(f"{L}_body:\ns_waitcnt lgkmcnt(9)")
    for f in range(160):
        n, r16 = f >> 4, f & 15
        if f + 6 < 160:
            for x in xor(f + 6):
                a(x)
        adds = {4: 0, 6: 1, 8: 2, 10: 3} if n < 9 else {7: 0, 9: 1, 10: 2, 11: 3}
        if r16 in adds:
            a(f"v_add_u32 v{gWA[adds[r16]]}, s{sInc}, v{gWA[adds[r16]]}")
        a(mfma(f, 0))
        hook = PUB_BAR <= n + 12 <= LAST_BAR
        if hook and r16 == 12:
            a.c("phase b: report once that this wave's stores have drained")
            a(f"s_getreg_b32 s{sT0}, hwreg(HW_REG_IB_STS, 0, 4)" if n + 12 < LAST_BAR else f"s_mov_b32 s{sT0}, 0")
        if hook and r16 == 13:
            a(f"s_or_b32 s{sT0}, s{sT0}, s{sDone}")
        if hook and r16 == 14:
            a(f"s_cbranch_scc0 {L}_da{n}\n{L}_db{n}:")
        if r16 == 0:
            a(f"s_cmp_eq_u32 s{sPh}, 1")
        if r16 == 1:
            a(f"s_mov_b32 s{sInc}, {((slot[('W', n + 1)] - slot[('W', n)]) * GSL) & 0xffffffff}")
        if r16 == 2 and n < 9:
            a(f"s_cmov_b32 s{sInc}, {((slot[('W', n + 11)] - slot[('W', n + 10)]) * GSL) & 0xffffffff}")
        if f == HIGH_Q:
            a("s_setprio 2")
        if f + 5 < 160:
            a(rd(f + 5, 0))
        a(mfma(f, 1))
        if f < 159:
            a(f"s_waitcnt lgkmcnt({2 * max(0, min(f + 5, 159) - (f + 1))})")
        if r16 == 10:
            if n + 11 in stage_barriers():
                a("s_barrier")
            a(f"s_cbranch_scc0 {L}_xa{n}\n{L}_xb{n}:")
        if f + 6 < 160:
            a(rd(f + 6, 1))
        if f == PAIR_Q:
            a(f"s_cbranch_scc0 {L}_np\ns_barrier\n{L}_np:")
        if f in (149, 153, 157):
            if f == 157:
                a("s_nop 1")
            pack((f - 149) // 4)
        if f in (150, 154, 158):
            stores((f - 150) // 4)
    a(f"s_cbranch_scc1 {L}_nopre")
    first_reads()
    a(f"{L}_nopre:\ns_nop 6")
    pack(3)
    stores(3)
    a(f"s_cbranch_scc1 LG_done")
    stamp(a, 2)
    next_units(a)
    step = 6 * 1024 if vtype else 5 * 4096
    a(f"s_add_u32 s{sE}, s{sE}, {step}\ns_add_u32 s{sE+1}, s{sE+1}, {step}\ns_mov_b32 s{sDone}, 0")
    if vtype:
        a(f"s_cmp_eq_u32 s{sTI}, 7\ns_cbranch_scc1 LG_idle")
    a(f"s_branch {L}_body")
    for n in range(10):
        a(f"{L}_xa{n}:")
        if n == CLR_AT:
            clear_counters(a, L)
        if n == CNT_AT:
            a.c("each of them reports in a word of its own")
            a("s_waitcnt vmcnt(0)")
            is_clearer(a, f"{L}_nocount")
            a(f"""
            s_lshl_b32 s{sT0}, s{sT0}, 4
            v_mov_b32 v{gT+1}, 0
            v_mov_b32 v{gT+2}, 1
            s_mov_b64 exec, 1
            buffer_atomic_add v{gT+2}, v{gT+1}, s[{sDbg}:{sDbg+3}], s{sT0} offen offset:12 sc1
            s_mov_b64 exec, -1
            {L}_nocount:
            v_mov_b32 v{gT+1}, 4
            """)
        if n + 1 < 10:
            dx = (slot[("X", n + 1)] - slot[("X", n)]) * GSL
            a(f"v_add_u32 v{gXA}, {dx & 0xffffffff}, v{gXA}")
            xreads(n + 1, "" if n + 11 in stage_barriers() else "s_barrier")
        else:
            a("s_barrier")
        a(f"s_branch {L}_xb{n}")
    for n in range(PUB_BAR - 12, LAST_BAR - 11):
        a(f"{L}_da{n}:")
        drained(a)
        a(f"s_branch {L}_db{n}")


def next_units(a):
    a(f"""
    s_mov_b32 s{sPh}, 1
    s_cmp_ge_u32 s{sTI}, 5
    s_cselect_b32 s{sT0}, 6, 5
    s_add_u32 s{sU0}, s{sU0}, s{sT0}
    s_add_u32 s{sU1}, s{sU1}, s{sT0}
    """)


def publish_sub(a):
    t = 240
    a(f"""
    LG_publish:
    v_cmp_lt_u32 vcc, 31, v0
    v_mov_b32 v{t+3}, s{sU0}
    v_mov_b32 v{t+4}, s{sU1}
    v_cndmask_b32 v{t+3}, v{t+3}, v{t+4}, vcc
    v_mul_u32_u24 v{t+4}, 205, v{t+3}
    v_lshrrev_b32 v{t+4}, 11, v{t+4}
    v_mul_u32_u24 v{t+5}, 10, v{t+4}
    v_sub_u32 v{t+3}, v{t+3}, v{t+5}
    v_lshlrev_b32 v{t+3}, 3, v{t+3}
    v_and_b32 v{t+5}, 31, v0
    v_lshl_add_u32 v{t+4}, v{t+5}, 2, v{t+4}
    v_lshlrev_b32 v{t+4}, 7, v{t+4}
    v_mul_u32_u24 v{t+5}, 5, v{t+5}
    v_lshrrev_b32 v{t+5}, 1, v{t+5}
    v_add_u32 v{t+5}, 2, v{t+5}
    v_sub_u32 v{t+5}, v{t+5}, v{t+3}
    v_cmp_gt_u32 vcc, 10, v{t+5}
    v_mov_b32 v{t+1}, 1
    s_lshl_b32 s{sT1}, s{sBr}, 14
    s_add_u32 s{sT1}, s{sT1}, {WS_C1}
    s_mov_b64 exec, vcc
    buffer_atomic_add v{t+1}, v{t+4}, {WSR()}, s{sT1} offen sc1
    s_mov_b64 exec, -1
    s_setpc_b64 s[{sLnk}:{sLnk+1}]
    """)


def gemm_compute(a):
    items, slot, when = gemm_schedule()
    i, g, t0, t1 = 8, 9, 10, 11
    a(f"""
    v_and_b32 v{i}, 15, v0
    v_lshrrev_b32 v{g}, 4, v0
    v_lshrrev_b32 v{t0}, 2, v0
    v_and_b32 v{t0}, 3, v{t0}
    v_lshl_add_u32 v{t1}, v{g}, 3, v{t0}
    v_lshlrev_b32 v{t1}, 8, v{t1}
    v_lshl_add_u32 v{t1}, v{t0}, 6, v{t1}
    v_and_b32 v{t0}, 16, v0
    v_lshl_add_u32 v{t1}, v{t0}, 1, v{t1}
    v_and_b32 v{t0}, 3, v0
    v_lshl_add_u32 v{t1}, v{t0}, 3, v{t1}
    v_add_u32 v{gWA[0]}, {slot[("W", 0)] * GSL}, v{t1}
    v_xor_b32 v{gWA[1]}, 64, v{gWA[0]}
    v_xor_b32 v{gWA[2]}, 128, v{gWA[0]}
    v_xor_b32 v{gWA[3]}, 192, v{gWA[0]}
    s_lshl_b32 s{sT1}, s{sJ}, 12
    s_add_u32 s{sT1}, s{sT1}, {slot[("X", 0)] * GSL}
    s_lshl_b32 s{sT0}, s{sTB}, 2
    s_add_u32 s{sT0}, s{sT0}, s{sJ}
    s_mul_i32 s{sT0}, s{sT0}, {TILE}
    s_add_u32 s{sT0}, s{sT0}, s{sImg}
    s_cmp_ge_u32 s{sTI}, 5
    s_cbranch_scc1 LG_vtype
    v_lshrrev_b32 v{t0}, 1, v{i}
    v_xor_b32 v{t0}, v{t0}, v{g}
    v_lshlrev_b32 v{t0}, 4, v{t0}
    v_lshl_add_u32 v{t0}, v{i}, 7, v{t0}
    v_add_u32 v{gXA}, s{sT1}, v{t0}
    v_and_b32 v{t0}, 1, v{g}
    v_lshlrev_b32 v{t0}, 10, v{t0}
    v_lshrrev_b32 v{t1}, 1, v{g}
    v_lshl_add_u32 v{t0}, v{t1}, 9, v{t0}
    v_lshl_add_u32 v{gT}, v{i}, 4, v{t0}
    s_lshl_b32 s{sE}, s{sU0}, 12
    s_lshl_b32 s{sE+1}, s{sU1}, 12
    s_cmp_ge_u32 s{sU0}, 10
    s_cselect_b32 s{sT3}, {IMG - 40960}, 0
    s_add_u32 s{sE}, s{sE}, s{sT3}
    s_cmp_ge_u32 s{sU1}, 10
    s_cselect_b32 s{sT3}, {IMG - 40960}, 0
    s_add_u32 s{sE+1}, s{sE+1}, s{sT3}
    s_add_u32 s{sE}, s{sE}, s{sT0}
    s_add_u32 s{sE+1}, s{sE+1}, s{sT0}
    """)
    gemm_body(a, False)
    a.c("V tiles: MFMA row i of token tile t is token 16 (i >> 3) + 8 t + (i & 7)")
    a(f"""
    LG_vtype:
    v_and_b32 v{t1}, 7, v{i}
    v_lshrrev_b32 v{t0}, 1, v{t1}
    v_xor_b32 v{t0}, v{t0}, v{g}
    v_lshlrev_b32 v{t0}, 4, v{t0}
    v_lshl_add_u32 v{t0}, v{t1}, 7, v{t0}
    v_and_b32 v{t1}, 8, v{i}
    v_lshl_add_u32 v{t0}, v{t1}, 8, v{t0}
    v_add_u32 v{gXA}, s{sT1}, v{t0}
    v_mul_u32_u24 v{t0}, 10240, v{g}
    v_lshl_add_u32 v{gT}, v{i}, 4, v{t0}
    s_lshl_b32 s{sE}, s{sU0}, 10
    s_add_u32 s{sE}, s{sE}, {2 * IMG - 20480}
    s_add_u32 s{sE}, s{sE}, s{sT0}
    """)
    gemm_body(a, True)


def touch_pages(a):
    a.c("every MiB that is first used later is touched once per group of workgroups, so that its translation is at hand")
    a(f"""
    s_lshr_b32 s{sT0}, s2, 3
    s_lshl_b32 s{sT0}, s{sT0}, 20
    s_cmp_eq_u32 s{sJ}, 1
    s_cbranch_scc0 LL_t1
    s_min_u32 s{sT1}, s{sT0}, {WS_END - 4}
    s_load_dword s6, s[{sWS}:{sWS+1}], s{sT1}
    LL_t1:
    s_cmp_eq_u32 s{sJ}, 2
    s_cbranch_scc0 LL_t2
    s_min_u32 s{sT1}, s{sT0}, {S * 2 * D * 2 - 4}
    s_load_dword s7, s[{sPtr+4}:{sPtr+5}], s{sT1}
    s_min_u32 s{sT1}, s{sT0}, {D * D * 2 - 4}
    s_load_dword s7, s[{sPtr+2}:{sPtr+3}], s{sT1}
    s_load_dword s6, s[{sPtr+6}:{sPtr+7}], 0
    LL_t2:
    """)


def gemm_loader(a):
    items, slot, when = gemm_schedule()
    vE, vO, vWs, vCnt, vWs2 = 230, 231, 232, 233, 235
    sKX, sKW = sKB, sSlot
    XM = 'nt ' if 'xnt' in OPT else ''
    WM = 'nt ' if 'wnt' in OPT else ''
    a(f"""
    v_lshrrev_b32 v5, 3, v0
    v_mul_u32_u24 v5, 1280, v5
    v_and_b32 v6, 7, v0
    v_lshrrev_b32 v7, 4, v0
    v_xor_b32 v6, v6, v7
    v_lshlrev_b32 v6, 4, v6
    v_add_u32 v{vE}, v5, v6
    v_xor_b32 v6, 64, v6
    v_add_u32 v{vO}, v5, v6
    v_add_u32 v{vO}, {8 * 1280 - 1024}, v{vO}
    v_lshrrev_b32 v5, 2, v0
    v_and_b32 v5, 3, v5
    v_xor_b32 v5, v5, v7
    v_lshrrev_b32 v6, 1, v5
    s_sub_u32 s{sT0}, s{sU1}, s{sU0}
    s_lshl_b32 s{sT0}, s{sT0}, 7
    v_mul_u32_u24 v6, s{sT0}, v6
    v_and_b32 v5, 1, v5
    v_lshl_add_u32 v5, v5, 6, v6
    v_and_b32 v6, 3, v0
    v_lshl_add_u32 v5, v6, 4, v5
    v_mul_u32_u24 v6, 3840, v7
    v_add_u32 v{vWs}, v5, v6
    v_xor_b32 v{vWs2}, 32, v{vWs}
    s_lshl_b32 s{sXo}, s{sTB}, 2
    s_add_u32 s{sXo}, s{sXo}, s{sJ}
    s_mul_i32 s{sXo}, s{sXo}, {32 * 1280}
    s_mul_i32 s{sWo}, s{sJ}, {16 * 3840}
    s_lshl_b32 s{sT0}, s{sU0}, 7
    s_add_u32 s{sWo}, s{sWo}, s{sT0}
    s_lshl_b32 s{sInc}, s{sJ}, 12
    """)
    a.c("workgroups that share a tile start at different k-blocks, so that they fill the L2 together")
    if ROT == 2:
        a(f"s_xor_b32 s{sKX}, s{sTB}, s{sTI}\ns_and_b32 s{sKX}, s{sKX}, 1\ns_mul_i32 s{sKX}, s{sKX}, 5")
    elif ROT == 3:
        a(f"""
        s_and_b32 s{sKX}, s{sTB}, 3
        s_add_u32 s{sKX}, s{sKX}, s{sTI}
        s_mul_i32 s{sT0}, s{sKX}, 43
        s_lshr_b32 s{sT0}, s{sT0}, 7
        s_mul_i32 s{sT0}, s{sT0}, 3
        s_sub_u32 s{sKX}, s{sKX}, s{sT0}
        s_mul_i32 s{sKX}, s{sKX}, 7
        s_lshr_b32 s{sKX}, s{sKX}, 1
        """)
    elif ROT == 4:
        a(f"""
        {f's_lshr_b32 s{sKX}, s{sTI}, 1' if MAP else ''}
        s_add_u32 s{sKX}, s{sTB}, s{sKX if MAP else sTI}
        s_and_b32 s{sKX}, s{sKX}, 3
        s_mul_i32 s{sKX}, s{sKX}, 5
        s_add_u32 s{sKX}, s{sKX}, 1
        s_lshr_b32 s{sKX}, s{sKX}, 1
        """)
    elif ROT:
        a(f"""
        s_and_b32 s{sKX}, s{sTB}, 3
        s_mul_i32 s{sKX}, s{sKX}, 5
        s_add_u32 s{sKX}, s{sKX}, 1
        s_lshr_b32 s{sKX}, s{sKX}, 1
        s_add_u32 s{sKX}, s{sKX}, s{sTI}
        s_cmp_ge_u32 s{sKX}, 10
        s_cselect_b32 s{sT0}, 10, 0
        s_sub_u32 s{sKX}, s{sKX}, s{sT0}
        """)
    else:
        a(f"s_and_b32 s{sKX}, s{sTI}, 1")
    a(f"s_mov_b32 s{sKW}, s{sKX}\ns_mov_b32 s{sIt}, 0")
    a(f"""
    s_mov_b32 s{sX+2}, {S * D * 2}
    s_mov_b32 s{sX+3}, 0x00020000
    s_mov_b32 s{sWt+2}, {D * 3 * D * 2}
    s_mov_b32 s{sWt+3}, 0x00020000
    {'s_waitcnt lgkmcnt(0)' if OPT & {'noearly', 'bearly'} else ''}
    s_and_b32 s{sX+1}, s{sX+1}, 0xffff
    s_mov_b32 s{sWt}, s{sPtr}
    s_and_b32 s{sWt+1}, s{sPtr+1}, 0xffff
    """)
    if 'tlb2' in OPT:
        a.c("start the address translations of the pages of W (and the other end of X) together with the first X loads")
        a(f"""
        s_mul_i32 s{sT0}, s{sJ}, {(D * 3 * D * 2 - 4) // 3 // 4 * 4}
        s_buffer_load_dword s6, s[{sWt}:{sWt+3}], s{sT0}
        """)
    a(f"""
    s_branch LL_go
    """)
    a(f"""
    LL_X:
    s_lshl_b32 s{sT0}, s{sKX}, 7
    s_add_u32 s{sT0}, s{sT0}, s{sXo}
    s_add_u32 s{sKX}, s{sKX}, 1
    buffer_load_dwordx4 v{vE}, s[{sX}:{sX+3}], s{sT0} offen {XM}lds
    buffer_load_dwordx4 v{vO}, s[{sX}:{sX+3}], s{sT0} offen offset:1024 {XM}lds
    s_add_u32 m0, m0, 2048
    s_add_u32 s{sT0}, s{sT0}, {16 * 1280}
    buffer_load_dwordx4 v{vE}, s[{sX}:{sX+3}], s{sT0} offen {XM}lds
    buffer_load_dwordx4 v{vO}, s[{sX}:{sX+3}], s{sT0} offen offset:1024 {XM}lds
    s_cmp_eq_u32 s{sKX}, 10
    s_cselect_b32 s{sKX}, 0, s{sKX}
    s_setpc_b64 s[{sLnk}:{sLnk+1}]
    LL_Wskip:
    s_waitcnt vmcnt(0)
    s_setpc_b64 s[{sLnk}:{sLnk+1}]
    LL_W:
    s_cmp_eq_u32 s{sIt}, 1
    s_cbranch_scc1 LL_Wskip
    s_mul_i32 s{sT1}, s{sKW}, {64 * 3840}
    s_add_u32 s{sT1}, s{sT1}, s{sWo}
    s_add_u32 s{sKW}, s{sKW}, 1
    """)
    for p in range(4):
        a(f"buffer_load_dwordx4 v{vWs2 if p >= 2 else vWs}, s[{sWt}:{sWt+3}], s{sT1} offen {WM}lds")
        if p < 3:
            a(f"s_add_u32 m0, m0, 1024")
            a(f"s_add_u32 s{sT1}, s{sT1}, {4 * 3840}")
    a(f"""
    s_cmp_eq_u32 s{sKW}, 10
    s_cselect_b32 s{sKW}, 0, s{sKW}
    s_setpc_b64 s[{sLnk}:{sLnk+1}]
    """)
    a("LL_go:")
    delay(a, 2)
    q = []

    def issue(it):
        if it == ("W", 10):
            a(f"s_cmp_ge_u32 s{sTI}, 5\ns_cselect_b32 s{sT0}, {6 * 128}, s{sC640}\ns_add_u32 s{sWo}, s{sWo}, s{sT0}")
            a(f"s_cmp_eq_u32 s{sTI}, 7\ns_cselect_b32 s{sIt}, 1, 0")
        a(f"s_add_u32 m0, s{sInc}, {slot[it] * GSL}\ns_call_b64 s[{sLnk}:{sLnk+1}], LL_{it[0]}")
        q.extend([it] * 4)

    def wait_for(names):
        last = max(i for i, x in enumerate(q) if x in names)
        a(f"s_waitcnt vmcnt({min(63, len(q) - 1 - last)})")

    sC640 = sT4
    first = [it for it in items if when[it] == -1]
    for i, it in enumerate(first):
        if i == TLB_AT:
            touch_pages(a)
        issue(it)
    vPf = 234
    bars = stage_barriers()
    for bi, bar in enumerate(bars):
        upto = bars[bi + 1] - 1 if bi + 1 < len(bars) else 19
        wait_for([("X", bar), ("W", upto)] + (["cnt"] if bar == 11 else []))
        if bar == 11:
            if common.STAMP: a(f"s_mov_b32 s{STAMP_S+22}, 0")
            a.c("all counters must have been cleared before the first one is used")
            a(f"v_cmp_gt_u32 vcc, 1, v{vCnt}\ns_cbranch_vccz LL_cnt_ok")
            if common.STAMP: a(f"s_mov_b32 s{STAMP_S+22}, 1")
            poll(a, [(vP + 5, f"s[{sDbg}:{sDbg+3}]", "0")], 1, vPS)
            a("LL_cnt_ok:")
        a("s_barrier")
        if bar not in (2, 3, 4, 5, 6, 7, 8, 9) or 'front' in OPT: stamp(a, 8 + min(bar, 15), True)
        if bar == 11:
            attn_scalars(a)
            attn_vectors(a)
            repack_setup(a)
            a.c("wave 0 publishes the phase-a tile once its four storing waves have reported")
            a(f"""
            v_mov_b32 v{vP+2}, {LCNT0}
            s_cmp_lg_u32 s{sJ}, 0
            s_cbranch_scc1 LL_pub
            s_mov_b32 s{sSpin}, {SPIN * 8}
            LL_try:
            ds_read_b32 v{vP}, v{vP+2}
            s_waitcnt lgkmcnt(0)
            v_readfirstlane_b32 s{sT0}, v{vP}
            s_cmp_eq_u32 s{sT0}, 16
            s_cbranch_scc1 LL_try_go
            s_sub_u32 s{sSpin}, s{sSpin}, 1
            s_cbranch_scc0 LL_try
            LL_try_go:
            s_call_b64 s[{sLnk}:{sLnk+1}], LG_publish
            """)
            stamp(a, 27)
            a("LL_pub:")
        a(f"s_mov_b32 s{sC640}, 640")
        for it in items:
            if when[it] == bar:
                issue(it)
        if bar == 11:
            lead_prepare(a)
        if bar == 10:
            a(f"v_mov_b32 v{vP}, 0\nv_mov_b32 v{vP+2}, {LCNT0}\nds_write_b32 v{vP+2}, v{vP}\ns_waitcnt lgkmcnt(0)")
        if bar + 10 == TLB_AT:
            touch_pages(a)
        if bar == PF_BAR:
            a.c("one load per 128-B line of the phase-b columns of five weight rows brings them on chip ahead of use")
            a(f"""
            s_lshr_b32 s{sT0}, s2, 3
            s_lshl_b32 s{sT0}, s{sT0}, 2
            s_and_b32 s{sT1}, s2, 3
            s_add_u32 s{sT0}, s{sT0}, s{sT1}
            s_mul_i32 s{sT0}, s{sT0}, {5 * 3840}
            s_mul_i32 s{sT1}, s{sJ}, 19
            v_add_u32 v8, s{sT1}, v0
            v_min_u32 v8, 74, v8
            v_mul_u32_u24 v9, 205, v8
            v_lshrrev_b32 v9, 10, v9
            v_mul_u32_u24 v9, 5, v9
            v_add3_u32 v9, v9, v8, 5
            v_lshlrev_b32 v{vPf}, 7, v9
            s_mov_b64 exec, 0x7ffff
            buffer_load_dword v{vPS}, v{vPf}, s[{sWt}:{sWt+3}], s{sT0} offen
            s_mov_b64 exec, -1
            """)
            q.append("pf")
        if bar == CHK_BAR:
            common_setup(a)
            a(f"v_lshlrev_b32 v{vP+5}, 2, v0\nv_or_b32 v{vP+5}, 12, v{vP+5}")
            a(f"buffer_load_dword v{vCnt}, v{vP+5}, s[{sDbg}:{sDbg+3}], 0 offen sc1")
            q.append("cnt")
    a("s_branch LA_lead")


vKA, vVA, vT0, vT1 = 1, 2, 3, 14
Qm = [4, 8]
Qe = 12
vL16 = 15
Km = [16, 20]
Ke = 24
Vb = [[28, 32], [36, 40]]
vVbase, vVflag, vE16, vVG = 44, 45, 46, 47
NM = 48
SB = [80, 112]
OA = [144, 160]
vD = 176
vP = 182
vPS = 188
vVB2 = 248
vIdx, vK16 = 192, 193
NVGPR = 256


def mfma32(d, a_, b, c):
    return f"v_mfma_f32_32x32x16_bf16 {vr(d,16)}, {vr(a_,4)}, {vr(b,4)}, {c}"


def mfma2b(d, ke_tile, c):
    return (f"v_mfma_f32_32x32x4_2b_bf16 {vr(d,32)}, {vr(Ke + 2 * (ke_tile >> 1), 2)}, {vr(Qe,2)}, {c}"
            f" cbsz:1 abid:{ke_tile & 1}")


def pv(o, v, p):
    return f"v_smfmac_f32_32x32x32_bf16 {vr(o,16)}, {vr(v,4)}, {vr(p,8)}, v{vIdx}"


POS = [2, 6, 14, 18, 22, 26, 30]


def tile_iter(a, ii, half=1):
    par = ii & 1
    X, Y = SB[par], SB[par ^ 1]
    Vc, Vn = Vb[par], Vb[par ^ 1]
    Kc, Kn = Km[par ^ 1], Km[par]
    t1 = (ii + 1) % 4
    t2 = (ii + 2) % 4
    kch = CH if (half == 0) == (ii >= 2) else 0
    rv0 = f"ds_read_b128 {vr(Vn[0],4)}, v{vVA} offset:{t1 * 1280}"
    rv1 = f"ds_read_b128 {vr(Vn[1],4)}, v{vVA} offset:{t1 * 1280 + 640}"
    rk = f"ds_read_b128 {vr(Kn,4)}, v{vKA} offset:{kch + 2048 + t2 * 1024}"
    rke = f"ds_read2st64_b64 {vr(Ke,4)}, v{vKA} offset0:{kch // 512} offset1:{kch // 512 + 2}"
    g = [[pv(OA[1], Vn[1], Y + 24), rv0],
         [mfma2b(Y, t1, vr(NM, 32))],
         [pv(OA[0], Vc[0], X), rv1],
         [pv(OA[0], Vc[1], X + 8), rk],
         [mfma32(Y, Kc, Qm[0], vr(Y, 16))],
         [mfma32(Y + 16, Kc, Qm[1], vr(Y + 16, 16))],
         [pv(OA[1], Vc[0], X + 16), "s_waitcnt lgkmcnt(0)"]]
    late = []
    if ii == 0:
        g[4].append(f"s_add_u32 s{sNext}, s{sNext}, {CH}")
    if ii == 2:
        g[4].append(rke)
        late = [f"v_mad_u32_u24 v{vVA}, v{vVflag}, s{sNext}, v{vVbase}"]
    if half == 0:
        if ii == 1:
            g[4].append(f"s_cmp_eq_u32 s{sM}, s{sRp}")
            g[5] += ["s_cbranch_scc1 LR_step", "LA_bar:"]
        if ii == 2 and 'noprio' not in OPT:
            g[5].append("s_setprio 0")
        if ii == 3:
            g[4].append(f"s_bitcmp1_b32 s{sMend}, s{sM}")
            g[6][1] = "s_waitcnt vmcnt(0) lgkmcnt(0)"
            g[6].append("s_barrier")
            if common.STAMP and 'cyc' in OPT:
                g[6] += [f"s_memtime s[{STAMP_S+28}:{STAMP_S+29}]"]
            if 'noprio' not in OPT:
                g[6].append("s_setprio 1")
            g[6] += ["s_cbranch_scc1 LA_refill", "LA_back:"]
    else:
        if ii == 0:
            g[5].append(f"s_cmp_eq_u32 s{sNext}, s{sRe}")
            if common.STAMP and 'cyc' in OPT:
                g[6] += [f"s_mov_b32 m0, s{sM}", "s_nop 0", f"s_movreld_b32 s{STAMP_S+8}, s{STAMP_S+28}"]
        if ii == 1:
            g[4].append(f"s_cselect_b32 s{sNext}, s{sRb}, s{sNext}")
            g[5].append(f"s_add_u32 s{sM}, s{sM}, 1")
            late = [f"v_add_u32 v{vKA}, s{sNext}, v{vK16}"]
        if ii == 3:
            g[5].append(f"s_sub_u32 s{sRem}, s{sRem}, 1")
    assert POS[2] >= 10 and POS[3] >= 18 and POS[6] >= 26 and POS[0] >= 2
    assert (POS[4] - POS[1]) + 4 >= 18 and (32 - POS[4]) + 3 >= 12
    ins = dict(zip(POS, g))
    for p in range(32):
        for x in ins.get(p, []):
            a(x)
        a(f"v_exp_f32 v{X+p}, v{X+p}")
        if p == 30:
            for x in late:
                a(x)


def rowmax(a, X, out0, out1):
    for base, o in ((X, out0), (X + 16, out1)):
        a(f"v_max3_f32 v{o}, v{base}, v{base+1}, v{base+2}")
        for r in range(3, 15, 2):
            a(f"v_max3_f32 v{o}, v{o}, v{base+r}, v{base+r+1}")
        a(f"v_max_f32 v{o}, v{o}, v{base+15}")


def cross_half_max(a, r, tmp):
    a(f"v_mov_b32 v{tmp}, v{r}\ns_nop 1\nv_permlane32_swap_b32 v{tmp}, v{r}\ns_nop 1\nv_max_f32 v{r}, v{r}, v{tmp}")


def fill_nm(a, m0, m1):
    for r in range(16):
        a(f"v_sub_f32 v{NM+r}, 0, v{m0}")
    for r in range(16):
        a(f"v_sub_f32 v{NM+16+r}, 0, v{m1}")


def attn_scalars(a):
    a.c("head offsets: main octs start at (5g+1)>>1; the ext quad shares an oct with the neighbouring head;")
    a.c("arrivals expected per kind: 16 token blocks x number of 64-column units that hold the head")
    a(f"""
    s_mul_i32 s{sOm}, s{sHead}, 5
    s_add_u32 s{sOm}, s{sOm}, 1
    s_lshr_b32 s{sOm}, s{sOm}, 1
    s_lshl_b32 s{sOm}, s{sOm}, 9
    s_and_b32 s{sT0}, s{sHead}, 1
    s_mov_b32 s{sT1}, 1024
    s_cselect_b32 s{sT1}, {(-512 + 8) & 0xffffffff}, s{sT1}
    s_add_u32 s{sExt}, s{sOm}, s{sT1}
    s_min_u32 s{sT0}, s{sOm}, s{sExt}
    s_add_u32 s{sT2}, s{sOm}, 512
    s_max_u32 s{sT1}, s{sExt}, s{sT2}
    s_lshr_b32 s{sT0}, s{sT0}, 12
    s_lshr_b32 s{sT1}, s{sT1}, 12
    s_cmp_eq_u32 s{sT0}, s{sT1}
    s_cselect_b32 s{sExp}, 16, 32
    """)


def attn_vectors(a):
    a(f"""
    s_and_b32 s{sT0}, s{sHead}, 1
    v_lshlrev_b32 v{vL16}, 4, v0
    v_lshrrev_b32 v{vT0}, 5, v0
    v_mul_u32_u24 v{vT1}, {TILE}, v{vT0}
    v_and_b32 v{vP}, 31, v0
    v_lshl_add_u32 v{vE16}, v{vP}, 4, v{vT1}
    """)
    a.c("V rows: 0..15 main dims, 16..19 ext dims, 20 and 24 ones, the others zero (address past the allocation)")
    a(f"""
    s_lshl_b32 s{sT0}, s{sT0}, 2
    v_and_b32 v{vP+1}, 3, v0
    v_and_b32 v{vP+2}, 4, v0
    v_lshl_add_u32 v{vP+1}, v{vP+2}, 1, v{vP+1}
    v_and_b32 v{vP+2}, 8, v0
    v_lshrrev_b32 v{vP+2}, 1, v{vP+2}
    v_add3_u32 v{vP+1}, v{vP+1}, v{vP+2}, s{sT0}
    s_lshl_b32 s{sT0}, s{sT0}, 2
    v_subrev_u32 v{vP+2}, s{sT0}, v{vP}
    v_cmp_gt_u32 vcc, 16, v{vP}
    v_mul_u32_u24 v{vT1}, 10240, v{vT0}
    v_mul_u32_u24 v{vT0}, 320, v{vT0}
    v_cndmask_b32 v{vP+1}, v{vP+2}, v{vP+1}, vcc
    v_lshlrev_b32 v{vP+1}, 4, v{vP+1}
    v_add_u32 v{vVG}, v{vP+1}, v{vT1}
    v_add_u32 v{vVbase}, v{vP+1}, v{vT0}
    v_add_u32 v{vVbase}, 6144, v{vVbase}
    v_cmp_gt_u32 vcc, 20, v{vP}
    v_mov_b32 v{vP+1}, 0x100000
    v_mov_b32 v{vP+2}, {ONES[0]}
    v_cndmask_b32 v{vVflag}, 0, 1, vcc
    v_cndmask_b32 v{vVbase}, v{vP+1}, v{vVbase}, vcc
    v_cmp_eq_u32 vcc, 20, v{vP}
    v_cmp_eq_u32 s[{sT3}:{sT4}], {20 if 'one1' in OPT else 24}, v{vP}
    s_or_b64 vcc, vcc, s[{sT3}:{sT4}]
    v_mov_b32 v{vP+1}, {ONES[1]}
    s_nop 0
    v_cndmask_b32 v{vVB2}, v{vVbase}, v{vP+1}, vcc
    v_cndmask_b32 v{vVbase}, v{vVbase}, v{vP+2}, vcc
    """)
    a.c("DMA source offsets: even waves load K pieces, odd waves V pieces")
    a(f"""
    s_and_b32 s{sT0}, s{sJ}, 1
    s_cbranch_scc1 LA_dv
    v_add_u32 v{vD}, s{sExt}, v{vE16}
    v_add_u32 v{vD+1}, {2 * TILE}, v{vD}
    v_add_u32 v{vD+2}, s{sOm}, v{vL16}
    v_add_u32 v{vD+3}, {TILE}, v{vD+2}
    v_add_u32 v{vD+4}, {TILE}, v{vD+3}
    v_add_u32 v{vD+5}, {TILE}, v{vD+4}
    s_branch LA_dd
    LA_dv:
    s_mul_i32 s{sT0}, s{sHead}, 320
    s_add_u32 s{sT0}, s{sT0}, {IMG}
    """)
    for p in range(5):
        a(f"""
        v_add_u32 v{vP}, {64 * p}, v0
        v_mul_u32_u24 v{vP+1}, 3277, v{vP}
        v_lshrrev_b32 v{vP+1}, 16, v{vP+1}
        v_mul_u32_u24 v{vP+2}, 20, v{vP+1}
        v_sub_u32 v{vP+2}, v{vP}, v{vP+2}
        v_mul_u32_u24 v{vP+1}, 10240, v{vP+1}
        v_lshl_add_u32 v{vP+1}, v{vP+2}, 4, v{vP+1}
        v_add_u32 v{vD+p}, s{sT0}, v{vP+1}
        """)
    a(f"""
    v_mov_b32 v{vD+5}, v{vD+4}
    LA_dd:
    v_lshlrev_b32 v{vP+3}, 7, v0
    v_mov_b32 v{vP+4}, 0
    """)


def vectors_put(a):
    a(f"""
    s_and_b32 s{sT0}, s{sJ}, 1
    s_lshl_b32 s{sT0}, s{sT0}, 12
    s_add_u32 s{sT0}, s{sT0}, {XFER}
    v_add_u32 v{vT0}, s{sT0}, v{vL16}
    v_mov_b32 v20, v{vVB2}
    v_mov_b32 v21, v{vVflag}
    v_mov_b32 v22, v{vE16}
    v_mov_b32 v23, v{vVG}
    ds_write_b128 v{vT0}, v[20:23]
    ds_write_b128 v{vT0}, {vr(vD,4)} offset:1024
    ds_write_b64 v{vT0}, {vr(vD+4,2)} offset:2048
    """)


def vectors_get(a):
    lane_id(a, 0)
    a(f"""
    s_and_b32 s{sT0}, s{sJ}, 1
    s_lshl_b32 s{sT0}, s{sT0}, 12
    s_add_u32 s{sT0}, s{sT0}, {XFER}
    v_lshlrev_b32 v{vL16}, 4, v0
    v_add_u32 v{vT0}, s{sT0}, v{vL16}
    ds_read_b128 {vr(vVbase,4)}, v{vT0}
    ds_read_b128 {vr(vD,4)}, v{vT0} offset:1024
    ds_read_b64 {vr(vD+4,2)}, v{vT0} offset:2048
    v_lshlrev_b32 v{vP+3}, 7, v0
    """)
    attn_scalars(a)
    a("s_waitcnt lgkmcnt(0)")


def dma_sub(a):
    a(f"""
    LA_dma:
    s_add_u32 s{sT2}, s{sT1}, s{sQB if 'kvrot' in OPT else sHead}
    s_and_b32 s{sT2}, s{sT2}, 7
    s_lshl_b32 s{sT2}, s{sT2}, 1
    s_lshr_b32 s{sT3}, s{sJ}, 1
    s_add_u32 s{sT2}, s{sT2}, s{sT3}
    s_mul_i32 s{sT2}, s{sT2}, {4 * TILE}
    s_lshl_b32 s{sT4}, s{sJ}, 1
    s_and_b32 s{sT4}, s{sT4}, 2
    s_lshr_b32 s{sT4}, 20480, s{sT4}
    s_mul_i32 s{sT4}, s{sT4}, s{sT0}
    s_add_u32 s{sT2}, s{sT2}, s{sT4}
    s_add_u32 s{sT2}, s{sT2}, s{sImg}
    s_add_u32 s{sT2}, s{sT2}, {IMG}
    s_sub_u32 s{sT1}, s{sT1}, s{sT0}
    s_add_u32 s{sT1}, s{sT1}, 1
    s_mul_i32 s{sT4}, s{sT1}, 43
    s_lshr_b32 s{sT4}, s{sT4}, 7
    s_mul_i32 s{sT4}, s{sT4}, 3
    s_sub_u32 s{sT1}, s{sT1}, s{sT4}
    s_lshl_b32 s{sT1}, s{sT1}, 1
    s_add_u32 s{sT1}, s{sT1}, s{sT3}
    s_mul_i32 s{sT1}, s{sT1}, {CH}
    s_mul_i32 s{sT4}, s{sT0}, {RA - RB}
    s_sub_u32 s{sT1}, s{sT1}, s{sT4}
    s_add_u32 s{sT1}, s{sT1}, {RA}
    s_and_b32 s{sT3}, s{sJ}, 1
    s_mul_i32 s{sT4}, s{sT3}, 6144
    s_add_u32 m0, s{sT1}, s{sT4}
    s_nop 0
    """)
    for p in range(5):
        a(f"buffer_load_dwordx4 v{vD+p}, {WSR()}, s{sT2} offen sc1 lds")
        a("s_add_u32 m0, m0, 1024")
        a("s_nop 0" if p < 4 else f"s_cmp_eq_u32 s{sT3}, 1")
    a(f"""
    s_cbranch_scc1 LA_dma_ret
    buffer_load_dwordx4 v{vD+5}, {WSR()}, s{sT2} offen sc1 lds
    LA_dma_ret:
    s_setpc_b64 s[{sLnk}:{sLnk+1}]
    """)


def call_dma(a, b, blk):
    a(f"s_mov_b32 s{sT0}, {b}\ns_mov_b32 s{sT1}, {blk}\ns_call_b64 s[{sLnk}:{sLnk+1}], LA_dma")


def poll_f1(a):
    a(f"""
    s_lshl_b32 s{sT0}, s{sBr}, 5
    s_add_u32 s{sT0}, s{sT0}, s{sHead}
    s_lshl_b32 s{sT0}, s{sT0}, 9
    s_add_u32 s{sT0}, s{sT0}, {WS_C1}
    """)
    poll_counter(a, vP + 3, f"s{sT0}", f"s{sExp}", 7)


def load_q(a):
    a(f"""
    s_lshl_b32 s{sT0}, s{sQB}, 2
    s_add_u32 s{sT0}, s{sT0}, s{sJ}
    s_mul_i32 s{sT0}, s{sT0}, {2 * TILE}
    s_add_u32 s{sT0}, s{sT0}, s{sImg}
    s_add_u32 s{sT1}, s{sT0}, s{sOm}
    s_add_u32 s{sT2}, s{sT1}, {TILE}
    s_add_u32 s{sT0}, s{sT0}, s{sExt}
    buffer_load_dwordx4 {vr(Qm[0],4)}, v{vL16}, {WSR()}, s{sT1} offen sc1
    buffer_load_dwordx4 {vr(Qm[1],4)}, v{vL16}, {WSR()}, s{sT2} offen sc1
    buffer_load_dwordx2 {vr(Qe,2)}, v{vE16}, {WSR()}, s{sT0} offen sc1
    """)


def scale_q(a, nyounger):
    a(f"s_mov_b32 s4, {hex(f32bits(QSCALE))}\ns_mov_b32 s5, s4\ns_waitcnt vmcnt({nyounger})")
    for r in range(Qm[0], Qe + 2):
        a(f"""
        v_lshlrev_b32 v{vPS+2}, 16, v{r}
        v_and_b32 v{vPS+3}, 0xffff0000, v{r}
        v_pk_mul_f32 {vr(vPS+2,2)}, {vr(vPS+2,2)}, s[4:5]
        v_cvt_pk_bf16_f32 v{r}, v{vPS+2}, v{vPS+3}
        """)


def attn_zero(a):
    Z = Vb[1][1]
    for r in (Z, Z + 2, SB[1] + 24, SB[1] + 26, SB[1] + 28, SB[1] + 30):
        a(f"v_pk_mov_b32 {vr(r,2)}, 0, 0")
    a(f"v_mov_b32 v{vP}, 0xbf803f80\nv_mov_b32 v{vP+1}, 0\nv_mov_b32 v{vPS+1}, 0")
    a(f"v_mfma_f32_32x32x4_2b_bf16 {vr(OA[0],32)}, {vr(Z,2)}, {vr(Z,2)}, 0")
    a(f"""
    s_add_u32 s{sRe}, s{sRb}, {RING}
    s_mov_b32 s{sRem}, 7
    v_mov_b32 v{vIdx}, 0xdddddddd
    v_lshrrev_b32 v{vK16}, 1, v{vL16}
    v_xor_b32 v{vK16}, v{vK16}, v{vL16}
    v_and_b32 v{vK16}, 64, v{vK16}
    v_mul_u32_u24 v{vK16}, 3, v{vK16}
    v_xor_b32 v{vK16}, v{vK16}, v{vL16}
    v_add_u32 v{vKA}, s{sNext}, v{vK16}
    v_mad_u32_u24 v{vVA}, v{vVflag}, s{sNext}, v{vVbase}
    """)


DELAY_AT, DELAY = 0, 0


def delay(a, at):
    if DELAY_AT == at and DELAY:
        a(f"s_memrealtime s[4:5]\ns_waitcnt lgkmcnt(0)\ns_add_u32 s6, s4, {DELAY}\nLD_{at}:\ns_sleep 1\ns_memrealtime s[4:5]\ns_waitcnt lgkmcnt(0)\ns_cmp_lt_u32 s4, s6\ns_cbranch_scc1 LD_{at}")


def attention(a):
    X = SB[0]
    delay(a, 1)
    a("LA_start:")
    stamp_cyc(a, 24)
    a(f"""
    ds_read_b128 {vr(Km[0],4)}, v{vKA} offset:2048
    ds_read2st64_b64 {vr(Ke,4)}, v{vKA} offset0:0 offset1:2
    ds_read_b128 {vr(Km[1],4)}, v{vKA} offset:3072
    ds_read_b128 {vr(Vb[0][0],4)}, v{vVA}
    ds_read_b128 {vr(Vb[0][1],4)}, v{vVA} offset:640
    s_waitcnt lgkmcnt(4)
    """)
    a(mfma32(X, Km[0], Qm[0], 0))
    a(mfma32(X + 16, Km[0], Qm[1], 0))
    a("s_nop 8\ns_waitcnt lgkmcnt(3)")
    a(mfma2b(X, 0, vr(X, 32)))
    a("s_nop 15\ns_nop 3")
    a.c("softmax shift: row max over the first key tile, cut to bf16; the epilogue checks that it was safe.")
    a.c("An MFMA (-1 x shift + 1 x half a bf16 step, which centres the cut to bf16 at the row max) applies it to the scores")
    a.c("and spreads it over the C operand of the loop")
    rowmax(a, X, vT0, vT1)
    a(f"""
    s_nop 1
    v_permlane32_swap_b32 v{vT0}, v{vT1}
    s_nop 1
    v_max_f32 v{vT0}, v{vT0}, v{vT1}
    v_and_b32 v{vPS}, 0xffff0000, v{vT0}
    v_or_b32 v{vPS}, 0x3bb8, v{vPS}
    s_nop 1
    v_mfma_f32_32x32x4_2b_bf16 {vr(X,32)}, {vr(vP,2)}, {vr(vPS,2)}, {vr(X,32)}
    v_mfma_f32_32x32x4_2b_bf16 {vr(NM,32)}, {vr(vP,2)}, {vr(vPS,2)}, 0
    s_nop 15
    s_nop 0
    s_setprio {0 if 'noprio' in OPT else 1}
    s_waitcnt lgkmcnt(0)
    """)
    if LOFF >= 0:
        a(f"s_branch LA_loop\n.p2align 8\n.fill {LOFF // 4}, 4, 0xbf800000\nLA_loop:")
    else:
        a(".p2align 6\nLA_loop:")
    for half in range(2):
        for ii in range(4):
            tile_iter(a, ii, half)
    a("s_cbranch_scc0 LA_loop\ns_nop 0")
    a(pv(OA[1], Vb[1][1], SB[1] + 24))
    if 'alow' in OPT:
        a("s_setprio 0")
    a(f"s_cmp_eq_u32 s{sRole}, 0\ns_cbranch_scc1 LA_fin2\ns_setprio 2")
    a.c("announce that the results are about to be stored; readers then wait for the markers to disappear")
    count_in(a, sOc, vP, vP + 1)
    a("LA_fin2:")
    stamp(a, 4)
    stamp_cyc(a, 31)
    N = SB[0]
    rc = SB[1]
    tm = rc + 4

    def rowsum(u, d):
        if 'one1' in OPT:
            return f"v_mov_b32 v{d}, v{OA[u]+8}\nv_mov_b32 v{OA[u]+12}, v{OA[u]+8}\ns_nop 1\nv_permlane32_swap_b32 v{OA[u]+12}, v{d}"
        return f"v_cndmask_b32 v{d}, v{OA[u]+12}, v{OA[u]+8}, vcc"

    def norm(u):
        O, P = OA[u], N + 12 * u
        for r in range(0, 12, 2):
            a(f"v_pk_mul_f32 {vr(P+r,2)}, {vr(O+r,2)}, {vr(rc+2*u,2)} op_sel_hi:[1,0]")
        for j in range(6):
            a(f"v_cvt_pk_bf16_f32 v{P+j}, v{P+2*j}, v{P+2*j+1}")
    a(f"""
    s_mov_b32 s{sRem}, 0
    LA_epi:
    v_cmp_lt_u32 vcc, 31, v0
    s_add_u32 s{sT0}, s{sOb}, s{sOm}
    s_add_u32 s{sT1}, s{sT0}, {TILE}
    {rowsum(0, vT0)}
    v_rcp_f32 v{rc}, v{vT0}
    v_pk_add_f32 {vr(tm,2)}, {vr(OA[0],2)}, {vr(OA[0]+2,2)}
    """)
    a.c("safety check of the shift before anything is stored: row sums inside [2^-30, 2^30], finite accumulators")
    for r in range(4, 12, 2):
        a(f"v_pk_add_f32 {vr(tm,2)}, {vr(tm,2)}, {vr(OA[0]+r,2)}")
    norm(0)
    a(f"{rowsum(1, vT1)}\nv_rcp_f32 v{rc+2}, v{vT1}")
    for r in range(0, 12, 2):
        a(f"v_pk_add_f32 {vr(tm,2)}, {vr(tm,2)}, {vr(OA[1]+r,2)}")
    a(f"""
    v_add_f32 v{tm}, v{tm}, v{tm+1}
    v_add_f32 v{tm+1}, v{vT0}, v{vT1}
    v_fma_f32 v{tm}, 0, v{tm}, v{tm+1}
    v_min_f32 v{tm+1}, v{vT0}, v{vT1}
    v_cmp_gt_f32 vcc, {hex(f32bits(2.0**30))}, v{tm}
    s_mov_b64 s[4:5], vcc
    v_cmp_lt_f32 vcc, {hex(f32bits(2.0**-30))}, v{tm+1}
    """)
    for j in range(4):
        a(f"v_min_u32 v{N+j}, -2, v{N+j}")
    a(f"""
    s_and_b64 s[4:5], s[4:5], vcc
    s_cmp_eq_u64 s[4:5], -1
    s_cselect_b32 s{sT3}, 1, s{sRem}
    s_cmp_eq_u32 s{sT3}, 0
    s_cbranch_scc1 LA_slow
    buffer_store_dwordx4 {vr(N,4)}, v{vL16}, {WSR()}, s{sT0} offen sc1
    """)
    norm(1)
    for j in range(4):
        a(f"v_min_u32 v{N+12+j}, -2, v{N+12+j}")
    a(f"""
    buffer_store_dwordx4 {vr(N+12,4)}, v{vL16}, {WSR()}, s{sT1} offen sc1
    v_permlane32_swap_b32 v{N+4}, v{N+16}
    v_permlane32_swap_b32 v{N+5}, v{N+17}
    s_add_u32 s{sT2}, s{sOb}, s{sExt}
    v_min_u32 v{N+4}, -2, v{N+4}
    v_min_u32 v{N+5}, -2, v{N+5}
    buffer_store_dwordx2 {vr(N+4,2)}, v{vE16}, {WSR()}, s{sT2} offen sc1
    """)


def o_base(a):
    a(f"""
    s_lshl_b32 s{sT0}, s{sQB}, 2
    s_add_u32 s{sT0}, s{sT0}, s{sJ}
    s_mul_i32 s{sOb}, s{sT0}, {2 * TILE}
    s_add_u32 s{sOb}, s{sOb}, s{sImg}
    s_add_u32 s{sOb}, s{sOb}, {3 * IMG}
    """)
    a(f"s_lshr_b32 s{sT1}, s{sHead}, 3\ns_max_u32 s{sT1}, s{sT1}, 1\ns_sub_u32 s{sT1}, s{sT1}, 1")
    c3_off(a, sOc, sT0, sT1)


def o_mark(a):
    o_base(a)
    a(f"""
    s_add_u32 s{sT0}, s{sOb}, s{sOm}
    s_add_u32 s{sT1}, s{sT0}, {TILE}
    s_add_u32 s{sT2}, s{sOb}, s{sExt}
    buffer_store_dwordx4 v[20:23], v{vL16}, {WSR()}, s{sT0} offen sc1
    buffer_store_dwordx4 v[20:23], v{vL16}, {WSR()}, s{sT1} offen sc1
    buffer_store_dwordx2 v[20:21], v{vE16}, {WSR()}, s{sT2} offen sc1
    """)


def refill(a):
    a.c("role-B waves refill both rings: after barrier m, A block m+2 and B block m-SK+2")
    a(f"""
    LA_refill:
    s_cmp_gt_u32 s{sM}, 5
    s_cbranch_scc1 LA_ev_b
    s_mov_b32 s{sT0}, 0
    s_add_u32 s{sT1}, s{sM}, 2
    s_call_b64 s[{sLnk}:{sLnk+1}], LA_dma
    LA_ev_b:
    s_sub_u32 s{sT1}, s{sM}, {SK - 2}
    s_cmp_lt_u32 s{sT1}, 3
    s_cbranch_scc1 LA_back
    s_mov_b32 s{sT0}, 1
    s_call_b64 s[{sLnk}:{sLnk+1}], LA_dma
    s_branch LA_back
    """)


def slow_path(a):
    X = SB[0]
    m0, m1, t0, t1 = SB[1], SB[1] + 1, SB[1] + 2, SB[1] + 3

    def kloads(t):
        a(f"buffer_load_dwordx4 {vr(Km[0],4)}, v{vL16}, {WSR()}, s{sT1} offen sc1")
        if t == 0:
            a(f"buffer_load_dwordx2 {vr(Ke,2)}, v{vE16}, {WSR()}, s{sT2} offen sc1")
            a(f"s_add_u32 s{sT2}, s{sT2}, {2 * TILE}")
        a(f"s_add_u32 s{sT1}, s{sT1}, {TILE}")

    def kbase():
        a(f"""
        s_add_u32 s{sT0}, s{sImg}, {IMG}
        s_add_u32 s{sT1}, s{sT0}, s{sOm}
        s_add_u32 s{sT2}, s{sT0}, s{sExt}
        s_mov_b32 s{sRem}, 0
        """)
    a(f"LA_slow:\nv_mov_b32 v{m0}, 0xff800000\nv_mov_b32 v{m1}, 0xff800000")
    kbase()
    a("LA_slow_max:")
    for t in range(2):
        kloads(t)
        a("s_waitcnt vmcnt(0)")
        a(mfma32(X, Km[0], Qm[0], 0))
        a(mfma32(X + 16, Km[0], Qm[1], 0))
        a("s_nop 9")
        a(mfma2b(X, t, vr(X, 32)))
        a("s_nop 15\ns_nop 3")
        rowmax(a, X, t0, t1)
        a(f"v_max_f32 v{m0}, v{m0}, v{t0}\nv_max_f32 v{m1}, v{m1}, v{t1}")
    a(f"s_add_u32 s{sRem}, s{sRem}, 1\ns_cmp_lt_u32 s{sRem}, 32\ns_cbranch_scc1 LA_slow_max")
    cross_half_max(a, m0, t0)
    cross_half_max(a, m1, t0)
    fill_nm(a, m0, m1)
    for r in range(32):
        a(f"v_mov_b32 v{OA[0]+r}, 0")
    for r in range(8):
        a(f"v_mov_b32 v{Vb[0][0]+r}, 0x3f803f80")
    kbase()
    a(f"""
    s_mul_i32 s{sT3}, s{sHead}, 320
    s_add_u32 s{sT3}, s{sT3}, s{sT0}
    s_add_u32 s{sT3}, s{sT3}, {IMG}
    LA_slow_pv:
    """)
    for t in range(2):
        kloads(t)
        a(f"""
        s_add_u32 s{sT4}, s{sT3}, 20480
        s_mov_b32 exec_lo, 0xfffff
        s_mov_b32 exec_hi, 0xfffff
        buffer_load_dwordx4 {vr(Vb[0][0],4)}, v{vVG}, {WSR()}, s{sT3} offen sc1
        buffer_load_dwordx4 {vr(Vb[0][1],4)}, v{vVG}, {WSR()}, s{sT4} offen sc1
        s_mov_b64 exec, -1
        s_add_u32 s{sT3}, s{sT3}, {TILE}
        s_waitcnt vmcnt(2)
        """)
        a(mfma32(X, Km[0], Qm[0], vr(NM, 16)))
        a(mfma32(X + 16, Km[0], Qm[1], vr(NM + 16, 16)))
        a("s_nop 9")
        a(mfma2b(X, t, vr(X, 32)))
        a("s_nop 15\ns_nop 3")
        for r in range(32):
            a(f"v_exp_f32 v{X+r}, v{X+r}")
        a("s_nop 0")
        for j in range(16):
            a(f"v_cvt_pk_bf16_f32 v{X + 8*(j//4) + j%4}, v{X+2*j}, v{X+2*j+1}")
        a("s_waitcnt vmcnt(0)\ns_nop 1")
        a(mfma32(OA[0], Vb[0][0], X, vr(OA[0], 16)))
        a(mfma32(OA[0], Vb[0][1], X + 8, vr(OA[0], 16)))
        a(mfma32(OA[1], Vb[0][0], X + 16, vr(OA[1], 16)))
        a(mfma32(OA[1], Vb[0][1], X + 24, vr(OA[1], 16)))
    a(f"""
    s_add_u32 s{sRem}, s{sRem}, 1
    s_cmp_lt_u32 s{sRem}, 32
    s_cbranch_scc1 LA_slow_pv
    s_nop 15
    s_mov_b32 s{sRem}, 1
    s_branch LA_epi
    """)


pWF = [16, 56]
pACC = 96
pACL = 196
pOF = 136
pWA, pOA = 2, 3


def c3_off(a, dst, t64, part):
    a(f"""
    s_lshl_b32 s{dst}, s{sBr}, 5
    s_add_u32 s{dst}, s{dst}, s{t64}
    s_mul_i32 s{dst}, s{dst}, 3
    s_add_u32 s{dst}, s{dst}, s{part}
    s_lshl_b32 s{dst}, s{dst}, 7
    s_add_u32 s{dst}, s{dst}, {WS_C3}
    """)


def wo_dma(a, k0, k1, lds0):
    _lbl[0] += 1
    L = f"LP_wd{_lbl[0]}"
    a(f"""
    s_and_b32 s{sT0}, s{sHead}, 3
    s_lshl_b32 s{sT1}, s{sBr}, 2
    s_add_u32 s{sT0}, s{sT0}, s{sT1}
    s_mul_i32 s{sT0}, s{sT0}, {WO_SLAB}
    s_lshl_b32 s{sT1}, s{sJ}, 10
    s_add_u32 s{sT0}, s{sT0}, s{sT1}
    s_add_u32 s{sT0}, s{sT0}, {WS_WO + 10240 * k0}
    s_add_u32 s{sT1}, s{sT1}, {lds0}
    {L}:
    s_mov_b32 m0, s{sT1}
    s_add_u32 s{sT1}, s{sT1}, 4096
    buffer_load_dwordx4 v{vL16}, {WSR()}, s{sT0} offen sc1 lds
    s_add_u32 s{sT0}, s{sT0}, 4096
    s_cmp_lt_u32 s{sT1}, {lds0 + 10240 * (k1 - k0)}
    s_cbranch_scc1 {L}
    """)


def o_addr(a):
    a(f"""
    s_lshl_b32 s{sT1}, s{sQB}, 2
    s_lshr_b32 s{sT2}, s{sHead}, 2
    s_add_u32 s{sT1}, s{sT1}, s{sT2}
    """)
    c3_off(a, sFc, sT1, sRole)
    a(f"""
    v_and_b32 v{vP+3}, 15, v0
    s_lshl_b32 s{sT1}, s{sT1}, 1
    s_lshr_b32 s{sT2}, s{sJ}, 1
    s_add_u32 s{sT1}, s{sT1}, s{sT2}
    s_mul_i32 s{sT1}, s{sT1}, {TILE}
    s_add_u32 s{sT1}, s{sT1}, s{sImg}
    s_and_b32 s{sT2}, s{sJ}, 1
    s_lshl_b32 s{sT2}, s{sT2}, 8
    s_add_u32 s{sT1}, s{sT1}, s{sT2}
    s_add_u32 s{sFo}, s{sT1}, {3 * IMG}
    v_lshrrev_b32 v{pOA}, 4, v0
    v_lshlrev_b32 v{pOA}, 9, v{pOA}
    v_lshl_add_u32 v{pOA}, v{vP+3}, 4, v{pOA}
    v_lshlrev_b32 v{vP+5}, 7, v0
    s_mov_b32 s{sF[0]}, s{sFo}
    s_add_u32 s{sF[1]}, s{sFo}, 10240
    """)


sF = [54, 55]


def o_load_sub(a, label, p0):
    a(f"{label}:\ns_mov_b32 s{sT1}, s{sF[p0 // 5]}")
    for i in range(5):
        a(f"buffer_load_dwordx4 {vr(pOF + 4*(p0 + i), 4)}, v{pOA}, {WSR()}, s{sT1} offen offset:{(i & 1) * 2048} sc1")
        if i & 1:
            a(f"s_add_u32 s{sT1}, s{sT1}, 4096")
    a(f"s_setpc_b64 s[{sLnk}:{sLnk+1}]")


def o_checked(a, label, p0, counted):
    a(f"s_mov_b32 s{sSpin}, {SPIN}\n{label}_chk:\nv_mov_b32 v{vPS}, 0\nv_mov_b32 v{vPS+1}, 0")
    for i in range(5):
        r = pOF + 4 * (p0 + i)
        if counted:
            a(f"s_waitcnt vmcnt({4 - i})")
        a(f"v_max3_u32 v{vPS}, v{vPS}, v{r}, v{r+1}\nv_max3_u32 v{vPS+1}, v{vPS+1}, v{r+2}, v{r+3}")
    a(f"""
    v_max_u32 v{vPS}, v{vPS}, v{vPS+1}
    v_cmp_eq_u32 vcc, -1, v{vPS}
    s_cbranch_vccz {label}_ok
    s_call_b64 s[{sLnk}:{sLnk+1}], {label}
    s_waitcnt vmcnt(0)
    s_sub_u32 s{sSpin}, s{sSpin}, 1
    s_cbranch_scc0 {label}_chk
    {label}_ok:
    """)


def peek(a, mask):
    a(f"""
    v_mov_b32 v{vPS+2}, 0
    s_mov_b64 exec, {mask}
    buffer_atomic_add v{vPS+2}, v{vP+5}, {WSR()}, s{sFc} offen sc0 sc1
    s_mov_b64 exec, -1
    """)


def ready_mask(a):
    a(f"v_cmp_le_u32 vcc, 8, v{vPS+2}\ns_and_b32 s{sPh}, vcc_lo, 3")


def order_sub(a):
    a(f"""
    LP_order:
    s_and_b32 s{sDone}, s{sPh}, 1
    s_xor_b32 s{sDone}, s{sDone}, 1
    s_mul_i32 s{sT0}, s{sDone}, 10240
    s_add_u32 s{sF[0]}, s{sFo}, s{sT0}
    s_sub_u32 s{sF[1]}, s{sFo}, s{sT0}
    s_add_u32 s{sF[1]}, s{sF[1]}, 10240
    """)


TAB = [8, 9, 10, 11, 12, 13, 14, 15, 52, 53]


sLnkM = 6


def oproj_subs(a, G3, Lo0):
    def wreads(p):
        return [f"ds_read_b128 {vr(pWF[p & 1] + 4*c, 4)}, v{pWA} offset:{c * 1024}" for c in range(10)]
    a(f"LP_pro:\nv_add_u32 v{pWA}, s{TAB[0]}, v{vL16}")
    for r in wreads(0):
        a(r)
    a(f"s_setpc_b64 s[{sLnkM}:{sLnkM+1}]")
    for p in range(10):
        if p % 5 == 0:
            a("LP_lo:" if p else "LP_hi:")
        rd = wreads(p + 1) if p < 9 else []
        if rd:
            a(f"v_add_u32 v{pWA}, s{TAB[p + 1]}, v{vL16}")
        for c in range(10):
            A = (pACL if p >= 5 else pACC) + 4 * c
            a(f"s_waitcnt lgkmcnt({9 if rd else 9 - c})")
            a(f"v_mfma_f32_16x16x32_bf16 {vr(A,4)}, {vr(pOF + 4*p, 4)}, {vr(pWF[p & 1] + 4*c, 4)}, {vr(A,4)}")
            if rd:
                a(rd[c])
            site = 2 * (p - 5) + c // 5
            if p >= 5 and c % 5 == 0 and site < 9:
                a(f"s_cbranch_scc1 LW_{site}\nLW_b{site}:")
            if p == MID_P and c == 9:
                a("s_cbranch_scc1 LP_mid\nLP_midb:")
        if p % 5 == 4:
            a(f"s_setpc_b64 s[{sLnkM}:{sLnkM+1}]")
    for site in range(9):
        a(f"LW_{site}:")
        n = 3 if site < 5 else 2
        if site == 0:
            a(f"s_mul_i32 s{sT1}, s{sJ}, {15 * 1024}\ns_add_u32 s{sT2}, s{sT0}, s{sT1}\ns_add_u32 m0, s{sT1}, {G3}")
        elif site == 5:
            a(f"s_lshl_b32 s{sT1}, s{sJ}, 13\ns_add_u32 s{sT2}, s{sT0}, s{sT1}\ns_add_u32 s{sT2}, s{sT2}, {6 * 10240}\ns_add_u32 m0, s{sT1}, {Lo0}")
        else:
            a(f"s_add_u32 m0, m0, {n * 1024}\ns_add_u32 s{sT2}, s{sT2}, {n * 1024}")
        a("s_cmp_eq_u32 0, 0")
        if site == 7:
            peek(a, 3)
        for i in range(n):
            a(f"buffer_load_dwordx4 v{vL16}, {WSR()}, s{sT2} offen offset:{i * 1024} sc1 lds")
        a(f"s_branch LW_b{site}")
    a("LP_mid:\ns_waitcnt vmcnt(0)")
    ready_mask(a)
    a(f"s_cmp_eq_u32 s{sPh}, 3\ns_cbranch_scc0 LP_midb\ns_call_b64 s[{sLnk}:{sLnk+1}], LP_ldlo\ns_branch LP_midb")


MID_P = 4
WOVEN_PRIO = 1


def set_tab(a, addrs):
    for r, x in zip(TAB, addrs):
        a(f"s_mov_b32 s{r}, {x}")


def out_addr(a):
    a.c("lane n = l & 15 holds columns 8n..8n+7 of a 128-column piece and 2n, 2n+1 of a 32-column piece (tokens 4*(l >> 4) + r);")
    a.c("odd column groups start with the narrow piece, so that the wide one covers whole 128-B lines")
    a(f"""
    s_lshl_b32 s{sT0}, s{sQB}, 2
    s_lshr_b32 s{sT1}, s{sHead}, 2
    s_add_u32 s{sT0}, s{sT0}, s{sT1}
    s_lshl_b32 s{sT0}, s{sT0}, 2
    s_add_u32 s{sT0}, s{sT0}, s{sJ}
    s_mul_i32 s{sT0}, s{sT0}, {16 * 2560}
    s_mul_i32 s{sT1}, s{sBr}, 1280
    s_add_u32 s{sT0}, s{sT0}, s{sT1}
    s_and_b32 s{sT1}, s{sHead}, 3
    s_mul_i32 s{sT1}, s{sT1}, 320
    s_add_u32 s{sXo}, s{sT0}, s{sT1}
    s_add_u32 s{sWo}, s{sXo}, {2 * 2560}
    v_lshrrev_b32 v4, 4, v0
    v_mul_u32_u24 v4, {4 * 2560}, v4
    v_and_b32 v6, 15, v0
    s_and_b32 s{sT0}, s{sHead}, 1
    s_cselect_b32 s{sT0}, 64, 0
    s_cselect_b32 s{sT1}, 0, 256
    v_lshl_add_u32 v5, v6, 2, v4
    v_lshl_add_u32 v4, v6, 4, v4
    v_add_u32 v4, s{sT0}, v4
    v_add_u32 v5, s{sT1}, v5
    """)


def out_store(a):
    OUTMOD = " nt" if 'outnt' in OPT else " sc1 nt" if 'outsnt' in OPT else " sc1"
    for r in range(4):
        if r % 2 == 0:
            for c in range(10):
                a(f"v_pk_add_f32 {vr(pACC + 4*c + r, 2)}, {vr(pACC + 4*c + r, 2)}, {vr(pACL + 4*c + r, 2)}")
        P = 16 + 6 * r
        for j in range(5):
            a(f"v_cvt_pk_bf16_f32 v{P+j}, v{pACC + 8*j + r}, v{pACC + 8*j + 4 + r}")
        so = sXo if r < 2 else sWo
        a(f"buffer_store_dwordx4 {vr(P,4)}, v4, s[{sOut}:{sOut+3}], s{so} offen offset:{(r & 1) * 2560}{OUTMOD}")
        a(f"buffer_store_dword v{P+4}, v5, s[{sOut}:{sOut+3}], s{so} offen offset:{(r & 1) * 2560}{OUTMOD}")


rL, rT, rD, rX, rData = 194, 199, 201, 205, 208


def repack_setup(a):
    x = rX
    for i in range(5):
        a(f"""
        v_add_u32 v{x}, {64 * i}, v0
        v_mul_u32_u24 v{x+1}, 3277, v{x}
        v_lshrrev_b32 v{x+1}, 16, v{x+1}
        v_mul_u32_u24 v{x+2}, 20, v{x+1}
        v_sub_u32 v{x+2}, v{x}, v{x+2}
        v_mul_u32_u24 v{x+1}, 1280, v{x+1}
        v_lshl_add_u32 v{rL+i}, v{x+2}, 4, v{x+1}
        """)
    a(f"""
    v_and_b32 v{x}, 48, v0
    v_lshlrev_b32 v{x}, 4, v{x}
    v_add_u32 v{x}, {RPK}, v{x}
    v_and_b32 v{x+1}, 7, v0
    v_mul_u32_u24 v{x+1}, 1040, v{x+1}
    v_and_b32 v{x+2}, 8, v0
    v_lshl_add_u32 v{x+1}, v{x+2}, 1, v{x+1}
    v_add_u32 v{rD}, v{x}, v{x+1}
    v_and_b32 v{x+1}, 1, v0
    v_mul_u32_u24 v{x+1}, 1040, v{x+1}
    v_and_b32 v{x+2}, 14, v0
    v_lshl_add_u32 v{x+1}, v{x+2}, 3, v{x+1}
    v_add3_u32 v{rD+1}, v{x}, v{x+1}, 0
    v_lshrrev_b32 v{x}, 4, v0
    v_lshlrev_b32 v{x}, 3, v{x}
    v_lshrrev_b32 v{x+1}, 2, v0
    v_and_b32 v{x+1}, 3, v{x+1}
    v_add_u32 v{x}, v{x}, v{x+1}
    v_mul_u32_u24 v{x}, 320, v{x}
    v_and_b32 v{x+1}, 3, v0
    v_lshl_add_u32 v{x}, v{x+1}, 3, v{x}
    v_add_u32 v{x}, {RPK}, v{x}
    s_and_b32 s{sT0}, s2, 2
    s_cselect_b32 s{sT0}, 64, 0
    s_cselect_b32 s{sT1}, 0, 256
    v_add_u32 v{rT}, s{sT0}, v{x}
    v_add_u32 v{rT+1}, s{sT1}, v{x}
    v_add_u32 v{rX}, {RPK}, v{vL16}
    """)


sRu, sRs = 38, 39


def repack_steps(a):
    a(f"""
    LR_step:
    s_add_u32 s{sRp}, s{sRp}, 1
    s_and_b32 s{sT3}, s{sRu}, 3
    s_lshl_b32 s{sT4}, s{sBr}, 2
    s_add_u32 s{sT4}, s{sT4}, s{sT3}
    s_cmp_eq_u32 s{sRs}, 0
    s_cbranch_scc1 LR_load
    s_cmp_eq_u32 s{sRs}, 1
    s_cbranch_scc0 LR_s2
    s_lshr_b32 s{sT2}, s{sRu}, 2
    s_mul_i32 s{sT0}, s{sT4}, {WO_SLAB}
    s_mul_i32 s{sT2}, s{sT2}, 10240
    s_add_u32 s{sT0}, s{sT0}, s{sT2}
    s_add_u32 s{sT0}, s{sT0}, {WS_WO}
    """)
    for ct in range(10):
        for u in range(2):
            a(f"ds_read_b64_tr_b16 {vr(rData + 4*ct + 2*u, 2)}, v{rT + ct // 8} offset:{u*4*320 + (ct % 8)*32}")
        if ct == 4:
            a("s_waitcnt lgkmcnt(0)")
    a("s_waitcnt lgkmcnt(0)")
    for ct in range(10):
        a(f"ds_write_b128 v{rD + ct // 8}, {vr(rData + 4*ct, 4)} offset:{32 * ct if ct < 8 else 8 * 1040 + 128 * (ct - 8)}")
    a("s_waitcnt lgkmcnt(0)")
    for c in range(10):
        a(f"ds_read_b128 {vr(rData + 4*c, 4)}, v{rX} offset:{1040 * c}")
    for c in range(10):
        a(f"s_waitcnt lgkmcnt({9 - c})")
        a(f"buffer_store_dwordx4 {vr(rData + 4*c, 4)}, v{vL16}, {WSR()}, s{sT0} offen offset:{1024 * (c & 3)} sc1")
        if c & 3 == 3:
            a(f"s_add_u32 s{sT0}, s{sT0}, 4096")
    a(f"""
    s_mov_b32 s{sRs}, 2
    s_cmp_lt_u32 s{sRu}, 16
    s_cbranch_scc0 LA_bar
    s_add_u32 s{sRu}, s{sRu}, 64
    LR_load:
    s_mov_b32 s{sRs}, 1
    s_mov_b32 s{sWt}, s{sPtr+2}
    s_and_b32 s{sWt+1}, s{sPtr+3}, 0xffff
    s_mov_b32 s{sWt+2}, {D * D * 2}
    s_mov_b32 s{sWt+3}, 0x00020000
    s_lshr_b32 s{sT2}, s{sRu}, 2
    s_mul_i32 s{sT0}, s{sT2}, {32 * 1280}
    s_mul_i32 s{sT1}, s{sT3}, 320
    s_add_u32 s{sT0}, s{sT0}, s{sT1}
    s_mov_b32 m0, {RPK}
    s_add_u32 s{sT1}, s{sT0}, {16 * 1280}
    """)
    for i in range(10):
        a(f"buffer_load_dwordx4 v{rL + i % 5}, s[{sWt}:{sWt+3}], s{sT1 if i >= 5 else sT0} offen lds")
        a("s_add_u32 m0, m0, 1024\ns_nop 0")
    a(f"""
    s_branch LA_bar
    LR_s2:
    s_mov_b32 s{sRp}, -1
    s_lshl_b32 s{sT0}, s{sT4}, 7
    s_add_u32 s{sT0}, s{sT0}, {WS_C4}
    """)
    count_in(a, sT0, vP, vP + 1)
    a("s_branch LA_bar")


def write_ones(a, role):
    a(f"""
    v_and_b32 v{vT0}, 7, v0
    v_mul_u32_u24 v{vT0}, 640, v{vT0}
    v_add_u32 v{vT0}, {ONES[role]}, v{vT0}
    v_mov_b32 v16, 0x3f803f80
    v_mov_b32 v17, 0x3f803f80
    v_mov_b32 v18, 0x3f803f80
    v_mov_b32 v19, 0x3f803f80
    ds_write_b128 v{vT0}, v[16:19]
    """)


sL = 8


def lead_prepare(a):
    a(f"""
    s_lshr_b32 s{sRu}, s2, 3
    s_lshl_b32 s{sRu}, s{sRu}, 1
    s_bfe_u32 s{sT0}, s2, 0x10001
    s_add_u32 s{sRu}, s{sRu}, s{sT0}
    s_mov_b32 s{sRs}, 0
    s_and_b32 s{sT0}, s2, 1
    s_cselect_b32 s{sT0}, 0, s{sJ}
    s_cmp_eq_u32 s{sT0}, 1
    s_cselect_b32 s{sRp}, {RP_AT}, -1
    s_mov_b32 s{sM}, 0
    s_mov_b32 s{sMend}, 0
    s_mov_b32 s{sRb}, {RA}
    s_mov_b32 s{sNext}, {RA + BLK}
    """)
    attn_zero(a)
    o_base(a)
    a(f"""
    s_sub_u32 s{sT0}, s{sOb}, {3 * IMG}
    s_add_u32 s{sL},  s{sT0}, s{sOm}
    s_add_u32 s{sL+1}, s{sL},  {TILE}
    s_add_u32 s{sL+2}, s{sT0}, s{sExt}
    s_lshr_b32 s{sT3}, s{sJ}, 1
    s_mul_i32 s{sT1}, s{sT3}, {4 * TILE}
    s_add_u32 s{sT1}, s{sT1}, s{sImg}
    s_add_u32 s{sT1}, s{sT1}, {IMG}
    s_and_b32 s{sL+4}, s{sQB if 'kvrot' in OPT else sHead}, 7
    s_mul_i32 s{sL+3}, s{sL+4}, {8 * TILE}
    s_add_u32 s{sL+3}, s{sL+3}, s{sT1}
    s_add_u32 s{sL+4}, s{sL+4}, 1
    s_and_b32 s{sL+4}, s{sL+4}, 7
    s_mul_i32 s{sL+4}, s{sL+4}, {8 * TILE}
    s_add_u32 s{sL+4}, s{sL+4}, s{sT1}
    s_mul_i32 s{sL+5}, s{sT3}, {CH}
    s_and_b32 s{sL+6}, s{sJ}, 1
    s_mul_i32 s{sT4}, s{sL+6}, 6144
    s_add_u32 s{sL+5}, s{sL+5}, s{sT4}
    s_add_u32 m0, s{sL+5}, {RA + BLK}
    """)
    a(f"""
    s_lshl_b32 s{sL+7}, s{sBr}, 5
    s_add_u32 s{sL+7}, s{sL+7}, s{sHead}
    s_lshl_b32 s{sL+7}, s{sL+7}, 9
    s_add_u32 s{sL+7}, s{sL+7}, {WS_C1}
    """)


def common_setup(a):
    a(f"""
    s_and_b32 s{sT0}, s2, 1
    s_lshl_b32 s{sT0}, s{sT0}, 3
    s_and_b32 s{sT1}, s2, 2
    s_lshl_b32 s{sT1}, s{sT1}, 1
    s_add_u32 s{sT0}, s{sT0}, s{sT1}
    s_lshr_b32 s{sT2}, s2, 6
    s_add_u32 s{sHead}, s{sT0}, s{sT2}
    s_lshr_b32 s{sQB}, s2, 3
    s_and_b32 s{sQB}, s{sQB}, 7
    s_lshl_b32 s{sT2}, s{sRole}, 4
    s_add_u32 s{sHead}, s{sHead}, s{sT2}
    s_mul_i32 s{sImg}, s{sBr}, {4 * IMG}
    s_mov_b32 s{sPh}, 0
    s_mov_b32 s{sWS+2}, {WS_STAMP + 2048 * 128 if common.STAMP else WS_END}
    s_mov_b32 s{sWS+3}, 0x00020000
    s_mov_b32 s{sOut+2}, {S * 2 * D * 2}
    s_mov_b32 s{sOut+3}, 0x00020000
    s_mov_b32 s{sDbg+2}, 256
    s_mov_b32 s{sDbg+3}, 0x00020000
    s_waitcnt lgkmcnt(0)
    s_mov_b32 s{sOut}, s{sPtr+4}
    s_and_b32 s{sOut+1}, s{sPtr+5}, 0xffff
    s_mov_b32 s{sDbg}, s{sPtr+6}
    s_and_b32 s{sDbg+1}, s{sPtr+7}, 0xffff
    s_and_b32 s{sWS+1}, s{sWS+1}, 0xffff
    """)


def gen(a, label):
    kernel_head(a, label)
    a("s_cmp_ge_u32 s2, 256\ns_cbranch_scc1 LF_end")
    stamp(a, 0)
    a(f"""
    s_bfe_u32 s{sBr}, s2, 0x10002
    s_mul_i32 s{sT0}, s{sBr}, 24
    s_load_dwordx2 s[{sX}:{sX+1}], s[0:1], s{sT0}
    s_add_u32 s{sT1}, s{sT0}, 8
    s_load_dwordx4 s[{sPtr}:{sPtr+3}], s[0:1], s{sT1}
    s_load_dwordx4 s[{sPtr+4}:{sPtr+7}], s[0:1], 48
    s_load_dwordx2 s[{sWS}:{sWS+1}], s[0:1], 64
    v_lshrrev_b32 v1, 6, v0
    v_and_b32 v0, 63, v0
    v_readfirstlane_b32 s{sW}, v1
    """)
    if 'noearly' not in OPT and 'bearly' in OPT:
        a.c("waves 4-6 start the address translations of X and W as soon as the pointers are there")
        a(f"""
        s_sub_u32 s{sT1}, s{sW}, 4
        s_cmp_lt_u32 s{sT1}, 3
        s_cbranch_scc0 LF_nt
        s_lshl_b32 s{sT1}, s{sT1}, 20
        s_waitcnt lgkmcnt(0)
        s_load_dword s6, s[{sX}:{sX+1}], s{sT1}
        s_load_dword s7, s[{sPtr}:{sPtr+1}], s{sT1}
        LF_nt:
        """)
    elif 'noearly' not in OPT:
        a.c("the loader waves start the address translations of X and W as soon as the pointers are there")
        a(f"""
        s_cmp_lt_u32 s{sW}, 4
        s_cbranch_scc0 LF_nt
        s_mul_i32 s{sT1}, s{sW}, {(D * 3 * D * 2 - 4) // 3 // 4 * 4}
        s_waitcnt lgkmcnt(0)
        s_load_dword s6, s[{sX}:{sX+1}], s{sT1}
        s_load_dword s7, s[{sPtr}:{sPtr+1}], s{sT1}
        """)
        if 'noe2' not in OPT:
            a(f"s_mov_b32 s{sT1}, {WS_END - 4}\ns_load_dword s6, s[{sWS}:{sWS+1}], s{sT1}\ns_load_dword s7, s[{sPtr+6}:{sPtr+7}], 0")
        a("LF_nt:")
    if MAP == 0:
        a(f"""
        s_and_b32 s{sT0}, s2, 3
        s_lshl_b32 s{sT0}, s{sT0}, 2
        s_bfe_u32 s{sT2}, s2, 0x20003
        s_add_u32 s{sTB}, s{sT0}, s{sT2}
        s_lshr_b32 s{sTI}, s2, 5
        """)
    else:
        a(f"""
        s_and_b32 s{sT0}, s2, 2
        s_lshl_b32 s{sT0}, s{sT0}, 2
        s_bfe_u32 s{sT2}, s2, 0x30003
        s_add_u32 s{sTB}, s{sT0}, s{sT2}
        s_lshr_b32 s{sTI}, s2, 6
        s_lshl_b32 s{sTI}, s{sTI}, 1
        s_and_b32 s{sT0}, s2, 1
        s_add_u32 s{sTI}, s{sTI}, s{sT0}
        s_and_b32 s{sT2}, s{sT2}, 3
        """)
    if 'nocw' not in OPT:
        a.c("wave 7 pulls a quarter of the code into the L2, so that later instruction fetches find it there")
        a(f"""
        s_cmp_eq_u32 s{sW}, 7
        s_cbranch_scc0 LG_nocw
        s_getpc_b64 s[4:5]
        LG_pc:
        s_sub_u32 s4, s4, LG_pc-{label}
        s_subb_u32 s5, s5, 0
        s_lshl_b32 s{sT0}, s{sT2}, 13
        v_lshl_add_u32 v8, v0, 7, s{sT0}
        v_min_u32 v8, LF_codeend-{label}-4, v8
        global_load_dword v{gT+1}, v8, s[4:5]
        LG_nocw:
        """)
    a.c("phase-a units of tile ti: n = 2 ti + e, unit = n + 5 (n >= 5) + 5 (n >= 10)")
    a(f"""
    s_lshl_b32 s{sU0}, s{sTI}, 1
    s_cmp_ge_u32 s{sTI}, 5
    s_cselect_b32 s{sT0}, 10, 5
    s_cmp_ge_u32 s{sTI}, 3
    s_cselect_b32 s{sT0}, s{sT0}, 0
    s_add_u32 s{sU0}, s{sU0}, s{sT0}
    s_cmp_eq_u32 s{sTI}, 2
    s_cselect_b32 s{sT0}, 6, 1
    s_add_u32 s{sU1}, s{sU0}, s{sT0}
    s_and_b32 s{sJ}, s{sW}, 3
    s_lshr_b32 s{sRole}, s{sW}, 2
    s_cbranch_scc1 LG_start
    """)
    gemm_loader(a)
    a("LG_start:")
    common_setup(a)
    if CLR_AT < 0:
        clear_counters(a, "LG")
    gemm_compute(a)
    a("LG_idle:\ns_waitcnt lgkmcnt(0)\ns_barrier")
    drained(a)
    a("s_barrier")
    if PAIR_Q < 160:
        a("s_barrier")
    a("LG_done:")
    if PAIR_Q >= 160:
        a("s_barrier")
    stamp(a, 3)
    a(f"s_setprio {BLEAD_PRIO}")
    vectors_get(a)
    write_ones(a, 1)
    a(f"s_mov_b32 s{sM}, {SK}\ns_mov_b32 s{sMend}, {(1 << (SK + 5)) - 1}\ns_mov_b32 s{sRb}, {RB}\ns_mov_b32 s{sNext}, {RB}")
    attn_zero(a)
    a.c("the last wave whose stores have drained publishes the tile")
    a(f"""
    v_mov_b32 v246, {LCNT}
    v_mov_b32 v247, 1
    v_mov_b32 v20, -1
    v_mov_b32 v21, -1
    v_mov_b32 v22, -1
    v_mov_b32 v23, -1
    s_setprio 2
    s_barrier
    s_waitcnt vmcnt(0)
    s_mov_b64 exec, 1
    ds_add_rtn_u32 v249, v246, v247
    s_mov_b64 exec, -1
    s_waitcnt lgkmcnt(0)
    v_readfirstlane_b32 s{sT0}, v249
    s_cmp_eq_u32 s{sT0}, 3
    s_cbranch_scc0 LG_nopub
    s_cmp_eq_u32 s{sTI}, 7
    s_cbranch_scc1 LG_nopub
    s_call_b64 s[{sLnk}:{sLnk+1}], LG_publish
    LG_nopub:
    """)
    stamp(a, 27)
    call_dma(a, 0, 2)
    if 'marklate' not in OPT:
        o_mark(a)
    a(f"s_mov_b32 s{sRp}, -1\ns_waitcnt vmcnt(0)\ns_barrier")
    poll_f1(a)
    stamp(a, 26)
    load_q(a)
    call_dma(a, 1, 0)
    call_dma(a, 0, 3)
    a("s_waitcnt vmcnt(0) lgkmcnt(0)\ns_barrier")
    call_dma(a, 1, 1)
    call_dma(a, 0, 4)
    call_dma(a, 1, 2)
    if 'marklate' in OPT:
        o_mark(a)
    if 'blow' in OPT:
        a("s_setprio 1")
    scale_q(a, 63)
    stamp(a, 5)
    a("s_branch LA_start")
    a("LA_lead:")
    a("s_setprio 3")
    def small_writes():
        a(f"s_cmp_lt_u32 s{sJ}, 2\ns_cbranch_scc0 LA_sw1")
        vectors_put(a)
        a(f"s_branch LA_sw2\nLA_sw1:\nv_mov_b32 v{vP+2}, {LCNT}\ns_mov_b64 exec, 0xff\nds_write_b32 v{vP+2}, v{vP+1}")
        write_ones(a, 0)
        a("LA_sw2:")
    poll_counter(a, vP + 3, f"s{sL+7}", f"s{sExp}", 7, small_writes)
    stamp(a, 1)
    a(f"""
    buffer_load_dwordx4 {vr(Qm[0],4)}, v{vL16}, {WSR()}, s8 offen sc1
    buffer_load_dwordx4 {vr(Qm[1],4)}, v{vL16}, {WSR()}, s9 offen sc1
    buffer_load_dwordx2 {vr(Qe,2)}, v{vE16}, {WSR()}, s10 offen sc1
    """)
    for blk in range(2):
        for p in range(5):
            a(f"buffer_load_dwordx4 v{vD+p}, {WSR()}, s{11 + blk} offen sc1 lds")
            a("s_add_u32 m0, m0, 1024")
            a("s_nop 0" if p < 4 else "s_cmp_eq_u32 s14, 1")
        a(f"s_cbranch_scc1 LA_ld{blk}\nbuffer_load_dwordx4 v{vD+5}, {WSR()}, s{11 + blk} offen sc1 lds\nLA_ld{blk}:")
        if blk == 0:
            a(f"s_add_u32 m0, s13, {RA + 2 * BLK}\ns_nop 0")
    scale_q(a, 10)
    a("s_waitcnt vmcnt(5) lgkmcnt(0)\ns_barrier\ns_setprio 1")
    stamp(a, 3)
    attention(a)
    a(f"s_cmp_eq_u32 s{sRole}, 0\ns_cbranch_scc1 LP_a\ns_barrier")
    stamp(a, 6)
    a(f"s_branch {'LF_end' if 'astamp' in OPT else 'LP_end'}\nLP_a:")
    a.c("role-A waves: first half of K while role B finishes, second half once it is published")
    a(f"""
    s_and_b32 s{sT4}, s{sHead}, 3
    s_lshl_b32 s{sT1}, s{sBr}, 2
    s_add_u32 s{sT4}, s{sT4}, s{sT1}
    s_lshl_b32 s{sT4}, s{sT4}, 7
    s_add_u32 s{sT4}, s{sT4}, {WS_C4}
    """)
    G = lambda i: LDS_BYTES - (11 - i) * 10240
    Lo = lambda i: RB + i * 10240
    assert SK == 3 and G(0) >= RB + 2 * BLK and G(3) >= RB + RING and Lo(3) <= RB + BLK + CH
    call = lambda l: a(f"s_call_b64 s[{sLnk}:{sLnk+1}], {l}")

    def tail_setup():
        for r in range(32, 40, 2):
            a(f"v_pk_mov_b32 {vr(pACC + r, 2)}, 0, 0")
        for r in range(32, 40, 2):
            a(f"v_pk_mov_b32 {vr(pACL + r, 2)}, 0, 0")
        for A in (pACC, pACL):
            a(f"v_mfma_f32_32x32x4_2b_bf16 {vr(A,32)}, {vr(pACC + 32, 2)}, {vr(pACC + 32, 2)}, 0")
        o_addr(a)
        out_addr(a)
        a("s_waitcnt vmcnt(0)")
        count_in(a, sOc, vP, vP + 1)
        stamp(a, 6)
        a(f"v_readfirstlane_b32 s{sT0}, v{vPS}\ns_cmp_ge_u32 s{sT0}, 16\ns_cbranch_scc1 LP_wo")
    poll_counter(a, vP + 4, f"s{sT4}", 16, 1, tail_setup)
    a("LP_wo:")
    a("s_setprio 0")
    stamp(a, 20)
    a("s_barrier")
    stamp(a, 21)
    call_dma(a, 1, 7)
    wo_dma(a, 0, 3, G(3))
    peek(a, 1)
    wo_dma(a, 3, 6, G(6))
    a(f"s_waitcnt vmcnt(0)\nv_readfirstlane_b32 s{sT0}, v{vPS+2}\ns_cmp_ge_u32 s{sT0}, 16\ns_cbranch_scc1 LP_seen")
    poll_counter(a, vP + 4, f"s{sFc}", 16, 1)
    a("LP_seen:")
    call("LP_ldhi")
    call("LP_ldlo")
    a(f"s_add_u32 s{sFo}, s{sFo}, 20480\ns_add_u32 s{sFc}, s{sFc}, 128")
    stamp(a, 25)
    a("s_barrier")
    stamp(a, 5)
    mm = lambda l: a(f"s_call_b64 s[{sLnkM}:{sLnkM+1}], {l}")
    set_tab(a, [G(3), G(4), G(5), G(6), G(7), G(8), G(9), G(10), G(0), G(1)])
    mm("LP_pro")
    a("s_waitcnt vmcnt(0)")
    wo_dma(a, 6, 8, G(9))
    wo_dma(a, 8, 11, G(0))
    a("s_cmp_eq_u32 0, 1")
    mm("LP_hi")
    a(f"""
    s_and_b32 s{sT0}, s{sHead}, 3
    s_lshl_b32 s{sT1}, s{sBr}, 2
    s_add_u32 s{sT0}, s{sT0}, s{sT1}
    s_mul_i32 s{sT0}, s{sT0}, {WO_SLAB}
    s_add_u32 s{sT0}, s{sT0}, {WS_WO + 10240 * 11}
    s_waitcnt vmcnt(0) lgkmcnt(0)
    """)
    assert Lo(0) + 32768 <= RB + BLK + CH
    stamp(a, 26)
    a("s_barrier")
    stamp(a, 28)
    a(f"s_setprio {WOVEN_PRIO}\ns_cmp_eq_u32 0, 0")
    mm("LP_lo")
    stamp(a, 10)
    a("s_waitcnt vmcnt(4)")
    ready_mask(a)
    a("s_cbranch_scc0 LP_n1")
    call("LP_order")
    a(f"s_waitcnt vmcnt(5)\ns_barrier\ns_branch LP_n2\nLP_n1:\ns_waitcnt vmcnt(0)\ns_barrier\ns_mov_b32 s{sSpin}, {SPIN}\nLP_any:")
    peek(a, 3)
    a("s_waitcnt vmcnt(0)")
    ready_mask(a)
    a(f"s_cbranch_scc1 LP_got\ns_sleep {SLEEP}\ns_sub_u32 s{sSpin}, s{sSpin}, 1\ns_cbranch_scc0 LP_any\nLP_got:")
    call("LP_order")
    a("LP_n2:")
    stamp(a, 30)
    T = [G(2), G(3), G(4), G(5), G(6), G(7), G(8), Lo(0), Lo(1), Lo(2)]
    a(f"s_cmp_eq_u32 s{sPh}, 3\ns_cbranch_scc0 LP_n3")
    call("LP_ldlo")
    a(f"LP_n3:\ns_cmp_eq_u32 s{sDone}, 1")
    for r, x, y in zip(TAB, T, T[5:] + T[:5]):
        a(f"s_mov_b32 s{r}, {x}\ns_cmov_b32 s{r}, {y}")
    mm("LP_pro")
    a.c("each group keeps its own accumulators, so the result does not depend on the order of arrival")
    a("s_cbranch_scc0 LP_n4")
    for r in range(40):
        a(f"v_swap_b32 v{pACC + r}, v{pACL + r}")
    a("LP_n4:")
    a(f"s_waitcnt vmcnt(5)\ns_cmp_eq_u32 s{sPh}, 3\ns_cbranch_scc1 LP_n5\ns_waitcnt vmcnt(0)")
    peek(a, 3)
    a("LP_n5:")
    o_checked(a, "LP_ldhi", 0, False)
    stamp(a, 11)
    a(f"s_cmp_lg_u32 s{sPh}, 3")
    mm("LP_hi")
    stamp(a, 12)
    a(f"s_cmp_eq_u32 s{sPh}, 3\ns_cbranch_scc1 LP_n6")
    poll_counter(a, vP + 5, f"s{sFc}", 8, 3)
    call("LP_ldlo")
    a("LP_n6:")
    o_checked(a, "LP_ldlo", 5, True)
    stamp(a, 2)
    if common.STAMP and not OPT & {'cyc', 'front'}: a(f"s_mov_b32 s{STAMP_S+17}, s{sSpin}")
    a("s_cmp_eq_u32 0, 1")
    mm("LP_lo")
    stamp(a, 16)
    out_store(a)
    a("LP_end:")
    if common.STAMP:
        a("s_waitcnt vmcnt(0)")
        stamp(a, 7)
        stamp_flush(a, 4)
    a("LF_end:\ns_endpgm")
    dma_sub(a)
    refill(a)
    publish_sub(a)
    order_sub(a)
    o_load_sub(a, "LP_ldhi", 0)
    o_load_sub(a, "LP_ldlo", 5)
    oproj_subs(a, G(3), Lo(0))
    repack_steps(a)
    slow_path(a)
    a("LF_codeend:")


def unpack_pk(text):
    import re
    out = []
    for l in text.split("\n"):
        m = re.match(r"\s*v_pk_(add|mul)_f32 v\[(\d+):\d+\], v\[(\d+):\d+\], ([vs])\[(\d+):\d+\](.*)", l)
        z = re.match(r"\s*v_pk_mov_b32 v\[(\d+):\d+\], 0, 0", l)
        if m:
            op, d, x, k, y, mod = m.group(1), int(m.group(2)), int(m.group(3)), m.group(4), int(m.group(5)), m.group(6)
            for i in range(2):
                out.append(f"    v_{op}_f32 v{d+i}, {k}{y + (0 if 'op_sel_hi' in mod else i)}, v{x+i}")
        elif z:
            out += [f"    v_mov_b32 v{int(z.group(1)) + i}, 0" for i in range(2)]
        else:
            out.append(l)
    return "\n".join(out)


def tweak(text):
    out = []
    for l in text.split("\n"):
        if 'kvnt' in OPT and "sc1 lds" in l and any(f" v{vD+i}," in l for i in range(6)):
            l = l.replace("sc1 lds", "sc1 nt lds")
        if 'qnt' in OPT and l.strip().startswith(("buffer_load_dwordx4 v[4:7]", "buffer_load_dwordx4 v[8:11]", "buffer_load_dwordx2 v[12:13]")):
            l += " nt"
        if 'marknt' in OPT and ("v[20:23]" in l or "v[20:21]" in l) and "buffer_store" in l:
            l += " nt"
        out.append(l)
    return "\n".join(out)


def build():
    a = Asm()
    label = NAME + "_kernel"
    a('.amdgcn_target "amdgcn-amd-amdhsa--gfx950"\n.text')
    gen(a, label)
    return (HEADER + f"; @launch grid=(256,1,1) block=(512,1,1) lds={LDS_BYTES}\n" + tweak(a.text())
            + '.section .rodata,"a"\n.p2align 6\n' + kernel_desc(label, NVGPR, NVGPR, 100))


if __name__ == "__main__":
    import sys
    for x in sys.argv[2:]:
        if '=' in x:
            k, v = x.split('='); globals()[k] = int(v)
        else:
            OPT.add(x)
    if 'dbgstamp' in OPT:
        common.STAMP = True
    out = sys.argv[1] if len(sys.argv) > 1 else f"cdna_kernels/{NAME}.s"
    open(out, "w").write(build())
```

```python
import sys, os
sys.path.insert(0, "gen")
args = sys.argv[1:]
sys.argv = sys.argv[:1]
from test_fk import *
common.STAMP = True
modes = [int(x[1:]) for x in args if x.startswith('@')] or [2]
verbose = '-v' in args
variants = [x for x in args if not x.startswith('@') and x != '-v']
import importlib
cos = []; bl = []
for v in variants:
    importlib.reload(fk)
    for x in v.split('+'):
        if '=' in x:
            k, val = x.split('='); setattr(fk, k, [int(z) for z in val.split(',')] if ',' in val else int(val))
        elif x != 'base': fk.OPT.add(x)
    bl.append(list(range(12)) + [15])
    cos.append(assemble1(fk.build(), "fk_" + v.replace('=', '').replace('+', '_').replace(',', '')))
if not os.path.exists('/dev/kfd'): print("assembled"); raise SystemExit
d = make_inputs(0)
qkv, o, out = exact(d)
R = Runner(d); R.poison()
def summary():
    rt = R.ws_read(fk.WS_STAMP, 2048 * 64).view(np.uint32).reshape(256, 8, 32).astype(np.int64)
    t0 = rt[:, :, 0].min()
    f = lambda role, i, fn: fn((rt[:224, 4*role:4*role+4, i] - t0) / 100.0)
    return [f(1, 1, np.median), f(1, 2, np.median), f(0, 3, np.median), f(1, 5, np.median), f(0, 4, np.median), f(1, 4, np.median), f(1, 4, np.max), f(0, 2, np.max), (rt[:, :, 7].max() - t0) / 100.0]
print("cols: first data | gemmA done | A attn start | B attn start | A attn end | B attn end med | B attn end max | O(b) seen max | end | events")
for rep in range(2):
    for v, (co, launches), bars in zip(variants, cos, bl):
        R.load(co, launches)
        for m in modes:
            rows = []; ev = []
            for it in range(15):
                ev.append(R.time(1, cold=m)[0]); rows.append(summary())
            err = np.abs(R.get_out() - out).max()
            print(f"{v:28s} cold={m} " + " ".join(f"{x:6.2f}" for x in np.median(np.array(rows), 0)) + f"  ev {np.median(ev):6.2f} err {err:.4f}", flush=True)
            if verbose and rep == 1:
                rt = R.ws_read(fk.WS_STAMP, 2048 * 64).view(np.uint32).reshape(256, 8, 32).astype(np.int64)
                t0 = rt[:, :, 0].min()
                r = (rt[:224, 0][:, [8 + b for b in bars] + [27, 1]] - t0) / 100.0
                print("    bars", bars, "flag, F1 seen")
                print("    med:", " ".join(f"{x:.2f}" for x in np.median(r, 0)))
                print("    max:", " ".join(f"{x:.2f}" for x in r.max(0)))
                lst = (("start", 0, 0), ("kernarg in", 0, 13), ("first issued", 0, 14), ("setup done", 0, 15), ("#0", 0, 8), ("#1", 0, 9), ("#10", 0, 18), ("gemmA done", 4, 2), ("flag", 0, 27), ("F1 seen", 0, 1), ("A start", 0, 3), ("B gemm done", 4, 3), ("B flag", 4, 27), ("B F1 seen", 4, 26), ("B start", 4, 5), ("A attn end", 0, 4), ("A O flag", 0, 6),
                       ("A at M8", 0, 20), ("M8", 0, 21), ("wo issued", 0, 22), ("A at M9", 0, 25), ("M9", 0, 5), ("A at M10", 0, 26), ("M10", 0, 28), ("A at E1", 0, 29), ("MM(a) done", 0, 30),
                       ("B end", 4, 4), ("B O flag", 4, 6), ("A O(b) seen", 0, 2), ("A end", 0, 7))
                for nm, w, i in lst:
                    g = (rt[:224, w, i] - t0) / 100.0; h = (rt[224:, w, i] - t0) / 100.0
                    print(f"    {nm:14s} min {g.min():.2f} med {np.median(g):.2f} max {g.max():.2f} | ti7: min {h.min():.2f} med {np.median(h):.2f} max {h.max():.2f}")
                for nm, w, i in (("#0", 0, 8), ("#10", 0, 18), ("#15", 0, 23), ("A start", 0, 3), ("A attn end", 0, 4), ("B end", 4, 4)):
                    g = (rt[:, w, i] - t0) / 100.0
                    print(f"    by xcd {nm:11s}", " ".join(f"{np.median(g[x::8]):.2f}/{g[x::8].max():.2f}" for x in range(8)))
                g = (rt[:, 4, 4] - rt[:, 0, 3]) / 100.0
                print(f"    by xcd attn dur   ", " ".join(f"{np.median(g[x::8]):.2f}/{g[x::8].max():.2f}" for x in range(8)))
                c0 = rt[:, 0, 24]
                d = lambda w, i: int(np.median((rt[:, w, i] - c0) & 0xffffffff))
                print("    cycles from A start: B start", d(4, 24), "A end", d(0, 31), "B end", d(4, 31))
                if 'cyc' in v:
                    print("    M barriers (cycles):", [d(0, 8 + m) for m in range(8)], [d(4, 8 + m) for m in range(8, 11)])
                ids = np.arange(256); y = ids >> 3
                for nm, i in (("#0", 8), ("#1", 9), ("#10", 18)):
                    g = (rt[:, 0, i] - t0) / 100.0
                    print(f"    {nm} by ti  ", " ".join(f"{np.median(g[(y >> 2) == k]):.2f}/{g[(y >> 2) == k].max():.2f}" for k in range(8)))
                    print(f"    {nm} by tb&3", " ".join(f"{np.median(g[(y & 3) == k]):.2f}/{g[(y & 3) == k].max():.2f}" for k in range(4)))
                    kb = ((y & 3) * 5 + 1) // 2 + (y >> 2); kb = kb % 10
                    print(f"    {nm} by kb0 ", " ".join(f"{np.median(g[kb == k]):.2f}" for k in range(10)))
                late = np.argsort(rt[:, 4, 4])[-24:]
                dl = lambda w, i: int(np.median((rt[late, w, i] - c0[late]) & 0xffffffff))
                print("    latest 24: ids%8", np.bincount(late % 8, minlength=8).tolist(), "A start", np.median((rt[late, 0, 3] - t0) / 100.0), "B end", np.median((rt[late, 4, 4] - t0) / 100.0), "cycles B end", dl(4, 31))
                if 'cyc' in v:
                    m = [dl(0, 8 + k) for k in range(8)] + [dl(4, 8 + k) for k in range(8, 11)] + [dl(4, 31)]
                    print("    latest 24 intervals:", [m[0]] + [b - a_ for a_, b in zip(m[:-1], m[1:])])
                print("    waves that had to poll the clear counter:", int(rt[:, :4, 22].sum()))
```
